```python
import torch

def _softmax(x, axis=-1):
    return torch.softmax(x, dim=axis)
def _gelu(x):
    return torch.nn.functional.gelu(x, approximate="tanh")
def _silu(x):
    return torch.nn.functional.silu(x)
def _sigmoid(x):
    return torch.sigmoid(x)
def _layernorm(x, axis=-1, eps=1e-5):
    m = x.mean(dim=axis, keepdim=True)
    v = x.var(dim=axis, keepdim=True, unbiased=False)
    return (x - m) / torch.sqrt(v + eps)
def _scatter_add(tgt, idx, src, axis=0):
    return tgt.clone().index_add_(axis, idx, src)
def _segment_sum(src, seg, n):
    out = torch.zeros((n,) + src.shape[1:], dtype=src.dtype)
    return out.index_add_(0, seg, src)
def _pad(x, pw):
    flat = tuple(v for pair in reversed(pw) for v in pair)
    return torch.nn.functional.pad(x, flat)

kernel_name = 'parallel_sum__grouped_kv_mqa__dense_activation_squared_relu__prompt'

def setup_inputs():

    _w = (lambda a: (lambda t: t.to(torch.bfloat16) if t.is_floating_point() else t)(torch.as_tensor(a)))
    def _A_setup():
        B, S, D, H = 1, 2048, 512, 32
        Dh = D // H
        return {
            "x": _w((lambda *s: torch.randn(*s, dtype=torch.bfloat16) * 0.05)(B, S, D)),
            "wq": _w((lambda *s: torch.randn(*s, dtype=torch.bfloat16) * 0.2)(D, H * Dh)),
            "wk": _w((lambda *s: torch.randn(*s, dtype=torch.bfloat16) * 0.2)(D, Dh)),
            "wv": _w((lambda *s: torch.randn(*s, dtype=torch.bfloat16) * 0.1)(D, Dh)),
            "wo": _w((lambda *s: torch.randn(*s, dtype=torch.bfloat16) * 0.1)(H * Dh, D)),
        }
    _A_in = _A_setup()

    def _B_setup():
        B, S, D, F = 1, 2048, 512, 1376
        return {
            "x": _w((lambda *s: torch.randn(*s, dtype=torch.bfloat16) * 0.05)(B, S, D)),
            "w1": _w((lambda *s: torch.randn(*s, dtype=torch.bfloat16) * 0.05)(D, F)),
            "b1": _w((lambda *s: torch.randn(*s, dtype=torch.bfloat16) * 1.6)(F)),
            "w2": _w((lambda *s: torch.randn(*s, dtype=torch.bfloat16) * 0.05)(F, D)),
            "b2": _w((lambda *s: torch.randn(*s, dtype=torch.bfloat16) * 6.4)(D)),
        }
    _B_in = _B_setup()

    return {
        "A_x": _A_in["x"],
        "A_wq": _A_in["wq"],
        "A_wk": _A_in["wk"],
        "A_wv": _A_in["wv"],
        "A_wo": _A_in["wo"],
        "B_x": _B_in["x"],
        "B_w1": _B_in["w1"],
        "B_b1": _B_in["b1"],
        "B_w2": _B_in["w2"],
        "B_b2": _B_in["b2"],
    }

def reference(A_x, A_wq, A_wk, A_wv, A_wo, B_x, B_w1, B_b1, B_w2, B_b2):
    def _A_ref(x, wq, wk, wv, wo):
        B, S, D = x.shape
        H = 32
        Dh = D // H
        q = (lambda x, *d: x.permute(*d))((x @ wq).reshape(B, S, H, Dh), 0, 2, 1, 3)
        k = x @ wk
        v = x @ wv
        scores = torch.einsum("bhqd,bkd->bhqk", q, k) * (Dh ** -0.5)
        p = _softmax(scores, axis=-1)
        o = torch.einsum("bhqk,bkd->bhqd", p, v)
        return (lambda x, *d: x.permute(*d))(o, 0, 2, 1, 3).reshape(B, S, H * Dh) @ wo

    def _B_ref(x, w1, b1, w2, b2):
        h = torch.einsum("bsd,df->bsf", x, w1) + b1
        zero = torch.zeros_like(h)
        r = torch.where(h > zero, h, zero)
        h = r * r
        out = torch.einsum("bsf,fd->bsd", h, w2) + b2
        return out

    x = A_x
    xn = _layernorm(x, axis=-1)
    return x + _A_ref(xn, A_wq, A_wk, A_wv, A_wo) + _B_ref(xn, B_w1, B_b1, B_w2, B_b2)
```

```python
import re

class Asm:
    def __init__(self):
        self.lines = []
        self.uid = 0
    def __call__(self, s):
        for l in s.strip("\n").split("\n"):
            l = l.strip()
            if l:
                self.lines.append(l)
    def label(self, name):
        self.lines.append(name + ":")
    def newlabel(self, base="L"):
        self.uid += 1
        return f"{base}_{self.uid}"
    def comment(self, s):
        self.lines.append("; " + s)
    def text(self):
        out = []
        for l in self.lines:
            if l.endswith(":") or l.startswith("."):
                out.append(l)
            else:
                out.append("    " + l)
        return "\n".join(out) + "\n"

def vr(a, n=1):
    return f"v{a}" if n == 1 else f"v[{a}:{a+n-1}]"
def sr(a, n=1):
    return f"s{a}" if n == 1 else f"s[{a}:{a+n-1}]"

_reg = re.compile(r"(?<![\w.])([vsa])(?:(\d+)|\[(\d+):(\d+)\])(?![\w])")
def regs_of(tok):
    out = []
    for m in _reg.finditer(tok):
        k = m.group(1)
        if m.group(2) is not None:
            out.append((k, int(m.group(2))))
        else:
            out += [(k, i) for i in range(int(m.group(3)), int(m.group(4)) + 1)]
    t = tok.strip()
    if t in ("vcc",): out += [("s", 106), ("s", 107)]
    if t == "exec": out += [("s", 126), ("s", 127)]
    if t == "m0": out.append(("s", 124))
    return out

TRANS = ("v_exp_f32", "v_log_f32", "v_rcp_f32", "v_rsq_f32", "v_sqrt_f32", "v_sin_f32", "v_cos_f32")

class Ins:
    def __init__(self, line):
        self.line = line
        l = line.split(";")[0].strip()
        p = l.split(None, 1)
        self.op = p[0]
        rest = p[1] if len(p) > 1 else ""
        ops, depth, cur = [], 0, ""
        for ch in rest:
            if ch == "[": depth += 1
            if ch == "]": depth -= 1
            if ch == "," and depth == 0:
                ops.append(cur.strip()); cur = ""
            else:
                cur += ch
        if cur.strip(): ops.append(cur.strip())
        self.mods = ""
        if ops:
            q = ops[-1].split(None, 1)
            if len(q) > 1 and not self.op.startswith("s_waitcnt"):
                ops[-1] = q[0]; self.mods = q[1]
        self.ops = ops
        op = self.op
        self.is_mfma = op.startswith("v_mfma") or op.startswith("v_smfmac")
        self.is_valu = op.startswith("v_") and not self.is_mfma
        self.is_trans = any(op.startswith(t) for t in TRANS)
        self.is_ds = op.startswith("ds_")
        self.is_vmem = op.startswith("buffer_") or op.startswith("global_")
        self.is_salu = op.startswith("s_")
        self.is_dpp = "_dpp" in op or "quad_perm" in self.mods or "row_" in self.mods
        self.is_perml = op.startswith("v_permlane")
        self.is_rl = op.startswith("v_readlane") or op.startswith("v_readfirstlane")
        self.is_dma = self.is_vmem and re.search(r"\blds\b", self.mods) is not None
        d, u = [], []
        R = [regs_of(o) for o in ops]
        if self.is_mfma:
            d = R[0]; self.A = R[1]; self.B = R[2]; self.C = R[3]; u = R[1] + R[2] + R[3]
            self.passes = 8 if "32x32" in op else 4
        elif self.is_valu:
            if self.is_perml:
                d = R[0] + R[1]; u = R[0] + R[1]
            elif op.startswith("v_cmp"):
                d = R[0]; u = sum(R[1:], [])
                if op.startswith("v_cmpx"): d = d + [("s",126),("s",127)]
            elif op.startswith(("v_add_co", "v_sub_co", "v_addc_co", "v_subb_co")):
                d = R[0] + R[1]; u = sum(R[2:], [])
            else:
                d = R[0]; u = sum(R[1:], [])
                if op.startswith(("v_fmac", "v_dot2c", "v_writelane")) or self.is_dpp: u = u + R[0]
        elif self.is_ds:
            if "read" in op or "_rtn" in op or "permute" in op or "swizzle" in op:
                d = R[0]; u = sum(R[1:], [])
            else:
                u = sum(R, [])
        elif self.is_vmem:
            if "load" in op and not self.is_dma:
                d = R[0]; u = sum(R[1:], [])
            else:
                u = sum(R, [])
            self.store_data = R[0] if "store" in op and op.startswith("buffer") else (R[1] if "store" in op else [])
        elif self.is_salu:
            if op.startswith(("s_cmp", "s_cbranch", "s_branch", "s_waitcnt", "s_nop", "s_barrier", "s_sleep", "s_setprio", "s_endpgm", "s_bitcmp")):
                u = sum(R, [])
            else:
                d = R[0] if R else []; u = sum(R[1:], [])
                if "saveexec" in op: d = d + [("s",126),("s",127)]
        self.d = set(d); self.u = set(u)
        self.states = 1
        if op == "s_nop": self.states = int(ops[0], 0) + 1

def need(p, c):
    n = 0
    vd = {r for r in p.d if r[0] in "va"}
    sd = {r for r in p.d if r[0] == "s"}
    if p.is_valu:
        if c.is_mfma and vd & c.u: n = max(n, 2)
        if p.is_trans and c.is_valu and not c.is_trans and vd & c.u: n = max(n, 1)
        if p.is_trans and (c.is_ds or c.is_vmem or c.is_trans) and vd & c.u: n = max(n, 1)
        if c.is_dpp and vd & c.u: n = max(n, 2)
        if c.is_perml and vd & c.u: n = max(n, 2)
        if c.is_rl and vd & c.u: n = max(n, 1)
        if c.is_vmem and sd & c.u: n = max(n, 5)
        if c.is_valu and sd & c.u and not (sd & c.u) <= {("s",126),("s",127)}: n = max(n, 4 if c.is_rl else 2)
        if c.is_valu and c.op.startswith("v_cndmask") and sd & c.u: n = max(n, 2)
        if ("s",126) in sd:
            if c.is_dpp: n = max(n, 5)
            if c.is_rl or c.is_perml or c.is_mfma: n = max(n, 4)
        if c.is_salu and sd & c.u: n = max(n, 1)
    if p.is_mfma:
        big = 12 if p.passes == 8 else 8
        ov = 10 if p.passes == 8 else 6
        if c.is_mfma:
            if vd & (set(c.A) | set(c.B)): n = max(n, big)
            if vd & set(c.C):
                if not (set(c.C) == vd and c.passes == p.passes): n = max(n, ov)
        elif c.is_valu or c.is_ds or c.is_vmem:
            if vd & (c.u | c.d): n = max(n, big)
        if c.is_valu and set(p.C) & c.d: n = max(n, 7 if p.passes == 8 else 3)
    if p.is_vmem and getattr(p, "store_data", None) and len(p.store_data) >= 3:
        if set(p.store_data) & c.d: n = max(n, 2)
    if p.is_salu and ("s",124) in p.d and c.is_dma: n = max(n, 1)
    return n

def lint(lines, window=24):
    ins, labels = [], {}
    for l in lines:
        s = l.split(";")[0].strip()
        if not s or s.startswith("."): continue
        if s.endswith(":"):
            labels[s[:-1]] = len(ins); continue
        ins.append(Ins(s))
    probs = []
    def succ(i):
        x = ins[i]
        if x.op == "s_endpgm": return []
        if x.op == "s_branch": return [labels[x.ops[0]]]
        if x.op.startswith("s_cbranch"): return [i + 1, labels[x.ops[0]]]
        if x.op.startswith(("s_setpc", "s_swappc")): return []
        return [i + 1]
    for i, p in enumerate(ins):
        if not (p.is_valu or p.is_mfma or p.is_vmem or p.is_salu): continue
        if p.is_salu and ("s",124) not in p.d: continue
        seen = {}
        stack = [(j, 0) for j in succ(i) if j < len(ins)]
        while stack:
            j, dist = stack.pop()
            if dist >= 13: continue
            if seen.get(j, 99) <= dist: continue
            seen[j] = dist
            c = ins[j]
            n = need(p, c)
            if n > dist:
                probs.append(f"hazard: need {n} have {dist}: [{p.line}] -> [{c.line}]")
            for k in succ(j):
                if k < len(ins): stack.append((k, dist + c.states))
    return probs
```

```python
import sys
from asmlib import Asm, vr, sr, lint
NAME = "parallel_sum__grouped_kv_mqa__dense_activation_squared_relu__prompt"

KF, VF, FLG_KV, FLG_H, FLG_O, OF, HF, TSB = 0, 0x10000, 0x20000, 0x28000, 0x30000, 0x40000, 0x240000, 0x800000
WS_BYTES = 0x900000
XN, RING, BLK = 0, 65536, 131072
B_QF, B_CIN, B_L, B_CNT, B_O = 0, 1024, 1536, 1792, 2048
GC = BLK + 7 * 4096 + 1792 + 16
C_QREADY, C_ABAR, C_HDONE, C_GBAR, C_EPOCH = 0, 4, 8, 12, 16
W1P = 2752
OFFS = 90.0
SPIN_CAP = 1 << 18

sW, sRB, sG, sKG, sCH = 3, 4, 5, 6, 7
pX, pWQ, pWK, pWV, pWO, pW1, pB1, pW2, pB2, pOUT, pDBG, pWS = 8, 10, 12, 14, 16, 20, 22, 24, 26, 28, 30, 32
rX, rWS, rW, rT = 36, 40, 44, 48
sEP = 52
sI, sRT, sCT = 54, 55, 56
sA, sB, sC, sD, sE, sF = 57, 58, 59, 60, 61, 62
sCAP = 63
sM = 34
TS0 = 64

def gen(ts=False):
    a = Asm()
    nts = [0]
    def TS(i):
        if ts: a(f"s_memrealtime {sr(TS0 + 2 * i, 2)}")
    def srd(r, p, n):
        a(f"s_mov_b32 s{r}, s{p}\ns_mov_b32 s{r+1}, s{p+1}\ns_mov_b32 s{r+2}, {n}\ns_mov_b32 s{r+3}, 0x20000")
    def lds_spin(off, val, va, vt, sleep=1):
        L = a.newlabel("spin"); D = a.newlabel("spun")
        a(f"s_mov_b32 s{sCAP}, 0")
        a.label(L)
        a(f"""ds_read_b32 v{vt}, v{va} offset:{off}
        s_add_u32 s{sCAP}, s{sCAP}, 1
        s_waitcnt lgkmcnt(0)
        v_readfirstlane_b32 s{sF}, v{vt}
        s_cmp_gt_u32 s{sCAP}, {SPIN_CAP}
        s_cbranch_scc1 {D}
        s_cmp_ge_u32 s{sF}, {val}
        s_cbranch_scc1 {D}
        s_sleep {sleep}
        s_branch {L}""")
        a.label(D)
    def flag_poll(va, soff, vt, sleep=2):
        L = a.newlabel("poll"); D = a.newlabel("polled")
        a(f"s_mov_b32 s{sCAP}, 0")
        a.label(L)
        a(f"""buffer_load_dwordx2 {vr(vt,2)}, v{va}, {sr(rWS,4)}, s{soff} offen sc1
        s_add_u32 s{sCAP}, s{sCAP}, 1
        s_waitcnt vmcnt(0)
        v_cmp_ne_u64 vcc, {sr(sEP,2)}, {vr(vt,2)}
        s_cmp_gt_u32 s{sCAP}, {SPIN_CAP}
        s_cbranch_scc1 {D}
        s_cbranch_vccz {D}
        s_sleep {sleep}
        s_branch {L}""")
        a.label(D)
    def flag_store(soff, vt):
        a(f"""v_mov_b32 v{vt}, s{sEP}
        v_mov_b32 v{vt+1}, s{sEP+1}
        s_mov_b64 exec, 1
        buffer_store_dwordx2 {vr(vt,2)}, off, {sr(rWS,4)}, s{soff} sc1
        s_mov_b64 exec, -1""")
    def ts_dump():
        if not ts: return
        a(f"""s_waitcnt lgkmcnt(0)
        s_mul_i32 s{sA}, s2, 12
        s_add_u32 s{sA}, s{sA}, s{sW}
        s_lshl_b32 s{sA}, s{sA}, 6
        s_add_u32 s{sA}, s{sA}, {TSB}
        s_mov_b64 exec, 1""")
        for q in range(4):
            for j in range(4): a(f"v_mov_b32 v{4+j}, s{TS0 + 2 * (4 * q + j)}")
            a(f"buffer_store_dwordx4 v[4:7], off, {sr(rWS,4)}, s{sA} offset:{16*q}\ns_nop 1")
        a("s_waitcnt vmcnt(0)")

    a(f"""s_cmp_ge_u32 s2, 256
    s_cbranch_scc1 L_end""")
    if ts:
        for i in range(16): a(f"s_mov_b32 s{TS0+2*i}, 0")
    TS(0)
    a(f"""s_load_dwordx16 s[8:23], s[0:1], 0
    s_load_dwordx8 s[24:31], s[0:1], 64
    s_load_dwordx2 s[32:33], s[0:1], 96
    v_lshrrev_b32 v1, 6, v0
    s_and_b32 s{sRB}, s2, 7
    v_readfirstlane_b32 s{sW}, v1
    s_lshl_b32 s{sRB}, s{sRB}, 2
    s_lshr_b32 s{sA}, s2, 6
    s_add_u32 s{sRB}, s{sRB}, s{sA}
    s_bfe_u32 s{sG}, s2, 0x30003
    s_lshr_b32 s{sKG}, s{sG}, 1
    s_and_b32 s{sCH}, s{sG}, 1
    v_and_b32 v0, 63, v0
    s_waitcnt lgkmcnt(0)""")
    srd(rX, pX, 0x200000)
    srd(rWS, pWS, WS_BYTES)
    a(f"""s_cmp_ge_u32 s{sW}, 8
    s_cbranch_scc1 L_gwave""")

    a(f"""v_lshrrev_b32 v3, 5, v0
    v_and_b32 v4, 31, v0
    s_lshl_b32 s{sA}, s{sW}, 1
    v_add_u32 v3, s{sA}, v3
    v_lshlrev_b32 v1, 10, v3
    v_lshl_add_u32 v5, v4, 4, v1
    s_lshl_b32 s{sB}, s{sRB}, 16""")
    for it in range(4):
        a(f"""s_add_u32 s{sC}, s{sKG}, {it}
        s_and_b32 s{sC}, s{sC}, 3
        s_lshl_b32 s{sC}, s{sC}, 14
        s_add_u32 s{sD}, s{sB}, s{sC}
        buffer_load_dwordx4 {vr(8+8*it,4)}, v5, {sr(rX,4)}, s{sD} offen
        buffer_load_dwordx4 {vr(12+8*it,4)}, v5, {sr(rX,4)}, s{sD} offen offset:512""")
    a(f"""v_xor_b32 v4, v4, v3
    v_lshl_add_u32 v2, v4, 4, v1
    v_mov_b32 v6, {GC}
    v_mov_b32 v40, 0
    v_mov_b32 v41, 0
    v_mov_b32 v42, 0
    v_mov_b32 v43, 0
    s_mov_b32 s{sE}, 0xffff0000
    s_cmp_lg_u32 s{sW}, 0
    s_cbranch_scc1 L_nozero
    ds_write_b128 v6, v[40:43]""")
    a.label("L_nozero")
    U = 44
    for it in range(4):
        X = 8 + 8 * it
        a(f"s_waitcnt vmcnt({6 - 2 * it})")
        if it == 0: TS(1)
        for j in range(8):
            a(f"v_lshlrev_b32 v{U+2*j}, 16, v{X+j}\nv_and_b32 v{U+2*j+1}, s{sE}, v{X+j}")
        a(f"v_pk_add_f32 v[60:61], {vr(U,2)}, {vr(U+2,2)}\nv_pk_mul_f32 v[62:63], {vr(U,2)}, {vr(U,2)}")
        a(f"v_pk_fma_f32 v[62:63], {vr(U+2,2)}, {vr(U+2,2)}, v[62:63]")
        for j in range(2, 8):
            a(f"v_pk_add_f32 v[60:61], v[60:61], {vr(U+2*j,2)}\nv_pk_fma_f32 v[62:63], {vr(U+2*j,2)}, {vr(U+2*j,2)}, v[62:63]")
        a("v_add_f32 v60, v60, v61\nv_add_f32 v62, v62, v63")
        for mode in ("quad_perm:[1,0,3,2]", "quad_perm:[2,3,0,1]", "row_half_mirror", "row_mirror"):
            a(f"s_nop 0\nv_add_f32_dpp v60, v60, v60 {mode} row_mask:0xf bank_mask:0xf\nv_add_f32_dpp v62, v62, v62 {mode} row_mask:0xf bank_mask:0xf")
        a(f"""v_mov_b32 v61, v60
        v_mov_b32 v63, v62
        s_add_u32 s{sC}, s{sKG}, {it}
        s_and_b32 s{sC}, s{sC}, 3
        v_permlane16_swap_b32 v60, v61
        v_permlane16_swap_b32 v62, v63
        s_lshl_b32 s{sC}, s{sC}, 14
        v_add_f32 v60, v60, v61
        v_add_f32 v62, v62, v63
        v_mul_f32 v60, 0x3b000000, v60
        v_mul_f32 v61, v60, v60
        v_mov_b32 v63, 0x3b000000
        v_fma_f32 v62, v62, v63, -v61
        v_max_f32 v62, 0, v62
        v_add_f32 v62, 0x3727c5ac, v62
        v_rsq_f32 v62, v62
        v_add_u32 v7, s{sC}, v2
        v_mul_f32 v64, -v60, v62""")
        for j in range(8):
            a(f"v_pk_fma_f32 {vr(U+2*j,2)}, {vr(U+2*j,2)}, v[62:63], v[64:65] op_sel_hi:[1,0,0]")
        for j in range(8):
            a(f"v_cvt_pk_bf16_f32 v{X+j}, v{U+2*j}, v{U+2*j+1}")
        a(f"ds_write_b128 v7, {vr(X,4)}\nds_write_b128 v7, {vr(X+4,4)} offset:512")
        if it == 0:
            a("s_waitcnt lgkmcnt(0)\ns_barrier")
            TS(2)
    a("s_waitcnt lgkmcnt(0)\ns_barrier")
    TS(3)

    vA16, vA4, vT = 0, 1, 2
    Q, K, V, S0, S1, ACC, CIN = 4, 8, 40, 104, 120, 136, 152
    sQT, sPEND, sPOFF, sKVO = sI, sRT, sCT, sE
    a(f"""ds_read_b64 v[8:9], v6 offset:{C_EPOCH}
    s_lshl_b32 s{sA}, s{sW}, 12
    s_add_u32 s{sA}, s{sA}, {BLK}
    v_lshlrev_b32 v{vA4}, 2, v0
    v_and_b32 v10, 31, v0
    v_lshlrev_b32 v{vA16}, 4, v0
    v_add_u32 v11, s{sA}, v{vA16}
    v_add_u32 v12, s{sA}, v{vA4}
    ds_write_b128 v11, v[40:43] offset:{B_O}
    ds_write_b128 v11, v[40:43] offset:{B_O+1024}
    ds_write_b32 v12, v40 offset:{B_L}
    s_mov_b64 exec, 1
    ds_write_b32 v12, v40 offset:{B_CNT}
    s_mov_b64 exec, -1
    v_lshlrev_b32 v10, 7, v10
    s_lshl_b32 s{sB}, s{sW}, 12
    s_add_u32 s{sB}, s{sB}, {FLG_KV}
    s_waitcnt lgkmcnt(0)
    v_readfirstlane_b32 s{sEP}, v8
    v_readfirstlane_b32 s{sEP+1}, v9
    v_mov_b32 v{ACC}, v6
    v_mov_b32 v{ACC+1}, v11
    s_lshl_b32 s{sKVO}, s{sW}, 13""")
    def v_ones():
        for i in range(64): a(f"v_mov_b32 v{V+i}, s{sA}")
    a(f"s_mov_b32 s{sA}, 0x3f803f80")
    v_ones()
    flag_poll(10, sB, 12)
    TS(4)
    def kv_load(tmp):
        a(f"""v_mbcnt_lo_u32_b32 v{tmp}, -1, 0
        v_mbcnt_hi_u32_b32 v{tmp}, -1, v{tmp}
        s_add_u32 s{sA}, s{sKVO}, 4096
        v_lshrrev_b32 v{tmp+1}, 5, v{tmp}
        v_lshlrev_b32 v{tmp}, 4, v{tmp}""")
        for t in range(8):
            a(f"buffer_load_dwordx4 {vr(K+4*t,4)}, v{tmp}, {sr(rWS,4)}, s{sKVO if t < 4 else sA} offen offset:{(t&3)*1024} sc1")
        a(f"""v_and_b32 v{tmp}, 0xf0, v{tmp}
        v_lshl_add_u32 v{tmp}, v{tmp+1}, 8, v{tmp}
        s_add_u32 s{sA}, s{sKVO}, {VF}
        s_add_u32 s{sB}, s{sKVO}, {VF+4096}
        s_mov_b32 exec_lo, 0xffff0000
        s_mov_b32 exec_hi, 0xffff0000""")
        for t in range(16):
            a(f"buffer_load_dwordx4 {vr(V+4*t,4)}, v{tmp}, {sr(rWS,4)}, s{sA if t < 8 else sB} offen offset:{(t&7)*512} sc1")
        a("s_mov_b64 exec, -1")
    kv_load(vT)
    lds_spin(C_QREADY, 4, ACC, vT)
    TS(5)
    a(f"""ds_read_b128 {vr(Q,4)}, v{ACC+1} offset:{B_QF}
    s_waitcnt vmcnt(23) lgkmcnt(0)
    v_mfma_f32_32x32x16_bf16 {vr(S0,16)}, {vr(K,4)}, {vr(Q,4)}, 0
    v_add_u32 v{vA16}, {BLK}, v{vA16}
    v_add_u32 v{vA4}, {BLK}, v{vA4}
    v_and_b32 v{ACC+1}, 0xfffffdff, v{ACC+1}
    v_mov_b32 v{ACC+2}, 1
    s_nop 7""")
    def maxtree(S, d):
        a(f"v_max3_f32 v{d}, v{S}, v{S+1}, v{S+2}")
        for j in range(3, 15, 2): a(f"v_max3_f32 v{d}, v{d}, v{S+j}, v{S+j+1}")
        a(f"v_max_f32 v{d}, v{d}, v{S+15}")
    maxtree(S0, vT)
    a(f"""v_mov_b32 v{vT+1}, v{vT}
    s_nop 1
    v_permlane32_swap_b32 v{vT}, v{vT+1}
    v_max_f32 v{vT}, v{vT}, v{vT+1}
    v_sub_f32 v{S1}, {-OFFS}, v{vT}
    v_mov_b32 v{S1+1}, v{S1}
    v_mov_b32 v{S1+2}, v{S1}
    v_mov_b32 v{S1+3}, v{S1}
    ds_write_b128 v{ACC+1}, {vr(S1,4)} offset:{B_CIN}
    s_mov_b64 exec, 1
    ds_add_u32 v{ACC}, v{ACC+2} offset:{C_ABAR}
    s_mov_b64 exec, -1""")
    lds_spin(C_ABAR, 8, ACC, vT, sleep=0)
    TS(6)
    def load_q():
        a(f"""ds_read_b128 {vr(Q,4)}, v{vA16} offset:{B_QF}
        v_and_b32 v{vT}, 0xfffffdff, v{vA16}""")
        for j in range(4): a(f"ds_read_b128 {vr(CIN+4*j,4)}, v{vT} offset:{B_CIN}")
    def QK(t, S): return f"v_mfma_f32_32x32x16_bf16 {vr(S,16)}, {vr(K+4*t,4)}, {vr(Q,4)}, {vr(CIN,16)}"
    def PV(t, hf, S, zero=False):
        return f"v_mfma_f32_32x32x16_bf16 {vr(ACC,16)}, {vr(V+8*t+4*hf,4)}, {vr(S+8*hf,4)}, {'0' if zero else vr(ACC,16)}"
    def e(S, i): return f"v_exp_f32 v{S+i}, v{S+i}"
    def c(S, j): return f"v_cvt_pk_bf16_f32 v{S + (j & 3) + 8 * (j >> 2)}, v{S+2*j}, v{S+2*j+1}"
    def half1(S, pv1, qk, pre_qk=()):
        x = [e(S,0), e(S,1)] + pv1 + [e(S,2), e(S,3), c(S,0), e(S,4), e(S,5), c(S,1)] + list(pre_qk) + qk + [e(S,6), e(S,7), c(S,2), e(S,8), c(S,3), e(S,9), e(S,10)]
        for l in x: a(l)
    def half2(S, pv0):
        x = pv0 + [e(S,11), c(S,4), e(S,12), e(S,13), c(S,5), e(S,14), e(S,15), c(S,6), c(S,7)]
        for l in x: a(l)
    load_q()
    a(f"""s_mov_b32 s{sQT}, 0
    s_mov_b32 s{sPEND}, 0
    s_cmp_ge_u32 s{sW}, 4
    s_cbranch_scc1 L_prioB
    s_setprio 2
    s_branch L_prioD""")
    a.label("L_prioB")
    a("s_setprio 1")
    a.label("L_prioD")
    a(f"s_waitcnt vmcnt(16) lgkmcnt(0)")
    a(QK(0, S0))
    a("s_nop 11")
    half1(S0, [], [QK(1, S1)])
    a(".p2align 3")
    a.label("L_atop")
    SS = [S0, S1]
    for t in range(8):
        cur, nxt = SS[t & 1], SS[(t + 1) & 1]
        if t > 0:
            if t < 7:
                half1(cur, [PV(t - 1, 1, nxt)], [QK(t + 1, nxt)])
            else:
                half1(cur, [PV(t - 1, 1, nxt)], [QK(0, nxt)], pre_qk=["s_waitcnt lgkmcnt(0)"])
            if t == 6:
                a(f"v_add_u32 v{vA16}, 4096, v{vA16}")
                load_q()
        a(f"s_waitcnt vmcnt({14 - 2 * t})")
        half2(cur, [PV(t, 0, cur, zero=(t == 0))])
        if t == 2:
            a(f"""s_cmp_eq_u32 s{sPEND}, 0
            s_cbranch_scc1 L_nopend
            s_waitcnt vmcnt(0)
            s_mov_b32 s{sPEND}, 0""")
            flag_store(sPOFF, vT)
            a.label("L_nopend")
    a(f"""s_cmp_eq_u32 s{sQT}, 7
    s_cbranch_scc1 L_alast""")
    half1(S0, [PV(7, 1, S1)], [QK(1, S1)])
    a.label("L_flush")
    a(f"ds_add_f32 v{vA4}, v{ACC} offset:{B_L}")
    for j in range(8): a(f"ds_add_f32 v{vA4}, v{ACC+8+j} offset:{B_O+256*j}")
    a(f"""v_mov_b32 v{vT}, 1
    s_mov_b64 exec, 1
    ds_add_rtn_u32 v{vT+1}, v{vA4}, v{vT} offset:{B_CNT}
    s_mov_b64 exec, -1
    s_cmp_eq_u32 s{sQT}, 6
    s_cbranch_scc0 L_noprio
    s_cmp_ge_u32 s{sW}, 4
    s_cbranch_scc1 L_noprio
    s_setprio 0""")
    a.label("L_noprio")
    a(f"""s_waitcnt lgkmcnt(0)
    v_readfirstlane_b32 s{sA}, v{vT+1}
    s_nop 0
    s_cmp_lg_u32 s{sA}, 7
    s_cbranch_scc1 L_nofin""")
    a(f"ds_read_b32 v{ACC}, v{vA4} offset:{B_L}")
    for j in range(8): a(f"ds_read_b32 v{ACC+8+j}, v{vA4} offset:{B_O+256*j}")
    a(f"""s_mov_b32 s{sD}, 0""")
    a.label("L_fin2")
    a(f"""v_mbcnt_lo_u32_b32 v{ACC+2}, -1, 0
    v_mbcnt_hi_u32_b32 v{ACC+2}, -1, v{ACC+2}
    s_lshr_b32 s{sA}, s{sQT}, 2
    s_lshl_b32 s{sB}, s{sRB}, 1
    s_add_u32 s{sA}, s{sA}, s{sB}
    s_lshl_b32 s{sA}, s{sA}, 5
    s_and_b32 s{sB}, s{sQT}, 3
    s_add_u32 s{sA}, s{sA}, s{sB}
    s_lshl_b32 s{sB}, s{sG}, 2
    s_add_u32 s{sA}, s{sA}, s{sB}
    s_lshl_b32 s{sA}, s{sA}, 10
    s_add_u32 s{sA}, s{sA}, {OF}
    v_lshlrev_b32 v{ACC+2}, 4, v{ACC+2}
    s_lshl_b32 s{sB}, s{sRB}, 3
    s_add_u32 s{sB}, s{sB}, s{sG}
    s_lshl_b32 s{sB}, s{sB}, 7
    s_lshl_b32 s{sC}, s{sQT}, 3
    s_add_u32 s{sB}, s{sB}, s{sC}
    s_add_u32 s{sPOFF}, s{sB}, {FLG_O}
    s_waitcnt lgkmcnt(0)
    v_rcp_f32 v{ACC+1}, v{ACC}
    v_mov_b32 v{ACC+3}, 0x76800000
    v_cmp_nle_f32 vcc, 0x0d800000, v{ACC}
    v_cmp_nle_f32 {sr(sM,2)}, v{ACC}, v{ACC+3}""")
    for j in range(8): a(f"v_mul_f32 v{ACC+8+j}, v{ACC+8+j}, v{ACC+1}")
    a(f"""s_or_b64 {sr(sM,2)}, {sr(sM,2)}, vcc
    v_mul_f32 v{ACC+3}, 0, v{ACC+8}""")
    for j in range(1, 8): a(f"v_fma_f32 v{ACC+3}, 0, v{ACC+8+j}, v{ACC+3}")
    for j in range(4): a(f"v_cvt_pk_bf16_f32 v{ACC+4+j}, v{ACC+8+2*j}, v{ACC+9+2*j}")
    a(f"""v_cmp_u_f32 vcc, v{ACC+3}, v{ACC+3}
    s_nop 1
    s_or_b64 {sr(sM,2)}, {sr(sM,2)}, vcc
    s_cmp_lg_u64 {sr(sM,2)}, 0
    s_cselect_b32 s{sB}, 1, 0
    s_cmp_gt_u32 s{sB}, s{sD}
    s_cbranch_scc1 L_fallback
    buffer_store_dwordx4 {vr(ACC+4,4)}, v{ACC+2}, {sr(rWS,4)}, s{sA} offen sc1
    s_mov_b32 s{sPEND}, 1""")
    a.label("L_nofin")
    a(f"""v_add_u32 v{vA4}, 4096, v{vA4}
    s_add_u32 s{sQT}, s{sQT}, 1
    s_cmp_lt_u32 s{sQT}, 8
    s_cbranch_scc1 L_atop""")
    TS(8)
    a(f"""s_cmp_eq_u32 s{sPEND}, 0
    s_cbranch_scc1 L_adone
    s_waitcnt vmcnt(0)""")
    flag_store(sPOFF, vT)
    a.label("L_adone")
    TS(9)
    ts_dump()
    a("s_endpgm")
    a.label("L_alast")
    TS(7)
    a("s_nop 0")
    a(PV(7, 1, S1))
    a("s_nop 11\ns_branch L_flush")

    a.label("L_fallback")
    FQ, FK, FV, FS, FC, FA = K, K + 4, K + 8, K + 16, V, V + 16
    a(f"""s_waitcnt vmcnt(0)
    s_lshl_b32 s{sA}, s{sQT}, 12
    s_add_u32 s{sA}, s{sA}, {BLK}
    v_add_u32 v{FA}, s{sA}, v{ACC+2}
    ds_read_b128 {vr(FQ,4)}, v{FA} offset:{B_QF}
    v_mov_b32 v{FA}, v{ACC+2}
    v_lshrrev_b32 v{FA+1}, 9, v{FA}
    v_and_b32 v{FA+2}, 0xf0, v{FA}
    v_lshl_add_u32 v{FA+1}, v{FA+1}, 8, v{FA+2}
    v_mov_b32 v{FA+2}, 0xff800000
    s_mov_b32 s{sA}, 0x3f803f80""")
    for i in range(8): a(f"v_mov_b32 v{FV+i}, s{sA}")
    a(f"s_mov_b32 s{sA}, 0")
    a.label("L_fb1")
    a(f"""buffer_load_dwordx4 {vr(FK,4)}, v{FA}, {sr(rWS,4)}, s{sA} offen sc1
    s_waitcnt vmcnt(0) lgkmcnt(0)
    v_mfma_f32_32x32x16_bf16 {vr(FS,16)}, {vr(FK,4)}, {vr(FQ,4)}, 0
    s_nop 11""")
    maxtree(FS, FA + 3)
    a(f"""v_max_f32 v{FA+2}, v{FA+2}, v{FA+3}
    s_add_u32 s{sA}, s{sA}, 1024
    s_cmp_lt_u32 s{sA}, 0x10000
    s_cbranch_scc1 L_fb1
    v_mov_b32 v{FA+3}, v{FA+2}
    s_nop 1
    v_permlane32_swap_b32 v{FA+2}, v{FA+3}
    v_max_f32 v{FA+2}, v{FA+2}, v{FA+3}""")
    for i in range(16): a(f"v_sub_f32 v{FC+i}, 0, v{FA+2}\nv_mov_b32 v{ACC+i}, 0")
    a(f"s_mov_b32 s{sA}, 0")
    a.label("L_fb2")
    a(f"""s_add_u32 s{sB}, s{sA}, {VF}
    buffer_load_dwordx4 {vr(FK,4)}, v{FA}, {sr(rWS,4)}, s{sA} offen sc1
    s_mov_b32 exec_lo, 0xffff0000
    s_mov_b32 exec_hi, 0xffff0000
    buffer_load_dwordx4 {vr(FV,4)}, v{FA+1}, {sr(rWS,4)}, s{sB} offen sc1
    buffer_load_dwordx4 {vr(FV+4,4)}, v{FA+1}, {sr(rWS,4)}, s{sB} offen offset:512 sc1
    s_mov_b64 exec, -1
    s_waitcnt vmcnt(0)
    v_mfma_f32_32x32x16_bf16 {vr(FS,16)}, {vr(FK,4)}, {vr(FQ,4)}, {vr(FC,16)}
    s_nop 11""")
    for i in range(16): a(e(FS, i))
    a("s_nop 0")
    for j in range(8): a(c(FS, j))
    a(f"""s_nop 1
    v_mfma_f32_32x32x16_bf16 {vr(ACC,16)}, {vr(FV,4)}, {vr(FS,4)}, {vr(ACC,16)}
    v_mfma_f32_32x32x16_bf16 {vr(ACC,16)}, {vr(FV+4,4)}, {vr(FS+8,4)}, {vr(ACC,16)}
    s_add_u32 s{sA}, s{sA}, 1024
    s_cmp_lt_u32 s{sA}, 0x10000
    s_cbranch_scc1 L_fb2
    s_nop 15
    s_mov_b32 s{sA}, 0x3f803f80""")
    v_ones()
    kv_load(vT)
    a(f"""s_waitcnt vmcnt(0)
    s_mov_b32 s{sD}, 1
    s_branch L_fin2""")

    a(".p2align 6")
    a.label("L_gwave")
    gGC, gL16, gSW, gTR = 1, 2, 3, 4
    gH, gR = 5, 6
    a(f"""s_setprio 3
    s_sub_u32 s{sI}, s{sW}, 8
    s_lshr_b32 s{sRT}, s{sI}, 1
    s_and_b32 s{sCT}, s{sI}, 1
    v_lshlrev_b32 v{gL16}, 4, v0
    v_lshrrev_b32 v7, 3, v0
    v_lshrrev_b32 v8, 2, v0
    v_and_b32 v8, 4, v8
    v_and_b32 v9, 7, v0
    v_xor_b32 v8, v8, v9
    v_lshlrev_b32 v8, 4, v8
    v_lshl_add_u32 v{gSW}, v7, 10, v8
    s_cmp_lg_u32 s{sI}, 0
    s_cbranch_scc1 L_gwq""")
    a(f"""s_cmp_eq_u32 s{sCH}, 0
    s_cselect_b32 s{rW}, s{pWK}, s{pWV}
    s_cselect_b32 s{rW+1}, s{pWK+1}, s{pWV+1}
    s_mov_b32 s{rW+2}, 16384
    s_mov_b32 s{rW+3}, 0x20000""")
    for q in range(4):
        a(f"s_mov_b32 m0, {BLK + q * 4096}\ns_mov_b32 s{sA}, {q*4096}")
        for j in range(4): a(f"buffer_load_dwordx4 v{gL16}, {sr(rW,4)}, s{sA} offen offset:{j*1024} lds")
    srd(rT, pDBG, 256)
    a(f"""s_cmp_lg_u32 s2, 0
    s_cbranch_scc1 L_gxb
    s_memrealtime {sr(sM,2)}
    s_waitcnt lgkmcnt(0)
    v_mov_b32 v10, s{sM}
    v_mov_b32 v11, s{sM+1}
    v_or_b32 v11, 0x80000000, v11
    s_mov_b64 exec, 1
    buffer_store_dwordx2 v[10:11], off, {sr(rT,4)}, 0 sc1
    s_mov_b64 exec, -1
    s_branch L_gxb""")
    a.label("L_gwq")
    srd(rW, pWQ, 0x80000)
    a(f"""s_sub_u32 s{sA}, s{sI}, 1
    s_lshl_b32 s{sB}, s{sA}, 13
    s_lshl_b32 s{sC}, s{sG}, 7
    s_add_u32 s{sB}, s{sB}, s{sC}
    s_lshl_b32 s{sA}, s{sA}, 10
    s_add_u32 s{sA}, s{sA}, {RING}""")
    a.label("L_wqloop")
    a(f"""s_mov_b32 m0, s{sA}
    s_add_u32 s{sA}, s{sA}, 3072
    buffer_load_dwordx4 v{gSW}, {sr(rW,4)}, s{sB} offen lds
    s_add_u32 s{sB}, s{sB}, {3*8192}
    s_cmp_lt_u32 s{sA}, {BLK}
    s_cbranch_scc1 L_wqloop""")
    a.label("L_gxb")
    a(f"""v_mov_b32 v{gGC}, {GC}
    v_lshrrev_b32 v{gH}, 5, v0
    v_bfe_u32 v{gR}, v0, 2, 2
    v_and_b32 v7, 3, v0
    v_and_b32 v8, 16, v0
    v_lshlrev_b32 v8, 1, v8
    v_lshl_add_u32 v{gTR}, v7, 3, v8
    s_cmp_lg_u32 s{sI}, 0
    s_cbranch_scc1 L_gb1""")
    WF, XF, DD = 32, 96, 160
    a(f"""v_and_b32 v7, 15, v0
    v_lshrrev_b32 v8, 4, v0
    v_lshlrev_b32 v9, 3, v7
    v_lshl_add_u32 v9, v8, 8, v9
    v_add_u32 v9, {BLK}, v9
    s_lshl_b32 s{sA}, s{sKG}, 14
    v_xor_b32 v10, v7, v8
    v_lshlrev_b32 v10, 4, v10
    v_lshl_add_u32 v10, v7, 10, v10
    v_add_u32 v10, s{sA}, v10
    v_xor_b32 v11, 64, v10
    v_xor_b32 v12, 0x80, v10
    v_xor_b32 v13, 0xc0, v10
    s_waitcnt vmcnt(0)
    buffer_load_dwordx2 v[14:15], off, {sr(rT,4)}, 0 sc1""")
    for ks in range(16):
        a(f"ds_read_b64_tr_b16 {vr(WF+4*ks,2)}, v9 offset:{ks*1024}\nds_read_b64_tr_b16 {vr(WF+4*ks+2,2)}, v9 offset:{ks*1024+128}")
    a(f"""s_cmp_eq_u32 s{sCH}, 0
    s_cselect_b32 s{sB}, 9, 8
    s_cselect_b32 s{sC}, 8, 9
    s_cselect_b32 s{sD}, {KF}, {VF}
    v_and_b32 v16, 1, v8
    v_lshlrev_b32 v16, s{sB}, v16
    v_lshrrev_b32 v17, 1, v8
    v_lshl_add_u32 v16, v17, 3, v16
    v_lshl_add_u32 v16, v7, 4, v16
    s_and_b32 s{sA}, s{sKG}, 1
    s_lshl_b32 s{sA}, s{sA}, s{sC}
    s_add_u32 s{sD}, s{sD}, s{sA}
    s_lshl_b32 s{sA}, s{sRB}, 1
    s_lshr_b32 s{sB}, s{sKG}, 1
    s_add_u32 s{sA}, s{sA}, s{sB}
    s_lshl_b32 s{sA}, s{sA}, 10
    s_add_u32 s{sD}, s{sD}, s{sA}
    s_waitcnt lgkmcnt(0)""")
    TS(1)
    a("s_barrier")
    TS(2)
    for ks in range(16):
        a(f"ds_read_b128 {vr(XF+4*ks,4)}, v{10+(ks&3)} offset:{(ks>>2)*256}")
    a(f"""s_cmp_eq_u32 s{sCH}, 0
    s_cbranch_scc0 L_vchain""")
    for nm, sw in (("k", False), ("v", True)):
        if sw: a.label("L_vchain")
        for ks in range(16):
            A_, B_ = (XF, WF) if sw else (WF, XF)
            if ks % 4 == 0: a(f"s_waitcnt lgkmcnt({12 - ks})")
            a(f"v_mfma_f32_16x16x32_bf16 {vr(DD,4)}, {vr(A_+4*ks,4)}, {vr(B_+4*ks,4)}, {'0' if ks == 0 else vr(DD,4)}")
        if not sw: a("s_branch L_kvst")
    a.label("L_kvst")
    a(f"""s_lshl_b32 s{sA}, s{sRB}, 3
    s_add_u32 s{sA}, s{sA}, s{sG}
    s_lshl_b32 s{sA}, s{sA}, 7
    s_add_u32 s{sA}, s{sA}, {FLG_KV}
    s_nop 3
    v_cvt_pk_bf16_f32 v18, v{DD}, v{DD+1}
    v_cvt_pk_bf16_f32 v19, v{DD+2}, v{DD+3}
    buffer_store_dwordx2 v[18:19], v16, {sr(rWS,4)}, s{sD} offen sc1
    s_mov_b32 s{sCAP}, 0""")
    a.label("L_epoch")
    a(f"""s_waitcnt vmcnt(0)
    v_readfirstlane_b32 s{sEP}, v14
    v_readfirstlane_b32 s{sEP+1}, v15
    s_add_u32 s{sCAP}, s{sCAP}, 1
    s_cmp_gt_u32 s{sCAP}, {SPIN_CAP}
    s_cbranch_scc1 L_epochok
    s_cmp_lg_u32 s{sEP+1}, 0
    s_cbranch_scc1 L_epochok
    buffer_load_dwordx2 v[14:15], off, {sr(rT,4)}, 0 sc1
    s_branch L_epoch""")
    a.label("L_epochok")
    a(f"""s_mov_b64 exec, 1
    buffer_store_dwordx2 v[14:15], off, {sr(rWS,4)}, s{sA} sc1
    ds_write_b64 v{gGC}, v[14:15] offset:{C_EPOCH}
    s_mov_b64 exec, -1
    s_waitcnt lgkmcnt(0)""")
    TS(3)
    a("s_branch L_gb2")
    a.label("L_gb1")
    a("s_barrier\ns_waitcnt vmcnt(0)")
    a.label("L_gb2")
    AC = [136, 104, 120, 88]
    XB = 152
    vB1 = 8
    srd(rT, pB2, 1024)
    a(f"""v_and_b32 v7, 31, v0
    v_lshlrev_b32 v16, 3, v{gH}
    v_lshl_add_u32 v17, v7, 10, v16
    s_lshl_b32 s{sA}, s{sG}, 7
    s_lshl_b32 s{sB}, s{sCT}, 6
    s_add_u32 s{sA}, s{sA}, s{sB}
    s_lshl_b32 s{sB}, s{sRB}, 16
    s_lshl_b32 s{sC}, s{sRT}, 15
    s_add_u32 s{sB}, s{sB}, s{sC}
    s_add_u32 s{sB}, s{sB}, s{sA}""")
    for q in range(4): a(f"buffer_load_dwordx2 {vr(XB+2*q,2)}, v17, {sr(rX,4)}, s{sB} offen offset:{16*q}")
    for q in range(4): a(f"buffer_load_dwordx2 {vr(XB+8+2*q,2)}, v16, {sr(rT,4)}, s{sA} offen offset:{16*q}")
    sT1, sT2, sNG = 0, 1, sE
    a(f"""s_lshl_b32 s{sT1}, s{sG}, 2
    s_add_u32 s{sT1}, s{sT1}, s{sI}
    s_sub_u32 s{sT2}, 3, s{sI}
    s_lshl_b32 s{sT2}, s{sT2}, 3
    s_add_u32 s{sT2}, s{sT2}, s{sG}
    s_add_u32 s{sT2}, s{sT2}, 32
    s_cmp_lt_u32 s{sT2}, 43
    s_cselect_b32 s{sNG}, 16, 8
    s_nop 0""")
    srd(rT, pB1, W1P)
    a(f"""v_lshlrev_b32 v16, 1, v7
    s_lshl_b32 s{sA}, s{sT1}, 6
    s_lshl_b32 s{sB}, s{sT2}, 6
    buffer_load_ushort v{vB1}, v16, {sr(rT,4)}, s{sA} offen
    buffer_load_ushort v{vB1+6}, v16, {sr(rT,4)}, s{sB} offen""")
    gXA, gXT, gWA = 15, 16, 17
    a(f"""v_and_b32 v18, 15, v0
    v_xor_b32 v18, v18, v{gH}
    v_lshlrev_b32 v18, 4, v18
    v_lshl_add_u32 v{gXA}, v7, 10, v18
    v_lshrrev_b32 v18, 1, v{gR}
    v_xor_b32 v18, s{sCT}, v18
    v_lshl_add_u32 v19, v18, 6, v{gTR}
    v_lshl_add_u32 v19, v{gR}, 7, v19
    v_lshl_add_u32 v{gWA}, v{gH}, 10, v19
    v_add_u32 v{gWA}, {RING}, v{gWA}
    s_lshl_b32 s{sC}, s{sRT}, 15
    v_add_u32 v18, s{sC}, v{gXA}
    s_barrier""")
    TS(4)
    a(f"ds_read_b64 v[20:21], v{gGC} offset:{C_EPOCH}")
    QA = 104
    BUF = [24, 56]
    def q_reads(bf):
        for b in range(4):
            a(f"ds_read_b64_tr_b16 {vr(bf+8*b,2)}, v{gWA} offset:{b*16384}\nds_read_b64_tr_b16 {vr(bf+8*b+2,2)}, v{gWA} offset:{b*16384+512}")
            a(f"ds_read_b128 {vr(bf+8*b+4,4)}, v{gXT} offset:{b*256}")
    a(f"v_mov_b32 v{gXT}, v18")
    q_reads(BUF[0])
    for i in range(16): a(f"v_mov_b32 v{QA+i}, 0")
    a(f"s_mov_b32 s{sA}, 0")
    a.label("L_qloop")
    for p in range(2):
        a(f"""s_add_u32 s{sA}, s{sA}, 32
        v_add_u32 v{gWA}, 2048, v{gWA}
        v_xor_b32 v{gXT}, s{sA}, v18
        s_waitcnt lgkmcnt(0)""")
        q_reads(BUF[1 - p])
        for b in range(4):
            a(f"v_mfma_f32_32x32x16_bf16 {vr(QA,16)}, {vr(BUF[p]+8*b,4)}, {vr(BUF[p]+8*b+4,4)}, {vr(QA,16)}")
    a(f"""s_cmp_lt_u32 s{sA}, 256
    s_cbranch_scc1 L_qloop
    v_readfirstlane_b32 s{sEP}, v20
    v_readfirstlane_b32 s{sEP+1}, v21
    s_lshl_b32 s{sA}, s{sRT}, 2
    s_lshl_b32 s{sB}, s{sCT}, 1
    s_add_u32 s{sA}, s{sA}, s{sB}
    s_lshl_b32 s{sA}, s{sA}, 12
    s_add_u32 s{sA}, s{sA}, {BLK}
    v_add_u32 v20, s{sA}, v{gL16}
    s_mov_b32 s{sM}, 0x3eb8aa3b
    s_mov_b32 s{sM+1}, 0x3eb8aa3b
    v_mov_b32 v21, 1
    s_nop 1""")
    for j in range(8): a(f"v_pk_mul_f32 {vr(QA+2*j,2)}, {vr(QA+2*j,2)}, {sr(sM,2)}")
    for j in range(8): a(f"v_cvt_pk_bf16_f32 v{QA+j}, v{QA+2*j}, v{QA+2*j+1}")
    a(f"""ds_write_b128 v20, {vr(QA,4)} offset:{B_QF}
    ds_write_b128 v20, {vr(QA+4,4)} offset:{B_QF+4096}
    s_mov_b64 exec, 1
    ds_add_u32 v{gGC}, v21 offset:{C_QREADY}
    s_mov_b64 exec, -1""")
    TS(5)
    gV1 = 20
    sRNG = 35
    srd(rW, pW1, 512 * W1P)
    a(f"""v_lshrrev_b32 v7, 2, v0
    v_and_b32 v18, 3, v0
    v_mul_u32_u24 v7, {W1P}, v7
    v_lshl_add_u32 v{gV1}, v18, 4, v7
    v_add_u32 v{gV1+1}, {128*W1P-1024}, v{gV1}
    v_add_u32 v{gV1+2}, {2*(128*W1P-1024)}, v{gV1}
    v_add_u32 v{gV1+3}, {3*(128*W1P-1024)}, v{gV1}
    s_lshl_b32 s{sRNG}, s{sI}, 14
    s_add_u32 s{sRNG}, s{sRNG}, {RING}
    v_lshl_add_u32 v18, v{gR}, 6, v{gTR}
    v_lshl_add_u32 v18, v{gH}, 9, v18
    v_add_u32 v18, s{sRNG}, v18""")
    lds_spin(C_QREADY, 4, gGC, 7, sleep=0)
    sN, sSO = sA, sB
    def w1_dma(slot_sreg):
        a(f"s_mov_b32 m0, s{slot_sreg}\ns_nop 0")
        for b in range(4): a(f"buffer_load_dwordx4 v{gV1+b}, {sr(rW,4)}, s{sSO} offen offset:{b*1024} lds")
    a(f"s_lshl_b32 s{sSO}, s{sT1}, 6\ns_mov_b32 s{sC}, s{sRNG}")
    for n in range(4):
        w1_dma(sC)
        a(f"s_add_u32 s{sSO}, s{sSO}, {16*W1P}\ns_add_u32 s{sC}, s{sC}, 4096")
    a(f"s_waitcnt vmcnt(16)\ns_mov_b32 s{sD}, 0xffff0000")
    for j in range(8):
        a(f"v_lshlrev_b32 v{AC[0]+2*j}, 16, v{XB+j}\nv_and_b32 v{AC[0]+2*j+1}, s{sD}, v{XB+j}")
        a(f"v_lshlrev_b32 v24, 16, v{XB+8+j}\nv_and_b32 v25, s{sD}, v{XB+8+j}")
        a(f"v_pk_add_f32 {vr(AC[0]+2*j,2)}, {vr(AC[0]+2*j,2)}, v[24:25]")
    a(f"""v_mov_b32 v{vB1+1}, 0
    v_sub_u32 v{vB1+2}, 1, v{gH}
    v_mul_u32_u24 v{vB1+2}, 0x3f80, v{vB1+2}
    v_mov_b32 v{vB1+3}, 0
    v_mov_b32 v{vB1+4}, 0
    v_mov_b32 v{vB1+5}, 0""")
    H0, H1 = 104, 120
    FB = [24, 56]
    FX = [88, 152]
    def f1_reads(p):
        for b in range(4):
            a(f"ds_read_b64_tr_b16 {vr(FB[p]+8*b,2)}, v{gWA} offset:{b*1024}\nds_read_b64_tr_b16 {vr(FB[p]+8*b+2,2)}, v{gWA} offset:{b*1024+256}")
            a(f"ds_read_b128 {vr(FB[p]+8*b+4,4)}, v{gXT} offset:{b*256}\nds_read_b128 {vr(FX[p]+4*b,4)}, v{gXT} offset:{b*256+32768}")
    def bias():
        a(f"v_mfma_f32_32x32x16_bf16 {vr(H0,16)}, {vr(vB1,4)}, {vr(vB1+2,4)}, 0\nv_mfma_f32_32x32x16_bf16 {vr(H1,16)}, {vr(vB1,4)}, {vr(vB1+2,4)}, 0")
    a(f"""v_mov_b32 v{gWA}, v18
    v_mov_b32 v{gXT}, v{gXA}
    s_mov_b32 s{sN}, 0
    s_waitcnt vmcnt(12)""")
    f1_reads(0)
    bias()
    a.label("L_f1loop")
    for p in range(2):
        a(f"""s_and_b32 s{sC}, s{sN}, 3
        s_lshl_b32 s{sC}, s{sC}, 12
        s_add_u32 s{sC}, s{sC}, s{sRNG}
        s_add_u32 s{sN}, s{sN}, 1
        s_and_b32 s{sD}, s{sN}, 3
        s_lshl_b32 s{sD}, s{sD}, 12
        v_add_u32 v{gWA}, s{sD}, v18
        s_and_b32 s{sD}, s{sN}, 7
        s_lshl_b32 s{sD}, s{sD}, 5
        v_xor_b32 v{gXT}, s{sD}, v{gXA}""")
        if p == 0:
            a(f"""s_lshl_b32 s{sD}, s{sT2}, 6
            s_cmp_eq_u32 s{sN}, 5
            s_cselect_b32 s{sSO}, s{sD}, s{sSO}
            s_add_u32 s{sD}, s{sN}, 3
            s_cmp_lt_u32 s{sD}, s{sNG}
            s_cselect_b32 s{rW+2}, s{rW+2}, 0""")
        a("s_waitcnt vmcnt(8) lgkmcnt(0)")
        f1_reads(1 - p)
        w1_dma(sC)
        a(f"s_add_u32 s{sSO}, s{sSO}, {16*W1P}")
        for b in range(4):
            a(f"v_mfma_f32_32x32x16_bf16 {vr(H0,16)}, {vr(FB[p]+8*b,4)}, {vr(FB[p]+8*b+4,4)}, {vr(H0,16)}")
            a(f"v_mfma_f32_32x32x16_bf16 {vr(H1,16)}, {vr(FB[p]+8*b,4)}, {vr(FX[p]+4*b,4)}, {vr(H1,16)}")
    a(f"""s_and_b32 s{sD}, s{sN}, 7
    s_cbranch_scc1 L_f1loop
    s_mul_i32 s{sD}, s{sRB}, 86
    s_lshl_b32 s{sC}, s{sT1}, 1
    s_add_u32 s{sD}, s{sD}, s{sC}
    s_lshl_b32 s{sD}, s{sD}, 11
    s_add_u32 s{sD}, s{sD}, {HF}
    s_mov_b32 s{sT1}, s{sT2}
    v_mov_b32 v{vB1}, v{vB1+6}
    s_nop 3""")
    for rt, Hh in enumerate((H0, H1)):
        for j in range(16): a(f"v_max_f32 v{Hh+j}, 0, v{Hh+j}")
        for j in range(8): a(f"v_pk_mul_f32 {vr(Hh+2*j,2)}, {vr(Hh+2*j,2)}, {vr(Hh+2*j,2)}")
        for j in range(8): a(f"v_cvt_pk_bf16_f32 v{Hh+j}, v{Hh+2*j}, v{Hh+2*j+1}")
        for s_ in range(2):
            a(f"buffer_store_dwordx4 {vr(Hh+4*s_,4)}, v{gL16}, {sr(rWS,4)}, s{sD} offen offset:{s_*2048+rt*1024} sc1")
    a("s_nop 1")
    bias()
    a(f"""s_cmp_lt_u32 s{sN}, s{sNG}
    s_cbranch_scc1 L_f1loop
    v_mov_b32 v7, 1
    s_waitcnt vmcnt(0) lgkmcnt(0)
    s_mov_b64 exec, 1
    ds_add_rtn_u32 v24, v{gGC}, v7 offset:{C_HDONE}
    s_mov_b64 exec, -1
    s_lshl_b32 s{sD}, s{sRB}, 3
    s_add_u32 s{sC}, s{sD}, s{sG}
    s_lshl_b32 s{sC}, s{sC}, 7
    s_add_u32 s{sC}, s{sC}, {FLG_H}
    s_waitcnt lgkmcnt(0)
    v_readfirstlane_b32 s{sA}, v24
    s_nop 0
    s_cmp_lg_u32 s{sA}, 3
    s_cbranch_scc1 L_nohflag""")
    flag_store(sC, 24)
    a.label("L_nohflag")
    TS(6)
    sK0, sK1, sSW, sSH = 0, 1, sB, sC
    a(f"""s_mul_i32 s{sK0}, s{sI}, 22
    s_cmp_eq_u32 s{sI}, 3
    s_cselect_b32 s{sA}, 20, 22
    s_add_u32 s{sK1}, s{sK0}, s{sA}
    s_mov_b32 s{rW}, s{pW2}
    s_mov_b32 s{rW+1}, s{pW2+1}
    s_lshl_b32 s{rW+2}, s{sK1}, 14
    s_mov_b32 s{rW+3}, 0x20000
    s_lshl_b32 s{sSW}, s{sK0}, 14
    s_lshl_b32 s{sA}, s{sG}, 7
    s_add_u32 s{sSW}, s{sSW}, s{sA}
    v_add_u32 v7, {8192-1024}, v{gSW}""")
    gSW2 = 7
    def w2_dma(u):
        a(f"""s_add_u32 m0, s{sRNG}, {u*2048}
        s_nop 0
        buffer_load_dwordx4 v{gSW}, {sr(rW,4)}, s{sSW} offen lds
        buffer_load_dwordx4 v{gSW2}, {sr(rW,4)}, s{sSW} offen offset:1024 lds
        s_add_u32 s{sSW}, s{sSW}, 16384""")
    for u in range(8): w2_dma(u)
    lds_spin(C_HDONE, 4, gGC, 24, sleep=2)
    srd(rT, pWO, 0x80000)
    a(f"""s_lshl_b32 s{sA}, s{sI}, 14
    s_lshl_b32 s{sC}, s{sI}, 17
    s_lshl_b32 s{sD}, s{sG}, 7
    s_add_u32 s{sC}, s{sC}, s{sD}
    s_add_u32 s{sD}, s{sA}, 16384""")
    a.label("L_woloop")
    a(f"""s_mov_b32 m0, s{sA}
    s_add_u32 s{sA}, s{sA}, 2048
    buffer_load_dwordx4 v{gSW}, {sr(rT,4)}, s{sC} offen lds
    buffer_load_dwordx4 v{gSW2}, {sr(rT,4)}, s{sC} offen offset:1024 lds
    s_add_u32 s{sC}, s{sC}, 16384
    s_cmp_lt_u32 s{sA}, s{sD}
    s_cbranch_scc1 L_woloop""")
    gA0, gA1, gHO0, gHO1, gFL = 8, 9, 10, 11, 12
    a(f"""v_lshl_add_u32 v19, v{gH}, 9, v19
    v_add_u32 v{gA0}, s{sRNG}, v19
    v_xor_b32 v{gA1}, 64, v{gA0}
    s_lshl_b32 s{sA}, s{sRT}, 10
    v_add_u32 v{gHO0}, s{sA}, v{gL16}
    v_xor_b32 v{gHO1}, 0x400, v{gHO0}
    v_and_b32 v{gFL}, 7, v0
    v_lshlrev_b32 v{gFL}, 7, v{gFL}
    s_lshl_b32 s{sA}, s{sRB}, 10
    s_add_u32 s{sA}, s{sA}, {FLG_H}""")
    for j in range(1, 4):
        for i in range(16): a(f"v_mov_b32 v{AC[j]+i}, 0")
    flag_poll(gFL, sA, 24)
    TS(7)
    a(f"""s_mul_i32 s{sA}, s{sRB}, 86
    s_add_u32 s{sSH}, s{sA}, s{sK0}
    s_lshl_b32 s{sSH}, s{sSH}, 11
    s_add_u32 s{sSH}, s{sSH}, {HF}
    s_add_u32 s{sA}, s{sA}, s{sK1}
    s_lshl_b32 s{sA}, s{sA}, 11
    s_mov_b32 s{rT}, s{pWS}
    s_mov_b32 s{rT+1}, s{pWS+1}
    s_add_u32 s{rT+2}, s{sA}, {HF}
    s_mov_b32 s{rT+3}, 0x20000""")
    HR = 24
    AF = [152, 160]
    def h_load(u):
        a(f"""buffer_load_dwordx4 {vr(HR+8*u,4)}, v{gHO0}, {sr(rT,4)}, s{sSH} offen sc1
        buffer_load_dwordx4 {vr(HR+8*u+4,4)}, v{gHO1}, {sr(rT,4)}, s{sSH} offen sc1
        s_add_u32 s{sSH}, s{sSH}, 2048""")
    def a_reads(u, p):
        for d, ga in enumerate((gA0, gA1)):
            a(f"ds_read_b64_tr_b16 {vr(AF[p]+4*d,2)}, v{ga} offset:{u*2048}\nds_read_b64_tr_b16 {vr(AF[p]+4*d+2,2)}, v{ga} offset:{u*2048+1024}")
    for u in range(8): h_load(u)
    a_reads(0, 0)
    a("s_waitcnt vmcnt(0)")
    a.label("L_f2loop")
    for u in range(8):
        p = u & 1
        a("s_waitcnt vmcnt(24) lgkmcnt(0)")
        a_reads((u + 1) & 7, 1 - p)
        for j in range(4):
            a(f"v_mfma_f32_32x32x16_bf16 {vr(AC[j],16)}, {vr(AF[p]+4*(j&1),4)}, {vr(HR+8*u+4*(j>>1),4)}, {vr(AC[j],16)}")
        w2_dma(u)
        h_load(u)
        a(f"s_add_u32 s{sK0}, s{sK0}, 1\ns_cmp_ge_u32 s{sK0}, s{sK1}")
        a("s_cbranch_scc1 L_f2done" if u < 7 else "s_cbranch_scc0 L_f2loop")
    a.label("L_f2done")
    TS(8)
    a(f"""v_add_u32 v13, s{sRNG}, v{gL16}
    v_mov_b32 v14, 1
    s_waitcnt vmcnt(0) lgkmcnt(0)
    s_nop 7""")
    for j in range(1, 4):
        for q in range(4): a(f"ds_write_b128 v13, {vr(AC[j]+4*q,4)} offset:{(j-1)*4096+q*1024}")
    a(f"""s_mov_b64 exec, 1
    ds_add_u32 v{gGC}, v14 offset:{C_GBAR}
    s_mov_b64 exec, -1""")
    lds_spin(C_GBAR, 4, gGC, 14, sleep=1)
    for j in range(1, 4):
        a(f"v_xor_b32 v14, {j*16384}, v13")
        for q in range(4): a(f"ds_read_b128 {vr(AC[j]+4*q,4)}, v14 offset:{(j-1)*4096+q*1024}")
    for j in range(1, 4):
        a(f"s_waitcnt lgkmcnt({(3-j)*4})")
        for q in range(8): a(f"v_pk_add_f32 {vr(AC[0]+2*q,2)}, {vr(AC[0]+2*q,2)}, {vr(AC[j]+2*q,2)}")
    TS(9)
    WOF, OFR = 24, 56
    sJ, sFO, sOO = 0, 1, sB
    a(f"""s_lshl_b32 s{sFO}, s{sRB}, 10
    s_lshl_b32 s{sA}, s{sRT}, 5
    s_add_u32 s{sFO}, s{sFO}, s{sA}
    s_add_u32 s{sFO}, s{sFO}, {FLG_O}
    s_lshl_b32 s{sOO}, s{sRB}, 1
    s_add_u32 s{sOO}, s{sOO}, s{sRT}
    s_lshl_b32 s{sOO}, s{sOO}, 15
    s_add_u32 s{sOO}, s{sOO}, {OF}
    s_mov_b32 s{sJ}, 0""")
    a.label("L_oloop")
    for gp in range(8):
        a(f"ds_read_b64_tr_b16 {vr(WOF+4*gp,2)}, v19 offset:{gp*8192}\nds_read_b64_tr_b16 {vr(WOF+4*gp+2,2)}, v19 offset:{gp*8192+1024}")
    flag_poll(gFL, sFO, 14, sleep=2)
    a(f"s_mov_b32 s{sA}, s{sOO}")
    for gp in range(8):
        a(f"buffer_load_dwordx4 {vr(OFR+4*gp,4)}, v{gL16}, {sr(rWS,4)}, s{sA} offen sc1\ns_add_u32 s{sA}, s{sA}, 4096")
    a(f"""v_add_u32 v19, 2048, v19
    s_add_u32 s{sFO}, s{sFO}, 8
    s_add_u32 s{sOO}, s{sOO}, 1024
    s_add_u32 s{sJ}, s{sJ}, 1
    s_waitcnt lgkmcnt(0)""")
    for gp in range(8):
        a(f"s_waitcnt vmcnt({7-gp})\nv_mfma_f32_32x32x16_bf16 {vr(AC[0],16)}, {vr(WOF+4*gp,4)}, {vr(OFR+4*gp,4)}, {vr(AC[0],16)}")
    a(f"""s_cmp_lt_u32 s{sJ}, 4
    s_cbranch_scc1 L_oloop""")
    TS(10)
    srd(rT, pOUT, 0x200000)
    a(f"""v_and_b32 v7, 31, v0
    v_lshlrev_b32 v16, 3, v{gH}
    v_lshl_add_u32 v17, v7, 10, v16
    s_lshl_b32 s{sA}, s{sG}, 7
    s_lshl_b32 s{sB}, s{sCT}, 6
    s_add_u32 s{sA}, s{sA}, s{sB}
    s_lshl_b32 s{sB}, s{sRB}, 16
    s_lshl_b32 s{sC}, s{sRT}, 15
    s_add_u32 s{sB}, s{sB}, s{sC}
    s_add_u32 s{sB}, s{sB}, s{sA}""")
    for j in range(8): a(f"v_cvt_pk_bf16_f32 v{AC[0]+j}, v{AC[0]+2*j}, v{AC[0]+2*j+1}")
    for q in range(4): a(f"buffer_store_dwordx2 {vr(AC[0]+2*q,2)}, v17, {sr(rT,4)}, s{sB} offen offset:{16*q}")
    if ts:
        a("s_waitcnt vmcnt(0)")
    TS(11)
    ts_dump()
    a.label("L_end")
    a("s_endpgm")

    probs = lint(a.lines)
    for p in probs: print("LINT", p, file=sys.stderr)
    head = f"""; fused layernorm + MQA attention + squared-relu FFN, one persistent launch (generated by gen/gen.py)
; @launch grid=(256,1,1) block=(768,1,1) lds=163840
.amdgcn_target "amdgcn-amd-amdhsa--gfx950"
.text
.globl {NAME}_kernel
.p2align 8
.type {NAME}_kernel,@function
{NAME}_kernel:
"""
    tail = f""".section .rodata,"a"
.p2align 6
.amdhsa_kernel {NAME}_kernel
  .amdhsa_next_free_vgpr 168
  .amdhsa_next_free_sgpr 96
  .amdhsa_accum_offset 168
  .amdhsa_group_segment_fixed_size 0
  .amdhsa_kernarg_size 104
  .amdhsa_user_sgpr_count 2
  .amdhsa_user_sgpr_kernarg_segment_ptr 1
  .amdhsa_system_sgpr_workgroup_id_x 1
.end_amdhsa_kernel
"""
    return head + a.text() + tail

if __name__ == "__main__":
    open("k.s", "w").write(gen(False))
    open("k_ts.s", "w").write(gen(True))
```

```python
import sys
from asmlib import Asm, vr, sr, lint
NAME = "parallel_sum__grouped_kv_mqa__dense_activation_squared_relu__prompt"

KF, VF, FLG_KV, FLG_H, FLG_O, OF, HF, TSB = 0, 0x10000, 0x20000, 0x28000, 0x30000, 0x40000, 0x240000, 0x800000
WS_BYTES = 0x900000
XN, RING, WKV = 0, 65536, 131072
RSZ = 12288
OACC, OST = 114688, 4608
B_L, B_CNT = 4096, 4352
QF, CINB = 151552, 159744
GC = OACC + 7 * OST + B_CNT + 16
C_QREADY, C_ABAR, C_HDONE, C_GBAR, C_EPOCH = 0, 4, 8, 12, 16
W1P = 2752
OFFS = 90.0
SPIN_CAP = 1 << 18

sW, sRB, sG, sKG, sCH = 3, 4, 5, 6, 7
pX, pWQ, pWK, pWV, pWO, pW1, pB1, pW2, pB2, pOUT, pDBG, pWS = 8, 10, 12, 14, 16, 20, 22, 24, 26, 28, 30, 32
rX, rWS, rW, rT = 36, 40, 44, 48
sEP = 52
sI, sRT, sCT = 54, 55, 56
sA, sB, sC, sD, sE, sF = 57, 58, 59, 60, 61, 62
sCAP = 63
sM = 34
TS0 = 64

def gen(ts=False, opt={}):
    a = Asm()
    nts = [0]
    def TS(i):
        if ts and not (opt.get("qts") and i in (7, 8)): a(f"s_memrealtime {sr(TS0 + 2 * i, 2)}")
    def srd(r, p, n):
        a(f"s_mov_b32 s{r}, s{p}\ns_mov_b32 s{r+1}, s{p+1}\ns_mov_b32 s{r+2}, {n}\ns_mov_b32 s{r+3}, 0x20000")
    def lds_spin(off, val, va, vt, sleep=1):
        L = a.newlabel("spin"); D = a.newlabel("spun")
        a(f"s_mov_b32 s{sCAP}, 0")
        a.label(L)
        a(f"""ds_read_b32 v{vt}, v{va} offset:{off}
        s_add_u32 s{sCAP}, s{sCAP}, 1
        s_waitcnt lgkmcnt(0)
        v_readfirstlane_b32 s{sF}, v{vt}
        s_cmp_gt_u32 s{sCAP}, {SPIN_CAP}
        s_cbranch_scc1 {D}
        s_cmp_ge_u32 s{sF}, {val}
        s_cbranch_scc1 {D}
        s_sleep {sleep}
        s_branch {L}""")
        a.label(D)
    def flag_poll(va, soff, vt, sleep=2):
        L = a.newlabel("poll"); D = a.newlabel("polled")
        a(f"s_mov_b32 s{sCAP}, 0")
        a.label(L)
        a(f"""buffer_load_dwordx2 {vr(vt,2)}, v{va}, {sr(rWS,4)}, s{soff} offen sc1
        s_add_u32 s{sCAP}, s{sCAP}, 1
        s_waitcnt vmcnt(0)
        v_cmp_ne_u64 vcc, {sr(sEP,2)}, {vr(vt,2)}
        s_cmp_gt_u32 s{sCAP}, {SPIN_CAP}
        s_cbranch_scc1 {D}
        s_cbranch_vccz {D}
        s_sleep {sleep}
        s_branch {L}""")
        a.label(D)
    def flag_store(soff, vt):
        a(f"""v_mov_b32 v{vt}, s{sEP}
        v_mov_b32 v{vt+1}, s{sEP+1}
        s_mov_b64 exec, 1
        buffer_store_dwordx2 {vr(vt,2)}, off, {sr(rWS,4)}, s{soff} sc1
        s_mov_b64 exec, -1""")
    def ts_dump():
        if not ts: return
        a(f"""s_waitcnt lgkmcnt(0)
        s_mul_i32 s{sA}, s2, 12
        s_add_u32 s{sA}, s{sA}, s{sW}
        s_lshl_b32 s{sA}, s{sA}, 6
        s_add_u32 s{sA}, s{sA}, {TSB}
        s_mov_b64 exec, 1""")
        for q in range(4):
            for j in range(4): a(f"v_mov_b32 v{4+j}, s{TS0 + 2 * (4 * q + j)}")
            a(f"buffer_store_dwordx4 v[4:7], off, {sr(rWS,4)}, s{sA} offset:{16*q}\ns_nop 1")
        a("s_waitcnt vmcnt(0)")

    a(f"""s_cmp_ge_u32 s2, 256
    s_cbranch_scc1 L_end""")
    if ts:
        for i in range(16): a(f"s_mov_b32 s{TS0+2*i}, 0")
    TS(0)
    a(f"""s_load_dwordx16 s[8:23], s[0:1], 0
    s_load_dwordx8 s[24:31], s[0:1], 64
    s_load_dwordx2 s[32:33], s[0:1], 96
    v_lshrrev_b32 v1, 6, v0
    s_and_b32 s{sRB}, s2, 7
    v_readfirstlane_b32 s{sW}, v1
    s_lshl_b32 s{sRB}, s{sRB}, 2
    s_lshr_b32 s{sA}, s2, 6
    s_add_u32 s{sRB}, s{sRB}, s{sA}
    s_bfe_u32 s{sG}, s2, 0x30003
    s_lshr_b32 s{sKG}, s{sG}, 1
    s_and_b32 s{sCH}, s{sG}, 1
    v_and_b32 v0, 63, v0
    s_waitcnt lgkmcnt(0)""")
    srd(rX, pX, 0x200000)
    srd(rWS, pWS, WS_BYTES)
    a(f"""s_cmp_ge_u32 s{sW}, 8
    s_cbranch_scc1 L_gwave""")

    a(f"""v_lshrrev_b32 v3, 5, v0
    v_and_b32 v4, 31, v0
    s_lshl_b32 s{sA}, s{sW}, 1
    v_add_u32 v3, s{sA}, v3
    v_lshlrev_b32 v1, 10, v3
    v_lshl_add_u32 v5, v4, 4, v1
    s_lshl_b32 s{sB}, s{sRB}, 16""")
    for it in range(4):
        a(f"""s_add_u32 s{sC}, s{sKG}, {it}
        s_and_b32 s{sC}, s{sC}, 3
        s_lshl_b32 s{sC}, s{sC}, 14
        s_add_u32 s{sD}, s{sB}, s{sC}
        buffer_load_dwordx4 {vr(8+8*it,4)}, v5, {sr(rX,4)}, s{sD} offen
        buffer_load_dwordx4 {vr(12+8*it,4)}, v5, {sr(rX,4)}, s{sD} offen offset:512""")
    a(f"""v_xor_b32 v4, v4, v3
    v_lshl_add_u32 v2, v4, 4, v1
    v_mov_b32 v6, {GC}
    v_mov_b32 v40, 0
    v_mov_b32 v41, 0
    v_mov_b32 v42, 0
    v_mov_b32 v43, 0
    s_mov_b32 s{sE}, 0xffff0000
    s_cmp_lg_u32 s{sW}, 0
    s_cbranch_scc1 L_nozero
    ds_write_b128 v6, v[40:43]""")
    a.label("L_nozero")
    U = 44
    for it in range(4):
        X = 8 + 8 * it
        a(f"s_waitcnt vmcnt({6 - 2 * it})")
        if it == 0: TS(1)
        for j in range(8):
            a(f"v_lshlrev_b32 v{U+2*j}, 16, v{X+j}\nv_and_b32 v{U+2*j+1}, s{sE}, v{X+j}")
        a(f"v_pk_add_f32 v[60:61], {vr(U,2)}, {vr(U+2,2)}\nv_pk_mul_f32 v[62:63], {vr(U,2)}, {vr(U,2)}")
        a(f"v_pk_fma_f32 v[62:63], {vr(U+2,2)}, {vr(U+2,2)}, v[62:63]")
        for j in range(2, 8):
            a(f"v_pk_add_f32 v[60:61], v[60:61], {vr(U+2*j,2)}\nv_pk_fma_f32 v[62:63], {vr(U+2*j,2)}, {vr(U+2*j,2)}, v[62:63]")
        a("v_add_f32 v60, v60, v61\nv_add_f32 v62, v62, v63")
        for mode in ("quad_perm:[1,0,3,2]", "quad_perm:[2,3,0,1]", "row_half_mirror", "row_mirror"):
            a(f"s_nop 0\nv_add_f32_dpp v60, v60, v60 {mode} row_mask:0xf bank_mask:0xf\nv_add_f32_dpp v62, v62, v62 {mode} row_mask:0xf bank_mask:0xf")
        a(f"""v_mov_b32 v61, v60
        v_mov_b32 v63, v62
        s_add_u32 s{sC}, s{sKG}, {it}
        s_and_b32 s{sC}, s{sC}, 3
        v_permlane16_swap_b32 v60, v61
        v_permlane16_swap_b32 v62, v63
        s_lshl_b32 s{sC}, s{sC}, 14
        v_add_f32 v60, v60, v61
        v_add_f32 v62, v62, v63
        v_mul_f32 v60, 0x3b000000, v60
        v_mul_f32 v61, v60, v60
        v_mov_b32 v63, 0x3b000000
        v_fma_f32 v62, v62, v63, -v61
        v_max_f32 v62, 0, v62
        v_add_f32 v62, 0x3727c5ac, v62
        v_rsq_f32 v62, v62
        v_add_u32 v7, s{sC}, v2
        v_mul_f32 v64, -v60, v62""")
        for j in range(8):
            a(f"v_pk_fma_f32 {vr(U+2*j,2)}, {vr(U+2*j,2)}, v[62:63], v[64:65] op_sel_hi:[1,0,0]")
        for j in range(8):
            a(f"v_cvt_pk_bf16_f32 v{X+j}, v{U+2*j}, v{U+2*j+1}")
        a(f"ds_write_b128 v7, {vr(X,4)}\nds_write_b128 v7, {vr(X+4,4)} offset:512")
        if it == 0:
            a("s_waitcnt lgkmcnt(0)\ns_barrier")
            TS(2)
    a("s_waitcnt lgkmcnt(0)\ns_barrier")
    TS(3)

    vL8, vAD, vT = 0, 1, 2
    Q, K, V, S0, S1, ACC, CIN = 4, 8, 40, 104, 120, 136, 152
    sQT, sPEND, sPOFF, sKVO = sI, sRT, sCT, sE
    sOOF, sQA, sOAD, sFAD, sCA = 0, 1, 44, 45, 46
    a(f"""ds_read_b64 v[8:9], v6 offset:{C_EPOCH}
    v_and_b32 v10, 31, v0
    v_lshlrev_b32 v{vL8}, 3, v0
    v_lshlrev_b32 v10, 7, v10
    s_lshl_b32 s{sB}, s{sW}, 12
    s_add_u32 s{sB}, s{sB}, {FLG_KV}
    s_lshl_b32 s{sOAD}, s{sRB}, 16
    s_lshl_b32 s{sA}, s{sG}, 12
    s_add_u32 s{sOAD}, s{sOAD}, s{sA}
    s_add_u32 s{sOAD}, s{sOAD}, {OF}
    s_lshl_b32 s{sFAD}, s{sRB}, 10
    s_lshl_b32 s{sA}, s{sG}, 7
    s_add_u32 s{sFAD}, s{sFAD}, s{sA}
    s_add_u32 s{sFAD}, s{sFAD}, {FLG_O}
    s_waitcnt lgkmcnt(0)
    v_readfirstlane_b32 s{sEP}, v8
    v_readfirstlane_b32 s{sEP+1}, v9
    v_mov_b32 v{ACC}, v6
    s_lshl_b32 s{sKVO}, s{sW}, 13""")
    def v_ones():
        if opt.get("ones_all"):
            a(f"s_mov_b32 s{sM}, 0x3f803f80\ns_mov_b32 s{sM+1}, 0x3f803f80")
            for i in range(32): a(f"v_mov_b64 {vr(V+2*i,2)}, {sr(sM,2)}")
        else:
            a(f"v_and_b32 v{V}, 0xff, v{vL8}\nv_mov_b32 v{V+1}, 0x3f803f80\nv_cmp_eq_u32 vcc, 0, v{V}\ns_nop 1\nv_cndmask_b32 v{V}, 0, v{V+1}, vcc\nv_mov_b32 v{V+1}, v{V}")
            for i in range(1, 32): a(f"v_mov_b64 {vr(V+2*i,2)}, {vr(V,2)}")
    v_ones()
    flag_poll(10, sB, 12)
    TS(4)
    def kv_load(tmp):
        a(f"""s_add_u32 s{sA}, s{sKVO}, 4096
        v_lshrrev_b32 v{tmp+1}, 8, v{vL8}
        v_lshlrev_b32 v{tmp}, 1, v{vL8}""")
        for t in range(8):
            a(f"buffer_load_dwordx4 {vr(K+4*t,4)}, v{tmp}, {sr(rWS,4)}, s{sKVO if t < 4 else sA} offen offset:{(t&3)*1024} sc1")
        a(f"""v_and_b32 v{tmp}, 0xf0, v{tmp}
        v_lshl_add_u32 v{tmp}, v{tmp+1}, 8, v{tmp}
        s_add_u32 s{sA}, s{sKVO}, {VF}
        s_add_u32 s{sB}, s{sKVO}, {VF+4096}
        s_mov_b32 exec_lo, 0xffff0000
        s_mov_b32 exec_hi, 0xffff0000""")
        for t in range(16):
            a(f"buffer_load_dwordx4 {vr(V+4*t,4)}, v{tmp}, {sr(rWS,4)}, s{sA if t < 8 else sB} offen offset:{(t&7)*512} sc1")
        a("s_mov_b64 exec, -1")
    kv_load(vT)
    TS(10)
    a(f"""s_lshl_b32 s{sA}, s{sW}, 10
    s_add_u32 s{sA}, s{sA}, {QF}
    v_lshl_add_u32 v{ACC+1}, v{vL8}, 1, s{sA}
    s_mul_i32 s{sA}, s{sW}, {OST}
    s_add_u32 s{sA}, s{sA}, {OACC}
    v_lshl_add_u32 v{ACC+3}, v{vL8}, 1, s{sA}
    s_lshl_b32 s{sA}, s{sW}, 9
    s_add_u32 s{sA}, s{sA}, {CINB}
    v_and_b32 v{ACC+8}, 0xff, v{vL8}
    v_lshl_add_u32 v{ACC+8}, v{ACC+8}, 1, s{sA}
    v_mov_b32 v{ACC+2}, 1
    v_mov_b64 {vr(ACC+4,2)}, 0
    v_mov_b64 {vr(ACC+6,2)}, 0""")
    lds_spin(C_QREADY, 4, ACC, vT)
    TS(5)
    a(f"ds_read_b128 {vr(Q,4)}, v{ACC+1}")
    for j in range(4): a(f"ds_write_b128 v{ACC+3}, {vr(ACC+4,4)} offset:{1024*j}")
    a(f"""s_mov_b64 exec, 0x1ffff
    ds_write_b128 v{ACC+3}, {vr(ACC+4,4)} offset:{B_L}
    s_mov_b64 exec, -1
    s_waitcnt vmcnt(23) lgkmcnt(5)""")
    TS(11)
    a(f"""v_mfma_f32_32x32x16_bf16 {vr(S0,16)}, {vr(K,4)}, {vr(Q,4)}, 0
    s_mov_b32 s{sOOF}, {OACC}
    s_mov_b32 s{sQA}, {QF}
    s_mov_b32 s{sCA}, {CINB}
    s_nop 8""")
    def maxtree(S, d):
        a(f"v_max3_f32 v{d}, v{S}, v{S+1}, v{S+2}")
        for j in range(3, 15, 2): a(f"v_max3_f32 v{d}, v{d}, v{S+j}, v{S+j+1}")
        a(f"v_max_f32 v{d}, v{d}, v{S+15}")
    maxtree(S0, vT)
    a(f"""v_mov_b32 v{vT+1}, v{vT}
    s_nop 1
    v_permlane32_swap_b32 v{vT}, v{vT+1}
    v_max_f32 v{vT}, v{vT}, v{vT+1}
    v_sub_f32 v{S1}, {-OFFS}, v{vT}
    v_mov_b32 v{S1+1}, v{S1}
    v_mov_b32 v{S1+2}, v{S1}
    v_mov_b32 v{S1+3}, v{S1}
    ds_write_b128 v{ACC+8}, {vr(S1,4)}
    s_mov_b64 exec, 1
    ds_add_u32 v{ACC}, v{ACC+2} offset:{C_ABAR}
    s_mov_b64 exec, -1""")
    lds_spin(C_ABAR, 8, ACC, vT, sleep=0)
    TS(6)
    if ts: a(f"s_memtime {sr(TS0+26,2)}")
    def load_q():
        a(f"""v_lshl_add_u32 v{vAD}, v{vL8}, 1, s{sQA}
        v_and_b32 v{vT}, 0xff, v{vL8}
        s_add_u32 s{sQA}, s{sQA}, 1024
        ds_read_b128 {vr(Q,4)}, v{vAD}
        v_lshl_add_u32 v{vT}, v{vT}, 1, s{sCA}
        s_add_u32 s{sCA}, s{sCA}, 512""")
        for j in range(4): a(f"ds_read_b128 {vr(CIN+4*j,4)}, v{vT}")
    def QK(t, S): return f"v_mfma_f32_32x32x16_bf16 {vr(S,16)}, {vr(K+4*t,4)}, {vr(Q,4)}, {vr(CIN,16)}"
    def PV(t, hf, S, zero=False):
        if opt.get("nopv") and not zero: return "s_nop 1"
        if opt.get("pv16") and not zero: return f"v_mfma_f32_16x16x32_bf16 {vr(ACC+4*hf,4)}, {vr(K+4*t,4)}, {vr(S+8*hf,4)}, {vr(ACC+4*hf,4)}"
        return f"v_mfma_f32_32x32x16_bf16 {vr(ACC,16)}, {vr(V+8*t+4*hf,4)}, {vr(S+8*hf,4)}, {'0' if zero else vr(ACC,16)}"
    def e(S, i): return f"v_exp_f32 v{S+i}, v{S+i}" if not opt.get("noexp") else f"v_and_b32 v{S+i}, v{S+i}, v{S+i}\nv_and_b32 v{S+i}, v{S+i}, v{S+i}"
    def c(S, j): return f"v_cvt_pk_bf16_f32 v{S + (j & 3) + 8 * (j >> 2)}, v{S+2*j}, v{S+2*j+1}"
    def half1(S, pv1, qk, pre_qk=()):
        x = [e(S,0), e(S,1)] + pv1 + [e(S,2), e(S,3), c(S,0), e(S,4), e(S,5), c(S,1)] + list(pre_qk) + qk + [e(S,6), e(S,7), c(S,2), e(S,8), c(S,3), e(S,9), e(S,10)]
        for l in x: a(l)
    def half2(S, pv0):
        x = pv0 + [e(S,11), c(S,4), e(S,12), e(S,13), c(S,5), e(S,14), e(S,15), c(S,6), c(S,7)]
        for l in x: a(l)
    load_q()
    a(f"""s_mov_b32 s{sQT}, 0
    s_mov_b32 s{sPEND}, 0
    s_cmp_ge_u32 s{sW}, 4
    s_cbranch_scc1 L_prioB
    s_setprio 2
    s_branch L_prioD""")
    a.label("L_prioB")
    a("s_setprio 1")
    a.label("L_prioD")
    a(f"s_waitcnt vmcnt(16) lgkmcnt(0)")
    a(QK(0, S0))
    a("s_nop 11")
    half1(S0, [], [QK(1, S1)])
    a(".p2align 3")
    a.label("L_atop")
    SS = [S0, S1]
    for t in range(8):
        cur, nxt = SS[t & 1], SS[(t + 1) & 1]
        if t > 0:
            if t < 7:
                half1(cur, [PV(t - 1, 1, nxt)], [QK(t + 1, nxt)])
            else:
                half1(cur, [PV(t - 1, 1, nxt)], [QK(0, nxt)], pre_qk=["s_waitcnt lgkmcnt(0)"])
            if t == 6:
                load_q()
        a(f"s_waitcnt vmcnt({14 - 2 * t})")
        half2(cur, [PV(t, 0, cur, zero=(t == 0))])
        if t == 2:
            a(f"""s_cmp_eq_u32 s{sPEND}, 0
            s_cbranch_scc1 L_nopend
            s_waitcnt vmcnt(0)
            s_mov_b32 s{sPEND}, 0""")
            flag_store(sPOFF, vT)
            a.label("L_nopend")
    a(f"""s_cmp_eq_u32 s{sQT}, 7
    s_cbranch_scc1 L_alast""")
    half1(S0, [PV(7, 1, S1)], [QK(1, S1)])
    a.label("L_flush")
    a(f"""v_add_u32 v{vAD}, s{sOOF}, v{vL8}
    v_cvt_f64_f32 {vr(vT,2)}, v{ACC}""")
    for j in range(8): a(f"v_cvt_f64_f32 {vr(ACC+2*j,2)}, v{ACC+8+j}")
    a(f"""s_mov_b32 exec_hi, 0
    ds_add_f64 v{vAD}, {vr(vT,2)} offset:{B_L}
    s_mov_b32 exec_hi, -1""")
    for j in range(8): a(f"ds_add_f64 v{vAD}, {vr(ACC+2*j,2)} offset:{512*j}")
    a(f"""v_mov_b32 v{vT}, 1
    s_mov_b64 exec, 1
    ds_add_rtn_u32 v{vT+1}, v{vAD}, v{vT} offset:{B_CNT}
    s_mov_b64 exec, -1
    s_cmp_eq_u32 s{sQT}, 6
    s_cbranch_scc0 L_noprio
    s_cmp_ge_u32 s{sW}, 4
    s_cbranch_scc1 L_noprio
    s_setprio 0""")
    a.label("L_noprio")
    if opt.get("qts"):
        a("s_memtime s[96:97]\ns_waitcnt lgkmcnt(0)")
        for i in range(1, 8): a(f"s_mov_b32 s{TS0+2*i}, s{TS0+2*i+2}")
        a(f"s_sub_u32 s{TS0+16}, s96, s{TS0+26}")
    a(f"""s_waitcnt lgkmcnt(0)
    v_readfirstlane_b32 s{sA}, v{vT+1}
    s_nop 0
    s_cmp_lg_u32 s{sA}, 7
    s_cbranch_scc1 L_nofin""")
    for j in range(7, -1, -1): a(f"ds_read_b64 {vr(ACC+2*j,2)}, v{vAD} offset:{512*j}")
    a(f"""v_and_b32 v{vT}, 0xff, v{vL8}
    v_add_u32 v{vT}, s{sOOF}, v{vT}
    ds_read_b64 {vr(vT,2)}, v{vT} offset:{B_L}
    s_mov_b32 s{sD}, 0
    s_waitcnt lgkmcnt(0)""")
    for j in range(7, -1, -1): a(f"v_cvt_f32_f64 v{ACC+8+j}, {vr(ACC+2*j,2)}")
    a(f"v_cvt_f32_f64 v{ACC}, {vr(vT,2)}")
    a.label("L_fin2")
    a(f"""v_lshlrev_b32 v{ACC+2}, 1, v{vL8}
    v_rcp_f32 v{ACC+1}, v{ACC}
    v_mov_b32 v{ACC+3}, 0x76800000
    v_cmp_nle_f32 vcc, 0x0d800000, v{ACC}
    v_cmp_nle_f32 {sr(sM,2)}, v{ACC}, v{ACC+3}""")
    for j in range(8): a(f"v_mul_f32 v{ACC+8+j}, v{ACC+8+j}, v{ACC+1}")
    a(f"""s_or_b64 {sr(sM,2)}, {sr(sM,2)}, vcc
    v_mul_f32 v{ACC+3}, 0, v{ACC+8}""")
    for j in range(1, 8): a(f"v_fma_f32 v{ACC+3}, 0, v{ACC+8+j}, v{ACC+3}")
    for j in range(4): a(f"v_cvt_pk_bf16_f32 v{ACC+4+j}, v{ACC+8+2*j}, v{ACC+9+2*j}")
    a(f"""v_cmp_u_f32 vcc, v{ACC+3}, v{ACC+3}
    s_nop 1
    s_or_b64 {sr(sM,2)}, {sr(sM,2)}, vcc
    s_cmp_lg_u64 {sr(sM,2)}, 0
    s_cselect_b32 s{sB}, 1, 0
    s_cmp_gt_u32 s{sB}, s{sD}
    {"s_nop 0" if opt.get("nofb") else "s_cbranch_scc1 L_fallback"}
    buffer_store_dwordx4 {vr(ACC+4,4)}, v{ACC+2}, {sr(rWS,4)}, s{sOAD} offen sc1
    s_mov_b32 s{sPOFF}, s{sFAD}
    s_mov_b32 s{sPEND}, 1""")
    a.label("L_nofin")
    a(f"""s_add_u32 s{sOOF}, s{sOOF}, {OST}
    s_add_u32 s{sFAD}, s{sFAD}, 8
    s_cmp_eq_u32 s{sQT}, 3
    s_cselect_b32 s{sA}, 29, 1
    s_lshl_b32 s{sA}, s{sA}, 10
    s_add_u32 s{sOAD}, s{sOAD}, s{sA}
    s_add_u32 s{sQT}, s{sQT}, 1
    s_cmp_lt_u32 s{sQT}, 8
    s_cbranch_scc1 L_atop""")
    TS(8)
    a(f"""s_cmp_eq_u32 s{sPEND}, 0
    s_cbranch_scc1 L_adone
    s_waitcnt vmcnt(0)""")
    flag_store(sPOFF, vT)
    a.label("L_adone")
    if opt.get("delay_f1", 0) > 8:
        a(f"v_mov_b32 v4, {GC}\nv_mov_b32 v5, 1\ns_mov_b64 exec, 1\nds_add_u32 v4, v5 offset:{C_ABAR}\ns_mov_b64 exec, -1")
    if ts:
        a(f"s_memtime {sr(TS0+28,2)}\ns_getreg_b32 s{TS0+30}, hwreg(HW_REG_HW_ID)\ns_waitcnt lgkmcnt(0)\ns_sub_u32 s{TS0+28}, s{TS0+28}, s{TS0+26}")
    TS(9)
    ts_dump()
    a("s_endpgm")
    a.label("L_alast")
    TS(7)
    a("s_nop 0")
    a(PV(7, 1, S1))
    a("s_nop 11\ns_branch L_flush")

    a.label("L_fallback")
    FQ, FK, FV, FS, FC, FA = K, K + 4, K + 8, K + 16, V, V + 16
    a(f"""s_waitcnt vmcnt(0)
    s_lshl_b32 s{sA}, s{sQT}, 10
    s_add_u32 s{sA}, s{sA}, {QF}
    v_add_u32 v{FA}, s{sA}, v{ACC+2}
    ds_read_b128 {vr(FQ,4)}, v{FA}
    v_mov_b32 v{FA}, v{ACC+2}
    v_lshrrev_b32 v{FA+1}, 9, v{FA}
    v_and_b32 v{FA+2}, 0xf0, v{FA}
    v_lshl_add_u32 v{FA+1}, v{FA+1}, 8, v{FA+2}
    v_mov_b32 v{FA+2}, 0xff800000
    s_mov_b32 s{sA}, 0x3f803f80""")
    for i in range(8): a(f"v_mov_b32 v{FV+i}, s{sA}")
    a(f"s_mov_b32 s{sA}, 0")
    a.label("L_fb1")
    a(f"""buffer_load_dwordx4 {vr(FK,4)}, v{FA}, {sr(rWS,4)}, s{sA} offen sc1
    s_waitcnt vmcnt(0) lgkmcnt(0)
    v_mfma_f32_32x32x16_bf16 {vr(FS,16)}, {vr(FK,4)}, {vr(FQ,4)}, 0
    s_nop 11""")
    maxtree(FS, FA + 3)
    a(f"""v_max_f32 v{FA+2}, v{FA+2}, v{FA+3}
    s_add_u32 s{sA}, s{sA}, 1024
    s_cmp_lt_u32 s{sA}, 0x10000
    s_cbranch_scc1 L_fb1
    v_mov_b32 v{FA+3}, v{FA+2}
    s_nop 1
    v_permlane32_swap_b32 v{FA+2}, v{FA+3}
    v_max_f32 v{FA+2}, v{FA+2}, v{FA+3}""")
    for i in range(16): a(f"v_sub_f32 v{FC+i}, 0, v{FA+2}\nv_mov_b32 v{ACC+i}, 0")
    a(f"s_mov_b32 s{sA}, 0")
    a.label("L_fb2")
    a(f"""s_add_u32 s{sB}, s{sA}, {VF}
    buffer_load_dwordx4 {vr(FK,4)}, v{FA}, {sr(rWS,4)}, s{sA} offen sc1
    s_mov_b32 exec_lo, 0xffff0000
    s_mov_b32 exec_hi, 0xffff0000
    buffer_load_dwordx4 {vr(FV,4)}, v{FA+1}, {sr(rWS,4)}, s{sB} offen sc1
    buffer_load_dwordx4 {vr(FV+4,4)}, v{FA+1}, {sr(rWS,4)}, s{sB} offen offset:512 sc1
    s_mov_b64 exec, -1
    s_waitcnt vmcnt(0)
    v_mfma_f32_32x32x16_bf16 {vr(FS,16)}, {vr(FK,4)}, {vr(FQ,4)}, {vr(FC,16)}
    s_nop 11""")
    for i in range(16): a(e(FS, i))
    a("s_nop 0")
    for j in range(8): a(c(FS, j))
    a(f"""s_nop 1
    v_mfma_f32_32x32x16_bf16 {vr(ACC,16)}, {vr(FV,4)}, {vr(FS,4)}, {vr(ACC,16)}
    v_mfma_f32_32x32x16_bf16 {vr(ACC,16)}, {vr(FV+4,4)}, {vr(FS+8,4)}, {vr(ACC,16)}
    s_add_u32 s{sA}, s{sA}, 1024
    s_cmp_lt_u32 s{sA}, 0x10000
    s_cbranch_scc1 L_fb2
    s_nop 15""")
    v_ones()
    kv_load(vT)
    a(f"""s_waitcnt vmcnt(0)
    s_mov_b32 s{sD}, 1
    s_branch L_fin2""")

    a(".p2align 6")
    a.label("L_gwave")
    gGC, gL16, gSW, gTR = 1, 2, 3, 4
    gH, gR = 5, 6
    a(f"""s_setprio 3
    s_sub_u32 s{sI}, s{sW}, 8
    s_lshr_b32 s{sRT}, s{sI}, 1
    s_and_b32 s{sCT}, s{sI}, 1
    v_lshlrev_b32 v{gL16}, 4, v0
    v_lshrrev_b32 v7, 3, v0
    v_lshrrev_b32 v8, 2, v0
    v_and_b32 v8, 4, v8
    v_and_b32 v9, 7, v0
    v_xor_b32 v8, v8, v9
    v_lshlrev_b32 v8, 4, v8
    v_lshl_add_u32 v{gSW}, v7, 10, v8
    s_cmp_lg_u32 s{sI}, 0
    s_cbranch_scc1 L_gwq""")
    a(f"""s_cmp_eq_u32 s{sCH}, 0
    s_cselect_b32 s{rW}, s{pWK}, s{pWV}
    s_cselect_b32 s{rW+1}, s{pWK+1}, s{pWV+1}
    s_mov_b32 s{rW+2}, 16384
    s_mov_b32 s{rW+3}, 0x20000""")
    for q in range(4):
        a(f"s_mov_b32 m0, {WKV + q * 4096}\ns_mov_b32 s{sA}, {q*4096}")
        for j in range(4): a(f"buffer_load_dwordx4 v{gL16}, {sr(rW,4)}, s{sA} offen offset:{j*1024} lds")
    srd(rT, pDBG, 256)
    a(f"""s_cmp_lg_u32 s2, 0
    s_cbranch_scc1 L_gxb
    s_memrealtime {sr(sM,2)}
    s_waitcnt lgkmcnt(0)
    v_mov_b32 v10, s{sM}
    v_mov_b32 v11, s{sM+1}
    v_or_b32 v11, 0x80000000, v11
    s_mov_b64 exec, 1
    buffer_store_dwordx2 v[10:11], off, {sr(rT,4)}, 0 sc1
    s_mov_b64 exec, -1
    s_branch L_gxb""")
    a.label("L_gwq")
    srd(rW, pWQ, 0x80000)
    a(f"""s_sub_u32 s{sA}, s{sI}, 1
    s_lshl_b32 s{sB}, s{sA}, 13
    s_lshl_b32 s{sC}, s{sG}, 7
    s_add_u32 s{sB}, s{sB}, s{sC}
    s_lshl_b32 s{sA}, s{sA}, 10
    s_add_u32 s{sA}, s{sA}, {RING}""")
    a.label("L_wqloop")
    a(f"""s_mov_b32 m0, s{sA}
    s_add_u32 s{sA}, s{sA}, 3072
    buffer_load_dwordx4 v{gSW}, {sr(rW,4)}, s{sB} offen lds
    s_add_u32 s{sB}, s{sB}, {3*8192}
    s_cmp_lt_u32 s{sA}, {RING + 65536}
    s_cbranch_scc1 L_wqloop""")
    a.label("L_gxb")
    a(f"""v_mov_b32 v{gGC}, {GC}
    v_lshrrev_b32 v{gH}, 5, v0
    v_bfe_u32 v{gR}, v0, 2, 2
    v_and_b32 v7, 3, v0
    v_and_b32 v8, 16, v0
    v_lshlrev_b32 v8, 1, v8
    v_lshl_add_u32 v{gTR}, v7, 3, v8
    s_cmp_lg_u32 s{sI}, 0
    s_cbranch_scc1 L_gb1""")
    WF, XF, DD = 32, 96, 160
    a(f"""v_and_b32 v7, 15, v0
    v_lshrrev_b32 v8, 4, v0
    v_lshlrev_b32 v9, 3, v7
    v_lshl_add_u32 v9, v8, 8, v9
    v_add_u32 v9, {WKV}, v9
    s_lshl_b32 s{sA}, s{sKG}, 14
    v_xor_b32 v10, v7, v8
    v_lshlrev_b32 v10, 4, v10
    v_lshl_add_u32 v10, v7, 10, v10
    v_add_u32 v10, s{sA}, v10
    v_xor_b32 v11, 64, v10
    v_xor_b32 v12, 0x80, v10
    v_xor_b32 v13, 0xc0, v10
    s_waitcnt vmcnt(0)
    buffer_load_dwordx2 v[14:15], off, {sr(rT,4)}, 0 sc1""")
    for ks in range(16):
        a(f"ds_read_b64_tr_b16 {vr(WF+4*ks,2)}, v9 offset:{ks*1024}\nds_read_b64_tr_b16 {vr(WF+4*ks+2,2)}, v9 offset:{ks*1024+128}")
    a(f"""s_cmp_eq_u32 s{sCH}, 0
    s_cselect_b32 s{sB}, 9, 8
    s_cselect_b32 s{sC}, 8, 9
    s_cselect_b32 s{sD}, {KF}, {VF}
    v_and_b32 v16, 1, v8
    v_lshlrev_b32 v16, s{sB}, v16
    v_lshrrev_b32 v17, 1, v8
    v_lshl_add_u32 v16, v17, 3, v16
    v_lshl_add_u32 v16, v7, 4, v16
    s_and_b32 s{sA}, s{sKG}, 1
    s_lshl_b32 s{sA}, s{sA}, s{sC}
    s_add_u32 s{sD}, s{sD}, s{sA}
    s_lshl_b32 s{sA}, s{sRB}, 1
    s_lshr_b32 s{sB}, s{sKG}, 1
    s_add_u32 s{sA}, s{sA}, s{sB}
    s_lshl_b32 s{sA}, s{sA}, 10
    s_add_u32 s{sD}, s{sD}, s{sA}
    s_waitcnt lgkmcnt(0)""")
    TS(1)
    a("s_barrier")
    TS(2)
    for ks in range(16):
        a(f"ds_read_b128 {vr(XF+4*ks,4)}, v{10+(ks&3)} offset:{(ks>>2)*256}")
    a(f"""s_cmp_eq_u32 s{sCH}, 0
    s_cbranch_scc0 L_vchain""")
    for nm, sw in (("k", False), ("v", True)):
        if sw: a.label("L_vchain")
        for ks in range(16):
            A_, B_ = (XF, WF) if sw else (WF, XF)
            if ks % 4 == 0: a(f"s_waitcnt lgkmcnt({12 - ks})")
            a(f"v_mfma_f32_16x16x32_bf16 {vr(DD,4)}, {vr(A_+4*ks,4)}, {vr(B_+4*ks,4)}, {'0' if ks == 0 else vr(DD,4)}")
        if not sw: a("s_branch L_kvst")
    a.label("L_kvst")
    a(f"""s_lshl_b32 s{sA}, s{sRB}, 3
    s_add_u32 s{sA}, s{sA}, s{sG}
    s_lshl_b32 s{sA}, s{sA}, 7
    s_add_u32 s{sA}, s{sA}, {FLG_KV}
    s_nop 3
    v_cvt_pk_bf16_f32 v18, v{DD}, v{DD+1}
    v_cvt_pk_bf16_f32 v19, v{DD+2}, v{DD+3}
    buffer_store_dwordx2 v[18:19], v16, {sr(rWS,4)}, s{sD} offen sc1
    s_mov_b32 s{sCAP}, 0""")
    a.label("L_epoch")
    a(f"""s_waitcnt vmcnt(0)
    v_readfirstlane_b32 s{sEP}, v14
    v_readfirstlane_b32 s{sEP+1}, v15
    s_add_u32 s{sCAP}, s{sCAP}, 1
    s_cmp_gt_u32 s{sCAP}, {SPIN_CAP}
    s_cbranch_scc1 L_epochok
    s_cmp_lg_u32 s{sEP+1}, 0
    s_cbranch_scc1 L_epochok
    buffer_load_dwordx2 v[14:15], off, {sr(rT,4)}, 0 sc1
    s_branch L_epoch""")
    a.label("L_epochok")
    a(f"""s_mov_b64 exec, 1
    buffer_store_dwordx2 v[14:15], off, {sr(rWS,4)}, s{sA} sc1
    ds_write_b64 v{gGC}, v[14:15] offset:{C_EPOCH}
    s_mov_b64 exec, -1
    s_waitcnt lgkmcnt(0)""")
    TS(3)
    a("s_branch L_gb2")
    a.label("L_gb1")
    a("s_barrier\ns_waitcnt vmcnt(0)")
    a.label("L_gb2")
    AC = [136, 104, 120, 88]
    XB = 152
    vB1 = 8
    srd(rT, pB2, 1024)
    a(f"""v_and_b32 v7, 31, v0
    v_lshlrev_b32 v16, 3, v{gH}
    v_lshl_add_u32 v17, v7, 10, v16
    s_lshl_b32 s{sA}, s{sG}, 7
    s_lshl_b32 s{sB}, s{sCT}, 6
    s_add_u32 s{sA}, s{sA}, s{sB}
    s_lshl_b32 s{sB}, s{sRB}, 16
    s_lshl_b32 s{sC}, s{sRT}, 15
    s_add_u32 s{sB}, s{sB}, s{sC}
    s_add_u32 s{sB}, s{sB}, s{sA}""")
    for q in range(4): a(f"buffer_load_dwordx2 {vr(XB+2*q,2)}, v17, {sr(rX,4)}, s{sB} offen offset:{16*q}")
    for q in range(4): a(f"buffer_load_dwordx2 {vr(XB+8+2*q,2)}, v16, {sr(rT,4)}, s{sA} offen offset:{16*q}")
    sT1, sT2, sNG = 0, 1, sE
    a(f"""s_lshl_b32 s{sT1}, s{sG}, 2
    s_add_u32 s{sT1}, s{sT1}, s{sI}
    s_sub_u32 s{sT2}, 3, s{sI}
    s_lshl_b32 s{sT2}, s{sT2}, 3
    s_add_u32 s{sT2}, s{sT2}, s{sG}
    s_add_u32 s{sT2}, s{sT2}, 32
    s_cmp_lt_u32 s{sT2}, 43
    s_cselect_b32 s{sNG}, 16, 8
    s_nop 0""")
    srd(rT, pB1, W1P)
    a(f"""v_lshlrev_b32 v16, 1, v7
    s_lshl_b32 s{sA}, s{sT1}, 6
    s_lshl_b32 s{sB}, s{sT2}, 6
    buffer_load_ushort v{vB1}, v16, {sr(rT,4)}, s{sA} offen
    buffer_load_ushort v{vB1+6}, v16, {sr(rT,4)}, s{sB} offen""")
    gXA, gXT, gWA = 15, 16, 17
    a(f"""v_and_b32 v18, 15, v0
    v_xor_b32 v18, v18, v{gH}
    v_lshlrev_b32 v18, 4, v18
    v_lshl_add_u32 v{gXA}, v7, 10, v18
    v_lshrrev_b32 v18, 1, v{gR}
    v_xor_b32 v18, s{sCT}, v18
    v_lshl_add_u32 v19, v18, 6, v{gTR}
    v_lshl_add_u32 v19, v{gR}, 7, v19
    v_lshl_add_u32 v{gWA}, v{gH}, 10, v19
    v_add_u32 v{gWA}, {RING}, v{gWA}
    s_lshl_b32 s{sC}, s{sRT}, 15
    v_add_u32 v18, s{sC}, v{gXA}
    s_barrier""")
    TS(4)
    a(f"ds_read_b64 v[20:21], v{gGC} offset:{C_EPOCH}")
    QA = 104
    BUF = [24, 56]
    def q_reads(bf):
        for b in range(4):
            a(f"ds_read_b64_tr_b16 {vr(bf+8*b,2)}, v{gWA} offset:{b*16384}\nds_read_b64_tr_b16 {vr(bf+8*b+2,2)}, v{gWA} offset:{b*16384+512}")
            a(f"ds_read_b128 {vr(bf+8*b+4,4)}, v{gXT} offset:{b*256}")
    a(f"v_mov_b32 v{gXT}, v18")
    q_reads(BUF[0])
    for i in range(16): a(f"v_mov_b32 v{QA+i}, 0")
    a(f"s_mov_b32 s{sA}, 0")
    a.label("L_qloop")
    for p in range(2):
        a(f"""s_add_u32 s{sA}, s{sA}, 32
        v_add_u32 v{gWA}, 2048, v{gWA}
        v_xor_b32 v{gXT}, s{sA}, v18
        s_waitcnt lgkmcnt(0)""")
        q_reads(BUF[1 - p])
        for b in range(4):
            a(f"v_mfma_f32_32x32x16_bf16 {vr(QA,16)}, {vr(BUF[p]+8*b,4)}, {vr(BUF[p]+8*b+4,4)}, {vr(QA,16)}")
    a(f"""s_cmp_lt_u32 s{sA}, 256
    s_cbranch_scc1 L_qloop
    v_readfirstlane_b32 s{sEP}, v20
    v_readfirstlane_b32 s{sEP+1}, v21
    s_lshl_b32 s{sA}, s{sRT}, 2
    s_lshl_b32 s{sB}, s{sCT}, 1
    s_add_u32 s{sA}, s{sA}, s{sB}
    s_lshl_b32 s{sA}, s{sA}, 10
    s_add_u32 s{sA}, s{sA}, {QF}
    v_add_u32 v20, s{sA}, v{gL16}
    s_mov_b32 s{sM}, 0x3eb8aa3b
    s_mov_b32 s{sM+1}, 0x3eb8aa3b
    v_mov_b32 v21, 1
    s_nop 1""")
    for j in range(8): a(f"v_pk_mul_f32 {vr(QA+2*j,2)}, {vr(QA+2*j,2)}, {sr(sM,2)}")
    for j in range(8): a(f"v_cvt_pk_bf16_f32 v{QA+j}, v{QA+2*j}, v{QA+2*j+1}")
    a(f"""ds_write_b128 v20, {vr(QA,4)}
    ds_write_b128 v20, {vr(QA+4,4)} offset:1024
    s_mov_b64 exec, 1
    ds_add_u32 v{gGC}, v21 offset:{C_QREADY}
    s_mov_b64 exec, -1""")
    TS(5)
    gV1 = 20
    sRNG = 35
    srd(rW, pW1, 512 * W1P)
    a(f"""v_lshrrev_b32 v7, 2, v0
    v_and_b32 v18, 3, v0
    v_mul_u32_u24 v7, {W1P}, v7
    v_lshl_add_u32 v{gV1}, v18, 4, v7
    v_add_u32 v{gV1+1}, {128*W1P-1024}, v{gV1}
    v_add_u32 v{gV1+2}, {2*(128*W1P-1024)}, v{gV1}
    v_add_u32 v{gV1+3}, {3*(128*W1P-1024)}, v{gV1}
    s_mul_i32 s{sRNG}, s{sI}, {RSZ}
    s_add_u32 s{sRNG}, s{sRNG}, {RING}
    v_lshl_add_u32 v18, v{gR}, 6, v{gTR}
    v_lshl_add_u32 v18, v{gH}, 9, v18
    v_add_u32 v18, s{sRNG}, v18""")
    lds_spin(C_QREADY, 4, gGC, 7, sleep=0)
    if opt.get("delay_f1"): lds_spin(C_ABAR, opt["delay_f1"], gGC, 7, sleep=8)
    sN, sSO = sA, sB
    def w1_dma(slot_sreg):
        a(f"s_mov_b32 m0, s{slot_sreg}\ns_nop 0")
        for b in range(4): a(f"buffer_load_dwordx4 v{gV1+b}, {sr(rW,4)}, s{sSO} offen offset:{b*1024} lds")
    a(f"s_lshl_b32 s{sSO}, s{sT1}, 6\ns_mov_b32 s{sC}, s{sRNG}")
    for n in range(3):
        w1_dma(sC)
        a(f"s_add_u32 s{sSO}, s{sSO}, {16*W1P}\ns_add_u32 s{sC}, s{sC}, 4096")
    a(f"s_waitcnt vmcnt(12)\ns_mov_b32 s{sD}, 0xffff0000")
    for j in range(8):
        a(f"v_lshlrev_b32 v{AC[0]+2*j}, 16, v{XB+j}\nv_and_b32 v{AC[0]+2*j+1}, s{sD}, v{XB+j}")
        a(f"v_lshlrev_b32 v24, 16, v{XB+8+j}\nv_and_b32 v25, s{sD}, v{XB+8+j}")
        a(f"v_pk_add_f32 {vr(AC[0]+2*j,2)}, {vr(AC[0]+2*j,2)}, v[24:25]")
    a(f"""v_mov_b32 v{vB1+1}, 0
    v_sub_u32 v{vB1+2}, 1, v{gH}
    v_mul_u32_u24 v{vB1+2}, 0x3f80, v{vB1+2}
    v_mov_b32 v{vB1+3}, 0
    v_mov_b32 v{vB1+4}, 0
    v_mov_b32 v{vB1+5}, 0""")
    H0, H1 = 104, 120
    FB = [24, 56]
    FX = [88, 152]
    def f1_reads(p):
        for b in range(4):
            a(f"ds_read_b64_tr_b16 {vr(FB[p]+8*b,2)}, v{gWA} offset:{b*1024}\nds_read_b64_tr_b16 {vr(FB[p]+8*b+2,2)}, v{gWA} offset:{b*1024+256}")
            a(f"ds_read_b128 {vr(FB[p]+8*b+4,4)}, v{gXT} offset:{b*256}\nds_read_b128 {vr(FX[p]+4*b,4)}, v{gXT} offset:{b*256+32768}")
    def bias():
        a(f"v_mfma_f32_32x32x16_bf16 {vr(H0,16)}, {vr(vB1,4)}, {vr(vB1+2,4)}, 0\nv_mfma_f32_32x32x16_bf16 {vr(H1,16)}, {vr(vB1,4)}, {vr(vB1+2,4)}, 0")
    a(f"""v_mov_b32 v{gWA}, v18
    v_mov_b32 v{gXT}, v{gXA}
    s_mov_b32 s{sN}, 0
    s_mov_b32 s{sM}, 0
    s_waitcnt vmcnt(8)""")
    f1_reads(0)
    bias()
    a.label("L_f1loop")
    for p in range(2):
        a(f"""s_add_u32 s{sC}, s{sM}, s{sRNG}
        s_add_u32 s{sM}, s{sM}, 4096
        s_cmp_lt_u32 s{sM}, {RSZ}
        s_cselect_b32 s{sM}, s{sM}, 0
        s_add_u32 s{sN}, s{sN}, 1
        v_add_u32 v{gWA}, s{sM}, v18
        s_and_b32 s{sD}, s{sN}, 7
        s_lshl_b32 s{sD}, s{sD}, 5
        v_xor_b32 v{gXT}, s{sD}, v{gXA}""")
        if p == 1:
            a(f"""s_lshl_b32 s{sD}, s{sT2}, 6
            s_cmp_eq_u32 s{sN}, 6
            s_cselect_b32 s{sSO}, s{sD}, s{sSO}
            s_add_u32 s{sD}, s{sN}, 2
            s_cmp_lt_u32 s{sD}, s{sNG}
            s_cselect_b32 s{rW+2}, s{rW+2}, 0""")
        a("s_waitcnt vmcnt(4) lgkmcnt(0)")
        f1_reads(1 - p)
        w1_dma(sC)
        a(f"s_add_u32 s{sSO}, s{sSO}, {16*W1P}")
        for b in range(4):
            a(f"v_mfma_f32_32x32x16_bf16 {vr(H0,16)}, {vr(FB[p]+8*b,4)}, {vr(FB[p]+8*b+4,4)}, {vr(H0,16)}")
            a(f"v_mfma_f32_32x32x16_bf16 {vr(H1,16)}, {vr(FB[p]+8*b,4)}, {vr(FX[p]+4*b,4)}, {vr(H1,16)}")
    a(f"""s_and_b32 s{sD}, s{sN}, 7
    s_cbranch_scc1 L_f1loop
    s_mul_i32 s{sD}, s{sRB}, 86
    s_lshl_b32 s{sC}, s{sT1}, 1
    s_add_u32 s{sD}, s{sD}, s{sC}
    s_lshl_b32 s{sD}, s{sD}, 11
    s_add_u32 s{sD}, s{sD}, {HF}
    s_mov_b32 s{sT1}, s{sT2}
    v_mov_b32 v{vB1}, v{vB1+6}
    s_nop 3""")
    for rt, Hh in enumerate((H0, H1)):
        for j in range(16): a(f"v_max_f32 v{Hh+j}, 0, v{Hh+j}")
        for j in range(8): a(f"v_pk_mul_f32 {vr(Hh+2*j,2)}, {vr(Hh+2*j,2)}, {vr(Hh+2*j,2)}")
        for j in range(8): a(f"v_cvt_pk_bf16_f32 v{Hh+j}, v{Hh+2*j}, v{Hh+2*j+1}")
        for s_ in range(2):
            a(f"buffer_store_dwordx4 {vr(Hh+4*s_,4)}, v{gL16}, {sr(rWS,4)}, s{sD} offen offset:{s_*2048+rt*1024} sc1")
    a("s_nop 1")
    bias()
    a(f"""s_cmp_lt_u32 s{sN}, s{sNG}
    s_cbranch_scc1 L_f1loop
    v_mov_b32 v7, 1
    s_waitcnt vmcnt(0) lgkmcnt(0)
    s_mov_b64 exec, 1
    ds_add_rtn_u32 v24, v{gGC}, v7 offset:{C_HDONE}
    s_mov_b64 exec, -1
    s_lshl_b32 s{sD}, s{sRB}, 3
    s_add_u32 s{sC}, s{sD}, s{sG}
    s_lshl_b32 s{sC}, s{sC}, 7
    s_add_u32 s{sC}, s{sC}, {FLG_H}
    s_waitcnt lgkmcnt(0)
    v_readfirstlane_b32 s{sA}, v24
    s_nop 0
    s_cmp_lg_u32 s{sA}, 3
    s_cbranch_scc1 L_nohflag""")
    flag_store(sC, 24)
    a.label("L_nohflag")
    TS(6)
    sK0, sK1, sSW, sSH = 0, 1, sB, sC
    a(f"""s_mul_i32 s{sK0}, s{sI}, 22
    s_cmp_eq_u32 s{sI}, 3
    s_cselect_b32 s{sA}, 20, 22
    s_add_u32 s{sK1}, s{sK0}, s{sA}
    s_mov_b32 s{rW}, s{pW2}
    s_mov_b32 s{rW+1}, s{pW2+1}
    s_lshl_b32 s{rW+2}, s{sK1}, 14
    s_mov_b32 s{rW+3}, 0x20000
    s_lshl_b32 s{sSW}, s{sK0}, 14
    s_lshl_b32 s{sA}, s{sG}, 7
    s_add_u32 s{sSW}, s{sSW}, s{sA}
    v_add_u32 v7, {8192-1024}, v{gSW}""")
    gSW2 = 7
    def w2_dma(u):
        a(f"""s_add_u32 m0, s{sRNG}, {u*2048}
        s_nop 0
        buffer_load_dwordx4 v{gSW}, {sr(rW,4)}, s{sSW} offen lds
        buffer_load_dwordx4 v{gSW2}, {sr(rW,4)}, s{sSW} offen offset:1024 lds
        s_add_u32 s{sSW}, s{sSW}, 16384""")
    D2 = RSZ // 2048
    for u in range(D2): w2_dma(u)
    lds_spin(C_HDONE, 4, gGC, 24, sleep=2)
    srd(rT, pWO, 0x80000)
    a(f"""s_lshl_b32 s{sA}, s{sI}, 14
    s_lshl_b32 s{sC}, s{sI}, 17
    s_lshl_b32 s{sD}, s{sG}, 7
    s_add_u32 s{sC}, s{sC}, s{sD}
    s_add_u32 s{sD}, s{sA}, 16384""")
    a.label("L_woloop")
    a(f"""s_mov_b32 m0, s{sA}
    s_add_u32 s{sA}, s{sA}, 2048
    buffer_load_dwordx4 v{gSW}, {sr(rT,4)}, s{sC} offen lds
    buffer_load_dwordx4 v{gSW2}, {sr(rT,4)}, s{sC} offen offset:1024 lds
    s_add_u32 s{sC}, s{sC}, 16384
    s_cmp_lt_u32 s{sA}, s{sD}
    s_cbranch_scc1 L_woloop""")
    gA0, gA1, gHO0, gHO1, gFL = 8, 9, 10, 11, 12
    a(f"""v_lshl_add_u32 v19, v{gH}, 9, v19
    v_add_u32 v{gA0}, s{sRNG}, v19
    v_xor_b32 v{gA1}, 64, v{gA0}
    s_lshl_b32 s{sA}, s{sRT}, 10
    v_add_u32 v{gHO0}, s{sA}, v{gL16}
    v_xor_b32 v{gHO1}, 0x400, v{gHO0}
    v_and_b32 v{gFL}, 7, v0
    v_lshlrev_b32 v{gFL}, 7, v{gFL}
    s_lshl_b32 s{sA}, s{sRB}, 10
    s_add_u32 s{sA}, s{sA}, {FLG_H}""")
    for j in range(1, 4):
        for i in range(16): a(f"v_mov_b32 v{AC[j]+i}, 0")
    flag_poll(gFL, sA, 24)
    TS(7)
    a(f"""s_mul_i32 s{sA}, s{sRB}, 86
    s_add_u32 s{sSH}, s{sA}, s{sK0}
    s_lshl_b32 s{sSH}, s{sSH}, 11
    s_add_u32 s{sSH}, s{sSH}, {HF}
    s_add_u32 s{sA}, s{sA}, s{sK1}
    s_lshl_b32 s{sA}, s{sA}, 11
    s_mov_b32 s{rT}, s{pWS}
    s_mov_b32 s{rT+1}, s{pWS+1}
    s_add_u32 s{rT+2}, s{sA}, {HF}
    s_mov_b32 s{rT+3}, 0x20000""")
    HR = 24
    AF = [152, 160]
    def h_load(u):
        a(f"""buffer_load_dwordx4 {vr(HR+8*u,4)}, v{gHO0}, {sr(rT,4)}, s{sSH} offen sc1
        buffer_load_dwordx4 {vr(HR+8*u+4,4)}, v{gHO1}, {sr(rT,4)}, s{sSH} offen sc1
        s_add_u32 s{sSH}, s{sSH}, 2048""")
    def a_reads(u, p):
        for d, ga in enumerate((gA0, gA1)):
            a(f"ds_read_b64_tr_b16 {vr(AF[p]+4*d,2)}, v{ga} offset:{u*2048}\nds_read_b64_tr_b16 {vr(AF[p]+4*d+2,2)}, v{ga} offset:{u*2048+1024}")
    for u in range(D2): h_load(u)
    a_reads(0, 0)
    a("s_waitcnt vmcnt(0)")
    a.label("L_f2loop")
    for u in range(D2):
        p = u & 1
        a(f"s_waitcnt vmcnt({4*(D2-2)}) lgkmcnt(0)")
        a_reads((u + 1) % D2, 1 - p)
        for j in range(4):
            a(f"v_mfma_f32_32x32x16_bf16 {vr(AC[j],16)}, {vr(AF[p]+4*(j&1),4)}, {vr(HR+8*u+4*(j>>1),4)}, {vr(AC[j],16)}")
        w2_dma(u)
        h_load(u)
        a(f"s_add_u32 s{sK0}, s{sK0}, 1\ns_cmp_ge_u32 s{sK0}, s{sK1}")
        a("s_cbranch_scc1 L_f2done" if u < D2 - 1 else "s_cbranch_scc0 L_f2loop")
    a.label("L_f2done")
    TS(8)
    a(f"""v_add_u32 v13, s{sRNG}, v{gL16}
    v_mov_b32 v14, 1
    s_waitcnt vmcnt(0) lgkmcnt(0)
    s_nop 7""")
    for j in range(1, 4):
        for q in range(4): a(f"ds_write_b128 v13, {vr(AC[j]+4*q,4)} offset:{(j-1)*4096+q*1024}")
    a(f"""s_mov_b64 exec, 1
    ds_add_u32 v{gGC}, v14 offset:{C_GBAR}
    s_mov_b64 exec, -1""")
    lds_spin(C_GBAR, 4, gGC, 14, sleep=1)
    for j in range(1, 4):
        a(f"s_xor_b32 s{sA}, s{sI}, {j}\ns_mul_i32 s{sA}, s{sA}, {RSZ}\ns_add_u32 s{sA}, s{sA}, {RING}\nv_add_u32 v14, s{sA}, v{gL16}")
        for q in range(4): a(f"ds_read_b128 {vr(AC[j]+4*q,4)}, v14 offset:{(j-1)*4096+q*1024}")
    for j in range(1, 4):
        a(f"s_waitcnt lgkmcnt({(3-j)*4})")
        for q in range(8): a(f"v_pk_add_f32 {vr(AC[0]+2*q,2)}, {vr(AC[0]+2*q,2)}, {vr(AC[j]+2*q,2)}")
    TS(9)
    WOF, OFR = 24, 56
    sJ, sFO, sOO = 0, 1, sB
    a(f"""s_lshl_b32 s{sFO}, s{sRB}, 10
    s_lshl_b32 s{sA}, s{sRT}, 5
    s_add_u32 s{sFO}, s{sFO}, s{sA}
    s_add_u32 s{sFO}, s{sFO}, {FLG_O}
    s_lshl_b32 s{sOO}, s{sRB}, 1
    s_add_u32 s{sOO}, s{sOO}, s{sRT}
    s_lshl_b32 s{sOO}, s{sOO}, 15
    s_add_u32 s{sOO}, s{sOO}, {OF}
    s_mov_b32 s{sJ}, 0""")
    a.label("L_oloop")
    for gp in range(8):
        a(f"ds_read_b64_tr_b16 {vr(WOF+4*gp,2)}, v19 offset:{gp*8192}\nds_read_b64_tr_b16 {vr(WOF+4*gp+2,2)}, v19 offset:{gp*8192+1024}")
    flag_poll(gFL, sFO, 14, sleep=2)
    a(f"s_mov_b32 s{sA}, s{sOO}")
    for gp in range(8):
        a(f"buffer_load_dwordx4 {vr(OFR+4*gp,4)}, v{gL16}, {sr(rWS,4)}, s{sA} offen sc1\ns_add_u32 s{sA}, s{sA}, 4096")
    a(f"""v_add_u32 v19, 2048, v19
    s_add_u32 s{sFO}, s{sFO}, 8
    s_add_u32 s{sOO}, s{sOO}, 1024
    s_add_u32 s{sJ}, s{sJ}, 1
    s_waitcnt lgkmcnt(0)""")
    for gp in range(8):
        a(f"s_waitcnt vmcnt({7-gp})\nv_mfma_f32_32x32x16_bf16 {vr(AC[0],16)}, {vr(WOF+4*gp,4)}, {vr(OFR+4*gp,4)}, {vr(AC[0],16)}")
    a(f"""s_cmp_lt_u32 s{sJ}, 4
    s_cbranch_scc1 L_oloop""")
    TS(10)
    srd(rT, pOUT, 0x200000)
    a(f"""v_and_b32 v7, 31, v0
    v_lshlrev_b32 v16, 3, v{gH}
    v_lshl_add_u32 v17, v7, 10, v16
    s_lshl_b32 s{sA}, s{sG}, 7
    s_lshl_b32 s{sB}, s{sCT}, 6
    s_add_u32 s{sA}, s{sA}, s{sB}
    s_lshl_b32 s{sB}, s{sRB}, 16
    s_lshl_b32 s{sC}, s{sRT}, 15
    s_add_u32 s{sB}, s{sB}, s{sC}
    s_add_u32 s{sB}, s{sB}, s{sA}""")
    for j in range(8): a(f"v_cvt_pk_bf16_f32 v{AC[0]+j}, v{AC[0]+2*j}, v{AC[0]+2*j+1}")
    for q in range(4): a(f"buffer_store_dwordx2 {vr(AC[0]+2*q,2)}, v17, {sr(rT,4)}, s{sB} offen offset:{16*q}")
    if ts:
        a("s_waitcnt vmcnt(0)")
    TS(11)
    ts_dump()
    a.label("L_end")
    a("s_endpgm")

    probs = lint(a.lines)
    for p in probs: print("LINT", p, file=sys.stderr)
    head = f"""; fused layernorm + MQA attention + squared-relu FFN, one persistent launch (generated by gen/gen.py)
; @launch grid=(256,1,1) block=(768,1,1) lds=163840
.amdgcn_target "amdgcn-amd-amdhsa--gfx950"
.text
.globl {NAME}_kernel
.p2align 8
.type {NAME}_kernel,@function
{NAME}_kernel:
"""
    tail = f""".section .rodata,"a"
.p2align 6
.amdhsa_kernel {NAME}_kernel
  .amdhsa_next_free_vgpr 168
  .amdhsa_next_free_sgpr 100
  .amdhsa_accum_offset 168
  .amdhsa_group_segment_fixed_size 0
  .amdhsa_kernarg_size 104
  .amdhsa_user_sgpr_count 2
  .amdhsa_user_sgpr_kernarg_segment_ptr 1
  .amdhsa_system_sgpr_workgroup_id_x 1
.end_amdhsa_kernel
"""
    return head + a.text() + tail

if __name__ == "__main__":
    open("k.s", "w").write(gen(False))
    open("k_ts.s", "w").write(gen(True))
    open("k_ts_d.s", "w").write(gen(True, dict(delay_f1=16)))
    open("k_ts_q.s", "w").write(gen(True, dict(delay_f1=16, qts=1)))
    open("k_x_nopv.s", "w").write(gen(True, dict(delay_f1=16, nopv=1, nofb=1)))
    open("k_x_pv16.s", "w").write(gen(True, dict(delay_f1=16, pv16=1, nofb=1)))
    open("k_x_noexp.s", "w").write(gen(True, dict(delay_f1=16, noexp=1, nofb=1)))
```

```python
import sys
from asmlib import Asm, vr, sr, lint
NAME = "parallel_sum__grouped_kv_mqa__dense_activation_squared_relu__prompt"

KF, VF, FLG_KV, FLG_H, FLG_O, OF, HF, TSB = 0, 0x10000, 0x20000, 0x28000, 0x30000, 0x40000, 0x240000, 0x800000
WS_BYTES = 0x900000
XN, RING, WKV = 0, 65536, 131072
RSZ = 12288
OACC, OST = 114688, 4608
B_L, B_CNT = 4096, 4352
QF, CINB = 151552, 159744
GC = OACC + 7 * OST + B_CNT + 16
C_QREADY, C_ABAR, C_HDONE, C_GBAR, C_EPOCH = 0, 4, 8, 12, 16
W1P = 2752
OFFS = 90.0
SPIN_CAP = 1 << 18

sW, sRB, sG, sKG, sCH = 3, 4, 5, 6, 7
pX, pWQ, pWK, pWV, pWO, pW1, pB1, pW2, pB2, pOUT, pDBG, pWS = 8, 10, 12, 14, 16, 20, 22, 24, 26, 28, 30, 32
rX, rWS, rW, rT = 36, 40, 44, 48
sEP = 52
sI, sRT, sCT = 54, 55, 56
sA, sB, sC, sD, sE, sF = 57, 58, 59, 60, 61, 62
sCAP = 63
sM = 34
TS0 = 64

def gen(ts=False, opt={}):
    a = Asm()
    nts = [0]
    def TS(i):
        if ts and not (opt.get("qts") and i in (7, 8)): a(f"s_memrealtime {sr(TS0 + 2 * i, 2)}")
    def srd(r, p, n):
        a(f"s_mov_b32 s{r}, s{p}\ns_mov_b32 s{r+1}, s{p+1}\ns_mov_b32 s{r+2}, {n}\ns_mov_b32 s{r+3}, 0x20000")
    def lds_spin(off, val, va, vt, sleep=1):
        L = a.newlabel("spin"); D = a.newlabel("spun")
        a(f"s_mov_b32 s{sCAP}, 0")
        a.label(L)
        a(f"""ds_read_b32 v{vt}, v{va} offset:{off}
        s_add_u32 s{sCAP}, s{sCAP}, 1
        s_waitcnt lgkmcnt(0)
        v_readfirstlane_b32 s{sF}, v{vt}
        s_cmp_gt_u32 s{sCAP}, {SPIN_CAP}
        s_cbranch_scc1 {D}
        s_cmp_ge_u32 s{sF}, {val}
        s_cbranch_scc1 {D}
        s_sleep {sleep}
        s_branch {L}""")
        a.label(D)
    def flag_poll(va, soff, vt, sleep=2):
        L = a.newlabel("poll"); D = a.newlabel("polled")
        a(f"s_mov_b32 s{sCAP}, 0")
        a.label(L)
        a(f"""buffer_load_dwordx2 {vr(vt,2)}, v{va}, {sr(rWS,4)}, s{soff} offen sc1
        s_add_u32 s{sCAP}, s{sCAP}, 1
        s_waitcnt vmcnt(0)
        v_cmp_ne_u64 vcc, {sr(sEP,2)}, {vr(vt,2)}
        s_cmp_gt_u32 s{sCAP}, {SPIN_CAP}
        s_cbranch_scc1 {D}
        s_cbranch_vccz {D}
        s_sleep {sleep}
        s_branch {L}""")
        a.label(D)
    def flag_store(soff, vt):
        a(f"""v_mov_b32 v{vt}, s{sEP}
        v_mov_b32 v{vt+1}, s{sEP+1}
        s_mov_b64 exec, 1
        buffer_store_dwordx2 {vr(vt,2)}, off, {sr(rWS,4)}, s{soff} sc1
        s_mov_b64 exec, -1""")
    def ts_dump(role):
        if not ts: return
        if opt.get("dbgts"):
            srd(rT, pDBG, 256)
            a("s_waitcnt lgkmcnt(0)\ns_mov_b64 exec, 1")
            lst = [(1, 2), (3, 3), (4, 4), (6, 5), (9, 6)] if role == "A" else [(0, 7), (4, 8), (5, 9), (6, 10), (7, 11), (8, 12), (11, 13)]
            for st, wd in lst:
                a(f"s_sub_u32 s{sA}, s{TS0+2*st}, s{sEP}\ns_add_u32 s{sA}, s{sA}, 1000\nv_mov_b32 v4, s{sA}\nbuffer_atomic_umax v4, off, {sr(rT,4)}, 0 offset:{4*wd} sc1")
            if role == "A":
                a(f"s_sub_u32 s{sA}, s{sEP}, s{TS0}\ns_add_u32 s{sA}, s{sA}, 1000\nv_mov_b32 v4, s{sA}\nbuffer_atomic_umax v4, off, {sr(rT,4)}, 0 offset:56 sc1")
            a("s_waitcnt vmcnt(0)")
            return
        a(f"""s_waitcnt lgkmcnt(0)
        s_mul_i32 s{sA}, s2, 12
        s_add_u32 s{sA}, s{sA}, s{sW}
        s_lshl_b32 s{sA}, s{sA}, 6
        s_add_u32 s{sA}, s{sA}, {TSB}
        s_mov_b64 exec, 1""")
        for q in range(4):
            for j in range(4): a(f"v_mov_b32 v{4+j}, s{TS0 + 2 * (4 * q + j)}")
            a(f"buffer_store_dwordx4 v[4:7], off, {sr(rWS,4)}, s{sA} offset:{16*q}\ns_nop 1")
        a("s_waitcnt vmcnt(0)")

    a(f"""s_cmp_ge_u32 s2, 256
    s_cbranch_scc1 L_end""")
    if ts:
        for i in range(16): a(f"s_mov_b32 s{TS0+2*i}, 0")
    TS(0)
    a(f"""s_load_dwordx16 s[8:23], s[0:1], 0
    s_load_dwordx8 s[24:31], s[0:1], 64
    s_load_dwordx2 s[32:33], s[0:1], 96
    v_lshrrev_b32 v1, 6, v0
    s_and_b32 s{sRB}, s2, 7
    v_readfirstlane_b32 s{sW}, v1
    s_lshl_b32 s{sRB}, s{sRB}, 2
    s_lshr_b32 s{sA}, s2, 6
    s_add_u32 s{sRB}, s{sRB}, s{sA}
    s_bfe_u32 s{sG}, s2, 0x30003
    s_lshr_b32 s{sKG}, s{sG}, 1
    s_and_b32 s{sCH}, s{sG}, 1
    v_and_b32 v0, 63, v0
    s_waitcnt lgkmcnt(0)""")
    srd(rX, pX, 0x200000)
    srd(rWS, pWS, WS_BYTES)
    a(f"""s_cmp_ge_u32 s{sW}, 8
    s_cbranch_scc1 L_gwave""")

    a(f"""v_lshrrev_b32 v3, 5, v0
    v_and_b32 v4, 31, v0
    s_lshl_b32 s{sA}, s{sW}, 1
    v_add_u32 v3, s{sA}, v3
    v_lshlrev_b32 v1, 10, v3
    v_lshl_add_u32 v5, v4, 4, v1
    s_lshl_b32 s{sB}, s{sRB}, 16""")
    for it in range(4):
        a(f"""s_add_u32 s{sC}, s{sKG}, {it}
        s_and_b32 s{sC}, s{sC}, 3
        s_lshl_b32 s{sC}, s{sC}, 14
        s_add_u32 s{sD}, s{sB}, s{sC}
        buffer_load_dwordx4 {vr(8+8*it,4)}, v5, {sr(rX,4)}, s{sD} offen
        buffer_load_dwordx4 {vr(12+8*it,4)}, v5, {sr(rX,4)}, s{sD} offen offset:512""")
    a(f"""v_xor_b32 v4, v4, v3
    v_lshl_add_u32 v2, v4, 4, v1
    v_mov_b32 v6, {GC}
    v_mov_b32 v40, 0
    v_mov_b32 v41, 0
    v_mov_b32 v42, 0
    v_mov_b32 v43, 0
    s_mov_b32 s{sE}, 0xffff0000
    s_cmp_lg_u32 s{sW}, 0
    s_cbranch_scc1 L_nozero
    ds_write_b128 v6, v[40:43]""")
    a.label("L_nozero")
    U = 44
    for it in range(4):
        X = 8 + 8 * it
        a(f"s_waitcnt vmcnt({6 - 2 * it})")
        if it == 0: TS(1)
        for j in range(8):
            a(f"v_lshlrev_b32 v{U+2*j}, 16, v{X+j}\nv_and_b32 v{U+2*j+1}, s{sE}, v{X+j}")
        a(f"v_pk_add_f32 v[60:61], {vr(U,2)}, {vr(U+2,2)}\nv_pk_mul_f32 v[62:63], {vr(U,2)}, {vr(U,2)}")
        a(f"v_pk_fma_f32 v[62:63], {vr(U+2,2)}, {vr(U+2,2)}, v[62:63]")
        for j in range(2, 8):
            a(f"v_pk_add_f32 v[60:61], v[60:61], {vr(U+2*j,2)}\nv_pk_fma_f32 v[62:63], {vr(U+2*j,2)}, {vr(U+2*j,2)}, v[62:63]")
        a("v_add_f32 v60, v60, v61\nv_add_f32 v62, v62, v63")
        for mode in ("quad_perm:[1,0,3,2]", "quad_perm:[2,3,0,1]", "row_half_mirror", "row_mirror"):
            a(f"s_nop 0\nv_add_f32_dpp v60, v60, v60 {mode} row_mask:0xf bank_mask:0xf\nv_add_f32_dpp v62, v62, v62 {mode} row_mask:0xf bank_mask:0xf")
        a(f"""v_mov_b32 v61, v60
        v_mov_b32 v63, v62
        s_add_u32 s{sC}, s{sKG}, {it}
        s_and_b32 s{sC}, s{sC}, 3
        v_permlane16_swap_b32 v60, v61
        v_permlane16_swap_b32 v62, v63
        s_lshl_b32 s{sC}, s{sC}, 14
        v_add_f32 v60, v60, v61
        v_add_f32 v62, v62, v63
        v_mul_f32 v60, 0x3b000000, v60
        v_mul_f32 v61, v60, v60
        v_mov_b32 v63, 0x3b000000
        v_fma_f32 v62, v62, v63, -v61
        v_max_f32 v62, 0, v62
        v_add_f32 v62, 0x3727c5ac, v62
        v_rsq_f32 v62, v62
        v_add_u32 v7, s{sC}, v2
        v_mul_f32 v64, -v60, v62""")
        for j in range(8):
            a(f"v_pk_fma_f32 {vr(U+2*j,2)}, {vr(U+2*j,2)}, v[62:63], v[64:65] op_sel_hi:[1,0,0]")
        for j in range(8):
            a(f"v_cvt_pk_bf16_f32 v{X+j}, v{U+2*j}, v{U+2*j+1}")
        a(f"ds_write_b128 v7, {vr(X,4)}\nds_write_b128 v7, {vr(X+4,4)} offset:512")
        if it == 0:
            a("s_waitcnt lgkmcnt(0)\ns_barrier")
            TS(2)
    a("s_waitcnt lgkmcnt(0)\ns_barrier")
    TS(3)

    vL8, vAD, vT = 0, 1, 2
    Q, K, V, S0, S1, ACC, CIN = 4, 8, 40, 104, 120, 136, 152
    sQT, sPEND, sPOFF, sKVO = sI, sRT, sCT, sE
    sOOF, sQA, sOAD, sFAD, sCA = 0, 1, 44, 45, 46
    a(f"""ds_read_b64 v[8:9], v6 offset:{C_EPOCH}
    v_and_b32 v10, 31, v0
    v_lshlrev_b32 v{vL8}, 3, v0
    v_lshlrev_b32 v10, 7, v10
    s_lshl_b32 s{sB}, s{sW}, 12
    s_add_u32 s{sB}, s{sB}, {FLG_KV}
    s_lshl_b32 s{sOAD}, s{sRB}, 16
    s_lshl_b32 s{sA}, s{sG}, 12
    s_add_u32 s{sOAD}, s{sOAD}, s{sA}
    s_add_u32 s{sOAD}, s{sOAD}, {OF}
    s_lshl_b32 s{sFAD}, s{sRB}, 10
    s_lshl_b32 s{sA}, s{sG}, 7
    s_add_u32 s{sFAD}, s{sFAD}, s{sA}
    s_add_u32 s{sFAD}, s{sFAD}, {FLG_O}
    s_waitcnt lgkmcnt(0)
    v_readfirstlane_b32 s{sEP}, v8
    v_readfirstlane_b32 s{sEP+1}, v9
    v_mov_b32 v{ACC}, v6
    s_lshl_b32 s{sKVO}, s{sW}, 13""")
    def v_ones():
        if opt.get("ones_all"):
            a(f"s_mov_b32 s{sM}, 0x3f803f80\ns_mov_b32 s{sM+1}, 0x3f803f80")
            for i in range(32): a(f"v_mov_b64 {vr(V+2*i,2)}, {sr(sM,2)}")
        else:
            a(f"v_and_b32 v{V}, 0xff, v{vL8}\nv_mov_b32 v{V+1}, 0x3f803f80\nv_cmp_eq_u32 vcc, 0, v{V}\ns_nop 1\nv_cndmask_b32 v{V}, 0, v{V+1}, vcc\nv_mov_b32 v{V+1}, v{V}")
            for i in range(1, 32): a(f"v_mov_b64 {vr(V+2*i,2)}, {vr(V,2)}")
    v_ones()
    flag_poll(10, sB, 12)
    TS(4)
    def kv_load(tmp):
        a(f"""s_add_u32 s{sA}, s{sKVO}, 4096
        v_lshrrev_b32 v{tmp+1}, 8, v{vL8}
        v_lshlrev_b32 v{tmp}, 1, v{vL8}""")
        for t in range(8):
            a(f"buffer_load_dwordx4 {vr(K+4*t,4)}, v{tmp}, {sr(rWS,4)}, s{sKVO if t < 4 else sA} offen offset:{(t&3)*1024} sc1")
        a(f"""v_and_b32 v{tmp}, 0xf0, v{tmp}
        v_lshl_add_u32 v{tmp}, v{tmp+1}, 8, v{tmp}
        s_add_u32 s{sA}, s{sKVO}, {VF}
        s_add_u32 s{sB}, s{sKVO}, {VF+4096}
        s_mov_b32 exec_lo, 0xffff0000
        s_mov_b32 exec_hi, 0xffff0000""")
        for t in range(16):
            a(f"buffer_load_dwordx4 {vr(V+4*t,4)}, v{tmp}, {sr(rWS,4)}, s{sA if t < 8 else sB} offen offset:{(t&7)*512} sc1")
        a("s_mov_b64 exec, -1")
    kv_load(vT)
    TS(10)
    a(f"""s_lshl_b32 s{sA}, s{sW}, 10
    s_add_u32 s{sA}, s{sA}, {QF}
    v_lshl_add_u32 v{ACC+1}, v{vL8}, 1, s{sA}
    s_mul_i32 s{sA}, s{sW}, {OST}
    s_add_u32 s{sA}, s{sA}, {OACC}
    v_lshl_add_u32 v{ACC+3}, v{vL8}, 1, s{sA}
    s_lshl_b32 s{sA}, s{sW}, 9
    s_add_u32 s{sA}, s{sA}, {CINB}
    v_and_b32 v{ACC+8}, 0xff, v{vL8}
    v_lshl_add_u32 v{ACC+8}, v{ACC+8}, 1, s{sA}
    v_mov_b32 v{ACC+2}, 1
    v_mov_b64 {vr(ACC+4,2)}, 0
    v_mov_b64 {vr(ACC+6,2)}, 0""")
    lds_spin(C_QREADY, 4, ACC, vT)
    TS(5)
    a(f"ds_read_b128 {vr(Q,4)}, v{ACC+1}")
    for j in range(4): a(f"ds_write_b128 v{ACC+3}, {vr(ACC+4,4)} offset:{1024*j}")
    a(f"""s_mov_b64 exec, 0x1ffff
    ds_write_b128 v{ACC+3}, {vr(ACC+4,4)} offset:{B_L}
    s_mov_b64 exec, -1
    s_waitcnt vmcnt(23) lgkmcnt(5)""")
    TS(11)
    a(f"""v_mfma_f32_32x32x16_bf16 {vr(S0,16)}, {vr(K,4)}, {vr(Q,4)}, 0
    s_mov_b32 s{sOOF}, {OACC}
    s_mov_b32 s{sQA}, {QF}
    s_mov_b32 s{sCA}, {CINB}
    s_nop 8""")
    def maxtree(S, d):
        a(f"v_max3_f32 v{d}, v{S}, v{S+1}, v{S+2}")
        for j in range(3, 15, 2): a(f"v_max3_f32 v{d}, v{d}, v{S+j}, v{S+j+1}")
        a(f"v_max_f32 v{d}, v{d}, v{S+15}")
    maxtree(S0, vT)
    a(f"""v_mov_b32 v{vT+1}, v{vT}
    s_nop 1
    v_permlane32_swap_b32 v{vT}, v{vT+1}
    v_max_f32 v{vT}, v{vT}, v{vT+1}
    v_sub_f32 v{S1}, {-OFFS}, v{vT}
    v_mov_b32 v{S1+1}, v{S1}
    v_mov_b32 v{S1+2}, v{S1}
    v_mov_b32 v{S1+3}, v{S1}
    ds_write_b128 v{ACC+8}, {vr(S1,4)}
    s_mov_b64 exec, 1
    ds_add_u32 v{ACC}, v{ACC+2} offset:{C_ABAR}
    s_mov_b64 exec, -1""")
    lds_spin(C_ABAR, 8, ACC, vT, sleep=0)
    TS(6)
    if ts: a(f"s_memtime {sr(TS0+26,2)}")
    def load_q():
        a(f"""v_lshl_add_u32 v{vAD}, v{vL8}, 1, s{sQA}
        v_and_b32 v{vT}, 0xff, v{vL8}
        s_add_u32 s{sQA}, s{sQA}, 1024
        ds_read_b128 {vr(Q,4)}, v{vAD}
        v_lshl_add_u32 v{vT}, v{vT}, 1, s{sCA}
        s_add_u32 s{sCA}, s{sCA}, 512""")
        for j in range(4): a(f"ds_read_b128 {vr(CIN+4*j,4)}, v{vT}")
    def QK(t, S): return f"v_mfma_f32_32x32x16_bf16 {vr(S,16)}, {vr(K+4*t,4)}, {vr(Q,4)}, {vr(CIN,16)}"
    def PV(t, hf, S, zero=False):
        if opt.get("nopv") and not zero: return "s_nop 1"
        if opt.get("pv16") and not zero: return f"v_mfma_f32_16x16x32_bf16 {vr(ACC+4*hf,4)}, {vr(K+4*t,4)}, {vr(S+8*hf,4)}, {vr(ACC+4*hf,4)}"
        return f"v_mfma_f32_32x32x16_bf16 {vr(ACC,16)}, {vr(V+8*t+4*hf,4)}, {vr(S+8*hf,4)}, {'0' if zero else vr(ACC,16)}"
    def e(S, i): return f"v_exp_f32 v{S+i}, v{S+i}" if not opt.get("noexp") else f"v_and_b32 v{S+i}, v{S+i}, v{S+i}\nv_and_b32 v{S+i}, v{S+i}, v{S+i}"
    def c(S, j): return f"v_cvt_pk_bf16_f32 v{S + (j & 3) + 8 * (j >> 2)}, v{S+2*j}, v{S+2*j+1}"
    def half1(S, pv1, qk, pre_qk=()):
        x = [e(S,0), e(S,1)] + pv1 + [e(S,2), e(S,3), c(S,0), e(S,4), e(S,5), c(S,1)] + list(pre_qk) + qk + [e(S,6), e(S,7), c(S,2), e(S,8), c(S,3), e(S,9), e(S,10)]
        for l in x: a(l)
    def half2(S, pv0):
        x = pv0 + [e(S,11), c(S,4), e(S,12), e(S,13), c(S,5), e(S,14), e(S,15), c(S,6), c(S,7)]
        for l in x: a(l)
    load_q()
    a(f"""s_mov_b32 s{sQT}, 0
    s_mov_b32 s{sPEND}, 0
    s_cmp_ge_u32 s{sW}, 4
    s_cbranch_scc1 L_prioB
    s_setprio 2
    s_branch L_prioD""")
    a.label("L_prioB")
    a("s_setprio 1")
    a.label("L_prioD")
    a(f"s_waitcnt vmcnt(16) lgkmcnt(0)")
    a(QK(0, S0))
    a("s_nop 11")
    half1(S0, [], [QK(1, S1)])
    a(".p2align 3")
    a.label("L_atop")
    SS = [S0, S1]
    for t in range(8):
        cur, nxt = SS[t & 1], SS[(t + 1) & 1]
        if t > 0:
            if t < 7:
                half1(cur, [PV(t - 1, 1, nxt)], [QK(t + 1, nxt)])
            else:
                half1(cur, [PV(t - 1, 1, nxt)], [QK(0, nxt)], pre_qk=["s_waitcnt lgkmcnt(0)"])
            if t == 6:
                load_q()
        a(f"s_waitcnt vmcnt({14 - 2 * t})")
        half2(cur, [PV(t, 0, cur, zero=(t == 0))])
        if t == 2:
            a(f"""s_cmp_eq_u32 s{sPEND}, 0
            s_cbranch_scc1 L_nopend
            s_waitcnt vmcnt(0)
            s_mov_b32 s{sPEND}, 0""")
            flag_store(sPOFF, vT)
            a.label("L_nopend")
    a(f"""s_cmp_eq_u32 s{sQT}, 7
    s_cbranch_scc1 L_alast""")
    half1(S0, [PV(7, 1, S1)], [QK(1, S1)])
    a.label("L_flush")
    a(f"""v_add_u32 v{vAD}, s{sOOF}, v{vL8}
    v_cvt_f64_f32 {vr(vT,2)}, v{ACC}""")
    for j in range(8): a(f"v_cvt_f64_f32 {vr(ACC+2*j,2)}, v{ACC+8+j}")
    a(f"""s_mov_b32 exec_hi, 0
    ds_add_f64 v{vAD}, {vr(vT,2)} offset:{B_L}
    s_mov_b32 exec_hi, -1""")
    for j in range(8): a(f"ds_add_f64 v{vAD}, {vr(ACC+2*j,2)} offset:{512*j}")
    a(f"""v_mov_b32 v{vT}, 1
    s_mov_b64 exec, 1
    ds_add_rtn_u32 v{vT+1}, v{vAD}, v{vT} offset:{B_CNT}
    s_mov_b64 exec, -1
    s_cmp_eq_u32 s{sQT}, 6
    s_cbranch_scc0 L_noprio
    s_cmp_ge_u32 s{sW}, 4
    s_cbranch_scc1 L_noprio
    s_setprio 0""")
    a.label("L_noprio")
    if opt.get("qts"):
        a("s_memtime s[96:97]\ns_waitcnt lgkmcnt(0)")
        for i in range(1, 8): a(f"s_mov_b32 s{TS0+2*i}, s{TS0+2*i+2}")
        a(f"s_sub_u32 s{TS0+16}, s96, s{TS0+26}")
    a(f"""s_waitcnt lgkmcnt(0)
    v_readfirstlane_b32 s{sA}, v{vT+1}
    s_nop 0
    s_cmp_lg_u32 s{sA}, 7
    s_cbranch_scc1 L_nofin""")
    for j in range(7, -1, -1): a(f"ds_read_b64 {vr(ACC+2*j,2)}, v{vAD} offset:{512*j}")
    a(f"""v_and_b32 v{vT}, 0xff, v{vL8}
    v_add_u32 v{vT}, s{sOOF}, v{vT}
    ds_read_b64 {vr(vT,2)}, v{vT} offset:{B_L}
    s_mov_b32 s{sD}, 0
    s_waitcnt lgkmcnt(0)""")
    for j in range(7, -1, -1): a(f"v_cvt_f32_f64 v{ACC+8+j}, {vr(ACC+2*j,2)}")
    a(f"v_cvt_f32_f64 v{ACC}, {vr(vT,2)}")
    a.label("L_fin2")
    a(f"""v_lshlrev_b32 v{ACC+2}, 1, v{vL8}
    v_rcp_f32 v{ACC+1}, v{ACC}
    v_mov_b32 v{ACC+3}, 0x76800000
    v_cmp_nle_f32 vcc, 0x0d800000, v{ACC}
    v_cmp_nle_f32 {sr(sM,2)}, v{ACC}, v{ACC+3}""")
    for j in range(8): a(f"v_mul_f32 v{ACC+8+j}, v{ACC+8+j}, v{ACC+1}")
    a(f"""s_or_b64 {sr(sM,2)}, {sr(sM,2)}, vcc
    v_mul_f32 v{ACC+3}, 0, v{ACC+8}""")
    for j in range(1, 8): a(f"v_fma_f32 v{ACC+3}, 0, v{ACC+8+j}, v{ACC+3}")
    for j in range(4): a(f"v_cvt_pk_bf16_f32 v{ACC+4+j}, v{ACC+8+2*j}, v{ACC+9+2*j}")
    a(f"""v_cmp_u_f32 vcc, v{ACC+3}, v{ACC+3}
    s_nop 1
    s_or_b64 {sr(sM,2)}, {sr(sM,2)}, vcc
    s_cmp_lg_u64 {sr(sM,2)}, 0
    s_cselect_b32 s{sB}, 1, 0
    s_cmp_gt_u32 s{sB}, s{sD}
    {"s_nop 0" if opt.get("nofb") else "s_cbranch_scc1 L_fallback"}
    buffer_store_dwordx4 {vr(ACC+4,4)}, v{ACC+2}, {sr(rWS,4)}, s{sOAD} offen sc1
    s_mov_b32 s{sPOFF}, s{sFAD}
    s_mov_b32 s{sPEND}, 1""")
    a.label("L_nofin")
    a(f"""s_add_u32 s{sOOF}, s{sOOF}, {OST}
    s_add_u32 s{sFAD}, s{sFAD}, 8
    s_cmp_eq_u32 s{sQT}, 3
    s_cselect_b32 s{sA}, 29, 1
    s_lshl_b32 s{sA}, s{sA}, 10
    s_add_u32 s{sOAD}, s{sOAD}, s{sA}
    s_add_u32 s{sQT}, s{sQT}, 1
    s_cmp_lt_u32 s{sQT}, 8
    s_cbranch_scc1 L_atop""")
    TS(8)
    a(f"""s_cmp_eq_u32 s{sPEND}, 0
    s_cbranch_scc1 L_adone
    s_waitcnt vmcnt(0)""")
    flag_store(sPOFF, vT)
    a.label("L_adone")
    if opt.get("delay_f1", 0) > 8:
        a(f"v_mov_b32 v4, {GC}\nv_mov_b32 v5, 1\ns_mov_b64 exec, 1\nds_add_u32 v4, v5 offset:{C_ABAR}\ns_mov_b64 exec, -1")
    if ts:
        a(f"s_memtime {sr(TS0+28,2)}\ns_getreg_b32 s{TS0+30}, hwreg(HW_REG_HW_ID)\ns_waitcnt lgkmcnt(0)\ns_sub_u32 s{TS0+28}, s{TS0+28}, s{TS0+26}")
    TS(9)
    ts_dump("A")
    a("s_endpgm")
    a.label("L_alast")
    TS(7)
    a("s_nop 0")
    a(PV(7, 1, S1))
    a("s_nop 11\ns_branch L_flush")

    a.label("L_fallback")
    FQ, FK, FV, FS, FC, FA = K, K + 4, K + 8, K + 16, V, V + 16
    a(f"""s_waitcnt vmcnt(0)
    s_lshl_b32 s{sA}, s{sQT}, 10
    s_add_u32 s{sA}, s{sA}, {QF}
    v_add_u32 v{FA}, s{sA}, v{ACC+2}
    ds_read_b128 {vr(FQ,4)}, v{FA}
    v_mov_b32 v{FA}, v{ACC+2}
    v_lshrrev_b32 v{FA+1}, 9, v{FA}
    v_and_b32 v{FA+2}, 0xf0, v{FA}
    v_lshl_add_u32 v{FA+1}, v{FA+1}, 8, v{FA+2}
    v_mov_b32 v{FA+2}, 0xff800000
    s_mov_b32 s{sA}, 0x3f803f80""")
    for i in range(8): a(f"v_mov_b32 v{FV+i}, s{sA}")
    a(f"s_mov_b32 s{sA}, 0")
    a.label("L_fb1")
    a(f"""buffer_load_dwordx4 {vr(FK,4)}, v{FA}, {sr(rWS,4)}, s{sA} offen sc1
    s_waitcnt vmcnt(0) lgkmcnt(0)
    v_mfma_f32_32x32x16_bf16 {vr(FS,16)}, {vr(FK,4)}, {vr(FQ,4)}, 0
    s_nop 11""")
    maxtree(FS, FA + 3)
    a(f"""v_max_f32 v{FA+2}, v{FA+2}, v{FA+3}
    s_add_u32 s{sA}, s{sA}, 1024
    s_cmp_lt_u32 s{sA}, 0x10000
    s_cbranch_scc1 L_fb1
    v_mov_b32 v{FA+3}, v{FA+2}
    s_nop 1
    v_permlane32_swap_b32 v{FA+2}, v{FA+3}
    v_max_f32 v{FA+2}, v{FA+2}, v{FA+3}""")
    for i in range(16): a(f"v_sub_f32 v{FC+i}, 0, v{FA+2}\nv_mov_b32 v{ACC+i}, 0")
    a(f"s_mov_b32 s{sA}, 0")
    a.label("L_fb2")
    a(f"""s_add_u32 s{sB}, s{sA}, {VF}
    buffer_load_dwordx4 {vr(FK,4)}, v{FA}, {sr(rWS,4)}, s{sA} offen sc1
    s_mov_b32 exec_lo, 0xffff0000
    s_mov_b32 exec_hi, 0xffff0000
    buffer_load_dwordx4 {vr(FV,4)}, v{FA+1}, {sr(rWS,4)}, s{sB} offen sc1
    buffer_load_dwordx4 {vr(FV+4,4)}, v{FA+1}, {sr(rWS,4)}, s{sB} offen offset:512 sc1
    s_mov_b64 exec, -1
    s_waitcnt vmcnt(0)
    v_mfma_f32_32x32x16_bf16 {vr(FS,16)}, {vr(FK,4)}, {vr(FQ,4)}, {vr(FC,16)}
    s_nop 11""")
    for i in range(16): a(e(FS, i))
    a("s_nop 0")
    for j in range(8): a(c(FS, j))
    a(f"""s_nop 1
    v_mfma_f32_32x32x16_bf16 {vr(ACC,16)}, {vr(FV,4)}, {vr(FS,4)}, {vr(ACC,16)}
    v_mfma_f32_32x32x16_bf16 {vr(ACC,16)}, {vr(FV+4,4)}, {vr(FS+8,4)}, {vr(ACC,16)}
    s_add_u32 s{sA}, s{sA}, 1024
    s_cmp_lt_u32 s{sA}, 0x10000
    s_cbranch_scc1 L_fb2
    s_nop 15""")
    v_ones()
    kv_load(vT)
    a(f"""s_waitcnt vmcnt(0)
    s_mov_b32 s{sD}, 1
    s_branch L_fin2""")

    a(".p2align 6")
    a.label("L_gwave")
    gGC, gL16, gSW, gTR = 1, 2, 3, 4
    gH, gR = 5, 6
    a(f"""s_setprio 3
    s_sub_u32 s{sI}, s{sW}, 8
    s_lshr_b32 s{sRT}, s{sI}, 1
    s_and_b32 s{sCT}, s{sI}, 1
    v_lshlrev_b32 v{gL16}, 4, v0
    v_lshrrev_b32 v7, 3, v0
    v_lshrrev_b32 v8, 2, v0
    v_and_b32 v8, 4, v8
    v_and_b32 v9, 7, v0
    v_xor_b32 v8, v8, v9
    v_lshlrev_b32 v8, 4, v8
    v_lshl_add_u32 v{gSW}, v7, 10, v8
    s_cmp_lg_u32 s{sI}, 0
    s_cbranch_scc1 L_gwq""")
    a(f"""s_cmp_eq_u32 s{sCH}, 0
    s_cselect_b32 s{rW}, s{pWK}, s{pWV}
    s_cselect_b32 s{rW+1}, s{pWK+1}, s{pWV+1}
    s_mov_b32 s{rW+2}, 16384
    s_mov_b32 s{rW+3}, 0x20000""")
    for q in range(4):
        a(f"s_mov_b32 m0, {WKV + q * 4096}\ns_mov_b32 s{sA}, {q*4096}")
        for j in range(4): a(f"buffer_load_dwordx4 v{gL16}, {sr(rW,4)}, s{sA} offen offset:{j*1024} lds")
    srd(rT, pDBG, 256)
    a(f"""s_cmp_lg_u32 s2, 0
    s_cbranch_scc1 L_gxb
    s_memrealtime {sr(sM,2)}
    s_waitcnt lgkmcnt(0)
    v_mov_b32 v10, s{sM}
    v_mov_b32 v11, s{sM+1}
    v_or_b32 v11, 0x80000000, v11
    v_mov_b64 v[12:13], 0
    s_mov_b64 exec, 1
    buffer_atomic_cmpswap_x2 v[10:13], off, {sr(rT,4)}, 0 sc1
    s_mov_b64 exec, -1
    s_branch L_gxb""")
    a.label("L_gwq")
    srd(rW, pWQ, 0x80000)
    a(f"""s_sub_u32 s{sA}, s{sI}, 1
    s_lshl_b32 s{sB}, s{sA}, 13
    s_lshl_b32 s{sC}, s{sG}, 7
    s_add_u32 s{sB}, s{sB}, s{sC}
    s_lshl_b32 s{sA}, s{sA}, 10
    s_add_u32 s{sA}, s{sA}, {RING}""")
    a.label("L_wqloop")
    a(f"""s_mov_b32 m0, s{sA}
    s_add_u32 s{sA}, s{sA}, 3072
    buffer_load_dwordx4 v{gSW}, {sr(rW,4)}, s{sB} offen lds
    s_add_u32 s{sB}, s{sB}, {3*8192}
    s_cmp_lt_u32 s{sA}, {RING + 65536}
    s_cbranch_scc1 L_wqloop""")
    a.label("L_gxb")
    a(f"""v_mov_b32 v{gGC}, {GC}
    v_lshrrev_b32 v{gH}, 5, v0
    v_bfe_u32 v{gR}, v0, 2, 2
    v_and_b32 v7, 3, v0
    v_and_b32 v8, 16, v0
    v_lshlrev_b32 v8, 1, v8
    v_lshl_add_u32 v{gTR}, v7, 3, v8
    s_cmp_lg_u32 s{sI}, 0
    s_cbranch_scc1 L_gb1""")
    WF, XF, DD = 32, 96, 160
    a(f"""v_and_b32 v7, 15, v0
    v_lshrrev_b32 v8, 4, v0
    v_lshlrev_b32 v9, 3, v7
    v_lshl_add_u32 v9, v8, 8, v9
    v_add_u32 v9, {WKV}, v9
    s_lshl_b32 s{sA}, s{sKG}, 14
    v_xor_b32 v10, v7, v8
    v_lshlrev_b32 v10, 4, v10
    v_lshl_add_u32 v10, v7, 10, v10
    v_add_u32 v10, s{sA}, v10
    v_xor_b32 v11, 64, v10
    v_xor_b32 v12, 0x80, v10
    v_xor_b32 v13, 0xc0, v10
    s_waitcnt vmcnt(0)
    buffer_load_dwordx2 v[14:15], off, {sr(rT,4)}, 0 sc1""")
    for ks in range(16):
        a(f"ds_read_b64_tr_b16 {vr(WF+4*ks,2)}, v9 offset:{ks*1024}\nds_read_b64_tr_b16 {vr(WF+4*ks+2,2)}, v9 offset:{ks*1024+128}")
    a(f"""s_cmp_eq_u32 s{sCH}, 0
    s_cselect_b32 s{sB}, 9, 8
    s_cselect_b32 s{sC}, 8, 9
    s_cselect_b32 s{sD}, {KF}, {VF}
    v_and_b32 v16, 1, v8
    v_lshlrev_b32 v16, s{sB}, v16
    v_lshrrev_b32 v17, 1, v8
    v_lshl_add_u32 v16, v17, 3, v16
    v_lshl_add_u32 v16, v7, 4, v16
    s_and_b32 s{sA}, s{sKG}, 1
    s_lshl_b32 s{sA}, s{sA}, s{sC}
    s_add_u32 s{sD}, s{sD}, s{sA}
    s_lshl_b32 s{sA}, s{sRB}, 1
    s_lshr_b32 s{sB}, s{sKG}, 1
    s_add_u32 s{sA}, s{sA}, s{sB}
    s_lshl_b32 s{sA}, s{sA}, 10
    s_add_u32 s{sD}, s{sD}, s{sA}
    s_waitcnt lgkmcnt(0)""")
    TS(1)
    a("s_barrier")
    TS(2)
    for ks in range(16):
        a(f"ds_read_b128 {vr(XF+4*ks,4)}, v{10+(ks&3)} offset:{(ks>>2)*256}")
    a(f"""s_cmp_eq_u32 s{sCH}, 0
    s_cbranch_scc0 L_vchain""")
    for nm, sw in (("k", False), ("v", True)):
        if sw: a.label("L_vchain")
        for ks in range(16):
            A_, B_ = (XF, WF) if sw else (WF, XF)
            if ks % 4 == 0: a(f"s_waitcnt lgkmcnt({12 - ks})")
            a(f"v_mfma_f32_16x16x32_bf16 {vr(DD,4)}, {vr(A_+4*ks,4)}, {vr(B_+4*ks,4)}, {'0' if ks == 0 else vr(DD,4)}")
        if not sw: a("s_branch L_kvst")
    a.label("L_kvst")
    a(f"""s_lshl_b32 s{sA}, s{sRB}, 3
    s_add_u32 s{sA}, s{sA}, s{sG}
    s_lshl_b32 s{sA}, s{sA}, 7
    s_add_u32 s{sA}, s{sA}, {FLG_KV}
    s_nop 3
    v_cvt_pk_bf16_f32 v18, v{DD}, v{DD+1}
    v_cvt_pk_bf16_f32 v19, v{DD+2}, v{DD+3}
    buffer_store_dwordx2 v[18:19], v16, {sr(rWS,4)}, s{sD} offen sc1
    s_mov_b32 s{sCAP}, 0""")
    a.label("L_epoch")
    a(f"""s_waitcnt vmcnt(0)
    v_readfirstlane_b32 s{sEP}, v14
    v_readfirstlane_b32 s{sEP+1}, v15
    s_add_u32 s{sCAP}, s{sCAP}, 1
    s_cmp_gt_u32 s{sCAP}, {SPIN_CAP}
    s_cbranch_scc1 L_epochok
    s_cmp_lg_u32 s{sEP+1}, 0
    s_cbranch_scc1 L_epochok
    buffer_load_dwordx2 v[14:15], off, {sr(rT,4)}, 0 sc1
    s_branch L_epoch""")
    a.label("L_epochok")
    a(f"""s_mov_b64 exec, 1
    buffer_store_dwordx2 v[14:15], off, {sr(rWS,4)}, s{sA} sc1
    ds_write_b64 v{gGC}, v[14:15] offset:{C_EPOCH}
    s_mov_b64 exec, -1
    s_waitcnt lgkmcnt(0)""")
    TS(3)
    a("s_branch L_gb2")
    a.label("L_gb1")
    a("s_barrier\ns_waitcnt vmcnt(0)")
    a.label("L_gb2")
    AC = [136, 104, 120, 88]
    XB = 152
    vB1 = 8
    srd(rT, pB2, 1024)
    a(f"""v_and_b32 v7, 31, v0
    v_lshlrev_b32 v16, 3, v{gH}
    v_lshl_add_u32 v17, v7, 10, v16
    s_lshl_b32 s{sA}, s{sG}, 7
    s_lshl_b32 s{sB}, s{sCT}, 6
    s_add_u32 s{sA}, s{sA}, s{sB}
    s_lshl_b32 s{sB}, s{sRB}, 16
    s_lshl_b32 s{sC}, s{sRT}, 15
    s_add_u32 s{sB}, s{sB}, s{sC}
    s_add_u32 s{sB}, s{sB}, s{sA}""")
    for q in range(4): a(f"buffer_load_dwordx2 {vr(XB+2*q,2)}, v17, {sr(rX,4)}, s{sB} offen offset:{16*q}")
    for q in range(4): a(f"buffer_load_dwordx2 {vr(XB+8+2*q,2)}, v16, {sr(rT,4)}, s{sA} offen offset:{16*q}")
    sT1, sT2, sNG = 0, 1, sE
    a(f"""s_lshl_b32 s{sT1}, s{sG}, 2
    s_add_u32 s{sT1}, s{sT1}, s{sI}
    s_sub_u32 s{sT2}, 3, s{sI}
    s_lshl_b32 s{sT2}, s{sT2}, 3
    s_add_u32 s{sT2}, s{sT2}, s{sG}
    s_add_u32 s{sT2}, s{sT2}, 32
    s_cmp_lt_u32 s{sT2}, 43
    s_cselect_b32 s{sNG}, 16, 8
    s_nop 0""")
    srd(rT, pB1, W1P)
    a(f"""v_lshlrev_b32 v16, 1, v7
    s_lshl_b32 s{sA}, s{sT1}, 6
    s_lshl_b32 s{sB}, s{sT2}, 6
    buffer_load_ushort v{vB1}, v16, {sr(rT,4)}, s{sA} offen
    buffer_load_ushort v{vB1+6}, v16, {sr(rT,4)}, s{sB} offen""")
    gXA, gXT, gWA = 15, 16, 17
    a(f"""v_and_b32 v18, 15, v0
    v_xor_b32 v18, v18, v{gH}
    v_lshlrev_b32 v18, 4, v18
    v_lshl_add_u32 v{gXA}, v7, 10, v18
    v_lshrrev_b32 v18, 1, v{gR}
    v_xor_b32 v18, s{sCT}, v18
    v_lshl_add_u32 v19, v18, 6, v{gTR}
    v_lshl_add_u32 v19, v{gR}, 7, v19
    v_lshl_add_u32 v{gWA}, v{gH}, 10, v19
    v_add_u32 v{gWA}, {RING}, v{gWA}
    s_lshl_b32 s{sC}, s{sRT}, 15
    v_add_u32 v18, s{sC}, v{gXA}
    s_barrier""")
    TS(4)
    a(f"ds_read_b64 v[20:21], v{gGC} offset:{C_EPOCH}")
    QA = 104
    BUF = [24, 56]
    def q_reads(bf):
        for b in range(4):
            a(f"ds_read_b64_tr_b16 {vr(bf+8*b,2)}, v{gWA} offset:{b*16384}\nds_read_b64_tr_b16 {vr(bf+8*b+2,2)}, v{gWA} offset:{b*16384+512}")
            a(f"ds_read_b128 {vr(bf+8*b+4,4)}, v{gXT} offset:{b*256}")
    a(f"v_mov_b32 v{gXT}, v18")
    q_reads(BUF[0])
    for i in range(16): a(f"v_mov_b32 v{QA+i}, 0")
    a(f"s_mov_b32 s{sA}, 0")
    a.label("L_qloop")
    for p in range(2):
        a(f"""s_add_u32 s{sA}, s{sA}, 32
        v_add_u32 v{gWA}, 2048, v{gWA}
        v_xor_b32 v{gXT}, s{sA}, v18
        s_waitcnt lgkmcnt(0)""")
        q_reads(BUF[1 - p])
        for b in range(4):
            a(f"v_mfma_f32_32x32x16_bf16 {vr(QA,16)}, {vr(BUF[p]+8*b,4)}, {vr(BUF[p]+8*b+4,4)}, {vr(QA,16)}")
    a(f"""s_cmp_lt_u32 s{sA}, 256
    s_cbranch_scc1 L_qloop
    v_readfirstlane_b32 s{sEP}, v20
    v_readfirstlane_b32 s{sEP+1}, v21
    s_lshl_b32 s{sA}, s{sRT}, 2
    s_lshl_b32 s{sB}, s{sCT}, 1
    s_add_u32 s{sA}, s{sA}, s{sB}
    s_lshl_b32 s{sA}, s{sA}, 10
    s_add_u32 s{sA}, s{sA}, {QF}
    v_add_u32 v20, s{sA}, v{gL16}
    s_mov_b32 s{sM}, 0x3eb8aa3b
    s_mov_b32 s{sM+1}, 0x3eb8aa3b
    v_mov_b32 v21, 1
    s_nop 1""")
    for j in range(8): a(f"v_pk_mul_f32 {vr(QA+2*j,2)}, {vr(QA+2*j,2)}, {sr(sM,2)}")
    for j in range(8): a(f"v_cvt_pk_bf16_f32 v{QA+j}, v{QA+2*j}, v{QA+2*j+1}")
    a(f"""ds_write_b128 v20, {vr(QA,4)}
    ds_write_b128 v20, {vr(QA+4,4)} offset:1024
    s_mov_b64 exec, 1
    ds_add_u32 v{gGC}, v21 offset:{C_QREADY}
    s_mov_b64 exec, -1""")
    TS(5)
    gV1 = 20
    sRNG = 35
    srd(rW, pW1, 512 * W1P)
    a(f"""v_lshrrev_b32 v7, 2, v0
    v_and_b32 v18, 3, v0
    v_mul_u32_u24 v7, {W1P}, v7
    v_lshl_add_u32 v{gV1}, v18, 4, v7
    v_add_u32 v{gV1+1}, {128*W1P-1024}, v{gV1}
    v_add_u32 v{gV1+2}, {2*(128*W1P-1024)}, v{gV1}
    v_add_u32 v{gV1+3}, {3*(128*W1P-1024)}, v{gV1}
    s_mul_i32 s{sRNG}, s{sI}, {RSZ}
    s_add_u32 s{sRNG}, s{sRNG}, {RING}
    v_lshl_add_u32 v18, v{gR}, 6, v{gTR}
    v_lshl_add_u32 v18, v{gH}, 9, v18
    v_add_u32 v18, s{sRNG}, v18""")
    lds_spin(C_QREADY, 4, gGC, 7, sleep=0)
    if opt.get("delay_f1"): lds_spin(C_ABAR, opt["delay_f1"], gGC, 7, sleep=8)
    sN, sSO = sA, sB
    def w1_dma(slot_sreg):
        a(f"s_mov_b32 m0, s{slot_sreg}\ns_nop 0")
        for b in range(4): a(f"buffer_load_dwordx4 v{gV1+b}, {sr(rW,4)}, s{sSO} offen offset:{b*1024} lds")
    a(f"s_lshl_b32 s{sSO}, s{sT1}, 6\ns_mov_b32 s{sC}, s{sRNG}")
    for n in range(3):
        w1_dma(sC)
        a(f"s_add_u32 s{sSO}, s{sSO}, {16*W1P}\ns_add_u32 s{sC}, s{sC}, 4096")
    a(f"s_waitcnt vmcnt(12)\ns_mov_b32 s{sD}, 0xffff0000")
    for j in range(8):
        a(f"v_lshlrev_b32 v{AC[0]+2*j}, 16, v{XB+j}\nv_and_b32 v{AC[0]+2*j+1}, s{sD}, v{XB+j}")
        a(f"v_lshlrev_b32 v24, 16, v{XB+8+j}\nv_and_b32 v25, s{sD}, v{XB+8+j}")
        a(f"v_pk_add_f32 {vr(AC[0]+2*j,2)}, {vr(AC[0]+2*j,2)}, v[24:25]")
    a(f"""v_mov_b32 v{vB1+1}, 0
    v_sub_u32 v{vB1+2}, 1, v{gH}
    v_mul_u32_u24 v{vB1+2}, 0x3f80, v{vB1+2}
    v_mov_b32 v{vB1+3}, 0
    v_mov_b32 v{vB1+4}, 0
    v_mov_b32 v{vB1+5}, 0""")
    H0, H1 = 104, 120
    FB = [24, 56]
    FX = [88, 152]
    def f1_reads(p):
        for b in range(4):
            a(f"ds_read_b64_tr_b16 {vr(FB[p]+8*b,2)}, v{gWA} offset:{b*1024}\nds_read_b64_tr_b16 {vr(FB[p]+8*b+2,2)}, v{gWA} offset:{b*1024+256}")
            a(f"ds_read_b128 {vr(FB[p]+8*b+4,4)}, v{gXT} offset:{b*256}\nds_read_b128 {vr(FX[p]+4*b,4)}, v{gXT} offset:{b*256+32768}")
    def bias():
        a(f"v_mfma_f32_32x32x16_bf16 {vr(H0,16)}, {vr(vB1,4)}, {vr(vB1+2,4)}, 0\nv_mfma_f32_32x32x16_bf16 {vr(H1,16)}, {vr(vB1,4)}, {vr(vB1+2,4)}, 0")
    a(f"""v_mov_b32 v{gWA}, v18
    v_mov_b32 v{gXT}, v{gXA}
    s_mov_b32 s{sN}, 0
    s_mov_b32 s{sM}, 0
    s_waitcnt vmcnt(8)""")
    f1_reads(0)
    bias()
    a.label("L_f1loop")
    for p in range(2):
        a(f"""s_add_u32 s{sC}, s{sM}, s{sRNG}
        s_add_u32 s{sM}, s{sM}, 4096
        s_cmp_lt_u32 s{sM}, {RSZ}
        s_cselect_b32 s{sM}, s{sM}, 0
        s_add_u32 s{sN}, s{sN}, 1
        v_add_u32 v{gWA}, s{sM}, v18
        s_and_b32 s{sD}, s{sN}, 7
        s_lshl_b32 s{sD}, s{sD}, 5
        v_xor_b32 v{gXT}, s{sD}, v{gXA}""")
        if p == 1:
            a(f"""s_lshl_b32 s{sD}, s{sT2}, 6
            s_cmp_eq_u32 s{sN}, 6
            s_cselect_b32 s{sSO}, s{sD}, s{sSO}
            s_add_u32 s{sD}, s{sN}, 2
            s_cmp_lt_u32 s{sD}, s{sNG}
            s_cselect_b32 s{rW+2}, s{rW+2}, 0""")
        a("s_waitcnt vmcnt(4) lgkmcnt(0)")
        f1_reads(1 - p)
        w1_dma(sC)
        a(f"s_add_u32 s{sSO}, s{sSO}, {16*W1P}")
        for b in range(4):
            a(f"v_mfma_f32_32x32x16_bf16 {vr(H0,16)}, {vr(FB[p]+8*b,4)}, {vr(FB[p]+8*b+4,4)}, {vr(H0,16)}")
            a(f"v_mfma_f32_32x32x16_bf16 {vr(H1,16)}, {vr(FB[p]+8*b,4)}, {vr(FX[p]+4*b,4)}, {vr(H1,16)}")
    a(f"""s_and_b32 s{sD}, s{sN}, 7
    s_cbranch_scc1 L_f1loop
    s_mul_i32 s{sD}, s{sRB}, 86
    s_lshl_b32 s{sC}, s{sT1}, 1
    s_add_u32 s{sD}, s{sD}, s{sC}
    s_lshl_b32 s{sD}, s{sD}, 11
    s_add_u32 s{sD}, s{sD}, {HF}
    s_mov_b32 s{sT1}, s{sT2}
    v_mov_b32 v{vB1}, v{vB1+6}
    s_nop 3""")
    for rt, Hh in enumerate((H0, H1)):
        for j in range(16): a(f"v_max_f32 v{Hh+j}, 0, v{Hh+j}")
        for j in range(8): a(f"v_pk_mul_f32 {vr(Hh+2*j,2)}, {vr(Hh+2*j,2)}, {vr(Hh+2*j,2)}")
        for j in range(8): a(f"v_cvt_pk_bf16_f32 v{Hh+j}, v{Hh+2*j}, v{Hh+2*j+1}")
        for s_ in range(2):
            a(f"buffer_store_dwordx4 {vr(Hh+4*s_,4)}, v{gL16}, {sr(rWS,4)}, s{sD} offen offset:{s_*2048+rt*1024} sc1")
    a("s_nop 1")
    bias()
    a(f"""s_cmp_lt_u32 s{sN}, s{sNG}
    s_cbranch_scc1 L_f1loop
    v_mov_b32 v7, 1
    s_waitcnt vmcnt(0) lgkmcnt(0)
    s_mov_b64 exec, 1
    ds_add_rtn_u32 v24, v{gGC}, v7 offset:{C_HDONE}
    s_mov_b64 exec, -1
    s_lshl_b32 s{sD}, s{sRB}, 3
    s_add_u32 s{sC}, s{sD}, s{sG}
    s_lshl_b32 s{sC}, s{sC}, 7
    s_add_u32 s{sC}, s{sC}, {FLG_H}
    s_waitcnt lgkmcnt(0)
    v_readfirstlane_b32 s{sA}, v24
    s_nop 0
    s_cmp_lg_u32 s{sA}, 3
    s_cbranch_scc1 L_nohflag""")
    flag_store(sC, 24)
    a.label("L_nohflag")
    TS(6)
    sK0, sK1, sSW, sSH = 0, 1, sB, sC
    a(f"""s_mul_i32 s{sK0}, s{sI}, 22
    s_cmp_eq_u32 s{sI}, 3
    s_cselect_b32 s{sA}, 20, 22
    s_add_u32 s{sK1}, s{sK0}, s{sA}
    s_mov_b32 s{rW}, s{pW2}
    s_mov_b32 s{rW+1}, s{pW2+1}
    s_lshl_b32 s{rW+2}, s{sK1}, 14
    s_mov_b32 s{rW+3}, 0x20000
    s_lshl_b32 s{sSW}, s{sK0}, 14
    s_lshl_b32 s{sA}, s{sG}, 7
    s_add_u32 s{sSW}, s{sSW}, s{sA}
    v_add_u32 v7, {8192-1024}, v{gSW}""")
    gSW2 = 7
    def w2_dma(u):
        a(f"""s_add_u32 m0, s{sRNG}, {u*2048}
        s_nop 0
        buffer_load_dwordx4 v{gSW}, {sr(rW,4)}, s{sSW} offen lds
        buffer_load_dwordx4 v{gSW2}, {sr(rW,4)}, s{sSW} offen offset:1024 lds
        s_add_u32 s{sSW}, s{sSW}, 16384""")
    D2 = RSZ // 2048
    for u in range(D2): w2_dma(u)
    lds_spin(C_HDONE, 4, gGC, 24, sleep=2)
    srd(rT, pWO, 0x80000)
    a(f"""s_lshl_b32 s{sA}, s{sI}, 14
    s_lshl_b32 s{sC}, s{sI}, 17
    s_lshl_b32 s{sD}, s{sG}, 7
    s_add_u32 s{sC}, s{sC}, s{sD}
    s_add_u32 s{sD}, s{sA}, 16384""")
    a.label("L_woloop")
    a(f"""s_mov_b32 m0, s{sA}
    s_add_u32 s{sA}, s{sA}, 2048
    buffer_load_dwordx4 v{gSW}, {sr(rT,4)}, s{sC} offen lds
    buffer_load_dwordx4 v{gSW2}, {sr(rT,4)}, s{sC} offen offset:1024 lds
    s_add_u32 s{sC}, s{sC}, 16384
    s_cmp_lt_u32 s{sA}, s{sD}
    s_cbranch_scc1 L_woloop""")
    gA0, gA1, gHO0, gHO1, gFL = 8, 9, 10, 11, 12
    a(f"""v_lshl_add_u32 v19, v{gH}, 9, v19
    v_add_u32 v{gA0}, s{sRNG}, v19
    v_xor_b32 v{gA1}, 64, v{gA0}
    s_lshl_b32 s{sA}, s{sRT}, 10
    v_add_u32 v{gHO0}, s{sA}, v{gL16}
    v_xor_b32 v{gHO1}, 0x400, v{gHO0}
    v_and_b32 v{gFL}, 7, v0
    v_lshlrev_b32 v{gFL}, 7, v{gFL}
    s_lshl_b32 s{sA}, s{sRB}, 10
    s_add_u32 s{sA}, s{sA}, {FLG_H}""")
    for j in range(1, 4):
        for i in range(16): a(f"v_mov_b32 v{AC[j]+i}, 0")
    flag_poll(gFL, sA, 24)
    TS(7)
    a(f"""s_mul_i32 s{sA}, s{sRB}, 86
    s_add_u32 s{sSH}, s{sA}, s{sK0}
    s_lshl_b32 s{sSH}, s{sSH}, 11
    s_add_u32 s{sSH}, s{sSH}, {HF}
    s_add_u32 s{sA}, s{sA}, s{sK1}
    s_lshl_b32 s{sA}, s{sA}, 11
    s_mov_b32 s{rT}, s{pWS}
    s_mov_b32 s{rT+1}, s{pWS+1}
    s_add_u32 s{rT+2}, s{sA}, {HF}
    s_mov_b32 s{rT+3}, 0x20000""")
    HR = 24
    AF = [152, 160]
    def h_load(u):
        a(f"""buffer_load_dwordx4 {vr(HR+8*u,4)}, v{gHO0}, {sr(rT,4)}, s{sSH} offen sc1
        buffer_load_dwordx4 {vr(HR+8*u+4,4)}, v{gHO1}, {sr(rT,4)}, s{sSH} offen sc1
        s_add_u32 s{sSH}, s{sSH}, 2048""")
    def a_reads(u, p):
        for d, ga in enumerate((gA0, gA1)):
            a(f"ds_read_b64_tr_b16 {vr(AF[p]+4*d,2)}, v{ga} offset:{u*2048}\nds_read_b64_tr_b16 {vr(AF[p]+4*d+2,2)}, v{ga} offset:{u*2048+1024}")
    for u in range(D2): h_load(u)
    a_reads(0, 0)
    a("s_waitcnt vmcnt(0)")
    a.label("L_f2loop")
    for u in range(D2):
        p = u & 1
        a(f"s_waitcnt vmcnt({4*(D2-2)}) lgkmcnt(0)")
        a_reads((u + 1) % D2, 1 - p)
        for j in range(4):
            a(f"v_mfma_f32_32x32x16_bf16 {vr(AC[j],16)}, {vr(AF[p]+4*(j&1),4)}, {vr(HR+8*u+4*(j>>1),4)}, {vr(AC[j],16)}")
        w2_dma(u)
        h_load(u)
        a(f"s_add_u32 s{sK0}, s{sK0}, 1\ns_cmp_ge_u32 s{sK0}, s{sK1}")
        a("s_cbranch_scc1 L_f2done" if u < D2 - 1 else "s_cbranch_scc0 L_f2loop")
    a.label("L_f2done")
    TS(8)
    a(f"""v_add_u32 v13, s{sRNG}, v{gL16}
    v_mov_b32 v14, 1
    s_waitcnt vmcnt(0) lgkmcnt(0)
    s_nop 7""")
    for j in range(1, 4):
        for q in range(4): a(f"ds_write_b128 v13, {vr(AC[j]+4*q,4)} offset:{(j-1)*4096+q*1024}")
    a(f"""s_mov_b64 exec, 1
    ds_add_u32 v{gGC}, v14 offset:{C_GBAR}
    s_mov_b64 exec, -1""")
    lds_spin(C_GBAR, 4, gGC, 14, sleep=1)
    for j in range(1, 4):
        a(f"s_xor_b32 s{sA}, s{sI}, {j}\ns_mul_i32 s{sA}, s{sA}, {RSZ}\ns_add_u32 s{sA}, s{sA}, {RING}\nv_add_u32 v14, s{sA}, v{gL16}")
        for q in range(4): a(f"ds_read_b128 {vr(AC[j]+4*q,4)}, v14 offset:{(j-1)*4096+q*1024}")
    for j in range(1, 4):
        a(f"s_waitcnt lgkmcnt({(3-j)*4})")
        for q in range(8): a(f"v_pk_add_f32 {vr(AC[0]+2*q,2)}, {vr(AC[0]+2*q,2)}, {vr(AC[j]+2*q,2)}")
    TS(9)
    WOF, OFR = 24, 56
    sJ, sFO, sOO = 0, 1, sB
    a(f"""s_lshl_b32 s{sFO}, s{sRB}, 10
    s_lshl_b32 s{sA}, s{sRT}, 5
    s_add_u32 s{sFO}, s{sFO}, s{sA}
    s_add_u32 s{sFO}, s{sFO}, {FLG_O}
    s_lshl_b32 s{sOO}, s{sRB}, 1
    s_add_u32 s{sOO}, s{sOO}, s{sRT}
    s_lshl_b32 s{sOO}, s{sOO}, 15
    s_add_u32 s{sOO}, s{sOO}, {OF}
    s_mov_b32 s{sJ}, 0""")
    a.label("L_oloop")
    for gp in range(8):
        a(f"ds_read_b64_tr_b16 {vr(WOF+4*gp,2)}, v19 offset:{gp*8192}\nds_read_b64_tr_b16 {vr(WOF+4*gp+2,2)}, v19 offset:{gp*8192+1024}")
    flag_poll(gFL, sFO, 14, sleep=2)
    a(f"s_mov_b32 s{sA}, s{sOO}")
    for gp in range(8):
        a(f"buffer_load_dwordx4 {vr(OFR+4*gp,4)}, v{gL16}, {sr(rWS,4)}, s{sA} offen sc1\ns_add_u32 s{sA}, s{sA}, 4096")
    a(f"""v_add_u32 v19, 2048, v19
    s_add_u32 s{sFO}, s{sFO}, 8
    s_add_u32 s{sOO}, s{sOO}, 1024
    s_add_u32 s{sJ}, s{sJ}, 1
    s_waitcnt lgkmcnt(0)""")
    for gp in range(8):
        a(f"s_waitcnt vmcnt({7-gp})\nv_mfma_f32_32x32x16_bf16 {vr(AC[0],16)}, {vr(WOF+4*gp,4)}, {vr(OFR+4*gp,4)}, {vr(AC[0],16)}")
    a(f"""s_cmp_lt_u32 s{sJ}, 4
    s_cbranch_scc1 L_oloop""")
    TS(10)
    srd(rT, pOUT, 0x200000)
    a(f"""v_and_b32 v7, 31, v0
    v_lshlrev_b32 v16, 3, v{gH}
    v_lshl_add_u32 v17, v7, 10, v16
    s_lshl_b32 s{sA}, s{sG}, 7
    s_lshl_b32 s{sB}, s{sCT}, 6
    s_add_u32 s{sA}, s{sA}, s{sB}
    s_lshl_b32 s{sB}, s{sRB}, 16
    s_lshl_b32 s{sC}, s{sRT}, 15
    s_add_u32 s{sB}, s{sB}, s{sC}
    s_add_u32 s{sB}, s{sB}, s{sA}""")
    for j in range(8): a(f"v_cvt_pk_bf16_f32 v{AC[0]+j}, v{AC[0]+2*j}, v{AC[0]+2*j+1}")
    for q in range(4): a(f"buffer_store_dwordx2 {vr(AC[0]+2*q,2)}, v17, {sr(rT,4)}, s{sB} offen offset:{16*q}")
    if ts:
        a("s_waitcnt vmcnt(0)")
    TS(11)
    ts_dump("G")
    a.label("L_end")
    a("s_endpgm")

    probs = lint(a.lines)
    for p in probs: print("LINT", p, file=sys.stderr)
    head = f"""; fused layernorm + MQA attention + squared-relu FFN, one persistent launch (generated by gen/gen.py)
; @launch grid=(256,1,1) block=(768,1,1) lds=163840
.amdgcn_target "amdgcn-amd-amdhsa--gfx950"
.text
.globl {NAME}_kernel
.p2align 8
.type {NAME}_kernel,@function
{NAME}_kernel:
"""
    tail = f""".section .rodata,"a"
.p2align 6
.amdhsa_kernel {NAME}_kernel
  .amdhsa_next_free_vgpr 168
  .amdhsa_next_free_sgpr 100
  .amdhsa_accum_offset 168
  .amdhsa_group_segment_fixed_size 0
  .amdhsa_kernarg_size 104
  .amdhsa_user_sgpr_count 2
  .amdhsa_user_sgpr_kernarg_segment_ptr 1
  .amdhsa_system_sgpr_workgroup_id_x 1
.end_amdhsa_kernel
"""
    return head + a.text() + tail

if __name__ == "__main__":
    open("k.s", "w").write(gen(False))
    open("k_ts.s", "w").write(gen(True))
    open("k_ts_d.s", "w").write(gen(True, dict(delay_f1=16)))
    open("k_ts_q.s", "w").write(gen(True, dict(delay_f1=16, qts=1)))
    open("k_dbg.s", "w").write(gen(True, dict(dbgts=1)))
```

```python
import sys
from asmlib import Asm, vr, sr, lint
NAME = "parallel_sum__grouped_kv_mqa__dense_activation_squared_relu__prompt"

KF, VF, FLG_KV, FLG_H, FLG_O, OF, HF, TSB = 0, 0x10000, 0x20000, 0x28000, 0x30000, 0x40000, 0x240000, 0x800000
WS_BYTES = 0x900000
XN, RING, WKV = 0, 65536, 131072
RSZ = 12288
OACC, OST = 114688, 4608
B_L, B_CNT = 4096, 4352
QF, CINB = 151552, 159744
GC = OACC + 7 * OST + B_CNT + 16
C_QREADY, C_ABAR, C_HDONE, C_GBAR, C_EPOCH = 0, 4, 8, 12, 16
W1P = 2752
OFFS = 90.0
SPIN_CAP = 1 << 18

sW, sRB, sG, sKG, sCH = 3, 4, 5, 6, 7
pX, pWQ, pWK, pWV, pWO, pW1, pB1, pW2, pB2, pOUT, pDBG, pWS = 8, 10, 12, 14, 16, 20, 22, 24, 26, 28, 30, 32
rX, rWS, rW, rT = 36, 40, 44, 48
sEP = 52
sI, sRT, sCT = 54, 55, 56
sA, sB, sC, sD, sE, sF = 57, 58, 59, 60, 61, 62
sCAP = 63
sM = 34
TS0 = 64

def gen(ts=False, opt={}):
    a = Asm()
    nts = [0]
    def TS(i):
        if ts and not (opt.get("qts") and i in (7, 8)): a(f"s_memrealtime {sr(TS0 + 2 * i, 2)}")
    def srd(r, p, n):
        a(f"s_mov_b32 s{r}, s{p}\ns_mov_b32 s{r+1}, s{p+1}\ns_mov_b32 s{r+2}, {n}\ns_mov_b32 s{r+3}, 0x20000")
    def lds_spin(off, val, va, vt, sleep=1):
        L = a.newlabel("spin"); D = a.newlabel("spun")
        a(f"s_mov_b32 s{sCAP}, 0")
        a.label(L)
        a(f"""ds_read_b32 v{vt}, v{va} offset:{off}
        s_add_u32 s{sCAP}, s{sCAP}, 1
        s_waitcnt lgkmcnt(0)
        v_readfirstlane_b32 s{sF}, v{vt}
        s_cmp_gt_u32 s{sCAP}, {SPIN_CAP}
        s_cbranch_scc1 {D}
        s_cmp_ge_u32 s{sF}, {val}
        s_cbranch_scc1 {D}
        s_sleep {sleep}
        s_branch {L}""")
        a.label(D)
    def flag_poll(va, soff, vt, sleep=2):
        L = a.newlabel("poll"); D = a.newlabel("polled")
        a(f"s_mov_b32 s{sCAP}, 0")
        a.label(L)
        a(f"""buffer_load_dwordx2 {vr(vt,2)}, v{va}, {sr(rWS,4)}, s{soff} offen sc1
        s_add_u32 s{sCAP}, s{sCAP}, 1
        s_waitcnt vmcnt(0)
        v_cmp_ne_u64 vcc, {sr(sEP,2)}, {vr(vt,2)}
        s_cmp_gt_u32 s{sCAP}, {SPIN_CAP}
        s_cbranch_scc1 {D}
        s_cbranch_vccz {D}
        s_sleep {sleep}
        s_branch {L}""")
        a.label(D)
    def flag_store(soff, vt):
        a(f"""v_mov_b32 v{vt}, s{sEP}
        v_mov_b32 v{vt+1}, s{sEP+1}
        s_mov_b64 exec, 1
        buffer_store_dwordx2 {vr(vt,2)}, off, {sr(rWS,4)}, s{soff} sc1
        s_mov_b64 exec, -1""")
    def ts_dump(role):
        if not ts: return
        if opt.get("dbgts"):
            srd(rT, pDBG, 256)
            a("s_waitcnt lgkmcnt(0)\ns_mov_b64 exec, 1")
            lst = [(1, 2), (3, 3), (4, 4), (6, 5), (9, 6)] if role == "A" else [(0, 7), (4, 8), (5, 9), (6, 10), (7, 11), (8, 12), (11, 13)]
            for st, wd in lst:
                a(f"s_sub_u32 s{sA}, s{TS0+2*st}, s{sEP}\ns_add_u32 s{sA}, s{sA}, 1000\nv_mov_b32 v4, s{sA}\nbuffer_atomic_umax v4, off, {sr(rT,4)}, 0 offset:{4*wd} sc1")
            if role == "A":
                a(f"s_sub_u32 s{sA}, s{sEP}, s{TS0}\ns_add_u32 s{sA}, s{sA}, 1000\nv_mov_b32 v4, s{sA}\nbuffer_atomic_umax v4, off, {sr(rT,4)}, 0 offset:56 sc1")
            a("s_waitcnt vmcnt(0)")
            return
        a(f"""s_waitcnt lgkmcnt(0)
        s_mul_i32 s{sA}, s2, 12
        s_add_u32 s{sA}, s{sA}, s{sW}
        s_lshl_b32 s{sA}, s{sA}, 6
        s_add_u32 s{sA}, s{sA}, {TSB}
        s_mov_b64 exec, 1""")
        for q in range(4):
            for j in range(4): a(f"v_mov_b32 v{4+j}, s{TS0 + 2 * (4 * q + j)}")
            a(f"buffer_store_dwordx4 v[4:7], off, {sr(rWS,4)}, s{sA} offset:{16*q}\ns_nop 1")
        a("s_waitcnt vmcnt(0)")

    a(f"""s_memrealtime {sr(sM,2)}
    s_cmp_ge_u32 s2, 256
    s_cbranch_scc1 L_end""")
    if ts:
        for i in range(16): a(f"s_mov_b32 s{TS0+2*i}, 0")
    TS(0)
    a(f"""s_load_dwordx16 s[8:23], s[0:1], 0
    s_load_dwordx8 s[24:31], s[0:1], 64
    s_load_dwordx2 s[32:33], s[0:1], 96
    v_lshrrev_b32 v1, 6, v0
    s_and_b32 s{sRB}, s2, 7
    v_readfirstlane_b32 s{sW}, v1
    s_lshl_b32 s{sRB}, s{sRB}, 2
    s_lshr_b32 s{sA}, s2, 6
    s_add_u32 s{sRB}, s{sRB}, s{sA}
    s_bfe_u32 s{sG}, s2, 0x30003
    s_lshr_b32 s{sKG}, s{sG}, 1
    s_and_b32 s{sCH}, s{sG}, 1
    v_and_b32 v0, 63, v0
    s_waitcnt lgkmcnt(0)""")
    srd(rX, pX, 0x200000)
    srd(rWS, pWS, WS_BYTES)
    a(f"""s_cmp_ge_u32 s{sW}, 8
    s_cbranch_scc1 L_gwave""")

    a(f"""v_lshrrev_b32 v3, 5, v0
    v_and_b32 v4, 31, v0
    s_lshl_b32 s{sA}, s{sW}, 1
    v_add_u32 v3, s{sA}, v3
    v_lshlrev_b32 v1, 10, v3
    v_lshl_add_u32 v5, v4, 4, v1
    s_lshl_b32 s{sB}, s{sRB}, 16""")
    for it in range(4):
        a(f"""s_add_u32 s{sC}, s{sKG}, {it}
        s_and_b32 s{sC}, s{sC}, 3
        s_lshl_b32 s{sC}, s{sC}, 14
        s_add_u32 s{sD}, s{sB}, s{sC}
        buffer_load_dwordx4 {vr(8+8*it,4)}, v5, {sr(rX,4)}, s{sD} offen
        buffer_load_dwordx4 {vr(12+8*it,4)}, v5, {sr(rX,4)}, s{sD} offen offset:512""")
    a(f"""v_xor_b32 v4, v4, v3
    v_lshl_add_u32 v2, v4, 4, v1
    v_mov_b32 v6, {GC}
    v_mov_b32 v40, 0
    v_mov_b32 v41, 0
    v_mov_b32 v42, 0
    v_mov_b32 v43, 0
    s_mov_b32 s{sE}, 0xffff0000
    s_cmp_lg_u32 s{sW}, 0
    s_cbranch_scc1 L_nozero
    ds_write_b128 v6, v[40:43]""")
    a.label("L_nozero")
    U = 44
    for it in range(4):
        X = 8 + 8 * it
        a(f"s_waitcnt vmcnt({6 - 2 * it})")
        if it == 0: TS(1)
        for j in range(8):
            a(f"v_lshlrev_b32 v{U+2*j}, 16, v{X+j}\nv_and_b32 v{U+2*j+1}, s{sE}, v{X+j}")
        a(f"v_pk_add_f32 v[60:61], {vr(U,2)}, {vr(U+2,2)}\nv_pk_mul_f32 v[62:63], {vr(U,2)}, {vr(U,2)}")
        a(f"v_pk_fma_f32 v[62:63], {vr(U+2,2)}, {vr(U+2,2)}, v[62:63]")
        for j in range(2, 8):
            a(f"v_pk_add_f32 v[60:61], v[60:61], {vr(U+2*j,2)}\nv_pk_fma_f32 v[62:63], {vr(U+2*j,2)}, {vr(U+2*j,2)}, v[62:63]")
        a("v_add_f32 v60, v60, v61\nv_add_f32 v62, v62, v63")
        for mode in ("quad_perm:[1,0,3,2]", "quad_perm:[2,3,0,1]", "row_half_mirror", "row_mirror"):
            a(f"s_nop 0\nv_add_f32_dpp v60, v60, v60 {mode} row_mask:0xf bank_mask:0xf\nv_add_f32_dpp v62, v62, v62 {mode} row_mask:0xf bank_mask:0xf")
        a(f"""v_mov_b32 v61, v60
        v_mov_b32 v63, v62
        s_add_u32 s{sC}, s{sKG}, {it}
        s_and_b32 s{sC}, s{sC}, 3
        v_permlane16_swap_b32 v60, v61
        v_permlane16_swap_b32 v62, v63
        s_lshl_b32 s{sC}, s{sC}, 14
        v_add_f32 v60, v60, v61
        v_add_f32 v62, v62, v63
        v_mul_f32 v60, 0x3b000000, v60
        v_mul_f32 v61, v60, v60
        v_mov_b32 v63, 0x3b000000
        v_fma_f32 v62, v62, v63, -v61
        v_max_f32 v62, 0, v62
        v_add_f32 v62, 0x3727c5ac, v62
        v_rsq_f32 v62, v62
        v_add_u32 v7, s{sC}, v2
        v_mul_f32 v64, -v60, v62""")
        for j in range(8):
            a(f"v_pk_fma_f32 {vr(U+2*j,2)}, {vr(U+2*j,2)}, v[62:63], v[64:65] op_sel_hi:[1,0,0]")
        for j in range(8):
            a(f"v_cvt_pk_bf16_f32 v{X+j}, v{U+2*j}, v{U+2*j+1}")
        a(f"ds_write_b128 v7, {vr(X,4)}\nds_write_b128 v7, {vr(X+4,4)} offset:512")
        if it == 0:
            a("s_waitcnt lgkmcnt(0)\ns_barrier")
            TS(2)
    a("s_waitcnt lgkmcnt(0)\ns_barrier")
    TS(3)

    vL8, vAD, vT = 0, 1, 2
    Q, K, V, S0, S1, ACC, CIN = 4, 8, 40, 104, 120, 136, 152
    sQT, sPEND, sPOFF, sKVO = sI, sRT, sCT, sE
    sOOF, sQA, sOAD, sFAD, sCA = 0, 1, 44, 45, 46
    a(f"""ds_read_b64 v[8:9], v6 offset:{C_EPOCH}
    v_and_b32 v10, 31, v0
    v_lshlrev_b32 v{vL8}, 3, v0
    v_lshlrev_b32 v10, 7, v10
    s_lshl_b32 s{sB}, s{sW}, 12
    s_add_u32 s{sB}, s{sB}, {FLG_KV}
    s_lshl_b32 s{sOAD}, s{sRB}, 16
    s_lshl_b32 s{sA}, s{sG}, 12
    s_add_u32 s{sOAD}, s{sOAD}, s{sA}
    s_add_u32 s{sOAD}, s{sOAD}, {OF}
    s_lshl_b32 s{sFAD}, s{sRB}, 10
    s_lshl_b32 s{sA}, s{sG}, 7
    s_add_u32 s{sFAD}, s{sFAD}, s{sA}
    s_add_u32 s{sFAD}, s{sFAD}, {FLG_O}
    s_waitcnt lgkmcnt(0)
    v_readfirstlane_b32 s{sEP}, v8
    v_readfirstlane_b32 s{sEP+1}, v9
    v_mov_b32 v{ACC}, v6
    s_lshl_b32 s{sKVO}, s{sW}, 13""")
    def v_ones():
        if opt.get("ones_all"):
            a(f"s_mov_b32 s{sM}, 0x3f803f80\ns_mov_b32 s{sM+1}, 0x3f803f80")
            for i in range(32): a(f"v_mov_b64 {vr(V+2*i,2)}, {sr(sM,2)}")
        else:
            a(f"v_and_b32 v{V}, 0xff, v{vL8}\nv_mov_b32 v{V+1}, 0x3f803f80\nv_cmp_eq_u32 vcc, 0, v{V}\ns_nop 1\nv_cndmask_b32 v{V}, 0, v{V+1}, vcc\nv_mov_b32 v{V+1}, v{V}")
            for i in range(1, 32): a(f"v_mov_b64 {vr(V+2*i,2)}, {vr(V,2)}")
    v_ones()
    flag_poll(10, sB, 12)
    TS(4)
    def kv_load(tmp):
        a(f"""s_add_u32 s{sA}, s{sKVO}, 4096
        v_lshrrev_b32 v{tmp+1}, 8, v{vL8}
        v_lshlrev_b32 v{tmp}, 1, v{vL8}""")
        for t in range(8):
            a(f"buffer_load_dwordx4 {vr(K+4*t,4)}, v{tmp}, {sr(rWS,4)}, s{sKVO if t < 4 else sA} offen offset:{(t&3)*1024} sc1")
        a(f"""v_and_b32 v{tmp}, 0xf0, v{tmp}
        v_lshl_add_u32 v{tmp}, v{tmp+1}, 8, v{tmp}
        s_add_u32 s{sA}, s{sKVO}, {VF}
        s_add_u32 s{sB}, s{sKVO}, {VF+4096}
        s_mov_b32 exec_lo, 0xffff0000
        s_mov_b32 exec_hi, 0xffff0000""")
        for t in range(16):
            a(f"buffer_load_dwordx4 {vr(V+4*t,4)}, v{tmp}, {sr(rWS,4)}, s{sA if t < 8 else sB} offen offset:{(t&7)*512} sc1")
        a("s_mov_b64 exec, -1")
    kv_load(vT)
    TS(10)
    a(f"""s_lshl_b32 s{sA}, s{sW}, 10
    s_add_u32 s{sA}, s{sA}, {QF}
    v_lshl_add_u32 v{ACC+1}, v{vL8}, 1, s{sA}
    s_mul_i32 s{sA}, s{sW}, {OST}
    s_add_u32 s{sA}, s{sA}, {OACC}
    v_lshl_add_u32 v{ACC+3}, v{vL8}, 1, s{sA}
    s_lshl_b32 s{sA}, s{sW}, 9
    s_add_u32 s{sA}, s{sA}, {CINB}
    v_and_b32 v{ACC+8}, 0xff, v{vL8}
    v_lshl_add_u32 v{ACC+8}, v{ACC+8}, 1, s{sA}
    v_mov_b32 v{ACC+2}, 1
    v_mov_b64 {vr(ACC+4,2)}, 0
    v_mov_b64 {vr(ACC+6,2)}, 0""")
    lds_spin(C_QREADY, 4, ACC, vT)
    TS(5)
    a(f"ds_read_b128 {vr(Q,4)}, v{ACC+1}")
    for j in range(4): a(f"ds_write_b128 v{ACC+3}, {vr(ACC+4,4)} offset:{1024*j}")
    a(f"""s_mov_b64 exec, 0x1ffff
    ds_write_b128 v{ACC+3}, {vr(ACC+4,4)} offset:{B_L}
    s_mov_b64 exec, -1
    s_waitcnt vmcnt(23) lgkmcnt(5)""")
    TS(11)
    a(f"""v_mfma_f32_32x32x16_bf16 {vr(S0,16)}, {vr(K,4)}, {vr(Q,4)}, 0
    s_mov_b32 s{sOOF}, {OACC}
    s_mov_b32 s{sQA}, {QF}
    s_mov_b32 s{sCA}, {CINB}
    s_nop 8""")
    def maxtree(S, d):
        a(f"v_max3_f32 v{d}, v{S}, v{S+1}, v{S+2}")
        for j in range(3, 15, 2): a(f"v_max3_f32 v{d}, v{d}, v{S+j}, v{S+j+1}")
        a(f"v_max_f32 v{d}, v{d}, v{S+15}")
    maxtree(S0, vT)
    a(f"""v_mov_b32 v{vT+1}, v{vT}
    s_nop 1
    v_permlane32_swap_b32 v{vT}, v{vT+1}
    v_max_f32 v{vT}, v{vT}, v{vT+1}
    v_sub_f32 v{S1}, {-OFFS}, v{vT}
    v_mov_b32 v{S1+1}, v{S1}
    v_mov_b32 v{S1+2}, v{S1}
    v_mov_b32 v{S1+3}, v{S1}
    ds_write_b128 v{ACC+8}, {vr(S1,4)}
    s_mov_b64 exec, 1
    ds_add_u32 v{ACC}, v{ACC+2} offset:{C_ABAR}
    s_mov_b64 exec, -1""")
    lds_spin(C_ABAR, 8, ACC, vT, sleep=0)
    TS(6)
    if ts: a(f"s_memtime {sr(TS0+26,2)}")
    def load_q():
        a(f"""v_lshl_add_u32 v{vAD}, v{vL8}, 1, s{sQA}
        v_and_b32 v{vT}, 0xff, v{vL8}
        s_add_u32 s{sQA}, s{sQA}, 1024
        ds_read_b128 {vr(Q,4)}, v{vAD}
        v_lshl_add_u32 v{vT}, v{vT}, 1, s{sCA}
        s_add_u32 s{sCA}, s{sCA}, 512""")
        for j in range(4): a(f"ds_read_b128 {vr(CIN+4*j,4)}, v{vT}")
    def QK(t, S): return f"v_mfma_f32_32x32x16_bf16 {vr(S,16)}, {vr(K+4*t,4)}, {vr(Q,4)}, {vr(CIN,16)}"
    def PV(t, hf, S, zero=False):
        if opt.get("nopv") and not zero: return "s_nop 1"
        if opt.get("pv16") and not zero: return f"v_mfma_f32_16x16x32_bf16 {vr(ACC+4*hf,4)}, {vr(K+4*t,4)}, {vr(S+8*hf,4)}, {vr(ACC+4*hf,4)}"
        return f"v_mfma_f32_32x32x16_bf16 {vr(ACC,16)}, {vr(V+8*t+4*hf,4)}, {vr(S+8*hf,4)}, {'0' if zero else vr(ACC,16)}"
    def e(S, i): return f"v_exp_f32 v{S+i}, v{S+i}" if not opt.get("noexp") else f"v_and_b32 v{S+i}, v{S+i}, v{S+i}\nv_and_b32 v{S+i}, v{S+i}, v{S+i}"
    def c(S, j): return f"v_cvt_pk_bf16_f32 v{S + (j & 3) + 8 * (j >> 2)}, v{S+2*j}, v{S+2*j+1}"
    def half1(S, pv1, qk, pre_qk=()):
        x = [e(S,0), e(S,1)] + pv1 + [e(S,2), e(S,3), c(S,0), e(S,4), e(S,5), c(S,1)] + list(pre_qk) + qk + [e(S,6), e(S,7), c(S,2), e(S,8), c(S,3), e(S,9), e(S,10)]
        for l in x: a(l)
    def half2(S, pv0):
        x = pv0 + [e(S,11), c(S,4), e(S,12), e(S,13), c(S,5), e(S,14), e(S,15), c(S,6), c(S,7)]
        for l in x: a(l)
    load_q()
    a(f"""s_mov_b32 s{sQT}, 0
    s_mov_b32 s{sPEND}, 0
    s_cmp_ge_u32 s{sW}, 4
    s_cbranch_scc1 L_prioB
    s_setprio 2
    s_branch L_prioD""")
    a.label("L_prioB")
    a("s_setprio 1")
    a.label("L_prioD")
    a(f"s_waitcnt vmcnt(16) lgkmcnt(0)")
    a(QK(0, S0))
    a("s_nop 11")
    half1(S0, [], [QK(1, S1)])
    a(".p2align 3")
    a.label("L_atop")
    SS = [S0, S1]
    for t in range(8):
        cur, nxt = SS[t & 1], SS[(t + 1) & 1]
        if t > 0:
            if t < 7:
                half1(cur, [PV(t - 1, 1, nxt)], [QK(t + 1, nxt)])
            else:
                half1(cur, [PV(t - 1, 1, nxt)], [QK(0, nxt)], pre_qk=["s_waitcnt lgkmcnt(0)"])
            if t == 6:
                load_q()
        a(f"s_waitcnt vmcnt({14 - 2 * t})")
        half2(cur, [PV(t, 0, cur, zero=(t == 0))])
        if t == 2:
            a(f"""s_cmp_eq_u32 s{sPEND}, 0
            s_cbranch_scc1 L_nopend
            s_waitcnt vmcnt(0)
            s_mov_b32 s{sPEND}, 0""")
            flag_store(sPOFF, vT)
            a.label("L_nopend")
    a(f"""s_cmp_eq_u32 s{sQT}, 7
    s_cbranch_scc1 L_alast""")
    half1(S0, [PV(7, 1, S1)], [QK(1, S1)])
    a.label("L_flush")
    a(f"""v_add_u32 v{vAD}, s{sOOF}, v{vL8}
    v_cvt_f64_f32 {vr(vT,2)}, v{ACC}""")
    for j in range(8): a(f"v_cvt_f64_f32 {vr(ACC+2*j,2)}, v{ACC+8+j}")
    a(f"""s_mov_b32 exec_hi, 0
    ds_add_f64 v{vAD}, {vr(vT,2)} offset:{B_L}
    s_mov_b32 exec_hi, -1""")
    for j in range(8): a(f"ds_add_f64 v{vAD}, {vr(ACC+2*j,2)} offset:{512*j}")
    a(f"""v_mov_b32 v{vT}, 1
    s_mov_b64 exec, 1
    ds_add_rtn_u32 v{vT+1}, v{vAD}, v{vT} offset:{B_CNT}
    s_mov_b64 exec, -1
    s_cmp_eq_u32 s{sQT}, 6
    s_cbranch_scc0 L_noprio
    s_cmp_ge_u32 s{sW}, 4
    s_cbranch_scc1 L_noprio
    s_setprio 0""")
    a.label("L_noprio")
    if opt.get("qts"):
        a("s_memtime s[96:97]\ns_waitcnt lgkmcnt(0)")
        for i in range(1, 8): a(f"s_mov_b32 s{TS0+2*i}, s{TS0+2*i+2}")
        a(f"s_sub_u32 s{TS0+16}, s96, s{TS0+26}")
    a(f"""s_waitcnt lgkmcnt(0)
    v_readfirstlane_b32 s{sA}, v{vT+1}
    s_nop 0
    s_cmp_lg_u32 s{sA}, 7
    s_cbranch_scc1 L_nofin""")
    for j in range(7, -1, -1): a(f"ds_read_b64 {vr(ACC+2*j,2)}, v{vAD} offset:{512*j}")
    a(f"""v_and_b32 v{vT}, 0xff, v{vL8}
    v_add_u32 v{vT}, s{sOOF}, v{vT}
    ds_read_b64 {vr(vT,2)}, v{vT} offset:{B_L}
    s_mov_b32 s{sD}, 0
    s_waitcnt lgkmcnt(0)""")
    for j in range(7, -1, -1): a(f"v_cvt_f32_f64 v{ACC+8+j}, {vr(ACC+2*j,2)}")
    a(f"v_cvt_f32_f64 v{ACC}, {vr(vT,2)}")
    a.label("L_fin2")
    a(f"""v_lshlrev_b32 v{ACC+2}, 1, v{vL8}
    v_rcp_f32 v{ACC+1}, v{ACC}
    v_mov_b32 v{ACC+3}, 0x76800000
    v_cmp_nle_f32 vcc, 0x0d800000, v{ACC}
    v_cmp_nle_f32 {sr(sM,2)}, v{ACC}, v{ACC+3}""")
    for j in range(8): a(f"v_mul_f32 v{ACC+8+j}, v{ACC+8+j}, v{ACC+1}")
    a(f"""s_or_b64 {sr(sM,2)}, {sr(sM,2)}, vcc
    v_mul_f32 v{ACC+3}, 0, v{ACC+8}""")
    for j in range(1, 8): a(f"v_fma_f32 v{ACC+3}, 0, v{ACC+8+j}, v{ACC+3}")
    for j in range(4): a(f"v_cvt_pk_bf16_f32 v{ACC+4+j}, v{ACC+8+2*j}, v{ACC+9+2*j}")
    a(f"""v_cmp_u_f32 vcc, v{ACC+3}, v{ACC+3}
    s_nop 1
    s_or_b64 {sr(sM,2)}, {sr(sM,2)}, vcc
    s_cmp_lg_u64 {sr(sM,2)}, 0
    s_cselect_b32 s{sB}, 1, 0
    s_cmp_gt_u32 s{sB}, s{sD}
    {"s_nop 0" if opt.get("nofb") else "s_cbranch_scc1 L_fallback"}
    buffer_store_dwordx4 {vr(ACC+4,4)}, v{ACC+2}, {sr(rWS,4)}, s{sOAD} offen sc1
    s_mov_b32 s{sPOFF}, s{sFAD}
    s_mov_b32 s{sPEND}, 1""")
    a.label("L_nofin")
    a(f"""s_add_u32 s{sOOF}, s{sOOF}, {OST}
    s_add_u32 s{sFAD}, s{sFAD}, 8
    s_cmp_eq_u32 s{sQT}, 3
    s_cselect_b32 s{sA}, 29, 1
    s_lshl_b32 s{sA}, s{sA}, 10
    s_add_u32 s{sOAD}, s{sOAD}, s{sA}
    s_add_u32 s{sQT}, s{sQT}, 1
    s_cmp_lt_u32 s{sQT}, 8
    s_cbranch_scc1 L_atop""")
    TS(8)
    a(f"""s_cmp_eq_u32 s{sPEND}, 0
    s_cbranch_scc1 L_adone
    s_waitcnt vmcnt(0)""")
    flag_store(sPOFF, vT)
    a.label("L_adone")
    if opt.get("delay_f1", 0) > 8:
        a(f"v_mov_b32 v4, {GC}\nv_mov_b32 v5, 1\ns_mov_b64 exec, 1\nds_add_u32 v4, v5 offset:{C_ABAR}\ns_mov_b64 exec, -1")
    if ts:
        a(f"s_memtime {sr(TS0+28,2)}\ns_getreg_b32 s{TS0+30}, hwreg(HW_REG_HW_ID)\ns_waitcnt lgkmcnt(0)\ns_sub_u32 s{TS0+28}, s{TS0+28}, s{TS0+26}")
    TS(9)
    ts_dump("A")
    a("s_endpgm")
    a.label("L_alast")
    TS(7)
    a("s_nop 0")
    a(PV(7, 1, S1))
    a("s_nop 11\ns_branch L_flush")

    a.label("L_fallback")
    FQ, FK, FV, FS, FC, FA = K, K + 4, K + 8, K + 16, V, V + 16
    a(f"""s_waitcnt vmcnt(0)
    s_lshl_b32 s{sA}, s{sQT}, 10
    s_add_u32 s{sA}, s{sA}, {QF}
    v_add_u32 v{FA}, s{sA}, v{ACC+2}
    ds_read_b128 {vr(FQ,4)}, v{FA}
    v_mov_b32 v{FA}, v{ACC+2}
    v_lshrrev_b32 v{FA+1}, 9, v{FA}
    v_and_b32 v{FA+2}, 0xf0, v{FA}
    v_lshl_add_u32 v{FA+1}, v{FA+1}, 8, v{FA+2}
    v_mov_b32 v{FA+2}, 0xff800000
    s_mov_b32 s{sA}, 0x3f803f80""")
    for i in range(8): a(f"v_mov_b32 v{FV+i}, s{sA}")
    a(f"s_mov_b32 s{sA}, 0")
    a.label("L_fb1")
    a(f"""buffer_load_dwordx4 {vr(FK,4)}, v{FA}, {sr(rWS,4)}, s{sA} offen sc1
    s_waitcnt vmcnt(0) lgkmcnt(0)
    v_mfma_f32_32x32x16_bf16 {vr(FS,16)}, {vr(FK,4)}, {vr(FQ,4)}, 0
    s_nop 11""")
    maxtree(FS, FA + 3)
    a(f"""v_max_f32 v{FA+2}, v{FA+2}, v{FA+3}
    s_add_u32 s{sA}, s{sA}, 1024
    s_cmp_lt_u32 s{sA}, 0x10000
    s_cbranch_scc1 L_fb1
    v_mov_b32 v{FA+3}, v{FA+2}
    s_nop 1
    v_permlane32_swap_b32 v{FA+2}, v{FA+3}
    v_max_f32 v{FA+2}, v{FA+2}, v{FA+3}""")
    for i in range(16): a(f"v_sub_f32 v{FC+i}, 0, v{FA+2}\nv_mov_b32 v{ACC+i}, 0")
    a(f"s_mov_b32 s{sA}, 0")
    a.label("L_fb2")
    a(f"""s_add_u32 s{sB}, s{sA}, {VF}
    buffer_load_dwordx4 {vr(FK,4)}, v{FA}, {sr(rWS,4)}, s{sA} offen sc1
    s_mov_b32 exec_lo, 0xffff0000
    s_mov_b32 exec_hi, 0xffff0000
    buffer_load_dwordx4 {vr(FV,4)}, v{FA+1}, {sr(rWS,4)}, s{sB} offen sc1
    buffer_load_dwordx4 {vr(FV+4,4)}, v{FA+1}, {sr(rWS,4)}, s{sB} offen offset:512 sc1
    s_mov_b64 exec, -1
    s_waitcnt vmcnt(0)
    v_mfma_f32_32x32x16_bf16 {vr(FS,16)}, {vr(FK,4)}, {vr(FQ,4)}, {vr(FC,16)}
    s_nop 11""")
    for i in range(16): a(e(FS, i))
    a("s_nop 0")
    for j in range(8): a(c(FS, j))
    a(f"""s_nop 1
    v_mfma_f32_32x32x16_bf16 {vr(ACC,16)}, {vr(FV,4)}, {vr(FS,4)}, {vr(ACC,16)}
    v_mfma_f32_32x32x16_bf16 {vr(ACC,16)}, {vr(FV+4,4)}, {vr(FS+8,4)}, {vr(ACC,16)}
    s_add_u32 s{sA}, s{sA}, 1024
    s_cmp_lt_u32 s{sA}, 0x10000
    s_cbranch_scc1 L_fb2
    s_nop 15""")
    v_ones()
    kv_load(vT)
    a(f"""s_waitcnt vmcnt(0)
    s_mov_b32 s{sD}, 1
    s_branch L_fin2""")

    a(".p2align 6")
    a.label("L_gwave")
    gGC, gL16, gSW, gTR = 1, 2, 3, 4
    gH, gR = 5, 6
    a(f"""s_setprio 3
    s_sub_u32 s{sI}, s{sW}, 8
    s_lshr_b32 s{sRT}, s{sI}, 1
    s_and_b32 s{sCT}, s{sI}, 1
    v_lshlrev_b32 v{gL16}, 4, v0
    v_lshrrev_b32 v7, 3, v0
    v_lshrrev_b32 v8, 2, v0
    v_and_b32 v8, 4, v8
    v_and_b32 v9, 7, v0
    v_xor_b32 v8, v8, v9
    v_lshlrev_b32 v8, 4, v8
    v_lshl_add_u32 v{gSW}, v7, 10, v8
    s_cmp_lg_u32 s{sI}, 0
    s_cbranch_scc1 L_gwq""")
    a(f"""s_cmp_eq_u32 s{sCH}, 0
    s_cselect_b32 s{rW}, s{pWK}, s{pWV}
    s_cselect_b32 s{rW+1}, s{pWK+1}, s{pWV+1}
    s_mov_b32 s{rW+2}, 16384
    s_mov_b32 s{rW+3}, 0x20000""")
    for q in range(4):
        a(f"s_mov_b32 m0, {WKV + q * 4096}\ns_mov_b32 s{sA}, {q*4096}")
        for j in range(4): a(f"buffer_load_dwordx4 v{gL16}, {sr(rW,4)}, s{sA} offen offset:{j*1024} lds")
    srd(rT, pDBG, 256)
    a(f"""s_cmp_lg_u32 s2, 0
    s_cbranch_scc1 L_gxb
    v_mov_b32 v10, s{sM}
    v_mov_b32 v11, s{sM+1}
    v_or_b32 v11, 0x80000000, v11
    v_mov_b64 v[12:13], 0
    s_mov_b64 exec, 1
    buffer_atomic_cmpswap_x2 v[10:13], off, {sr(rT,4)}, 0 sc1
    s_mov_b64 exec, -1
    s_branch L_gxb""")
    a.label("L_gwq")
    srd(rW, pWQ, 0x80000)
    a(f"""s_sub_u32 s{sA}, s{sI}, 1
    s_lshl_b32 s{sB}, s{sA}, 13
    s_lshl_b32 s{sC}, s{sG}, 7
    s_add_u32 s{sB}, s{sB}, s{sC}
    s_lshl_b32 s{sA}, s{sA}, 10
    s_add_u32 s{sA}, s{sA}, {RING}""")
    a.label("L_wqloop")
    a(f"""s_mov_b32 m0, s{sA}
    s_add_u32 s{sA}, s{sA}, 3072
    buffer_load_dwordx4 v{gSW}, {sr(rW,4)}, s{sB} offen lds
    s_add_u32 s{sB}, s{sB}, {3*8192}
    s_cmp_lt_u32 s{sA}, {RING + 65536}
    s_cbranch_scc1 L_wqloop""")
    a.label("L_gxb")
    a(f"""v_mov_b32 v{gGC}, {GC}
    v_lshrrev_b32 v{gH}, 5, v0
    v_bfe_u32 v{gR}, v0, 2, 2
    v_and_b32 v7, 3, v0
    v_and_b32 v8, 16, v0
    v_lshlrev_b32 v8, 1, v8
    v_lshl_add_u32 v{gTR}, v7, 3, v8
    s_cmp_lg_u32 s{sI}, 0
    s_cbranch_scc1 L_gb1""")
    WF, XF, DD = 32, 96, 160
    a(f"""v_and_b32 v7, 15, v0
    v_lshrrev_b32 v8, 4, v0
    v_lshlrev_b32 v9, 3, v7
    v_lshl_add_u32 v9, v8, 8, v9
    v_add_u32 v9, {WKV}, v9
    s_lshl_b32 s{sA}, s{sKG}, 14
    v_xor_b32 v10, v7, v8
    v_lshlrev_b32 v10, 4, v10
    v_lshl_add_u32 v10, v7, 10, v10
    v_add_u32 v10, s{sA}, v10
    v_xor_b32 v11, 64, v10
    v_xor_b32 v12, 0x80, v10
    v_xor_b32 v13, 0xc0, v10
    s_waitcnt vmcnt(0)
    buffer_load_dwordx2 v[14:15], off, {sr(rT,4)}, 0 sc1""")
    for ks in range(16):
        a(f"ds_read_b64_tr_b16 {vr(WF+4*ks,2)}, v9 offset:{ks*1024}\nds_read_b64_tr_b16 {vr(WF+4*ks+2,2)}, v9 offset:{ks*1024+128}")
    a(f"""s_cmp_eq_u32 s{sCH}, 0
    s_cselect_b32 s{sB}, 9, 8
    s_cselect_b32 s{sC}, 8, 9
    s_cselect_b32 s{sD}, {KF}, {VF}
    v_and_b32 v16, 1, v8
    v_lshlrev_b32 v16, s{sB}, v16
    v_lshrrev_b32 v17, 1, v8
    v_lshl_add_u32 v16, v17, 3, v16
    v_lshl_add_u32 v16, v7, 4, v16
    s_and_b32 s{sA}, s{sKG}, 1
    s_lshl_b32 s{sA}, s{sA}, s{sC}
    s_add_u32 s{sD}, s{sD}, s{sA}
    s_lshl_b32 s{sA}, s{sRB}, 1
    s_lshr_b32 s{sB}, s{sKG}, 1
    s_add_u32 s{sA}, s{sA}, s{sB}
    s_lshl_b32 s{sA}, s{sA}, 10
    s_add_u32 s{sD}, s{sD}, s{sA}
    s_waitcnt lgkmcnt(0)""")
    TS(1)
    a("s_barrier")
    TS(2)
    for ks in range(16):
        a(f"ds_read_b128 {vr(XF+4*ks,4)}, v{10+(ks&3)} offset:{(ks>>2)*256}")
    a(f"""s_cmp_eq_u32 s{sCH}, 0
    s_cbranch_scc0 L_vchain""")
    for nm, sw in (("k", False), ("v", True)):
        if sw: a.label("L_vchain")
        for ks in range(16):
            A_, B_ = (XF, WF) if sw else (WF, XF)
            if ks % 4 == 0: a(f"s_waitcnt lgkmcnt({12 - ks})")
            a(f"v_mfma_f32_16x16x32_bf16 {vr(DD,4)}, {vr(A_+4*ks,4)}, {vr(B_+4*ks,4)}, {'0' if ks == 0 else vr(DD,4)}")
        if not sw: a("s_branch L_kvst")
    a.label("L_kvst")
    a(f"""s_lshl_b32 s{sA}, s{sRB}, 3
    s_add_u32 s{sA}, s{sA}, s{sG}
    s_lshl_b32 s{sA}, s{sA}, 7
    s_add_u32 s{sA}, s{sA}, {FLG_KV}
    s_nop 3
    v_cvt_pk_bf16_f32 v18, v{DD}, v{DD+1}
    v_cvt_pk_bf16_f32 v19, v{DD+2}, v{DD+3}
    buffer_store_dwordx2 v[18:19], v16, {sr(rWS,4)}, s{sD} offen sc1
    s_mov_b32 s{sCAP}, 0""")
    a.label("L_epoch")
    a(f"""s_waitcnt vmcnt(0)
    v_readfirstlane_b32 s{sEP}, v14
    v_readfirstlane_b32 s{sEP+1}, v15
    s_add_u32 s{sCAP}, s{sCAP}, 1
    s_cmp_gt_u32 s{sCAP}, {SPIN_CAP}
    s_cbranch_scc1 L_epochok
    s_cmp_lg_u32 s{sEP+1}, 0
    s_cbranch_scc1 L_epochok
    buffer_load_dwordx2 v[14:15], off, {sr(rT,4)}, 0 sc1
    s_branch L_epoch""")
    a.label("L_epochok")
    a(f"""s_mov_b64 exec, 1
    buffer_store_dwordx2 v[14:15], off, {sr(rWS,4)}, s{sA} sc1
    ds_write_b64 v{gGC}, v[14:15] offset:{C_EPOCH}
    s_mov_b64 exec, -1
    s_waitcnt lgkmcnt(0)""")
    TS(3)
    a("s_branch L_gb2")
    a.label("L_gb1")
    a("s_barrier\ns_waitcnt vmcnt(0)")
    a.label("L_gb2")
    AC = [136, 104, 120, 88]
    XB = 152
    vB1 = 8
    srd(rT, pB2, 1024)
    a(f"""v_and_b32 v7, 31, v0
    v_lshlrev_b32 v16, 3, v{gH}
    v_lshl_add_u32 v17, v7, 10, v16
    s_lshl_b32 s{sA}, s{sG}, 7
    s_lshl_b32 s{sB}, s{sCT}, 6
    s_add_u32 s{sA}, s{sA}, s{sB}
    s_lshl_b32 s{sB}, s{sRB}, 16
    s_lshl_b32 s{sC}, s{sRT}, 15
    s_add_u32 s{sB}, s{sB}, s{sC}
    s_add_u32 s{sB}, s{sB}, s{sA}""")
    for q in range(4): a(f"buffer_load_dwordx2 {vr(XB+2*q,2)}, v17, {sr(rX,4)}, s{sB} offen offset:{16*q}")
    for q in range(4): a(f"buffer_load_dwordx2 {vr(XB+8+2*q,2)}, v16, {sr(rT,4)}, s{sA} offen offset:{16*q}")
    sT1, sT2, sNG = 0, 1, sE
    a(f"""s_lshl_b32 s{sT1}, s{sG}, 2
    s_add_u32 s{sT1}, s{sT1}, s{sI}
    s_sub_u32 s{sT2}, 3, s{sI}
    s_lshl_b32 s{sT2}, s{sT2}, 3
    s_add_u32 s{sT2}, s{sT2}, s{sG}
    s_add_u32 s{sT2}, s{sT2}, 32
    s_cmp_lt_u32 s{sT2}, 43
    s_cselect_b32 s{sNG}, 16, 8
    s_nop 0""")
    srd(rT, pB1, W1P)
    a(f"""v_lshlrev_b32 v16, 1, v7
    s_lshl_b32 s{sA}, s{sT1}, 6
    s_lshl_b32 s{sB}, s{sT2}, 6
    buffer_load_ushort v{vB1}, v16, {sr(rT,4)}, s{sA} offen
    buffer_load_ushort v{vB1+6}, v16, {sr(rT,4)}, s{sB} offen""")
    gXA, gXT, gWA = 15, 16, 17
    a(f"""v_and_b32 v18, 15, v0
    v_xor_b32 v18, v18, v{gH}
    v_lshlrev_b32 v18, 4, v18
    v_lshl_add_u32 v{gXA}, v7, 10, v18
    v_lshrrev_b32 v18, 1, v{gR}
    v_xor_b32 v18, s{sCT}, v18
    v_lshl_add_u32 v19, v18, 6, v{gTR}
    v_lshl_add_u32 v19, v{gR}, 7, v19
    v_lshl_add_u32 v{gWA}, v{gH}, 10, v19
    v_add_u32 v{gWA}, {RING}, v{gWA}
    s_lshl_b32 s{sC}, s{sRT}, 15
    v_add_u32 v18, s{sC}, v{gXA}
    s_barrier""")
    TS(4)
    a(f"ds_read_b64 v[20:21], v{gGC} offset:{C_EPOCH}")
    QA = 104
    BUF = [24, 56]
    def q_reads(bf):
        for b in range(4):
            a(f"ds_read_b64_tr_b16 {vr(bf+8*b,2)}, v{gWA} offset:{b*16384}\nds_read_b64_tr_b16 {vr(bf+8*b+2,2)}, v{gWA} offset:{b*16384+512}")
            a(f"ds_read_b128 {vr(bf+8*b+4,4)}, v{gXT} offset:{b*256}")
    a(f"v_mov_b32 v{gXT}, v18")
    q_reads(BUF[0])
    for i in range(16): a(f"v_mov_b32 v{QA+i}, 0")
    a(f"s_mov_b32 s{sA}, 0")
    a.label("L_qloop")
    for p in range(2):
        a(f"""s_add_u32 s{sA}, s{sA}, 32
        v_add_u32 v{gWA}, 2048, v{gWA}
        v_xor_b32 v{gXT}, s{sA}, v18
        s_waitcnt lgkmcnt(0)""")
        q_reads(BUF[1 - p])
        for b in range(4):
            a(f"v_mfma_f32_32x32x16_bf16 {vr(QA,16)}, {vr(BUF[p]+8*b,4)}, {vr(BUF[p]+8*b+4,4)}, {vr(QA,16)}")
    a(f"""s_cmp_lt_u32 s{sA}, 256
    s_cbranch_scc1 L_qloop
    v_readfirstlane_b32 s{sEP}, v20
    v_readfirstlane_b32 s{sEP+1}, v21
    s_lshl_b32 s{sA}, s{sRT}, 2
    s_lshl_b32 s{sB}, s{sCT}, 1
    s_add_u32 s{sA}, s{sA}, s{sB}
    s_lshl_b32 s{sA}, s{sA}, 10
    s_add_u32 s{sA}, s{sA}, {QF}
    v_add_u32 v20, s{sA}, v{gL16}
    s_mov_b32 s{sM}, 0x3eb8aa3b
    s_mov_b32 s{sM+1}, 0x3eb8aa3b
    v_mov_b32 v21, 1
    s_nop 1""")
    for j in range(8): a(f"v_pk_mul_f32 {vr(QA+2*j,2)}, {vr(QA+2*j,2)}, {sr(sM,2)}")
    for j in range(8): a(f"v_cvt_pk_bf16_f32 v{QA+j}, v{QA+2*j}, v{QA+2*j+1}")
    a(f"""ds_write_b128 v20, {vr(QA,4)}
    ds_write_b128 v20, {vr(QA+4,4)} offset:1024
    s_mov_b64 exec, 1
    ds_add_u32 v{gGC}, v21 offset:{C_QREADY}
    s_mov_b64 exec, -1""")
    TS(5)
    gV1 = 20
    sRNG = 35
    srd(rW, pW1, 512 * W1P)
    a(f"""v_lshrrev_b32 v7, 2, v0
    v_and_b32 v18, 3, v0
    v_mul_u32_u24 v7, {W1P}, v7
    v_lshl_add_u32 v{gV1}, v18, 4, v7
    v_add_u32 v{gV1+1}, {128*W1P-1024}, v{gV1}
    v_add_u32 v{gV1+2}, {2*(128*W1P-1024)}, v{gV1}
    v_add_u32 v{gV1+3}, {3*(128*W1P-1024)}, v{gV1}
    s_mul_i32 s{sRNG}, s{sI}, {RSZ}
    s_add_u32 s{sRNG}, s{sRNG}, {RING}
    v_lshl_add_u32 v18, v{gR}, 6, v{gTR}
    v_lshl_add_u32 v18, v{gH}, 9, v18
    v_add_u32 v18, s{sRNG}, v18""")
    lds_spin(C_QREADY, 4, gGC, 7, sleep=0)
    if opt.get("delay_f1"): lds_spin(C_ABAR, opt["delay_f1"], gGC, 7, sleep=8)
    sN, sSO = sA, sB
    def w1_dma(slot_sreg):
        a(f"s_mov_b32 m0, s{slot_sreg}\ns_nop 0")
        for b in range(4): a(f"buffer_load_dwordx4 v{gV1+b}, {sr(rW,4)}, s{sSO} offen offset:{b*1024} lds")
    a(f"s_lshl_b32 s{sSO}, s{sT1}, 6\ns_mov_b32 s{sC}, s{sRNG}")
    for n in range(3):
        w1_dma(sC)
        a(f"s_add_u32 s{sSO}, s{sSO}, {16*W1P}\ns_add_u32 s{sC}, s{sC}, 4096")
    a(f"s_waitcnt vmcnt(12)\ns_mov_b32 s{sD}, 0xffff0000")
    for j in range(8):
        a(f"v_lshlrev_b32 v{AC[0]+2*j}, 16, v{XB+j}\nv_and_b32 v{AC[0]+2*j+1}, s{sD}, v{XB+j}")
        a(f"v_lshlrev_b32 v24, 16, v{XB+8+j}\nv_and_b32 v25, s{sD}, v{XB+8+j}")
        a(f"v_pk_add_f32 {vr(AC[0]+2*j,2)}, {vr(AC[0]+2*j,2)}, v[24:25]")
    a(f"""v_mov_b32 v{vB1+1}, 0
    v_sub_u32 v{vB1+2}, 1, v{gH}
    v_mul_u32_u24 v{vB1+2}, 0x3f80, v{vB1+2}
    v_mov_b32 v{vB1+3}, 0
    v_mov_b32 v{vB1+4}, 0
    v_mov_b32 v{vB1+5}, 0""")
    H0, H1 = 104, 120
    FB = [24, 56]
    FX = [88, 152]
    def f1_reads(p):
        for b in range(4):
            a(f"ds_read_b64_tr_b16 {vr(FB[p]+8*b,2)}, v{gWA} offset:{b*1024}\nds_read_b64_tr_b16 {vr(FB[p]+8*b+2,2)}, v{gWA} offset:{b*1024+256}")
            a(f"ds_read_b128 {vr(FB[p]+8*b+4,4)}, v{gXT} offset:{b*256}\nds_read_b128 {vr(FX[p]+4*b,4)}, v{gXT} offset:{b*256+32768}")
    def bias():
        a(f"v_mfma_f32_32x32x16_bf16 {vr(H0,16)}, {vr(vB1,4)}, {vr(vB1+2,4)}, 0\nv_mfma_f32_32x32x16_bf16 {vr(H1,16)}, {vr(vB1,4)}, {vr(vB1+2,4)}, 0")
    a(f"""v_mov_b32 v{gWA}, v18
    v_mov_b32 v{gXT}, v{gXA}
    s_mov_b32 s{sN}, 0
    s_mov_b32 s{sM}, 0
    s_waitcnt vmcnt(8)""")
    f1_reads(0)
    bias()
    a.label("L_f1loop")
    for p in range(2):
        a(f"""s_add_u32 s{sC}, s{sM}, s{sRNG}
        s_add_u32 s{sM}, s{sM}, 4096
        s_cmp_lt_u32 s{sM}, {RSZ}
        s_cselect_b32 s{sM}, s{sM}, 0
        s_add_u32 s{sN}, s{sN}, 1
        v_add_u32 v{gWA}, s{sM}, v18
        s_and_b32 s{sD}, s{sN}, 7
        s_lshl_b32 s{sD}, s{sD}, 5
        v_xor_b32 v{gXT}, s{sD}, v{gXA}""")
        if p == 1:
            a(f"""s_lshl_b32 s{sD}, s{sT2}, 6
            s_cmp_eq_u32 s{sN}, 6
            s_cselect_b32 s{sSO}, s{sD}, s{sSO}
            s_add_u32 s{sD}, s{sN}, 2
            s_cmp_lt_u32 s{sD}, s{sNG}
            s_cselect_b32 s{rW+2}, s{rW+2}, 0""")
        a("s_waitcnt vmcnt(4) lgkmcnt(0)")
        f1_reads(1 - p)
        w1_dma(sC)
        a(f"s_add_u32 s{sSO}, s{sSO}, {16*W1P}")
        for b in range(4):
            a(f"v_mfma_f32_32x32x16_bf16 {vr(H0,16)}, {vr(FB[p]+8*b,4)}, {vr(FB[p]+8*b+4,4)}, {vr(H0,16)}")
            a(f"v_mfma_f32_32x32x16_bf16 {vr(H1,16)}, {vr(FB[p]+8*b,4)}, {vr(FX[p]+4*b,4)}, {vr(H1,16)}")
    a(f"""s_and_b32 s{sD}, s{sN}, 7
    s_cbranch_scc1 L_f1loop
    s_mul_i32 s{sD}, s{sRB}, 86
    s_lshl_b32 s{sC}, s{sT1}, 1
    s_add_u32 s{sD}, s{sD}, s{sC}
    s_lshl_b32 s{sD}, s{sD}, 11
    s_add_u32 s{sD}, s{sD}, {HF}
    s_mov_b32 s{sT1}, s{sT2}
    v_mov_b32 v{vB1}, v{vB1+6}
    s_nop 3""")
    for rt, Hh in enumerate((H0, H1)):
        for j in range(16): a(f"v_max_f32 v{Hh+j}, 0, v{Hh+j}")
        for j in range(8): a(f"v_pk_mul_f32 {vr(Hh+2*j,2)}, {vr(Hh+2*j,2)}, {vr(Hh+2*j,2)}")
        for j in range(8): a(f"v_cvt_pk_bf16_f32 v{Hh+j}, v{Hh+2*j}, v{Hh+2*j+1}")
        for s_ in range(2):
            a(f"buffer_store_dwordx4 {vr(Hh+4*s_,4)}, v{gL16}, {sr(rWS,4)}, s{sD} offen offset:{s_*2048+rt*1024} sc1")
    a("s_nop 1")
    bias()
    a(f"""s_cmp_lt_u32 s{sN}, s{sNG}
    s_cbranch_scc1 L_f1loop
    v_mov_b32 v7, 1
    s_waitcnt vmcnt(0) lgkmcnt(0)
    s_mov_b64 exec, 1
    ds_add_rtn_u32 v24, v{gGC}, v7 offset:{C_HDONE}
    s_mov_b64 exec, -1
    s_lshl_b32 s{sD}, s{sRB}, 3
    s_add_u32 s{sC}, s{sD}, s{sG}
    s_lshl_b32 s{sC}, s{sC}, 7
    s_add_u32 s{sC}, s{sC}, {FLG_H}
    s_waitcnt lgkmcnt(0)
    v_readfirstlane_b32 s{sA}, v24
    s_nop 0
    s_cmp_lg_u32 s{sA}, 3
    s_cbranch_scc1 L_nohflag""")
    flag_store(sC, 24)
    a.label("L_nohflag")
    TS(6)
    sK0, sK1, sSW, sSH = 0, 1, sB, sC
    a(f"""s_mul_i32 s{sK0}, s{sI}, 22
    s_cmp_eq_u32 s{sI}, 3
    s_cselect_b32 s{sA}, 20, 22
    s_add_u32 s{sK1}, s{sK0}, s{sA}
    s_mov_b32 s{rW}, s{pW2}
    s_mov_b32 s{rW+1}, s{pW2+1}
    s_lshl_b32 s{rW+2}, s{sK1}, 14
    s_mov_b32 s{rW+3}, 0x20000
    s_lshl_b32 s{sSW}, s{sK0}, 14
    s_lshl_b32 s{sA}, s{sG}, 7
    s_add_u32 s{sSW}, s{sSW}, s{sA}
    v_add_u32 v7, {8192-1024}, v{gSW}""")
    gSW2 = 7
    def w2_dma(u):
        a(f"""s_add_u32 m0, s{sRNG}, {u*2048}
        s_nop 0
        buffer_load_dwordx4 v{gSW}, {sr(rW,4)}, s{sSW} offen lds
        buffer_load_dwordx4 v{gSW2}, {sr(rW,4)}, s{sSW} offen offset:1024 lds
        s_add_u32 s{sSW}, s{sSW}, 16384""")
    D2 = RSZ // 2048
    for u in range(D2): w2_dma(u)
    lds_spin(C_HDONE, 4, gGC, 24, sleep=2)
    srd(rT, pWO, 0x80000)
    a(f"""s_lshl_b32 s{sA}, s{sI}, 14
    s_lshl_b32 s{sC}, s{sI}, 17
    s_lshl_b32 s{sD}, s{sG}, 7
    s_add_u32 s{sC}, s{sC}, s{sD}
    s_add_u32 s{sD}, s{sA}, 16384""")
    a.label("L_woloop")
    a(f"""s_mov_b32 m0, s{sA}
    s_add_u32 s{sA}, s{sA}, 2048
    buffer_load_dwordx4 v{gSW}, {sr(rT,4)}, s{sC} offen lds
    buffer_load_dwordx4 v{gSW2}, {sr(rT,4)}, s{sC} offen offset:1024 lds
    s_add_u32 s{sC}, s{sC}, 16384
    s_cmp_lt_u32 s{sA}, s{sD}
    s_cbranch_scc1 L_woloop""")
    gA0, gA1, gHO0, gHO1, gFL = 8, 9, 10, 11, 12
    a(f"""v_lshl_add_u32 v19, v{gH}, 9, v19
    v_add_u32 v{gA0}, s{sRNG}, v19
    v_xor_b32 v{gA1}, 64, v{gA0}
    s_lshl_b32 s{sA}, s{sRT}, 10
    v_add_u32 v{gHO0}, s{sA}, v{gL16}
    v_xor_b32 v{gHO1}, 0x400, v{gHO0}
    v_and_b32 v{gFL}, 7, v0
    v_lshlrev_b32 v{gFL}, 7, v{gFL}
    s_lshl_b32 s{sA}, s{sRB}, 10
    s_add_u32 s{sA}, s{sA}, {FLG_H}""")
    for j in range(1, 4):
        for i in range(16): a(f"v_mov_b32 v{AC[j]+i}, 0")
    flag_poll(gFL, sA, 24)
    TS(7)
    a(f"""s_mul_i32 s{sA}, s{sRB}, 86
    s_add_u32 s{sSH}, s{sA}, s{sK0}
    s_lshl_b32 s{sSH}, s{sSH}, 11
    s_add_u32 s{sSH}, s{sSH}, {HF}
    s_add_u32 s{sA}, s{sA}, s{sK1}
    s_lshl_b32 s{sA}, s{sA}, 11
    s_mov_b32 s{rT}, s{pWS}
    s_mov_b32 s{rT+1}, s{pWS+1}
    s_add_u32 s{rT+2}, s{sA}, {HF}
    s_mov_b32 s{rT+3}, 0x20000""")
    HR = 24
    AF = [152, 160]
    def h_load(u):
        a(f"""buffer_load_dwordx4 {vr(HR+8*u,4)}, v{gHO0}, {sr(rT,4)}, s{sSH} offen sc1
        buffer_load_dwordx4 {vr(HR+8*u+4,4)}, v{gHO1}, {sr(rT,4)}, s{sSH} offen sc1
        s_add_u32 s{sSH}, s{sSH}, 2048""")
    def a_reads(u, p):
        for d, ga in enumerate((gA0, gA1)):
            a(f"ds_read_b64_tr_b16 {vr(AF[p]+4*d,2)}, v{ga} offset:{u*2048}\nds_read_b64_tr_b16 {vr(AF[p]+4*d+2,2)}, v{ga} offset:{u*2048+1024}")
    for u in range(D2): h_load(u)
    a_reads(0, 0)
    a("s_waitcnt vmcnt(0)")
    a.label("L_f2loop")
    for u in range(D2):
        p = u & 1
        a(f"s_waitcnt vmcnt({4*(D2-2)}) lgkmcnt(0)")
        a_reads((u + 1) % D2, 1 - p)
        for j in range(4):
            a(f"v_mfma_f32_32x32x16_bf16 {vr(AC[j],16)}, {vr(AF[p]+4*(j&1),4)}, {vr(HR+8*u+4*(j>>1),4)}, {vr(AC[j],16)}")
        w2_dma(u)
        h_load(u)
        a(f"s_add_u32 s{sK0}, s{sK0}, 1\ns_cmp_ge_u32 s{sK0}, s{sK1}")
        a("s_cbranch_scc1 L_f2done" if u < D2 - 1 else "s_cbranch_scc0 L_f2loop")
    a.label("L_f2done")
    TS(8)
    a(f"""v_add_u32 v13, s{sRNG}, v{gL16}
    v_mov_b32 v14, 1
    s_waitcnt vmcnt(0) lgkmcnt(0)
    s_nop 7""")
    for j in range(1, 4):
        for q in range(4): a(f"ds_write_b128 v13, {vr(AC[j]+4*q,4)} offset:{(j-1)*4096+q*1024}")
    a(f"""s_mov_b64 exec, 1
    ds_add_u32 v{gGC}, v14 offset:{C_GBAR}
    s_mov_b64 exec, -1""")
    lds_spin(C_GBAR, 4, gGC, 14, sleep=1)
    for j in range(1, 4):
        a(f"s_xor_b32 s{sA}, s{sI}, {j}\ns_mul_i32 s{sA}, s{sA}, {RSZ}\ns_add_u32 s{sA}, s{sA}, {RING}\nv_add_u32 v14, s{sA}, v{gL16}")
        for q in range(4): a(f"ds_read_b128 {vr(AC[j]+4*q,4)}, v14 offset:{(j-1)*4096+q*1024}")
    for j in range(1, 4):
        a(f"s_waitcnt lgkmcnt({(3-j)*4})")
        for q in range(8): a(f"v_pk_add_f32 {vr(AC[0]+2*q,2)}, {vr(AC[0]+2*q,2)}, {vr(AC[j]+2*q,2)}")
    TS(9)
    WOF, OFR = 24, 56
    sJ, sFO, sOO = 0, 1, sB
    a(f"""s_lshl_b32 s{sFO}, s{sRB}, 10
    s_lshl_b32 s{sA}, s{sRT}, 5
    s_add_u32 s{sFO}, s{sFO}, s{sA}
    s_add_u32 s{sFO}, s{sFO}, {FLG_O}
    s_lshl_b32 s{sOO}, s{sRB}, 1
    s_add_u32 s{sOO}, s{sOO}, s{sRT}
    s_lshl_b32 s{sOO}, s{sOO}, 15
    s_add_u32 s{sOO}, s{sOO}, {OF}
    s_mov_b32 s{sJ}, 0""")
    a.label("L_oloop")
    for gp in range(8):
        a(f"ds_read_b64_tr_b16 {vr(WOF+4*gp,2)}, v19 offset:{gp*8192}\nds_read_b64_tr_b16 {vr(WOF+4*gp+2,2)}, v19 offset:{gp*8192+1024}")
    flag_poll(gFL, sFO, 14, sleep=2)
    a(f"s_mov_b32 s{sA}, s{sOO}")
    for gp in range(8):
        a(f"buffer_load_dwordx4 {vr(OFR+4*gp,4)}, v{gL16}, {sr(rWS,4)}, s{sA} offen sc1\ns_add_u32 s{sA}, s{sA}, 4096")
    a(f"""v_add_u32 v19, 2048, v19
    s_add_u32 s{sFO}, s{sFO}, 8
    s_add_u32 s{sOO}, s{sOO}, 1024
    s_add_u32 s{sJ}, s{sJ}, 1
    s_waitcnt lgkmcnt(0)""")
    for gp in range(8):
        a(f"s_waitcnt vmcnt({7-gp})\nv_mfma_f32_32x32x16_bf16 {vr(AC[0],16)}, {vr(WOF+4*gp,4)}, {vr(OFR+4*gp,4)}, {vr(AC[0],16)}")
    a(f"""s_cmp_lt_u32 s{sJ}, 4
    s_cbranch_scc1 L_oloop""")
    TS(10)
    srd(rT, pOUT, 0x200000)
    a(f"""v_and_b32 v7, 31, v0
    v_lshlrev_b32 v16, 3, v{gH}
    v_lshl_add_u32 v17, v7, 10, v16
    s_lshl_b32 s{sA}, s{sG}, 7
    s_lshl_b32 s{sB}, s{sCT}, 6
    s_add_u32 s{sA}, s{sA}, s{sB}
    s_lshl_b32 s{sB}, s{sRB}, 16
    s_lshl_b32 s{sC}, s{sRT}, 15
    s_add_u32 s{sB}, s{sB}, s{sC}
    s_add_u32 s{sB}, s{sB}, s{sA}""")
    for j in range(8): a(f"v_cvt_pk_bf16_f32 v{AC[0]+j}, v{AC[0]+2*j}, v{AC[0]+2*j+1}")
    for q in range(4): a(f"buffer_store_dwordx2 {vr(AC[0]+2*q,2)}, v17, {sr(rT,4)}, s{sB} offen offset:{16*q}")
    if ts:
        a("s_waitcnt vmcnt(0)")
    TS(11)
    if opt.get("padto"):
        a.label("L_pad")
        a(f"s_memrealtime s[96:97]\ns_waitcnt lgkmcnt(0)\ns_sub_u32 s96, s96, s{sEP}\ns_cmp_lt_u32 s96, {opt['padto']}\ns_cbranch_scc1 L_pad")
    ts_dump("G")
    a.label("L_end")
    a("s_endpgm")

    probs = lint(a.lines)
    for p in probs: print("LINT", p, file=sys.stderr)
    head = f"""; fused layernorm + MQA attention + squared-relu FFN, one persistent launch (generated by gen/gen.py)
; @launch grid=(256,1,1) block=(768,1,1) lds=163840
.amdgcn_target "amdgcn-amd-amdhsa--gfx950"
.text
.globl {NAME}_kernel
.p2align 8
.type {NAME}_kernel,@function
{NAME}_kernel:
"""
    tail = f""".section .rodata,"a"
.p2align 6
.amdhsa_kernel {NAME}_kernel
  .amdhsa_next_free_vgpr 168
  .amdhsa_next_free_sgpr 100
  .amdhsa_accum_offset 168
  .amdhsa_group_segment_fixed_size 0
  .amdhsa_kernarg_size 104
  .amdhsa_user_sgpr_count 2
  .amdhsa_user_sgpr_kernarg_segment_ptr 1
  .amdhsa_system_sgpr_workgroup_id_x 1
.end_amdhsa_kernel
"""
    return head + a.text() + tail

if __name__ == "__main__":
    open("k.s", "w").write(gen(False))
    open("k_ts.s", "w").write(gen(True))
    open("k_ts_d.s", "w").write(gen(True, dict(delay_f1=16)))
    open("k_ts_q.s", "w").write(gen(True, dict(delay_f1=16, qts=1)))
    open("k_pad.s", "w").write(gen(False, dict(padto=6000)))
```

```python
import re

class Asm:
    def __init__(self):
        self.lines = []
        self.uid = 0
    def __call__(self, s):
        for l in s.strip("\n").split("\n"):
            l = l.strip()
            if l:
                self.lines.append(l)
    def label(self, name):
        self.lines.append(name + ":")
    def newlabel(self, base="L"):
        self.uid += 1
        return f"{base}_{self.uid}"
    def comment(self, s):
        self.lines.append("; " + s)
    def text(self):
        out = []
        for l in self.lines:
            if l.endswith(":") or l.startswith("."):
                out.append(l)
            else:
                out.append("    " + l)
        return "\n".join(out) + "\n"

def vr(a, n=1):
    return f"v{a}" if n == 1 else f"v[{a}:{a+n-1}]"
def sr(a, n=1):
    return f"s{a}" if n == 1 else f"s[{a}:{a+n-1}]"

_reg = re.compile(r"(?<![\w.])([vsa])(?:(\d+)|\[(\d+):(\d+)\])(?![\w])")
def regs_of(tok):
    out = []
    for m in _reg.finditer(tok):
        k = m.group(1)
        if m.group(2) is not None:
            out.append((k, int(m.group(2))))
        else:
            out += [(k, i) for i in range(int(m.group(3)), int(m.group(4)) + 1)]
    t = tok.strip()
    if t in ("vcc",): out += [("s", 106), ("s", 107)]
    if t == "exec": out += [("s", 126), ("s", 127)]
    if t == "m0": out.append(("s", 124))
    return out

TRANS = ("v_exp_f32", "v_log_f32", "v_rcp_f32", "v_rsq_f32", "v_sqrt_f32", "v_sin_f32", "v_cos_f32")

class Ins:
    def __init__(self, line):
        self.line = line
        l = line.split(";")[0].strip()
        p = l.split(None, 1)
        self.op = p[0]
        rest = p[1] if len(p) > 1 else ""
        ops, depth, cur = [], 0, ""
        for ch in rest:
            if ch == "[": depth += 1
            if ch == "]": depth -= 1
            if ch == "," and depth == 0:
                ops.append(cur.strip()); cur = ""
            else:
                cur += ch
        if cur.strip(): ops.append(cur.strip())
        self.mods = ""
        if ops:
            q = ops[-1].split(None, 1)
            if len(q) > 1 and not self.op.startswith("s_waitcnt"):
                ops[-1] = q[0]; self.mods = q[1]
        self.ops = ops
        op = self.op
        self.is_mfma = op.startswith("v_mfma") or op.startswith("v_smfmac")
        self.is_valu = op.startswith("v_") and not self.is_mfma
        self.is_trans = any(op.startswith(t) for t in TRANS)
        self.is_ds = op.startswith("ds_")
        self.is_vmem = op.startswith("buffer_") or op.startswith("global_")
        self.is_salu = op.startswith("s_")
        self.is_dpp = "_dpp" in op or "quad_perm" in self.mods or "row_" in self.mods
        self.is_perml = op.startswith("v_permlane")
        self.is_rl = op.startswith("v_readlane") or op.startswith("v_readfirstlane")
        self.is_dma = self.is_vmem and re.search(r"\blds\b", self.mods) is not None
        d, u = [], []
        R = [regs_of(o) for o in ops]
        if self.is_mfma:
            d = R[0]; self.A = R[1]; self.B = R[2]; self.C = R[3]; u = R[1] + R[2] + R[3]
            if op.startswith("v_smfmac"):
                self.B = R[2] + R[3]; self.C = R[0]; u = u + R[0]
            self.passes = 8 if "32x32" in op else 4
            self.sgemm = op.endswith("_f32") and "bf16" not in op
        elif self.is_valu:
            if self.is_perml:
                d = R[0] + R[1]; u = R[0] + R[1]
            elif op.startswith("v_cmp"):
                d = R[0]; u = sum(R[1:], [])
                if op.startswith("v_cmpx"): d = d + [("s",126),("s",127)]
            elif op.startswith(("v_add_co", "v_sub_co", "v_addc_co", "v_subb_co")):
                d = R[0] + R[1]; u = sum(R[2:], [])
            else:
                d = R[0]; u = sum(R[1:], [])
                if op.startswith(("v_fmac", "v_dot2c", "v_writelane")) or self.is_dpp: u = u + R[0]
        elif self.is_ds:
            if "read" in op or "_rtn" in op or "permute" in op or "swizzle" in op:
                d = R[0]; u = sum(R[1:], [])
            else:
                u = sum(R, [])
        elif self.is_vmem:
            if "load" in op and not self.is_dma:
                d = R[0]; u = sum(R[1:], [])
            else:
                u = sum(R, [])
            self.store_data = R[0] if "store" in op and op.startswith("buffer") else (R[1] if "store" in op else [])
        elif self.is_salu:
            if op.startswith(("s_cmp", "s_cbranch", "s_branch", "s_waitcnt", "s_nop", "s_barrier", "s_sleep", "s_setprio", "s_endpgm", "s_bitcmp")):
                u = sum(R, [])
            else:
                d = R[0] if R else []; u = sum(R[1:], [])
                if "saveexec" in op: d = d + [("s",126),("s",127)]
        self.d = set(d); self.u = set(u)
        self.states = 1
        if op == "s_nop": self.states = int(ops[0], 0) + 1

def need(p, c):
    n = 0
    vd = {r for r in p.d if r[0] in "va"}
    sd = {r for r in p.d if r[0] == "s"}
    if p.is_valu:
        if c.is_mfma and vd & c.u: n = max(n, 2)
        if p.is_trans and c.is_valu and not c.is_trans and vd & c.u: n = max(n, 1)
        if p.is_trans and (c.is_ds or c.is_vmem or c.is_trans) and vd & c.u: n = max(n, 1)
        if c.is_dpp and vd & c.u: n = max(n, 2)
        if c.is_perml and vd & c.u: n = max(n, 2)
        if c.is_rl and vd & c.u: n = max(n, 1)
        if c.is_vmem and sd & c.u: n = max(n, 5)
        if c.is_valu and sd & c.u and not (sd & c.u) <= {("s",126),("s",127)}: n = max(n, 4 if c.is_rl else 2)
        if c.is_valu and c.op.startswith("v_cndmask") and sd & c.u: n = max(n, 2)
        if ("s",126) in sd:
            if c.is_dpp: n = max(n, 5)
            if c.is_rl or c.is_perml or c.is_mfma: n = max(n, 4)
        if c.is_salu and sd & c.u: n = max(n, 1)
    if p.op.startswith("v_dot"):
        if c.op == p.op:
            srcab = set(regs_of(c.ops[1]) + regs_of(c.ops[2]))
            if vd & srcab: n = max(n, 3)
        elif vd & (c.u | c.d): n = max(n, 3)
    if p.is_mfma:
        big = 12 if p.passes == 8 else 8
        ov = 10 if p.passes == 8 else 6
        if p.sgemm: big, ov = 18, 0
        if c.is_mfma:
            if vd & (set(c.A) | set(c.B)): n = max(n, big)
            if vd & set(c.C):
                if not (set(c.C) == vd and c.passes == p.passes): n = max(n, ov)
        elif c.is_valu or c.is_ds or c.is_vmem:
            if vd & (c.u | c.d): n = max(n, big)
        if c.is_valu and set(p.C) & c.d: n = max(n, 7 if p.passes == 8 else 3)
    if p.is_vmem and getattr(p, "store_data", None) and len(p.store_data) >= 3:
        if set(p.store_data) & c.d: n = max(n, 2)
    if p.is_salu and ("s",124) in p.d and c.is_dma: n = max(n, 1)
    return n

def lint(lines, window=24):
    ins, labels = [], {}
    for l in lines:
        s = l.split(";")[0].strip()
        if not s or s.startswith("."): continue
        if s.endswith(":"):
            labels[s[:-1]] = len(ins); continue
        ins.append(Ins(s))
    probs = []
    def succ(i):
        x = ins[i]
        if x.op == "s_endpgm": return []
        if x.op == "s_branch": return [labels[x.ops[0]]]
        if x.op.startswith("s_cbranch"): return [i + 1, labels[x.ops[0]]]
        if x.op.startswith("s_call"): return [i + 1, labels[x.ops[1]]]
        if x.op.startswith(("s_setpc", "s_swappc")): return []
        return [i + 1]
    for i, p in enumerate(ins):
        if not (p.is_valu or p.is_mfma or p.is_vmem or p.is_salu): continue
        if p.is_salu and ("s",124) not in p.d: continue
        seen = {}
        stack = [(j, 0) for j in succ(i) if j < len(ins)]
        while stack:
            j, dist = stack.pop()
            if dist >= 19: continue
            if seen.get(j, 99) <= dist: continue
            seen[j] = dist
            c = ins[j]
            n = need(p, c)
            if n > dist:
                probs.append(f"hazard: need {n} have {dist}: [{p.line}] -> [{c.line}]")
            for k in succ(j):
                if k < len(ins): stack.append((k, dist + c.states))
    return probs
```

```python
import sys
from asmlib import Asm, vr, sr, lint
NAME = "parallel_sum__grouped_kv_mqa__dense_activation_squared_relu__prompt"

KF, VF, FLG_KV, FLG_H, FLG_O, OF, HF, TSB = 0, 0x10000, 0x20000, 0x28000, 0x30000, 0x40000, 0x240000, 0x800000
WS_BYTES = 0x900000
XN, RING, WKV = 0, 65536, 131072
RSZ = 12288
OACC, OST = 114688, 4608
B_L, B_CNT = 4096, 4352
QF, CINB = 151552, 159744
RSTD = CINB
GC = OACC + 7 * OST + B_CNT + 16
C_QREADY, C_ABAR, C_HDONE, C_GBAR, C_WQ, C_KV, C_EPOCH = 0, 4, 8, 12, 16, 20, 24
W1P = 2752
OFFS = 90.0
SPIN_CAP = 1 << 17

sW, sRB, sG, sKG, sCH = 3, 4, 5, 6, 7
pX, pWQ, pWK, pWV, pWO, pW1, pB1, pW2, pB2, pOUT, pDBG, pWS = 8, 10, 12, 14, 16, 20, 22, 24, 26, 28, 30, 32
rX, rWS, rW, rT = 36, 40, 44, 48
sEP = 52
sI, sRT, sCT = 54, 55, 56
sA, sB, sC, sD, sE, sF = 57, 58, 59, 60, 61, 62
sCAP = 63
sM = 34
TS0 = 64
MF32 = "v_mfma_f32_32x32x16_bf16"

def gen(ts=False, opt={}):
    a = Asm()
    GP = opt.get('gp', 0)
    def TS(i):
        if ts: a(f"{'s_memtime' if opt.get('cyc') else 's_memrealtime'} {sr(TS0 + 2 * i, 2)}")
    def srd(r, p, n):
        a(f"s_mov_b32 s{r}, s{p}\ns_mov_b32 s{r+1}, s{p+1}\ns_mov_b32 s{r+2}, {n}\ns_mov_b32 s{r+3}, 0x20000")
    def lds_spin(off, val, va, vt, sleep=1):
        L = a.newlabel("spin"); D = a.newlabel("spun")
        a(f"s_mov_b32 s{sCAP}, 0")
        a.label(L)
        a(f"""ds_read_b32 v{vt}, v{va} offset:{off}
        s_add_u32 s{sCAP}, s{sCAP}, 1
        s_waitcnt lgkmcnt(0)
        v_readfirstlane_b32 s{sF}, v{vt}
        s_cmp_gt_u32 s{sCAP}, {SPIN_CAP}
        s_cbranch_scc1 {D}""")
        if sleep:
            a(f"s_cmp_ge_u32 s{sF}, {val}\ns_cbranch_scc1 {D}\ns_sleep {sleep}\ns_branch {L}")
        else:
            a(f"s_cmp_lt_u32 s{sF}, {val}\ns_cbranch_scc1 {L}")
        a.label(D)
    def lds_inc(off, va, vt):
        a(f"v_mov_b32 v{vt}, 1\ns_mov_b64 exec, 1\nds_add_u32 v{va}, v{vt} offset:{off}\ns_mov_b64 exec, -1")
    def flag_poll(va, soff, vt, sleep=2, preissued=False):
        L = a.newlabel("poll"); D = a.newlabel("polled")
        a(f"s_mov_b32 s{sCAP}, 0")
        if preissued: a(f"s_branch {L}w")
        a.label(L)
        a(f"buffer_load_dwordx2 {vr(vt,2)}, v{va}, {sr(rWS,4)}, s{soff} offen sc1")
        a.label(L + "w")
        a(f"""s_add_u32 s{sCAP}, s{sCAP}, 1
        s_waitcnt vmcnt(0)
        v_cmp_ne_u64 vcc, {sr(sEP,2)}, {vr(vt,2)}
        s_cmp_gt_u32 s{sCAP}, {SPIN_CAP}
        s_cbranch_scc1 {D}
        s_cbranch_vccz {D}
        s_sleep {sleep}
        s_branch {L}""")
        a.label(D)
    def flag_store(soff, vt):
        a(f"""v_mov_b32 v{vt}, s{sEP}
        v_mov_b32 v{vt+1}, s{sEP+1}
        s_mov_b64 exec, 1
        buffer_store_dwordx2 {vr(vt,2)}, off, {sr(rWS,4)}, s{soff} sc1
        s_mov_b64 exec, -1""")
    def ts_dump():
        if not ts: return
        a(f"""s_waitcnt lgkmcnt(0)
        s_mul_i32 s{sA}, s2, 12
        s_add_u32 s{sA}, s{sA}, s{sW}
        s_lshl_b32 s{sA}, s{sA}, 6
        s_add_u32 s{sA}, s{sA}, {TSB}
        s_mov_b64 exec, 1""")
        for q in range(4):
            for j in range(4): a(f"v_mov_b32 v{4+j}, s{TS0 + 2 * (4 * q + j)}")
            a(f"buffer_store_dwordx4 v[4:7], off, {sr(rWS,4)}, s{sA} offset:{16*q}\ns_nop 1")
        a("s_waitcnt vmcnt(0)")
    def maxtree(S, d):
        a(f"v_max3_f32 v{d}, v{S}, v{S+1}, v{S+2}")
        for j in range(3, 15, 2): a(f"v_max3_f32 v{d}, v{d}, v{S+j}, v{S+j+1}")
        a(f"v_max_f32 v{d}, v{d}, v{S+15}")
    def e(S, i): return f"v_exp_f32 v{S+i}, v{S+i}"
    def c(S, j): return f"v_cvt_pk_bf16_f32 v{S + (j & 3) + 8 * (j >> 2)}, v{S+2*j}, v{S+2*j+1}"
    PFS = opt.get("pfstride", 7)
    def l2_prefetch(r, nbytes, vaddr, vdummy, part, nparts):
        chunk = 64 << PFS
        rounds = -(-nbytes // (chunk * 32))
        a(f"s_lshr_b32 s{sF}, s2, 3\ns_mul_i32 s{sF}, s{sF}, {chunk}")
        if part is not None:
            a(f"s_mul_i32 s{sCAP}, s{part}, {chunk*32}\ns_add_u32 s{sF}, s{sF}, s{sCAP}")
        for i in range(-(-rounds // nparts)):
            a(f"buffer_load_dword v{vdummy}, v{vaddr}, {sr(r,4)}, s{sF} offen")
            a(f"s_add_u32 s{sF}, s{sF}, {chunk*32*nparts}")

    a(f"""s_memrealtime {sr(sM,2)}
    s_load_dwordx16 s[8:23], s[0:1], 0
    s_load_dwordx8 s[24:31], s[0:1], 64
    s_load_dwordx2 s[32:33], s[0:1], 96
    s_cmp_ge_u32 s2, 256
    s_cbranch_scc1 L_end""")
    if ts:
        for i in range(16): a(f"s_mov_b32 s{TS0+2*i}, 0")
    TS(0)
    a(f"""v_lshrrev_b32 v1, 6, v0
    s_and_b32 s{sRB}, s2, 7
    v_readfirstlane_b32 s{sW}, v1
    s_lshl_b32 s{sRB}, s{sRB}, 2
    s_lshr_b32 s{sA}, s2, 6
    s_add_u32 s{sRB}, s{sRB}, s{sA}
    s_bfe_u32 s{sG}, s2, 0x30003
    s_lshr_b32 s{sKG}, s{sG}, 1
    s_and_b32 s{sCH}, s{sG}, 1
    v_and_b32 v0, 63, v0
    s_cmp_ge_u32 s{sW}, 8
    s_cbranch_scc1 L_gwave""")

    vL8, vAD, vT = 0, 1, 2
    Q, K, V, S0, S1, ACC, CIN = 4, 8, 40, 104, 120, 136, 152
    sQT, sINC, sKVO, sPB = sI, sRT, sE, sCT
    sOOF, sQA, sCA, sAH = 0, 1, 46, 47
    a(f"""v_lshrrev_b32 v3, 5, v0
    v_and_b32 v4, 31, v0
    s_lshl_b32 s{sA}, s{sW}, 1
    v_add_u32 v3, s{sA}, v3
    v_lshlrev_b32 v1, 10, v3
    v_lshl_add_u32 v5, v4, 4, v1
    s_lshl_b32 s{sB}, s{sRB}, 16
    s_lshl_b32 s{sC}, s{sKG}, 14
    s_add_u32 s{sD}, s{sB}, s{sC}
    s_waitcnt lgkmcnt(0)""")
    srd(rX, pX, 0x200000)
    a(f"""buffer_load_dwordx4 v[8:11], v5, {sr(rX,4)}, s{sD} offen
    buffer_load_dwordx4 v[12:15], v5, {sr(rX,4)}, s{sD} offen offset:512
    s_barrier""")
    for it in range(1, 4):
        a(f"""s_xor_b32 s{sD}, s{sC}, {it << 14}
        s_add_u32 s{sD}, s{sB}, s{sD}
        buffer_load_dwordx4 {vr(8+8*it,4)}, v5, {sr(rX,4)}, s{sD} offen
        buffer_load_dwordx4 {vr(12+8*it,4)}, v5, {sr(rX,4)}, s{sD} offen offset:512""")
    a("s_barrier")
    srd(rWS, pWS, WS_BYTES)
    vGC, vQW, vOZ, vCW, vKA, vVA, vFL, vF2 = CIN, CIN + 1, CIN + 2, CIN + 3, CIN + 4, CIN + 5, CIN + 6, CIN + 7
    for i in range(8): a(f"v_mov_b64 {vr(ACC+2*i,2)}, 0")
    a(f"""v_mov_b32 v{vGC}, {GC}
    v_lshlrev_b32 v{vFL}, 7, v4
    v_cmp_eq_u32 vcc, 0, v4
    ds_write_b128 v{vGC}, {vr(ACC,4)}
    ds_write_b64 v{vGC}, {vr(ACC,2)} offset:16
    v_xor_b32 v4, v4, v3
    v_lshl_add_u32 v2, v4, 4, v1
    v_lshlrev_b32 v3, 2, v3
    v_add_u32 v3, {RSTD}, v3
    v_mov_b32 v{CIN+8}, 0x3f803f80
    v_mov_b32 v{CIN+9}, 0x3f80
    v_mov_b32 v{CIN+10}, 0x3f800000
    v_cndmask_b32 v{V}, 0, v{CIN+8}, vcc
    v_cndmask_b32 v{V+1}, 0, v{CIN+8}, vcc""")
    for i in range(1, 32): a(f"v_mov_b64 {vr(V+2*i,2)}, {vr(V,2)}")
    a(f"""v_mov_b64 {vr(S1+8,2)}, 0
    v_mov_b64 {vr(S1+10,2)}, 0
    v_lshlrev_b32 v{vKA}, 4, v0
    v_lshrrev_b32 v4, 5, v0
    v_and_b32 v{vVA}, 0xf0, v{vKA}
    v_lshl_add_u32 v{vVA}, v4, 8, v{vVA}
    v_lshlrev_b32 v{vF2}, 8, v4
    v_lshlrev_b32 v{vL8}, 3, v0
    s_lshl_b32 s{sA}, s{sW}, 10
    s_add_u32 s{sA}, s{sA}, {QF}
    v_add_u32 v{vQW}, s{sA}, v{vKA}
    s_mul_i32 s{sA}, s{sW}, {OST}
    s_add_u32 s{sA}, s{sA}, {OACC}
    v_add_u32 v{vOZ}, s{sA}, v{vKA}
    s_lshl_b32 s{sA}, s{sW}, 9
    s_add_u32 s{sA}, s{sA}, {CINB}
    v_and_b32 v{vCW}, 0x1ff, v{vKA}
    v_add_u32 v{vCW}, s{sA}, v{vCW}
    s_mov_b32 s{sA}, 0x3b000000""")
    U, R0 = S0, S1
    cOne2, cLo, cHi = CIN + 8, CIN + 9, CIN + 10
    def red32(r):
        for mode in ("quad_perm:[1,0,3,2]", "quad_perm:[2,3,0,1]", "row_half_mirror", "row_mirror"):
            a(f"s_nop 1\nv_add_f32_dpp v{r}, v{r}, v{r} {mode} row_mask:0xf bank_mask:0xf")
        a(f"v_mov_b32 v{r+1}, v{r}\ns_nop 1\nv_permlane16_swap_b32 v{r}, v{r+1}\nv_add_f32 v{r}, v{r}, v{r+1}")
    for it in range(4):
        X = 8 + 8 * it
        a(f"s_waitcnt vmcnt({6 - 2 * it})")
        if it == 0: TS(1)
        a(f"v_dot2_f32_bf16 v{R0}, v{X}, v{cOne2}, 0\nv_dot2_f32_bf16 v{R0+1}, v{X+1}, v{cOne2}, 0")
        for j in range(2, 8): a(f"v_dot2_f32_bf16 v{R0+(j&1)}, v{X+j}, v{cOne2}, v{R0+(j&1)}")
        a(f"s_xor_b32 s{sD}, s{sC}, {it << 14}\nv_add_u32 v7, s{sD}, v2\ns_nop 0\nv_add_f32 v{R0}, v{R0}, v{R0+1}")
        red32(R0)
        a(f"v_mul_f32 v{R0}, 0xbb000000, v{R0}")
        for j in range(8):
            a(f"v_dot2_f32_bf16 v{U+2*j}, v{X+j}, v{cLo}, v{R0}\nv_dot2_f32_bf16 v{U+2*j+1}, v{X+j}, v{cHi}, v{R0}")
        for j in range(8): a(f"v_cvt_pk_bf16_f32 v{X+j}, v{U+2*j}, v{U+2*j+1}")
        a(f"ds_write_b128 v7, {vr(X,4)}\nds_write_b128 v7, {vr(X+4,4)} offset:512")
        a(f"v_pk_mul_f32 {vr(R0,2)}, {vr(U,2)}, {vr(U,2)}")
        for j in range(1, 8): a(f"v_pk_fma_f32 {vr(R0,2)}, {vr(U+2*j,2)}, {vr(U+2*j,2)}, {vr(R0,2)}")
        a(f"s_lshr_b32 s{sD}, s{sD}, 8\nv_add_f32 v{R0}, v{R0}, v{R0+1}")
        red32(R0)
        a(f"""v_mov_b32 v{R0+1}, 0x3727c5ac
        v_fma_f32 v{R0}, v{R0}, s{sA}, v{R0+1}
        v_rsq_f32 v{R0}, v{R0}
        v_add_u32 v{R0+1}, s{sD}, v3
        ds_write_b32 v{R0+1}, v{R0}""")
        if it == 0:
            a("s_waitcnt lgkmcnt(0)\ns_barrier")
            TS(2)
    a("s_waitcnt lgkmcnt(0)\ns_barrier")
    TS(3)

    a(f"""ds_read_b64 v[8:9], v{vGC} offset:{C_EPOCH}
    s_lshl_b32 s{sB}, s{sRB}, 10
    s_add_u32 s{sB}, s{sB}, {FLG_KV}
    s_lshl_b32 s{sKVO}, s{sW}, 13
    s_mov_b32 s{sM}, 0xffff0000
    s_mov_b32 s{sM+1}, 0xffff0000
    s_add_u32 s{sA}, s{sKVO}, 4096
    s_add_u32 s{sC}, s{sKVO}, {VF}
    s_add_u32 s{sD}, s{sKVO}, {VF+4096}
    s_waitcnt lgkmcnt(0)
    v_readfirstlane_b32 s{sEP}, v8
    v_readfirstlane_b32 s{sEP+1}, v9""")
    flag_poll(vF2, sB, 12, sleep=1)
    a(f"""s_lshl_b32 s{sB}, s{sRB}, 11
    s_mov_b32 s{sOOF}, {OACC}
    buffer_load_dwordx4 {vr(K,4)}, v{vKA}, {sr(rWS,4)}, s{sB} offen sc1
    s_lshl_b32 s{sB}, s{sW}, 12
    s_add_u32 s{sB}, s{sB}, {FLG_KV}""")
    for j in range(4): a(f"ds_write_b128 v{vOZ}, {vr(ACC,4)} offset:{1024*j}")
    a(f"""s_mov_b64 exec, 0x1ffff
    ds_write_b128 v{vOZ}, {vr(ACC,4)} offset:{B_L}
    s_mov_b64 exec, -1""")
    TS(11)
    lds_spin(C_QREADY, 4, vGC, vT, sleep=0)
    TS(5)
    a(f"""ds_read_b128 {vr(Q,4)}, v{vQW}
    s_waitcnt vmcnt(0) lgkmcnt(0)
    {MF32} {vr(S0,16)}, {vr(K,4)}, {vr(Q,4)}, 0
    buffer_load_dwordx2 v[12:13], v{vFL}, {sr(rWS,4)}, s{sB} offen sc1
    s_mov_b32 s{sQA}, {QF}
    s_mov_b32 s{sCA}, {CINB}
    s_mov_b32 s{sQT}, 0
    s_mov_b32 s{sINC}, 0
    s_and_b32 s{sPB}, s{sW}, 3
    s_lshl_b32 s{sPB}, s{sPB}, 1
    s_add_u32 s{sPB}, s{sPB}, 4
    s_nop 3""")
    maxtree(S0, vT)
    a(f"""v_mov_b32 v{vT+1}, v{vT}
    s_nop 1
    v_permlane32_swap_b32 v{vT}, v{vT+1}
    v_max_f32 v{vT}, v{vT}, v{vT+1}
    v_sub_f32 v{S1}, {-OFFS}, v{vT}
    v_sub_f32 v{S1+1}, {-OFFS}, v{vT}
    v_mov_b64 {vr(S1+2,2)}, {vr(S1,2)}
    ds_write_b128 v{vCW}, {vr(S1,4)}""")
    lds_inc(C_ABAR, vGC, vT)
    flag_poll(vFL, sB, 12, sleep=1, preissued=True)
    TS(4)
    def ldK(t): a(f"buffer_load_dwordx4 {vr(K+4*t,4)}, v{vKA}, {sr(rWS,4)}, s{sKVO if t < 4 else sA} offen offset:{(t&3)*1024} sc1")
    def ldV(t):
        a(f"s_mov_b64 exec, {sr(sM,2)}")
        for hf in range(2): a(f"buffer_load_dwordx4 {vr(V+8*t+4*hf,4)}, v{vVA}, {sr(rWS,4)}, s{sC if t < 4 else sD} offen offset:{(t&3)*1024+hf*512} sc1")
        a("s_mov_b64 exec, -1")
    if opt.get("afirst", 0):
        a(f"s_cmp_lt_u32 s{sW}, 4\ns_cbranch_scc1 L_kvgo")
        lds_spin(C_KV, 4, vGC, vT, sleep=1)
        a.label("L_kvgo")
    ldK(0)
    for t in range(7):
        ldK(t + 1); ldV(t)
    ldV(7)
    lds_inc(C_KV, vGC, vT)
    TS(10)
    lds_spin(C_ABAR, 8, vGC, vT, sleep=0)
    TS(6)
    if ts: a(f"s_memtime {sr(TS0+26,2)}")
    def load_q():
        x = [f"v_lshl_add_u32 v{vAD}, v{vL8}, 1, s{sQA}", f"v_and_b32 v{vT}, 0xff, v{vL8}", f"s_add_u32 s{sQA}, s{sQA}, 1024",
             f"ds_read_b128 {vr(Q,4)}, v{vAD}", f"v_lshl_add_u32 v{vT}, v{vT}, 1, s{sCA}", f"s_add_u32 s{sCA}, s{sCA}, 512"]
        return x + [f"ds_read_b128 {vr(CIN+4*j,4)}, v{vT}" for j in range(4)]
    def QK(t, S): return f"{MF32} {vr(S,16)}, {vr(K+4*t,4)}, {vr(Q,4)}, {vr(CIN,16)}"
    def PV(t, hf, S, zero=False): return f"{MF32} {vr(ACC,16)}, {vr(V+8*t+4*hf,4)}, {vr(S+8*hf,4)}, {'0' if zero else vr(ACC,16)}"
    def flush_ops():
        x = [[f"v_add_u32 v{vAD}, s{sOOF}, v{vL8}", f"v_cvt_f64_f32 {vr(vT,2)}, v{ACC}", "s_mov_b32 exec_hi, 0",
              f"ds_add_f64 v{vAD}, {vr(vT,2)} offset:{B_L}", "s_mov_b32 exec_hi, -1"]]
        for j in range(8): x.append([f"v_cvt_f64_f32 {vr(ACC+2*j,2)}, v{ACC+8+j}", f"ds_add_f64 v{vAD}, {vr(ACC+2*j,2)} offset:{512*j}"])
        x.append([f"v_mov_b32 v{vT}, s{sINC}", "s_mov_b64 exec, 1", f"ds_add_rtn_u32 v{vT+1}, v{vAD}, v{vT} offset:{B_CNT}", "s_mov_b64 exec, -1"])
        return x
    for l in load_q(): a(l)
    a(f"s_setprio 1\ns_waitcnt vmcnt(22) lgkmcnt(0)")
    a(QK(0, S0))
    a("s_nop 11")
    a(".p2align 6")
    a.label("L_atop")
    SS = [S0, S1]
    VW = [19, 16, 13, 10, 7, 4, 2, 0]
    std = "e0 e1 P1 e2 e3 c0 e4 e5 c1 QK e6 e7 c2 e8 c3 e9 e10 W P0 e11 c4 e12 e13 c5 e14 e15 c6 c7"
    orders = {0: "e0 e1 P1 e2 e3 c0 e4 e5 c1 QK e6 e7 c2 e8 c3 e9 e10 F e11 F c4 F e12 F e13 F c5 F e14 F e15 F c6 F c7 F W P0",
              1: "e0 e1 e2 e3 c0 P1 e4 e5 c1 e6 e7 QK c2 e8 c3 e9 e10 e11 W P0 c4 e12 e13 c5 e14 e15 c6 c7 R",
              4: std + " U",
              6: "e0 e1 P1 e2 e3 c0 e4 e5 c1 QK e6 e7 c2 e8 c3 e9 e10 W P0 L L L L e11 L L c4 L e12 L e13 L c5 L e14 e15 c6 c7",
              7: "e0 e1 P1 e2 e3 c0 e4 e5 c1 G QK e6 e7 c2 e8 c3 e9 e10 W P0 e11 X c4 e12 e13 c5 e14 e15 c6 c7"}
    for t in range(8):
        cur, nxt = SS[t & 1], SS[(t + 1) & 1]
        fl, lq = flush_ops(), load_q()
        for tok in orders.get(t, std).split():
            if tok[0] == "e": a(e(cur, int(tok[1:])))
            elif tok[0] == "c": a(c(cur, int(tok[1:])))
            elif tok == "P1": a(PV((t - 1) & 7, 1, nxt))
            elif tok == "P0": a(PV(t, 0, cur, zero=(t == 0)))
            elif tok == "QK": a(QK((t + 1) & 7, nxt))
            elif tok == "W": a(f"s_waitcnt vmcnt({VW[t]})")
            elif tok == "G": a("s_waitcnt lgkmcnt(0)")
            elif tok == "F": a("\n".join(fl.pop(0)))
            elif tok == "L": a(lq.pop(0))
            elif tok == "R":
                a(f"""s_waitcnt lgkmcnt(0)
                v_readfirstlane_b32 s{sAH}, v{vT+1}
                s_setprio 0
                s_lshr_b32 s{sAH}, s{sAH}, s{sPB}
                s_and_b32 s{sAH}, s{sAH}, 1
                s_cbranch_scc0 L_yield
                s_setprio 2""")
                a.label("L_yield")
            elif tok == "U":
                a(f"s_cmp_lg_u32 s{sAH}, 0\ns_cbranch_scc1 L_keep\ns_setprio 1")
                a.label("L_keep")
            elif tok == "X":
                a(f"""s_cmp_lg_u32 s{sQT}, 0
                s_cselect_b32 s{sA}, {OST}, 0
                s_add_u32 s{sOOF}, s{sOOF}, s{sA}
                s_lshl_b32 s{sINC}, 1, s{sPB}
                s_add_u32 s{sINC}, s{sINC}, 1
                s_add_u32 s{sQT}, s{sQT}, 1""")
                if opt.get("qts"):
                    a("s_memtime s[96:97]\ns_waitcnt lgkmcnt(0)")
                    for i in range(1, 8): a(f"s_mov_b32 s{TS0+2*i}, s{TS0+2*i+2}")
                    a(f"s_sub_u32 s{TS0+16}, s96, s{TS0+26}")
                a(f"s_cmp_lt_u32 s{sQT}, 8")
    a("s_cbranch_scc1 L_atop")
    if not opt.get("qts"): TS(7)
    a("s_setprio 2")
    a(PV(7, 1, S1))
    a("s_nop 11")
    for x in flush_ops(): a("\n".join(x))
    if opt.get("delay_f1", 0) > 8:
        a(f"v_mov_b32 v4, {GC}")
        lds_inc(C_ABAR, 4, 5)
    if ts:
        a(f"s_memtime {sr(TS0+28,2)}\ns_waitcnt lgkmcnt(0)\ns_sub_u32 s{TS0+28}, s{TS0+28}, s{TS0+26}")
    TS(9)
    ts_dump()
    a("s_endpgm")

    a(".p2align 6")
    a.label("L_gwave")
    gGC, gL16, gSW, gTR, gH, gR = 1, 2, 3, 4, 5, 6
    a(f"""s_setprio 3
    s_sub_u32 s{sI}, s{sW}, 8
    v_lshlrev_b32 v{gL16}, 4, v0
    v_lshlrev_b32 v10, {PFS}, v0
    s_sub_u32 s{sE}, s{sI}, 1
    s_waitcnt lgkmcnt(0)
    s_cmp_lg_u32 s{sI}, 0
    s_cbranch_scc1 L_g123""")
    a(f"""s_cmp_eq_u32 s{sCH}, 0
    s_cselect_b32 s{rW}, s{pWK}, s{pWV}
    s_cselect_b32 s{rW+1}, s{pWK+1}, s{pWV+1}
    s_mov_b32 s{rW+2}, 16384
    s_mov_b32 s{rW+3}, 0x20000""")
    for q in range(4):
        a(f"s_mov_b32 m0, {WKV + q * 4096}\ns_mov_b32 s{sA}, {q*4096}")
        for j in range(4): a(f"buffer_load_dwordx4 v{gL16}, {sr(rW,4)}, s{sA} offen offset:{j*1024} lds")
    a("s_branch L_gcom")
    a.label("L_g123")
    srd(rW, pWQ, 0x80000)
    a.label("L_gcom")
    a("s_barrier")
    srd(rWS, pWS, WS_BYTES)
    srd(rT, pDBG, 256)
    a(f"""s_lshr_b32 s{sRT}, s{sI}, 1
    s_and_b32 s{sCT}, s{sI}, 1
    v_lshrrev_b32 v7, 3, v0
    v_lshrrev_b32 v8, 2, v0
    v_and_b32 v8, 4, v8
    v_and_b32 v9, 7, v0
    v_xor_b32 v8, v8, v9
    v_lshlrev_b32 v8, 4, v8
    v_lshl_add_u32 v{gSW}, v7, 10, v8
    v_mov_b32 v{gGC}, {GC}
    v_lshrrev_b32 v{gH}, 5, v0
    v_and_b32 v7, 3, v0
    v_and_b32 v8, 16, v0
    v_lshlrev_b32 v8, 1, v8
    v_lshl_add_u32 v{gTR}, v7, 3, v8
    s_cmp_eq_u32 s{sI}, 0
    s_cbranch_scc1 L_g0""")
    a(f"""s_lshl_b32 s{sB}, s{sE}, 13
    s_lshl_b32 s{sC}, s{sG}, 7
    s_add_u32 s{sB}, s{sB}, s{sC}
    s_lshl_b32 s{sA}, s{sE}, 10
    s_add_u32 s{sA}, s{sA}, {RING}
    s_barrier""")
    TS(1)
    a.label("L_wqloop")
    a(f"""s_mov_b32 m0, s{sA}
    s_add_u32 s{sA}, s{sA}, 3072
    buffer_load_dwordx4 v{gSW}, {sr(rW,4)}, s{sB} offen lds
    s_add_u32 s{sB}, s{sB}, {3*8192}
    s_cmp_lt_u32 s{sA}, {RING + 65536}
    s_cbranch_scc1 L_wqloop""")
    a(f"""s_cmp_eq_u32 s{sI}, 1
    s_cselect_b32 s{rW}, s{pB1}, s{pB2}
    s_cselect_b32 s{rW+1}, s{pB1+1}, s{pB2+1}
    s_cselect_b32 s{rW+2}, {W1P}, 64
    s_lshl_b32 s{sA}, s{sE}, 9
    s_max_u32 s{rW+2}, s{rW+2}, s{sA}
    buffer_load_dword v6, v10, {sr(rW,4)}, 0 offen
    s_barrier
    s_waitcnt vmcnt(1)""")
    lds_inc(C_WQ, gGC, 7)
    a("s_branch L_gb2")
    a.label("L_g0")
    WF, XF, DD = 32, 96, 160
    a(f"""s_cmp_lg_u32 s2, 0
    s_cbranch_scc1 L_noep
    v_mov_b32 v10, s{sM}
    v_mov_b32 v11, s{sM+1}
    v_or_b32 v11, 0x80000000, v11
    v_mov_b64 v[12:13], 0
    s_mov_b64 exec, 1
    buffer_atomic_cmpswap_x2 v[10:13], off, {sr(rT,4)}, 0 sc1
    s_mov_b64 exec, -1
    s_nop 0""")
    a.label("L_noep")
    a("s_barrier")
    a(f"""v_and_b32 v7, 15, v0
    v_lshrrev_b32 v8, 4, v0
    v_lshlrev_b32 v9, 3, v7
    v_lshl_add_u32 v9, v8, 8, v9
    v_add_u32 v9, {WKV}, v9
    s_lshl_b32 s{sA}, s{sKG}, 14
    v_xor_b32 v10, v7, v8
    v_lshlrev_b32 v10, 4, v10
    v_lshl_add_u32 v10, v7, 10, v10
    v_add_u32 v10, s{sA}, v10
    v_xor_b32 v11, 64, v10
    v_xor_b32 v12, 0x80, v10
    v_xor_b32 v13, 0xc0, v10
    s_lshl_b32 s{sA}, s{sKG}, 6
    s_add_u32 s{sA}, s{sA}, {RSTD}
    v_lshl_add_u32 v20, v7, 2, s{sA}
    v_lshl_add_u32 v21, v8, 4, s{sA}
    s_cmp_eq_u32 s{sCH}, 0
    s_cselect_b32 s{sB}, 9, 8
    s_cselect_b32 s{sC}, 8, 9
    s_cselect_b32 s{sD}, {KF}, {VF}
    v_and_b32 v16, 1, v8
    v_lshlrev_b32 v16, s{sB}, v16
    v_lshrrev_b32 v17, 1, v8
    v_lshl_add_u32 v16, v17, 3, v16
    v_lshl_add_u32 v16, v7, 4, v16
    s_and_b32 s{sA}, s{sKG}, 1
    s_lshl_b32 s{sA}, s{sA}, s{sC}
    s_add_u32 s{sD}, s{sD}, s{sA}
    s_lshl_b32 s{sA}, s{sRB}, 1
    s_lshr_b32 s{sB}, s{sKG}, 1
    s_add_u32 s{sA}, s{sA}, s{sB}
    s_lshl_b32 s{sA}, s{sA}, 10
    s_add_u32 s{sD}, s{sD}, s{sA}
    s_lshl_b32 s{sA}, s{sRB}, 3
    s_add_u32 s{sA}, s{sA}, s{sG}
    s_lshl_b32 s{sA}, s{sA}, 7
    s_add_u32 s{sA}, s{sA}, {FLG_KV}
    s_waitcnt vmcnt(0)
    buffer_load_dwordx2 v[14:15], off, {sr(rT,4)}, 0 sc1""")
    for ks in range(16):
        a(f"ds_read_b64_tr_b16 {vr(WF+4*ks,2)}, v9 offset:{ks*1024}\nds_read_b64_tr_b16 {vr(WF+4*ks+2,2)}, v9 offset:{ks*1024+128}")
    a("s_waitcnt lgkmcnt(0)")
    TS(1)
    a("s_barrier")
    TS(2)
    for ks in range(16):
        a(f"ds_read_b128 {vr(XF+4*ks,4)}, v{10+(ks&3)} offset:{(ks>>2)*256}")
    a(f"""s_cmp_eq_u32 s{sCH}, 0
    s_cbranch_scc0 L_vchain""")
    for sw in (False, True):
        if sw: a.label("L_vchain")
        for ks in range(16):
            A_, B_ = (XF, WF) if sw else (WF, XF)
            if ks % 4 == 0: a(f"s_waitcnt lgkmcnt({12 - ks})")
            if ks == 12: a(f"ds_read_b128 v[24:27], v21" if sw else "ds_read_b32 v24, v20")
            a(f"v_mfma_f32_16x16x32_bf16 {vr(DD,4)}, {vr(A_+4*ks,4)}, {vr(B_+4*ks,4)}, {'0' if ks == 0 else vr(DD,4)}")
        if not sw: a("s_waitcnt lgkmcnt(0)\nv_mov_b32 v25, v24\nv_mov_b64 v[26:27], v[24:25]\ns_branch L_kvst")
    a("s_waitcnt lgkmcnt(0)\ns_nop 2")
    a.label("L_kvst")
    a(f"""s_nop 3
    v_pk_mul_f32 {vr(DD,2)}, {vr(DD,2)}, v[24:25]
    v_pk_mul_f32 {vr(DD+2,2)}, {vr(DD+2,2)}, v[26:27]
    v_cvt_pk_bf16_f32 v18, v{DD}, v{DD+1}
    v_cvt_pk_bf16_f32 v19, v{DD+2}, v{DD+3}
    buffer_store_dwordx2 v[18:19], v16, {sr(rWS,4)}, s{sD} offen sc1
    s_mov_b32 s{sCAP}, 0""")
    a.label("L_epoch")
    a(f"""s_waitcnt vmcnt(0)
    v_readfirstlane_b32 s{sEP+1}, v15
    s_add_u32 s{sCAP}, s{sCAP}, 1
    s_cmp_eq_u32 s{sEP+1}, 0
    s_cbranch_scc1 L_epretry""")
    a.label("L_epochok")
    a(f"""s_mov_b64 exec, 1
    buffer_store_dwordx2 v[14:15], off, {sr(rWS,4)}, s{sA} sc1
    ds_write_b64 v{gGC}, v[14:15] offset:{C_EPOCH}
    s_mov_b64 exec, -1""")
    TS(3)
    a.label("L_gb2")
    QA, QW, QX = 8, 24, 152
    a(f"""v_bfe_u32 v9, v0, 2, 2
    v_lshrrev_b32 v8, 1, v9
    v_xor_b32 v8, s{sCT}, v8
    v_lshl_add_u32 v8, v8, 6, v{gTR}
    v_lshl_add_u32 v8, v9, 7, v8
    v_lshl_add_u32 v8, v{gH}, 10, v8
    v_add_u32 v8, {RING}, v8""")
    lds_spin(C_WQ, 3, gGC, 7, sleep=0)
    kord = [aa + 8 * b for aa in range(8) for b in range(4)]
    for n, ks in enumerate(kord):
        a(f"ds_read_b64_tr_b16 {vr(QW+4*n,2)}, v8 offset:{ks*2048}\nds_read_b64_tr_b16 {vr(QW+4*n+2,2)}, v8 offset:{ks*2048+512}")
    a(f"""v_and_b32 v7, 31, v0
    v_and_b32 v9, 15, v0
    v_xor_b32 v9, v9, v{gH}
    v_lshlrev_b32 v9, 4, v9
    v_lshl_add_u32 v7, v7, 10, v9
    s_lshl_b32 s{sC}, s{sRT}, 15
    v_add_u32 v7, s{sC}, v7
    s_waitcnt lgkmcnt(0)""")
    TS(12)
    a("s_barrier")
    TS(4)
    land = {}
    def xread(n, dst):
        aa, b = n >> 2, n & 3
        if b == 0 and aa > 0: a(f"v_xor_b32 v7, {((aa ^ (aa - 1)) * 32)}, v7")
        a(f"ds_read_b128 {vr(dst,4)}, v7 offset:{b*256}")
        land[n] = dst
    for n in range(4): xread(n, QX + 4 * n)
    nxt_rd = 4
    for n in range(32):
        a(f"s_waitcnt lgkmcnt({nxt_rd - n - 1})")
        a(f"{MF32} {vr(QA,16)}, {vr(QW+4*n,4)}, {vr(land[n],4)}, {'0' if n == 0 else vr(QA,16)}")
        if nxt_rd < 32: xread(nxt_rd, land[n]); nxt_rd += 1
        if n < 5 and nxt_rd < 32: xread(nxt_rd, QW + 4 * n); nxt_rd += 1
    gRS = 166
    a(f"""v_and_b32 v7, 31, v0
    v_lshlrev_b32 v26, 2, v7
    v_add_u32 v26, {RSTD}, v26
    ds_read_b64 v[24:25], v{gGC} offset:{C_EPOCH}
    ds_read_b32 v{gRS}, v26
    ds_read_b32 v{gRS+1}, v26 offset:128
    s_lshl_b32 s{sA}, s{sI}, 11
    s_add_u32 s{sA}, s{sA}, {QF}
    v_add_u32 v27, s{sA}, v{gL16}
    s_cmp_eq_u32 s{sRT}, 0
    s_cselect_b64 vcc, -1, 0
    s_waitcnt lgkmcnt(0)
    v_readfirstlane_b32 s{sEP}, v24
    v_cndmask_b32 v28, v{gRS+1}, v{gRS}, vcc
    v_readfirstlane_b32 s{sEP+1}, v25
    v_mul_f32 v28, 0x3eb8aa3b, v28""")
    for j in range(8): a(f"v_pk_mul_f32 {vr(QA+2*j,2)}, {vr(QA+2*j,2)}, v[28:29] op_sel_hi:[1,0]")
    for j in range(8): a(f"v_cvt_pk_bf16_f32 v{QA+j}, v{QA+2*j}, v{QA+2*j+1}")
    a(f"""ds_write_b128 v27, {vr(QA,4)}
    ds_write_b128 v27, {vr(QA+4,4)} offset:1024""")
    lds_inc(C_QREADY, gGC, 26)
    TS(5)
    AC = [136, 104, 120, 88]
    XB = 24
    vB1, gXA, gXT, gWA, gWB, gV1 = 8, 16, 17, 18, 19, 20
    sRNG = 35
    sT1, sT2, sNG = 0, 1, sE
    srd(rW, pW1, 512 * W1P)
    a(f"""s_lshl_b32 s{sT1}, s{sG}, 2
    s_add_u32 s{sT1}, s{sT1}, s{sI}
    s_sub_u32 s{sT2}, 3, s{sI}
    s_lshl_b32 s{sT2}, s{sT2}, 3
    s_add_u32 s{sT2}, s{sT2}, s{sG}
    s_add_u32 s{sT2}, s{sT2}, 32
    s_cmp_lt_u32 s{sT2}, 43
    s_cselect_b32 s{sNG}, 16, 8
    v_lshrrev_b32 v26, 2, v0
    v_and_b32 v27, 3, v0
    v_mul_u32_u24 v26, {W1P}, v26
    v_lshl_add_u32 v{gV1}, v27, 4, v26
    v_add_u32 v{gV1+1}, {128*W1P-1024}, v{gV1}
    v_add_u32 v{gV1+2}, {2*(128*W1P-1024)}, v{gV1}
    v_add_u32 v{gV1+3}, {3*(128*W1P-1024)}, v{gV1}
    s_mul_i32 s{sRNG}, s{sI}, {RSZ}
    s_add_u32 s{sRNG}, s{sRNG}, {RING}""")
    sN, sSO = sA, sB
    def w1_dma1(b): return f"buffer_load_dwordx4 v{gV1+b}, {sr(rW,4)}, s{sSO} offen offset:{b*1024} lds"
    srd(rX, pX, 0x200000)
    srd(rT, pB2, 1024)
    a(f"""v_lshlrev_b32 v40, 3, v{gH}
    v_lshl_add_u32 v41, v7, 10, v40
    s_lshl_b32 s{sA}, s{sG}, 7
    s_lshl_b32 s{sD}, s{sCT}, 6
    s_add_u32 s{sA}, s{sA}, s{sD}
    s_lshl_b32 s{sD}, s{sRB}, 16
    s_lshl_b32 s{sC}, s{sRT}, 15
    s_add_u32 s{sD}, s{sD}, s{sC}
    s_add_u32 s{sD}, s{sD}, s{sA}""")
    for q in range(4): a(f"buffer_load_dwordx2 {vr(XB+2*q,2)}, v41, {sr(rX,4)}, s{sD} offen offset:{16*q}")
    for q in range(4): a(f"buffer_load_dwordx2 {vr(XB+8+2*q,2)}, v40, {sr(rT,4)}, s{sA} offen offset:{16*q}")
    a(f"""v_lshlrev_b32 v40, 1, v7
    s_lshl_b32 s{sA}, s{sT1}, 6
    s_lshl_b32 s{sD}, s{sT2}, 6""")
    srd(rT, pB1, W1P)
    a(f"""buffer_load_ushort v42, v40, {sr(rT,4)}, s{sA} offen
    buffer_load_ushort v43, v40, {sr(rT,4)}, s{sD} offen
    v_and_b32 v44, 15, v0
    v_xor_b32 v44, v44, v{gH}
    v_lshlrev_b32 v44, 4, v44
    v_lshl_add_u32 v{gXA}, v7, 10, v44
    v_bfe_u32 v44, v0, 2, 2
    v_lshl_add_u32 v{gWB}, v44, 6, v{gTR}
    v_lshl_add_u32 v{gWB}, v{gH}, 9, v{gWB}
    v_add_u32 v{gWB}, s{sRNG}, v{gWB}""")
    a(f"""v_rcp_f32 v44, v{gRS}
    v_rcp_f32 v45, v{gRS+1}
    v_sub_u32 v48, v{gH}, 1
    s_mov_b32 s{sD}, 0xffff0000
    v_and_b32 v46, s{sD}, v44
    v_and_b32 v47, s{sD}, v45
    v_sub_f32 v44, v44, v46
    v_sub_f32 v45, v45, v47
    v_cvt_pk_bf16_f32 v12, v46, v44
    v_cvt_pk_bf16_f32 v14, v47, v45
    v_and_b32 v12, v48, v12
    v_and_b32 v14, v48, v14
    v_mov_b32 v9, 0
    v_mov_b64 v[10:11], 0
    v_mov_b32 v13, 0
    s_waitcnt vmcnt(0)""")
    for j in range(8):
        a(f"v_lshlrev_b32 v{AC[0]+2*j}, 16, v{XB+j}\nv_and_b32 v{AC[0]+2*j+1}, s{sD}, v{XB+j}")
        a(f"v_lshlrev_b32 v44, 16, v{XB+8+j}\nv_and_b32 v45, s{sD}, v{XB+8+j}")
        a(f"v_pk_add_f32 {vr(AC[0]+2*j,2)}, {vr(AC[0]+2*j,2)}, v[44:45]")
    a(f"""v_lshl_or_b32 v8, v42, 16, v42
    v_lshl_or_b32 v15, v43, 16, v43""")
    H0, H1 = 104, 120
    FB = [24, 56]
    FX = [88, 150]
    FX = [88, 152]
    def f1_reads(p, b):
        nx = 4 if not (p == 1 and b == 3) else 4
        return [f"ds_read_b64_tr_b16 {vr(FB[p]+8*b,2)}, v{gWA} offset:{b*1024}", f"ds_read_b64_tr_b16 {vr(FB[p]+8*b+2,2)}, v{gWA} offset:{b*1024+256}",
                f"ds_read_b128 {vr(FB[p]+8*b+4,4)}, v{gXT} offset:{b*256}", f"ds_read_b128 {vr(FX[p]+4*b,4)}, v{gXT} offset:{b*256+32768}"]
    gR2 = 6
    def bias():
        a(f"{MF32} {vr(H0,16)}, v[8:11], v[12:15], 0\n{MF32} {vr(H1,16)}, v[8:11], v[14:17], 0")
    a(f"""v_mul_f32 v{gR2}, v{gRS}, v{gRS}
    v_mul_f32 v{gR2+1}, v{gRS+1}, v{gRS+1}
    v_mov_b32 v{gWA}, v{gWB}
    v_mov_b32 v{gXT}, v{gXA}
    s_mov_b32 s{sN}, 0
    s_mov_b32 s{sM}, 0""")
    bias()
    if opt.get("delay_f1"): lds_spin(C_ABAR, opt["delay_f1"], gGC, 26, sleep=4)
    lds_spin(C_KV, 8, gGC, 26, sleep=2)
    TS(15)
    a(f"s_lshl_b32 s{sSO}, s{sT1}, 6")
    for n in range(3):
        a(f"s_add_u32 m0, s{sRNG}, {n*4096}\ns_nop 0")
        for b in range(4): a(w1_dma1(b))
        a(f"s_add_u32 s{sSO}, s{sSO}, {16*W1P}")
    NT = 0
    if opt.get("pf1"):
        a(f"v_lshlrev_b32 v56, {PFS}, v0")
        n0 = len(a.lines)
        l2_prefetch(rW, 512 * W1P, 56, AC[3], sI, 4)
        NT = sum(1 for l in a.lines[n0:] if l.startswith("buffer_load"))
        a("s_waitcnt vmcnt(0)")
    a(f"s_waitcnt vmcnt(8)")
    for b in range(4):
        for l in f1_reads(0, b): a(l)
    a(".p2align 6")
    a.label("L_f1loop")
    for p in range(2):
        a(f"""s_add_u32 m0, s{sM}, s{sRNG}
        s_add_u32 s{sM}, s{sM}, 4096
        s_cmp_lt_u32 s{sM}, {RSZ}
        s_cselect_b32 s{sM}, s{sM}, 0
        s_add_u32 s{sN}, s{sN}, 1
        s_and_b32 s{sD}, s{sN}, 7
        s_lshl_b32 s{sD}, s{sD}, 5
        s_setprio 3
        v_add_u32 v{gWA}, s{sM}, v{gWB}
        v_xor_b32 v{gXT}, s{sD}, v{gXA}
        s_setprio {GP}""")
        if p == 1:
            a(f"""s_lshl_b32 s{sD}, s{sT2}, 6
            s_cmp_eq_u32 s{sN}, 6
            s_cselect_b32 s{sSO}, s{sD}, s{sSO}
            s_add_u32 s{sD}, s{sN}, 2
            s_cmp_lt_u32 s{sD}, s{sNG}
            s_cselect_b32 s{rW+2}, s{rW+2}, 0""")
        for b in range(4):
            rd = f1_reads(1 - p, b)
            a("s_waitcnt lgkmcnt(12)")
            a(f"{MF32} {vr(H0,16)}, {vr(FB[p]+8*b,4)}, {vr(FB[p]+8*b+4,4)}, {vr(H0,16)}")
            a(w1_dma1(b))
            a(rd[2]); a(rd[3])
            a(f"{MF32} {vr(H1,16)}, {vr(FB[p]+8*b,4)}, {vr(FX[p]+4*b,4)}, {vr(H1,16)}")
            a("s_waitcnt vmcnt(8)")
            a(rd[0]); a(rd[1])
        a(f"s_add_u32 s{sSO}, s{sSO}, {16*W1P}")
    a(f"""s_and_b32 s{sD}, s{sN}, 7
    s_cbranch_scc1 L_f1loop
    s_mul_i32 s{sD}, s{sRB}, 86
    s_lshl_b32 s{sC}, s{sT1}, 1
    s_add_u32 s{sD}, s{sD}, s{sC}
    s_lshl_b32 s{sD}, s{sD}, 11
    s_add_u32 s{sD}, s{sD}, {HF}
    s_mov_b32 s{sT1}, s{sT2}
    s_setprio 3
    v_mov_b32 v8, v15""")
    for rt, Hh in enumerate((H0, H1)):
        for j in range(16): a(f"v_max_f32 v{Hh+j}, 0, v{Hh+j}")
        for j in range(8): a(f"v_pk_mul_f32 {vr(Hh+2*j,2)}, {vr(Hh+2*j,2)}, {vr(Hh+2*j,2)}")
        sel = "op_sel_hi:[1,0]" if rt == 0 else "op_sel:[0,1] op_sel_hi:[1,1]"
        for j in range(8): a(f"v_pk_mul_f32 {vr(Hh+2*j,2)}, {vr(Hh+2*j,2)}, {vr(gR2,2)} {sel}")
        for j in range(8): a(f"v_cvt_pk_bf16_f32 v{Hh+j}, v{Hh+2*j}, v{Hh+2*j+1}")
        for s_ in range(2):
            a(f"buffer_store_dwordx4 {vr(Hh+4*s_,4)}, v{gL16}, {sr(rWS,4)}, s{sD} offen offset:{s_*2048+rt*1024} sc1")
    a(f"""s_cmp_eq_u32 s{sN}, 8
    s_cselect_b32 s{sD}, 1, 16
    v_mov_b32 v{H0+8}, s{sD}
    s_waitcnt vmcnt(0)
    s_mov_b64 exec, 1
    ds_add_rtn_u32 v{H0+9}, v{gGC}, v{H0+8} offset:{C_HDONE}
    s_mov_b64 exec, -1
    s_lshl_b32 s{sC}, s{sRB}, 3
    s_add_u32 s{sC}, s{sC}, s{sG}
    s_lshl_b32 s{sC}, s{sC}, 7
    s_add_u32 s{sC}, s{sC}, s{sN}
    s_add_u32 s{sC}, s{sC}, {FLG_H - 8}
    s_cmp_lt_u32 s{sG}, 3
    s_cselect_b32 s{sCAP}, 1, 0
    s_cmp_eq_u32 s{sN}, 8
    s_cselect_b32 s{sCAP}, 3, s{sCAP}
    s_cselect_b32 s{sD}, 0, 4
    s_waitcnt lgkmcnt(0)
    v_readfirstlane_b32 s{sF}, v{H0+9}
    s_nop 0
    s_lshr_b32 s{sF}, s{sF}, s{sD}
    s_and_b32 s{sF}, s{sF}, 15
    s_cmp_lg_u32 s{sF}, s{sCAP}
    s_cbranch_scc1 L_nohflag""")
    flag_store(sC, H0 + 8)
    a.label("L_nohflag")
    a("s_nop 0")
    bias()
    a(f"""s_cmp_lt_u32 s{sN}, s{sNG}
    s_cbranch_scc1 L_f1loop""")
    TS(6)
    sK0, sK1, sSW, sSH, sSEG = 0, 1, sB, sC, sE
    gSW2 = 7
    gA0, gA1, gHO0, gHO1, gFL, gWO = 8, 9, 10, 11, 12, 13
    D2 = RSZ // 2048
    HR = 24
    AF = [152, 160]
    a(f"""v_add_u32 v{gSW2}, {8192-1024}, v{gSW}
    v_bfe_u32 v{gR}, v0, 2, 2
    v_lshrrev_b32 v{gWO}, 1, v{gR}
    v_xor_b32 v{gWO}, s{sCT}, v{gWO}
    v_lshl_add_u32 v{gWO}, v{gWO}, 6, v{gTR}
    v_lshl_add_u32 v{gWO}, v{gR}, 7, v{gWO}
    v_lshl_add_u32 v{gWO}, v{gH}, 9, v{gWO}
    s_lshl_b32 s{sA}, s{sRT}, 10
    v_and_b32 v{gFL}, 7, v0
    v_lshlrev_b32 v{gFL}, 7, v{gFL}
    v_mov_b64 v[14:15], 0
    v_mov_b64 v[16:17], 0
    v_add_u32 v{gA0}, s{sRNG}, v{gWO}
    v_xor_b32 v{gA1}, 64, v{gA0}
    v_add_u32 v{gHO0}, s{sA}, v{gL16}
    v_xor_b32 v{gHO1}, 0x400, v{gHO0}""")
    for j in range(1, 4): a(f"{MF32} {vr(AC[j],16)}, v[14:17], v[14:17], 0")
    def pack(b): return sum(x << (8 * i) for i, x in enumerate(b))
    def set_range(lo3, hi3):
        A_, B_ = pack(lo3), pack(hi3)
        a(f"""s_cmp_lt_u32 s{sG}, 3
        s_mov_b32 s{sK0}, {B_ & 0xffffffff}
        s_cselect_b32 s{sK0}, {A_ & 0xffffffff}, s{sK0}
        s_mov_b32 s{sK1}, {A_ >> 32}
        s_lshl_b32 s{sA}, s{sI}, 3
        s_lshr_b64 {sr(sK0,2)}, {sr(sK0,2)}, s{sA}
        s_bfe_u32 s{sK1}, s{sK0}, 0x80008
        s_and_b32 s{sK0}, s{sK0}, 0xff""")
    set_range([0, 32, 64, 64, 64], [0, 22, 43, 64, 64])
    a(f"s_mov_b32 s{sSEG}, 0")
    def w2_dma(u):
        a(f"""s_add_u32 m0, s{sRNG}, {u*2048}
        s_nop 0
        buffer_load_dwordx4 v{gSW}, {sr(rW,4)}, s{sSW} offen lds
        buffer_load_dwordx4 v{gSW2}, {sr(rW,4)}, s{sSW} offen offset:1024 lds
        s_add_u32 s{sSW}, s{sSW}, 16384""")
    def a_reads(u, p):
        for d, ga in enumerate((gA0, gA1)):
            a(f"ds_read_b64_tr_b16 {vr(AF[p]+4*d,2)}, v{ga} offset:{u*2048}\nds_read_b64_tr_b16 {vr(AF[p]+4*d+2,2)}, v{ga} offset:{u*2048+1024}")
    a.label("L_seg")
    a(f"""s_cmp_ge_u32 s{sK0}, s{sK1}
    s_cbranch_scc1 L_f2done
    s_mov_b32 s{rW}, s{pW2}
    s_mov_b32 s{rW+1}, s{pW2+1}
    s_lshl_b32 s{rW+2}, s{sK1}, 14
    s_mov_b32 s{rW+3}, 0x20000
    s_lshl_b32 s{sSW}, s{sK0}, 14
    s_lshl_b32 s{sA}, s{sG}, 7
    s_add_u32 s{sSW}, s{sSW}, s{sA}""")
    for u in range(D2): w2_dma(u)
    a(f"""s_lshl_b32 s{sA}, s{sRB}, 10
    s_add_u32 s{sA}, s{sA}, s{sSEG}
    s_add_u32 s{sA}, s{sA}, {FLG_H}""")
    flag_poll(gFL, sA, 14)
    TS(7)
    a(f"""s_mul_i32 s{sA}, s{sRB}, 86
    s_add_u32 s{sSH}, s{sA}, s{sK0}
    s_lshl_b32 s{sSH}, s{sSH}, 11
    s_add_u32 s{sSH}, s{sSH}, {HF}
    s_add_u32 s{sA}, s{sA}, s{sK1}
    s_lshl_b32 s{sA}, s{sA}, 11
    s_mov_b32 s{rT}, s{pWS}
    s_mov_b32 s{rT+1}, s{pWS+1}
    s_add_u32 s{rT+2}, s{sA}, {HF}
    s_mov_b32 s{rT+3}, 0x20000""")
    for u in range(D2):
        a(f"""buffer_load_dwordx4 {vr(HR+8*u,4)}, v{gHO0}, {sr(rT,4)}, s{sSH} offen sc1
        buffer_load_dwordx4 {vr(HR+8*u+4,4)}, v{gHO1}, {sr(rT,4)}, s{sSH} offen sc1
        s_add_u32 s{sSH}, s{sSH}, 2048""")
    a_reads(0, 0)
    a(f"s_setprio {GP}\ns_waitcnt vmcnt(0)")
    a(".p2align 6")
    a.label("L_f2loop")
    for u in range(D2):
        p = u & 1
        def mf(j): a(f"{MF32} {vr(AC[j],16)}, {vr(AF[p]+4*(j&1),4)}, {vr(HR+8*u+4*(j>>1),4)}, {vr(AC[j],16)}")
        a(f"s_waitcnt vmcnt({4*(D2-2)}) lgkmcnt(0)")
        a_reads((u + 1) % D2, 1 - p)
        w2_dma(u)
        mf(0); mf(1)
        a(f"buffer_load_dwordx4 {vr(HR+8*u,4)}, v{gHO0}, {sr(rT,4)}, s{sSH} offen sc1")
        mf(2); mf(3)
        a(f"buffer_load_dwordx4 {vr(HR+8*u+4,4)}, v{gHO1}, {sr(rT,4)}, s{sSH} offen sc1\ns_add_u32 s{sSH}, s{sSH}, 2048")
        a(f"s_add_u32 s{sK0}, s{sK0}, 1\ns_cmp_ge_u32 s{sK0}, s{sK1}")
        a("s_cbranch_scc1 L_f2done" if u < D2 - 1 else "s_cbranch_scc0 L_f2loop")
    a.label("L_f2done")
    a(f"""s_setprio 3
    s_waitcnt vmcnt(0) lgkmcnt(0)
    s_cmp_lg_u32 s{sSEG}, 0
    s_cbranch_scc1 L_f2end""")
    TS(14)
    a(f"""s_cmp_lt_u32 s{sG}, 3
    s_cselect_b32 s{sD}, 36, 20""")
    lds_spin(C_HDONE, f"s{sD}", gGC, 14, sleep=2)
    srd(rT, pWO, 0x80000)
    a(f"""s_lshl_b32 s{sA}, s{sI}, 14
    s_lshl_b32 s{sC}, s{sI}, 17
    s_lshl_b32 s{sD}, s{sG}, 7
    s_add_u32 s{sC}, s{sC}, s{sD}
    s_add_u32 s{sD}, s{sA}, 16384""")
    a.label("L_woloop")
    a(f"""s_mov_b32 m0, s{sA}
    s_add_u32 s{sA}, s{sA}, 2048
    buffer_load_dwordx4 v{gSW}, {sr(rT,4)}, s{sC} offen lds
    buffer_load_dwordx4 v{gSW2}, {sr(rT,4)}, s{sC} offen offset:1024 lds
    s_add_u32 s{sC}, s{sC}, 16384
    s_cmp_lt_u32 s{sA}, s{sD}
    s_cbranch_scc1 L_woloop""")
    set_range([64, 64, 64, 75, 86], [64, 68, 72, 76, 86])
    a(f"s_mov_b32 s{sSEG}, 8\ns_branch L_seg")
    a.label("L_f2end")
    TS(8)
    a(f"""v_add_u32 v14, s{sRNG}, v{gL16}
    s_nop 4""")
    for j in range(1, 4):
        for q in range(4): a(f"ds_write_b128 v14, {vr(AC[j]+4*q,4)} offset:{(j-1)*4096+q*1024}")
    lds_inc(C_GBAR, gGC, 15)
    lds_spin(C_GBAR, 4, gGC, 15, sleep=1)
    for j in range(1, 4):
        a(f"s_xor_b32 s{sA}, s{sI}, {j}\ns_mul_i32 s{sA}, s{sA}, {RSZ}\ns_add_u32 s{sA}, s{sA}, {RING}\nv_add_u32 v14, s{sA}, v{gL16}")
        for q in range(4): a(f"ds_read_b128 {vr(AC[j]+4*q,4)}, v14 offset:{(j-1)*4096+q*1024}")
    for j in range(1, 4):
        a(f"s_waitcnt lgkmcnt({(3-j)*4})")
        for q in range(8): a(f"v_pk_add_f32 {vr(AC[0]+2*q,2)}, {vr(AC[0]+2*q,2)}, {vr(AC[j]+2*q,2)}")
    TS(9)
    WOF, OFR, FA = 24, 56, 88
    sJ, sFO, sOO, sNF, sNFE, sRDY = 0, 1, sB, sC, sE, 44
    gCN, gOA, gLA = 14, 15, 16
    srd(rT, pOUT, 0x200000)
    a(f"""s_lshl_b32 s{sFO}, s{sRB}, 10
    s_lshl_b32 s{sA}, s{sRT}, 5
    s_add_u32 s{sFO}, s{sFO}, s{sA}
    s_add_u32 s{sFO}, s{sFO}, {FLG_O}
    s_lshl_b32 s{sOO}, s{sRB}, 1
    s_add_u32 s{sOO}, s{sOO}, s{sRT}
    s_lshl_b32 s{sOO}, s{sOO}, 15
    s_add_u32 s{sOO}, s{sOO}, {OF}
    s_mov_b32 s{sJ}, 0
    s_xor_b32 s{sNF}, s{sRT}, 1
    s_lshl_b32 s{sNF}, s{sNF}, 2
    s_add_u32 s{sNFE}, s{sNF}, 4
    s_add_u32 s{sNF}, s{sNF}, s{sCT}
    s_mov_b32 s{sCAP}, 0
    s_mov_b32 s{sRDY}, -1
    v_and_b32 v17, 24, v0
    v_add_u32 v{gFL}, v{gFL}, v17""")
    def wo_reads():
        for gp in range(8):
            a(f"ds_read_b64_tr_b16 {vr(WOF+4*gp,2)}, v{gWO} offset:{gp*8192}\nds_read_b64_tr_b16 {vr(WOF+4*gp+2,2)}, v{gWO} offset:{gp*8192+1024}")
        a(f"v_add_u32 v{gWO}, 2048, v{gWO}")
    wo_reads()
    a.label("L_evset")
    a(f"""s_mul_i32 s{sA}, s{sNF}, {OST}
    s_add_u32 s{sA}, s{sA}, {OACC}
    v_mov_b32 v{gCN}, s{sA}
    v_lshrrev_b32 v{gOA}, 1, v{gL16}
    v_and_b32 v{gLA}, 0xff, v{gOA}
    v_add_u32 v{gOA}, s{sA}, v{gOA}
    v_add_u32 v{gLA}, s{sA}, v{gLA}""")
    a.label("L_ev")
    a(f"""s_add_u32 s{sCAP}, s{sCAP}, 1
    s_cmp_gt_u32 s{sCAP}, {SPIN_CAP}
    s_cbranch_scc1 L_gdone
    s_cmp_ge_u32 s{sNF}, s{sNFE}
    s_cbranch_scc1 L_evc
    ds_read_b32 v17, v{gCN} offset:{B_CNT}
    s_waitcnt lgkmcnt(0)
    v_readfirstlane_b32 s{sA}, v17
    s_nop 0
    s_bitcmp1_b32 s{sA}, 3
    s_cbranch_scc1 L_fin
    s_cmp_lt_u32 s{sJ}, 4
    s_cbranch_scc1 L_evc
    s_sleep 1
    s_branch L_ev""")
    a.label("L_evc")
    a(f"""s_cmp_ge_u32 s{sJ}, 4
    s_cbranch_scc1 L_gdone
    s_lshl_b32 s{sD}, s{sJ}, 3
    s_lshr_b32 s{sA}, s{sRDY}, s{sD}
    s_and_b32 s{sA}, s{sA}, 0xff
    s_cbranch_scc0 L_cons
    buffer_load_dwordx2 v[18:19], v{gFL}, {sr(rWS,4)}, s{sFO} offen sc1
    s_waitcnt vmcnt(0)
    v_cmp_ne_u64 vcc, {sr(sEP,2)}, v[18:19]
    s_nop 1
    s_mov_b32 s{sRDY}, vcc_lo
    s_lshr_b32 s{sA}, s{sRDY}, s{sD}
    s_and_b32 s{sA}, s{sA}, 0xff
    s_cbranch_scc1 L_ev""")
    a.label("L_cons")
    a(f"s_mov_b32 s{sA}, s{sOO}")
    for gp in range(8):
        a(f"buffer_load_dwordx4 {vr(OFR+4*gp,4)}, v{gL16}, {sr(rWS,4)}, s{sA} offen sc1\ns_add_u32 s{sA}, s{sA}, 4096")
    a(f"""s_add_u32 s{sOO}, s{sOO}, 1024
    s_add_u32 s{sJ}, s{sJ}, 1
    s_setprio {GP}
    s_waitcnt lgkmcnt(0)""")
    for gp in range(8):
        a(f"s_waitcnt vmcnt({7-gp})\n{MF32} {vr(AC[0],16)}, {vr(WOF+4*gp,4)}, {vr(OFR+4*gp,4)}, {vr(AC[0],16)}")
    a(f"""s_setprio 3
    s_cmp_ge_u32 s{sJ}, 4
    s_cbranch_scc1 L_out""")
    wo_reads()
    a("s_branch L_ev")
    a.label("L_out")
    TS(10)
    a(f"""v_and_b32 v17, 31, v0
    v_lshlrev_b32 v18, 3, v{gH}
    v_lshl_add_u32 v17, v17, 10, v18
    s_lshl_b32 s{sA}, s{sG}, 7
    s_lshl_b32 s{sD}, s{sCT}, 6
    s_add_u32 s{sA}, s{sA}, s{sD}
    s_lshl_b32 s{sD}, s{sRB}, 16
    s_add_u32 s{sA}, s{sA}, s{sD}
    s_lshl_b32 s{sD}, s{sRT}, 15
    s_add_u32 s{sA}, s{sA}, s{sD}""")
    for j in range(8): a(f"v_cvt_pk_bf16_f32 v{AC[0]+j}, v{AC[0]+2*j}, v{AC[0]+2*j+1}")
    for q in range(4): a(f"buffer_store_dwordx2 {vr(AC[0]+2*q,2)}, v17, {sr(rT,4)}, s{sA} offen offset:{16*q}")
    a("s_branch L_ev")
    a.label("L_fin")
    for j in range(7, -1, -1): a(f"ds_read_b64 {vr(FA+2*j,2)}, v{gOA} offset:{512*j}")
    a(f"""ds_read_b64 {vr(FA+16,2)}, v{gLA} offset:{B_L}
    s_mov_b32 s{sD}, 0
    s_waitcnt lgkmcnt(0)""")
    for j in range(7, -1, -1): a(f"v_cvt_f32_f64 v{FA+8+j}, {vr(FA+2*j,2)}")
    a(f"v_cvt_f32_f64 v{FA}, {vr(FA+16,2)}")
    a.label("L_fin2")
    a(f"""s_lshr_b32 s{sA}, s{sNF}, 2
    s_lshl_b32 s{sF}, s{sRB}, 1
    v_rcp_f32 v{FA+1}, v{FA}
    s_add_u32 s{sA}, s{sA}, s{sF}
    s_lshl_b32 s{sA}, s{sA}, 3
    s_add_u32 s{sA}, s{sA}, s{sG}
    v_mov_b32 v{FA+3}, 0x76800000
    v_cmp_nle_f32 vcc, 0x0d800000, v{FA}
    v_cmp_nle_f32 {sr(sM,2)}, v{FA}, v{FA+3}""")
    for j in range(8): a(f"v_mul_f32 v{FA+8+j}, v{FA+8+j}, v{FA+1}")
    a(f"""s_or_b64 {sr(sM,2)}, {sr(sM,2)}, vcc
    s_lshl_b32 s{sA}, s{sA}, 2
    s_and_b32 s{sF}, s{sNF}, 3
    s_add_u32 s{sA}, s{sA}, s{sF}
    s_lshl_b32 s{sA}, s{sA}, 10
    s_add_u32 s{sA}, s{sA}, {OF}""")
    for j in range(4): a(f"v_cvt_pk_bf16_f32 v{FA+4+j}, v{FA+8+2*j}, v{FA+9+2*j}")
    a(f"buffer_store_dwordx4 {vr(FA+4,4)}, v{gL16}, {sr(rWS,4)}, s{sA} offen sc1")
    a(f"v_pk_mul_f32 {vr(FA+2,2)}, {vr(FA+8,2)}, 0")
    for j in range(1, 4): a(f"v_pk_fma_f32 {vr(FA+2,2)}, {vr(FA+8+2*j,2)}, 0, {vr(FA+2,2)}")
    a(f"""s_lshl_b32 s{sA}, s{sRB}, 3
    s_add_u32 s{sA}, s{sA}, s{sG}
    v_cmp_u_f32 vcc, v{FA+2}, v{FA+3}
    s_lshl_b32 s{sA}, s{sA}, 4
    s_add_u32 s{sA}, s{sA}, s{sNF}
    s_lshl_b32 s{sA}, s{sA}, 3
    s_add_u32 s{sA}, s{sA}, {FLG_O}
    s_or_b64 {sr(sM,2)}, {sr(sM,2)}, vcc
    s_cselect_b32 s{sF}, 1, 0
    s_cmp_gt_u32 s{sF}, s{sD}
    s_cbranch_scc1 L_fallback
    s_waitcnt vmcnt(0)""")
    flag_store(sA, FA)
    if ts: a(f"s_memrealtime {sr(TS0+26,2)}")
    a(f"""s_add_u32 s{sNF}, s{sNF}, 2
    s_branch L_evset""")
    a.label("L_gdone")
    if ts: a("s_waitcnt vmcnt(0)")
    TS(11)
    if opt.get("padto"):
        a.label("L_pad")
        a(f"s_memrealtime s[96:97]\ns_waitcnt lgkmcnt(0)\ns_sub_u32 s96, s96, s{sEP}\ns_cmp_lt_u32 s96, {opt['padto']}\ns_cbranch_scc1 L_pad")
    ts_dump()
    a.label("L_end")
    a("s_endpgm")

    a.label("L_epretry")
    a(f"""buffer_load_dwordx2 v[14:15], off, {sr(rT,4)}, 0 sc1
    s_cmp_gt_u32 s{sCAP}, {SPIN_CAP}
    s_cbranch_scc1 L_epochok
    s_branch L_epoch""")
    a.label("L_fallback")
    FQ, FK, FV, FS, FC, FT = 56, 60, 64, 72, 108, 124
    a(f"""s_lshl_b32 s{sA}, s{sNF}, 10
    s_add_u32 s{sA}, s{sA}, {QF}
    v_add_u32 v{FT}, s{sA}, v{gL16}
    ds_read_b128 {vr(FQ,4)}, v{FT}
    v_and_b32 v{FT+1}, 0xf0, v{gL16}
    v_lshl_add_u32 v{FT+1}, v{gH}, 8, v{FT+1}
    v_mov_b32 v{FT+2}, 0xff800000
    s_mov_b32 s{sA}, 0x3f803f80""")
    for i in range(8): a(f"v_mov_b32 v{FV+i}, s{sA}")
    a(f"s_mov_b32 s{sA}, 0")
    a.label("L_fb1")
    a(f"""buffer_load_dwordx4 {vr(FK,4)}, v{gL16}, {sr(rWS,4)}, s{sA} offen sc1
    s_waitcnt vmcnt(0) lgkmcnt(0)
    {MF32} {vr(FS,16)}, {vr(FK,4)}, {vr(FQ,4)}, 0
    s_nop 11""")
    maxtree(FS, FT + 3)
    a(f"""v_max_f32 v{FT+2}, v{FT+2}, v{FT+3}
    s_add_u32 s{sA}, s{sA}, 1024
    s_cmp_lt_u32 s{sA}, 0x10000
    s_cbranch_scc1 L_fb1
    v_mov_b32 v{FT+3}, v{FT+2}
    s_nop 1
    v_permlane32_swap_b32 v{FT+2}, v{FT+3}
    v_max_f32 v{FT+2}, v{FT+2}, v{FT+3}""")
    for i in range(16): a(f"v_sub_f32 v{FC+i}, 0, v{FT+2}\nv_mov_b32 v{FA+i}, 0")
    a(f"s_mov_b32 s{sA}, 0")
    a.label("L_fb2")
    a(f"""s_add_u32 s{sF}, s{sA}, {VF}
    buffer_load_dwordx4 {vr(FK,4)}, v{gL16}, {sr(rWS,4)}, s{sA} offen sc1
    s_mov_b32 exec_lo, 0xffff0000
    s_mov_b32 exec_hi, 0xffff0000
    buffer_load_dwordx4 {vr(FV,4)}, v{FT+1}, {sr(rWS,4)}, s{sF} offen sc1
    buffer_load_dwordx4 {vr(FV+4,4)}, v{FT+1}, {sr(rWS,4)}, s{sF} offen offset:512 sc1
    s_mov_b64 exec, -1
    s_waitcnt vmcnt(0)
    {MF32} {vr(FS,16)}, {vr(FK,4)}, {vr(FQ,4)}, {vr(FC,16)}
    s_nop 11""")
    for i in range(16): a(e(FS, i))
    a("s_nop 0")
    for j in range(8): a(c(FS, j))
    a(f"""s_nop 1
    {MF32} {vr(FA,16)}, {vr(FV,4)}, {vr(FS,4)}, {vr(FA,16)}
    {MF32} {vr(FA,16)}, {vr(FV+4,4)}, {vr(FS+8,4)}, {vr(FA,16)}
    s_add_u32 s{sA}, s{sA}, 1024
    s_cmp_lt_u32 s{sA}, 0x10000
    s_cbranch_scc1 L_fb2
    s_nop 15
    s_mov_b32 s{sD}, 1
    s_branch L_fin2""")

    probs = lint(a.lines)
    for p in probs: print("LINT", p, file=sys.stderr)
    head = f"""; fused layernorm + MQA attention + squared-relu FFN, one persistent launch (generated by gen/gen.py)
; @launch grid=(256,1,1) block=(768,1,1) lds=163840
.amdgcn_target "amdgcn-amd-amdhsa--gfx950"
.text
.globl {NAME}_kernel
.p2align 8
.type {NAME}_kernel,@function
{NAME}_kernel:
"""
    tail = f""".section .rodata,"a"
.p2align 6
.amdhsa_kernel {NAME}_kernel
  .amdhsa_next_free_vgpr 168
  .amdhsa_next_free_sgpr 100
  .amdhsa_accum_offset 168
  .amdhsa_group_segment_fixed_size 0
  .amdhsa_kernarg_size 104
  .amdhsa_user_sgpr_count 2
  .amdhsa_user_sgpr_kernarg_segment_ptr 1
  .amdhsa_system_sgpr_workgroup_id_x 1
.end_amdhsa_kernel
"""
    return head + a.text() + tail

if __name__ == "__main__":
    open("k.s", "w").write(gen(False))
    open("k_ts.s", "w").write(gen(True))
    open("k_ts_c.s", "w").write(gen(True, dict(cyc=1)))
```

```python
import sys
from asmlib import Asm, vr, sr, lint
NAME = "parallel_sum__grouped_kv_mqa__dense_activation_squared_relu__prompt"

KF, VF, FLG_KV, FLG_H, FLG_O, OF, HF, TSB = 0, 0x10000, 0x20000, 0x28000, 0x30000, 0x40000, 0x240000, 0x800000
OT = 0x900000
WS_BYTES = 0xA00000
XN, RING, WKV = 0, 65536, 131072
RSZ = 12288
OACC, OST = 114688, 4608
B_L, B_CNT = 4096, 4352
QF, CINB = 151552, 159744
RSTD = CINB
GC = OACC + 7 * OST + B_CNT + 16
C_QREADY, C_ABAR, C_HDONE, C_GBAR, C_WQ, C_KV, C_RS, C_L0, C_EPOCH = 0, 4, 8, 12, 16, 20, 24, 28, 32
W1P = 2752
OFFS = 90.0
SPIN_CAP = 1 << 17

sW, sRB, sG, sKG, sCH = 3, 4, 5, 6, 7
pX, pWQ, pWK, pWV, pWO, pW1, pB1, pW2, pB2, pOUT, pDBG, pWS = 8, 10, 12, 14, 16, 20, 22, 24, 26, 28, 30, 32
rX, rWS, rW, rT = 36, 40, 44, 48
sEP = 52
sI, sRT, sCT = 54, 55, 56
sA, sB, sC, sD, sE, sF = 57, 58, 59, 60, 61, 62
sCAP = 63
sM = 34
TS0 = 64
MF32 = "v_mfma_f32_32x32x16_bf16"

def gen(ts=False, opt={}):
    a = Asm()
    GP = opt.get('gp', 3)
    P1A, P1B, P2A, P2C, P2D, PO = opt.get('pads', (4, 3, 2, 4, 0, 6))
    def pad(n):
        if n >= 0: a(f's_nop {n}')
    late = [False]
    def TS(i):
        if opt.get("pro") and late[0] and i != 11: return
        if opt.get("f2ts") and late[0]: i = {7: 12, 8: 13, 6: 14, 11: 11}.get(i)
        if i is None: return
        if ts: a(f"{'s_memtime' if opt.get('cyc') else 's_memrealtime'} {sr(TS0 + 2 * i, 2)}")
    def srd(r, p, n):
        a(f"s_mov_b32 s{r}, s{p}\ns_mov_b32 s{r+1}, s{p+1}\ns_mov_b32 s{r+2}, {n}\ns_mov_b32 s{r+3}, 0x20000")
    def lds_spin(off, val, va, vt, sleep=1):
        L = a.newlabel("spin"); D = a.newlabel("spun")
        a(f"s_mov_b32 s{sCAP}, 0")
        a.label(L)
        a(f"""ds_read_b32 v{vt}, v{va} offset:{off}
        s_add_u32 s{sCAP}, s{sCAP}, 1
        s_waitcnt lgkmcnt(0)
        v_readfirstlane_b32 s{sF}, v{vt}
        s_cmp_gt_u32 s{sCAP}, {SPIN_CAP}
        s_cbranch_scc1 {D}""")
        if sleep:
            a(f"s_cmp_ge_u32 s{sF}, {val}\ns_cbranch_scc1 {D}\ns_sleep {sleep}\ns_branch {L}")
        else:
            a(f"s_cmp_lt_u32 s{sF}, {val}\ns_cbranch_scc1 {L}")
        a.label(D)
    def lds_inc(off, va, vt):
        a(f"v_mov_b32 v{vt}, 1\ns_mov_b64 exec, 1\nds_add_u32 v{va}, v{vt} offset:{off}\ns_mov_b64 exec, -1")
    def flag_poll(va, soff, vt, sleep=2, preissued=False):
        L = a.newlabel("poll"); D = a.newlabel("polled")
        a(f"s_mov_b32 s{sCAP}, 0")
        if preissued: a(f"s_branch {L}w")
        a.label(L)
        a(f"buffer_load_dwordx2 {vr(vt,2)}, v{va}, {sr(rWS,4)}, s{soff} offen sc1")
        a.label(L + "w")
        a(f"""s_add_u32 s{sCAP}, s{sCAP}, 1
        s_waitcnt vmcnt(0)
        v_cmp_ne_u64 vcc, {sr(sEP,2)}, {vr(vt,2)}
        s_cmp_gt_u32 s{sCAP}, {SPIN_CAP}
        s_cbranch_scc1 {D}
        s_cbranch_vccz {D}
        s_sleep {sleep}
        s_branch {L}""")
        a.label(D)
    def flag_store(soff, vt):
        a(f"""v_mov_b32 v{vt}, s{sEP}
        v_mov_b32 v{vt+1}, s{sEP+1}
        s_mov_b64 exec, 1
        buffer_store_dwordx2 {vr(vt,2)}, off, {sr(rWS,4)}, s{soff} sc1
        s_mov_b64 exec, -1""")
    def ts_dump():
        if not ts: return
        a(f"""s_waitcnt lgkmcnt(0)
        s_mul_i32 s{sA}, s2, 12
        s_add_u32 s{sA}, s{sA}, s{sW}
        s_lshl_b32 s{sA}, s{sA}, 6
        s_add_u32 s{sA}, s{sA}, {TSB}
        s_mov_b64 exec, 1""")
        for q in range(4):
            for j in range(4): a(f"v_mov_b32 v{4+j}, s{TS0 + 2 * (4 * q + j)}")
            a(f"buffer_store_dwordx4 v[4:7], off, {sr(rWS,4)}, s{sA} offset:{16*q}\ns_nop 1")
        a("s_waitcnt vmcnt(0)")
    def maxtree(S, d):
        a(f"v_max3_f32 v{d}, v{S}, v{S+1}, v{S+2}")
        for j in range(3, 15, 2): a(f"v_max3_f32 v{d}, v{d}, v{S+j}, v{S+j+1}")
        a(f"v_max_f32 v{d}, v{d}, v{S+15}")
    def e(S, i): return f"v_exp_f32 v{S+i}, v{S+i}"
    def c(S, j): return f"v_cvt_pk_bf16_f32 v{S + (j & 3) + 8 * (j >> 2)}, v{S+2*j}, v{S+2*j+1}"
    PFS = opt.get("pfstride", 7)
    def l2_prefetch(r, nbytes, vaddr, vdummy, part, nparts):
        chunk = 64 << PFS
        rounds = -(-nbytes // (chunk * 32))
        a(f"s_lshr_b32 s{sF}, s2, 3\ns_mul_i32 s{sF}, s{sF}, {chunk}")
        if part is not None:
            a(f"s_mul_i32 s{sCAP}, s{part}, {chunk*32}\ns_add_u32 s{sF}, s{sF}, s{sCAP}")
        for i in range(-(-rounds // nparts)):
            a(f"buffer_load_dword v{vdummy}, v{vaddr}, {sr(r,4)}, s{sF} offen")
            a(f"s_add_u32 s{sF}, s{sF}, {chunk*32*nparts}")

    a(f"""s_memrealtime {sr(sM,2)}
    s_load_dwordx16 s[8:23], s[0:1], 0
    s_load_dwordx8 s[24:31], s[0:1], 64
    s_load_dwordx2 s[32:33], s[0:1], 96
    s_cmp_ge_u32 s2, 256
    s_cbranch_scc1 L_end""")
    if ts:
        for i in range(16): a(f"s_mov_b32 s{TS0+2*i}, 0")
    TS(0)
    a(f"""v_lshrrev_b32 v1, 6, v0
    s_and_b32 s{sRB}, s2, 7
    v_readfirstlane_b32 s{sW}, v1
    s_lshl_b32 s{sRB}, s{sRB}, 2
    s_lshr_b32 s{sA}, s2, 6
    s_add_u32 s{sRB}, s{sRB}, s{sA}
    s_bfe_u32 s{sG}, s2, 0x30003
    s_lshr_b32 s{sKG}, s{sG}, 1
    s_and_b32 s{sCH}, s{sG}, 1
    v_and_b32 v0, 63, v0
    s_cmp_ge_u32 s{sW}, 8
    s_cbranch_scc1 L_gwave""")

    vL8, vAD, vT = 0, 1, 2
    Q, K, V, S0, S1, ACC, CIN = 4, 8, 40, 104, 120, 136, 152
    sQT, sINC, sKVO, sPB = sI, sRT, sE, sCT
    sOOF, sQA, sCA, sAH, sKB = 0, 1, 46, 47, 45
    a(f"""v_lshrrev_b32 v3, 5, v0
    v_and_b32 v4, 31, v0
    s_lshl_b32 s{sA}, s{sW}, 1
    v_add_u32 v3, s{sA}, v3
    v_lshlrev_b32 v1, 10, v3
    v_lshl_add_u32 v5, v4, 4, v1
    s_lshl_b32 s{sB}, s{sRB}, 16
    s_lshl_b32 s{sC}, s{sKG}, 14
    s_add_u32 s{sD}, s{sB}, s{sC}
    s_waitcnt lgkmcnt(0)""")
    srd(rX, pX, 0x200000)
    a(f"""buffer_load_dwordx4 v[8:11], v5, {sr(rX,4)}, s{sD} offen
    buffer_load_dwordx4 v[12:15], v5, {sr(rX,4)}, s{sD} offen offset:512""")
    def x_load(it):
        a(f"""s_xor_b32 s{sD}, s{sC}, {it << 14}
        s_add_u32 s{sD}, s{sB}, s{sD}
        buffer_load_dwordx4 {vr(8+8*it,4)}, v5, {sr(rX,4)}, s{sD} offen
        buffer_load_dwordx4 {vr(12+8*it,4)}, v5, {sr(rX,4)}, s{sD} offen offset:512""")
    srd(rWS, pWS, WS_BYTES)
    vGC, vQW, vOZ, vCW, vKA, vVA, vFL, vF2 = CIN, CIN + 1, CIN + 2, CIN + 3, CIN + 4, CIN + 5, CIN + 6, CIN + 7
    for i in range(8): a(f"v_mov_b64 {vr(ACC+2*i,2)}, 0")
    a(f"""v_mov_b32 v{vGC}, {GC}
    v_lshlrev_b32 v{vFL}, 7, v4
    v_and_b32 v6, 15, v0
    v_cmp_eq_u32 vcc, 0, v6
    ds_write_b128 v{vGC}, {vr(ACC,4)}
    ds_write_b128 v{vGC}, {vr(ACC,4)} offset:16
    ds_write_b64 v{vGC}, {vr(ACC,2)} offset:32
    v_xor_b32 v4, v4, v3
    v_lshl_add_u32 v2, v4, 4, v1
    v_lshlrev_b32 v3, 2, v3
    v_add_u32 v3, {RSTD}, v3
    v_mov_b32 v{CIN+8}, 0x3f803f80
    v_mov_b32 v{CIN+9}, 0x3f80
    v_mov_b32 v{CIN+10}, 0x3f800000
    v_cndmask_b32 v{V+4}, 0, v{CIN+8}, vcc
    v_cndmask_b32 v{V+5}, 0, v{CIN+8}, vcc""")
    for i in range(1, 16): a(f"v_mov_b64 {vr(V+8*(i>>1)+4+2*(i&1),2)}, {vr(V+4,2)}")
    a(f"""v_mov_b64 {vr(S1+8,2)}, 0
    v_mov_b64 {vr(S1+10,2)}, 0
    v_lshlrev_b32 v{vKA}, 4, v0
    v_lshrrev_b32 v4, 5, v0
    v_lshlrev_b32 v{vF2}, 8, v4
    v_lshlrev_b32 v{vL8}, 3, v0
    s_lshl_b32 s{sA}, s{sW}, 10
    s_add_u32 s{sA}, s{sA}, {QF}
    v_add_u32 v{vQW}, s{sA}, v{vKA}
    s_mul_i32 s{sA}, s{sW}, {OST}
    s_add_u32 s{sA}, s{sA}, {OACC}
    v_add_u32 v{vOZ}, s{sA}, v{vKA}
    s_lshl_b32 s{sA}, s{sW}, 9
    s_add_u32 s{sA}, s{sA}, {CINB}
    v_and_b32 v{vCW}, 0x1ff, v{vKA}
    v_add_u32 v{vCW}, s{sA}, v{vCW}
    s_mov_b32 s{sA}, 0x3b000000""")
    U, R0 = S0, S1
    cOne2, cLo, cHi = CIN + 8, CIN + 9, CIN + 10
    def red32(rs):
        pad = "s_nop 1\n" if len(rs) == 1 else ""
        for mode in ("quad_perm:[1,0,3,2]", "quad_perm:[2,3,0,1]", "row_half_mirror", "row_mirror"):
            a(pad + "\n".join(f"v_add_f32_dpp v{r}, v{r}, v{r} {mode} row_mask:0xf bank_mask:0xf" for r in rs))
        for r in rs: a(f"v_mov_b32 v{r+1}, v{r}")
        a(pad + "\n".join(f"v_permlane16_swap_b32 v{r}, v{r+1}" for r in rs))
        for r in rs: a(f"v_add_f32 v{r}, v{r}, v{r+1}")
    def centre(its):
        for j in range(8):
            for it in its:
                X, R = 8 + 8 * it, R0 + 2 * (it % 3)
                a(f"v_dot2_f32_bf16 v{R+(j&1)}, v{X+j}, v{cOne2}, {'0' if j < 2 else f'v{R+(j&1)}'}")
        a("s_nop 2" if len(its) == 1 else "s_nop 0")
        for it in its: a(f"v_add_f32 v{R0+2*(it%3)}, v{R0+2*(it%3)}, v{R0+2*(it%3)+1}")
        red32([R0 + 2 * (it % 3) for it in its])
        for it in its: a(f"v_mul_f32 v{R0+2*(it%3)}, 0xbb000000, v{R0+2*(it%3)}")
        for it in its:
            X, R = 8 + 8 * it, R0 + 2 * (it % 3)
            a(f"s_xor_b32 s{sD}, s{sC}, {it << 14}\nv_add_u32 v7, s{sD}, v2")
            for j in range(8):
                a(f"v_dot2_f32_bf16 v{U+2*j}, v{X+j}, v{cLo}, v{R}\nv_dot2_f32_bf16 v{U+2*j+1}, v{X+j}, v{cHi}, v{R}")
            for j in range(8):
                a(f"v_cvt_pk_bf16_f32 v{X+j}, v{U+2*j}, v{U+2*j+1}")
                if j == 0: a(f"v_pk_mul_f32 {vr(R,2)}, {vr(U,2)}, {vr(U,2)}")
                else: a(f"v_pk_fma_f32 {vr(R,2)}, {vr(U+2*j,2)}, {vr(U+2*j,2)}, {vr(R,2)}")
                if j == 3: a(f"ds_write_b128 v7, {vr(X,4)}")
            a(f"ds_write_b128 v7, {vr(X+4,4)} offset:512")
    def scales(its):
        for it in its: a(f"v_add_f32 v{R0+2*(it%3)}, v{R0+2*(it%3)}, v{R0+2*(it%3)+1}")
        red32([R0 + 2 * (it % 3) for it in its])
        a(f"v_mov_b32 v7, 0x3727c5ac")
        for it in its: a(f"v_fma_f32 v{R0+2*(it%3)}, v{R0+2*(it%3)}, s{sA}, v7")
        for it in its: a(f"v_rsq_f32 v{R0+2*(it%3)}, v{R0+2*(it%3)}")
        for it in its:
            a(f"s_xor_b32 s{sD}, s{sC}, {it << 14}\ns_lshr_b32 s{sD}, s{sD}, 8\nv_add_u32 v{R0+2*(it%3)+1}, s{sD}, v3")
            a(f"ds_write_b32 v{R0+2*(it%3)+1}, v{R0+2*(it%3)}")
    a("s_setprio 1\ns_waitcnt lgkmcnt(0)\ns_barrier")
    TS(8)
    for it in range(1, 4): x_load(it)
    a("s_waitcnt vmcnt(6)")
    TS(1)
    centre([0]); scales([0])
    lds_inc(C_L0, vGC, 7)
    a("s_setprio 0")
    TS(2)
    a("s_waitcnt vmcnt(0)")
    TS(12)
    centre([1, 2, 3])
    a("s_waitcnt lgkmcnt(0)\ns_barrier")
    TS(3)

    a(f"""ds_read_b64 v[8:9], v{vGC} offset:{C_EPOCH}
    s_lshl_b32 s{sB}, s{sRB}, 10
    s_add_u32 s{sKB}, s{sW}, s{sG}
    s_and_b32 s{sKB}, s{sKB}, 7
    s_lshl_b32 s{sF}, s{sKB}, 12
    s_cmp_ge_u32 s{sW}, 4
    s_cselect_b32 s{sB}, s{sF}, s{sB}
    s_cselect_b64 vcc, -1, 0
    s_add_u32 s{sB}, s{sB}, {FLG_KV}
    v_cndmask_b32 v{vF2}, v{vF2}, v{vFL}, vcc
    s_nop 0
    buffer_load_dwordx2 v[12:13], v{vF2}, {sr(rWS,4)}, s{sB} offen sc1""")
    def zero_block():
        for j in range(4): a(f"ds_write_b128 v{vOZ}, {vr(ACC,4)} offset:{1024*j}")
        a(f"""s_mov_b64 exec, 0x1ffff
        ds_write_b128 v{vOZ}, {vr(ACC,4)} offset:{B_L}
        s_mov_b64 exec, -1""")
    scales([1, 2, 3])
    lds_inc(C_RS, vGC, vT)
    a(f"""s_waitcnt lgkmcnt(4)
    v_readfirstlane_b32 s{sEP}, v8
    v_readfirstlane_b32 s{sEP+1}, v9
    s_lshl_b32 s{sKVO}, s{sKB}, 13
    s_add_u32 s{sA}, s{sKVO}, 4096
    s_add_u32 s{sC}, s{sKVO}, {VF}
    s_add_u32 s{sD}, s{sKVO}, {VF+4096}
    s_mov_b32 s{sOOF}, {OACC}
    s_mov_b32 s{sQA}, {QF}
    s_mov_b32 s{sCA}, {CINB}
    s_mov_b32 s{sQT}, 0
    s_mov_b32 s{sINC}, 0
    s_and_b32 s{sPB}, s{sW}, 3
    s_lshl_b32 s{sPB}, s{sPB}, 1
    s_add_u32 s{sPB}, s{sPB}, 4""")
    a(f"s_cmp_lt_u32 s{sW}, 4\ns_cbranch_scc1 L_shift")
    zero_block()
    a("s_setprio 2\ns_branch L_abar")
    a.label("L_shift")
    flag_poll(vF2, sB, 12, sleep=1, preissued=True)
    a(f"""    s_lshl_b32 s{sB}, s{sRB}, 11
    s_nop 0
    buffer_load_dwordx4 {vr(K,4)}, v{vKA}, {sr(rWS,4)}, s{sB} offen sc1
    s_lshl_b32 s{sB}, s{sKB}, 12
    s_add_u32 s{sB}, s{sB}, {FLG_KV}
    s_nop 0
    buffer_load_dwordx2 v[12:13], v{vFL}, {sr(rWS,4)}, s{sB} offen sc1""")
    TS(11)
    zero_block()
    lds_spin(C_QREADY, 4, vGC, vT, sleep=0)
    TS(5)
    a(f"""ds_read_b128 {vr(Q,4)}, v{vQW} offset:4096
    ds_read_b128 v[16:19], v{vQW}
    s_waitcnt vmcnt(1) lgkmcnt(0)
    {MF32} {vr(S0,16)}, {vr(K,4)}, {vr(Q,4)}, 0
    {MF32} v[20:35], {vr(K,4)}, v[16:19], 0
    s_nop 10""")
    maxtree(S0, vT)
    maxtree(20, 36)
    a(f"""v_mov_b32 v{vT+1}, v{vT}
    v_mov_b32 v37, v36
    s_nop 0
    v_permlane32_swap_b32 v{vT}, v{vT+1}
    v_permlane32_swap_b32 v36, v37
    v_max_f32 v{vT}, v{vT}, v{vT+1}
    v_max_f32 v36, v36, v37
    v_sub_f32 v{S1}, {-OFFS}, v{vT}
    v_sub_f32 v{S1+1}, {-OFFS}, v{vT}
    v_sub_f32 v{S1+4}, {-OFFS}, v36
    v_sub_f32 v{S1+5}, {-OFFS}, v36
    v_mov_b64 {vr(S1+2,2)}, {vr(S1,2)}
    v_mov_b64 {vr(S1+6,2)}, {vr(S1+4,2)}
    ds_write_b128 v{vCW}, {vr(S1,4)} offset:2048
    ds_write_b128 v{vCW}, {vr(S1+4,4)}""")
    a.label("L_abar")
    lds_inc(C_ABAR, vGC, vT)
    flag_poll(vFL, sB, 12, sleep=1, preissued=True)
    TS(4)
    def ldK(t): a(f"buffer_load_dwordx4 {vr(K+4*t,4)}, v{vKA}, {sr(rWS,4)}, s{sKVO if t < 4 else sA} offen offset:{(t&3)*1024} sc1")
    def ldV(t): a(f"buffer_load_dwordx4 {vr(V+8*t,4)}, v{vKA}, {sr(rWS,4)}, s{sC if t < 4 else sD} offen offset:{(t&3)*1024} sc1")
    ldK(0)
    for t in range(7):
        ldK(t + 1); ldV(t)
    ldV(7)
    lds_inc(C_KV, vGC, vT)
    TS(10)
    lds_spin(C_ABAR, 8, vGC, vT, sleep=0)
    TS(6)
    if ts: a(f"s_memtime {sr(TS0+26,2)}")
    def load_q():
        x = [f"v_lshl_add_u32 v{vAD}, v{vL8}, 1, s{sQA}", f"v_and_b32 v{vT}, 0xff, v{vL8}", f"s_add_u32 s{sQA}, s{sQA}, 1024",
             f"ds_read_b128 {vr(Q,4)}, v{vAD}", f"v_lshl_add_u32 v{vT}, v{vT}, 1, s{sCA}", f"s_add_u32 s{sCA}, s{sCA}, 512"]
        return x + [f"ds_read_b128 {vr(CIN+4*j,4)}, v{vT}" for j in range(4)]
    def QK(t, S): return f"{MF32} {vr(S,16)}, {vr(K+4*t,4)}, {vr(Q,4)}, {vr(CIN,16)}"
    def PV(t, hf, S, zero=False): return f"{MF32} {vr(ACC,16)}, {vr(V+8*t+4*hf,4)}, {vr(S+8*hf,4)}, {'0' if zero else vr(ACC,16)}"
    def flush_ops():
        x = [[f"v_add_u32 v{vAD}, s{sOOF}, v{vL8}", f"v_cvt_f64_f32 {vr(vT,2)}, v{ACC}", "s_mov_b32 exec_hi, 0",
              f"ds_add_f64 v{vAD}, {vr(vT,2)} offset:{B_L}", "s_mov_b32 exec_hi, -1"]]
        for j in range(8): x.append([f"v_cvt_f64_f32 {vr(ACC+2*j,2)}, v{ACC+8+j}", f"ds_add_f64 v{vAD}, {vr(ACC+2*j,2)} offset:{512*j}"])
        x.append([f"v_mov_b32 v{vT}, s{sINC}", "s_mov_b64 exec, 1", f"ds_add_rtn_u32 v{vT+1}, v{vAD}, v{vT} offset:{B_CNT}", "s_mov_b64 exec, -1"])
        return x
    for l in load_q(): a(l)
    a(f"s_setprio 1\ns_mov_b64 vcc, -1\ns_waitcnt vmcnt(14) lgkmcnt(0)")
    a(QK(0, S0))
    a("s_nop 11")
    a(".p2align 6")
    a.label("L_atop")
    SS = [S0, S1]
    VW = [12, 10, 8, 6, 4, 2, 1, 0]
    std = "e0 e1 P1 e2 e3 c0 e4 e5 c1 QK e6 e7 c2 e8 c3 e9 e10 W P0 e11 c4 e12 e13 c5 e14 e15 c6 c7"
    orders = {0: "e0 e1 P1 e2 e3 c0 e4 e5 c1 QK e6 e7 c2 e8 c3 e9 e10 F e11 F c4 F e12 F e13 F c5 F e14 F e15 F c6 F c7 F W P0",
              1: "e0 e1 e2 e3 c0 P1 e4 e5 c1 e6 e7 QK c2 e8 c3 e9 e10 e11 W P0 c4 e12 e13 c5 e14 e15 c6 c7 R",
              4: std + " U",
              6: "e0 e1 P1 e2 e3 c0 e4 e5 c1 QK e6 e7 c2 e8 c3 e9 e10 W P0 L L L L e11 L L c4 L e12 L e13 L c5 L e14 e15 c6 c7",
              7: "e0 e1 P1 e2 e3 c0 e4 e5 c1 G QK e6 e7 c2 e8 c3 e9 e10 W P0 e11 X c4 e12 e13 c5 e14 e15 c6 c7"}
    for t in range(8):
        cur, nxt = SS[t & 1], SS[(t + 1) & 1]
        fl, lq = flush_ops(), load_q()
        for tok in orders.get(t, std).split():
            if tok[0] == "e": a(e(cur, int(tok[1:])))
            elif tok[0] == "c": a(c(cur, int(tok[1:])))
            elif tok == "P1": a(PV((t - 1) & 7, 1, nxt))
            elif tok == "P0": a(PV(t, 0, cur, zero=(t == 0)))
            elif tok == "QK": a(QK((t + 1) & 7, nxt))
            elif tok == "W":
                a(f"s_cbranch_vccnz L_vs{t}")
                a.label(f"L_vr{t}")
            elif tok == "G": a("s_waitcnt lgkmcnt(0)")
            elif tok == "F": a("\n".join(fl.pop(0)))
            elif tok == "L": a(lq.pop(0))
            elif tok == "R":
                a(f"""s_waitcnt lgkmcnt(0)
                v_readfirstlane_b32 s{sAH}, v{vT+1}
                s_setprio 0
                s_lshr_b32 s{sAH}, s{sAH}, s{sPB}
                s_and_b32 s{sAH}, s{sAH}, 1
                s_cbranch_scc0 L_yield
                s_setprio 2""")
                a.label("L_yield")
            elif tok == "U":
                a(f"s_cmp_lg_u32 s{sAH}, 0\ns_cbranch_scc1 L_keep\ns_setprio 1")
                a.label("L_keep")
            elif tok == "X":
                a(f"""s_cmp_lg_u32 s{sQT}, 0
                s_cselect_b32 s{sA}, {OST}, 0
                s_add_u32 s{sOOF}, s{sOOF}, s{sA}
                s_lshl_b32 s{sINC}, 1, s{sPB}
                s_add_u32 s{sINC}, s{sINC}, 1
                s_add_u32 s{sQT}, s{sQT}, 1""")
                if opt.get("qts"):
                    a("s_memtime s[96:97]\ns_waitcnt lgkmcnt(0)")
                    for i in range(1, 8): a(f"s_mov_b32 s{TS0+2*i}, s{TS0+2*i+2}")
                    a(f"s_sub_u32 s{TS0+16}, s96, s{TS0+26}")
                a(f"s_cmp_lt_u32 s{sQT}, 8")
    a("s_cbranch_scc1 L_atop")
    if not opt.get("qts"): TS(7)
    a("s_setprio 2")
    a(PV(7, 1, S1))
    a("s_nop 11")
    for x in flush_ops(): a("\n".join(x))
    if opt.get("delay_f1", 0) > 8:
        a(f"v_mov_b32 v4, {GC}")
        lds_inc(C_ABAR, 4, 5)
    if ts:
        a(f"s_memtime {sr(TS0+28,2)}\ns_waitcnt lgkmcnt(0)\ns_sub_u32 s{TS0+28}, s{TS0+28}, s{TS0+26}")
    TS(9)
    ts_dump()
    a("s_endpgm")
    for t in range(8):
        a.label(f"L_vs{t}")
        a(f"s_waitcnt vmcnt({VW[t]})")
        for j in range(4): a(f"v_permlane16_swap_b32 v{V+8*t+4+j}, v{V+8*t+j}")
        a("s_mov_b64 vcc, 0" if t == 7 else "s_nop 0")
        a(f"s_branch L_vr{t}")

    a(".p2align 6")
    a.label("L_gwave")
    gGC, gL16, gSW, gTR, gH, gR = 1, 2, 3, 4, 5, 6
    a(f"""s_setprio 3
    s_sub_u32 s{sI}, s{sW}, 8
    v_lshlrev_b32 v{gL16}, 4, v0
    v_lshlrev_b32 v10, {PFS}, v0
    s_sub_u32 s{sE}, s{sI}, 1
    s_waitcnt lgkmcnt(0)
    s_cmp_lg_u32 s{sI}, 0
    s_cbranch_scc1 L_g123""")
    a(f"""s_cmp_eq_u32 s{sCH}, 0
    s_cselect_b32 s{rW}, s{pWK}, s{pWV}
    s_cselect_b32 s{rW+1}, s{pWK+1}, s{pWV+1}
    s_mov_b32 s{rW+2}, 16384
    s_mov_b32 s{rW+3}, 0x20000""")
    for q in range(4):
        a(f"s_mov_b32 m0, {WKV + q * 4096}\ns_mov_b32 s{sA}, {q*4096}")
        for j in range(4): a(f"buffer_load_dwordx4 v{gL16}, {sr(rW,4)}, s{sA} offen offset:{j*1024} lds")
    a("s_branch L_gcom")
    a.label("L_g123")
    srd(rW, pWQ, 0x80000)
    a.label("L_gcom")
    srd(rWS, pWS, WS_BYTES)
    srd(rT, pDBG, 256)
    a(f"""s_lshr_b32 s{sRT}, s{sI}, 1
    s_and_b32 s{sCT}, s{sI}, 1
    v_lshrrev_b32 v7, 3, v0
    v_lshrrev_b32 v8, 2, v0
    v_and_b32 v8, 4, v8
    v_and_b32 v9, 7, v0
    v_xor_b32 v8, v8, v9
    v_lshlrev_b32 v8, 4, v8
    v_lshl_add_u32 v{gSW}, v7, 10, v8
    v_mov_b32 v{gGC}, {GC}
    v_lshrrev_b32 v{gH}, 5, v0
    v_and_b32 v7, 3, v0
    v_and_b32 v8, 16, v0
    v_lshlrev_b32 v8, 1, v8
    v_lshl_add_u32 v{gTR}, v7, 3, v8
    s_cmp_eq_u32 s{sI}, 0
    s_cbranch_scc1 L_g0""")
    a(f"""s_mul_i32 s{sE}, s{sE}, 26
    s_lshl_b32 s{sB}, s{sE}, 13
    s_lshl_b32 s{sC}, s{sG}, 7
    s_add_u32 s{sB}, s{sB}, s{sC}
    s_lshl_b32 s{sA}, s{sE}, 10
    s_add_u32 s{sA}, s{sA}, {RING}
    s_add_u32 s{sD}, s{sA}, {26*1024}
    s_min_u32 s{sD}, s{sD}, {RING + 65536}
    s_setprio 0
    s_barrier
    s_cmp_lg_u32 s{sI}, 3
    s_cbranch_scc1 L_wqloop
    s_mov_b32 s{sCAP}, 0""")
    a.label("L_epoch")
    a(f"""buffer_load_dwordx2 v[14:15], off, {sr(rT,4)}, 0 sc1
    s_add_u32 s{sCAP}, s{sCAP}, 1
    s_cmp_gt_u32 s{sCAP}, {SPIN_CAP}
    s_cbranch_scc1 L_wqloop
    s_waitcnt vmcnt(0)
    v_readfirstlane_b32 s{sEP+1}, v15
    s_nop 0
    s_cmp_eq_u32 s{sEP+1}, 0
    s_cbranch_scc1 L_epoch
    ds_write_b64 v{gGC}, v[14:15] offset:{C_EPOCH}""")
    TS(1)
    a.label("L_wqloop")
    a(f"""s_mov_b32 m0, s{sA}
    s_add_u32 s{sA}, s{sA}, 1024
    buffer_load_dwordx4 v{gSW}, {sr(rW,4)}, s{sB} offen lds
    s_add_u32 s{sB}, s{sB}, 8192
    s_cmp_lt_u32 s{sA}, s{sD}
    s_cbranch_scc1 L_wqloop
    s_setprio 3""")
    a(f"""s_cmp_eq_u32 s{sI}, 1
    s_cselect_b32 s{rW}, s{pB1}, s{pB2}
    s_cselect_b32 s{rW+1}, s{pB1+1}, s{pB2+1}
    s_mov_b32 s{rW+2}, 1024
    s_cselect_b32 s{rW+2}, {W1P}, s{rW+2}
    buffer_load_dword v6, v10, {sr(rW,4)}, 0 offen
    s_waitcnt vmcnt(1)""")
    lds_inc(C_WQ, gGC, 7)
    a("s_branch L_gb2")
    a.label("L_g0")
    WF, XF, DD = 32, 96, 160
    a(f"""s_cmp_lg_u32 s2, 0
    s_cbranch_scc1 L_noep
    v_mov_b32 v10, s{sM}
    v_mov_b32 v11, s{sM+1}
    v_or_b32 v11, 0x80000000, v11
    v_mov_b64 v[12:13], 0
    s_mov_b64 exec, 1
    buffer_atomic_cmpswap_x2 v[10:13], off, {sr(rT,4)}, 0 sc1
    s_mov_b64 exec, -1
    s_nop 0""")
    a.label("L_noep")
    a("s_barrier")
    a(f"""v_and_b32 v7, 15, v0
    v_lshrrev_b32 v8, 4, v0
    v_lshlrev_b32 v9, 3, v7
    v_lshl_add_u32 v9, v8, 8, v9
    v_add_u32 v9, {WKV}, v9
    s_lshl_b32 s{sA}, s{sKG}, 14
    v_xor_b32 v10, v7, v8
    v_lshlrev_b32 v10, 4, v10
    v_lshl_add_u32 v10, v7, 10, v10
    v_add_u32 v10, s{sA}, v10
    v_xor_b32 v11, 64, v10
    v_xor_b32 v12, 0x80, v10
    v_xor_b32 v13, 0xc0, v10
    s_lshl_b32 s{sA}, s{sKG}, 6
    s_add_u32 s{sA}, s{sA}, {RSTD}
    v_lshl_add_u32 v20, v7, 2, s{sA}
    v_lshl_add_u32 v21, v8, 4, s{sA}
    s_cmp_eq_u32 s{sCH}, 0
    s_cselect_b32 s{sD}, {KF}, {VF}
    v_and_b32 v16, 1, v8
    v_lshlrev_b32 v16, 9, v16
    v_lshrrev_b32 v17, 1, v8
    v_lshl_add_u32 v16, v17, 3, v16
    v_lshl_add_u32 v16, v7, 4, v16
    s_xor_b32 s{sA}, s{sKG}, s{sCH}
    s_and_b32 s{sA}, s{sA}, 1
    s_lshl_b32 s{sA}, s{sA}, 8
    s_add_u32 s{sD}, s{sD}, s{sA}
    s_lshl_b32 s{sA}, s{sRB}, 1
    s_lshr_b32 s{sB}, s{sKG}, 1
    s_add_u32 s{sA}, s{sA}, s{sB}
    s_lshl_b32 s{sA}, s{sA}, 10
    s_add_u32 s{sD}, s{sD}, s{sA}
    s_lshl_b32 s{sA}, s{sRB}, 3
    s_add_u32 s{sA}, s{sA}, s{sG}
    s_lshl_b32 s{sA}, s{sA}, 7
    s_add_u32 s{sA}, s{sA}, {FLG_KV}
    s_waitcnt vmcnt(0)""")
    for ks in range(16):
        a(f"ds_read_b64_tr_b16 {vr(WF+4*ks,2)}, v9 offset:{ks*1024}\nds_read_b64_tr_b16 {vr(WF+4*ks+2,2)}, v9 offset:{ks*1024+128}")
    TS(1)
    lds_spin(C_EPOCH + 4, 1, gGC, 14, sleep=0)
    a(f"ds_read_b64 v[22:23], v{gGC} offset:{C_EPOCH}")
    lds_spin(C_L0, 8, gGC, 14, sleep=0)
    TS(2)
    for ks in range(16):
        a(f"ds_read_b128 {vr(XF+4*ks,4)}, v{10+(ks&3)} offset:{(ks>>2)*256}")
    a(f"""s_cmp_eq_u32 s{sCH}, 0
    s_cbranch_scc0 L_vchain""")
    for sw in (False, True):
        if sw: a.label("L_vchain")
        for ks in range(16):
            A_, B_ = (XF, WF) if sw else (WF, XF)
            if ks % 4 == 0: a(f"s_waitcnt lgkmcnt({12 - ks})")
            if ks == 12: a(f"ds_read_b128 v[24:27], v21" if sw else "ds_read_b32 v24, v20")
            a(f"v_mfma_f32_16x16x32_bf16 {vr(DD,4)}, {vr(A_+4*ks,4)}, {vr(B_+4*ks,4)}, {'0' if ks == 0 else vr(DD,4)}")
        if not sw: a("s_waitcnt lgkmcnt(0)\nv_mov_b32 v25, v24\nv_mov_b64 v[26:27], v[24:25]\ns_branch L_kvst")
    a("s_waitcnt lgkmcnt(0)\ns_nop 2")
    a.label("L_kvst")
    a(f"""s_nop 3
    v_pk_mul_f32 {vr(DD,2)}, {vr(DD,2)}, v[24:25]
    v_pk_mul_f32 {vr(DD+2,2)}, {vr(DD+2,2)}, v[26:27]
    v_cvt_pk_bf16_f32 v18, v{DD}, v{DD+1}
    v_cvt_pk_bf16_f32 v19, v{DD+2}, v{DD+3}
    buffer_store_dwordx2 v[18:19], v16, {sr(rWS,4)}, s{sD} offen sc1""")
    TS(13)
    a(f"""s_mov_b64 exec, 1
    s_waitcnt vmcnt(0)
    buffer_store_dwordx2 v[22:23], off, {sr(rWS,4)}, s{sA} sc1
    s_mov_b64 exec, -1""")
    TS(3)
    a.label("L_gb2")
    QA, QW, QX = 8, 24, 152
    a(f"""v_bfe_u32 v9, v0, 2, 2
    v_lshrrev_b32 v8, 1, v9
    v_xor_b32 v8, s{sCT}, v8
    v_lshl_add_u32 v8, v8, 6, v{gTR}
    v_lshl_add_u32 v8, v9, 7, v8
    v_lshl_add_u32 v8, v{gH}, 10, v8
    v_add_u32 v8, {RING}, v8""")
    lds_spin(C_WQ, 3, gGC, 7, sleep=0)
    kord = [aa + 8 * b for aa in range(8) for b in range(4)]
    for n, ks in enumerate(kord):
        a(f"ds_read_b64_tr_b16 {vr(QW+4*n,2)}, v8 offset:{ks*2048}\nds_read_b64_tr_b16 {vr(QW+4*n+2,2)}, v8 offset:{ks*2048+512}")
    a(f"""v_and_b32 v7, 31, v0
    v_and_b32 v9, 15, v0
    v_xor_b32 v9, v9, v{gH}
    v_lshlrev_b32 v9, 4, v9
    v_lshl_add_u32 v7, v7, 10, v9
    s_lshl_b32 s{sC}, s{sRT}, 15
    v_add_u32 v7, s{sC}, v7""")
    sRNG = 35
    sT1, sT2, sNG = 0, 1, sE
    sN, sSO = sA, sB
    srd(rW, pW1, 512 * W1P)
    a(f"""s_lshl_b32 s{sT1}, s{sG}, 2
    s_add_u32 s{sT1}, s{sT1}, s{sI}
    s_sub_u32 s{sT2}, 3, s{sI}
    s_lshl_b32 s{sT2}, s{sT2}, 3
    s_add_u32 s{sT2}, s{sT2}, s{sG}
    s_add_u32 s{sT2}, s{sT2}, 32
    s_cmp_lt_u32 s{sT2}, 43
    s_cselect_b32 s{sNG}, 16, 8
    s_mul_i32 s{sRNG}, s{sI}, {RSZ}
    s_add_u32 s{sRNG}, s{sRNG}, {RING}
    s_lshl_b32 s{sSO}, s{sT1}, 6
    v_lshrrev_b32 v9, 2, v0
    v_and_b32 v10, 3, v0
    v_mul_u32_u24 v9, {W1P}, v9
    s_waitcnt vmcnt(1)
    s_cmp_eq_u32 s{sI}, 0
    s_cbranch_scc1 L_nov6
    s_waitcnt vmcnt(0)""")
    a.label("L_nov6")
    a(f"""v_lshl_add_u32 v6, v10, 4, v9
    s_waitcnt lgkmcnt(0)""")
    TS(12)
    a("s_barrier")
    TS(4)
    def early_fill(n, b):
        a(f"""s_add_u32 m0, s{sRNG}, {n*4096 + b*1024}
        s_add_u32 s{sD}, s{sSO}, {(n*16 + b*128)*W1P}
        buffer_load_dwordx4 v6, {sr(rW,4)}, s{sD} offen lds""")
    EARLY = opt.get("early", 0)
    land = {}
    def xread(n, dst):
        aa, b = n >> 2, n & 3
        if b == 0 and aa > 0: a(f"v_xor_b32 v7, {((aa ^ (aa - 1)) * 32)}, v7")
        a(f"ds_read_b128 {vr(dst,4)}, v7 offset:{b*256}")
        land[n] = dst
    for n in range(4): xread(n, QX + 4 * n)
    nxt_rd = 4
    for n in range(32):
        a(f"s_waitcnt lgkmcnt({nxt_rd - n - 1})")
        a(f"{MF32} {vr(QA,16)}, {vr(QW+4*n,4)}, {vr(land[n],4)}, {'0' if n == 0 else vr(QA,16)}")
        if nxt_rd < 32: xread(nxt_rd, land[n]); nxt_rd += 1
        if n < 5 and nxt_rd < 32: xread(nxt_rd, QW + 4 * n); nxt_rd += 1
        if EARLY and n < 12: early_fill(n >> 2, n & 3)
    gRS = 166
    if opt.get("pro"): TS(9)
    lds_spin(C_RS, 8, gGC, 26, sleep=0)
    if opt.get("pro"): TS(10)
    a(f"""v_and_b32 v7, 31, v0
    v_lshlrev_b32 v26, 2, v7
    v_add_u32 v26, {RSTD}, v26
    ds_read_b64 v[24:25], v{gGC} offset:{C_EPOCH}
    ds_read_b32 v{gRS}, v26
    ds_read_b32 v{gRS+1}, v26 offset:128
    s_lshl_b32 s{sA}, s{sCT}, 2
    s_add_u32 s{sA}, s{sA}, s{sRT}
    s_lshl_b32 s{sA}, s{sA}, 10
    s_add_u32 s{sA}, s{sA}, {QF}
    v_add_u32 v27, s{sA}, v{gL16}
    s_cmp_eq_u32 s{sRT}, 0
    s_cselect_b64 vcc, -1, 0
    s_waitcnt lgkmcnt(0)
    v_readfirstlane_b32 s{sEP}, v24
    v_cndmask_b32 v28, v{gRS+1}, v{gRS}, vcc
    v_readfirstlane_b32 s{sEP+1}, v25
    v_mul_f32 v28, 0x3eb8aa3b, v28""")
    for j in range(8): a(f"v_pk_mul_f32 {vr(QA+2*j,2)}, {vr(QA+2*j,2)}, v[28:29] op_sel_hi:[1,0]")
    for j in range(8): a(f"v_cvt_pk_bf16_f32 v{QA+j}, v{QA+2*j}, v{QA+2*j+1}")
    a(f"""ds_write_b128 v27, {vr(QA,4)}
    ds_write_b128 v27, {vr(QA+4,4)} offset:2048""")
    lds_inc(C_QREADY, gGC, 26)
    TS(5)
    AC = [136, 104, 120, 88]
    XB = 24
    vB1, gXA, gXT, gWA, gWB, gV1 = 8, 16, 17, 18, 19, 20
    a(f"""v_mov_b32 v{gV1}, v6
    v_add_u32 v{gV1+1}, {128*W1P-1024}, v6
    v_add_u32 v{gV1+2}, {2*(128*W1P-1024)}, v6
    v_add_u32 v{gV1+3}, {3*(128*W1P-1024)}, v6""")
    def w1_dma1(b): return f"buffer_load_dwordx4 v{gV1+b}, {sr(rW,4)}, s{sSO} offen offset:{b*1024} lds"
    srd(rX, pX, 0x200000)
    srd(rT, pB2, 1024)
    a(f"""v_lshlrev_b32 v40, 3, v{gH}
    v_lshl_add_u32 v41, v7, 10, v40
    s_lshl_b32 s{sA}, s{sG}, 7
    s_lshl_b32 s{sD}, s{sCT}, 6
    s_add_u32 s{sA}, s{sA}, s{sD}
    s_lshl_b32 s{sD}, s{sRB}, 16
    s_lshl_b32 s{sC}, s{sRT}, 15
    s_add_u32 s{sD}, s{sD}, s{sC}
    s_add_u32 s{sD}, s{sD}, s{sA}""")
    for q in range(4): a(f"buffer_load_dwordx2 {vr(XB+2*q,2)}, v41, {sr(rX,4)}, s{sD} offen offset:{16*q}")
    for q in range(4): a(f"buffer_load_dwordx2 {vr(XB+8+2*q,2)}, v40, {sr(rT,4)}, s{sA} offen offset:{16*q}")
    a(f"""v_lshlrev_b32 v40, 1, v7
    s_lshl_b32 s{sA}, s{sT1}, 6
    s_lshl_b32 s{sD}, s{sT2}, 6""")
    srd(rT, pB1, W1P)
    a(f"""buffer_load_ushort v42, v40, {sr(rT,4)}, s{sA} offen
    buffer_load_ushort v43, v40, {sr(rT,4)}, s{sD} offen
    v_and_b32 v44, 15, v0
    v_xor_b32 v44, v44, v{gH}
    v_lshlrev_b32 v44, 4, v44
    v_lshl_add_u32 v{gXA}, v7, 10, v44
    v_bfe_u32 v44, v0, 2, 2
    v_lshl_add_u32 v{gWB}, v44, 6, v{gTR}
    v_lshl_add_u32 v{gWB}, v{gH}, 9, v{gWB}
    v_add_u32 v{gWB}, s{sRNG}, v{gWB}""")
    a(f"""v_rcp_f32 v44, v{gRS}
    v_rcp_f32 v45, v{gRS+1}
    v_sub_u32 v48, v{gH}, 1
    s_mov_b32 s{sD}, 0xffff0000
    v_and_b32 v46, s{sD}, v44
    v_and_b32 v47, s{sD}, v45
    v_sub_f32 v44, v44, v46
    v_sub_f32 v45, v45, v47
    v_cvt_pk_bf16_f32 v12, v46, v44
    v_cvt_pk_bf16_f32 v14, v47, v45
    v_and_b32 v12, v48, v12
    v_and_b32 v14, v48, v14
    v_mov_b32 v9, 0
    v_mov_b64 v[10:11], 0
    v_mov_b32 v13, 0
    s_waitcnt vmcnt(0)""")
    for j in range(8):
        a(f"v_lshlrev_b32 v{AC[0]+2*j}, 16, v{XB+j}\nv_and_b32 v{AC[0]+2*j+1}, s{sD}, v{XB+j}")
        a(f"v_lshlrev_b32 v44, 16, v{XB+8+j}\nv_and_b32 v45, s{sD}, v{XB+8+j}")
        a(f"v_pk_add_f32 {vr(AC[0]+2*j,2)}, {vr(AC[0]+2*j,2)}, v[44:45]")
    a(f"""v_lshl_or_b32 v8, v42, 16, v42
    v_lshl_or_b32 v15, v43, 16, v43""")
    H0, H1 = 104, 120
    FB = [24, 56]
    FX = [88, 150]
    FX = [88, 152]
    def f1_reads(p, b):
        nx = 4 if not (p == 1 and b == 3) else 4
        return [f"ds_read_b64_tr_b16 {vr(FB[p]+8*b,2)}, v{gWA} offset:{b*1024}", f"ds_read_b64_tr_b16 {vr(FB[p]+8*b+2,2)}, v{gWA} offset:{b*1024+256}",
                f"ds_read_b128 {vr(FB[p]+8*b+4,4)}, v{gXT} offset:{b*256}", f"ds_read_b128 {vr(FX[p]+4*b,4)}, v{gXT} offset:{b*256+32768}"]
    gR2 = 6
    def bias():
        a(f"{MF32} {vr(H0,16)}, v[8:11], v[12:15], 0\n{MF32} {vr(H1,16)}, v[8:11], v[14:17], 0")
    a(f"""v_mul_f32 v{gR2}, v{gRS}, v{gRS}
    v_mul_f32 v{gR2+1}, v{gRS+1}, v{gRS+1}
    v_mov_b32 v{gWA}, v{gWB}
    v_mov_b32 v{gXT}, v{gXA}
    s_mov_b32 s{sN}, 0
    s_mov_b32 s{sM}, 0""")
    bias()
    plan_lo = [(0, 29, 64, 75), (18, 29, 75, 86), (36, 14, 0, 50), (50, 14, 0, 64)]
    plan_hi = [(0, 26, 64, 72), (18, 25, 72, 79), (36, 25, 79, 86), (54, 10, 0, 64)]
    def pack(b): return sum(x << (8 * i) for i, x in enumerate(b))
    sPL, sSW = 18, 19
    a(f"s_mov_b32 s{sPL}, {pack(plan_hi[0])}")
    a(f"s_cmp_lt_u32 s{sG}, 3\ns_cselect_b32 s{sD}, 4, 0\ns_add_u32 s{sD}, s{sD}, s{sI}")
    for n, pl in enumerate(plan_hi + plan_lo):
        if n: a(f"s_cmp_eq_u32 s{sD}, {n}\ns_cselect_b32 s{sPL}, {pack(pl)}, s{sPL}")
    a(f"""s_lshr_b32 s{sD}, s{sPL}, 24
    s_mov_b32 s{rX}, s{pW2}
    s_mov_b32 s{rX+1}, s{pW2+1}
    s_lshl_b32 s{rX+2}, s{sD}, 14
    s_mov_b32 s{rX+3}, 0x20000
    s_and_b32 s{sSW}, s{sPL}, 0xff
    s_lshl_b32 s{sSW}, s{sSW}, 14
    s_lshl_b32 s{sD}, s{sG}, 7
    s_add_u32 s{sSW}, s{sSW}, s{sD}""")
    if EARLY:
        a(f"s_add_u32 s{sSO}, s{sSO}, {48*W1P}")
        for b in range(4):
            for l in f1_reads(0, b): a(l)
    lds_spin(C_KV, opt.get("kvgate", 8), gGC, 56, sleep=2)
    if opt.get("delay_f1"): lds_spin(C_ABAR, 16, gGC, 56, sleep=16)
    TS(15)
    late[0] = True
    if not EARLY:
        for n in range(3):
            a(f"s_add_u32 m0, s{sRNG}, {n*4096}\ns_nop 0")
            for b in range(4): a(w1_dma1(b))
            a(f"s_add_u32 s{sSO}, s{sSO}, {16*W1P}")
        a(f"s_waitcnt vmcnt(8)")
        for b in range(4):
            for l in f1_reads(0, b): a(l)
    TS(3)
    a(".p2align 6")
    a.label("L_f1loop")
    for p in range(2):
        a(f"""s_add_u32 m0, s{sM}, s{sRNG}
        s_add_u32 s{sM}, s{sM}, 4096
        s_cmp_lt_u32 s{sM}, {RSZ}
        s_cselect_b32 s{sM}, s{sM}, 0
        s_add_u32 s{sN}, s{sN}, 1
        s_and_b32 s{sD}, s{sN}, 7
        s_lshl_b32 s{sD}, s{sD}, 5
        v_add_u32 v{gWA}, s{sM}, v{gWB}
        v_xor_b32 v{gXT}, s{sD}, v{gXA}""")
        if p == 1:
            a(f"""s_lshl_b32 s{sD}, s{sT2}, 6
            s_cmp_eq_u32 s{sN}, 6
            s_cselect_b32 s{sSO}, s{sD}, s{sSO}
            s_add_u32 s{sD}, s{sN}, 2
            s_cmp_lt_u32 s{sD}, s{sNG}
            s_cselect_b32 s{rW+2}, s{rW+2}, 0""")
        for b in range(4):
            rd = f1_reads(1 - p, b)
            if not opt.get("x_nolg"): a("s_waitcnt lgkmcnt(12)")
            a(f"{MF32} {vr(H0,16)}, {vr(FB[p]+8*b,4)}, {vr(FB[p]+8*b+4,4)}, {vr(H0,16)}")
            a(w1_dma1(b))
            a(rd[2]); a(rd[3])
            pad(P1A)
            a(f"{MF32} {vr(H1,16)}, {vr(FB[p]+8*b,4)}, {vr(FX[p]+4*b,4)}, {vr(H1,16)}")
            if not opt.get("x_novm"): a("s_waitcnt vmcnt(8)")
            a(rd[0]); a(rd[1])
            if b < 3: pad(P1B)
        a(f"s_add_u32 s{sSO}, s{sSO}, {16*W1P}")
    a(f"""s_and_b32 s{sD}, s{sN}, 7
    s_cbranch_scc1 L_f1loop""")
    TS(2)
    a(f"""
    s_mul_i32 s{sD}, s{sRB}, 86
    s_lshl_b32 s{sC}, s{sT1}, 1
    s_add_u32 s{sD}, s{sD}, s{sC}
    s_lshl_b32 s{sD}, s{sD}, 11
    s_add_u32 s{sD}, s{sD}, {HF}
    s_mov_b32 s{sT1}, s{sT2}
    s_setprio 3
    v_mov_b32 v8, v15""")
    for rt, Hh in enumerate((H0, H1)):
        for j in range(16): a(f"v_max_f32 v{Hh+j}, 0, v{Hh+j}")
        for j in range(8): a(f"v_pk_mul_f32 {vr(Hh+2*j,2)}, {vr(Hh+2*j,2)}, {vr(Hh+2*j,2)}")
        sel = "op_sel_hi:[1,0]" if rt == 0 else "op_sel:[0,1] op_sel_hi:[1,1]"
        for j in range(8): a(f"v_pk_mul_f32 {vr(Hh+2*j,2)}, {vr(Hh+2*j,2)}, {vr(gR2,2)} {sel}")
        for j in range(8): a(f"v_cvt_pk_bf16_f32 v{Hh+j}, v{Hh+2*j}, v{Hh+2*j+1}")
        for s_ in range(2):
            a(f"buffer_store_dwordx4 {vr(Hh+4*s_,4)}, v{gL16}, {sr(rWS,4)}, s{sD} offen offset:{s_*2048+rt*1024} sc1")
    gSW2 = 22
    D2 = RSZ // 2048
    def w2_dma(u):
        a(f"""s_add_u32 m0, s{sRNG}, {u*2048}
        s_nop 0
        buffer_load_dwordx4 v{gSW}, {sr(rX,4)}, s{sSW} offen lds
        buffer_load_dwordx4 v{gSW2}, {sr(rX,4)}, s{sSW} offen offset:1024 lds
        s_add_u32 s{sSW}, s{sSW}, 16384""")
    a(f"""s_cmp_eq_u32 s{sN}, 8
    s_cselect_b32 s{sD}, 1, 16
    v_mov_b32 v{H0+8}, s{sD}
    s_cmp_lt_u32 s{sN}, s{sNG}
    s_cbranch_scc1 L_f1more
    v_add_u32 v{gSW2}, {8192-1024}, v{gSW}""")
    for u in range(D2): w2_dma(u)
    a(f"""s_waitcnt vmcnt({2*D2})
    s_branch L_f1pub""")
    a.label("L_f1more")
    a("s_waitcnt vmcnt(0)")
    a.label("L_f1pub")
    a(f"""s_mov_b64 exec, 1
    ds_add_rtn_u32 v{H0+9}, v{gGC}, v{H0+8} offset:{C_HDONE}
    s_mov_b64 exec, -1
    s_lshl_b32 s{sC}, s{sRB}, 3
    s_add_u32 s{sC}, s{sC}, s{sG}
    s_lshl_b32 s{sC}, s{sC}, 7
    s_add_u32 s{sC}, s{sC}, s{sN}
    s_add_u32 s{sC}, s{sC}, {FLG_H - 8}
    s_cmp_lt_u32 s{sG}, 3
    s_cselect_b32 s{sCAP}, 1, 0
    s_cmp_eq_u32 s{sN}, 8
    s_cselect_b32 s{sCAP}, 3, s{sCAP}
    s_cselect_b32 s{sD}, 0, 4
    s_waitcnt lgkmcnt(0)
    v_readfirstlane_b32 s{sF}, v{H0+9}
    s_nop 0
    s_lshr_b32 s{sF}, s{sF}, s{sD}
    s_and_b32 s{sF}, s{sF}, 15
    s_cmp_lg_u32 s{sF}, s{sCAP}
    s_cbranch_scc1 L_nohflag""")
    flag_store(sC, H0 + 8)
    a.label("L_nohflag")
    a("s_nop 0")
    bias()
    a(f"""s_cmp_lt_u32 s{sN}, s{sNG}
    s_cbranch_scc1 L_f1loop""")
    TS(6)
    sK0, sK1, sSH, sXC = 0, 1, sC, sB
    gA0, gA1, gHO0, gHO1, gFL, gWO = 8, 9, 10, 11, 12, 13
    gCN, gOA, gLA, gCV = 16, 17, 18, 19
    HR = 24
    AF = [152, 160]
    WOF, OFR, FA = 24, [88, 120 - 64], 72
    OFR = [88, 56]
    sHB, sFH, sNF, sPF, sWM, sWS, sRET, sLOOP = 8, 9, 10, 11, 12, 13, 14, 20
    def ev_set():
        a(f"""s_mul_i32 s{sA}, s{sNF}, {OST}
        s_add_u32 s{sA}, s{sA}, {OACC}
        v_mov_b32 v{gCN}, s{sA}
        v_lshrrev_b32 v{gOA}, 1, v{gL16}
        v_and_b32 v{gLA}, 0xff, v{gOA}
        v_add_u32 v{gOA}, s{sA}, v{gOA}
        v_add_u32 v{gLA}, s{sA}, v{gLA}""")
    def o_flag():
        a(f"""s_lshl_b32 s{sA}, s{sRB}, 3
        s_add_u32 s{sA}, s{sA}, s{sG}
        s_lshl_b32 s{sA}, s{sA}, 4
        s_add_u32 s{sA}, s{sA}, s{sPF}
        s_lshl_b32 s{sA}, s{sA}, 3
        s_add_u32 s{sA}, s{sA}, {FLG_O}
        s_mov_b32 s{sPF}, s{sNF}""")
    a(f"""s_lshl_b32 s{sFH}, s{sRB}, 10
    s_add_u32 s{sFH}, s{sFH}, {FLG_H}
    v_and_b32 v{gFL}, 7, v0
    v_lshlrev_b32 v{gFL}, 7, v{gFL}
    v_bfe_u32 v{gR}, v0, 2, 2
    buffer_load_dwordx2 v[14:15], v{gFL}, {sr(rWS,4)}, s{sFH} offen sc1
    v_lshrrev_b32 v{gWO}, 1, v{gR}
    v_xor_b32 v{gWO}, s{sCT}, v{gWO}
    v_lshl_add_u32 v{gWO}, v{gWO}, 6, v{gTR}
    v_lshl_add_u32 v{gWO}, v{gR}, 7, v{gWO}
    v_lshl_add_u32 v{gWO}, v{gH}, 9, v{gWO}
    s_lshl_b32 s{sA}, s{sRT}, 10
    v_mov_b64 v[72:73], 0
    v_mov_b64 v[74:75], 0
    v_add_u32 v{gA0}, s{sRNG}, v{gWO}
    v_xor_b32 v{gA1}, 64, v{gA0}
    v_add_u32 v{gHO0}, s{sA}, v{gL16}
    v_xor_b32 v{gHO1}, 0x400, v{gHO0}""")
    for j in range(1, 4): a(f"{MF32} {vr(AC[j],16)}, v[72:75], v[72:75], 0")
    def a_reads(u, p):
        for d, ga in enumerate((gA0, gA1)):
            a(f"ds_read_b64_tr_b16 {vr(AF[p]+4*d,2)}, v{ga} offset:{u*2048}\nds_read_b64_tr_b16 {vr(AF[p]+4*d+2,2)}, v{ga} offset:{u*2048+1024}")
    LDS_OFF = 0x30000
    a(f"""s_mul_i32 s{sHB}, s{sRB}, {86*2048}
    s_add_u32 s{sHB}, s{sHB}, {HF}
    s_and_b32 s{sSH}, s{sPL}, 0xff
    s_lshl_b32 s{sSH}, s{sSH}, 11
    s_add_u32 s{sSH}, s{sSH}, s{sHB}
    s_lshr_b32 s{sD}, s{sPL}, 24
    s_lshl_b32 s{sD}, s{sD}, 11
    s_mov_b32 s{rT}, s{pWS}
    s_mov_b32 s{rT+1}, s{pWS+1}
    s_add_u32 s{rT+2}, s{sD}, s{sHB}
    s_mov_b32 s{rT+3}, 0x20000
    s_mov_b32 s{rW}, s{pWO}
    s_mov_b32 s{rW+1}, s{pWO+1}
    s_mov_b32 s{rW+2}, 0
    s_mov_b32 s{rW+3}, 0x20000
    s_mov_b32 s{sWM}, {LDS_OFF}
    s_mov_b32 s{sWS}, 0
    s_bfe_u32 s{sK1}, s{sPL}, 0x80008
    s_mov_b32 s{sK0}, 0
    s_xor_b32 s{sNF}, s{sCT}, 1
    s_lshl_b32 s{sNF}, s{sNF}, 1
    s_add_u32 s{sNF}, s{sNF}, s{sRT}
    s_mov_b32 s{sPF}, s{sNF}
    s_mov_b32 s{sLOOP}, 1""")
    ev_set()
    def wo_on():
        a(f"""s_lshl_b32 s{sWM}, s{sI}, 14
        s_lshl_b32 s{sWS}, s{sI}, 17
        s_add_u32 s{rW+2}, s{sWS}, 0x20000
        s_lshl_b32 s{sA}, s{sG}, 7
        s_add_u32 s{sWS}, s{sWS}, s{sA}""")
    a(f"""s_bfe_u32 s{sXC}, s{sPL}, 0x80010
    s_cbranch_scc1 L_wolater
    s_cmp_lt_u32 s{sG}, 3
    s_cselect_b32 s{sD}, 36, 20""")
    lds_spin(C_HDONE, f"s{sD}", gGC, gCV, sleep=2)
    wo_on()
    a.label("L_wolater")
    flag_poll(gFL, sFH, 14, preissued=True)
    TS(7)
    for u in range(D2):
        a(f"""buffer_load_dwordx4 {vr(HR+8*u,4)}, v{gHO0}, {sr(rT,4)}, s{sSH} offen sc1
        buffer_load_dwordx4 {vr(HR+8*u+4,4)}, v{gHO1}, {sr(rT,4)}, s{sSH} offen sc1
        s_add_u32 s{sSH}, s{sSH}, 2048""")
    a_reads(0, 0)
    a(f"ds_read_b32 v{gCV}, v{gCN} offset:{B_CNT}")
    a(f"s_add_u32 s{sFH}, s{sFH}, 8\ns_waitcnt vmcnt(0)")
    if opt.get("x_noh"): a(f"s_mov_b32 s{rT+2}, 0")
    if opt.get("x_now"): a(f"s_mov_b32 s{rX+2}, 0")
    TS(1)
    a(".p2align 6")
    a.label("L_f2loop")
    for u in range(D2):
        p = u & 1
        def mf(j): a(f"{MF32} {vr(AC[j],16)}, {vr(AF[p]+4*(j&1),4)}, {vr(HR+8*u+4*(j>>1),4)}, {vr(AC[j],16)}")
        a(f"s_waitcnt vmcnt({4*(D2-2)}) lgkmcnt(0)")
        mf(0)
        a_reads((u + 1) % D2, 1 - p)
        if u == 0:
            a("s_branch L_trip")
            a.label("L_tripped")
        elif u == D2 - 1: a(f"ds_read_b32 v{gCV}, v{gCN} offset:{B_CNT}")
        elif u == 1: a(f"buffer_load_dwordx2 v[14:15], v{gFL}, {sr(rWS,4)}, s{sFH} offen sc1")
        else: pad(P2A)
        mf(1)
        a(f"""s_add_u32 m0, s{sRNG}, {u*2048}
        buffer_load_dwordx4 {vr(HR+8*u,4)}, v{gHO0}, {sr(rT,4)}, s{sSH} offen sc1
        buffer_load_dwordx4 v{gSW}, {sr(rX,4)}, s{sSW} offen lds
        buffer_load_dwordx4 v{gSW2}, {sr(rX,4)}, s{sSW} offen offset:1024 lds
        s_add_u32 s{sSW}, s{sSW}, 16384""")
        mf(2)
        a(f"""s_cmp_ge_u32 s{sWS}, s{rW+2}
        s_cbranch_scc1 L_nowo{u}
        s_mov_b32 m0, s{sWM}
        s_add_u32 s{sWM}, s{sWM}, 2048
        buffer_load_dwordx4 v{gSW}, {sr(rW,4)}, s{sWS} offen lds
        buffer_load_dwordx4 v{gSW2}, {sr(rW,4)}, s{sWS} offen offset:1024 lds
        s_add_u32 s{sWS}, s{sWS}, 16384""")
        a.label(f"L_nowo{u}")
        mf(3)
        a(f"buffer_load_dwordx4 {vr(HR+8*u+4,4)}, v{gHO1}, {sr(rT,4)}, s{sSH} offen sc1\ns_add_u32 s{sSH}, s{sSH}, 2048")
        pad(P2D)
        a(f"s_add_u32 s{sK0}, s{sK0}, 1\ns_cmp_ge_u32 s{sK0}, s{sK1}")
        a("s_cbranch_scc1 L_f2done" if u < D2 - 1 else "s_cbranch_scc0 L_f2loop")
    a.label("L_f2done")
    TS(8)
    a(f"""s_setprio 3
    v_add_u32 v20, s{sRNG}, v{gL16}
    s_waitcnt vmcnt(0) lgkmcnt(0)
    s_nop 2""")
    for j in range(1, 4):
        for q in range(4): a(f"ds_write_b128 v20, {vr(AC[j]+4*q,4)} offset:{(j-1)*4096+q*1024}")
    lds_inc(C_GBAR, gGC, 21)
    sJ, sFO, sOO, sRDY, sRED = 0, 1, sB, 21, 22
    srd(rT, pOUT, 0x200000)
    a(f"""s_lshl_b32 s{sFO}, s{sRB}, 10
    s_lshl_b32 s{sA}, s{sRT}, 3
    s_add_u32 s{sFO}, s{sFO}, s{sA}
    s_add_u32 s{sFO}, s{sFO}, {FLG_O}
    s_lshl_b32 s{sOO}, s{sRB}, 1
    s_add_u32 s{sOO}, s{sOO}, s{sRT}
    s_lshl_b32 s{sOO}, s{sOO}, 15
    s_add_u32 s{sOO}, s{sOO}, {OF}
    s_mov_b32 s{sJ}, 0
    s_mov_b32 s{sRED}, 0
    s_mov_b32 s{sLOOP}, 0
    s_mov_b32 s23, 0
    s_mov_b32 s{sRDY}, -1
    v_and_b32 v14, 24, v0
    v_lshl_add_u32 v{gFL}, v14, 1, v{gFL}""")
    def wo_reads():
        for gp in range(8):
            a(f"ds_read_b64_tr_b16 {vr(WOF+4*gp,2)}, v{gWO} offset:{gp*8192}\nds_read_b64_tr_b16 {vr(WOF+4*gp+2,2)}, v{gWO} offset:{gp*8192+1024}")
        a(f"v_add_u32 v{gWO}, 2048, v{gWO}")
    a.label("L_ev")
    a(f"""s_cmp_ge_u32 s{sPF}, s{sNF}
    s_cbranch_scc1 L_evf""")
    o_flag()
    a("s_waitcnt vmcnt(0)")
    flag_store(sA, 14)
    TS(13)
    a.label("L_evf")
    a(f"""s_add_u32 s23, s23, 1
    s_cmp_gt_u32 s23, {SPIN_CAP}
    s_cbranch_scc1 L_gdone
    s_cmp_ge_u32 s{sNF}, 8
    s_cbranch_scc1 L_evr
    ds_read_b32 v{gCV}, v{gCN} offset:{B_CNT}
    s_waitcnt lgkmcnt(0)
    v_readfirstlane_b32 s{sA}, v{gCV}
    s_nop 0
    s_bitcmp1_b32 s{sA}, 3
    s_cbranch_scc1 L_fin""")
    a.label("L_evr")
    a(f"""s_cmp_eq_u32 s{sRED}, 0
    s_cbranch_scc1 L_red
    s_cmp_lt_u32 s{sJ}, 4
    s_cbranch_scc1 L_evc
    s_cmp_ge_u32 s{sNF}, 8
    s_cbranch_scc1 L_gdone
    s_sleep 1
    s_branch L_evf""")
    a.label("L_evc")
    a(f"""s_cmp_eq_u32 s{sJ}, 3
    s_cbranch_scc1 L_last
    s_lshl_b32 s{sD}, s{sJ}, 3
    s_lshr_b32 s{sA}, s{sRDY}, s{sD}
    s_and_b32 s{sA}, s{sA}, 0xff
    s_cbranch_scc0 L_cons
    buffer_load_dwordx2 v[14:15], v{gFL}, {sr(rWS,4)}, s{sFO} offen sc1
    s_waitcnt vmcnt(0)
    v_cmp_ne_u64 vcc, {sr(sEP,2)}, v[14:15]
    s_nop 1
    s_mov_b32 s{sRDY}, vcc_lo
    s_lshr_b32 s{sA}, s{sRDY}, s{sD}
    s_and_b32 s{sA}, s{sA}, 0xff
    s_cbranch_scc1 L_ev""")
    a.label("L_cons")
    def o_loads(bf):
        a(f"s_mov_b32 s{sA}, s{sOO}")
        for gp in range(8):
            a(f"buffer_load_dwordx4 {vr(OFR[bf]+4*gp,4)}, v{gL16}, {sr(rWS,4)}, s{sA} offen sc1\ns_add_u32 s{sA}, s{sA}, 4096")
        a(f"s_add_u32 s{sOO}, s{sOO}, 1024\ns_add_u32 s{sJ}, s{sJ}, 1")
    def o_mf(bf, after):
        a(f"s_setprio 0\ns_waitcnt lgkmcnt(0)")
        for gp in range(8):
            a(f"s_waitcnt vmcnt({7-gp+after})\n{MF32} {vr(AC[0],16)}, {vr(WOF+4*gp,4)}, {vr(OFR[bf]+4*gp,4)}, {vr(AC[0],16)}")
        a("s_setprio 3")
    a(f"""s_lshr_b32 s{sA}, s{sRDY}, s{sD}
    s_and_b32 s{sA}, s{sA}, 0xffff
    s_cbranch_scc1 L_cons1""")
    o_loads(1)
    o_loads(0)
    o_mf(1, 8)
    wo_reads()
    a("s_branch L_cons2")
    a.label("L_cons1")
    o_loads(0)
    a.label("L_cons2")
    o_mf(0, 0)
    a.label("L_cons3")
    a(f"""s_cmp_ge_u32 s{sJ}, 4
    s_cbranch_scc1 L_out""")
    wo_reads()
    a("s_branch L_ev")
    a.label("L_out")
    TS(10)
    a(f"""v_and_b32 v14, 31, v0
    v_lshlrev_b32 v15, 3, v{gH}
    v_lshl_add_u32 v14, v14, 10, v15
    s_lshl_b32 s{sA}, s{sG}, 7
    s_lshl_b32 s{sD}, s{sCT}, 6
    s_add_u32 s{sA}, s{sA}, s{sD}
    s_lshl_b32 s{sD}, s{sRB}, 16
    s_add_u32 s{sA}, s{sA}, s{sD}
    s_lshl_b32 s{sD}, s{sRT}, 15
    s_add_u32 s{sA}, s{sA}, s{sD}""")
    for j in range(8): a(f"v_cvt_pk_bf16_f32 v{AC[0]+j}, v{AC[0]+2*j}, v{AC[0]+2*j+1}")
    for q in range(4): a(f"buffer_store_dwordx2 {vr(AC[0]+2*q,2)}, v14, {sr(rT,4)}, s{sA} offen offset:{16*q}")
    a("s_branch L_ev")
    a.label("L_red")
    lds_spin(C_GBAR, 4, gGC, 14, sleep=1)
    for j in range(1, 4):
        a(f"s_xor_b32 s{sA}, s{sI}, {j}\ns_mul_i32 s{sA}, s{sA}, {RSZ}\ns_add_u32 s{sA}, s{sA}, {RING}\nv_add_u32 v14, s{sA}, v{gL16}")
        for q in range(4): a(f"ds_read_b128 {vr(AC[j]+4*q,4)}, v14 offset:{(j-1)*4096+q*1024}")
    for j in range(1, 4):
        a(f"s_waitcnt lgkmcnt({(3-j)*4})")
        for q in range(8): a(f"v_pk_add_f32 {vr(AC[0]+2*q,2)}, {vr(AC[0]+2*q,2)}, {vr(AC[j]+2*q,2)}")
    wo_reads()
    TS(9)
    a(f"s_mov_b32 s{sRED}, 1\ns_branch L_ev")
    a.label("L_trip")
    def tripstamp():
        if opt.get("f2ts"):
            a("s_memtime s[96:97]\ns_waitcnt lgkmcnt(0)")
            for i in range(1, 10): a(f"s_mov_b32 s{TS0+2*i}, s{TS0+2*i+2}")
            a(f"s_mov_b32 s{TS0+20}, s96")
    tripstamp()
    a(f"""s_setprio 3
    v_readfirstlane_b32 s{sD}, v{gCV}
    s_cmp_ge_u32 s{sPF}, s{sNF}
    s_cbranch_scc1 L_trip1""")
    o_flag()
    flag_store(sA, 20)
    a.label("L_trip1")
    a(f"""s_cmp_lg_u32 s{sK0}, 12
    s_cbranch_scc1 L_trip2
    s_cmp_eq_u32 s{sXC}, 0
    s_cbranch_scc1 L_trip2
    v_cmp_ne_u64 vcc, {sr(sEP,2)}, v[14:15]
    s_lshl_b32 s{sSW}, s{sXC}, 14
    s_lshl_b32 s{sA}, s{sG}, 7
    s_add_u32 s{sSW}, s{sSW}, s{sA}
    s_lshl_b32 s{sSH}, s{sXC}, 11
    s_add_u32 s{sSH}, s{sSH}, s{sHB}""")
    wo_on()
    a("s_cbranch_vccz L_crossok")
    flag_poll(gFL, sFH, 14)
    a.label("L_crossok")
    TS(14)
    a.label("L_trip2")
    a(f"""s_cmp_lt_u32 s{sNF}, 8
    s_cselect_b32 s{sD}, s{sD}, 0
    s_cmp_eq_u32 s{sLOOP}, 1
    s_cselect_b32 s{sD}, s{sD}, 0
    s_bitcmp1_b32 s{sD}, 3
    s_cbranch_scc1 L_fin""")
    a.label("L_trip3")
    tripstamp()
    a(f"s_setprio {GP}\ns_branch L_tripped")
    a.label("L_fin")
    for j in range(7, -1, -1): a(f"ds_read_b64 {vr(FA+2*j,2)}, v{gOA} offset:{512*j}")
    a(f"""ds_read_b64 v[20:21], v{gLA} offset:{B_L}
    s_mov_b32 s{sD}, 0
    s_waitcnt lgkmcnt(0)""")
    for j in range(7, -1, -1): a(f"v_cvt_f32_f64 v{FA+8+j}, {vr(FA+2*j,2)}")
    a(f"v_cvt_f32_f64 v{FA}, v[20:21]")
    a.label("L_fin2")
    a(f"""s_and_b32 s{sA}, s{sNF}, 1
    s_lshl_b32 s{sF}, s{sRB}, 1
    v_rcp_f32 v{FA+1}, v{FA}
    s_add_u32 s{sA}, s{sA}, s{sF}
    s_lshl_b32 s{sA}, s{sA}, 3
    s_add_u32 s{sA}, s{sA}, s{sG}
    v_mov_b32 v{FA+3}, 0x76800000
    v_cmp_nle_f32 vcc, 0x0d800000, v{FA}
    v_cmp_nle_f32 {sr(sRET,2)}, v{FA}, v{FA+3}""")
    for j in range(8): a(f"v_mul_f32 v{FA+8+j}, v{FA+8+j}, v{FA+1}")
    a(f"""s_or_b64 {sr(sRET,2)}, {sr(sRET,2)}, vcc
    s_lshl_b32 s{sA}, s{sA}, 2
    s_lshr_b32 s{sF}, s{sNF}, 1
    s_add_u32 s{sA}, s{sA}, s{sF}
    s_lshl_b32 s{sA}, s{sA}, 10
    s_add_u32 s{sA}, s{sA}, {OF}""")
    for j in range(4): a(f"v_cvt_pk_bf16_f32 v{FA+4+j}, v{FA+8+2*j}, v{FA+9+2*j}")
    a(f"v_pk_mul_f32 {vr(FA+2,2)}, {vr(FA+8,2)}, 0")
    for j in range(1, 4): a(f"v_pk_fma_f32 {vr(FA+2,2)}, {vr(FA+8+2*j,2)}, 0, {vr(FA+2,2)}")
    a(f"""v_cmp_u_f32 vcc, v{FA+2}, v{FA+3}
    s_nop 1
    s_or_b64 {sr(sRET,2)}, {sr(sRET,2)}, vcc
    s_cselect_b32 s{sF}, 1, 0
    s_cmp_gt_u32 s{sF}, s{sD}
    s_cbranch_scc1 L_fallback
    s_cmp_ge_u32 s{sNF}, 6
    s_cbranch_scc1 L_fin7
    buffer_store_dwordx4 {vr(FA+4,4)}, v{gL16}, {sr(rWS,4)}, s{sA} offen sc1
    s_add_u32 s{sNF}, s{sNF}, 4""")
    ev_set()
    a(f"""s_cmp_eq_u32 s{sLOOP}, 0
    s_cbranch_scc1 L_ev
    s_branch L_trip3""")
    a.label("L_fin7")
    a(f"""v_mov_b64 {vr(FA+2,2)}, {sr(sEP,2)}
    v_mov_b64 {vr(FA+8,2)}, {sr(sEP,2)}
    s_lshl_b32 s{sA}, s{sRB}, 1
    s_add_u32 s{sA}, s{sA}, s{sNF}
    s_lshl_b32 s{sA}, s{sA}, 3
    s_add_u32 s{sA}, s{sA}, s{sG}
    s_lshl_b32 s{sA}, s{sA}, 11
    s_add_u32 s{sA}, s{sA}, {OT - 6 * 16384}
    s_mov_b32 s{sNF}, 11
    s_mov_b32 s{sPF}, 11
    buffer_store_dwordx4 {vr(FA+2,4)}, v{gL16}, {sr(rWS,4)}, s{sA} offen sc1
    buffer_store_dwordx4 {vr(FA+6,4)}, v{gL16}, {sr(rWS,4)}, s{sA} offen offset:1024 sc1""")
    TS(13)
    a(f"""s_cmp_eq_u32 s{sLOOP}, 0
    s_cbranch_scc1 L_ev
    s_branch L_trip3""")
    a.label("L_last")
    TG = 56
    a(f"s_cmp_lt_u32 s{sNF}, 8\ns_cbranch_scc1 L_evf")
    TS(12)
    a(f"s_mul_i32 s{sA}, s{sRT}, {OST}\ns_add_u32 s{sA}, s{sA}, {OACC + 6 * OST}\nv_mov_b32 v14, s{sA}")
    L_ = a.newlabel("l7")
    a(f"s_mov_b32 s{sCAP}, 0")
    a.label(L_)
    a(f"""ds_read_b32 v15, v14 offset:{B_CNT}
    s_add_u32 s{sCAP}, s{sCAP}, 1
    s_cmp_gt_u32 s{sCAP}, {SPIN_CAP}
    s_cbranch_scc1 L_gdone
    s_waitcnt lgkmcnt(0)
    v_readfirstlane_b32 s{sA}, v15
    s_sleep 1
    s_bitcmp1_b32 s{sA}, 3
    s_cbranch_scc0 {L_}
    s_sleep {opt.get("lastsleep", 6)}""")
    a.label("L_lastp")
    a(f"""s_lshl_b32 s{sA}, s{sRB}, 1
    s_add_u32 s{sA}, s{sA}, s{sRT}
    s_lshl_b32 s{sA}, s{sA}, 14
    s_add_u32 s{sA}, s{sA}, {OT}
    s_add_u32 s{sCAP}, s{sCAP}, 1""")
    for gp in range(8):
        for hf in range(2):
            a(f"buffer_load_dwordx4 {vr(TG+8*gp+4*hf,4)}, v{gL16}, {sr(rWS,4)}, s{sA} offen offset:{(gp&1)*2048+hf*1024} sc1")
        if gp & 1 and gp < 7: a(f"s_add_u32 s{sA}, s{sA}, 4096")
    a(f"""s_cmp_gt_u32 s{sCAP}, {SPIN_CAP}
    s_cbranch_scc1 L_gdone""")
    for gp in range(8):
        a(f"""s_waitcnt vmcnt({14-2*gp})
        v_cmp_ne_u64 vcc, {sr(sEP,2)}, {vr(TG+8*gp,2)}
        v_cmp_ne_u64 {sr(sRET,2)}, {sr(sEP,2)}, {vr(TG+8*gp+6,2)}""")
        a(f"s_nop 0\ns_or_b64 vcc, vcc, {sr(sRET,2)}\ns_cbranch_scc1 L_lastp")
    a("s_setprio 0")
    for gp in range(8):
        a(f"{MF32} {vr(AC[0],16)}, {vr(WOF+4*gp,4)}, {vr(TG+8*gp+2,4)}, {vr(AC[0],16)}")
    a(f"s_setprio 3\ns_add_u32 s{sJ}, s{sJ}, 1\ns_branch L_cons3")
    a.label("L_gdone")
    if ts: a("s_waitcnt vmcnt(0)")
    TS(11)
    if opt.get("padto"):
        a.label("L_pad")
        a(f"s_memrealtime s[96:97]\ns_waitcnt lgkmcnt(0)\ns_sub_u32 s96, s96, s{sEP}\ns_cmp_lt_u32 s96, {opt['padto']}\ns_cbranch_scc1 L_pad")
    ts_dump()
    a.label("L_end")
    a("s_endpgm")

    a.label("L_fallback")
    FQ, FK, FV, FS, FC, FT = 56, 60, 64, 88, 104, 120
    a(f"""s_cmp_eq_u32 s{sLOOP}, 0
    s_cbranch_scc1 L_fbgo
    s_mov_b32 s{sLOOP}, 2
    s_branch L_trip3""")
    a.label("L_fbgo")
    a(f"""s_lshl_b32 s{sA}, s{sNF}, 10
    s_add_u32 s{sA}, s{sA}, {QF}
    v_add_u32 v{FT}, s{sA}, v{gL16}
    ds_read_b128 {vr(FQ,4)}, v{FT}
    v_mov_b32 v{FT+2}, 0xff800000""")
    a(f"s_mov_b32 s{sA}, 0")
    a.label("L_fb1")
    a(f"""buffer_load_dwordx4 {vr(FK,4)}, v{gL16}, {sr(rWS,4)}, s{sA} offen sc1
    s_waitcnt vmcnt(0) lgkmcnt(0)
    {MF32} {vr(FS,16)}, {vr(FK,4)}, {vr(FQ,4)}, 0
    s_nop 11""")
    maxtree(FS, FT + 3)
    a(f"""v_max_f32 v{FT+2}, v{FT+2}, v{FT+3}
    s_add_u32 s{sA}, s{sA}, 1024
    s_cmp_lt_u32 s{sA}, 0x10000
    s_cbranch_scc1 L_fb1
    v_mov_b32 v{FT+3}, v{FT+2}
    s_nop 1
    v_permlane32_swap_b32 v{FT+2}, v{FT+3}
    v_max_f32 v{FT+2}, v{FT+2}, v{FT+3}""")
    for i in range(16): a(f"v_sub_f32 v{FC+i}, 0, v{FT+2}\nv_mov_b32 v{FA+i}, 0")
    a(f"s_mov_b32 s{sA}, 0")
    a.label("L_fb2")
    a(f"""s_add_u32 s{sF}, s{sA}, {VF}
    buffer_load_dwordx4 {vr(FK,4)}, v{gL16}, {sr(rWS,4)}, s{sA} offen sc1
    buffer_load_dwordx4 {vr(FV,4)}, v{gL16}, {sr(rWS,4)}, s{sF} offen sc1""")
    for i in range(4): a(f"v_mov_b32 v{FV+4+i}, 0x3f803f80")
    a(f"""s_waitcnt vmcnt(0)
    {MF32} {vr(FS,16)}, {vr(FK,4)}, {vr(FQ,4)}, {vr(FC,16)}""")
    for i in range(4): a(f"v_permlane16_swap_b32 v{FV+4+i}, v{FV+i}")
    a("s_nop 7")
    for i in range(16): a(e(FS, i))
    a("s_nop 0")
    for j in range(8): a(c(FS, j))
    a(f"""s_nop 1
    {MF32} {vr(FA,16)}, {vr(FV,4)}, {vr(FS,4)}, {vr(FA,16)}
    {MF32} {vr(FA,16)}, {vr(FV+4,4)}, {vr(FS+8,4)}, {vr(FA,16)}
    s_add_u32 s{sA}, s{sA}, 1024
    s_cmp_lt_u32 s{sA}, 0x10000
    s_cbranch_scc1 L_fb2
    s_nop 15
    s_mov_b32 s{sD}, 1
    s_branch L_fin2""")

    probs = lint(a.lines)
    for p in probs: print("LINT", p, file=sys.stderr)
    head = f"""; fused layernorm + MQA attention + squared-relu FFN, one persistent launch (generated by gen/gen.py)
; @launch grid=(256,1,1) block=(768,1,1) lds=163840
.amdgcn_target "amdgcn-amd-amdhsa--gfx950"
.text
.globl {NAME}_kernel
.p2align 8
.type {NAME}_kernel,@function
{NAME}_kernel:
"""
    tail = f""".section .rodata,"a"
.p2align 6
.amdhsa_kernel {NAME}_kernel
  .amdhsa_next_free_vgpr 168
  .amdhsa_next_free_sgpr 100
  .amdhsa_accum_offset 168
  .amdhsa_group_segment_fixed_size 0
  .amdhsa_kernarg_size 104
  .amdhsa_user_sgpr_count 2
  .amdhsa_user_sgpr_kernarg_segment_ptr 1
  .amdhsa_system_sgpr_workgroup_id_x 1
.end_amdhsa_kernel
"""
    return head + a.text() + tail

if __name__ == "__main__":
    open("k.s", "w").write(gen(False))
    open("k_ts.s", "w").write(gen(True))
    open("k_ts_c.s", "w").write(gen(True, dict(cyc=1)))
    open("k_x1.s", "w").write(gen(True, dict(cyc=1, pro=1)))
    open("k_x2.s", "w").write(gen(True, dict(cyc=1, pro=1, nx0=3)))
    open("k_x3.s", "w").write(gen(True, dict(lastsleep=2)))
    open("k_x4.s", "w").write(gen(True, dict(lastsleep=12)))
```

```python
import sys
from asmlib import Asm, vr, sr, lint
NAME = "parallel_sum__grouped_kv_mqa__dense_activation_squared_relu__prompt"

KF, VF, FLG_KV, FLG_H, FLG_O, OF, HF, TSB = 0, 0x10000, 0x20000, 0x28000, 0x30000, 0x40000, 0x240000, 0x800000
OT = 0x900000
WS_BYTES = 0xA00000
XN, RING, WKV = 0, 65536, 131072
RSZ = 12288
OACC, OST = 114688, 4608
B_L, B_CNT = 4096, 4352
QF, QST = 151552, 1536
RSTD = QF + 1024
GC = OACC + 7 * OST + B_CNT + 16
C_QREADY, C_ABAR, C_HDONE, C_GBAR, C_WQ, C_KV, C_RS, C_L0, C_EPOCH = 0, 4, 8, 12, 16, 20, 24, 28, 32
W1P = 2752
OFFS = 90.0
SPIN_CAP = 1 << 17

sW, sRB, sG, sKG, sCH = 3, 4, 5, 6, 7
pX, pWQ, pWK, pWV, pWO, pW1, pB1, pW2, pB2, pOUT, pDBG, pWS = 8, 10, 12, 14, 16, 20, 22, 24, 26, 28, 30, 32
rX, rWS, rW, rT = 36, 40, 44, 48
sEP = 52
sI, sRT, sCT = 54, 55, 56
sA, sB, sC, sD, sE, sF = 57, 58, 59, 60, 61, 62
sCAP = 63
sM = 34
TS0 = 64
MF32 = "v_mfma_f32_32x32x16_bf16"

def gen(ts=False, opt={}):
    a = Asm()
    GP = opt.get('gp', 3)
    P1A, P1B, P2A, P2C, P2D, PO = opt.get('pads', (-1, -1, -1, -1, -1, -1))
    def pad(n):
        if n >= 0: a(f's_nop {n}')
    late = [False]
    def TS(i):
        if opt.get("pro") and late[0] and i != 11: return
        if opt.get("f2ts") and late[0]: i = {7: 12, 8: 13, 6: 14, 11: 11}.get(i)
        if i is None: return
        if ts: a(f"{'s_memtime' if opt.get('cyc') else 's_memrealtime'} {sr(TS0 + 2 * i, 2)}")
    def srd(r, p, n):
        a(f"s_mov_b32 s{r}, s{p}\ns_mov_b32 s{r+1}, s{p+1}\ns_mov_b32 s{r+2}, {n}\ns_mov_b32 s{r+3}, 0x20000")
    def lds_spin(off, val, va, vt, sleep=1):
        L = a.newlabel("spin"); D = a.newlabel("spun")
        a(f"s_mov_b32 s{sCAP}, 0")
        a.label(L)
        a(f"""ds_read_b32 v{vt}, v{va} offset:{off}
        s_add_u32 s{sCAP}, s{sCAP}, 1
        s_waitcnt lgkmcnt(0)
        v_readfirstlane_b32 s{sF}, v{vt}
        s_cmp_gt_u32 s{sCAP}, {SPIN_CAP}
        s_cbranch_scc1 {D}""")
        if sleep:
            a(f"s_cmp_ge_u32 s{sF}, {val}\ns_cbranch_scc1 {D}\ns_sleep {sleep}\ns_branch {L}")
        else:
            a(f"s_cmp_lt_u32 s{sF}, {val}\ns_cbranch_scc1 {L}")
        a.label(D)
    def lds_inc(off, va, vt):
        a(f"v_mov_b32 v{vt}, 1\ns_mov_b64 exec, 1\nds_add_u32 v{va}, v{vt} offset:{off}\ns_mov_b64 exec, -1")
    def flag_poll(va, soff, vt, sleep=2, preissued=False):
        L = a.newlabel("poll"); D = a.newlabel("polled")
        a(f"s_mov_b32 s{sCAP}, 0")
        if preissued: a(f"s_branch {L}w")
        a.label(L)
        a(f"buffer_load_dwordx2 {vr(vt,2)}, v{va}, {sr(rWS,4)}, s{soff} offen sc1")
        a.label(L + "w")
        a(f"""s_add_u32 s{sCAP}, s{sCAP}, 1
        s_waitcnt vmcnt(0)
        v_cmp_ne_u64 vcc, {sr(sEP,2)}, {vr(vt,2)}
        s_cmp_gt_u32 s{sCAP}, {SPIN_CAP}
        s_cbranch_scc1 {D}
        s_cbranch_vccz {D}
        s_sleep {sleep}
        s_branch {L}""")
        a.label(D)
    def flag_store(soff, vt):
        a(f"""v_mov_b32 v{vt}, s{sEP}
        v_mov_b32 v{vt+1}, s{sEP+1}
        s_mov_b64 exec, 1
        buffer_store_dwordx2 {vr(vt,2)}, off, {sr(rWS,4)}, s{soff} sc1
        s_mov_b64 exec, -1""")
    def ts_dump():
        if not ts: return
        a(f"""s_sleep 127
        s_sleep 127
        s_sleep 127
        s_waitcnt lgkmcnt(0)
        s_mul_i32 s{sA}, s2, 12
        s_add_u32 s{sA}, s{sA}, s{sW}
        s_lshl_b32 s{sA}, s{sA}, 6
        s_add_u32 s{sA}, s{sA}, {TSB}
        s_mov_b64 exec, 1""")
        for q in range(4):
            for j in range(4): a(f"v_mov_b32 v{4+j}, s{TS0 + 2 * (4 * q + j)}")
            a(f"buffer_store_dwordx4 v[4:7], off, {sr(rWS,4)}, s{sA} offset:{16*q}\ns_nop 1")
        a("s_waitcnt vmcnt(0)")
    def maxtree(S, d):
        a(f"v_max3_f32 v{d}, v{S}, v{S+1}, v{S+2}")
        for j in range(3, 15, 2): a(f"v_max3_f32 v{d}, v{d}, v{S+j}, v{S+j+1}")
        a(f"v_max_f32 v{d}, v{d}, v{S+15}")
    def e(S, i): return f"v_exp_f32 v{S+i}, v{S+i}"
    def c(S, j): return f"v_cvt_pk_bf16_f32 v{S + (j & 3) + 8 * (j >> 2)}, v{S+2*j}, v{S+2*j+1}"
    PFS = opt.get("pfstride", 7)
    def l2_prefetch(r, nbytes, vaddr, vdummy, part, nparts):
        chunk = 64 << PFS
        rounds = -(-nbytes // (chunk * 32))
        a(f"s_lshr_b32 s{sF}, s2, 3\ns_mul_i32 s{sF}, s{sF}, {chunk}")
        if part is not None:
            a(f"s_mul_i32 s{sCAP}, s{part}, {chunk*32}\ns_add_u32 s{sF}, s{sF}, s{sCAP}")
        for i in range(-(-rounds // nparts)):
            a(f"buffer_load_dword v{vdummy}, v{vaddr}, {sr(r,4)}, s{sF} offen")
            a(f"s_add_u32 s{sF}, s{sF}, {chunk*32*nparts}")

    a(f"""s_memrealtime {sr(sM,2)}
    s_load_dwordx16 s[8:23], s[0:1], 0
    s_load_dwordx8 s[24:31], s[0:1], 64
    s_load_dwordx2 s[32:33], s[0:1], 96
    s_cmp_ge_u32 s2, 256
    s_cbranch_scc1 L_end""")
    if ts:
        for i in range(16): a(f"s_mov_b32 s{TS0+2*i}, 0")
    TS(0)
    a(f"""v_lshrrev_b32 v1, 6, v0
    s_and_b32 s{sRB}, s2, 7
    v_readfirstlane_b32 s{sW}, v1
    s_lshl_b32 s{sRB}, s{sRB}, 2
    s_lshr_b32 s{sA}, s2, 6
    s_add_u32 s{sRB}, s{sRB}, s{sA}
    s_bfe_u32 s{sG}, s2, 0x30003
    s_lshr_b32 s{sKG}, s{sG}, 1
    s_and_b32 s{sCH}, s{sG}, 1
    v_and_b32 v0, 63, v0
    s_cmp_ge_u32 s{sW}, 8
    s_cbranch_scc1 L_gwave""")

    vL8, vAD, vT = 0, 1, 2
    Q, K, V, S0, S1, ACC, CIN = 4, 8, 40, 104, 120, 136, 152
    sQT, sINC, sKVO, sPB = sI, sRT, sE, sCT
    sOOF, sQA, sCA, sAH, sKB = 0, 1, 46, 47, 45
    a(f"""v_lshrrev_b32 v3, 5, v0
    v_and_b32 v4, 31, v0
    s_lshl_b32 s{sA}, s{sW}, 1
    v_add_u32 v3, s{sA}, v3
    v_lshlrev_b32 v1, 10, v3
    v_lshl_add_u32 v5, v4, 4, v1
    s_lshl_b32 s{sB}, s{sRB}, 16
    s_lshl_b32 s{sC}, s{sKG}, 14
    s_add_u32 s{sD}, s{sB}, s{sC}
    s_waitcnt lgkmcnt(0)""")
    srd(rX, pX, 0x200000)
    a(f"""buffer_load_dwordx4 v[8:11], v5, {sr(rX,4)}, s{sD} offen
    buffer_load_dwordx4 v[12:15], v5, {sr(rX,4)}, s{sD} offen offset:512""")
    def x_load(it):
        a(f"""s_xor_b32 s{sD}, s{sC}, {it << 14}
        s_add_u32 s{sD}, s{sB}, s{sD}
        buffer_load_dwordx4 {vr(8+8*it,4)}, v5, {sr(rX,4)}, s{sD} offen
        buffer_load_dwordx4 {vr(12+8*it,4)}, v5, {sr(rX,4)}, s{sD} offen offset:512""")
    srd(rWS, pWS, WS_BYTES)
    vGC, vQW, vOZ, vCW, vKA, vVA, vFL, vF2 = CIN, CIN + 1, CIN + 2, CIN + 3, CIN + 4, CIN + 5, CIN + 6, CIN + 7
    for i in range(8): a(f"v_mov_b64 {vr(ACC+2*i,2)}, 0")
    a(f"""v_mov_b32 v{vGC}, {GC}
    v_lshlrev_b32 v{vFL}, 7, v4
    v_and_b32 v6, 15, v0
    v_cmp_eq_u32 vcc, 0, v6
    ds_write_b128 v{vGC}, {vr(ACC,4)}
    ds_write_b128 v{vGC}, {vr(ACC,4)} offset:16
    ds_write_b64 v{vGC}, {vr(ACC,2)} offset:32
    v_xor_b32 v4, v4, v3
    v_lshl_add_u32 v2, v4, 4, v1
    v_lshlrev_b32 v3, 2, v3
    v_add_u32 v3, {RSTD}, v3
    v_mov_b32 v{CIN+8}, 0x3f803f80
    v_mov_b32 v{CIN+9}, 0x3f80
    v_mov_b32 v{CIN+10}, 0x3f800000
    v_cndmask_b32 v{V+4}, 0, v{CIN+8}, vcc
    v_cndmask_b32 v{V+5}, 0, v{CIN+8}, vcc""")
    for i in range(1, 16): a(f"v_mov_b64 {vr(V+8*(i>>1)+4+2*(i&1),2)}, {vr(V+4,2)}")
    a(f"""v_mov_b64 {vr(S1+8,2)}, 0
    v_mov_b64 {vr(S1+10,2)}, 0
    v_lshlrev_b32 v{vKA}, 4, v0
    v_lshrrev_b32 v4, 5, v0
    v_lshlrev_b32 v{vF2}, 8, v4
    v_lshlrev_b32 v{vL8}, 3, v0
    s_mul_i32 s{sA}, s{sW}, {QST}
    s_add_u32 s{sA}, s{sA}, {QF}
    v_add_u32 v{vQW}, s{sA}, v{vKA}
    v_and_b32 v{vCW}, 0x1ff, v{vKA}
    v_add_u32 v{vCW}, s{sA}, v{vCW}
    s_mul_i32 s{sA}, s{sW}, {OST}
    s_add_u32 s{sA}, s{sA}, {OACC}
    v_add_u32 v{vOZ}, s{sA}, v{vKA}
    v_mov_b64 {vr(S1+12,2)}, 0
    v_mov_b64 {vr(S1+14,2)}, 0
    s_mov_b32 s{sA}, 0x43300000
    v_writelane_b32 v{S1+13}, s{sA}, 16
    s_mov_b32 s{sA}, 0x3b000000""")
    U, R0 = S0, S1
    cOne2, cLo, cHi = CIN + 8, CIN + 9, CIN + 10
    def red32(rs):
        pad = "s_nop 1\n" if len(rs) == 1 else ""
        for mode in ("quad_perm:[1,0,3,2]", "quad_perm:[2,3,0,1]", "row_half_mirror", "row_mirror"):
            a(pad + "\n".join(f"v_add_f32_dpp v{r}, v{r}, v{r} {mode} row_mask:0xf bank_mask:0xf" for r in rs))
        for r in rs: a(f"v_mov_b32 v{r+1}, v{r}")
        a(pad + "\n".join(f"v_permlane16_swap_b32 v{r}, v{r+1}" for r in rs))
        for r in rs: a(f"v_add_f32 v{r}, v{r}, v{r+1}")
    def centre(its):
        for j in range(8):
            for it in its:
                X, R = 8 + 8 * it, R0 + 2 * (it % 3)
                a(f"v_dot2_f32_bf16 v{R+(j&1)}, v{X+j}, v{cOne2}, {'0' if j < 2 else f'v{R+(j&1)}'}")
        a("s_nop 2" if len(its) == 1 else "s_nop 0")
        for it in its: a(f"v_add_f32 v{R0+2*(it%3)}, v{R0+2*(it%3)}, v{R0+2*(it%3)+1}")
        red32([R0 + 2 * (it % 3) for it in its])
        for it in its: a(f"v_mul_f32 v{R0+2*(it%3)}, 0xbb000000, v{R0+2*(it%3)}")
        for it in its:
            X, R = 8 + 8 * it, R0 + 2 * (it % 3)
            a(f"s_xor_b32 s{sD}, s{sC}, {it << 14}\nv_add_u32 v7, s{sD}, v2")
            for j in range(8):
                a(f"v_dot2_f32_bf16 v{U+2*j}, v{X+j}, v{cLo}, v{R}\nv_dot2_f32_bf16 v{U+2*j+1}, v{X+j}, v{cHi}, v{R}")
            for j in range(8):
                a(f"v_cvt_pk_bf16_f32 v{X+j}, v{U+2*j}, v{U+2*j+1}")
                if j == 0: a(f"v_pk_mul_f32 {vr(R,2)}, {vr(U,2)}, {vr(U,2)}")
                else: a(f"v_pk_fma_f32 {vr(R,2)}, {vr(U+2*j,2)}, {vr(U+2*j,2)}, {vr(R,2)}")
                if j == 3: a(f"ds_write_b128 v7, {vr(X,4)}")
            a(f"ds_write_b128 v7, {vr(X+4,4)} offset:512")
    def scales(its):
        for it in its: a(f"v_add_f32 v{R0+2*(it%3)}, v{R0+2*(it%3)}, v{R0+2*(it%3)+1}")
        red32([R0 + 2 * (it % 3) for it in its])
        a(f"v_mov_b32 v7, 0x3727c5ac")
        for it in its: a(f"v_fma_f32 v{R0+2*(it%3)}, v{R0+2*(it%3)}, s{sA}, v7")
        for it in its: a(f"v_rsq_f32 v{R0+2*(it%3)}, v{R0+2*(it%3)}")
        for it in its:
            a(f"s_xor_b32 s{sD}, s{sC}, {it << 14}\ns_lshr_b32 s{sD}, s{sD}, 8\nv_add_u32 v{R0+2*(it%3)+1}, s{sD}, v3")
            a(f"ds_write_b32 v{R0+2*(it%3)+1}, v{R0+2*(it%3)}")
    a("s_setprio 1\ns_waitcnt lgkmcnt(0)\ns_barrier")
    TS(8)
    for it in range(1, 4): x_load(it)
    a("s_waitcnt vmcnt(6)")
    TS(1)
    centre([0]); scales([0])
    lds_inc(C_L0, vGC, 7)
    a("s_setprio 0")
    TS(2)
    a("s_waitcnt vmcnt(0)")
    TS(12)
    centre([1, 2, 3])
    a("s_waitcnt lgkmcnt(0)\ns_barrier")
    TS(3)

    a(f"""ds_read_b64 v[8:9], v{vGC} offset:{C_EPOCH}
    s_lshl_b32 s{sB}, s{sRB}, 10
    s_add_u32 s{sKB}, s{sW}, s{sG}
    s_and_b32 s{sKB}, s{sKB}, 7
    s_lshl_b32 s{sF}, s{sKB}, 12
    s_cmp_ge_u32 s{sW}, 4
    s_cselect_b32 s{sB}, s{sF}, s{sB}
    s_cselect_b64 vcc, -1, 0
    s_add_u32 s{sB}, s{sB}, {FLG_KV}
    v_cndmask_b32 v{vF2}, v{vF2}, v{vFL}, vcc
    s_nop 0
    buffer_load_dwordx2 v[12:13], v{vF2}, {sr(rWS,4)}, s{sB} offen sc1""")
    def zero_block():
        for j in range(4): a(f"ds_write_b128 v{vOZ}, {vr(ACC,4)} offset:{1024*j}")
        a(f"""s_mov_b64 exec, 0x1ffff
        ds_write_b128 v{vOZ}, {vr(S1+12,4)} offset:{B_L}
        s_mov_b64 exec, -1""")
    scales([1, 2, 3])
    lds_inc(C_RS, vGC, vT)
    a(f"""s_waitcnt lgkmcnt(4)
    v_readfirstlane_b32 s{sEP}, v8
    v_readfirstlane_b32 s{sEP+1}, v9
    s_lshl_b32 s{sKVO}, s{sKB}, 13
    s_add_u32 s{sA}, s{sKVO}, 4096
    s_add_u32 s{sC}, s{sKVO}, {VF}
    s_add_u32 s{sD}, s{sKVO}, {VF+4096}
    s_mov_b32 s{sOOF}, {OACC}
    s_mov_b32 s{sQA}, {QF}
    s_mov_b32 s{sINC}, 0
    s_and_b32 s{sPB}, s{sW}, 3
    s_lshl_b32 s{sPB}, s{sPB}, 1
    s_add_u32 s{sPB}, s{sPB}, 4""")
    a(f"s_cmp_lt_u32 s{sW}, 4\ns_cbranch_scc1 L_shift")
    zero_block()
    a("s_setprio 2\ns_branch L_abar")
    a.label("L_shift")
    flag_poll(vF2, sB, 12, sleep=1, preissued=True)
    a(f"""    s_lshl_b32 s{sB}, s{sRB}, 11
    s_nop 0
    buffer_load_dwordx4 {vr(K,4)}, v{vKA}, {sr(rWS,4)}, s{sB} offen sc1
    s_lshl_b32 s{sB}, s{sKB}, 12
    s_add_u32 s{sB}, s{sB}, {FLG_KV}
    s_nop 0
    buffer_load_dwordx2 v[12:13], v{vFL}, {sr(rWS,4)}, s{sB} offen sc1""")
    TS(11)
    zero_block()
    lds_spin(C_QREADY, 4, vGC, vT, sleep=0)
    TS(5)
    a(f"""ds_read_b128 {vr(Q,4)}, v{vQW} offset:{4*QST}
    ds_read_b128 v[16:19], v{vQW}
    s_waitcnt vmcnt(1) lgkmcnt(0)
    {MF32} {vr(S0,16)}, {vr(K,4)}, {vr(Q,4)}, 0
    {MF32} v[20:35], {vr(K,4)}, v[16:19], 0
    s_nop 10""")
    maxtree(S0, vT)
    maxtree(20, 36)
    a(f"""v_mov_b32 v{vT+1}, v{vT}
    v_mov_b32 v37, v36
    s_nop 0
    v_permlane32_swap_b32 v{vT}, v{vT+1}
    v_permlane32_swap_b32 v36, v37
    v_max_f32 v{vT}, v{vT}, v{vT+1}
    v_max_f32 v36, v36, v37
    v_sub_f32 v{S1}, {-OFFS}, v{vT}
    v_sub_f32 v{S1+1}, {-OFFS}, v{vT}
    v_sub_f32 v{S1+4}, {-OFFS}, v36
    v_sub_f32 v{S1+5}, {-OFFS}, v36
    v_mov_b64 {vr(S1+2,2)}, {vr(S1,2)}
    v_mov_b64 {vr(S1+6,2)}, {vr(S1+4,2)}
    ds_write_b128 v{vCW}, {vr(S1,4)} offset:{4*QST+1024}
    ds_write_b128 v{vCW}, {vr(S1+4,4)} offset:1024""")
    a.label("L_abar")
    lds_inc(C_ABAR, vGC, vT)
    flag_poll(vFL, sB, 12, sleep=1, preissued=True)
    TS(4)
    def ldK(t): a(f"buffer_load_dwordx4 {vr(K+4*t,4)}, v{vKA}, {sr(rWS,4)}, s{sKVO if t < 4 else sA} offen offset:{(t&3)*1024} sc1")
    def ldV(t): a(f"buffer_load_dwordx4 {vr(V+8*t,4)}, v{vKA}, {sr(rWS,4)}, s{sC if t < 4 else sD} offen offset:{(t&3)*1024} sc1")
    ldK(0)
    for t in range(7):
        ldK(t + 1); ldV(t)
    ldV(7)
    lds_inc(C_KV, vGC, vT)
    TS(10)
    lds_spin(C_ABAR, 8, vGC, vT, sleep=0)
    TS(6)
    if ts: a(f"s_memtime {sr(TS0+26,2)}")
    def load_q():
        x = [f"v_lshl_add_u32 v{vAD}, v{vL8}, 1, s{sQA}", f"v_and_b32 v{vT}, 0xff, v{vL8}",
             f"ds_read_b128 {vr(Q,4)}, v{vAD}", f"v_lshl_add_u32 v{vT}, v{vT}, 1, s{sQA}", f"s_add_u32 s{sQA}, s{sQA}, {QST}"]
        return x + [f"ds_read_b128 {vr(CIN+4*j,4)}, v{vT} offset:1024" for j in range(4)]
    def QK(t, S): return f"{MF32} {vr(S,16)}, {vr(K+4*t,4)}, {vr(Q,4)}, {vr(CIN,16)}"
    def PV(t, hf, S, zero=False): return f"{MF32} {vr(ACC,16)}, {vr(V+8*t+4*hf,4)}, {vr(S+8*hf,4)}, {'0' if zero else vr(ACC,16)}"
    def flush_ops():
        x = [[f"v_add_u32 v{vAD}, s{sOOF}, v{vL8}", f"v_cvt_f64_f32 {vr(vT,2)}, v{ACC}"]]
        for j in range(8): x.append([f"v_cvt_f64_f32 {vr(ACC+2*j,2)}, v{ACC+8+j}", f"ds_add_f64 v{vAD}, {vr(ACC+2*j,2)} offset:{512*j}"])
        x.append([f"v_writelane_b32 v{vT+1}, s{sINC}, 32", "s_mov_b32 exec_hi, 1", f"ds_add_rtn_f64 {vr(vT,2)}, v{vAD}, {vr(vT,2)} offset:{B_L}", "s_mov_b32 exec_hi, -1"])
        return x
    def vswap(t):
        for j in range(4): a(f"v_permlane16_swap_b32 v{V+8*t+4+j}, v{V+8*t+j}")
    for l in load_q(): a(l)
    NV0 = opt.get("nv0", 3)
    a(f"s_setprio 1\ns_mov_b64 vcc, -1\ns_waitcnt vmcnt(14) lgkmcnt(0)")
    a(QK(0, S0))
    for t in range(NV0):
        a(f"s_waitcnt vmcnt({12 - 2 * t})")
        vswap(t)
    a(".p2align 6")
    a.label("L_atop")
    SS = [S0, S1]
    std = "e0 e1 P1 e2 e3 c0 e4 e5 c1 QK e6 e7 c2 e8 c3 e9 e10 P0 e11 c4 e12 e13 c5 e14 e15 c6 c7"
    orders = {0: "e0 e1 P1 e2 e3 c0 e4 e5 c1 QK e6 e7 c2 e8 c3 e9 e10 F e11 F c4 F e12 F e13 F c5 F e14 F e15 F c6 F c7 F P0",
              1: "e0 e1 e2 e3 c0 P1 e4 e5 c1 e6 e7 QK c2 e8 c3 e9 e10 e11 P0 c4 e12 e13 c5 e14 e15 c6 c7 R",
              4: std + " U",
              6: "e0 e1 P1 e2 e3 c0 e4 e5 c1 QK e6 e7 c2 e8 c3 e9 e10 P0 L L L e11 L L c4 L e12 L e13 L c5 L e14 e15 c6 c7",
              7: "e0 e1 P1 e2 e3 c0 e4 e5 c1 G QK e6 e7 c2 e8 c3 e9 e10 P0 e11 X c4 e12 e13 c5 e14 e15 c6 c7"}
    orders[NV0] = orders.get(NV0, std).replace("P0", "W P0")
    for t in range(8):
        cur, nxt = SS[t & 1], SS[(t + 1) & 1]
        fl, lq = flush_ops(), load_q()
        for tok in orders.get(t, std).split():
            if tok[0] == "e": a(e(cur, int(tok[1:])))
            elif tok[0] == "c": a(c(cur, int(tok[1:])))
            elif tok == "P1": a(PV((t - 1) & 7, 1, nxt))
            elif tok == "P0": a(PV(t, 0, cur, zero=(t == 0)))
            elif tok == "QK": a(QK((t + 1) & 7, nxt))
            elif tok == "W":
                a(f"s_cbranch_vccnz L_vs0")
                a.label(f"L_vr0")
            elif tok == "G": a("s_waitcnt lgkmcnt(0)")
            elif tok == "F": a("\n".join(fl.pop(0)))
            elif tok == "L": a(lq.pop(0))
            elif tok == "R":
                a(f"""s_waitcnt lgkmcnt(0)
                v_readlane_b32 s{sAH}, v{vT}, 32
                s_setprio 0
                s_bitcmp1_b32 s{sAH}, s{sPB}
                s_cbranch_scc0 L_yield
                s_setprio 2""")
                a.label("L_yield")
            elif tok == "U":
                a(f"s_cbranch_scc1 L_keep\ns_setprio 1")
                a.label("L_keep")
            elif tok == "X":
                a(f"s_add_u32 s{sOOF}, s{sOOF}, {OST}")
                if opt.get("qts"):
                    a("s_memtime s[96:97]\ns_waitcnt lgkmcnt(0)")
                    for i in range(1, 8): a(f"s_mov_b32 s{TS0+2*i}, s{TS0+2*i+2}")
                    a(f"s_sub_u32 s{TS0+16}, s96, s{TS0+26}")
                a(f"s_cmp_lt_u32 s{sOOF}, {OACC + 7 * OST}")
    a("s_cbranch_scc1 L_atop")
    if not opt.get("qts"): TS(7)
    a("s_setprio 2")
    a(PV(7, 1, S1))
    a("s_nop 11")
    for x in flush_ops(): a("\n".join(x))
    if opt.get("delay_f1", 0) > 8:
        a(f"v_mov_b32 v4, {GC}")
        lds_inc(C_ABAR, 4, 5)
    if ts:
        a(f"s_memtime {sr(TS0+28,2)}\ns_waitcnt lgkmcnt(0)\ns_sub_u32 s{TS0+28}, s{TS0+28}, s{TS0+26}")
    TS(9)
    ts_dump()
    a("s_endpgm")
    a.label("L_vs0")
    a("s_waitcnt vmcnt(0)")
    for t in range(NV0, 8): vswap(t)
    a(f"""s_sub_u32 s{sOOF}, s{sOOF}, {OST}
    s_add_u32 s{sINC}, s{sPB}, 1023
    s_lshl_b32 s{sINC}, s{sINC}, 20
    s_sub_u32 s{sA}, 20, s{sPB}
    s_lshl_b32 s{sA}, 1, s{sA}
    s_add_u32 s{sINC}, s{sINC}, s{sA}
    s_mov_b64 vcc, 0
    s_branch L_vr0""")

    a(".p2align 6")
    a.label("L_gwave")
    gGC, gL16, gSW, gTR, gH, gR = 1, 2, 3, 4, 5, 6
    a(f"""s_setprio 3
    s_sub_u32 s{sI}, s{sW}, 8
    v_lshlrev_b32 v{gL16}, 4, v0
    v_lshlrev_b32 v10, {PFS}, v0
    s_sub_u32 s{sE}, s{sI}, 1
    s_waitcnt lgkmcnt(0)
    s_cmp_lg_u32 s{sI}, 0
    s_cbranch_scc1 L_g123""")
    a(f"""s_cmp_eq_u32 s{sCH}, 0
    s_cselect_b32 s{rW}, s{pWK}, s{pWV}
    s_cselect_b32 s{rW+1}, s{pWK+1}, s{pWV+1}
    s_mov_b32 s{rW+2}, 16384
    s_mov_b32 s{rW+3}, 0x20000""")
    for q in range(4):
        a(f"s_mov_b32 m0, {WKV + q * 4096}\ns_mov_b32 s{sA}, {q*4096}")
        for j in range(4): a(f"buffer_load_dwordx4 v{gL16}, {sr(rW,4)}, s{sA} offen offset:{j*1024} lds")
    a("s_branch L_gcom")
    a.label("L_g123")
    srd(rW, pWQ, 0x80000)
    a.label("L_gcom")
    srd(rWS, pWS, WS_BYTES)
    srd(rT, pDBG, 256)
    a(f"""s_lshr_b32 s{sRT}, s{sI}, 1
    s_and_b32 s{sCT}, s{sI}, 1
    v_lshrrev_b32 v7, 3, v0
    v_lshrrev_b32 v8, 2, v0
    v_and_b32 v8, 4, v8
    v_and_b32 v9, 7, v0
    v_xor_b32 v8, v8, v9
    v_lshlrev_b32 v8, 4, v8
    v_lshl_add_u32 v{gSW}, v7, 10, v8
    v_mov_b32 v{gGC}, {GC}
    v_lshrrev_b32 v{gH}, 5, v0
    v_and_b32 v7, 3, v0
    v_and_b32 v8, 16, v0
    v_lshlrev_b32 v8, 1, v8
    v_lshl_add_u32 v{gTR}, v7, 3, v8
    s_cmp_eq_u32 s{sI}, 0
    s_cbranch_scc1 L_g0""")
    a(f"""s_mul_i32 s{sE}, s{sE}, 26
    s_lshl_b32 s{sB}, s{sE}, 13
    s_lshl_b32 s{sC}, s{sG}, 7
    s_add_u32 s{sB}, s{sB}, s{sC}
    s_lshl_b32 s{sA}, s{sE}, 10
    s_add_u32 s{sA}, s{sA}, {RING}
    s_add_u32 s{sD}, s{sA}, {26*1024}
    s_min_u32 s{sD}, s{sD}, {RING + 65536}
    s_setprio 0
    s_barrier
    s_cmp_lg_u32 s{sI}, 3
    s_cbranch_scc1 L_wqloop
    s_setprio 3
    s_mov_b32 s{sCAP}, 0""")
    a.label("L_epoch")
    a(f"""buffer_load_dwordx2 v[14:15], off, {sr(rT,4)}, 0 sc1
    s_add_u32 s{sCAP}, s{sCAP}, 1
    s_cmp_gt_u32 s{sCAP}, {SPIN_CAP}
    s_cbranch_scc1 L_wqloop
    s_waitcnt vmcnt(0)
    v_readfirstlane_b32 s{sEP+1}, v15
    s_nop 0
    s_cmp_eq_u32 s{sEP+1}, 0
    s_cbranch_scc1 L_epoch
    ds_write_b64 v{gGC}, v[14:15] offset:{C_EPOCH}""")
    TS(1)
    a.label("L_wqloop")
    a(f"""s_mov_b32 m0, s{sA}
    s_add_u32 s{sA}, s{sA}, 1024
    buffer_load_dwordx4 v{gSW}, {sr(rW,4)}, s{sB} offen lds
    s_add_u32 s{sB}, s{sB}, 8192
    s_cmp_lt_u32 s{sA}, s{sD}
    s_cbranch_scc1 L_wqloop
    s_setprio 3""")
    a(f"""s_cmp_eq_u32 s{sI}, 1
    s_cselect_b32 s{rW}, s{pB1}, s{pB2}
    s_cselect_b32 s{rW+1}, s{pB1+1}, s{pB2+1}
    s_mov_b32 s{rW+2}, 1024
    s_cselect_b32 s{rW+2}, {W1P}, s{rW+2}
    buffer_load_dword v6, v10, {sr(rW,4)}, 0 offen
    s_waitcnt vmcnt(1)""")
    lds_inc(C_WQ, gGC, 7)
    a("s_branch L_gb2")
    a.label("L_g0")
    WF, XF, DD = 32, 96, 160
    a(f"""s_cmp_lg_u32 s2, 0
    s_cbranch_scc1 L_noep
    v_mov_b32 v10, s{sM}
    v_mov_b32 v11, s{sM+1}
    v_or_b32 v11, 0x80000000, v11
    v_mov_b64 v[12:13], 0
    s_mov_b64 exec, 1
    buffer_atomic_cmpswap_x2 v[10:13], off, {sr(rT,4)}, 0 sc1
    s_mov_b64 exec, -1
    s_nop 0""")
    a.label("L_noep")
    a("s_barrier")
    a(f"""v_and_b32 v7, 15, v0
    v_lshrrev_b32 v8, 4, v0
    v_lshlrev_b32 v9, 3, v7
    v_lshl_add_u32 v9, v8, 8, v9
    v_add_u32 v9, {WKV}, v9
    s_lshl_b32 s{sA}, s{sKG}, 14
    v_xor_b32 v10, v7, v8
    v_lshlrev_b32 v10, 4, v10
    v_lshl_add_u32 v10, v7, 10, v10
    v_add_u32 v10, s{sA}, v10
    v_xor_b32 v11, 64, v10
    v_xor_b32 v12, 0x80, v10
    v_xor_b32 v13, 0xc0, v10
    s_lshl_b32 s{sA}, s{sKG}, 6
    s_add_u32 s{sA}, s{sA}, {RSTD}
    v_lshl_add_u32 v20, v7, 2, s{sA}
    v_lshl_add_u32 v21, v8, 4, s{sA}
    s_cmp_eq_u32 s{sCH}, 0
    s_cselect_b32 s{sD}, {KF}, {VF}
    v_and_b32 v16, 1, v8
    v_lshlrev_b32 v16, 9, v16
    v_lshrrev_b32 v17, 1, v8
    v_lshl_add_u32 v16, v17, 3, v16
    v_lshl_add_u32 v16, v7, 4, v16
    s_xor_b32 s{sA}, s{sKG}, s{sCH}
    s_and_b32 s{sA}, s{sA}, 1
    s_lshl_b32 s{sA}, s{sA}, 8
    s_add_u32 s{sD}, s{sD}, s{sA}
    s_lshl_b32 s{sA}, s{sRB}, 1
    s_lshr_b32 s{sB}, s{sKG}, 1
    s_add_u32 s{sA}, s{sA}, s{sB}
    s_lshl_b32 s{sA}, s{sA}, 10
    s_add_u32 s{sD}, s{sD}, s{sA}
    s_lshl_b32 s{sA}, s{sRB}, 3
    s_add_u32 s{sA}, s{sA}, s{sG}
    s_lshl_b32 s{sA}, s{sA}, 7
    s_add_u32 s{sA}, s{sA}, {FLG_KV}
    s_waitcnt vmcnt(0)""")
    for ks in range(16):
        a(f"ds_read_b64_tr_b16 {vr(WF+4*ks,2)}, v9 offset:{ks*1024}\nds_read_b64_tr_b16 {vr(WF+4*ks+2,2)}, v9 offset:{ks*1024+128}")
    TS(1)
    lds_spin(C_L0, 8, gGC, 14, sleep=0)
    TS(2)
    for ks in range(16):
        a(f"ds_read_b128 {vr(XF+4*ks,4)}, v{10+(ks&3)} offset:{(ks>>2)*256}")
    a(f"""s_cmp_eq_u32 s{sCH}, 0
    s_cbranch_scc0 L_vchain""")
    for sw in (False, True):
        if sw: a.label("L_vchain")
        for ks in range(16):
            A_, B_ = (XF, WF) if sw else (WF, XF)
            if ks % 4 == 0: a(f"s_waitcnt lgkmcnt({12 - ks})")
            if ks == 12: a(f"ds_read_b128 v[24:27], v21" if sw else "ds_read_b32 v24, v20")
            a(f"v_mfma_f32_16x16x32_bf16 {vr(DD,4)}, {vr(A_+4*ks,4)}, {vr(B_+4*ks,4)}, {'0' if ks == 0 else vr(DD,4)}")
        if not sw: a("s_waitcnt lgkmcnt(0)\nv_mov_b32 v25, v24\nv_mov_b64 v[26:27], v[24:25]\ns_branch L_kvst")
    a("s_waitcnt lgkmcnt(0)\ns_nop 2")
    a.label("L_kvst")
    a(f"""s_nop 3
    v_pk_mul_f32 {vr(DD,2)}, {vr(DD,2)}, v[24:25]
    v_pk_mul_f32 {vr(DD+2,2)}, {vr(DD+2,2)}, v[26:27]
    v_cvt_pk_bf16_f32 v18, v{DD}, v{DD+1}
    v_cvt_pk_bf16_f32 v19, v{DD+2}, v{DD+3}
    buffer_store_dwordx2 v[18:19], v16, {sr(rWS,4)}, s{sD} offen sc1""")
    TS(13)
    lds_spin(C_EPOCH + 4, 1, gGC, 14, sleep=0)
    a(f"""ds_read_b64 v[22:23], v{gGC} offset:{C_EPOCH}
    s_mov_b64 exec, 1
    s_waitcnt vmcnt(0) lgkmcnt(0)
    buffer_store_dwordx2 v[22:23], off, {sr(rWS,4)}, s{sA} sc1
    s_mov_b64 exec, -1""")
    TS(3)
    a.label("L_gb2")
    QA, QW, QX = 8, 24, 152
    a(f"""v_bfe_u32 v9, v0, 2, 2
    v_lshrrev_b32 v8, 1, v9
    v_xor_b32 v8, s{sCT}, v8
    v_lshl_add_u32 v8, v8, 6, v{gTR}
    v_lshl_add_u32 v8, v9, 7, v8
    v_lshl_add_u32 v8, v{gH}, 10, v8
    v_add_u32 v8, {RING}, v8""")
    lds_spin(C_WQ, 3, gGC, 7, sleep=0)
    kord = [aa + 8 * b for aa in range(8) for b in range(4)]
    for n, ks in enumerate(kord):
        a(f"ds_read_b64_tr_b16 {vr(QW+4*n,2)}, v8 offset:{ks*2048}\nds_read_b64_tr_b16 {vr(QW+4*n+2,2)}, v8 offset:{ks*2048+512}")
    a(f"""v_and_b32 v7, 31, v0
    v_and_b32 v9, 15, v0
    v_xor_b32 v9, v9, v{gH}
    v_lshlrev_b32 v9, 4, v9
    v_lshl_add_u32 v7, v7, 10, v9
    s_lshl_b32 s{sC}, s{sRT}, 15
    v_add_u32 v7, s{sC}, v7""")
    sRNG = 35
    sT1, sT2, sNG = 0, 1, sE
    sN, sSO = sA, sB
    srd(rW, pW1, 512 * W1P)
    a(f"""s_lshl_b32 s{sT1}, s{sG}, 2
    s_add_u32 s{sT1}, s{sT1}, s{sI}
    s_sub_u32 s{sT2}, 3, s{sI}
    s_lshl_b32 s{sT2}, s{sT2}, 3
    s_add_u32 s{sT2}, s{sT2}, s{sG}
    s_add_u32 s{sT2}, s{sT2}, 32
    s_cmp_lt_u32 s{sT2}, 43
    s_cselect_b32 s{sNG}, 16, 8
    s_mul_i32 s{sRNG}, s{sI}, {RSZ}
    s_add_u32 s{sRNG}, s{sRNG}, {RING}
    s_lshl_b32 s{sSO}, s{sT1}, 6
    v_lshrrev_b32 v9, 2, v0
    v_and_b32 v10, 3, v0
    v_mul_u32_u24 v9, {W1P}, v9
    s_waitcnt vmcnt(1)
    s_cmp_eq_u32 s{sI}, 0
    s_cbranch_scc1 L_nov6
    s_waitcnt vmcnt(0)""")
    a.label("L_nov6")
    a(f"""v_lshl_add_u32 v6, v10, 4, v9
    s_waitcnt lgkmcnt(0)""")
    TS(12)
    a("s_barrier")
    TS(4)
    land = {}
    def xread(n, dst):
        aa, b = n >> 2, n & 3
        if b == 0 and aa > 0: a(f"v_xor_b32 v7, {((aa ^ (aa - 1)) * 32)}, v7")
        a(f"ds_read_b128 {vr(dst,4)}, v7 offset:{b*256}")
        land[n] = dst
    for n in range(4): xread(n, QX + 4 * n)
    nxt_rd = 4
    for n in range(32):
        a(f"s_waitcnt lgkmcnt({nxt_rd - n - 1})")
        a(f"{MF32} {vr(QA,16)}, {vr(QW+4*n,4)}, {vr(land[n],4)}, {'0' if n == 0 else vr(QA,16)}")
        if nxt_rd < 32: xread(nxt_rd, land[n]); nxt_rd += 1
        if n < 5 and nxt_rd < 32: xread(nxt_rd, QW + 4 * n); nxt_rd += 1
    gRS = 166
    if opt.get("pro"): TS(9)
    lds_spin(C_RS, 8, gGC, 26, sleep=0)
    if opt.get("pro"): TS(10)
    a(f"""v_and_b32 v7, 31, v0
    v_lshlrev_b32 v26, 2, v7
    v_add_u32 v26, {RSTD}, v26
    ds_read_b64 v[24:25], v{gGC} offset:{C_EPOCH}
    ds_read_b32 v{gRS}, v26
    ds_read_b32 v{gRS+1}, v26 offset:128
    s_lshl_b32 s{sA}, s{sCT}, 2
    s_add_u32 s{sA}, s{sA}, s{sRT}
    s_mul_i32 s{sA}, s{sA}, {QST}
    s_add_u32 s{sA}, s{sA}, {QF}
    v_add_u32 v27, s{sA}, v{gL16}
    s_cmp_eq_u32 s{sRT}, 0
    s_cselect_b64 vcc, -1, 0
    s_waitcnt lgkmcnt(0)
    v_readfirstlane_b32 s{sEP}, v24
    v_cndmask_b32 v28, v{gRS+1}, v{gRS}, vcc
    v_readfirstlane_b32 s{sEP+1}, v25
    v_mul_f32 v28, 0x3eb8aa3b, v28""")
    for j in range(8): a(f"v_pk_mul_f32 {vr(QA+2*j,2)}, {vr(QA+2*j,2)}, v[28:29] op_sel_hi:[1,0]")
    for j in range(8): a(f"v_cvt_pk_bf16_f32 v{QA+j}, v{QA+2*j}, v{QA+2*j+1}")
    a(f"""ds_write_b128 v27, {vr(QA,4)}
    ds_write_b128 v27, {vr(QA+4,4)} offset:{2*QST}""")
    lds_inc(C_QREADY, gGC, 26)
    TS(5)
    AC = [136, 104, 120, 88]
    XB = 136
    vB1, gXA, gXT, gWA, gWB, gV1 = 8, 16, 17, 18, 19, 20
    a(f"""v_mov_b32 v{gV1}, v6
    v_add_u32 v{gV1+1}, {128*W1P-1024}, v6
    v_add_u32 v{gV1+2}, {2*(128*W1P-1024)}, v6
    v_add_u32 v{gV1+3}, {3*(128*W1P-1024)}, v6""")
    def w1_dma1(b): return f"buffer_load_dwordx4 v{gV1+b}, {sr(rW,4)}, s{sSO} offen offset:{b*1024} lds"
    lds_spin(C_KV, opt.get("kvgate", 8), gGC, 56, sleep=2) if opt.get("kvgate", 8) else None
    if opt.get("delay_f1"): lds_spin(C_ABAR, 16, gGC, 56, sleep=16)
    TS(15)
    late[0] = True
    for n in range(3):
        a(f"s_add_u32 m0, s{sRNG}, {n*4096}\ns_nop 0")
        for b in range(4): a(w1_dma1(b))
        a(f"s_add_u32 s{sSO}, s{sSO}, {16*W1P}")
    a(f"""v_lshlrev_b32 v40, 1, v7
    s_lshl_b32 s{sA}, s{sT1}, 6
    s_lshl_b32 s{sD}, s{sT2}, 6""")
    srd(rT, pB1, W1P)
    a(f"""buffer_load_ushort v8, v40, {sr(rT,4)}, s{sA} offen
    buffer_load_ushort v15, v40, {sr(rT,4)}, s{sD} offen
    v_and_b32 v44, 15, v0
    v_xor_b32 v44, v44, v{gH}
    v_lshlrev_b32 v44, 4, v44
    v_lshl_add_u32 v{gXA}, v7, 10, v44
    v_bfe_u32 v44, v0, 2, 2
    v_lshl_add_u32 v{gWB}, v44, 6, v{gTR}
    v_lshl_add_u32 v{gWB}, v{gH}, 9, v{gWB}
    v_add_u32 v{gWB}, s{sRNG}, v{gWB}""")
    a(f"""v_rcp_f32 v44, v{gRS}
    v_rcp_f32 v45, v{gRS+1}
    v_sub_u32 v48, v{gH}, 1
    s_mov_b32 s{sD}, 0xffff0000
    v_and_b32 v46, s{sD}, v44
    v_and_b32 v47, s{sD}, v45
    v_sub_f32 v44, v44, v46
    v_sub_f32 v45, v45, v47
    v_cvt_pk_bf16_f32 v12, v46, v44
    v_cvt_pk_bf16_f32 v14, v47, v45
    v_and_b32 v12, v48, v12
    v_and_b32 v14, v48, v14
    v_mov_b32 v9, 0
    v_mov_b64 v[10:11], 0
    v_mov_b32 v13, 0""")
    H0, H1 = 104, 120
    FB = [24, 56]
    FX = [88, 150]
    FX = [88, 152]
    def f1_reads(p, b):
        nx = 4 if not (p == 1 and b == 3) else 4
        return [f"ds_read_b64_tr_b16 {vr(FB[p]+8*b,2)}, v{gWA} offset:{b*1024}", f"ds_read_b64_tr_b16 {vr(FB[p]+8*b+2,2)}, v{gWA} offset:{b*1024+256}",
                f"ds_read_b128 {vr(FB[p]+8*b+4,4)}, v{gXT} offset:{b*256}", f"ds_read_b128 {vr(FX[p]+4*b,4)}, v{gXT} offset:{b*256+32768}"]
    gR2 = 6
    def bias():
        a(f"{MF32} {vr(H0,16)}, v[8:11], v[12:15], {vr(H0,16)}\n{MF32} {vr(H1,16)}, v[8:11], v[14:17], {vr(H1,16)}")
    def hzero():
        a(f"v_mfma_f32_32x32x8_bf16 {vr(H0,16)}, v[10:11], v[10:11], 0\nv_mfma_f32_32x32x8_bf16 {vr(H1,16)}, v[10:11], v[10:11], 0")
    a(f"""v_mul_f32 v{gR2}, v{gRS}, v{gRS}
    v_mul_f32 v{gR2+1}, v{gRS+1}, v{gRS+1}
    v_mov_b32 v{gWA}, v{gWB}
    v_mov_b32 v{gXT}, v{gXA}
    s_mov_b32 s{sN}, 0
    s_mov_b32 s{sM}, 0""")
    hzero()
    plan_lo = [(0, 29, 64, 75), (18, 29, 75, 86), (36, 14, 0, 50), (50, 14, 0, 64)]
    plan_hi = [(0, 26, 64, 72), (18, 25, 72, 79), (36, 25, 79, 86), (54, 10, 0, 64)]
    def pack(b): return sum(x << (8 * i) for i, x in enumerate(b))
    sPL, sSW = 18, 19
    a(f"s_mov_b32 s{sPL}, {pack(plan_hi[0])}")
    a(f"s_cmp_lt_u32 s{sG}, 3\ns_cselect_b32 s{sD}, 4, 0\ns_add_u32 s{sD}, s{sD}, s{sI}")
    for n, pl in enumerate(plan_hi + plan_lo):
        if n: a(f"s_cmp_eq_u32 s{sD}, {n}\ns_cselect_b32 s{sPL}, {pack(pl)}, s{sPL}")
    a(f"""s_lshr_b32 s{sD}, s{sPL}, 24
    s_mov_b32 s{rX}, s{pW2}
    s_mov_b32 s{rX+1}, s{pW2+1}
    s_lshl_b32 s{rX+2}, s{sD}, 14
    s_mov_b32 s{rX+3}, 0x20000
    s_and_b32 s{sSW}, s{sPL}, 0xff
    s_lshl_b32 s{sSW}, s{sSW}, 14
    s_lshl_b32 s{sD}, s{sG}, 7
    s_add_u32 s{sSW}, s{sSW}, s{sD}""")
    a(f"s_waitcnt vmcnt(10)")
    for b in range(4):
        for l in f1_reads(0, b): a(l)
    TS(3)
    a(".p2align 6")
    a.label("L_f1loop")
    for p in range(2):
        a(f"""s_add_u32 m0, s{sM}, s{sRNG}
        s_add_u32 s{sM}, s{sM}, 4096
        s_cmp_lt_u32 s{sM}, {RSZ}
        s_cselect_b32 s{sM}, s{sM}, 0
        s_add_u32 s{sN}, s{sN}, 1
        s_and_b32 s{sD}, s{sN}, 7
        s_lshl_b32 s{sD}, s{sD}, 5
        v_add_u32 v{gWA}, s{sM}, v{gWB}
        v_xor_b32 v{gXT}, s{sD}, v{gXA}""")
        if p == 1:
            a(f"""s_lshl_b32 s{sD}, s{sT2}, 6
            s_cmp_eq_u32 s{sN}, 6
            s_cselect_b32 s{sSO}, s{sD}, s{sSO}
            s_add_u32 s{sD}, s{sN}, 2
            s_cmp_lt_u32 s{sD}, s{sNG}
            s_cselect_b32 s{rW+2}, s{rW+2}, 0""")
        for b in range(4):
            rd = f1_reads(1 - p, b)
            if not opt.get("x_nolg"): a("s_waitcnt lgkmcnt(12)")
            a(f"{MF32} {vr(H0,16)}, {vr(FB[p]+8*b,4)}, {vr(FB[p]+8*b+4,4)}, {vr(H0,16)}")
            a(w1_dma1(b))
            a(rd[2]); a(rd[3])
            pad(P1A)
            a(f"{MF32} {vr(H1,16)}, {vr(FB[p]+8*b,4)}, {vr(FX[p]+4*b,4)}, {vr(H1,16)}")
            if not opt.get("x_novm"): a("s_waitcnt vmcnt(8)")
            a(rd[0]); a(rd[1])
            if b < 3: pad(P1B)
        a(f"s_add_u32 s{sSO}, s{sSO}, {16*W1P}")
    a(f"""s_and_b32 s{sD}, s{sN}, 7
    s_cbranch_scc1 L_f1loop""")
    TS(2)
    a(f"""v_lshl_or_b32 v8, v8, 16, v8
    s_mul_i32 s{sD}, s{sRB}, 86
    s_lshl_b32 s{sC}, s{sT1}, 1""")
    bias()
    a(f"""s_add_u32 s{sD}, s{sD}, s{sC}
    s_lshl_b32 s{sD}, s{sD}, 11
    s_add_u32 s{sD}, s{sD}, {HF}
    s_mov_b32 s{sT1}, s{sT2}
    v_mov_b32 v8, v15
    s_nop 5""")
    for rt, Hh in enumerate((H0, H1)):
        for j in range(16): a(f"v_max_f32 v{Hh+j}, 0, v{Hh+j}")
        for j in range(8): a(f"v_pk_mul_f32 {vr(Hh+2*j,2)}, {vr(Hh+2*j,2)}, {vr(Hh+2*j,2)}")
        sel = "op_sel_hi:[1,0]" if rt == 0 else "op_sel:[0,1] op_sel_hi:[1,1]"
        for j in range(8): a(f"v_pk_mul_f32 {vr(Hh+2*j,2)}, {vr(Hh+2*j,2)}, {vr(gR2,2)} {sel}")
        for j in range(8): a(f"v_cvt_pk_bf16_f32 v{Hh+j}, v{Hh+2*j}, v{Hh+2*j+1}")
        for s_ in range(2):
            a(f"buffer_store_dwordx4 {vr(Hh+4*s_,4)}, v{gL16}, {sr(rWS,4)}, s{sD} offen offset:{s_*2048+rt*1024} sc1")
    gSW2 = 22
    D2 = RSZ // 2048
    def w2_dma(u):
        a(f"""s_add_u32 m0, s{sRNG}, {u*2048}
        s_nop 0
        buffer_load_dwordx4 v{gSW}, {sr(rX,4)}, s{sSW} offen lds
        buffer_load_dwordx4 v{gSW2}, {sr(rX,4)}, s{sSW} offen offset:1024 lds
        s_add_u32 s{sSW}, s{sSW}, 16384""")
    a(f"""s_cmp_eq_u32 s{sN}, 8
    s_cselect_b32 s{sD}, 1, 16
    v_mov_b32 v{H0+8}, s{sD}
    s_cmp_lt_u32 s{sN}, s{sNG}
    s_cbranch_scc1 L_f1more
    v_add_u32 v{gSW2}, {8192-1024}, v{gSW}""")
    for u in range(D2): w2_dma(u)
    a(f"""s_waitcnt vmcnt({2*D2})
    s_branch L_f1pub""")
    a.label("L_f1more")
    a("s_waitcnt vmcnt(0)")
    a.label("L_f1pub")
    a(f"""s_mov_b64 exec, 1
    ds_add_rtn_u32 v{H0+9}, v{gGC}, v{H0+8} offset:{C_HDONE}
    s_mov_b64 exec, -1
    s_lshl_b32 s{sC}, s{sRB}, 3
    s_add_u32 s{sC}, s{sC}, s{sG}
    s_lshl_b32 s{sC}, s{sC}, 7
    s_add_u32 s{sC}, s{sC}, s{sN}
    s_add_u32 s{sC}, s{sC}, {FLG_H - 8}
    s_cmp_lt_u32 s{sG}, 3
    s_cselect_b32 s{sCAP}, 1, 0
    s_cmp_eq_u32 s{sN}, 8
    s_cselect_b32 s{sCAP}, 3, s{sCAP}
    s_cselect_b32 s{sD}, 0, 4
    s_waitcnt lgkmcnt(0)
    v_readfirstlane_b32 s{sF}, v{H0+9}
    s_nop 0
    s_lshr_b32 s{sF}, s{sF}, s{sD}
    s_and_b32 s{sF}, s{sF}, 15
    s_cmp_lg_u32 s{sF}, s{sCAP}
    s_cbranch_scc1 L_nohflag""")
    flag_store(sC, H0 + 8)
    a.label("L_nohflag")
    a("s_nop 0")
    hzero()
    a(f"""s_cmp_lt_u32 s{sN}, s{sNG}
    s_cbranch_scc1 L_f1loop""")
    TS(6)
    sK0, sK1, sSH, sXC = 0, 1, sC, sB
    gA0, gA1, gHO0, gHO1, gFL, gWO = 8, 9, 10, 11, 12, 13
    gCN, gOA, gLA, gCV = 16, 17, 18, 19
    HR = 24
    AF = [152, 160]
    WOF, FA = 88, 72
    OFR = [[56, 60, 64, 68, 152, 156, 160, 164], [24 + 4 * gp for gp in range(8)]]
    sHB, sFH, sNF, sPF, sWM, sWS, sRET, sLOOP = 8, 9, 10, 11, 12, 13, 14, 20
    def ev_set():
        a(f"""s_mul_i32 s{sA}, s{sNF}, {OST}
        s_add_u32 s{sA}, s{sA}, {OACC}
        v_mov_b32 v{gCN}, s{sA}
        v_lshrrev_b32 v{gOA}, 1, v{gL16}
        v_and_b32 v{gLA}, 0xff, v{gOA}
        v_add_u32 v{gOA}, s{sA}, v{gOA}
        v_add_u32 v{gLA}, s{sA}, v{gLA}""")
    def o_flag():
        a(f"""s_lshl_b32 s{sA}, s{sRB}, 3
        s_add_u32 s{sA}, s{sA}, s{sG}
        s_lshl_b32 s{sA}, s{sA}, 4
        s_add_u32 s{sA}, s{sA}, s{sPF}
        s_lshl_b32 s{sA}, s{sA}, 3
        s_add_u32 s{sA}, s{sA}, {FLG_O}
        s_mov_b32 s{sPF}, s{sNF}""")
    srd(rW, pX, 0x200000)
    srd(rT, pB2, 1024)
    a(f"""v_and_b32 v41, 31, v0
    v_lshlrev_b32 v40, 3, v{gH}
    v_lshl_add_u32 v41, v41, 10, v40
    s_lshl_b32 s{sA}, s{sG}, 7
    s_lshl_b32 s{sD}, s{sCT}, 6
    s_add_u32 s{sA}, s{sA}, s{sD}
    s_lshl_b32 s{sD}, s{sRB}, 16
    s_lshl_b32 s{sC}, s{sRT}, 15
    s_add_u32 s{sD}, s{sD}, s{sC}
    s_add_u32 s{sD}, s{sD}, s{sA}""")
    for q in range(4): a(f"buffer_load_dwordx2 {vr(XB+2*q,2)}, v41, {sr(rW,4)}, s{sD} offen offset:{16*q}")
    for q in range(4): a(f"buffer_load_dwordx2 {vr(XB+8+2*q,2)}, v40, {sr(rT,4)}, s{sA} offen offset:{16*q}")
    a(f"""s_lshl_b32 s{sFH}, s{sRB}, 10
    s_add_u32 s{sFH}, s{sFH}, {FLG_H}
    v_and_b32 v{gFL}, 7, v0
    v_lshlrev_b32 v{gFL}, 7, v{gFL}
    v_bfe_u32 v{gR}, v0, 2, 2
    buffer_load_dwordx2 v[14:15], v{gFL}, {sr(rWS,4)}, s{sFH} offen sc1
    v_lshrrev_b32 v{gWO}, 1, v{gR}
    v_xor_b32 v{gWO}, s{sCT}, v{gWO}
    v_lshl_add_u32 v{gWO}, v{gWO}, 6, v{gTR}
    v_lshl_add_u32 v{gWO}, v{gR}, 7, v{gWO}
    v_lshl_add_u32 v{gWO}, v{gH}, 9, v{gWO}
    s_lshl_b32 s{sA}, s{sRT}, 10
    v_mov_b64 v[72:73], 0
    v_mov_b64 v[74:75], 0
    v_add_u32 v{gA0}, s{sRNG}, v{gWO}
    v_xor_b32 v{gA1}, 64, v{gA0}
    v_add_u32 v{gHO0}, s{sA}, v{gL16}
    v_xor_b32 v{gHO1}, 0x400, v{gHO0}""")
    a(f"{MF32} {vr(AC[3],16)}, v[72:75], v[72:75], 0")
    a(f"s_mov_b32 s{sD}, 0xffff0000\ns_waitcnt vmcnt(1)")
    for j in range(8): a(f"v_lshlrev_b32 v{24+2*j}, 16, v{XB+8+j}\nv_and_b32 v{25+2*j}, s{sD}, v{XB+8+j}")
    for j in range(7, -1, -1):
        a(f"v_and_b32 v{AC[0]+2*j+1}, s{sD}, v{XB+j}\nv_lshlrev_b32 v{AC[0]+2*j}, 16, v{XB+j}")
    for j in range(8): a(f"v_pk_add_f32 {vr(AC[0]+2*j,2)}, {vr(AC[0]+2*j,2)}, {vr(24+2*j,2)}")
    def a_reads(u, p):
        for d, ga in enumerate((gA0, gA1)):
            a(f"ds_read_b64_tr_b16 {vr(AF[p]+4*d,2)}, v{ga} offset:{u*2048}\nds_read_b64_tr_b16 {vr(AF[p]+4*d+2,2)}, v{ga} offset:{u*2048+1024}")
    LDS_OFF = 0x30000
    a(f"""s_mul_i32 s{sHB}, s{sRB}, {86*2048}
    s_add_u32 s{sHB}, s{sHB}, {HF}
    s_and_b32 s{sSH}, s{sPL}, 0xff
    s_lshl_b32 s{sSH}, s{sSH}, 11
    s_add_u32 s{sSH}, s{sSH}, s{sHB}
    s_lshr_b32 s{sD}, s{sPL}, 24
    s_lshl_b32 s{sD}, s{sD}, 11
    s_mov_b32 s{rT}, s{pWS}
    s_mov_b32 s{rT+1}, s{pWS+1}
    s_add_u32 s{rT+2}, s{sD}, s{sHB}
    s_mov_b32 s{rT+3}, 0x20000
    s_mov_b32 s{rW}, s{pWO}
    s_mov_b32 s{rW+1}, s{pWO+1}
    s_mov_b32 s{rW+2}, 0
    s_mov_b32 s{rW+3}, 0x20000
    s_mov_b32 s{sWM}, {LDS_OFF}
    s_mov_b32 s{sWS}, 0
    s_bfe_u32 s{sK1}, s{sPL}, 0x80008
    s_mov_b32 s{sK0}, 0
    s_xor_b32 s{sNF}, s{sCT}, 1
    s_lshl_b32 s{sNF}, s{sNF}, 1
    s_add_u32 s{sNF}, s{sNF}, s{sRT}
    s_mov_b32 s{sPF}, s{sNF}
    s_mov_b32 s{sLOOP}, 1""")
    ev_set()
    def wo_on():
        a(f"""s_lshl_b32 s{sWM}, s{sI}, 14
        s_lshl_b32 s{sWS}, s{sI}, 17
        s_add_u32 s{rW+2}, s{sWS}, 0x20000
        s_lshl_b32 s{sA}, s{sG}, 7
        s_add_u32 s{sWS}, s{sWS}, s{sA}""")
    a(f"""s_bfe_u32 s{sXC}, s{sPL}, 0x80010
    s_cbranch_scc1 L_wolater
    s_cmp_lt_u32 s{sG}, 3
    s_cselect_b32 s{sD}, 36, 20""")
    lds_spin(C_HDONE, f"s{sD}", gGC, gCV, sleep=2)
    wo_on()
    a.label("L_wolater")
    flag_poll(gFL, sFH, 14, preissued=True, sleep=opt.get("hsleep", 2))
    TS(7)
    for u in range(D2):
        a(f"""buffer_load_dwordx4 {vr(HR+8*u,4)}, v{gHO0}, {sr(rT,4)}, s{sSH} offen sc1
        buffer_load_dwordx4 {vr(HR+8*u+4,4)}, v{gHO1}, {sr(rT,4)}, s{sSH} offen sc1
        s_add_u32 s{sSH}, s{sSH}, 2048""")
    a_reads(0, 0)
    a(f"ds_read_b32 v{gCV}, v{gCN} offset:{B_CNT}")
    a(f"s_add_u32 s{sFH}, s{sFH}, 8\ns_waitcnt vmcnt(0)")
    if opt.get("x_noh"): a(f"s_mov_b32 s{rT+2}, 0")
    if opt.get("x_now"): a(f"s_mov_b32 s{rX+2}, 0")
    TS(1)
    a(".p2align 6")
    a.label("L_f2loop")
    for u in range(D2):
        p = u & 1
        def mf(j): a(f"{MF32} {vr(AC[j],16)}, {vr(AF[p]+4*(j&1),4)}, {vr(HR+8*u+4*(j>>1),4)}, {vr(AC[j],16)}")
        a(f"s_waitcnt vmcnt({4*(D2-2)}) lgkmcnt(0)")
        mf(0)
        a_reads((u + 1) % D2, 1 - p)
        if u == 0:
            a("s_branch L_trip")
            a.label("L_tripped")
        elif u == D2 - 1: a(f"ds_read_b32 v{gCV}, v{gCN} offset:{B_CNT}")
        elif u == 1: a(f"buffer_load_dwordx2 v[14:15], v{gFL}, {sr(rWS,4)}, s{sFH} offen sc1")
        else: pad(P2A)
        mf(1)
        a(f"""s_add_u32 m0, s{sRNG}, {u*2048}
        buffer_load_dwordx4 {vr(HR+8*u,4)}, v{gHO0}, {sr(rT,4)}, s{sSH} offen sc1
        buffer_load_dwordx4 v{gSW}, {sr(rX,4)}, s{sSW} offen lds
        buffer_load_dwordx4 v{gSW2}, {sr(rX,4)}, s{sSW} offen offset:1024 lds
        s_add_u32 s{sSW}, s{sSW}, 16384""")
        mf(2)
        a(f"""s_cmp_ge_u32 s{sWS}, s{rW+2}
        s_cbranch_scc1 L_nowo{u}
        s_mov_b32 m0, s{sWM}
        s_add_u32 s{sWM}, s{sWM}, 2048
        buffer_load_dwordx4 v{gSW}, {sr(rW,4)}, s{sWS} offen lds
        buffer_load_dwordx4 v{gSW2}, {sr(rW,4)}, s{sWS} offen offset:1024 lds
        s_add_u32 s{sWS}, s{sWS}, 16384""")
        a.label(f"L_nowo{u}")
        mf(3)
        a(f"buffer_load_dwordx4 {vr(HR+8*u+4,4)}, v{gHO1}, {sr(rT,4)}, s{sSH} offen sc1\ns_add_u32 s{sSH}, s{sSH}, 2048")
        pad(P2D)
        a(f"s_add_u32 s{sK0}, s{sK0}, 1\ns_cmp_ge_u32 s{sK0}, s{sK1}")
        a("s_cbranch_scc1 L_f2done" if u < D2 - 1 else "s_cbranch_scc0 L_f2loop")
    a.label("L_f2done")
    TS(8)
    sJ, sFO, sOO, sRDY = 0, 1, sB, 21
    def wo_reads():
        for gp in range(8):
            a(f"ds_read_b64_tr_b16 {vr(WOF+4*gp,2)}, v{gWO} offset:{gp*8192}\nds_read_b64_tr_b16 {vr(WOF+4*gp+2,2)}, v{gWO} offset:{gp*8192+1024}")
        a(f"v_add_u32 v{gWO}, 2048, v{gWO}")
    def o_loads(bf):
        a(f"s_mov_b32 s{sA}, s{sOO}")
        for gp in range(8):
            a(f"buffer_load_dwordx4 {vr(OFR[bf][gp],4)}, v{gL16}, {sr(rWS,4)}, s{sA} offen sc1\ns_add_u32 s{sA}, s{sA}, 4096")
        a(f"s_add_u32 s{sOO}, s{sOO}, 1024\ns_add_u32 s{sJ}, s{sJ}, 1")
    def o_mf(bf, after):
        a(f"s_waitcnt lgkmcnt(0)")
        for gp in range(8):
            a(f"s_waitcnt vmcnt({7-gp+after})\n{MF32} {vr(AC[0],16)}, {vr(WOF+4*gp,4)}, {vr(OFR[bf][gp],4)}, {vr(AC[0],16)}")
            if gp < 7: pad(PO)
    a(f"""s_lshl_b32 s{sFO}, s{sRB}, 10
    s_lshl_b32 s{sA}, s{sRT}, 3
    s_add_u32 s{sFO}, s{sFO}, s{sA}
    s_add_u32 s{sFO}, s{sFO}, {FLG_O}
    v_and_b32 v20, 24, v0
    v_lshl_add_u32 v{gFL}, v20, 1, v{gFL}
    v_add_u32 v23, s{sRNG}, v{gL16}
    buffer_load_dwordx2 v[14:15], v{gFL}, {sr(rWS,4)}, s{sFO} offen sc1
    s_lshl_b32 s{sOO}, s{sRB}, 1
    s_add_u32 s{sOO}, s{sOO}, s{sRT}
    s_lshl_b32 s{sOO}, s{sOO}, 15
    s_add_u32 s{sOO}, s{sOO}, {OF}
    s_mov_b32 s{sJ}, 0
    s_mov_b32 s{sLOOP}, 0
    s_mov_b32 s23, 0""")
    srd(rT, pOUT, 0x200000)
    a(f"""s_waitcnt vmcnt(1) lgkmcnt(0)
    s_cmp_ge_u32 s{sPF}, s{sNF}
    s_cbranch_scc1 L_nopf""")
    o_flag()
    flag_store(sA, 20)
    a.label("L_nopf")
    for j in range(1, 4):
        for q in range(4): a(f"ds_write_b128 v23, {vr(AC[j]+4*q,4)} offset:{(j-1)*4096+q*1024}")
    lds_inc(C_GBAR, gGC, 23)
    a(f"""s_waitcnt vmcnt(0)
    v_cmp_ne_u64 vcc, {sr(sEP,2)}, v[14:15]
    s_nop 1
    s_mov_b32 s{sRDY}, vcc_lo
    s_and_b32 s22, s{sRDY}, 0xffff
    s_cbranch_scc1 L_red""")
    o_loads(1)
    o_loads(0)
    a.label("L_red")
    lds_spin(C_GBAR, 4, gGC, 14, sleep=1)
    for j in range(1, 4):
        a(f"s_xor_b32 s{sA}, s{sI}, {j}\ns_mul_i32 s{sA}, s{sA}, {RSZ}\ns_add_u32 s{sA}, s{sA}, {RING}\nv_add_u32 v14, s{sA}, v{gL16}")
        for q in range(4): a(f"ds_read_b128 {vr(AC[j]+4*q,4)}, v14 offset:{(j-1)*4096+q*1024}")
    for j in range(1, 4):
        a(f"s_waitcnt lgkmcnt({(3-j)*4})")
        for q in range(8): a(f"v_pk_add_f32 {vr(AC[0]+2*q,2)}, {vr(AC[0]+2*q,2)}, {vr(AC[j]+2*q,2)}")
    wo_reads()
    TS(9)
    a(f"""s_cmp_eq_u32 s22, 0
    s_cbranch_scc1 L_pair""")
    a.label("L_ev")
    a(f"""s_cmp_ge_u32 s{sPF}, s{sNF}
    s_cbranch_scc1 L_evf""")
    o_flag()
    a("s_waitcnt vmcnt(0)")
    flag_store(sA, 14)
    TS(13)
    a.label("L_evf")
    a(f"""s_add_u32 s23, s23, 1
    s_cmp_gt_u32 s23, {SPIN_CAP}
    s_cbranch_scc1 L_gdone
    s_cmp_ge_u32 s{sNF}, 8
    s_cbranch_scc1 L_evr
    ds_read_b32 v{gCV}, v{gCN} offset:{B_CNT}
    s_waitcnt lgkmcnt(0)
    v_readfirstlane_b32 s{sA}, v{gCV}
    s_nop 0
    s_bitcmp1_b32 s{sA}, 3
    s_cbranch_scc1 L_fin""")
    a.label("L_evr")
    a(f"""s_cmp_lt_u32 s{sJ}, 4
    s_cbranch_scc1 L_evc
    s_cmp_ge_u32 s{sNF}, 8
    s_cbranch_scc1 L_gdone
    s_sleep 1
    s_branch L_evf""")
    a.label("L_evc")
    a(f"""s_cmp_eq_u32 s{sJ}, 3
    s_cbranch_scc1 L_last
    s_lshl_b32 s{sD}, s{sJ}, 3
    s_lshr_b32 s{sA}, s{sRDY}, s{sD}
    s_and_b32 s{sA}, s{sA}, 0xff
    s_cbranch_scc0 L_cons
    buffer_load_dwordx2 v[14:15], v{gFL}, {sr(rWS,4)}, s{sFO} offen sc1
    s_waitcnt vmcnt(0)
    v_cmp_ne_u64 vcc, {sr(sEP,2)}, v[14:15]
    s_nop 1
    s_mov_b32 s{sRDY}, vcc_lo
    s_lshr_b32 s{sA}, s{sRDY}, s{sD}
    s_and_b32 s{sA}, s{sA}, 0xff
    s_cbranch_scc0 L_cons
    s_sleep {opt.get("evsleep", 8)}
    s_branch L_ev""")
    a.label("L_cons")
    a(f"""s_lshr_b32 s{sA}, s{sRDY}, s{sD}
    s_and_b32 s{sA}, s{sA}, 0xffff
    s_cbranch_scc1 L_cons1""")
    o_loads(1)
    o_loads(0)
    a.label("L_pair")
    o_mf(1, 8)
    wo_reads()
    a("s_branch L_cons2")
    a.label("L_cons1")
    o_loads(0)
    a.label("L_cons2")
    o_mf(0, 0)
    a.label("L_cons3")
    a(f"""s_cmp_ge_u32 s{sJ}, 4
    s_cbranch_scc1 L_out""")
    wo_reads()
    a("s_branch L_ev")
    a.label("L_out")
    TS(10)
    a(f"""v_and_b32 v14, 31, v0
    v_lshlrev_b32 v15, 3, v{gH}
    v_lshl_add_u32 v14, v14, 10, v15
    s_lshl_b32 s{sA}, s{sG}, 7
    s_lshl_b32 s{sD}, s{sCT}, 6
    s_add_u32 s{sA}, s{sA}, s{sD}
    s_lshl_b32 s{sD}, s{sRB}, 16
    s_add_u32 s{sA}, s{sA}, s{sD}
    s_lshl_b32 s{sD}, s{sRT}, 15
    s_add_u32 s{sA}, s{sA}, s{sD}""")
    for j in range(8): a(f"v_cvt_pk_bf16_f32 v{AC[0]+j}, v{AC[0]+2*j}, v{AC[0]+2*j+1}")
    for q in range(4): a(f"buffer_store_dwordx2 {vr(AC[0]+2*q,2)}, v14, {sr(rT,4)}, s{sA} offen offset:{16*q}")
    a("s_branch L_ev")
    a.label("L_trip")
    def tripstamp():
        if opt.get("f2ts"):
            a("s_memtime s[96:97]\ns_waitcnt lgkmcnt(0)")
            for i in range(1, 10): a(f"s_mov_b32 s{TS0+2*i}, s{TS0+2*i+2}")
            a(f"s_mov_b32 s{TS0+20}, s96")
    tripstamp()
    a(f"""s_setprio 3
    v_readfirstlane_b32 s{sD}, v{gCV}
    s_cmp_ge_u32 s{sPF}, s{sNF}
    s_cbranch_scc1 L_trip1""")
    o_flag()
    flag_store(sA, 20)
    a.label("L_trip1")
    a(f"""s_cmp_lg_u32 s{sK0}, 12
    s_cbranch_scc1 L_trip2
    s_cmp_eq_u32 s{sXC}, 0
    s_cbranch_scc1 L_trip2
    v_cmp_ne_u64 vcc, {sr(sEP,2)}, v[14:15]
    s_lshl_b32 s{sSW}, s{sXC}, 14
    s_lshl_b32 s{sA}, s{sG}, 7
    s_add_u32 s{sSW}, s{sSW}, s{sA}
    s_lshl_b32 s{sSH}, s{sXC}, 11
    s_add_u32 s{sSH}, s{sSH}, s{sHB}""")
    wo_on()
    a("s_cbranch_vccz L_crossok")
    flag_poll(gFL, sFH, 14, sleep=opt.get("hsleep", 2))
    a.label("L_crossok")
    TS(14)
    a.label("L_trip2")
    a(f"""s_cmp_lt_u32 s{sNF}, 8
    s_cselect_b32 s{sD}, s{sD}, 0
    s_cmp_eq_u32 s{sLOOP}, 1
    s_cselect_b32 s{sD}, s{sD}, 0
    s_bitcmp1_b32 s{sD}, 3
    s_cbranch_scc1 L_fin""")
    a.label("L_trip3")
    tripstamp()
    a(f"s_setprio {GP}\ns_branch L_tripped")
    a.label("L_fin")
    for j in range(7, -1, -1): a(f"ds_read_b64 {vr(FA+2*j,2)}, v{gOA} offset:{512*j}")
    a(f"""ds_read_b64 v[20:21], v{gLA} offset:{B_L}
    s_mov_b32 s{sD}, 0
    s_waitcnt lgkmcnt(0)""")
    for j in range(7, -1, -1): a(f"v_cvt_f32_f64 v{FA+8+j}, {vr(FA+2*j,2)}")
    a(f"v_cvt_f32_f64 v{FA}, v[20:21]")
    a.label("L_fin2")
    a(f"""s_and_b32 s{sA}, s{sNF}, 1
    s_lshl_b32 s{sF}, s{sRB}, 1
    v_rcp_f32 v{FA+1}, v{FA}
    s_add_u32 s{sA}, s{sA}, s{sF}
    s_lshl_b32 s{sA}, s{sA}, 3
    s_add_u32 s{sA}, s{sA}, s{sG}
    v_mov_b32 v{FA+3}, 0x76800000
    v_cmp_nle_f32 vcc, 0x0d800000, v{FA}
    v_cmp_nle_f32 {sr(sRET,2)}, v{FA}, v{FA+3}""")
    for j in range(8): a(f"v_mul_f32 v{FA+8+j}, v{FA+8+j}, v{FA+1}")
    a(f"""s_or_b64 {sr(sRET,2)}, {sr(sRET,2)}, vcc
    s_lshl_b32 s{sA}, s{sA}, 2
    s_lshr_b32 s{sF}, s{sNF}, 1
    s_add_u32 s{sA}, s{sA}, s{sF}
    s_lshl_b32 s{sA}, s{sA}, 10
    s_add_u32 s{sA}, s{sA}, {OF}""")
    for j in range(4): a(f"v_cvt_pk_bf16_f32 v{FA+4+j}, v{FA+8+2*j}, v{FA+9+2*j}")
    a(f"v_pk_mul_f32 {vr(FA+2,2)}, {vr(FA+8,2)}, 0")
    for j in range(1, 4): a(f"v_pk_fma_f32 {vr(FA+2,2)}, {vr(FA+8+2*j,2)}, 0, {vr(FA+2,2)}")
    a(f"""v_cmp_u_f32 vcc, v{FA+2}, v{FA+3}
    s_nop 1
    s_or_b64 {sr(sRET,2)}, {sr(sRET,2)}, vcc
    s_cselect_b32 s{sF}, 1, 0
    s_cmp_gt_u32 s{sF}, s{sD}
    {"s_nop 0" if opt.get("nofb") else "s_cbranch_scc1 L_fallback"}
    s_cmp_ge_u32 s{sNF}, 6
    s_cbranch_scc1 L_fin7
    buffer_store_dwordx4 {vr(FA+4,4)}, v{gL16}, {sr(rWS,4)}, s{sA} offen sc1
    s_add_u32 s{sNF}, s{sNF}, 4""")
    ev_set()
    a(f"""s_cmp_eq_u32 s{sLOOP}, 0
    s_cbranch_scc1 L_ev
    s_branch L_trip3""")
    a.label("L_fin7")
    a(f"""v_mov_b64 {vr(FA+2,2)}, {sr(sEP,2)}
    v_mov_b64 {vr(FA+8,2)}, {sr(sEP,2)}
    s_lshl_b32 s{sA}, s{sRB}, 1
    s_add_u32 s{sA}, s{sA}, s{sNF}
    s_lshl_b32 s{sA}, s{sA}, 3
    s_add_u32 s{sA}, s{sA}, s{sG}
    s_lshl_b32 s{sA}, s{sA}, 11
    s_add_u32 s{sA}, s{sA}, {OT - 6 * 16384}
    s_mov_b32 s{sNF}, 11
    s_mov_b32 s{sPF}, 11
    buffer_store_dwordx4 {vr(FA+2,4)}, v{gL16}, {sr(rWS,4)}, s{sA} offen sc1
    buffer_store_dwordx4 {vr(FA+6,4)}, v{gL16}, {sr(rWS,4)}, s{sA} offen offset:1024 sc1""")
    TS(13)
    a(f"""s_cmp_eq_u32 s{sLOOP}, 0
    s_cbranch_scc1 L_ev
    s_branch L_trip3""")
    a.label("L_last")
    TG = 24
    a(f"s_cmp_lt_u32 s{sNF}, 8\ns_cbranch_scc1 L_evf")
    TS(12)
    a(f"s_mul_i32 s{sA}, s{sRT}, {OST}\ns_add_u32 s{sA}, s{sA}, {OACC + 6 * OST}\nv_mov_b32 v14, s{sA}")
    L_ = a.newlabel("l7")
    a(f"s_mov_b32 s{sCAP}, 0")
    a.label(L_)
    a(f"""ds_read_b32 v15, v14 offset:{B_CNT}
    s_add_u32 s{sCAP}, s{sCAP}, 1
    s_cmp_gt_u32 s{sCAP}, {SPIN_CAP}
    s_cbranch_scc1 L_gdone
    s_waitcnt lgkmcnt(0)
    v_readfirstlane_b32 s{sA}, v15
    s_sleep 1
    s_bitcmp1_b32 s{sA}, 3
    s_cbranch_scc0 {L_}
    s_sleep {opt.get("lastsleep", 4)}""")
    a.label("L_probe")
    a(f"""v_and_b32 v20, 7, v0
    v_lshlrev_b32 v20, 11, v20
    s_lshl_b32 s{sA}, s{sRB}, 1
    s_add_u32 s{sA}, s{sA}, s{sRT}
    s_lshl_b32 s{sA}, s{sA}, 14
    s_add_u32 s{sA}, s{sA}, {OT + 2040}
    s_add_u32 s23, s23, 1
    s_cmp_gt_u32 s23, {SPIN_CAP}
    s_cbranch_scc1 L_gdone""")
    flag_poll(20, sA, 14, sleep=opt.get("probesleep", 3))
    a(f"s_sub_u32 s{sA}, s{sA}, 2040\ns_add_u32 s23, s23, s{sCAP}")
    for gp in range(8):
        for hf in range(2):
            a(f"buffer_load_dwordx4 {vr(TG+8*gp+4*hf,4)}, v{gL16}, {sr(rWS,4)}, s{sA} offen offset:{(gp&1)*2048+hf*1024} sc1")
        if gp & 1 and gp < 7: a(f"s_add_u32 s{sA}, s{sA}, 4096")
    for gp in range(8):
        a(f"""s_waitcnt vmcnt({14-2*gp})
        v_cmp_ne_u64 vcc, {sr(sEP,2)}, {vr(TG+8*gp,2)}
        v_cmp_ne_u64 {sr(sRET,2)}, {sr(sEP,2)}, {vr(TG+8*gp+6,2)}""")
        a(f"s_nop 0\ns_or_b64 vcc, vcc, {sr(sRET,2)}\ns_cbranch_scc1 L_probe")
    a("s_setprio 0")
    for gp in range(8):
        a(f"{MF32} {vr(AC[0],16)}, {vr(WOF+4*gp,4)}, {vr(TG+8*gp+2,4)}, {vr(AC[0],16)}")
    a(f"s_setprio 3\ns_add_u32 s{sJ}, s{sJ}, 1\ns_branch L_cons3")
    a.label("L_gdone")
    if ts: a("s_waitcnt vmcnt(0)")
    TS(11)
    if opt.get("padto"):
        a.label("L_pad")
        a(f"s_memrealtime s[96:97]\ns_waitcnt lgkmcnt(0)\ns_sub_u32 s96, s96, s{sEP}\ns_cmp_lt_u32 s96, {opt['padto']}\ns_cbranch_scc1 L_pad")
    ts_dump()
    a.label("L_end")
    a("s_endpgm")

    a.label("L_fallback")
    FQ, FK, FV, FS, FC, FT = 24, 28, 32, 40, 56, 120
    a(f"""s_cmp_eq_u32 s{sLOOP}, 0
    s_cbranch_scc1 L_fbgo
    s_mov_b32 s{sLOOP}, 2
    s_branch L_trip3""")
    a.label("L_fbgo")
    a(f"""s_mul_i32 s{sA}, s{sNF}, {QST}
    s_add_u32 s{sA}, s{sA}, {QF}
    v_add_u32 v{FT}, s{sA}, v{gL16}
    ds_read_b128 {vr(FQ,4)}, v{FT}
    v_mov_b32 v{FT+2}, 0xff800000""")
    a(f"s_mov_b32 s{sA}, 0")
    a.label("L_fb1")
    a(f"""buffer_load_dwordx4 {vr(FK,4)}, v{gL16}, {sr(rWS,4)}, s{sA} offen sc1
    s_waitcnt vmcnt(0) lgkmcnt(0)
    {MF32} {vr(FS,16)}, {vr(FK,4)}, {vr(FQ,4)}, 0
    s_nop 11""")
    maxtree(FS, FT + 3)
    a(f"""v_max_f32 v{FT+2}, v{FT+2}, v{FT+3}
    s_add_u32 s{sA}, s{sA}, 1024
    s_cmp_lt_u32 s{sA}, 0x10000
    s_cbranch_scc1 L_fb1
    v_mov_b32 v{FT+3}, v{FT+2}
    s_nop 1
    v_permlane32_swap_b32 v{FT+2}, v{FT+3}
    v_max_f32 v{FT+2}, v{FT+2}, v{FT+3}""")
    for i in range(16): a(f"v_sub_f32 v{FC+i}, 0, v{FT+2}\nv_mov_b32 v{FA+i}, 0")
    a(f"s_mov_b32 s{sA}, 0")
    a.label("L_fb2")
    a(f"""s_add_u32 s{sF}, s{sA}, {VF}
    buffer_load_dwordx4 {vr(FK,4)}, v{gL16}, {sr(rWS,4)}, s{sA} offen sc1
    buffer_load_dwordx4 {vr(FV,4)}, v{gL16}, {sr(rWS,4)}, s{sF} offen sc1""")
    for i in range(4): a(f"v_mov_b32 v{FV+4+i}, 0x3f803f80")
    a(f"""s_waitcnt vmcnt(0)
    {MF32} {vr(FS,16)}, {vr(FK,4)}, {vr(FQ,4)}, {vr(FC,16)}""")
    for i in range(4): a(f"v_permlane16_swap_b32 v{FV+4+i}, v{FV+i}")
    a("s_nop 7")
    for i in range(16): a(e(FS, i))
    a("s_nop 0")
    for j in range(8): a(c(FS, j))
    a(f"""s_nop 1
    {MF32} {vr(FA,16)}, {vr(FV,4)}, {vr(FS,4)}, {vr(FA,16)}
    {MF32} {vr(FA,16)}, {vr(FV+4,4)}, {vr(FS+8,4)}, {vr(FA,16)}
    s_add_u32 s{sA}, s{sA}, 1024
    s_cmp_lt_u32 s{sA}, 0x10000
    s_cbranch_scc1 L_fb2
    s_nop 15
    s_mov_b32 s{sD}, 1
    s_branch L_fin2""")

    if opt.get("x_nomf"):
        i0 = a.lines.index("L_f1loop:"); i1 = a.lines.index("L_gdone:")
        for i in range(i0, i1):
            if a.lines[i].startswith("v_mfma"): a.lines[i] = "s_nop 9"
    i0 = a.lines.index("L_atop:"); i1 = a.lines.index("L_vs0:")
    for i in range(i1, i0, -1):
        l = a.lines[i]
        if opt.get("y_noadd") and l.startswith("ds_add_f64"): del a.lines[i]
        elif opt.get("y_nocvt") and l.startswith("v_cvt_f64"): del a.lines[i]
        elif opt.get("y_noq") and l.startswith("ds_read_b128"): del a.lines[i]
        elif opt.get("y_noexec") and ("exec_hi" in l): del a.lines[i]
        elif opt.get("y_nobr") and l.startswith("s_cbranch_vccnz"): del a.lines[i]
    if opt.get("x_p0", 1):
        i0 = a.lines.index("L_f1loop:"); i1 = a.lines.index("L_gdone:")
        for i in range(i1, i0, -1):
            if a.lines[i].startswith("v_mfma"): a.lines[i:i+1] = ["s_setprio 0", a.lines[i], "s_setprio 3"]
    probs = lint(a.lines)
    for p in probs: print("LINT", p, file=sys.stderr)
    head = f"""; fused layernorm + MQA attention + squared-relu FFN, one persistent launch (generated by gen/gen.py)
; @launch grid=(256,1,1) block=(768,1,1) lds=163840
.amdgcn_target "amdgcn-amd-amdhsa--gfx950"
.text
.globl {NAME}_kernel
.p2align 8
.type {NAME}_kernel,@function
{NAME}_kernel:
"""
    tail = f""".section .rodata,"a"
.p2align 6
.amdhsa_kernel {NAME}_kernel
  .amdhsa_next_free_vgpr 168
  .amdhsa_next_free_sgpr 100
  .amdhsa_accum_offset 168
  .amdhsa_group_segment_fixed_size 0
  .amdhsa_kernarg_size 104
  .amdhsa_user_sgpr_count 2
  .amdhsa_user_sgpr_kernarg_segment_ptr 1
  .amdhsa_system_sgpr_workgroup_id_x 1
.end_amdhsa_kernel
"""
    return head + a.text() + tail

if __name__ == "__main__":
    open("k.s", "w").write(gen(False))
    open("k_ts.s", "w").write(gen(True))
    open("k_ts_c.s", "w").write(gen(True, dict(cyc=1)))
    B = dict(cyc=1, delay_f1=16, qts=1)
    open("k_q0.s", "w").write(gen(True, dict(B)))
    open("k_x1.s", "w").write(gen(True, dict(cyc=1, nv0=2)))
    open("k_x2.s", "w").write(gen(True, dict(cyc=1, nv0=5)))
```

```python
import sys
from asmlib import Asm, vr, sr, lint
NAME = "parallel_sum__grouped_kv_mqa__dense_activation_squared_relu__prompt"

KF, VF, FLG_KV, FLG_H, FLG_O, OF, HF, TSB = 0, 0x10000, 0x20000, 0x28000, 0x30000, 0x40000, 0x240000, 0x800000
OT = 0x900000
WS_BYTES = 0xA00000
XN, RING, WKV = 0, 65536, 131072
RSZ = 12288
OACC, OST = 114688, 4608
B_L, B_CNT = 4096, 4352
QF, QST = 151552, 1536
RSTD = QF + 1024
GC = OACC + 7 * OST + B_CNT + 16
C_QREADY, C_ABAR, C_HDONE, C_GBAR, C_WQ, C_KV, C_RS, C_L0, C_EPOCH = 0, 4, 8, 12, 16, 20, 24, 28, 32
W1P = 2752
OFFS = 90.0
SPIN_CAP = 1 << 17

sW, sRB, sG, sKG, sCH = 3, 4, 5, 6, 7
pX, pWQ, pWK, pWV, pWO, pW1, pB1, pW2, pB2, pOUT, pDBG, pWS = 8, 10, 12, 14, 16, 20, 22, 24, 26, 28, 30, 32
rX, rWS, rW, rT = 36, 40, 44, 48
sEP = 52
sI, sRT, sCT = 54, 55, 56
sA, sB, sC, sD, sE, sF = 57, 58, 59, 60, 61, 62
sCAP = 63
sM = 34
TS0 = 64
MF32 = "v_mfma_f32_32x32x16_bf16"

def gen(ts=False, opt={}):
    a = Asm()
    GP = opt.get('gp', 3)
    P1A, P1B, P2A, P2C, P2D, PO = opt.get('pads', (-1, -1, -1, -1, -1, -1))
    def pad(n):
        if n >= 0: a(f's_nop {n}')
    late = [False]
    role = ["A"]
    def TS(i):
        if opt.get("probe") == (role[0], i): a("s_memrealtime s[98:99]")
        if opt.get("pro") and late[0] and i != 11: return
        if opt.get("f2ts") and late[0]: i = {7: 12, 8: 13, 6: 14, 11: 11}.get(i)
        if i is None: return
        if ts: a(f"{'s_memtime' if opt.get('cyc') else 's_memrealtime'} {sr(TS0 + 2 * i, 2)}")
    def srd(r, p, n):
        a(f"s_mov_b32 s{r}, s{p}\ns_mov_b32 s{r+1}, s{p+1}\ns_mov_b32 s{r+2}, {n}\ns_mov_b32 s{r+3}, 0x20000")
    def lds_spin(off, val, va, vt, sleep=1):
        L = a.newlabel("spin"); D = a.newlabel("spun")
        a(f"s_mov_b32 s{sCAP}, 0")
        a.label(L)
        a(f"""ds_read_b32 v{vt}, v{va} offset:{off}
        s_add_u32 s{sCAP}, s{sCAP}, 1
        s_waitcnt lgkmcnt(0)
        v_readfirstlane_b32 s{sF}, v{vt}
        s_cmp_gt_u32 s{sCAP}, {SPIN_CAP}
        s_cbranch_scc1 {D}""")
        if sleep:
            a(f"s_cmp_ge_u32 s{sF}, {val}\ns_cbranch_scc1 {D}\ns_sleep {sleep}\ns_branch {L}")
        else:
            a(f"s_cmp_lt_u32 s{sF}, {val}\ns_cbranch_scc1 {L}")
        a.label(D)
    def lds_inc(off, va, vt):
        a(f"v_mov_b32 v{vt}, 1\ns_mov_b64 exec, 1\nds_add_u32 v{va}, v{vt} offset:{off}\ns_mov_b64 exec, -1")
    def flag_poll(va, soff, vt, sleep=2, preissued=False):
        L = a.newlabel("poll"); D = a.newlabel("polled")
        a(f"s_mov_b32 s{sCAP}, 0")
        if preissued: a(f"s_branch {L}w")
        a.label(L)
        a(f"buffer_load_dwordx2 {vr(vt,2)}, v{va}, {sr(rWS,4)}, s{soff} offen sc1")
        a.label(L + "w")
        a(f"""s_add_u32 s{sCAP}, s{sCAP}, 1
        s_waitcnt vmcnt(0)
        v_cmp_ne_u64 vcc, {sr(sEP,2)}, {vr(vt,2)}
        s_cmp_gt_u32 s{sCAP}, {SPIN_CAP}
        s_cbranch_scc1 {D}
        s_cbranch_vccz {D}
        s_sleep {sleep}
        s_branch {L}""")
        a.label(D)
    def flag_store(soff, vt):
        a(f"""v_mov_b32 v{vt}, s{sEP}
        v_mov_b32 v{vt+1}, s{sEP+1}
        s_mov_b64 exec, 1
        buffer_store_dwordx2 {vr(vt,2)}, off, {sr(rWS,4)}, s{soff} sc1
        s_mov_b64 exec, -1""")
    def ts_dump():
        if opt.get("probe") and opt["probe"][0] == role[0]:
            L = a.newlabel("pad")
            a.label(L)
            a(f"s_sleep 2\ns_memrealtime s[96:97]\ns_waitcnt lgkmcnt(0)\ns_sub_u32 s96, s96, s98\ns_cmp_lt_u32 s96, 4000\ns_cbranch_scc1 {L}")
        if not ts: return
        a(f"""s_sleep 127
        s_sleep 127
        s_sleep 127
        s_waitcnt lgkmcnt(0)
        s_mul_i32 s{sA}, s2, 12
        s_add_u32 s{sA}, s{sA}, s{sW}
        s_lshl_b32 s{sA}, s{sA}, 6
        s_add_u32 s{sA}, s{sA}, {TSB}
        s_mov_b64 exec, 1""")
        for q in range(4):
            for j in range(4): a(f"v_mov_b32 v{4+j}, s{TS0 + 2 * (4 * q + j)}")
            a(f"buffer_store_dwordx4 v[4:7], off, {sr(rWS,4)}, s{sA} offset:{16*q}\ns_nop 1")
        a("s_waitcnt vmcnt(0)")
    def maxtree(S, d):
        a(f"v_max3_f32 v{d}, v{S}, v{S+1}, v{S+2}")
        for j in range(3, 15, 2): a(f"v_max3_f32 v{d}, v{d}, v{S+j}, v{S+j+1}")
        a(f"v_max_f32 v{d}, v{d}, v{S+15}")
    def e(S, i): return f"v_exp_f32 v{S+i}, v{S+i}"
    def c(S, j): return f"v_cvt_pk_bf16_f32 v{S + (j & 3) + 8 * (j >> 2)}, v{S+2*j}, v{S+2*j+1}"
    PFS = opt.get("pfstride", 7)
    def l2_prefetch(r, nbytes, vaddr, vdummy, part, nparts):
        chunk = 64 << PFS
        rounds = -(-nbytes // (chunk * 32))
        a(f"s_lshr_b32 s{sF}, s2, 3\ns_mul_i32 s{sF}, s{sF}, {chunk}")
        if part is not None:
            a(f"s_mul_i32 s{sCAP}, s{part}, {chunk*32}\ns_add_u32 s{sF}, s{sF}, s{sCAP}")
        for i in range(-(-rounds // nparts)):
            a(f"buffer_load_dword v{vdummy}, v{vaddr}, {sr(r,4)}, s{sF} offen")
            a(f"s_add_u32 s{sF}, s{sF}, {chunk*32*nparts}")

    a(f"""s_memrealtime {sr(sM,2)}
    s_load_dwordx16 s[8:23], s[0:1], 0
    s_load_dwordx8 s[24:31], s[0:1], 64
    s_load_dwordx2 s[32:33], s[0:1], 96
    s_cmp_ge_u32 s2, 256
    s_cbranch_scc1 L_end""")
    if ts:
        for i in range(16): a(f"s_mov_b32 s{TS0+2*i}, 0")
    TS(0)
    a(f"""v_lshrrev_b32 v1, 6, v0
    s_and_b32 s{sRB}, s2, 7
    v_readfirstlane_b32 s{sW}, v1
    s_lshl_b32 s{sRB}, s{sRB}, 2
    s_lshr_b32 s{sA}, s2, 6
    s_add_u32 s{sRB}, s{sRB}, s{sA}
    s_bfe_u32 s{sG}, s2, 0x30003
    s_lshr_b32 s{sKG}, s{sG}, 1
    s_and_b32 s{sCH}, s{sG}, 1
    v_and_b32 v0, 63, v0
    s_cmp_ge_u32 s{sW}, 8
    s_cbranch_scc1 L_gwave""")

    vL8, vAD, vT = 0, 1, 2
    Q, K, V, S0, S1, ACC, CIN = 4, 8, 40, 104, 120, 136, 152
    sQT, sINC, sKVO, sPB = sI, sRT, sE, sCT
    sOOF, sQA, sCA, sAH, sKB = 0, 1, 46, 47, 45
    a(f"""v_lshrrev_b32 v3, 5, v0
    v_and_b32 v4, 31, v0
    s_lshl_b32 s{sA}, s{sW}, 1
    v_add_u32 v3, s{sA}, v3
    v_lshlrev_b32 v1, 10, v3
    v_lshl_add_u32 v5, v4, 4, v1
    s_lshl_b32 s{sB}, s{sRB}, 16
    s_lshl_b32 s{sC}, s{sKG}, 14
    s_add_u32 s{sD}, s{sB}, s{sC}
    s_waitcnt lgkmcnt(0)""")
    srd(rX, pX, 0x200000)
    a(f"""buffer_load_dwordx4 v[8:11], v5, {sr(rX,4)}, s{sD} offen
    buffer_load_dwordx4 v[12:15], v5, {sr(rX,4)}, s{sD} offen offset:512""")
    def x_load(it):
        a(f"""s_xor_b32 s{sD}, s{sC}, {it << 14}
        s_add_u32 s{sD}, s{sB}, s{sD}
        buffer_load_dwordx4 {vr(8+8*it,4)}, v5, {sr(rX,4)}, s{sD} offen
        buffer_load_dwordx4 {vr(12+8*it,4)}, v5, {sr(rX,4)}, s{sD} offen offset:512""")
    srd(rWS, pWS, WS_BYTES)
    vGC, vQW, vOZ, vCW, vKA, vVA, vFL, vF2 = CIN, CIN + 1, CIN + 2, CIN + 3, CIN + 4, CIN + 5, CIN + 6, CIN + 7
    for i in range(8): a(f"v_mov_b64 {vr(ACC+2*i,2)}, 0")
    a(f"""v_mov_b32 v{vGC}, {GC}
    v_lshlrev_b32 v{vFL}, 7, v4
    v_and_b32 v6, 15, v0
    v_cmp_eq_u32 vcc, 0, v6
    ds_write_b128 v{vGC}, {vr(ACC,4)}
    ds_write_b128 v{vGC}, {vr(ACC,4)} offset:16
    ds_write_b64 v{vGC}, {vr(ACC,2)} offset:32
    v_xor_b32 v4, v4, v3
    v_lshl_add_u32 v2, v4, 4, v1
    v_lshlrev_b32 v3, 2, v3
    v_add_u32 v3, {RSTD}, v3
    v_mov_b32 v{CIN+8}, 0x3f803f80
    v_mov_b32 v{CIN+9}, 0x3f80
    v_mov_b32 v{CIN+10}, 0x3f800000
    v_cndmask_b32 v{V+4}, 0, v{CIN+8}, vcc
    v_cndmask_b32 v{V+5}, 0, v{CIN+8}, vcc""")
    for i in range(1, 16): a(f"v_mov_b64 {vr(V+8*(i>>1)+4+2*(i&1),2)}, {vr(V+4,2)}")
    a(f"""v_mov_b64 {vr(S1+8,2)}, 0
    v_mov_b64 {vr(S1+10,2)}, 0
    v_lshlrev_b32 v{vKA}, 4, v0
    v_lshrrev_b32 v4, 5, v0
    v_lshlrev_b32 v{vF2}, 8, v4
    v_lshlrev_b32 v{vL8}, 3, v0
    s_mul_i32 s{sA}, s{sW}, {QST}
    s_add_u32 s{sA}, s{sA}, {QF}
    v_add_u32 v{vQW}, s{sA}, v{vKA}
    v_and_b32 v{vCW}, 0x1ff, v{vKA}
    v_add_u32 v{vCW}, s{sA}, v{vCW}
    s_mul_i32 s{sA}, s{sW}, {OST}
    s_add_u32 s{sA}, s{sA}, {OACC}
    v_add_u32 v{vOZ}, s{sA}, v{vKA}
    v_mov_b64 {vr(S1+12,2)}, 0
    v_mov_b64 {vr(S1+14,2)}, 0
    s_mov_b32 s{sA}, 0x43300000
    v_writelane_b32 v{S1+13}, s{sA}, 16
    s_mov_b32 s{sA}, 0x3b000000""")
    U, R0 = S0, S1
    cOne2, cLo, cHi = CIN + 8, CIN + 9, CIN + 10
    def red32(rs):
        pad = "s_nop 1\n" if len(rs) == 1 else ""
        for mode in ("quad_perm:[1,0,3,2]", "quad_perm:[2,3,0,1]", "row_half_mirror", "row_mirror"):
            a(pad + "\n".join(f"v_add_f32_dpp v{r}, v{r}, v{r} {mode} row_mask:0xf bank_mask:0xf" for r in rs))
        for r in rs: a(f"v_mov_b32 v{r+1}, v{r}")
        a(pad + "\n".join(f"v_permlane16_swap_b32 v{r}, v{r+1}" for r in rs))
        for r in rs: a(f"v_add_f32 v{r}, v{r}, v{r+1}")
    def centre(its):
        for j in range(8):
            for it in its:
                X, R = 8 + 8 * it, R0 + 2 * (it % 3)
                a(f"v_dot2_f32_bf16 v{R+(j&1)}, v{X+j}, v{cOne2}, {'0' if j < 2 else f'v{R+(j&1)}'}")
        a("s_nop 2" if len(its) == 1 else "s_nop 0")
        for it in its: a(f"v_add_f32 v{R0+2*(it%3)}, v{R0+2*(it%3)}, v{R0+2*(it%3)+1}")
        red32([R0 + 2 * (it % 3) for it in its])
        for it in its: a(f"v_mul_f32 v{R0+2*(it%3)}, 0xbb000000, v{R0+2*(it%3)}")
        for it in its:
            X, R = 8 + 8 * it, R0 + 2 * (it % 3)
            a(f"s_xor_b32 s{sD}, s{sC}, {it << 14}\nv_add_u32 v7, s{sD}, v2")
            for j in range(8):
                a(f"v_dot2_f32_bf16 v{U+2*j}, v{X+j}, v{cLo}, v{R}\nv_dot2_f32_bf16 v{U+2*j+1}, v{X+j}, v{cHi}, v{R}")
            for j in range(8):
                a(f"v_cvt_pk_bf16_f32 v{X+j}, v{U+2*j}, v{U+2*j+1}")
                if j == 0: a(f"v_pk_mul_f32 {vr(R,2)}, {vr(U,2)}, {vr(U,2)}")
                else: a(f"v_pk_fma_f32 {vr(R,2)}, {vr(U+2*j,2)}, {vr(U+2*j,2)}, {vr(R,2)}")
                if j == 3: a(f"ds_write_b128 v7, {vr(X,4)}")
            a(f"ds_write_b128 v7, {vr(X+4,4)} offset:512")
    def scales(its):
        for it in its: a(f"v_add_f32 v{R0+2*(it%3)}, v{R0+2*(it%3)}, v{R0+2*(it%3)+1}")
        red32([R0 + 2 * (it % 3) for it in its])
        a(f"v_mov_b32 v7, 0x3727c5ac")
        for it in its: a(f"v_fma_f32 v{R0+2*(it%3)}, v{R0+2*(it%3)}, s{sA}, v7")
        for it in its: a(f"v_rsq_f32 v{R0+2*(it%3)}, v{R0+2*(it%3)}")
        for it in its:
            a(f"s_xor_b32 s{sD}, s{sC}, {it << 14}\ns_lshr_b32 s{sD}, s{sD}, 8\nv_add_u32 v{R0+2*(it%3)+1}, s{sD}, v3")
            a(f"ds_write_b32 v{R0+2*(it%3)+1}, v{R0+2*(it%3)}")
    a("s_setprio 1\ns_waitcnt lgkmcnt(0)\ns_barrier")
    TS(8)
    for it in range(1, 4): x_load(it)
    a("s_waitcnt vmcnt(6)")
    TS(1)
    centre([0]); scales([0])
    lds_inc(C_L0, vGC, 7)
    a("s_setprio 0")
    TS(2)
    a("s_waitcnt vmcnt(0)")
    TS(12)
    centre([1, 2, 3])
    a("s_waitcnt lgkmcnt(0)\ns_barrier")
    TS(3)

    a(f"""ds_read_b64 v[8:9], v{vGC} offset:{C_EPOCH}
    s_lshl_b32 s{sB}, s{sRB}, 10
    s_add_u32 s{sKB}, s{sW}, s{sG}
    s_and_b32 s{sKB}, s{sKB}, 7
    s_lshl_b32 s{sF}, s{sKB}, 12
    s_cmp_ge_u32 s{sW}, 4
    s_cselect_b32 s{sB}, s{sF}, s{sB}
    s_cselect_b64 vcc, -1, 0
    s_add_u32 s{sB}, s{sB}, {FLG_KV}
    v_cndmask_b32 v{vF2}, v{vF2}, v{vFL}, vcc
    s_nop 0
    buffer_load_dwordx2 v[12:13], v{vF2}, {sr(rWS,4)}, s{sB} offen sc1""")
    def zero_block():
        for j in range(4): a(f"ds_write_b128 v{vOZ}, {vr(ACC,4)} offset:{1024*j}")
        a(f"""s_mov_b64 exec, 0x1ffff
        ds_write_b128 v{vOZ}, {vr(S1+12,4)} offset:{B_L}
        s_mov_b64 exec, -1""")
    scales([1, 2, 3])
    lds_inc(C_RS, vGC, vT)
    a(f"""s_waitcnt lgkmcnt(4)
    v_readfirstlane_b32 s{sEP}, v8
    v_readfirstlane_b32 s{sEP+1}, v9
    s_lshl_b32 s{sKVO}, s{sKB}, 13
    s_add_u32 s{sA}, s{sKVO}, 4096
    s_add_u32 s{sC}, s{sKVO}, {VF}
    s_add_u32 s{sD}, s{sKVO}, {VF+4096}
    s_mov_b32 s{sOOF}, {OACC}
    s_mov_b32 s{sQA}, {QF}
    s_mov_b32 s{sINC}, 0
    s_and_b32 s{sPB}, s{sW}, 3
    s_lshl_b32 s{sPB}, s{sPB}, 1
    s_add_u32 s{sPB}, s{sPB}, 4""")
    a(f"s_cmp_lt_u32 s{sW}, 4\ns_cbranch_scc1 L_shift")
    zero_block()
    a("s_setprio 2\ns_branch L_abar")
    a.label("L_shift")
    flag_poll(vF2, sB, 12, sleep=1, preissued=True)
    a(f"""    s_lshl_b32 s{sB}, s{sRB}, 11
    s_nop 0
    buffer_load_dwordx4 {vr(K,4)}, v{vKA}, {sr(rWS,4)}, s{sB} offen sc1
    s_lshl_b32 s{sB}, s{sKB}, 12
    s_add_u32 s{sB}, s{sB}, {FLG_KV}
    s_nop 0
    buffer_load_dwordx2 v[12:13], v{vFL}, {sr(rWS,4)}, s{sB} offen sc1""")
    TS(11)
    zero_block()
    lds_spin(C_QREADY, 4, vGC, vT, sleep=0)
    TS(5)
    a(f"""ds_read_b128 {vr(Q,4)}, v{vQW} offset:{4*QST}
    ds_read_b128 v[16:19], v{vQW}
    s_waitcnt vmcnt(1) lgkmcnt(0)
    {MF32} {vr(S0,16)}, {vr(K,4)}, {vr(Q,4)}, 0
    {MF32} v[20:35], {vr(K,4)}, v[16:19], 0
    s_nop 10""")
    maxtree(S0, vT)
    maxtree(20, 36)
    a(f"""v_mov_b32 v{vT+1}, v{vT}
    v_mov_b32 v37, v36
    s_nop 0
    v_permlane32_swap_b32 v{vT}, v{vT+1}
    v_permlane32_swap_b32 v36, v37
    v_max_f32 v{vT}, v{vT}, v{vT+1}
    v_max_f32 v36, v36, v37
    v_sub_f32 v{S1}, {-OFFS}, v{vT}
    v_sub_f32 v{S1+1}, {-OFFS}, v{vT}
    v_sub_f32 v{S1+4}, {-OFFS}, v36
    v_sub_f32 v{S1+5}, {-OFFS}, v36
    v_mov_b64 {vr(S1+2,2)}, {vr(S1,2)}
    v_mov_b64 {vr(S1+6,2)}, {vr(S1+4,2)}
    ds_write_b128 v{vCW}, {vr(S1,4)} offset:{4*QST+1024}
    ds_write_b128 v{vCW}, {vr(S1+4,4)} offset:1024""")
    a.label("L_abar")
    lds_inc(C_ABAR, vGC, vT)
    flag_poll(vFL, sB, 12, sleep=1, preissued=True)
    TS(4)
    def ldK(t): a(f"buffer_load_dwordx4 {vr(K+4*t,4)}, v{vKA}, {sr(rWS,4)}, s{sKVO if t < 4 else sA} offen offset:{(t&3)*1024} sc1")
    def ldV(t): a(f"buffer_load_dwordx4 {vr(V+8*t,4)}, v{vKA}, {sr(rWS,4)}, s{sC if t < 4 else sD} offen offset:{(t&3)*1024} sc1")
    ldK(0)
    for t in range(7):
        ldK(t + 1); ldV(t)
    ldV(7)
    lds_inc(C_KV, vGC, vT)
    TS(10)
    lds_spin(C_ABAR, 8, vGC, vT, sleep=0)
    TS(6)
    if ts: a(f"s_memtime {sr(TS0+26,2)}")
    def load_q():
        x = [f"v_lshl_add_u32 v{vAD}, v{vL8}, 1, s{sQA}", f"v_and_b32 v{vT}, 0xff, v{vL8}",
             f"ds_read_b128 {vr(Q,4)}, v{vAD}", f"v_lshl_add_u32 v{vT}, v{vT}, 1, s{sQA}", f"s_add_u32 s{sQA}, s{sQA}, {QST}"]
        return x + [f"ds_read_b128 {vr(CIN+4*j,4)}, v{vT} offset:1024" for j in range(4)]
    def QK(t, S): return f"{MF32} {vr(S,16)}, {vr(K+4*t,4)}, {vr(Q,4)}, {vr(CIN,16)}"
    def PV(t, hf, S, zero=False): return f"{MF32} {vr(ACC,16)}, {vr(V+8*t+4*hf,4)}, {vr(S+8*hf,4)}, {'0' if zero else vr(ACC,16)}"
    def flush_ops():
        x = [[f"v_add_u32 v{vAD}, s{sOOF}, v{vL8}", f"v_cvt_f64_f32 {vr(vT,2)}, v{ACC}"]]
        for j in range(8): x.append([f"v_cvt_f64_f32 {vr(ACC+2*j,2)}, v{ACC+8+j}", f"ds_add_f64 v{vAD}, {vr(ACC+2*j,2)} offset:{512*j}"])
        x.append([f"v_writelane_b32 v{vT+1}, s{sINC}, 32", "s_mov_b32 exec_hi, 1", f"ds_add_rtn_f64 {vr(vT,2)}, v{vAD}, {vr(vT,2)} offset:{B_L}", "s_mov_b32 exec_hi, -1"])
        return x
    def vswap(t):
        for j in range(4): a(f"v_permlane16_swap_b32 v{V+8*t+4+j}, v{V+8*t+j}")
    for l in load_q(): a(l)
    NV0 = opt.get("nv0", 3)
    a(f"s_setprio 1\ns_mov_b64 vcc, -1\ns_waitcnt vmcnt(14) lgkmcnt(0)")
    a(QK(0, S0))
    for t in range(NV0):
        a(f"s_waitcnt vmcnt({12 - 2 * t})")
        vswap(t)
    a(".p2align 6")
    a.label("L_atop")
    SS = [S0, S1]
    std = "e0 e1 P1 e2 e3 c0 e4 e5 c1 QK e6 e7 c2 e8 c3 e9 e10 P0 e11 c4 e12 e13 c5 e14 e15 c6 c7"
    orders = {0: "e0 e1 P1 e2 e3 c0 e4 e5 c1 QK e6 e7 c2 e8 c3 e9 e10 F e11 F c4 F e12 F e13 F c5 F e14 F e15 F c6 F c7 F P0",
              1: "e0 e1 e2 e3 c0 P1 e4 e5 c1 e6 e7 QK c2 e8 c3 e9 e10 e11 P0 c4 e12 e13 c5 e14 e15 c6 c7 R",
              4: std + " U",
              6: "e0 e1 P1 e2 e3 c0 e4 e5 c1 QK e6 e7 c2 e8 c3 e9 e10 P0 L L L e11 L L c4 L e12 L e13 L c5 L e14 e15 c6 c7",
              7: "e0 e1 P1 e2 e3 c0 e4 e5 c1 G QK e6 e7 c2 e8 c3 e9 e10 P0 e11 X c4 e12 e13 c5 e14 e15 c6 c7"}
    orders[NV0] = orders.get(NV0, std).replace("P0", "W P0")
    for t in range(8):
        cur, nxt = SS[t & 1], SS[(t + 1) & 1]
        fl, lq = flush_ops(), load_q()
        for tok in orders.get(t, std).split():
            if tok[0] == "e": a(e(cur, int(tok[1:])))
            elif tok[0] == "c": a(c(cur, int(tok[1:])))
            elif tok == "P1": a(PV((t - 1) & 7, 1, nxt))
            elif tok == "P0": a(PV(t, 0, cur, zero=(t == 0)))
            elif tok == "QK": a(QK((t + 1) & 7, nxt))
            elif tok == "W":
                a(f"s_cbranch_vccnz L_vs0")
                a.label(f"L_vr0")
            elif tok == "G": a("s_waitcnt lgkmcnt(0)")
            elif tok == "F": a("\n".join(fl.pop(0)))
            elif tok == "L": a(lq.pop(0))
            elif tok == "R":
                a(f"""s_waitcnt lgkmcnt(0)
                v_readlane_b32 s{sAH}, v{vT}, 32
                s_setprio 0
                s_bitcmp1_b32 s{sAH}, s{sPB}
                s_cbranch_scc0 L_yield
                s_setprio 2""")
                a.label("L_yield")
            elif tok == "U":
                a(f"s_cbranch_scc1 L_keep\ns_setprio 1")
                a.label("L_keep")
            elif tok == "X":
                a(f"s_add_u32 s{sOOF}, s{sOOF}, {OST}")
                if opt.get("qts"):
                    a("s_memtime s[96:97]\ns_waitcnt lgkmcnt(0)")
                    for i in range(1, 8): a(f"s_mov_b32 s{TS0+2*i}, s{TS0+2*i+2}")
                    a(f"s_sub_u32 s{TS0+16}, s96, s{TS0+26}")
                a(f"s_cmp_lt_u32 s{sOOF}, {OACC + 7 * OST}")
    a("s_cbranch_scc1 L_atop")
    if not opt.get("qts"): TS(7)
    a("s_setprio 2")
    a(PV(7, 1, S1))
    a("s_nop 11")
    for x in flush_ops(): a("\n".join(x))
    if opt.get("delay_f1", 0) > 8:
        a(f"v_mov_b32 v4, {GC}")
        lds_inc(C_ABAR, 4, 5)
    if ts:
        a(f"s_memtime {sr(TS0+28,2)}\ns_waitcnt lgkmcnt(0)\ns_sub_u32 s{TS0+28}, s{TS0+28}, s{TS0+26}")
    TS(9)
    ts_dump()
    a("s_endpgm")
    a.label("L_vs0")
    a("s_waitcnt vmcnt(0)")
    for t in range(NV0, 8): vswap(t)
    a(f"""s_sub_u32 s{sOOF}, s{sOOF}, {OST}
    s_add_u32 s{sINC}, s{sPB}, 1023
    s_lshl_b32 s{sINC}, s{sINC}, 20
    s_sub_u32 s{sA}, 20, s{sPB}
    s_lshl_b32 s{sA}, 1, s{sA}
    s_add_u32 s{sINC}, s{sINC}, s{sA}
    s_mov_b64 vcc, 0
    s_branch L_vr0""")

    a(".p2align 6")
    a.label("L_gwave")
    role[0] = "G"
    gGC, gL16, gSW, gTR, gH, gR = 1, 2, 3, 4, 5, 6
    a(f"""s_setprio 3
    s_sub_u32 s{sI}, s{sW}, 8
    v_lshlrev_b32 v{gL16}, 4, v0
    v_lshlrev_b32 v10, {PFS}, v0
    s_sub_u32 s{sE}, s{sI}, 1
    s_waitcnt lgkmcnt(0)
    s_cmp_lg_u32 s{sI}, 0
    s_cbranch_scc1 L_g123""")
    a(f"""s_cmp_eq_u32 s{sCH}, 0
    s_cselect_b32 s{rW}, s{pWK}, s{pWV}
    s_cselect_b32 s{rW+1}, s{pWK+1}, s{pWV+1}
    s_mov_b32 s{rW+2}, 16384
    s_mov_b32 s{rW+3}, 0x20000""")
    for q in range(4):
        a(f"s_mov_b32 m0, {WKV + q * 4096}\ns_mov_b32 s{sA}, {q*4096}")
        for j in range(4): a(f"buffer_load_dwordx4 v{gL16}, {sr(rW,4)}, s{sA} offen offset:{j*1024} lds")
    a("s_branch L_gcom")
    a.label("L_g123")
    srd(rW, pWQ, 0x80000)
    a.label("L_gcom")
    srd(rWS, pWS, WS_BYTES)
    srd(rT, pDBG, 256)
    a(f"""s_lshr_b32 s{sRT}, s{sI}, 1
    s_and_b32 s{sCT}, s{sI}, 1
    v_lshrrev_b32 v7, 3, v0
    v_lshrrev_b32 v8, 2, v0
    v_and_b32 v8, 4, v8
    v_and_b32 v9, 7, v0
    v_xor_b32 v8, v8, v9
    v_lshlrev_b32 v8, 4, v8
    v_lshl_add_u32 v{gSW}, v7, 10, v8
    v_mov_b32 v{gGC}, {GC}
    v_lshrrev_b32 v{gH}, 5, v0
    v_and_b32 v7, 3, v0
    v_and_b32 v8, 16, v0
    v_lshlrev_b32 v8, 1, v8
    v_lshl_add_u32 v{gTR}, v7, 3, v8
    s_cmp_eq_u32 s{sI}, 0
    s_cbranch_scc1 L_g0""")
    a(f"""s_mul_i32 s{sE}, s{sE}, 26
    s_lshl_b32 s{sB}, s{sE}, 13
    s_lshl_b32 s{sC}, s{sG}, 7
    s_add_u32 s{sB}, s{sB}, s{sC}
    s_lshl_b32 s{sA}, s{sE}, 10
    s_add_u32 s{sA}, s{sA}, {RING}
    s_add_u32 s{sD}, s{sA}, {26*1024}
    s_min_u32 s{sD}, s{sD}, {RING + 65536}
    s_setprio 0
    s_barrier
    s_cmp_lg_u32 s{sI}, 3
    s_cbranch_scc1 L_wqloop
    s_setprio 3
    s_mov_b32 s{sCAP}, 0""")
    a.label("L_epoch")
    a(f"""buffer_load_dwordx2 v[14:15], off, {sr(rT,4)}, 0 sc1
    s_add_u32 s{sCAP}, s{sCAP}, 1
    s_cmp_gt_u32 s{sCAP}, {SPIN_CAP}
    s_cbranch_scc1 L_wqloop
    s_waitcnt vmcnt(0)
    v_readfirstlane_b32 s{sEP+1}, v15
    s_nop 0
    s_cmp_eq_u32 s{sEP+1}, 0
    s_cbranch_scc1 L_epoch
    ds_write_b64 v{gGC}, v[14:15] offset:{C_EPOCH}""")
    TS(1)
    a.label("L_wqloop")
    a(f"""s_mov_b32 m0, s{sA}
    s_add_u32 s{sA}, s{sA}, 1024
    buffer_load_dwordx4 v{gSW}, {sr(rW,4)}, s{sB} offen lds
    s_add_u32 s{sB}, s{sB}, 8192
    s_cmp_lt_u32 s{sA}, s{sD}
    s_cbranch_scc1 L_wqloop
    s_setprio 3""")
    a(f"""s_cmp_eq_u32 s{sI}, 1
    s_cselect_b32 s{rW}, s{pB1}, s{pB2}
    s_cselect_b32 s{rW+1}, s{pB1+1}, s{pB2+1}
    s_mov_b32 s{rW+2}, 1024
    s_cselect_b32 s{rW+2}, {W1P}, s{rW+2}
    buffer_load_dword v6, v10, {sr(rW,4)}, 0 offen
    s_waitcnt vmcnt(1)""")
    lds_inc(C_WQ, gGC, 7)
    a("s_branch L_gb2")
    a.label("L_g0")
    WF, XF, DD = 32, 96, 160
    a(f"""s_cmp_lg_u32 s2, 0
    s_cbranch_scc1 L_noep
    v_mov_b32 v10, s{sM}
    v_mov_b32 v11, s{sM+1}
    v_or_b32 v11, 0x80000000, v11
    v_mov_b64 v[12:13], 0
    s_mov_b64 exec, 1
    buffer_atomic_cmpswap_x2 v[10:13], off, {sr(rT,4)}, 0 sc1
    s_mov_b64 exec, -1
    s_nop 0""")
    a.label("L_noep")
    a("s_barrier")
    a(f"""v_and_b32 v7, 15, v0
    v_lshrrev_b32 v8, 4, v0
    v_lshlrev_b32 v9, 3, v7
    v_lshl_add_u32 v9, v8, 8, v9
    v_add_u32 v9, {WKV}, v9
    s_lshl_b32 s{sA}, s{sKG}, 14
    v_xor_b32 v10, v7, v8
    v_lshlrev_b32 v10, 4, v10
    v_lshl_add_u32 v10, v7, 10, v10
    v_add_u32 v10, s{sA}, v10
    v_xor_b32 v11, 64, v10
    v_xor_b32 v12, 0x80, v10
    v_xor_b32 v13, 0xc0, v10
    s_lshl_b32 s{sA}, s{sKG}, 6
    s_add_u32 s{sA}, s{sA}, {RSTD}
    v_lshl_add_u32 v20, v7, 2, s{sA}
    v_lshl_add_u32 v21, v8, 4, s{sA}
    s_cmp_eq_u32 s{sCH}, 0
    s_cselect_b32 s{sD}, {KF}, {VF}
    v_and_b32 v16, 1, v8
    v_lshlrev_b32 v16, 9, v16
    v_lshrrev_b32 v17, 1, v8
    v_lshl_add_u32 v16, v17, 3, v16
    v_lshl_add_u32 v16, v7, 4, v16
    s_xor_b32 s{sA}, s{sKG}, s{sCH}
    s_and_b32 s{sA}, s{sA}, 1
    s_lshl_b32 s{sA}, s{sA}, 8
    s_add_u32 s{sD}, s{sD}, s{sA}
    s_lshl_b32 s{sA}, s{sRB}, 1
    s_lshr_b32 s{sB}, s{sKG}, 1
    s_add_u32 s{sA}, s{sA}, s{sB}
    s_lshl_b32 s{sA}, s{sA}, 10
    s_add_u32 s{sD}, s{sD}, s{sA}
    s_lshl_b32 s{sA}, s{sRB}, 3
    s_add_u32 s{sA}, s{sA}, s{sG}
    s_lshl_b32 s{sA}, s{sA}, 7
    s_add_u32 s{sA}, s{sA}, {FLG_KV}
    s_waitcnt vmcnt(0)""")
    for ks in range(16):
        a(f"ds_read_b64_tr_b16 {vr(WF+4*ks,2)}, v9 offset:{ks*1024}\nds_read_b64_tr_b16 {vr(WF+4*ks+2,2)}, v9 offset:{ks*1024+128}")
    TS(1)
    lds_spin(C_L0, 8, gGC, 14, sleep=0)
    TS(2)
    for ks in range(16):
        a(f"ds_read_b128 {vr(XF+4*ks,4)}, v{10+(ks&3)} offset:{(ks>>2)*256}")
    a(f"""s_cmp_eq_u32 s{sCH}, 0
    s_cbranch_scc0 L_vchain""")
    for sw in (False, True):
        if sw: a.label("L_vchain")
        for ks in range(16):
            A_, B_ = (XF, WF) if sw else (WF, XF)
            if ks % 4 == 0: a(f"s_waitcnt lgkmcnt({12 - ks})")
            if ks == 12: a(f"ds_read_b128 v[24:27], v21" if sw else "ds_read_b32 v24, v20")
            a(f"v_mfma_f32_16x16x32_bf16 {vr(DD,4)}, {vr(A_+4*ks,4)}, {vr(B_+4*ks,4)}, {'0' if ks == 0 else vr(DD,4)}")
        if not sw: a("s_waitcnt lgkmcnt(0)\nv_mov_b32 v25, v24\nv_mov_b64 v[26:27], v[24:25]\ns_branch L_kvst")
    a("s_waitcnt lgkmcnt(0)\ns_nop 2")
    a.label("L_kvst")
    a(f"""s_nop 3
    v_pk_mul_f32 {vr(DD,2)}, {vr(DD,2)}, v[24:25]
    v_pk_mul_f32 {vr(DD+2,2)}, {vr(DD+2,2)}, v[26:27]
    v_cvt_pk_bf16_f32 v18, v{DD}, v{DD+1}
    v_cvt_pk_bf16_f32 v19, v{DD+2}, v{DD+3}
    buffer_store_dwordx2 v[18:19], v16, {sr(rWS,4)}, s{sD} offen sc1""")
    TS(13)
    lds_spin(C_EPOCH + 4, 1, gGC, 14, sleep=0)
    a(f"""ds_read_b64 v[22:23], v{gGC} offset:{C_EPOCH}
    s_mov_b64 exec, 1
    s_waitcnt vmcnt(0) lgkmcnt(0)
    buffer_store_dwordx2 v[22:23], off, {sr(rWS,4)}, s{sA} sc1
    s_mov_b64 exec, -1""")
    TS(3)
    a.label("L_gb2")
    QA, QW, QX = 8, 24, 152
    a(f"""v_bfe_u32 v9, v0, 2, 2
    v_lshrrev_b32 v8, 1, v9
    v_xor_b32 v8, s{sCT}, v8
    v_lshl_add_u32 v8, v8, 6, v{gTR}
    v_lshl_add_u32 v8, v9, 7, v8
    v_lshl_add_u32 v8, v{gH}, 10, v8
    v_add_u32 v8, {RING}, v8""")
    lds_spin(C_WQ, 3, gGC, 7, sleep=0)
    kord = [aa + 8 * b for aa in range(8) for b in range(4)]
    for n, ks in enumerate(kord):
        a(f"ds_read_b64_tr_b16 {vr(QW+4*n,2)}, v8 offset:{ks*2048}\nds_read_b64_tr_b16 {vr(QW+4*n+2,2)}, v8 offset:{ks*2048+512}")
    a(f"""v_and_b32 v7, 31, v0
    v_and_b32 v9, 15, v0
    v_xor_b32 v9, v9, v{gH}
    v_lshlrev_b32 v9, 4, v9
    v_lshl_add_u32 v7, v7, 10, v9
    s_lshl_b32 s{sC}, s{sRT}, 15
    v_add_u32 v7, s{sC}, v7""")
    sRNG = 35
    sT1, sT2, sNG = 0, 1, sE
    sN, sSO = sA, sB
    srd(rW, pW1, 512 * W1P)
    a(f"""s_lshl_b32 s{sT1}, s{sG}, 2
    s_add_u32 s{sT1}, s{sT1}, s{sI}
    s_sub_u32 s{sT2}, 3, s{sI}
    s_lshl_b32 s{sT2}, s{sT2}, 3
    s_add_u32 s{sT2}, s{sT2}, s{sG}
    s_add_u32 s{sT2}, s{sT2}, 32
    s_cmp_lt_u32 s{sT2}, 43
    s_cselect_b32 s{sNG}, 16, 8
    s_mul_i32 s{sRNG}, s{sI}, {RSZ}
    s_add_u32 s{sRNG}, s{sRNG}, {RING}
    s_lshl_b32 s{sSO}, s{sT1}, 6
    v_lshrrev_b32 v9, 2, v0
    v_and_b32 v10, 3, v0
    v_mul_u32_u24 v9, {W1P}, v9
    s_waitcnt vmcnt(1)
    s_cmp_eq_u32 s{sI}, 0
    s_cbranch_scc1 L_nov6
    s_waitcnt vmcnt(0)""")
    a.label("L_nov6")
    a(f"""v_lshl_add_u32 v6, v10, 4, v9
    s_waitcnt lgkmcnt(0)""")
    TS(12)
    a("s_barrier")
    TS(4)
    land = {}
    def xread(n, dst):
        aa, b = n >> 2, n & 3
        if b == 0 and aa > 0: a(f"v_xor_b32 v7, {((aa ^ (aa - 1)) * 32)}, v7")
        a(f"ds_read_b128 {vr(dst,4)}, v7 offset:{b*256}")
        land[n] = dst
    for n in range(4): xread(n, QX + 4 * n)
    nxt_rd = 4
    for n in range(32):
        a(f"s_waitcnt lgkmcnt({nxt_rd - n - 1})")
        a(f"{MF32} {vr(QA,16)}, {vr(QW+4*n,4)}, {vr(land[n],4)}, {'0' if n == 0 else vr(QA,16)}")
        if nxt_rd < 32: xread(nxt_rd, land[n]); nxt_rd += 1
        if n < 5 and nxt_rd < 32: xread(nxt_rd, QW + 4 * n); nxt_rd += 1
    gRS = 166
    if opt.get("pro"): TS(9)
    lds_spin(C_RS, 8, gGC, 26, sleep=0)
    if opt.get("pro"): TS(10)
    a(f"""v_and_b32 v7, 31, v0
    v_lshlrev_b32 v26, 2, v7
    v_add_u32 v26, {RSTD}, v26
    ds_read_b64 v[24:25], v{gGC} offset:{C_EPOCH}
    ds_read_b32 v{gRS}, v26
    ds_read_b32 v{gRS+1}, v26 offset:128
    s_lshl_b32 s{sA}, s{sCT}, 2
    s_add_u32 s{sA}, s{sA}, s{sRT}
    s_mul_i32 s{sA}, s{sA}, {QST}
    s_add_u32 s{sA}, s{sA}, {QF}
    v_add_u32 v27, s{sA}, v{gL16}
    s_cmp_eq_u32 s{sRT}, 0
    s_cselect_b64 vcc, -1, 0
    s_waitcnt lgkmcnt(0)
    v_readfirstlane_b32 s{sEP}, v24
    v_cndmask_b32 v28, v{gRS+1}, v{gRS}, vcc
    v_readfirstlane_b32 s{sEP+1}, v25
    v_mul_f32 v28, 0x3eb8aa3b, v28""")
    for j in range(8): a(f"v_pk_mul_f32 {vr(QA+2*j,2)}, {vr(QA+2*j,2)}, v[28:29] op_sel_hi:[1,0]")
    for j in range(8): a(f"v_cvt_pk_bf16_f32 v{QA+j}, v{QA+2*j}, v{QA+2*j+1}")
    a(f"""ds_write_b128 v27, {vr(QA,4)}
    ds_write_b128 v27, {vr(QA+4,4)} offset:{2*QST}""")
    lds_inc(C_QREADY, gGC, 26)
    TS(5)
    AC = [136, 104, 120, 88]
    XB = 136
    vB1, gXA, gXT, gWA, gWB, gV1 = 8, 16, 17, 18, 19, 20
    a(f"""v_mov_b32 v{gV1}, v6
    v_add_u32 v{gV1+1}, {128*W1P-1024}, v6
    v_add_u32 v{gV1+2}, {2*(128*W1P-1024)}, v6
    v_add_u32 v{gV1+3}, {3*(128*W1P-1024)}, v6""")
    def w1_dma1(b): return f"buffer_load_dwordx4 v{gV1+b}, {sr(rW,4)}, s{sSO} offen offset:{b*1024} lds"
    lds_spin(C_KV, opt.get("kvgate", 8), gGC, 56, sleep=2) if opt.get("kvgate", 8) else None
    if opt.get("delay_f1"): lds_spin(C_ABAR, 16, gGC, 56, sleep=16)
    TS(15)
    late[0] = True
    for n in range(3):
        a(f"s_add_u32 m0, s{sRNG}, {n*4096}\ns_nop 0")
        for b in range(4): a(w1_dma1(b))
        a(f"s_add_u32 s{sSO}, s{sSO}, {16*W1P}")
    a(f"""v_lshlrev_b32 v40, 1, v7
    s_lshl_b32 s{sA}, s{sT1}, 6
    s_lshl_b32 s{sD}, s{sT2}, 6""")
    srd(rT, pB1, W1P)
    a(f"""buffer_load_ushort v8, v40, {sr(rT,4)}, s{sA} offen
    buffer_load_ushort v15, v40, {sr(rT,4)}, s{sD} offen
    v_and_b32 v44, 15, v0
    v_xor_b32 v44, v44, v{gH}
    v_lshlrev_b32 v44, 4, v44
    v_lshl_add_u32 v{gXA}, v7, 10, v44
    v_bfe_u32 v44, v0, 2, 2
    v_lshl_add_u32 v{gWB}, v44, 6, v{gTR}
    v_lshl_add_u32 v{gWB}, v{gH}, 9, v{gWB}
    v_add_u32 v{gWB}, s{sRNG}, v{gWB}""")
    a(f"""v_rcp_f32 v44, v{gRS}
    v_rcp_f32 v45, v{gRS+1}
    v_sub_u32 v48, v{gH}, 1
    s_mov_b32 s{sD}, 0xffff0000
    v_and_b32 v46, s{sD}, v44
    v_and_b32 v47, s{sD}, v45
    v_sub_f32 v44, v44, v46
    v_sub_f32 v45, v45, v47
    v_cvt_pk_bf16_f32 v12, v46, v44
    v_cvt_pk_bf16_f32 v14, v47, v45
    v_and_b32 v12, v48, v12
    v_and_b32 v14, v48, v14
    v_mov_b32 v9, 0
    v_mov_b64 v[10:11], 0
    v_mov_b32 v13, 0""")
    H0, H1 = 104, 120
    FB = [24, 56]
    FX = [88, 150]
    FX = [88, 152]
    def f1_reads(p, b):
        nx = 4 if not (p == 1 and b == 3) else 4
        return [f"ds_read_b64_tr_b16 {vr(FB[p]+8*b,2)}, v{gWA} offset:{b*1024}", f"ds_read_b64_tr_b16 {vr(FB[p]+8*b+2,2)}, v{gWA} offset:{b*1024+256}",
                f"ds_read_b128 {vr(FB[p]+8*b+4,4)}, v{gXT} offset:{b*256}", f"ds_read_b128 {vr(FX[p]+4*b,4)}, v{gXT} offset:{b*256+32768}"]
    gR2 = 6
    def bias():
        a(f"{MF32} {vr(H0,16)}, v[8:11], v[12:15], {vr(H0,16)}\n{MF32} {vr(H1,16)}, v[8:11], v[14:17], {vr(H1,16)}")
    def hzero():
        a(f"v_mfma_f32_32x32x8_bf16 {vr(H0,16)}, v[10:11], v[10:11], 0\nv_mfma_f32_32x32x8_bf16 {vr(H1,16)}, v[10:11], v[10:11], 0")
    a(f"""v_mul_f32 v{gR2}, v{gRS}, v{gRS}
    v_mul_f32 v{gR2+1}, v{gRS+1}, v{gRS+1}
    v_mov_b32 v{gWA}, v{gWB}
    v_mov_b32 v{gXT}, v{gXA}
    s_mov_b32 s{sN}, 0
    s_mov_b32 s{sM}, 0""")
    hzero()
    plan_lo = [(0, 29, 64, 75), (18, 29, 75, 86), (36, 14, 0, 50), (50, 14, 0, 64)]
    plan_hi = [(0, 26, 64, 72), (18, 25, 72, 79), (36, 25, 79, 86), (54, 10, 0, 64)]
    def pack(b): return sum(x << (8 * i) for i, x in enumerate(b))
    sPL, sSW = 18, 19
    a(f"s_mov_b32 s{sPL}, {pack(plan_hi[0])}")
    a(f"s_cmp_lt_u32 s{sG}, 3\ns_cselect_b32 s{sD}, 4, 0\ns_add_u32 s{sD}, s{sD}, s{sI}")
    for n, pl in enumerate(plan_hi + plan_lo):
        if n: a(f"s_cmp_eq_u32 s{sD}, {n}\ns_cselect_b32 s{sPL}, {pack(pl)}, s{sPL}")
    a(f"""s_lshr_b32 s{sD}, s{sPL}, 24
    s_mov_b32 s{rX}, s{pW2}
    s_mov_b32 s{rX+1}, s{pW2+1}
    s_lshl_b32 s{rX+2}, s{sD}, 14
    s_mov_b32 s{rX+3}, 0x20000
    s_and_b32 s{sSW}, s{sPL}, 0xff
    s_lshl_b32 s{sSW}, s{sSW}, 14
    s_lshl_b32 s{sD}, s{sG}, 7
    s_add_u32 s{sSW}, s{sSW}, s{sD}""")
    a(f"s_waitcnt vmcnt(10)")
    for b in range(4):
        for l in f1_reads(0, b): a(l)
    TS(3)
    a(".p2align 6")
    a.label("L_f1loop")
    for p in range(2):
        a(f"""s_add_u32 m0, s{sM}, s{sRNG}
        s_add_u32 s{sM}, s{sM}, 4096
        s_cmp_lt_u32 s{sM}, {RSZ}
        s_cselect_b32 s{sM}, s{sM}, 0
        s_add_u32 s{sN}, s{sN}, 1
        s_and_b32 s{sD}, s{sN}, 7
        s_lshl_b32 s{sD}, s{sD}, 5
        v_add_u32 v{gWA}, s{sM}, v{gWB}
        v_xor_b32 v{gXT}, s{sD}, v{gXA}""")
        if p == 1:
            a(f"""s_lshl_b32 s{sD}, s{sT2}, 6
            s_cmp_eq_u32 s{sN}, 6
            s_cselect_b32 s{sSO}, s{sD}, s{sSO}
            s_add_u32 s{sD}, s{sN}, 2
            s_cmp_lt_u32 s{sD}, s{sNG}
            s_cselect_b32 s{rW+2}, s{rW+2}, 0""")
        for b in range(4):
            rd = f1_reads(1 - p, b)
            if not opt.get("x_nolg"): a("s_waitcnt lgkmcnt(12)")
            a(f"{MF32} {vr(H0,16)}, {vr(FB[p]+8*b,4)}, {vr(FB[p]+8*b+4,4)}, {vr(H0,16)}")
            a(w1_dma1(b))
            a(rd[2]); a(rd[3])
            pad(P1A)
            a(f"{MF32} {vr(H1,16)}, {vr(FB[p]+8*b,4)}, {vr(FX[p]+4*b,4)}, {vr(H1,16)}")
            if not opt.get("x_novm"): a("s_waitcnt vmcnt(8)")
            a(rd[0]); a(rd[1])
            if b < 3: pad(P1B)
        a(f"s_add_u32 s{sSO}, s{sSO}, {16*W1P}")
    a(f"""s_and_b32 s{sD}, s{sN}, 7
    s_cbranch_scc1 L_f1loop""")
    TS(2)
    a(f"""v_lshl_or_b32 v8, v8, 16, v8
    s_mul_i32 s{sD}, s{sRB}, 86
    s_lshl_b32 s{sC}, s{sT1}, 1""")
    bias()
    a(f"""s_add_u32 s{sD}, s{sD}, s{sC}
    s_lshl_b32 s{sD}, s{sD}, 11
    s_add_u32 s{sD}, s{sD}, {HF}
    s_mov_b32 s{sT1}, s{sT2}
    v_mov_b32 v8, v15
    s_nop 5""")
    for rt, Hh in enumerate((H0, H1)):
        for j in range(16): a(f"v_max_f32 v{Hh+j}, 0, v{Hh+j}")
        for j in range(8): a(f"v_pk_mul_f32 {vr(Hh+2*j,2)}, {vr(Hh+2*j,2)}, {vr(Hh+2*j,2)}")
        sel = "op_sel_hi:[1,0]" if rt == 0 else "op_sel:[0,1] op_sel_hi:[1,1]"
        for j in range(8): a(f"v_pk_mul_f32 {vr(Hh+2*j,2)}, {vr(Hh+2*j,2)}, {vr(gR2,2)} {sel}")
        for j in range(8): a(f"v_cvt_pk_bf16_f32 v{Hh+j}, v{Hh+2*j}, v{Hh+2*j+1}")
        for s_ in range(2):
            a(f"buffer_store_dwordx4 {vr(Hh+4*s_,4)}, v{gL16}, {sr(rWS,4)}, s{sD} offen offset:{s_*2048+rt*1024} sc1")
    gSW2 = 22
    D2 = RSZ // 2048
    def w2_dma(u):
        a(f"""s_add_u32 m0, s{sRNG}, {u*2048}
        s_nop 0
        buffer_load_dwordx4 v{gSW}, {sr(rX,4)}, s{sSW} offen lds
        buffer_load_dwordx4 v{gSW2}, {sr(rX,4)}, s{sSW} offen offset:1024 lds
        s_add_u32 s{sSW}, s{sSW}, 16384""")
    a(f"""s_cmp_eq_u32 s{sN}, 8
    s_cselect_b32 s{sD}, 1, 16
    v_mov_b32 v{H0+8}, s{sD}
    s_cmp_lt_u32 s{sN}, s{sNG}
    s_cbranch_scc1 L_f1more
    v_add_u32 v{gSW2}, {8192-1024}, v{gSW}""")
    for u in range(D2): w2_dma(u)
    a(f"""s_waitcnt vmcnt({2*D2})
    s_branch L_f1pub""")
    a.label("L_f1more")
    a("s_waitcnt vmcnt(0)")
    a.label("L_f1pub")
    a(f"""s_mov_b64 exec, 1
    ds_add_rtn_u32 v{H0+9}, v{gGC}, v{H0+8} offset:{C_HDONE}
    s_mov_b64 exec, -1
    s_lshl_b32 s{sC}, s{sRB}, 3
    s_add_u32 s{sC}, s{sC}, s{sG}
    s_lshl_b32 s{sC}, s{sC}, 7
    s_add_u32 s{sC}, s{sC}, s{sN}
    s_add_u32 s{sC}, s{sC}, {FLG_H - 8}
    s_cmp_lt_u32 s{sG}, 3
    s_cselect_b32 s{sCAP}, 1, 0
    s_cmp_eq_u32 s{sN}, 8
    s_cselect_b32 s{sCAP}, 3, s{sCAP}
    s_cselect_b32 s{sD}, 0, 4
    s_waitcnt lgkmcnt(0)
    v_readfirstlane_b32 s{sF}, v{H0+9}
    s_nop 0
    s_lshr_b32 s{sF}, s{sF}, s{sD}
    s_and_b32 s{sF}, s{sF}, 15
    s_cmp_lg_u32 s{sF}, s{sCAP}
    s_cbranch_scc1 L_nohflag""")
    flag_store(sC, H0 + 8)
    a.label("L_nohflag")
    a("s_nop 0")
    hzero()
    a(f"""s_cmp_lt_u32 s{sN}, s{sNG}
    s_cbranch_scc1 L_f1loop""")
    TS(6)
    sK0, sK1, sSH, sXC = 0, 1, sC, sB
    gA0, gA1, gHO0, gHO1, gFL, gWO = 8, 9, 10, 11, 12, 13
    gCN, gOA, gLA, gCV = 16, 17, 18, 19
    HR = 24
    AF = [152, 160]
    WOF, FA = 88, 72
    OFR = [[56, 60, 64, 68, 152, 156, 160, 164], [24 + 4 * gp for gp in range(8)]]
    sHB, sFH, sNF, sPF, sWM, sWS, sRET, sLOOP = 8, 9, 10, 11, 12, 13, 14, 20
    def ev_set():
        a(f"""s_mul_i32 s{sA}, s{sNF}, {OST}
        s_add_u32 s{sA}, s{sA}, {OACC}
        v_mov_b32 v{gCN}, s{sA}
        v_lshrrev_b32 v{gOA}, 1, v{gL16}
        v_and_b32 v{gLA}, 0xff, v{gOA}
        v_add_u32 v{gOA}, s{sA}, v{gOA}
        v_add_u32 v{gLA}, s{sA}, v{gLA}""")
    def o_flag():
        a(f"""s_lshl_b32 s{sA}, s{sRB}, 3
        s_add_u32 s{sA}, s{sA}, s{sG}
        s_lshl_b32 s{sA}, s{sA}, 4
        s_add_u32 s{sA}, s{sA}, s{sPF}
        s_lshl_b32 s{sA}, s{sA}, 3
        s_add_u32 s{sA}, s{sA}, {FLG_O}
        s_mov_b32 s{sPF}, s{sNF}""")
    srd(rW, pX, 0x200000)
    srd(rT, pB2, 1024)
    a(f"""v_and_b32 v41, 31, v0
    v_lshlrev_b32 v40, 3, v{gH}
    v_lshl_add_u32 v41, v41, 10, v40
    s_lshl_b32 s{sA}, s{sG}, 7
    s_lshl_b32 s{sD}, s{sCT}, 6
    s_add_u32 s{sA}, s{sA}, s{sD}
    s_lshl_b32 s{sD}, s{sRB}, 16
    s_lshl_b32 s{sC}, s{sRT}, 15
    s_add_u32 s{sD}, s{sD}, s{sC}
    s_add_u32 s{sD}, s{sD}, s{sA}""")
    for q in range(4): a(f"buffer_load_dwordx2 {vr(XB+2*q,2)}, v41, {sr(rW,4)}, s{sD} offen offset:{16*q}")
    for q in range(4): a(f"buffer_load_dwordx2 {vr(XB+8+2*q,2)}, v40, {sr(rT,4)}, s{sA} offen offset:{16*q}")
    a(f"""s_lshl_b32 s{sFH}, s{sRB}, 10
    s_add_u32 s{sFH}, s{sFH}, {FLG_H}
    v_and_b32 v{gFL}, 7, v0
    v_lshlrev_b32 v{gFL}, 7, v{gFL}
    v_bfe_u32 v{gR}, v0, 2, 2
    buffer_load_dwordx2 v[14:15], v{gFL}, {sr(rWS,4)}, s{sFH} offen sc1
    v_lshrrev_b32 v{gWO}, 1, v{gR}
    v_xor_b32 v{gWO}, s{sCT}, v{gWO}
    v_lshl_add_u32 v{gWO}, v{gWO}, 6, v{gTR}
    v_lshl_add_u32 v{gWO}, v{gR}, 7, v{gWO}
    v_lshl_add_u32 v{gWO}, v{gH}, 9, v{gWO}
    s_lshl_b32 s{sA}, s{sRT}, 10
    v_mov_b64 v[72:73], 0
    v_mov_b64 v[74:75], 0
    v_add_u32 v{gA0}, s{sRNG}, v{gWO}
    v_xor_b32 v{gA1}, 64, v{gA0}
    v_add_u32 v{gHO0}, s{sA}, v{gL16}
    v_xor_b32 v{gHO1}, 0x400, v{gHO0}""")
    a(f"{MF32} {vr(AC[3],16)}, v[72:75], v[72:75], 0")
    a(f"s_mov_b32 s{sD}, 0xffff0000\ns_waitcnt vmcnt(1)")
    for j in range(8): a(f"v_lshlrev_b32 v{24+2*j}, 16, v{XB+8+j}\nv_and_b32 v{25+2*j}, s{sD}, v{XB+8+j}")
    for j in range(7, -1, -1):
        a(f"v_and_b32 v{AC[0]+2*j+1}, s{sD}, v{XB+j}\nv_lshlrev_b32 v{AC[0]+2*j}, 16, v{XB+j}")
    for j in range(8): a(f"v_pk_add_f32 {vr(AC[0]+2*j,2)}, {vr(AC[0]+2*j,2)}, {vr(24+2*j,2)}")
    def a_reads(u, p):
        for d, ga in enumerate((gA0, gA1)):
            a(f"ds_read_b64_tr_b16 {vr(AF[p]+4*d,2)}, v{ga} offset:{u*2048}\nds_read_b64_tr_b16 {vr(AF[p]+4*d+2,2)}, v{ga} offset:{u*2048+1024}")
    LDS_OFF = 0x30000
    a(f"""s_mul_i32 s{sHB}, s{sRB}, {86*2048}
    s_add_u32 s{sHB}, s{sHB}, {HF}
    s_and_b32 s{sSH}, s{sPL}, 0xff
    s_lshl_b32 s{sSH}, s{sSH}, 11
    s_add_u32 s{sSH}, s{sSH}, s{sHB}
    s_lshr_b32 s{sD}, s{sPL}, 24
    s_lshl_b32 s{sD}, s{sD}, 11
    s_mov_b32 s{rT}, s{pWS}
    s_mov_b32 s{rT+1}, s{pWS+1}
    s_add_u32 s{rT+2}, s{sD}, s{sHB}
    s_mov_b32 s{rT+3}, 0x20000
    s_mov_b32 s{rW}, s{pWO}
    s_mov_b32 s{rW+1}, s{pWO+1}
    s_mov_b32 s{rW+2}, 0
    s_mov_b32 s{rW+3}, 0x20000
    s_mov_b32 s{sWM}, {LDS_OFF}
    s_mov_b32 s{sWS}, 0
    s_bfe_u32 s{sK1}, s{sPL}, 0x80008
    s_mov_b32 s{sK0}, 0
    s_xor_b32 s{sNF}, s{sCT}, 1
    s_lshl_b32 s{sNF}, s{sNF}, 1
    s_add_u32 s{sNF}, s{sNF}, s{sRT}
    s_mov_b32 s{sPF}, s{sNF}
    s_mov_b32 s{sLOOP}, 1""")
    ev_set()
    def wo_on():
        a(f"""s_lshl_b32 s{sWM}, s{sI}, 14
        s_lshl_b32 s{sWS}, s{sI}, 17
        s_add_u32 s{rW+2}, s{sWS}, 0x20000
        s_lshl_b32 s{sA}, s{sG}, 7
        s_add_u32 s{sWS}, s{sWS}, s{sA}""")
    a(f"""s_bfe_u32 s{sXC}, s{sPL}, 0x80010
    s_cbranch_scc1 L_wolater
    s_cmp_lt_u32 s{sG}, 3
    s_cselect_b32 s{sD}, 36, 20""")
    lds_spin(C_HDONE, f"s{sD}", gGC, gCV, sleep=2)
    wo_on()
    a.label("L_wolater")
    flag_poll(gFL, sFH, 14, preissued=True, sleep=opt.get("hsleep", 2))
    TS(7)
    for u in range(D2):
        a(f"""buffer_load_dwordx4 {vr(HR+8*u,4)}, v{gHO0}, {sr(rT,4)}, s{sSH} offen sc1
        buffer_load_dwordx4 {vr(HR+8*u+4,4)}, v{gHO1}, {sr(rT,4)}, s{sSH} offen sc1
        s_add_u32 s{sSH}, s{sSH}, 2048""")
    a_reads(0, 0)
    a(f"ds_read_b32 v{gCV}, v{gCN} offset:{B_CNT}")
    a(f"s_add_u32 s{sFH}, s{sFH}, 8\ns_waitcnt vmcnt(0)")
    if opt.get("x_noh"): a(f"s_mov_b32 s{rT+2}, 0")
    if opt.get("x_now"): a(f"s_mov_b32 s{rX+2}, 0")
    TS(1)
    a(".p2align 6")
    a.label("L_f2loop")
    for u in range(D2):
        p = u & 1
        def mf(j): a(f"{MF32} {vr(AC[j],16)}, {vr(AF[p]+4*(j&1),4)}, {vr(HR+8*u+4*(j>>1),4)}, {vr(AC[j],16)}")
        a(f"s_waitcnt vmcnt({4*(D2-2)}) lgkmcnt(0)")
        mf(0)
        a_reads((u + 1) % D2, 1 - p)
        if u == 0:
            a("s_branch L_trip")
            a.label("L_tripped")
        elif u == D2 - 1: a(f"ds_read_b32 v{gCV}, v{gCN} offset:{B_CNT}")
        elif u == 1: a(f"buffer_load_dwordx2 v[14:15], v{gFL}, {sr(rWS,4)}, s{sFH} offen sc1")
        else: pad(P2A)
        mf(1)
        a(f"""s_add_u32 m0, s{sRNG}, {u*2048}
        buffer_load_dwordx4 {vr(HR+8*u,4)}, v{gHO0}, {sr(rT,4)}, s{sSH} offen sc1
        buffer_load_dwordx4 v{gSW}, {sr(rX,4)}, s{sSW} offen lds
        buffer_load_dwordx4 v{gSW2}, {sr(rX,4)}, s{sSW} offen offset:1024 lds
        s_add_u32 s{sSW}, s{sSW}, 16384""")
        mf(2)
        a(f"""s_cmp_ge_u32 s{sWS}, s{rW+2}
        s_cbranch_scc1 L_nowo{u}
        s_mov_b32 m0, s{sWM}
        s_add_u32 s{sWM}, s{sWM}, 2048
        buffer_load_dwordx4 v{gSW}, {sr(rW,4)}, s{sWS} offen lds
        buffer_load_dwordx4 v{gSW2}, {sr(rW,4)}, s{sWS} offen offset:1024 lds
        s_add_u32 s{sWS}, s{sWS}, 16384""")
        a.label(f"L_nowo{u}")
        mf(3)
        a(f"buffer_load_dwordx4 {vr(HR+8*u+4,4)}, v{gHO1}, {sr(rT,4)}, s{sSH} offen sc1\ns_add_u32 s{sSH}, s{sSH}, 2048")
        pad(P2D)
        a(f"s_add_u32 s{sK0}, s{sK0}, 1\ns_cmp_ge_u32 s{sK0}, s{sK1}")
        a("s_cbranch_scc1 L_f2done" if u < D2 - 1 else "s_cbranch_scc0 L_f2loop")
    a.label("L_f2done")
    TS(8)
    sJ, sFO, sOO, sRDY = 0, 1, sB, 21
    def wo_reads():
        for gp in range(8):
            a(f"ds_read_b64_tr_b16 {vr(WOF+4*gp,2)}, v{gWO} offset:{gp*8192}\nds_read_b64_tr_b16 {vr(WOF+4*gp+2,2)}, v{gWO} offset:{gp*8192+1024}")
        a(f"v_add_u32 v{gWO}, 2048, v{gWO}")
    def o_loads(bf):
        a(f"s_mov_b32 s{sA}, s{sOO}")
        for gp in range(8):
            a(f"buffer_load_dwordx4 {vr(OFR[bf][gp],4)}, v{gL16}, {sr(rWS,4)}, s{sA} offen sc1\ns_add_u32 s{sA}, s{sA}, 4096")
        a(f"s_add_u32 s{sOO}, s{sOO}, 1024\ns_add_u32 s{sJ}, s{sJ}, 1")
    def o_mf(bf, after):
        a(f"s_waitcnt lgkmcnt(0)")
        for gp in range(8):
            a(f"s_waitcnt vmcnt({7-gp+after})\n{MF32} {vr(AC[0],16)}, {vr(WOF+4*gp,4)}, {vr(OFR[bf][gp],4)}, {vr(AC[0],16)}")
            if gp < 7: pad(PO)
    a(f"""s_lshl_b32 s{sFO}, s{sRB}, 10
    s_lshl_b32 s{sA}, s{sRT}, 3
    s_add_u32 s{sFO}, s{sFO}, s{sA}
    s_add_u32 s{sFO}, s{sFO}, {FLG_O}
    v_and_b32 v20, 24, v0
    v_lshl_add_u32 v{gFL}, v20, 1, v{gFL}
    v_add_u32 v23, s{sRNG}, v{gL16}
    buffer_load_dwordx2 v[14:15], v{gFL}, {sr(rWS,4)}, s{sFO} offen sc1
    s_lshl_b32 s{sOO}, s{sRB}, 1
    s_add_u32 s{sOO}, s{sOO}, s{sRT}
    s_lshl_b32 s{sOO}, s{sOO}, 15
    s_add_u32 s{sOO}, s{sOO}, {OF}
    s_mov_b32 s{sJ}, 0
    s_mov_b32 s{sLOOP}, 0
    s_mov_b32 s23, 0""")
    srd(rT, pOUT, 0x200000)
    a(f"""s_waitcnt vmcnt(1) lgkmcnt(0)
    s_cmp_ge_u32 s{sPF}, s{sNF}
    s_cbranch_scc1 L_nopf""")
    o_flag()
    flag_store(sA, 20)
    a.label("L_nopf")
    for j in range(1, 4):
        for q in range(4): a(f"ds_write_b128 v23, {vr(AC[j]+4*q,4)} offset:{(j-1)*4096+q*1024}")
    lds_inc(C_GBAR, gGC, 23)
    a(f"""s_waitcnt vmcnt(0)
    v_cmp_ne_u64 vcc, {sr(sEP,2)}, v[14:15]
    s_nop 1
    s_mov_b32 s{sRDY}, vcc_lo
    s_and_b32 s22, s{sRDY}, 0xffff
    s_cbranch_scc1 L_red""")
    o_loads(1)
    o_loads(0)
    a.label("L_red")
    lds_spin(C_GBAR, 4, gGC, 14, sleep=1)
    for j in range(1, 4):
        a(f"s_xor_b32 s{sA}, s{sI}, {j}\ns_mul_i32 s{sA}, s{sA}, {RSZ}\ns_add_u32 s{sA}, s{sA}, {RING}\nv_add_u32 v14, s{sA}, v{gL16}")
        for q in range(4): a(f"ds_read_b128 {vr(AC[j]+4*q,4)}, v14 offset:{(j-1)*4096+q*1024}")
    for j in range(1, 4):
        a(f"s_waitcnt lgkmcnt({(3-j)*4})")
        for q in range(8): a(f"v_pk_add_f32 {vr(AC[0]+2*q,2)}, {vr(AC[0]+2*q,2)}, {vr(AC[j]+2*q,2)}")
    wo_reads()
    TS(9)
    a(f"""s_cmp_eq_u32 s22, 0
    s_cbranch_scc1 L_pair""")
    a.label("L_ev")
    a(f"""s_cmp_ge_u32 s{sPF}, s{sNF}
    s_cbranch_scc1 L_evf""")
    o_flag()
    a("s_waitcnt vmcnt(0)")
    flag_store(sA, 14)
    TS(13)
    a.label("L_evf")
    a(f"""s_add_u32 s23, s23, 1
    s_cmp_gt_u32 s23, {SPIN_CAP}
    s_cbranch_scc1 L_gdone
    s_cmp_ge_u32 s{sNF}, 8
    s_cbranch_scc1 L_evr
    ds_read_b32 v{gCV}, v{gCN} offset:{B_CNT}
    s_waitcnt lgkmcnt(0)
    v_readfirstlane_b32 s{sA}, v{gCV}
    s_nop 0
    s_bitcmp1_b32 s{sA}, 3
    s_cbranch_scc1 L_fin""")
    a.label("L_evr")
    a(f"""s_cmp_lt_u32 s{sJ}, 4
    s_cbranch_scc1 L_evc
    s_cmp_ge_u32 s{sNF}, 8
    s_cbranch_scc1 L_gdone
    s_sleep 1
    s_branch L_evf""")
    a.label("L_evc")
    a(f"""s_cmp_eq_u32 s{sJ}, 3
    s_cbranch_scc1 L_last
    s_lshl_b32 s{sD}, s{sJ}, 3
    s_lshr_b32 s{sA}, s{sRDY}, s{sD}
    s_and_b32 s{sA}, s{sA}, 0xff
    s_cbranch_scc0 L_cons
    buffer_load_dwordx2 v[14:15], v{gFL}, {sr(rWS,4)}, s{sFO} offen sc1
    s_waitcnt vmcnt(0)
    v_cmp_ne_u64 vcc, {sr(sEP,2)}, v[14:15]
    s_nop 1
    s_mov_b32 s{sRDY}, vcc_lo
    s_lshr_b32 s{sA}, s{sRDY}, s{sD}
    s_and_b32 s{sA}, s{sA}, 0xff
    s_cbranch_scc0 L_cons
    s_sleep {opt.get("evsleep", 8)}
    s_branch L_ev""")
    a.label("L_cons")
    a(f"""s_lshr_b32 s{sA}, s{sRDY}, s{sD}
    s_and_b32 s{sA}, s{sA}, 0xffff
    s_cbranch_scc1 L_cons1""")
    o_loads(1)
    o_loads(0)
    a.label("L_pair")
    o_mf(1, 8)
    wo_reads()
    a("s_branch L_cons2")
    a.label("L_cons1")
    o_loads(0)
    a.label("L_cons2")
    o_mf(0, 0)
    a.label("L_cons3")
    a(f"""s_cmp_ge_u32 s{sJ}, 4
    s_cbranch_scc1 L_out""")
    wo_reads()
    a("s_branch L_ev")
    a.label("L_out")
    TS(10)
    a(f"""v_and_b32 v14, 31, v0
    v_lshlrev_b32 v15, 3, v{gH}
    v_lshl_add_u32 v14, v14, 10, v15
    s_lshl_b32 s{sA}, s{sG}, 7
    s_lshl_b32 s{sD}, s{sCT}, 6
    s_add_u32 s{sA}, s{sA}, s{sD}
    s_lshl_b32 s{sD}, s{sRB}, 16
    s_add_u32 s{sA}, s{sA}, s{sD}
    s_lshl_b32 s{sD}, s{sRT}, 15
    s_add_u32 s{sA}, s{sA}, s{sD}""")
    for j in range(8): a(f"v_cvt_pk_bf16_f32 v{AC[0]+j}, v{AC[0]+2*j}, v{AC[0]+2*j+1}")
    for q in range(4): a(f"buffer_store_dwordx2 {vr(AC[0]+2*q,2)}, v14, {sr(rT,4)}, s{sA} offen offset:{16*q}")
    a("s_branch L_ev")
    a.label("L_trip")
    def tripstamp():
        if opt.get("f2ts"):
            a("s_memtime s[96:97]\ns_waitcnt lgkmcnt(0)")
            for i in range(1, 10): a(f"s_mov_b32 s{TS0+2*i}, s{TS0+2*i+2}")
            a(f"s_mov_b32 s{TS0+20}, s96")
    tripstamp()
    a(f"""s_setprio 3
    v_readfirstlane_b32 s{sD}, v{gCV}
    s_cmp_ge_u32 s{sPF}, s{sNF}
    s_cbranch_scc1 L_trip1""")
    o_flag()
    flag_store(sA, 20)
    a.label("L_trip1")
    a(f"""s_cmp_lg_u32 s{sK0}, 12
    s_cbranch_scc1 L_trip2
    s_cmp_eq_u32 s{sXC}, 0
    s_cbranch_scc1 L_trip2
    v_cmp_ne_u64 vcc, {sr(sEP,2)}, v[14:15]
    s_lshl_b32 s{sSW}, s{sXC}, 14
    s_lshl_b32 s{sA}, s{sG}, 7
    s_add_u32 s{sSW}, s{sSW}, s{sA}
    s_lshl_b32 s{sSH}, s{sXC}, 11
    s_add_u32 s{sSH}, s{sSH}, s{sHB}""")
    wo_on()
    a("s_cbranch_vccz L_crossok")
    flag_poll(gFL, sFH, 14, sleep=opt.get("hsleep", 2))
    a.label("L_crossok")
    TS(14)
    a.label("L_trip2")
    a(f"""s_cmp_lt_u32 s{sNF}, 8
    s_cselect_b32 s{sD}, s{sD}, 0
    s_cmp_eq_u32 s{sLOOP}, 1
    s_cselect_b32 s{sD}, s{sD}, 0
    s_bitcmp1_b32 s{sD}, 3
    s_cbranch_scc1 L_fin""")
    a.label("L_trip3")
    tripstamp()
    a(f"s_setprio {GP}\ns_branch L_tripped")
    a.label("L_fin")
    for j in range(7, -1, -1): a(f"ds_read_b64 {vr(FA+2*j,2)}, v{gOA} offset:{512*j}")
    a(f"""ds_read_b64 v[20:21], v{gLA} offset:{B_L}
    s_mov_b32 s{sD}, 0
    s_waitcnt lgkmcnt(0)""")
    for j in range(7, -1, -1): a(f"v_cvt_f32_f64 v{FA+8+j}, {vr(FA+2*j,2)}")
    a(f"v_cvt_f32_f64 v{FA}, v[20:21]")
    a.label("L_fin2")
    a(f"""s_and_b32 s{sA}, s{sNF}, 1
    s_lshl_b32 s{sF}, s{sRB}, 1
    v_rcp_f32 v{FA+1}, v{FA}
    s_add_u32 s{sA}, s{sA}, s{sF}
    s_lshl_b32 s{sA}, s{sA}, 3
    s_add_u32 s{sA}, s{sA}, s{sG}
    v_mov_b32 v{FA+3}, 0x76800000
    v_cmp_nle_f32 vcc, 0x0d800000, v{FA}
    v_cmp_nle_f32 {sr(sRET,2)}, v{FA}, v{FA+3}""")
    for j in range(8): a(f"v_mul_f32 v{FA+8+j}, v{FA+8+j}, v{FA+1}")
    a(f"""s_or_b64 {sr(sRET,2)}, {sr(sRET,2)}, vcc
    s_lshl_b32 s{sA}, s{sA}, 2
    s_lshr_b32 s{sF}, s{sNF}, 1
    s_add_u32 s{sA}, s{sA}, s{sF}
    s_lshl_b32 s{sA}, s{sA}, 10
    s_add_u32 s{sA}, s{sA}, {OF}""")
    for j in range(4): a(f"v_cvt_pk_bf16_f32 v{FA+4+j}, v{FA+8+2*j}, v{FA+9+2*j}")
    a(f"v_pk_mul_f32 {vr(FA+2,2)}, {vr(FA+8,2)}, 0")
    for j in range(1, 4): a(f"v_pk_fma_f32 {vr(FA+2,2)}, {vr(FA+8+2*j,2)}, 0, {vr(FA+2,2)}")
    a(f"""v_cmp_u_f32 vcc, v{FA+2}, v{FA+3}
    s_nop 1
    s_or_b64 {sr(sRET,2)}, {sr(sRET,2)}, vcc
    s_cselect_b32 s{sF}, 1, 0
    s_cmp_gt_u32 s{sF}, s{sD}
    {"s_nop 0" if opt.get("nofb") else "s_cbranch_scc1 L_fallback"}
    s_cmp_ge_u32 s{sNF}, 6
    s_cbranch_scc1 L_fin7
    buffer_store_dwordx4 {vr(FA+4,4)}, v{gL16}, {sr(rWS,4)}, s{sA} offen sc1
    s_add_u32 s{sNF}, s{sNF}, 4""")
    ev_set()
    a(f"""s_cmp_eq_u32 s{sLOOP}, 0
    s_cbranch_scc1 L_ev
    s_branch L_trip3""")
    a.label("L_fin7")
    a(f"""v_mov_b64 {vr(FA+2,2)}, {sr(sEP,2)}
    v_mov_b64 {vr(FA+8,2)}, {sr(sEP,2)}
    s_lshl_b32 s{sA}, s{sRB}, 1
    s_add_u32 s{sA}, s{sA}, s{sNF}
    s_lshl_b32 s{sA}, s{sA}, 3
    s_add_u32 s{sA}, s{sA}, s{sG}
    s_lshl_b32 s{sA}, s{sA}, 11
    s_add_u32 s{sA}, s{sA}, {OT - 6 * 16384}
    s_mov_b32 s{sNF}, 11
    s_mov_b32 s{sPF}, 11
    buffer_store_dwordx4 {vr(FA+2,4)}, v{gL16}, {sr(rWS,4)}, s{sA} offen sc1
    buffer_store_dwordx4 {vr(FA+6,4)}, v{gL16}, {sr(rWS,4)}, s{sA} offen offset:1024 sc1""")
    TS(13)
    a(f"""s_cmp_eq_u32 s{sLOOP}, 0
    s_cbranch_scc1 L_ev
    s_branch L_trip3""")
    a.label("L_last")
    TG = 24
    a(f"s_cmp_lt_u32 s{sNF}, 8\ns_cbranch_scc1 L_evf")
    TS(12)
    a(f"s_mul_i32 s{sA}, s{sRT}, {OST}\ns_add_u32 s{sA}, s{sA}, {OACC + 6 * OST}\nv_mov_b32 v14, s{sA}")
    L_ = a.newlabel("l7")
    a(f"s_mov_b32 s{sCAP}, 0")
    a.label(L_)
    a(f"""ds_read_b32 v15, v14 offset:{B_CNT}
    s_add_u32 s{sCAP}, s{sCAP}, 1
    s_cmp_gt_u32 s{sCAP}, {SPIN_CAP}
    s_cbranch_scc1 L_gdone
    s_waitcnt lgkmcnt(0)
    v_readfirstlane_b32 s{sA}, v15
    s_sleep 1
    s_bitcmp1_b32 s{sA}, 3
    s_cbranch_scc0 {L_}
    s_sleep {opt.get("lastsleep", 4)}""")
    a.label("L_probe")
    a(f"""v_and_b32 v20, 7, v0
    v_lshlrev_b32 v20, 11, v20
    s_lshl_b32 s{sA}, s{sRB}, 1
    s_add_u32 s{sA}, s{sA}, s{sRT}
    s_lshl_b32 s{sA}, s{sA}, 14
    s_add_u32 s{sA}, s{sA}, {OT + 2040}
    s_add_u32 s23, s23, 1
    s_cmp_gt_u32 s23, {SPIN_CAP}
    s_cbranch_scc1 L_gdone""")
    flag_poll(20, sA, 14, sleep=opt.get("probesleep", 3))
    a(f"s_sub_u32 s{sA}, s{sA}, 2040\ns_add_u32 s23, s23, s{sCAP}")
    for gp in range(8):
        for hf in range(2):
            a(f"buffer_load_dwordx4 {vr(TG+8*gp+4*hf,4)}, v{gL16}, {sr(rWS,4)}, s{sA} offen offset:{(gp&1)*2048+hf*1024} sc1")
        if gp & 1 and gp < 7: a(f"s_add_u32 s{sA}, s{sA}, 4096")
    for gp in range(8):
        a(f"""s_waitcnt vmcnt({14-2*gp})
        v_cmp_ne_u64 vcc, {sr(sEP,2)}, {vr(TG+8*gp,2)}
        v_cmp_ne_u64 {sr(sRET,2)}, {sr(sEP,2)}, {vr(TG+8*gp+6,2)}""")
        a(f"s_nop 0\ns_or_b64 vcc, vcc, {sr(sRET,2)}\ns_cbranch_scc1 L_probe")
    a("s_setprio 0")
    for gp in range(8):
        a(f"{MF32} {vr(AC[0],16)}, {vr(WOF+4*gp,4)}, {vr(TG+8*gp+2,4)}, {vr(AC[0],16)}")
    a(f"s_setprio 3\ns_add_u32 s{sJ}, s{sJ}, 1\ns_branch L_cons3")
    a.label("L_gdone")
    if ts: a("s_waitcnt vmcnt(0)")
    TS(11)
    if opt.get("padto"):
        a.label("L_pad")
        a(f"s_memrealtime s[96:97]\ns_waitcnt lgkmcnt(0)\ns_sub_u32 s96, s96, s{sEP}\ns_cmp_lt_u32 s96, {opt['padto']}\ns_cbranch_scc1 L_pad")
    ts_dump()
    a.label("L_end")
    a("s_endpgm")

    a.label("L_fallback")
    FQ, FK, FV, FS, FC, FT = 24, 28, 32, 40, 56, 120
    a(f"""s_cmp_eq_u32 s{sLOOP}, 0
    s_cbranch_scc1 L_fbgo
    s_mov_b32 s{sLOOP}, 2
    s_branch L_trip3""")
    a.label("L_fbgo")
    a(f"""s_mul_i32 s{sA}, s{sNF}, {QST}
    s_add_u32 s{sA}, s{sA}, {QF}
    v_add_u32 v{FT}, s{sA}, v{gL16}
    ds_read_b128 {vr(FQ,4)}, v{FT}
    v_mov_b32 v{FT+2}, 0xff800000""")
    a(f"s_mov_b32 s{sA}, 0")
    a.label("L_fb1")
    a(f"""buffer_load_dwordx4 {vr(FK,4)}, v{gL16}, {sr(rWS,4)}, s{sA} offen sc1
    s_waitcnt vmcnt(0) lgkmcnt(0)
    {MF32} {vr(FS,16)}, {vr(FK,4)}, {vr(FQ,4)}, 0
    s_nop 11""")
    maxtree(FS, FT + 3)
    a(f"""v_max_f32 v{FT+2}, v{FT+2}, v{FT+3}
    s_add_u32 s{sA}, s{sA}, 1024
    s_cmp_lt_u32 s{sA}, 0x10000
    s_cbranch_scc1 L_fb1
    v_mov_b32 v{FT+3}, v{FT+2}
    s_nop 1
    v_permlane32_swap_b32 v{FT+2}, v{FT+3}
    v_max_f32 v{FT+2}, v{FT+2}, v{FT+3}""")
    for i in range(16): a(f"v_sub_f32 v{FC+i}, 0, v{FT+2}\nv_mov_b32 v{FA+i}, 0")
    a(f"s_mov_b32 s{sA}, 0")
    a.label("L_fb2")
    a(f"""s_add_u32 s{sF}, s{sA}, {VF}
    buffer_load_dwordx4 {vr(FK,4)}, v{gL16}, {sr(rWS,4)}, s{sA} offen sc1
    buffer_load_dwordx4 {vr(FV,4)}, v{gL16}, {sr(rWS,4)}, s{sF} offen sc1""")
    for i in range(4): a(f"v_mov_b32 v{FV+4+i}, 0x3f803f80")
    a(f"""s_waitcnt vmcnt(0)
    {MF32} {vr(FS,16)}, {vr(FK,4)}, {vr(FQ,4)}, {vr(FC,16)}""")
    for i in range(4): a(f"v_permlane16_swap_b32 v{FV+4+i}, v{FV+i}")
    a("s_nop 7")
    for i in range(16): a(e(FS, i))
    a("s_nop 0")
    for j in range(8): a(c(FS, j))
    a(f"""s_nop 1
    {MF32} {vr(FA,16)}, {vr(FV,4)}, {vr(FS,4)}, {vr(FA,16)}
    {MF32} {vr(FA,16)}, {vr(FV+4,4)}, {vr(FS+8,4)}, {vr(FA,16)}
    s_add_u32 s{sA}, s{sA}, 1024
    s_cmp_lt_u32 s{sA}, 0x10000
    s_cbranch_scc1 L_fb2
    s_nop 15
    s_mov_b32 s{sD}, 1
    s_branch L_fin2""")

    if opt.get("x_nomf"):
        i0 = a.lines.index("L_f1loop:"); i1 = a.lines.index("L_gdone:")
        for i in range(i0, i1):
            if a.lines[i].startswith("v_mfma"): a.lines[i] = "s_nop 9"
    i0 = a.lines.index("L_atop:"); i1 = a.lines.index("L_vs0:")
    for i in range(i1, i0, -1):
        l = a.lines[i]
        if opt.get("y_noadd") and l.startswith("ds_add_f64"): del a.lines[i]
        elif opt.get("y_nocvt") and l.startswith("v_cvt_f64"): del a.lines[i]
        elif opt.get("y_noq") and l.startswith("ds_read_b128"): del a.lines[i]
        elif opt.get("y_noexec") and ("exec_hi" in l): del a.lines[i]
        elif opt.get("y_nobr") and l.startswith("s_cbranch_vccnz"): del a.lines[i]
    if opt.get("x_p0", 1):
        i0 = a.lines.index("L_f1loop:"); i1 = a.lines.index("L_gdone:")
        for i in range(i1, i0, -1):
            if a.lines[i].startswith("v_mfma"): a.lines[i:i+1] = ["s_setprio 0", a.lines[i], "s_setprio 3"]
    probs = lint(a.lines)
    for p in probs: print("LINT", p, file=sys.stderr)
    head = f"""; fused layernorm + MQA attention + squared-relu FFN, one persistent launch (generated by gen/gen.py)
; @launch grid=(256,1,1) block=(768,1,1) lds=163840
.amdgcn_target "amdgcn-amd-amdhsa--gfx950"
.text
.globl {NAME}_kernel
.p2align 8
.type {NAME}_kernel,@function
{NAME}_kernel:
"""
    tail = f""".section .rodata,"a"
.p2align 6
.amdhsa_kernel {NAME}_kernel
  .amdhsa_next_free_vgpr 168
  .amdhsa_next_free_sgpr 100
  .amdhsa_accum_offset 168
  .amdhsa_group_segment_fixed_size 0
  .amdhsa_kernarg_size 104
  .amdhsa_user_sgpr_count 2
  .amdhsa_user_sgpr_kernarg_segment_ptr 1
  .amdhsa_system_sgpr_workgroup_id_x 1
.end_amdhsa_kernel
"""
    return head + a.text() + tail

if __name__ == "__main__":
    open("k.s", "w").write(gen(False))
    open("k_ts.s", "w").write(gen(True))
    open("k_ts_c.s", "w").write(gen(True, dict(cyc=1)))
    for nm, pr in (("a0", ("A", 0)), ("a3", ("A", 3)), ("a6", ("A", 6)), ("a9", ("A", 9)), ("g8", ("G", 8)), ("g6", ("G", 6))):
        open(f"k_p{nm}.s", "w").write(gen(False, dict(probe=pr)))
```

```python
import sys
from asmlib import Asm, vr, sr, lint
NAME = "parallel_sum__grouped_kv_mqa__dense_activation_squared_relu__prompt"

KF, VF, FLG_KV, FLG_H, FLG_O, OF, HF, TSB = 0, 0x10000, 0x20000, 0x28000, 0x30000, 0x40000, 0x240000, 0x800000
OT = 0x900000
WS_BYTES = 0xA00000
XN, RING, WKV = 0, 65536, 131072
RSZ = 12288
OACC, OST = 114688, 4608
B_L, B_CNT = 4096, 4352
QF, QST = 151552, 1536
RSTD = QF + 1024
GC = OACC + 7 * OST + B_CNT + 16
C_QREADY, C_ABAR, C_HDONE, C_GBAR, C_WQ, C_KV, C_RS, C_L0, C_EPOCH, C_PX = 0, 4, 8, 12, 16, 20, 24, 28, 32, 40
W1P = 2752
OFFS = 90.0
SPIN_CAP = 1 << 17

sW, sRB, sG, sKG, sCH = 3, 4, 5, 6, 7
pX, pWQ, pWK, pWV, pWO, pW1, pB1, pW2, pB2, pOUT, pDBG, pWS = 8, 10, 12, 14, 16, 20, 22, 24, 26, 28, 30, 32
rX, rWS, rW, rT = 36, 40, 44, 48
sEP = 52
sI, sRT, sCT = 54, 55, 56
sA, sB, sC, sD, sE, sF = 57, 58, 59, 60, 61, 62
sCAP = 63
sM = 34
TS0 = 64
MF32 = "v_mfma_f32_32x32x16_bf16"

def gen(ts=False, opt={}):
    a = Asm()
    GP = opt.get('gp', 3)
    P1A, P1B, P2A, P2C, P2D, PO = opt.get('pads', (-1, -1, -1, -1, -1, -1))
    def pad(n):
        if n >= 0: a(f's_nop {n}')
    late = [False]
    role = ["A"]
    def TS(i):
        if opt.get("probe") == (role[0], i) and not (late[0] and opt.get("pearly")): a("s_memrealtime s[98:99]")
        if opt.get("pro") and late[0] and i != 11: return
        if opt.get("f2ts") and late[0]: i = {7: 12, 8: 13, 6: 14, 11: 11}.get(i)
        if i is None: return
        if ts: a(f"{'s_memtime' if opt.get('cyc') else 's_memrealtime'} {sr(TS0 + 2 * i, 2)}")
    def srd(r, p, n):
        a(f"s_mov_b32 s{r}, s{p}\ns_mov_b32 s{r+1}, s{p+1}\ns_mov_b32 s{r+2}, {n}\ns_mov_b32 s{r+3}, 0x20000")
    def lds_spin(off, val, va, vt, sleep=1):
        L = a.newlabel("spin"); D = a.newlabel("spun")
        a(f"s_mov_b32 s{sCAP}, 0")
        a.label(L)
        a(f"""ds_read_b32 v{vt}, v{va} offset:{off}
        s_add_u32 s{sCAP}, s{sCAP}, 1
        s_waitcnt lgkmcnt(0)
        v_readfirstlane_b32 s{sF}, v{vt}
        s_cmp_gt_u32 s{sCAP}, {SPIN_CAP}
        s_cbranch_scc1 {D}""")
        if sleep:
            a(f"s_cmp_ge_u32 s{sF}, {val}\ns_cbranch_scc1 {D}\ns_sleep {sleep}\ns_branch {L}")
        else:
            a(f"s_cmp_lt_u32 s{sF}, {val}\ns_cbranch_scc1 {L}")
        a.label(D)
    def lds_inc(off, va, vt):
        a(f"v_mov_b32 v{vt}, 1\ns_mov_b64 exec, 1\nds_add_u32 v{va}, v{vt} offset:{off}\ns_mov_b64 exec, -1")
    def flag_poll(va, soff, vt, sleep=2, preissued=False):
        L = a.newlabel("poll"); D = a.newlabel("polled")
        a(f"s_mov_b32 s{sCAP}, 0")
        if preissued: a(f"s_branch {L}w")
        a.label(L)
        a(f"buffer_load_dwordx2 {vr(vt,2)}, v{va}, {sr(rWS,4)}, s{soff} offen sc1")
        a.label(L + "w")
        a(f"""s_add_u32 s{sCAP}, s{sCAP}, 1
        s_waitcnt vmcnt(0)
        v_cmp_ne_u64 vcc, {sr(sEP,2)}, {vr(vt,2)}
        s_cmp_gt_u32 s{sCAP}, {SPIN_CAP}
        s_cbranch_scc1 {D}
        s_cbranch_vccz {D}
        s_sleep {sleep}
        s_branch {L}""")
        a.label(D)
    sLOC = 25
    def grp_store(lines):
        X = a.newlabel("far"); Y = a.newlabel("std")
        a(f"s_cmp_eq_u32 s{sLOC}, 0\ns_cbranch_scc1 {X}")
        for l in lines: a(l)
        a.label(Y)
        far.append((X, Y, lines))
    far = []
    def flag_store(soff, vt):
        a(f"v_mov_b64 {vr(vt,2)}, {sr(sEP,2)}\ns_mov_b64 exec, 1")
        grp_store([f"buffer_store_dwordx2 {vr(vt,2)}, off, {sr(rWS,4)}, s{soff}"])
        a("s_mov_b64 exec, -1")
    def ts_dump():
        if opt.get("probe") and opt["probe"][0] == role[0]:
            L = a.newlabel("pad")
            a.label(L)
            a(f"s_sleep 2\ns_memrealtime s[96:97]\ns_waitcnt lgkmcnt(0)\ns_sub_u32 s96, s96, s98\ns_cmp_lt_u32 s96, 4000\ns_cbranch_scc1 {L}")
        if not ts: return
        a(f"""s_sleep 127
        s_sleep 127
        s_sleep 127
        s_waitcnt lgkmcnt(0)
        s_mul_i32 s{sA}, s2, 12
        s_add_u32 s{sA}, s{sA}, s{sW}
        s_lshl_b32 s{sA}, s{sA}, 6
        s_add_u32 s{sA}, s{sA}, {TSB}
        s_mov_b64 exec, 1""")
        for q in range(4):
            for j in range(4): a(f"v_mov_b32 v{4+j}, s{TS0 + 2 * (4 * q + j)}")
            a(f"buffer_store_dwordx4 v[4:7], off, {sr(rWS,4)}, s{sA} offset:{16*q}\ns_nop 1")
        a("s_waitcnt vmcnt(0)")
    def maxtree(S, d):
        a(f"v_max3_f32 v{d}, v{S}, v{S+1}, v{S+2}")
        for j in range(3, 15, 2): a(f"v_max3_f32 v{d}, v{d}, v{S+j}, v{S+j+1}")
        a(f"v_max_f32 v{d}, v{d}, v{S+15}")
    def e(S, i): return f"v_exp_f32 v{S+i}, v{S+i}"
    def c(S, j): return f"v_cvt_pk_bf16_f32 v{S + (j & 3) + 8 * (j >> 2)}, v{S+2*j}, v{S+2*j+1}"
    PFS = opt.get("pfstride", 7)
    def l2_prefetch(r, nbytes, vaddr, vdummy, part, nparts):
        chunk = 64 << PFS
        rounds = -(-nbytes // (chunk * 32))
        a(f"s_lshr_b32 s{sF}, s2, 3\ns_mul_i32 s{sF}, s{sF}, {chunk}")
        if part is not None:
            a(f"s_mul_i32 s{sCAP}, s{part}, {chunk*32}\ns_add_u32 s{sF}, s{sF}, s{sCAP}")
        for i in range(-(-rounds // nparts)):
            a(f"buffer_load_dword v{vdummy}, v{vaddr}, {sr(r,4)}, s{sF} offen")
            a(f"s_add_u32 s{sF}, s{sF}, {chunk*32*nparts}")

    TQ, TC, HLOC = opt.get("tq", 2), opt.get("tc", 4), opt.get("hloc", 0)
    def chip_touch(va, vd):
        a(f"s_mov_b32 exec_hi, 0x7ff\ns_mul_i32 s{sF}, s2, 5504")
        for p_ in (pW1, pW2):
            srd(rT, p_, 512 * W1P)
            a(f"buffer_load_dword v{vd}, v{va}, {sr(rT,4)}, s{sF} offen")
        srd(rT, pWO, 0x80000)
        a(f"s_mov_b64 exec, 0xffff\ns_lshl_b32 s{sF}, s2, 11\nbuffer_load_dword v{vd}, v{va}, {sr(rT,4)}, s{sF} offen\ns_mov_b64 exec, -1")
    def a_touch(lab):
        a(f"s_cmp_lg_u32 s{sW}, 7\ns_cbranch_scc1 {lab}\nv_lshlrev_b32 v14, 4, v0")
        chip_touch(14, 15)
        a.label(lab)
    if opt.get("probe"): a("s_memrealtime s[98:99]")
    a(f"""s_memrealtime {sr(sM,2)}
    s_load_dwordx16 s[8:23], s[0:1], 0
    s_load_dwordx8 s[24:31], s[0:1], 64
    s_load_dwordx2 s[32:33], s[0:1], 96
    s_cmp_ge_u32 s2, 256
    s_cbranch_scc1 L_end""")
    if ts:
        for i in range(16): a(f"s_mov_b32 s{TS0+2*i}, 0")
    TS(0)
    a(f"""v_lshrrev_b32 v1, 6, v0
    s_and_b32 s{sRB}, s2, 7
    v_readfirstlane_b32 s{sW}, v1
    s_lshl_b32 s{sRB}, s{sRB}, 2
    s_lshr_b32 s{sA}, s2, 6
    s_add_u32 s{sRB}, s{sRB}, s{sA}
    s_bfe_u32 s{sG}, s2, 0x30003
    s_lshr_b32 s{sKG}, s{sG}, 1
    s_and_b32 s{sCH}, s{sG}, 1
    v_and_b32 v0, 63, v0
    s_cmp_ge_u32 s{sW}, 8
    s_cbranch_scc1 L_gwave""")

    vL8, vAD, vT = 0, 1, 2
    Q, K, V, S0, S1, ACC, CIN = 4, 8, 40, 104, 120, 136, 152
    sQT, sINC, sKVO, sPB = sI, sRT, sE, sCT
    sOOF, sQA, sCA, sAH, sKB = 0, 1, 46, 47, 45
    a(f"""v_lshrrev_b32 v3, 5, v0
    v_and_b32 v4, 31, v0
    s_lshl_b32 s{sA}, s{sW}, 1
    v_add_u32 v3, s{sA}, v3
    v_lshlrev_b32 v1, 10, v3
    v_lshl_add_u32 v5, v4, 4, v1
    s_lshl_b32 s{sB}, s{sRB}, 16
    s_lshl_b32 s{sC}, s{sKG}, 14
    s_add_u32 s{sD}, s{sB}, s{sC}
    s_waitcnt lgkmcnt(0)""")
    srd(rX, pX, 0x200000)
    a(f"""buffer_load_dwordx4 v[8:11], v5, {sr(rX,4)}, s{sD} offen
    buffer_load_dwordx4 v[12:15], v5, {sr(rX,4)}, s{sD} offen offset:512""")
    def x_load(it):
        a(f"""s_xor_b32 s{sD}, s{sC}, {it << 14}
        s_add_u32 s{sD}, s{sB}, s{sD}
        buffer_load_dwordx4 {vr(8+8*it,4)}, v5, {sr(rX,4)}, s{sD} offen
        buffer_load_dwordx4 {vr(12+8*it,4)}, v5, {sr(rX,4)}, s{sD} offen offset:512""")
    srd(rWS, pWS, WS_BYTES)
    vGC, vQW, vOZ, vCW, vKA, vVA, vFL, vF2 = CIN, CIN + 1, CIN + 2, CIN + 3, CIN + 4, CIN + 5, CIN + 6, CIN + 7
    for i in range(8): a(f"v_mov_b64 {vr(ACC+2*i,2)}, 0")
    a(f"""v_mov_b32 v{vGC}, {GC}
    v_lshlrev_b32 v{vFL}, 7, v4
    v_and_b32 v6, 15, v0
    v_cmp_eq_u32 vcc, 0, v6
    ds_write_b128 v{vGC}, {vr(ACC,4)}
    ds_write_b128 v{vGC}, {vr(ACC,4)} offset:16
    ds_write_b128 v{vGC}, {vr(ACC,4)} offset:32
    v_xor_b32 v4, v4, v3
    v_lshl_add_u32 v2, v4, 4, v1
    v_lshlrev_b32 v3, 2, v3
    v_add_u32 v3, {RSTD}, v3
    v_mov_b32 v{CIN+8}, 0x3f803f80
    v_mov_b32 v{CIN+9}, 0x3f80
    v_mov_b32 v{CIN+10}, 0x3f800000
    v_cndmask_b32 v{V+4}, 0, v{CIN+8}, vcc
    v_cndmask_b32 v{V+5}, 0, v{CIN+8}, vcc""")
    for i in range(1, 16): a(f"v_mov_b64 {vr(V+8*(i>>1)+4+2*(i&1),2)}, {vr(V+4,2)}")
    a(f"""v_mov_b64 {vr(S1+8,2)}, 0
    v_mov_b64 {vr(S1+10,2)}, 0
    v_lshlrev_b32 v{vKA}, 4, v0
    v_lshrrev_b32 v4, 5, v0
    v_lshlrev_b32 v{vF2}, 8, v4
    v_lshlrev_b32 v{vL8}, 3, v0
    s_mul_i32 s{sA}, s{sW}, {QST}
    s_add_u32 s{sA}, s{sA}, {QF}
    v_add_u32 v{vQW}, s{sA}, v{vKA}
    v_and_b32 v{vCW}, 0x1ff, v{vKA}
    v_add_u32 v{vCW}, s{sA}, v{vCW}
    s_mul_i32 s{sA}, s{sW}, {OST}
    s_add_u32 s{sA}, s{sA}, {OACC}
    v_add_u32 v{vOZ}, s{sA}, v{vKA}
    v_mov_b64 {vr(S1+12,2)}, 0
    v_mov_b64 {vr(S1+14,2)}, 0
    s_mov_b32 s{sA}, 0x43300000
    v_writelane_b32 v{S1+13}, s{sA}, 16
    s_mov_b32 s{sA}, 0x3b000000""")
    U, R0 = S0, S1
    cOne2, cLo, cHi = CIN + 8, CIN + 9, CIN + 10
    def red32(rs):
        pad = "s_nop 1\n" if len(rs) == 1 else ""
        for mode in ("quad_perm:[1,0,3,2]", "quad_perm:[2,3,0,1]", "row_half_mirror", "row_mirror"):
            a(pad + "\n".join(f"v_add_f32_dpp v{r}, v{r}, v{r} {mode} row_mask:0xf bank_mask:0xf" for r in rs))
        for r in rs: a(f"v_mov_b32 v{r+1}, v{r}")
        a(pad + "\n".join(f"v_permlane16_swap_b32 v{r}, v{r+1}" for r in rs))
        for r in rs: a(f"v_add_f32 v{r}, v{r}, v{r+1}")
    def centre(its):
        for j in range(8):
            for it in its:
                X, R = 8 + 8 * it, R0 + 2 * (it % 3)
                a(f"v_dot2_f32_bf16 v{R+(j&1)}, v{X+j}, v{cOne2}, {'0' if j < 2 else f'v{R+(j&1)}'}")
        a("s_nop 2" if len(its) == 1 else "s_nop 0")
        for it in its: a(f"v_add_f32 v{R0+2*(it%3)}, v{R0+2*(it%3)}, v{R0+2*(it%3)+1}")
        red32([R0 + 2 * (it % 3) for it in its])
        for it in its: a(f"v_mul_f32 v{R0+2*(it%3)}, 0xbb000000, v{R0+2*(it%3)}")
        for it in its:
            X, R = 8 + 8 * it, R0 + 2 * (it % 3)
            a(f"s_xor_b32 s{sD}, s{sC}, {it << 14}\nv_add_u32 v7, s{sD}, v2")
            for j in range(8):
                a(f"v_dot2_f32_bf16 v{U+2*j}, v{X+j}, v{cLo}, v{R}\nv_dot2_f32_bf16 v{U+2*j+1}, v{X+j}, v{cHi}, v{R}")
            for j in range(8):
                a(f"v_cvt_pk_bf16_f32 v{X+j}, v{U+2*j}, v{U+2*j+1}")
                if j == 0: a(f"v_pk_mul_f32 {vr(R,2)}, {vr(U,2)}, {vr(U,2)}")
                else: a(f"v_pk_fma_f32 {vr(R,2)}, {vr(U+2*j,2)}, {vr(U+2*j,2)}, {vr(R,2)}")
                if j == 3: a(f"ds_write_b128 v7, {vr(X,4)}")
            a(f"ds_write_b128 v7, {vr(X+4,4)} offset:512")
    def scales(its):
        for it in its: a(f"v_add_f32 v{R0+2*(it%3)}, v{R0+2*(it%3)}, v{R0+2*(it%3)+1}")
        red32([R0 + 2 * (it % 3) for it in its])
        a(f"v_mov_b32 v7, 0x3727c5ac")
        for it in its: a(f"v_fma_f32 v{R0+2*(it%3)}, v{R0+2*(it%3)}, s{sA}, v7")
        for it in its: a(f"v_rsq_f32 v{R0+2*(it%3)}, v{R0+2*(it%3)}")
        for it in its:
            a(f"s_xor_b32 s{sD}, s{sC}, {it << 14}\ns_lshr_b32 s{sD}, s{sD}, 8\nv_add_u32 v{R0+2*(it%3)+1}, s{sD}, v3")
            a(f"ds_write_b32 v{R0+2*(it%3)+1}, v{R0+2*(it%3)}")
    a("s_setprio 1\ns_waitcnt lgkmcnt(0)\ns_barrier")
    TS(8)
    for it in range(1, 4): x_load(it)
    a("s_waitcnt vmcnt(6)")
    TS(1)
    centre([0]); scales([0])
    lds_inc(C_L0, vGC, 7)
    a("s_setprio 0")
    TS(2)
    a("s_waitcnt vmcnt(0)")
    TS(12)
    centre([1, 2, 3])
    if TC == 2: a_touch("L_t2")
    a("s_waitcnt lgkmcnt(0)\ns_barrier")
    if TC == 3: a_touch("L_t3")
    TS(3)

    a(f"""ds_read_b64 v[8:9], v{vGC} offset:{C_EPOCH}
    s_lshl_b32 s{sB}, s{sRB}, 10
    s_add_u32 s{sKB}, s{sW}, s{sG}
    s_and_b32 s{sKB}, s{sKB}, 7
    s_lshl_b32 s{sF}, s{sKB}, 12
    s_cmp_ge_u32 s{sW}, 4
    s_cselect_b32 s{sB}, s{sF}, s{sB}
    s_cselect_b64 vcc, -1, 0
    s_add_u32 s{sB}, s{sB}, {FLG_KV}
    v_cndmask_b32 v{vF2}, v{vF2}, v{vFL}, vcc
    s_nop 0
    buffer_load_dwordx2 v[12:13], v{vF2}, {sr(rWS,4)}, s{sB} offen sc1""")
    def zero_block():
        for j in range(4): a(f"ds_write_b128 v{vOZ}, {vr(ACC,4)} offset:{1024*j}")
        a(f"""s_mov_b64 exec, 0x1ffff
        ds_write_b128 v{vOZ}, {vr(S1+12,4)} offset:{B_L}
        s_mov_b64 exec, -1""")
    scales([1, 2, 3])
    lds_inc(C_RS, vGC, vT)
    a(f"""s_waitcnt lgkmcnt(4)
    v_readfirstlane_b32 s{sEP}, v8
    v_readfirstlane_b32 s{sEP+1}, v9
    s_lshl_b32 s{sKVO}, s{sKB}, 13
    s_add_u32 s{sA}, s{sKVO}, 4096
    s_add_u32 s{sC}, s{sKVO}, {VF}
    s_add_u32 s{sD}, s{sKVO}, {VF+4096}
    s_mov_b32 s{sOOF}, {OACC}
    s_mov_b32 s{sQA}, {QF}
    s_mov_b32 s{sINC}, 0
    s_and_b32 s{sPB}, s{sW}, 3
    s_lshl_b32 s{sPB}, s{sPB}, 1
    s_add_u32 s{sPB}, s{sPB}, 4""")
    a(f"s_cmp_lt_u32 s{sW}, 4\ns_cbranch_scc1 L_shift")
    zero_block()
    a("s_setprio 2\ns_branch L_abar")
    a.label("L_shift")
    flag_poll(vF2, sB, 12, sleep=1, preissued=True)
    a(f"""    s_lshl_b32 s{sB}, s{sRB}, 11
    s_nop 0
    buffer_load_dwordx4 {vr(K,4)}, v{vKA}, {sr(rWS,4)}, s{sB} offen sc1
    s_lshl_b32 s{sB}, s{sKB}, 12
    s_add_u32 s{sB}, s{sB}, {FLG_KV}
    s_nop 0
    buffer_load_dwordx2 v[12:13], v{vFL}, {sr(rWS,4)}, s{sB} offen sc1""")
    TS(11)
    zero_block()
    lds_spin(C_QREADY, 4, vGC, vT, sleep=0)
    TS(5)
    a(f"""ds_read_b128 {vr(Q,4)}, v{vQW} offset:{4*QST}
    ds_read_b128 v[16:19], v{vQW}
    s_waitcnt vmcnt(1) lgkmcnt(0)
    {MF32} {vr(S0,16)}, {vr(K,4)}, {vr(Q,4)}, 0
    {MF32} v[20:35], {vr(K,4)}, v[16:19], 0
    s_nop 10""")
    maxtree(S0, vT)
    maxtree(20, 36)
    a(f"""v_mov_b32 v{vT+1}, v{vT}
    v_mov_b32 v37, v36
    s_nop 0
    v_permlane32_swap_b32 v{vT}, v{vT+1}
    v_permlane32_swap_b32 v36, v37
    v_max_f32 v{vT}, v{vT}, v{vT+1}
    v_max_f32 v36, v36, v37
    v_sub_f32 v{S1}, {-OFFS}, v{vT}
    v_sub_f32 v{S1+1}, {-OFFS}, v{vT}
    v_sub_f32 v{S1+4}, {-OFFS}, v36
    v_sub_f32 v{S1+5}, {-OFFS}, v36
    v_mov_b64 {vr(S1+2,2)}, {vr(S1,2)}
    v_mov_b64 {vr(S1+6,2)}, {vr(S1+4,2)}
    ds_write_b128 v{vCW}, {vr(S1,4)} offset:{4*QST+1024}
    ds_write_b128 v{vCW}, {vr(S1+4,4)} offset:1024""")
    a.label("L_abar")
    lds_inc(C_ABAR, vGC, vT)
    flag_poll(vFL, sB, 12, sleep=1, preissued=True)
    TS(4)
    def ldK(t): a(f"buffer_load_dwordx4 {vr(K+4*t,4)}, v{vKA}, {sr(rWS,4)}, s{sKVO if t < 4 else sA} offen offset:{(t&3)*1024} sc1")
    def ldV(t): a(f"buffer_load_dwordx4 {vr(V+8*t,4)}, v{vKA}, {sr(rWS,4)}, s{sC if t < 4 else sD} offen offset:{(t&3)*1024} sc1")
    ldK(0)
    for t in range(7):
        ldK(t + 1); ldV(t)
    ldV(7)
    lds_inc(C_KV, vGC, vT)
    if TC:
        a(f"""s_cmp_ge_u32 s{sW}, 3
        s_cbranch_scc1 L_notouch
        s_cmp_eq_u32 s{sW}, 0
        s_cselect_b32 s{rT}, s{pW1}, s{pW2}
        s_cselect_b32 s{rT+1}, s{pW1+1}, s{pW2+1}
        s_cmp_eq_u32 s{sW}, 2
        s_cselect_b32 s{rT}, s{pWO}, s{rT}
        s_cselect_b32 s{rT+1}, s{pWO+1}, s{rT+1}
        s_mov_b32 s{sF}, 5504
        s_cselect_b32 s{sF}, 2048, s{sF}
        s_mul_i32 s{sA}, s2, s{sF}
        s_add_u32 s{rT+2}, s{sA}, s{sF}
        s_mov_b32 s{rT+3}, 0x20000
        s_mov_b32 m0, {OACC + B_CNT + 16}
        v_lshlrev_b32 v{vT}, 4, v{vL8}
        s_mov_b32 exec_hi, 0x7ff
        buffer_load_dword v{vT}, {sr(rT,4)}, s{sA} offen lds
        s_mov_b32 exec_hi, -1""")
        a.label("L_notouch")
    TS(10)
    lds_spin(C_ABAR, 8, vGC, vT, sleep=0)
    TS(6)
    if ts: a(f"s_memtime {sr(TS0+26,2)}")
    def load_q():
        x = [f"v_lshl_add_u32 v{vAD}, v{vL8}, 1, s{sQA}", f"v_and_b32 v{vT}, 0xff, v{vL8}",
             f"ds_read_b128 {vr(Q,4)}, v{vAD}", f"v_lshl_add_u32 v{vT}, v{vT}, 1, s{sQA}", f"s_add_u32 s{sQA}, s{sQA}, {QST}"]
        return x + [f"ds_read_b128 {vr(CIN+4*j,4)}, v{vT} offset:1024" for j in range(4)]
    def QK(t, S): return f"{MF32} {vr(S,16)}, {vr(K+4*t,4)}, {vr(Q,4)}, {vr(CIN,16)}"
    def PV(t, hf, S, zero=False): return f"{MF32} {vr(ACC,16)}, {vr(V+8*t+4*hf,4)}, {vr(S+8*hf,4)}, {'0' if zero else vr(ACC,16)}"
    def flush_ops():
        x = [[f"v_add_u32 v{vAD}, s{sOOF}, v{vL8}", f"v_cvt_f64_f32 {vr(vT,2)}, v{ACC}"]]
        for j in range(8): x.append([f"v_cvt_f64_f32 {vr(ACC+2*j,2)}, v{ACC+8+j}", f"ds_add_f64 v{vAD}, {vr(ACC+2*j,2)} offset:{512*j}"])
        x.append([f"v_writelane_b32 v{vT+1}, s{sINC}, 32", "s_mov_b32 exec_hi, 1", f"ds_add_rtn_f64 {vr(vT,2)}, v{vAD}, {vr(vT,2)} offset:{B_L}", "s_mov_b32 exec_hi, -1"])
        return x
    def vswap(t):
        for j in range(4): a(f"v_permlane16_swap_b32 v{V+8*t+4+j}, v{V+8*t+j}")
    for l in load_q(): a(l)
    NV0 = opt.get("nv0", 3)
    a(f"s_setprio 1\ns_mov_b64 vcc, -1\ns_waitcnt vmcnt(14) lgkmcnt(0)")
    a(QK(0, S0))
    for t in range(NV0):
        a(f"s_waitcnt vmcnt({12 - 2 * t})")
        vswap(t)
    a(".p2align 6")
    a.label("L_atop")
    SS = [S0, S1]
    std = "e0 e1 P1 e2 e3 c0 e4 e5 c1 QK e6 e7 c2 e8 c3 e9 e10 P0 e11 c4 e12 e13 c5 e14 e15 c6 c7"
    orders = {0: "e0 e1 P1 e2 e3 c0 e4 e5 c1 QK e6 e7 c2 e8 c3 e9 e10 F e11 F c4 F e12 F e13 F c5 F e14 F e15 F c6 F c7 F P0",
              1: "e0 e1 e2 e3 c0 P1 e4 e5 c1 e6 e7 QK c2 e8 c3 e9 e10 e11 P0 c4 e12 e13 c5 e14 e15 c6 c7 R",
              4: std + " U",
              6: "e0 e1 P1 e2 e3 c0 e4 e5 c1 QK e6 e7 c2 e8 c3 e9 e10 P0 L L L e11 L L c4 L e12 L e13 L c5 L e14 e15 c6 c7",
              7: "e0 e1 P1 e2 e3 c0 e4 e5 c1 G QK e6 e7 c2 e8 c3 e9 e10 P0 e11 X c4 e12 e13 c5 e14 e15 c6 c7"}
    orders[NV0] = orders.get(NV0, std).replace("P0", "W P0")
    for t in range(8):
        cur, nxt = SS[t & 1], SS[(t + 1) & 1]
        fl, lq = flush_ops(), load_q()
        for tok in orders.get(t, std).split():
            if tok[0] == "e": a(e(cur, int(tok[1:])))
            elif tok[0] == "c": a(c(cur, int(tok[1:])))
            elif tok == "P1": a(PV((t - 1) & 7, 1, nxt))
            elif tok == "P0": a(PV(t, 0, cur, zero=(t == 0)))
            elif tok == "QK": a(QK((t + 1) & 7, nxt))
            elif tok == "W":
                a(f"s_cbranch_vccnz L_vs0")
                a.label(f"L_vr0")
            elif tok == "G": a("s_waitcnt lgkmcnt(0)")
            elif tok == "F": a("\n".join(fl.pop(0)))
            elif tok == "L": a(lq.pop(0))
            elif tok == "R":
                a(f"""s_waitcnt lgkmcnt(0)
                v_readlane_b32 s{sAH}, v{vT}, 32
                s_setprio 0
                s_bitcmp1_b32 s{sAH}, s{sPB}
                s_cbranch_scc0 L_yield
                s_setprio 2""")
                a.label("L_yield")
            elif tok == "U":
                a(f"s_cbranch_scc1 L_keep\ns_setprio 1")
                a.label("L_keep")
            elif tok == "X":
                a(f"s_add_u32 s{sOOF}, s{sOOF}, {OST}")
                if opt.get("qts"):
                    a("s_memtime s[96:97]\ns_waitcnt lgkmcnt(0)")
                    for i in range(1, 8): a(f"s_mov_b32 s{TS0+2*i}, s{TS0+2*i+2}")
                    a(f"s_sub_u32 s{TS0+16}, s96, s{TS0+26}")
                a(f"s_cmp_lt_u32 s{sOOF}, {OACC + 7 * OST}")
    a("s_cbranch_scc1 L_atop")
    if not opt.get("qts"): TS(7)
    a("s_setprio 2")
    a(PV(7, 1, S1))
    a("s_nop 11")
    for x in flush_ops(): a("\n".join(x))
    if opt.get("delay_f1", 0) > 8:
        a(f"v_mov_b32 v4, {GC}")
        lds_inc(C_ABAR, 4, 5)
    if ts:
        a(f"s_memtime {sr(TS0+28,2)}\ns_waitcnt lgkmcnt(0)\ns_sub_u32 s{TS0+28}, s{TS0+28}, s{TS0+26}")
    TS(9)
    ts_dump()
    a("s_endpgm")
    a.label("L_vs0")
    a(f"s_waitcnt vmcnt(1)\ns_cmp_lt_u32 s{sW}, {3 if TC else 0}\ns_cbranch_scc1 L_vs1\ns_waitcnt vmcnt(0)")
    a.label("L_vs1")
    for t in range(NV0, 8): vswap(t)
    a(f"""s_sub_u32 s{sOOF}, s{sOOF}, {OST}
    s_add_u32 s{sINC}, s{sPB}, 1023
    s_lshl_b32 s{sINC}, s{sINC}, 20
    s_sub_u32 s{sA}, 20, s{sPB}
    s_lshl_b32 s{sA}, 1, s{sA}
    s_add_u32 s{sINC}, s{sINC}, s{sA}
    s_mov_b64 vcc, 0
    s_branch L_vr0""")

    a(".p2align 6")
    a.label("L_gwave")
    role[0] = "G"
    gGC, gL16, gSW, gTR, gH, gR = 1, 2, 3, 4, 5, 6
    a(f"""s_setprio 3
    s_sub_u32 s{sI}, s{sW}, 8
    v_lshlrev_b32 v{gL16}, 4, v0
    v_lshlrev_b32 v10, {PFS}, v0
    s_sub_u32 s{sE}, s{sI}, 1
    s_waitcnt lgkmcnt(0)
    s_cmp_lg_u32 s{sI}, 0
    s_cbranch_scc1 L_g123""")
    a(f"""s_cmp_eq_u32 s{sCH}, 0
    s_cselect_b32 s{rW}, s{pWK}, s{pWV}
    s_cselect_b32 s{rW+1}, s{pWK+1}, s{pWV+1}
    s_mov_b32 s{rW+2}, 16384
    s_mov_b32 s{rW+3}, 0x20000""")
    for q in range(4):
        a(f"s_mov_b32 m0, {WKV + q * 4096}\ns_mov_b32 s{sA}, {q*4096}")
        for j in range(4): a(f"buffer_load_dwordx4 v{gL16}, {sr(rW,4)}, s{sA} offen offset:{j*1024} lds")
    a("s_branch L_gcom")
    a.label("L_g123")
    srd(rW, pWQ, 0x80000)
    if TQ == 1:
        a(f"s_cmp_eq_u32 s{sI}, 3\ns_cbranch_scc1 L_gcom")
        l2_prefetch(rW, 0x80000, 10, 6, sE, 2)
    if TQ == 2:
        a(f"s_cmp_lg_u32 s{sI}, 1\ns_cbranch_scc1 L_gcom")
        a(f"s_mov_b64 exec, 0xffff\ns_lshl_b32 s{sF}, s2, 11\nbuffer_load_dword v6, v10, {sr(rW,4)}, s{sF} offen\ns_mov_b64 exec, -1")
    a.label("L_gcom")
    srd(rWS, pWS, WS_BYTES)
    srd(rT, pDBG, 256)
    a(f"""s_lshr_b32 s{sRT}, s{sI}, 1
    s_and_b32 s{sCT}, s{sI}, 1
    v_lshrrev_b32 v7, 3, v0
    v_lshrrev_b32 v8, 2, v0
    v_and_b32 v8, 4, v8
    v_and_b32 v9, 7, v0
    v_xor_b32 v8, v8, v9
    v_lshlrev_b32 v8, 4, v8
    v_lshl_add_u32 v{gSW}, v7, 10, v8
    v_mov_b32 v{gGC}, {GC}
    v_lshrrev_b32 v{gH}, 5, v0
    v_and_b32 v7, 3, v0
    v_and_b32 v8, 16, v0
    v_lshlrev_b32 v8, 1, v8
    v_lshl_add_u32 v{gTR}, v7, 3, v8
    s_cmp_eq_u32 s{sI}, 0
    s_cbranch_scc1 L_g0""")
    a(f"""s_mul_i32 s{sE}, s{sE}, 26
    s_lshl_b32 s{sB}, s{sE}, 13
    s_lshl_b32 s{sC}, s{sG}, 7
    s_add_u32 s{sB}, s{sB}, s{sC}
    s_lshl_b32 s{sA}, s{sE}, 10
    s_add_u32 s{sA}, s{sA}, {RING}
    s_add_u32 s{sD}, s{sA}, {26*1024}
    s_min_u32 s{sD}, s{sD}, {RING + 65536}
    s_setprio 0
    s_barrier
    s_cmp_lg_u32 s{sI}, 3
    s_cbranch_scc1 L_wqloop
    s_setprio 3
    s_mov_b32 s{sCAP}, 0""")
    a.label("L_epoch")
    a(f"""buffer_load_dwordx2 v[14:15], off, {sr(rT,4)}, 0 sc1
    s_add_u32 s{sCAP}, s{sCAP}, 1
    s_cmp_gt_u32 s{sCAP}, {SPIN_CAP}
    s_cbranch_scc1 L_wqloop
    s_waitcnt vmcnt(0)
    v_readfirstlane_b32 s{sEP+1}, v15
    s_nop 0
    s_cmp_eq_u32 s{sEP+1}, 0
    s_cbranch_scc1 L_epoch
    ds_write_b64 v{gGC}, v[14:15] offset:{C_EPOCH}""")
    TS(1)
    a.label("L_wqloop")
    a(f"""s_mov_b32 m0, s{sA}
    s_add_u32 s{sA}, s{sA}, 1024
    buffer_load_dwordx4 v{gSW}, {sr(rW,4)}, s{sB} offen lds
    s_add_u32 s{sB}, s{sB}, 8192
    s_cmp_lt_u32 s{sA}, s{sD}
    s_cbranch_scc1 L_wqloop
    s_setprio 3""")
    a(f"""s_cmp_eq_u32 s{sI}, 1
    s_cselect_b32 s{rW}, s{pB1}, s{pB2}
    s_cselect_b32 s{rW+1}, s{pB1+1}, s{pB2+1}
    s_mov_b32 s{rW+2}, 1024
    s_cselect_b32 s{rW+2}, {W1P}, s{rW+2}
    buffer_load_dword v6, v10, {sr(rW,4)}, 0 offen
    s_waitcnt vmcnt(1)""")
    lds_inc(C_WQ, gGC, 7)
    a("s_branch L_gb2")
    a.label("L_g0")
    WF, XF, DD = 32, 96, 160
    a(f"""s_cmp_lg_u32 s2, 0
    s_cbranch_scc1 L_noep
    v_mov_b32 v10, s{sM}
    v_mov_b32 v11, s{sM+1}
    v_or_b32 v11, 0x80000000, v11
    v_mov_b64 v[12:13], 0
    s_mov_b64 exec, 1
    buffer_atomic_cmpswap_x2 v[10:13], off, {sr(rT,4)}, 0 sc1
    s_mov_b64 exec, -1
    s_nop 0""")
    a.label("L_noep")
    a("s_barrier")
    a(f"""v_and_b32 v7, 15, v0
    v_lshrrev_b32 v8, 4, v0
    v_lshlrev_b32 v9, 3, v7
    v_lshl_add_u32 v9, v8, 8, v9
    v_add_u32 v9, {WKV}, v9
    s_lshl_b32 s{sA}, s{sKG}, 14
    v_xor_b32 v10, v7, v8
    v_lshlrev_b32 v10, 4, v10
    v_lshl_add_u32 v10, v7, 10, v10
    v_add_u32 v10, s{sA}, v10
    v_xor_b32 v11, 64, v10
    v_xor_b32 v12, 0x80, v10
    v_xor_b32 v13, 0xc0, v10
    s_lshl_b32 s{sA}, s{sKG}, 6
    s_add_u32 s{sA}, s{sA}, {RSTD}
    v_lshl_add_u32 v20, v7, 2, s{sA}
    v_lshl_add_u32 v21, v8, 4, s{sA}
    s_cmp_eq_u32 s{sCH}, 0
    s_cselect_b32 s{sD}, {KF}, {VF}
    v_and_b32 v16, 1, v8
    v_lshlrev_b32 v16, 9, v16
    v_lshrrev_b32 v17, 1, v8
    v_lshl_add_u32 v16, v17, 3, v16
    v_lshl_add_u32 v16, v7, 4, v16
    s_xor_b32 s{sA}, s{sKG}, s{sCH}
    s_and_b32 s{sA}, s{sA}, 1
    s_lshl_b32 s{sA}, s{sA}, 8
    s_add_u32 s{sD}, s{sD}, s{sA}
    s_lshl_b32 s{sA}, s{sRB}, 1
    s_lshr_b32 s{sB}, s{sKG}, 1
    s_add_u32 s{sA}, s{sA}, s{sB}
    s_lshl_b32 s{sA}, s{sA}, 10
    s_add_u32 s{sD}, s{sD}, s{sA}
    s_lshl_b32 s{sA}, s{sRB}, 3
    s_add_u32 s{sA}, s{sA}, s{sG}
    s_lshl_b32 s{sA}, s{sA}, 7
    s_add_u32 s{sA}, s{sA}, {FLG_KV}
    s_waitcnt vmcnt(0)""")
    for ks in range(16):
        a(f"ds_read_b64_tr_b16 {vr(WF+4*ks,2)}, v9 offset:{ks*1024}\nds_read_b64_tr_b16 {vr(WF+4*ks+2,2)}, v9 offset:{ks*1024+128}")
    TS(1)
    lds_spin(C_L0, 8, gGC, 14, sleep=0)
    TS(2)
    for ks in range(16):
        a(f"ds_read_b128 {vr(XF+4*ks,4)}, v{10+(ks&3)} offset:{(ks>>2)*256}")
    a(f"""s_cmp_eq_u32 s{sCH}, 0
    s_cbranch_scc0 L_vchain""")
    for sw in (False, True):
        if sw: a.label("L_vchain")
        for ks in range(16):
            A_, B_ = (XF, WF) if sw else (WF, XF)
            if ks % 4 == 0: a(f"s_waitcnt lgkmcnt({12 - ks})")
            if ks == 12: a(f"ds_read_b128 v[24:27], v21" if sw else "ds_read_b32 v24, v20")
            a(f"v_mfma_f32_16x16x32_bf16 {vr(DD,4)}, {vr(A_+4*ks,4)}, {vr(B_+4*ks,4)}, {'0' if ks == 0 else vr(DD,4)}")
        if not sw: a("s_waitcnt lgkmcnt(0)\nv_mov_b32 v25, v24\nv_mov_b64 v[26:27], v[24:25]\ns_branch L_kvst")
    a("s_waitcnt lgkmcnt(0)\ns_nop 2")
    a.label("L_kvst")
    a(f"""s_nop 3
    v_pk_mul_f32 {vr(DD,2)}, {vr(DD,2)}, v[24:25]
    v_pk_mul_f32 {vr(DD+2,2)}, {vr(DD+2,2)}, v[26:27]
    v_cvt_pk_bf16_f32 v18, v{DD}, v{DD+1}
    v_cvt_pk_bf16_f32 v19, v{DD+2}, v{DD+3}
    buffer_store_dwordx2 v[18:19], v16, {sr(rWS,4)}, s{sD} offen sc1""")
    TS(13)
    lds_spin(C_EPOCH + 4, 1, gGC, 14, sleep=0)
    a(f"""ds_read_b64 v[20:21], v{gGC} offset:{C_EPOCH}
    s_getreg_b32 s{sD}, hwreg(HW_REG_XCC_ID)
    v_mov_b32 v22, s{sD}
    v_mov_b32 v23, 0
    s_mov_b64 exec, 1
    s_waitcnt vmcnt(0) lgkmcnt(0)
    buffer_store_dwordx4 v[20:23], off, {sr(rWS,4)}, s{sA} sc1
    s_mov_b64 exec, -1""")
    TS(3)
    a.label("L_gb2")
    QA, QW, QX = 8, 24, 152
    a(f"""v_bfe_u32 v9, v0, 2, 2
    v_lshrrev_b32 v8, 1, v9
    v_xor_b32 v8, s{sCT}, v8
    v_lshl_add_u32 v8, v8, 6, v{gTR}
    v_lshl_add_u32 v8, v9, 7, v8
    v_lshl_add_u32 v8, v{gH}, 10, v8
    v_add_u32 v8, {RING}, v8""")
    lds_spin(C_WQ, 3, gGC, 7, sleep=0)
    kord = [aa + 8 * b for aa in range(8) for b in range(4)]
    for n, ks in enumerate(kord):
        a(f"ds_read_b64_tr_b16 {vr(QW+4*n,2)}, v8 offset:{ks*2048}\nds_read_b64_tr_b16 {vr(QW+4*n+2,2)}, v8 offset:{ks*2048+512}")
    a(f"""v_and_b32 v7, 31, v0
    v_and_b32 v9, 15, v0
    v_xor_b32 v9, v9, v{gH}
    v_lshlrev_b32 v9, 4, v9
    v_lshl_add_u32 v7, v7, 10, v9
    s_lshl_b32 s{sC}, s{sRT}, 15
    v_add_u32 v7, s{sC}, v7""")
    sRNG = 35
    sT1, sT2, sNG = 0, 1, sE
    sN, sSO = sA, sB
    srd(rW, pW1, 512 * W1P)
    a(f"""s_lshl_b32 s{sT1}, s{sG}, 2
    s_add_u32 s{sT1}, s{sT1}, s{sI}
    s_sub_u32 s{sT2}, 1, s{sRT}
    s_lshl_b32 s{sT2}, s{sT2}, 3
    s_add_u32 s{sT2}, s{sT2}, s{sG}
    s_add_u32 s{sT2}, s{sT2}, 32
    s_cmp_lt_u32 s{sT2}, 43
    s_cselect_b32 s{sNG}, 12, 8
    s_mul_i32 s{sRNG}, s{sI}, {RSZ}
    s_add_u32 s{sRNG}, s{sRNG}, {RING}
    s_lshl_b32 s{sSO}, s{sT1}, 6
    v_lshrrev_b32 v9, 2, v0
    v_and_b32 v10, 3, v0
    v_mul_u32_u24 v9, {W1P}, v9
    s_waitcnt vmcnt(1)
    s_cmp_eq_u32 s{sI}, 0
    s_cbranch_scc1 L_nov6
    s_waitcnt vmcnt(0)""")
    a.label("L_nov6")
    a(f"""v_lshl_add_u32 v6, v10, 4, v9
    s_waitcnt lgkmcnt(0)""")
    TS(12)
    a("s_barrier")
    TS(4)
    land = {}
    def xread(n, dst):
        aa, b = n >> 2, n & 3
        if b == 0 and aa > 0: a(f"v_xor_b32 v7, {((aa ^ (aa - 1)) * 32)}, v7")
        a(f"ds_read_b128 {vr(dst,4)}, v7 offset:{b*256}")
        land[n] = dst
    for n in range(4): xread(n, QX + 4 * n)
    nxt_rd = 4
    for n in range(32):
        a(f"s_waitcnt lgkmcnt({nxt_rd - n - 1})")
        a(f"{MF32} {vr(QA,16)}, {vr(QW+4*n,4)}, {vr(land[n],4)}, {'0' if n == 0 else vr(QA,16)}")
        if nxt_rd < 32: xread(nxt_rd, land[n]); nxt_rd += 1
        if n < 5 and nxt_rd < 32: xread(nxt_rd, QW + 4 * n); nxt_rd += 1
    gRS = 166
    if opt.get("pro"): TS(9)
    lds_spin(C_RS, 8, gGC, 26, sleep=0)
    if opt.get("pro"): TS(10)
    a(f"""v_and_b32 v7, 31, v0
    v_lshlrev_b32 v26, 2, v7
    v_add_u32 v26, {RSTD}, v26
    ds_read_b64 v[24:25], v{gGC} offset:{C_EPOCH}
    ds_read_b32 v{gRS}, v26
    ds_read_b32 v{gRS+1}, v26 offset:128
    s_lshl_b32 s{sA}, s{sCT}, 2
    s_add_u32 s{sA}, s{sA}, s{sRT}
    s_mul_i32 s{sA}, s{sA}, {QST}
    s_add_u32 s{sA}, s{sA}, {QF}
    v_add_u32 v27, s{sA}, v{gL16}
    s_cmp_eq_u32 s{sRT}, 0
    s_cselect_b64 vcc, -1, 0
    s_waitcnt lgkmcnt(0)
    v_readfirstlane_b32 s{sEP}, v24
    v_cndmask_b32 v28, v{gRS+1}, v{gRS}, vcc
    v_readfirstlane_b32 s{sEP+1}, v25
    v_mul_f32 v28, 0x3eb8aa3b, v28""")
    for j in range(8): a(f"v_pk_mul_f32 {vr(QA+2*j,2)}, {vr(QA+2*j,2)}, v[28:29] op_sel_hi:[1,0]")
    for j in range(8): a(f"v_cvt_pk_bf16_f32 v{QA+j}, v{QA+2*j}, v{QA+2*j+1}")
    a(f"""ds_write_b128 v27, {vr(QA,4)}
    ds_write_b128 v27, {vr(QA+4,4)} offset:{2*QST}""")
    lds_inc(C_QREADY, gGC, 26)
    TS(5)
    AC = [136, 104, 120, 88]
    XB = 136
    vB1, gXA, gXT, gWA, gWB, gV1 = 8, 16, 17, 18, 19, 20
    a(f"""v_mov_b32 v{gV1}, v6
    v_add_u32 v{gV1+1}, {128*W1P-1024}, v6
    v_add_u32 v{gV1+2}, {2*(128*W1P-1024)}, v6
    v_add_u32 v{gV1+3}, {3*(128*W1P-1024)}, v6""")
    def w1_dma1(b): return f"buffer_load_dwordx4 v{gV1+b}, {sr(rW,4)}, s{sSO} offen offset:{b*1024} lds"
    lds_spin(C_KV, opt.get("kvgate", 8), gGC, 56, sleep=2) if opt.get("kvgate", 8) else None
    if opt.get("delay_f1"): lds_spin(C_ABAR, 16, gGC, 56, sleep=16)
    TS(15)
    late[0] = True
    for n in range(3):
        a(f"s_add_u32 m0, s{sRNG}, {n*4096}\ns_nop 0")
        for b in range(4): a(w1_dma1(b))
        a(f"s_add_u32 s{sSO}, s{sSO}, {16*W1P}")
    a(f"""v_lshlrev_b32 v40, 1, v7
    s_lshl_b32 s{sA}, s{sT1}, 6
    s_lshl_b32 s{sD}, s{sT2}, 6""")
    srd(rT, pB1, W1P)
    a(f"""buffer_load_ushort v8, v40, {sr(rT,4)}, s{sA} offen
    buffer_load_ushort v15, v40, {sr(rT,4)}, s{sD} offen
    v_and_b32 v40, 7, v0
    v_lshlrev_b32 v40, 7, v40
    s_lshl_b32 s{sC}, s{sRB}, 10
    s_add_u32 s{sC}, s{sC}, {FLG_KV}
    buffer_load_dword v{AC[0]+2}, v40, {sr(rWS,4)}, s{sC} offen offset:8 sc1
    s_sub_u32 s{sD}, s{sD}, s{sA}
    s_lshl_b32 s{sD}, s{sD}, 6
    v_mul_lo_u32 v41, v{gH}, s{sD}
    v_lshl_add_u32 v41, v7, 7, v41
    s_mul_i32 s{sC}, s{sRB}, {86*2048}
    s_lshl_b32 s{sA}, s{sA}, 6
    s_add_u32 s{sC}, s{sC}, s{sA}
    s_add_u32 s{sC}, s{sC}, {HF}
    {f"buffer_load_dword v{AC[0]+3}, v41, {sr(rWS,4)}, s{sC} offen sc1" if HLOC == 2 else ""}
    v_lshlrev_b32 v41, 7, v7
    v_lshl_add_u32 v41, v{gH}, 15, v41
    s_lshl_b32 s{sC}, s{sRB}, 16
    s_lshl_b32 s{sA}, s{sG}, 12
    s_add_u32 s{sC}, s{sC}, s{sA}
    s_add_u32 s{sC}, s{sC}, {OF}
    v_lshl_add_u32 v40, v{gH}, 15, v40
    s_lshl_b32 s{sA}, s{sRB}, 10
    s_add_u32 s{sA}, s{sA}, {FLG_H}
    s_cmp_eq_u32 s{sCT}, 0
    s_cselect_b32 s{sC}, s{sC}, s{sA}
    s_cselect_b64 vcc, -1, 0
    v_cndmask_b32 v41, v40, v41, vcc
    buffer_load_dword v{AC[0]+3}, v41, {sr(rWS,4)}, s{sC} offen sc1
    v_and_b32 v44, 15, v0
    v_xor_b32 v44, v44, v{gH}
    v_lshlrev_b32 v44, 4, v44
    v_lshl_add_u32 v{gXA}, v7, 10, v44
    v_bfe_u32 v44, v0, 2, 2
    v_lshl_add_u32 v{gWB}, v44, 6, v{gTR}
    v_lshl_add_u32 v{gWB}, v{gH}, 9, v{gWB}
    v_add_u32 v{gWB}, s{sRNG}, v{gWB}""")
    a(f"""v_rcp_f32 v44, v{gRS}
    v_rcp_f32 v45, v{gRS+1}
    v_sub_u32 v48, v{gH}, 1
    s_mov_b32 s{sD}, 0xffff0000
    v_and_b32 v46, s{sD}, v44
    v_and_b32 v47, s{sD}, v45
    v_sub_f32 v44, v44, v46
    v_sub_f32 v45, v45, v47
    v_cvt_pk_bf16_f32 v12, v46, v44
    v_cvt_pk_bf16_f32 v14, v47, v45
    v_and_b32 v12, v48, v12
    v_and_b32 v14, v48, v14
    v_mov_b32 v9, 0
    v_mov_b64 v[10:11], 0
    v_mov_b32 v13, 0""")
    H0, H1 = 104, 120
    FB = [24, 56]
    FX = [88, 150]
    FX = [88, 152]
    def f1_reads(p, b):
        nx = 4 if not (p == 1 and b == 3) else 4
        return [f"ds_read_b64_tr_b16 {vr(FB[p]+8*b,2)}, v{gWA} offset:{b*1024}", f"ds_read_b64_tr_b16 {vr(FB[p]+8*b+2,2)}, v{gWA} offset:{b*1024+256}",
                f"ds_read_b128 {vr(FB[p]+8*b+4,4)}, v{gXT} offset:{b*256}", f"ds_read_b128 {vr(FX[p]+4*b,4)}, v{gXT} offset:{b*256+32768}"]
    gR2 = 6
    def bias():
        a(f"{MF32} {vr(H0,16)}, v[8:11], v[12:15], {vr(H0,16)}\n{MF32} {vr(H1,16)}, v[8:11], v[14:17], {vr(H1,16)}")
    def hzero():
        a(f"v_mfma_f32_32x32x8_bf16 {vr(H0,16)}, v[10:11], v[10:11], 0\nv_mfma_f32_32x32x8_bf16 {vr(H1,16)}, v[10:11], v[10:11], 0")
    a(f"""v_mul_f32 v{gR2}, v{gRS}, v{gRS}
    v_mul_f32 v{gR2+1}, v{gRS+1}, v{gRS+1}
    v_mov_b32 v{gWA}, v{gWB}
    v_mov_b32 v{gXT}, v{gXA}
    s_mov_b32 s{sN}, 0
    s_mov_b32 s{sM}, 0""")
    hzero()
    plan_lo = [(0, 22, 0, 22), (22, 22, 64, 68), (40, 21 + 128, 68, 77), (52, 21 + 128, 77, 86)]
    plan_hi = [(0, 26, 64, 72), (18, 26, 72, 80), (36, 18 + 128, 80, 86), (48, 16, 0, 64)]
    def pack(b): return sum(x << (8 * i) for i, x in enumerate(b))
    sPL, sSW, sS2 = 18, 19, 10
    a(f"s_mul_i32 s{sS2}, s{sCT}, {64*W1P}\ns_lshl_b32 s{sD}, s{sT2}, 6\ns_add_u32 s{sS2}, s{sS2}, s{sD}")
    a(f"s_mov_b32 s{sPL}, {pack(plan_hi[0])}")
    a(f"s_cmp_lt_u32 s{sG}, 3\ns_cselect_b32 s{sD}, 4, 0\ns_add_u32 s{sD}, s{sD}, s{sI}")
    for n, pl in enumerate(plan_hi + plan_lo):
        if n: a(f"s_cmp_eq_u32 s{sD}, {n}\ns_cselect_b32 s{sPL}, {pack(pl)}, s{sPL}")
    a(f"""s_lshr_b32 s{sD}, s{sPL}, 24
    s_mov_b32 s{rX}, s{pW2}
    s_mov_b32 s{rX+1}, s{pW2+1}
    s_lshl_b32 s{rX+2}, s{sD}, 14
    s_mov_b32 s{rX+3}, 0x20000
    s_and_b32 s{sSW}, s{sPL}, 0xff
    s_lshl_b32 s{sSW}, s{sSW}, 14
    s_lshl_b32 s{sD}, s{sG}, 7
    s_add_u32 s{sSW}, s{sSW}, s{sD}""")
    a(f"s_waitcnt vmcnt({13 if HLOC == 2 else 12})")
    for b in range(4):
        for l in f1_reads(0, b): a(l)
    TS(3)
    a(".p2align 6")
    a.label("L_f1loop")
    for p in range(2):
        a(f"""s_add_u32 m0, s{sM}, s{sRNG}
        s_add_u32 s{sM}, s{sM}, 4096
        s_cmp_lt_u32 s{sM}, {RSZ}
        s_cselect_b32 s{sM}, s{sM}, 0
        s_add_u32 s{sN}, s{sN}, 1
        s_lshr_b32 s{sD}, s{sN}, 3
        s_and_b32 s{sD}, s{sD}, s{sCT}
        s_lshl_b32 s{sD}, s{sD}, 2
        s_add_u32 s{sD}, s{sD}, s{sN}
        s_and_b32 s{sD}, s{sD}, 7
        s_lshl_b32 s{sD}, s{sD}, 5
        v_add_u32 v{gWA}, s{sM}, v{gWB}
        v_xor_b32 v{gXT}, s{sD}, v{gXA}""")
        if p == 1:
            a(f"""s_cmp_eq_u32 s{sN}, 6
            s_cselect_b32 s{sSO}, s{sS2}, s{sSO}
            s_add_u32 s{sD}, s{sN}, 2
            s_cmp_lt_u32 s{sD}, s{sNG}
            s_cselect_b32 s{rW+2}, s{rW+2}, 0""")
        for b in range(4):
            rd = f1_reads(1 - p, b)
            if not opt.get("x_nolg"): a("s_waitcnt lgkmcnt(12)")
            a(f"{MF32} {vr(H0,16)}, {vr(FB[p]+8*b,4)}, {vr(FB[p]+8*b+4,4)}, {vr(H0,16)}")
            a(w1_dma1(b))
            a(rd[2]); a(rd[3])
            pad(P1A)
            a(f"{MF32} {vr(H1,16)}, {vr(FB[p]+8*b,4)}, {vr(FX[p]+4*b,4)}, {vr(H1,16)}")
            if not opt.get("x_novm"): a("s_waitcnt vmcnt(8)")
            a(rd[0]); a(rd[1])
            if b < 3: pad(P1B)
        a(f"s_add_u32 s{sSO}, s{sSO}, {16*W1P}")
    a(f"""s_cmp_lt_u32 s{sN}, 8
    s_cbranch_scc1 L_f1loop
    s_cmp_eq_u32 s{sN}, 10
    s_cbranch_scc1 L_f1pub""")
    TS(2)
    a(f"""s_getreg_b32 s{sD}, hwreg(HW_REG_XCC_ID)
    v_lshl_or_b32 v8, v8, 16, v8
    v_cmp_ne_u32 vcc, s{sD}, v{AC[0]+2}
    s_mul_i32 s{sD}, s{sRB}, 86
    s_lshl_b32 s{sC}, s{sT1}, 1
    s_add_u32 s{sD}, s{sD}, s{sC}
    s_lshl_b32 s{sD}, s{sD}, 11
    s_add_u32 s{sD}, s{sD}, {HF}
    s_mov_b32 s{sT1}, s{sT2}
    s_cmp_eq_u64 vcc, 0
    s_cselect_b32 s{sLOC}, {0 if opt.get("noloc") else 1}, 0
    s_cmp_eq_u32 s{sN}, 12
    s_cbranch_scc1 L_half""")
    bias()
    a(f"v_mov_b32 v8, v15\ns_nop 9")
    for rt, Hh in enumerate((H0, H1)):
        a.label(f"L_epi{rt}")
        for j in range(16): a(f"v_max_f32 v{Hh+j}, 0, v{Hh+j}")
        for j in range(8): a(f"v_pk_mul_f32 {vr(Hh+2*j,2)}, {vr(Hh+2*j,2)}, {vr(Hh+2*j,2)}")
        sel = "op_sel_hi:[1,0]" if rt == 0 else "op_sel:[0,1] op_sel_hi:[1,1]"
        for j in range(8): a(f"v_pk_mul_f32 {vr(Hh+2*j,2)}, {vr(Hh+2*j,2)}, {vr(gR2,2)} {sel}")
        for j in range(8): a(f"v_cvt_pk_bf16_f32 v{Hh+j}, v{Hh+2*j}, v{Hh+2*j+1}")
        hst = [f"buffer_store_dwordx4 {vr(Hh+4*s_,4)}, v{gL16}, {sr(rWS,4)}, s{sD} offen offset:{s_*2048+rt*1024}" for s_ in range(2)]
        if HLOC: grp_store(hst)
        else:
            for l in hst: a(l + " sc1")
        if rt == 0: a(f"s_cmp_eq_u32 s{sN}, 12\ns_cbranch_scc1 L_epid")
    a.label("L_epid")
    gSW2 = 22
    D2 = RSZ // 2048
    def w2_dma(u):
        a(f"""s_add_u32 m0, s{sRNG}, {u*2048}
        s_nop 0
        buffer_load_dwordx4 v{gSW}, {sr(rX,4)}, s{sSW} offen lds
        buffer_load_dwordx4 v{gSW2}, {sr(rX,4)}, s{sSW} offen offset:1024 lds
        s_add_u32 s{sSW}, s{sSW}, 16384""")
    PT = AC[0]
    a("s_nop 0")
    hzero()
    a(f"""s_cmp_lt_u32 s{sN}, s{sNG}
    s_cbranch_scc1 L_f1loop
    v_add_u32 v{gSW2}, {8192-1024}, v{gSW}
    s_cmp_eq_u32 s{sN}, 8
    s_cbranch_scc1 L_f1fill""")
    lds_spin(C_PX, 4, 26, 27, sleep=0)
    a.label("L_f1fill")
    for u in range(D2): w2_dma(u)
    a(f"s_waitcnt vmcnt({2*D2})")
    a.label("L_f1pub")
    a(f"""s_cmp_lt_u32 s{sN}, 12
    s_cselect_b32 s{sD}, 1, 16
    v_mov_b32 v{PT}, s{sD}
    s_mov_b64 exec, 1
    ds_add_rtn_u32 v{PT+1}, v{gGC}, v{PT} offset:{C_HDONE}
    s_mov_b64 exec, -1
    s_lshl_b32 s{sC}, s{sRB}, 3
    s_add_u32 s{sC}, s{sC}, s{sG}
    s_lshl_b32 s{sC}, s{sC}, 7
    s_lshr_b32 s{sD}, s{sD}, 1
    s_add_u32 s{sC}, s{sC}, s{sD}
    s_add_u32 s{sC}, s{sC}, {FLG_H}
    s_cmp_lt_u32 s{sG}, 3
    s_cselect_b32 s{sCAP}, 3, 1
    s_cmp_lt_u32 s{sN}, 12
    s_cselect_b32 s{sCAP}, 3, s{sCAP}
    s_cselect_b32 s{sD}, 0, 4
    s_waitcnt lgkmcnt(0)
    v_readfirstlane_b32 s{sF}, v{PT+1}
    s_nop 0
    s_lshr_b32 s{sF}, s{sF}, s{sD}
    s_and_b32 s{sF}, s{sF}, 15
    s_cmp_lg_u32 s{sF}, s{sCAP}
    s_cbranch_scc1 L_nohflag""")
    flag_store(sC, PT)
    a.label("L_nohflag")
    a(f"""s_cmp_eq_u32 s{sN}, 10
    s_cbranch_scc1 L_f1loop""")
    TS(6)
    sK0, sK1, sSH, sXC = 0, 1, sC, sB
    gA0, gA1, gHO0, gHO1, gFL, gWO = 8, 9, 10, 11, 12, 13
    gCN, gOA, gLA, gCV = 16, 17, 18, 19
    HR = 24
    AF = [152, 160]
    WOF, FA = 88, 72
    OFR = [[56, 60, 64, 68, 152, 156, 160, 164], [24 + 4 * gp for gp in range(8)]]
    sKT, sWM, sWS = 12, 13, 26
    sHB, sFH, sNF, sPF, sRET, sLOOP = 8, 9, 10, 11, 14, 20
    def ev_set():
        a(f"""s_mul_i32 s{sA}, s{sNF}, {OST}
        s_add_u32 s{sA}, s{sA}, {OACC}
        v_mov_b32 v{gCN}, s{sA}
        v_lshrrev_b32 v{gOA}, 1, v{gL16}
        v_and_b32 v{gLA}, 0xff, v{gOA}
        v_add_u32 v{gOA}, s{sA}, v{gOA}
        v_add_u32 v{gLA}, s{sA}, v{gLA}""")
    def o_flag():
        a(f"""s_lshl_b32 s{sA}, s{sRB}, 3
        s_add_u32 s{sA}, s{sA}, s{sG}
        s_lshl_b32 s{sA}, s{sA}, 4
        s_add_u32 s{sA}, s{sA}, s{sPF}
        s_lshl_b32 s{sA}, s{sA}, 3
        s_add_u32 s{sA}, s{sA}, {FLG_O}
        s_mov_b32 s{sPF}, s{sNF}""")
    srd(rW, pX, 0x200000)
    srd(rT, pB2, 1024)
    a(f"""v_and_b32 v41, 31, v0
    v_lshlrev_b32 v40, 4, v{gH}
    v_lshl_add_u32 v40, v41, 10, v40
    v_lshlrev_b32 v41, 1, v41
    s_lshl_b32 s{sA}, s{sG}, 7
    s_lshl_b32 s{sD}, s{sCT}, 6
    s_add_u32 s{sA}, s{sA}, s{sD}
    s_lshl_b32 s{sD}, s{sRB}, 16
    s_lshl_b32 s{sC}, s{sRT}, 15
    s_add_u32 s{sD}, s{sD}, s{sC}
    s_add_u32 s{sD}, s{sD}, s{sA}
    buffer_load_dwordx4 v[24:27], v40, {sr(rW,4)}, s{sD} offen
    buffer_load_dwordx4 v[28:31], v40, {sr(rW,4)}, s{sD} offen offset:32
    buffer_load_ushort v76, v41, {sr(rT,4)}, s{sA} offen""")
    a(f"""s_lshl_b32 s{sFH}, s{sRB}, 10
    s_add_u32 s{sFH}, s{sFH}, {FLG_H}
    v_and_b32 v{gFL}, 7, v0
    v_lshlrev_b32 v{gFL}, 7, v{gFL}
    v_bfe_u32 v{gR}, v0, 2, 2
    buffer_load_dwordx2 v[14:15], v{gFL}, {sr(rWS,4)}, s{sFH} offen sc1
    v_lshrrev_b32 v{gWO}, 1, v{gR}
    v_xor_b32 v{gWO}, s{sCT}, v{gWO}
    v_lshl_add_u32 v{gWO}, v{gWO}, 6, v{gTR}
    v_lshl_add_u32 v{gWO}, v{gR}, 7, v{gWO}
    v_lshl_add_u32 v{gWO}, v{gH}, 9, v{gWO}
    s_lshl_b32 s{sA}, s{sRT}, 10
    v_mov_b64 v[72:73], 0
    v_mov_b64 v[74:75], 0
    v_add_u32 v{gA0}, s{sRNG}, v{gWO}
    v_xor_b32 v{gA1}, 64, v{gA0}
    v_add_u32 v{gHO0}, s{sA}, v{gL16}
    v_xor_b32 v{gHO1}, 0x400, v{gHO0}""")
    a(f"{MF32} {vr(AC[3],16)}, v[72:75], v[72:75], 0")
    a(f"""v_sub_u32 v78, 1, v{gH}
    v_mov_b32 v77, 0
    v_mul_u32_u24 v78, 0x3f80, v78
    v_mov_b32 v79, 0
    s_mov_b32 s{sD}, 0xffff0000
    s_waitcnt vmcnt(1)""")
    for j in (24, 25, 28, 29): a(f"v_permlane32_swap_b32 v{j}, v{j+2}")
    for j in range(8): a(f"v_lshlrev_b32 v{AC[0]+2*j}, 16, v{24+j}\nv_and_b32 v{AC[0]+2*j+1}, s{sD}, v{24+j}")
    a(f"s_nop 1\nv_mfma_f32_32x32x8_bf16 {vr(AC[0],16)}, v[76:77], v[78:79], {vr(AC[0],16)}")
    def a_reads(u, p):
        for d, ga in enumerate((gA0, gA1)):
            a(f"ds_read_b64_tr_b16 {vr(AF[p]+4*d,2)}, v{ga} offset:{u*2048}\nds_read_b64_tr_b16 {vr(AF[p]+4*d+2,2)}, v{ga} offset:{u*2048+1024}")
    LDS_OFF = 0x30000
    a(f"""s_mul_i32 s{sHB}, s{sRB}, {86*2048}
    s_add_u32 s{sHB}, s{sHB}, {HF}
    s_and_b32 s{sSH}, s{sPL}, 0xff
    s_lshl_b32 s{sSH}, s{sSH}, 11
    s_add_u32 s{sSH}, s{sSH}, s{sHB}
    s_lshr_b32 s{sD}, s{sPL}, 24
    s_lshl_b32 s{sD}, s{sD}, 11
    s_mov_b32 s{rT}, s{pWS}
    s_mov_b32 s{rT+1}, s{pWS+1}
    s_add_u32 s{rT+2}, s{sD}, s{sHB}
    s_mov_b32 s{rT+3}, 0x20000
    s_bfe_u32 s{sK1}, s{sPL}, 0x70008
    s_sub_u32 s{sKT}, s{sK1}, {D2}
    s_mov_b32 s{rW}, s{pWO}
    s_mov_b32 s{rW+1}, s{pWO+1}
    s_lshl_b32 s{sWM}, s{sI}, 14
    s_lshl_b32 s{sWS}, s{sI}, 17
    s_add_u32 s{rW+2}, s{sWS}, 0x20000
    s_mov_b32 s{rW+3}, 0x20000
    s_lshl_b32 s{sA}, s{sG}, 7
    s_add_u32 s{sWS}, s{sWS}, s{sA}
    s_bitcmp1_b32 s{sPL}, 15
    s_cselect_b32 s27, 6, 12
    s_mov_b32 s{sK0}, 0
    s_xor_b32 s{sNF}, s{sCT}, 1
    s_lshl_b32 s{sNF}, s{sNF}, 1
    s_add_u32 s{sNF}, s{sNF}, s{sRT}
    s_mov_b32 s{sPF}, s{sNF}
    s_mov_b32 s{sLOOP}, 1""")
    ev_set()
    a(f"s_bfe_u32 s{sXC}, s{sPL}, 0x80010")
    flag_poll(gFL, sFH, 14, preissued=True, sleep=opt.get("hsleep", 2))
    TS(7)
    for u in range(D2):
        a(f"""buffer_load_dwordx4 {vr(HR+8*u,4)}, v{gHO0}, {sr(rT,4)}, s{sSH} offen sc1
        buffer_load_dwordx4 {vr(HR+8*u+4,4)}, v{gHO1}, {sr(rT,4)}, s{sSH} offen sc1
        s_add_u32 s{sSH}, s{sSH}, 2048""")
    a_reads(0, 0)
    a(f"ds_read_b32 v{gCV}, v{gCN} offset:{B_CNT}")
    a(f"s_add_u32 s{sFH}, s{sFH}, 8\ns_waitcnt vmcnt(0)")
    if opt.get("x_noh"): a(f"s_mov_b32 s{rT+2}, 0")
    if opt.get("x_now"): a(f"s_mov_b32 s{rX+2}, 0")
    TS(1)
    a(".p2align 6")
    a.label("L_f2loop")
    for u in range(D2):
        p = u & 1
        def mf(j): a(f"{MF32} {vr(AC[j],16)}, {vr(AF[p]+4*(j&1),4)}, {vr(HR+8*u+4*(j>>1),4)}, {vr(AC[j],16)}")
        a(f"s_waitcnt vmcnt({4*(D2-2)}) lgkmcnt(0)")
        mf(0)
        a_reads((u + 1) % D2, 1 - p)
        pad(P2A)
        mf(1)
        if u == 0:
            a("s_branch L_trip")
            a.label("L_tripped")
        elif u == D2 - 1: a(f"ds_read_b32 v{gCV}, v{gCN} offset:{B_CNT}")
        a(f"s_add_u32 m0, s{sRNG}, {u*2048}\ns_cmp_ge_u32 s{sK0}, s{sKT}\ns_cbranch_scc1 L_tail{u}")
        a(f"""buffer_load_dwordx4 v{gSW}, {sr(rX,4)}, s{sSW} offen lds
        buffer_load_dwordx4 v{gSW2}, {sr(rX,4)}, s{sSW} offen offset:1024 lds""")
        mf(2)
        a(f"""buffer_load_dwordx4 {vr(HR+8*u,4)}, v{gHO0}, {sr(rT,4)}, s{sSH} offen sc1
        s_add_u32 s{sSW}, s{sSW}, 16384
        s_add_u32 s{sK0}, s{sK0}, 1""")
        pad(P2C)
        mf(3)
        a(f"buffer_load_dwordx4 {vr(HR+8*u+4,4)}, v{gHO1}, {sr(rT,4)}, s{sSH} offen sc1\ns_add_u32 s{sSH}, s{sSH}, 2048")
        if u == D2 - 1: a("s_branch L_f2loop")
        else: pad(P2D)
        a.label(f"L_next{u}")
    for u in range(D2):
        p = u & 1
        a.label(f"L_tail{u}")
        for j in (2, 3):
            a(f"{MF32} {vr(AC[j],16)}, {vr(AF[p]+4*(j&1),4)}, {vr(HR+8*u+4*(j>>1),4)}, {vr(AC[j],16)}")
            if j == 2: a(f"s_call_b64 s[96:97], L_wo4")
        a(f"""s_add_u32 s{sK0}, s{sK0}, 1
        s_cmp_lt_u32 s{sK0}, s{sK1}
        s_cbranch_scc1 {"L_f2loop" if u == D2 - 1 else f"L_next{u}"}""")
        if u < D2 - 1: a("s_branch L_f2done")
    a("s_branch L_f2done")
    a.label("L_wo4")
    a(f"""s_cmp_lg_u32 s{sK0}, s{sKT}
    s_cbranch_scc1 L_wo4b
    s_cmp_lt_u32 s{sG}, 3
    s_cselect_b32 s{sD}, 68, 36""")
    lds_spin(C_HDONE, f"s{sD}", gGC, 20, sleep=1)
    a.label("L_wo4b")
    a(f"""s_cmp_ge_u32 s{sWS}, s{rW+2}
    s_cbranch_scc1 L_wo4c""")
    for _ in range(2):
        a(f"""s_mov_b32 m0, s{sWM}
        s_add_u32 s{sWM}, s{sWM}, 2048
        buffer_load_dwordx4 v{gSW}, {sr(rW,4)}, s{sWS} offen lds
        buffer_load_dwordx4 v{gSW2}, {sr(rW,4)}, s{sWS} offen offset:1024 lds
        s_add_u32 s{sWS}, s{sWS}, 16384""")
    a.label("L_wo4c")
    a(f"s_setpc_b64 s[96:97]")
    a.label("L_f2done")
    TS(8)
    sJ, sFO, sOO, sRDY = 0, 1, sB, 21
    def wo_reads():
        for gp in range(8):
            a(f"ds_read_b64_tr_b16 {vr(WOF+4*gp,2)}, v{gWO} offset:{gp*8192}\nds_read_b64_tr_b16 {vr(WOF+4*gp+2,2)}, v{gWO} offset:{gp*8192+1024}")
        a(f"v_add_u32 v{gWO}, 2048, v{gWO}")
    def o_loads(bf):
        a(f"s_mov_b32 s{sA}, s{sOO}")
        for gp in range(8):
            a(f"buffer_load_dwordx4 {vr(OFR[bf][gp],4)}, v{gL16}, {sr(rWS,4)}, s{sA} offen sc1\ns_add_u32 s{sA}, s{sA}, 4096")
        a(f"s_add_u32 s{sOO}, s{sOO}, 1024\ns_add_u32 s{sJ}, s{sJ}, 1")
    def o_mf(bf, after):
        a(f"s_waitcnt lgkmcnt(0)")
        for gp in range(8):
            a(f"s_waitcnt vmcnt({7-gp+after})\n{MF32} {vr(AC[0],16)}, {vr(WOF+4*gp,4)}, {vr(OFR[bf][gp],4)}, {vr(AC[0],16)}")
            if gp < 7: pad(PO)
    a(f"""s_lshl_b32 s{sFO}, s{sRB}, 10
    s_lshl_b32 s{sA}, s{sRT}, 3
    s_add_u32 s{sFO}, s{sFO}, s{sA}
    s_add_u32 s{sFO}, s{sFO}, {FLG_O}
    v_and_b32 v20, 24, v0
    v_lshl_add_u32 v{gFL}, v20, 1, v{gFL}
    v_add_u32 v23, s{sRNG}, v{gL16}
    buffer_load_dwordx2 v[14:15], v{gFL}, {sr(rWS,4)}, s{sFO} offen sc1
    s_lshl_b32 s{sOO}, s{sRB}, 1
    s_add_u32 s{sOO}, s{sOO}, s{sRT}
    s_lshl_b32 s{sOO}, s{sOO}, 15
    s_add_u32 s{sOO}, s{sOO}, {OF}
    s_mov_b32 s{sJ}, 0
    s_mov_b32 s{sLOOP}, 0
    s_mov_b32 s23, 0""")
    srd(rT, pOUT, 0x200000)
    a(f"""s_waitcnt vmcnt(1) lgkmcnt(0)
    s_cmp_ge_u32 s{sPF}, s{sNF}
    s_cbranch_scc1 L_nopf""")
    o_flag()
    flag_store(sA, 20)
    a.label("L_nopf")
    for j in range(1, 4):
        for q in range(4): a(f"ds_write_b128 v23, {vr(AC[j]+4*q,4)} offset:{(j-1)*4096+q*1024}")
    lds_inc(C_GBAR, gGC, 23)
    a(f"""s_waitcnt vmcnt(0)
    v_cmp_ne_u64 vcc, {sr(sEP,2)}, v[14:15]
    s_nop 1
    s_mov_b32 s{sRDY}, vcc_lo
    s_and_b32 s22, s{sRDY}, 0xffff
    s_cbranch_scc1 L_red""")
    o_loads(1)
    o_loads(0)
    a.label("L_red")
    lds_spin(C_GBAR, 4, gGC, 14, sleep=1)
    for j in range(1, 4):
        a(f"s_xor_b32 s{sA}, s{sI}, {j}\ns_mul_i32 s{sA}, s{sA}, {RSZ}\ns_add_u32 s{sA}, s{sA}, {RING}\nv_add_u32 v14, s{sA}, v{gL16}")
        for q in range(4): a(f"ds_read_b128 {vr(AC[j]+4*q,4)}, v14 offset:{(j-1)*4096+q*1024}")
    for j in range(1, 4):
        a(f"s_waitcnt lgkmcnt({(3-j)*4})")
        for q in range(8): a(f"v_pk_add_f32 {vr(AC[0]+2*q,2)}, {vr(AC[0]+2*q,2)}, {vr(AC[j]+2*q,2)}")
    wo_reads()
    TS(9)
    a(f"""s_cmp_eq_u32 s22, 0
    s_cbranch_scc1 L_pair""")
    a.label("L_ev")
    a(f"""s_cmp_ge_u32 s{sPF}, s{sNF}
    s_cbranch_scc1 L_evf""")
    o_flag()
    a("s_waitcnt vmcnt(0)")
    flag_store(sA, 14)
    TS(13)
    a.label("L_evf")
    a(f"""s_add_u32 s23, s23, 1
    s_cmp_gt_u32 s23, {SPIN_CAP}
    s_cbranch_scc1 L_gdone
    s_cmp_ge_u32 s{sNF}, 8
    s_cbranch_scc1 L_evr
    ds_read_b32 v{gCV}, v{gCN} offset:{B_CNT}
    s_waitcnt lgkmcnt(0)
    v_readfirstlane_b32 s{sA}, v{gCV}
    s_nop 0
    s_bitcmp1_b32 s{sA}, 3
    s_cbranch_scc1 L_fin""")
    a.label("L_evr")
    a(f"""s_cmp_lt_u32 s{sJ}, 4
    s_cbranch_scc1 L_evc
    s_cmp_ge_u32 s{sNF}, 8
    s_cbranch_scc1 L_gdone
    s_sleep 1
    s_branch L_evf""")
    a.label("L_evc")
    a(f"""s_lshl_b32 s{sA}, s{sJ}, 1
    s_add_u32 s{sA}, s{sA}, s{sRT}
    s_cmp_eq_u32 s{sA}, s{sNF}
    s_cbranch_scc1 L_evf
    s_lshl_b32 s{sD}, s{sJ}, 3
    s_lshr_b32 s{sA}, s{sRDY}, s{sD}
    s_and_b32 s{sA}, s{sA}, 0xff
    s_cbranch_scc0 L_cons
    buffer_load_dwordx2 v[14:15], v{gFL}, {sr(rWS,4)}, s{sFO} offen sc1
    s_waitcnt vmcnt(0)
    v_cmp_ne_u64 vcc, {sr(sEP,2)}, v[14:15]
    s_nop 1
    s_mov_b32 s{sRDY}, vcc_lo
    s_lshr_b32 s{sA}, s{sRDY}, s{sD}
    s_and_b32 s{sA}, s{sA}, 0xff
    s_cbranch_scc0 L_cons
    s_sleep {opt.get("evsleep", 2)}
    s_branch L_ev""")
    a.label("L_cons")
    TS(4)
    a(f"""s_lshr_b32 s{sA}, s{sRDY}, s{sD}
    s_and_b32 s{sA}, s{sA}, 0xffff
    s_cbranch_scc1 L_cons1
    s_cmp_eq_u32 s{sJ}, 3
    s_cbranch_scc1 L_cons1""")
    o_loads(1)
    o_loads(0)
    a.label("L_pair")
    o_mf(1, 8)
    wo_reads()
    a("s_branch L_cons2")
    a.label("L_cons1")
    o_loads(0)
    a.label("L_cons2")
    o_mf(0, 0)
    a(f"""s_cmp_ge_u32 s{sJ}, 4
    s_cbranch_scc1 L_out""")
    wo_reads()
    a("s_branch L_ev")
    a.label("L_out")
    TS(10)
    a(f"""v_and_b32 v14, 31, v0
    v_lshlrev_b32 v15, 3, v{gH}
    v_lshl_add_u32 v14, v14, 10, v15
    s_lshl_b32 s{sA}, s{sG}, 7
    s_lshl_b32 s{sD}, s{sCT}, 6
    s_add_u32 s{sA}, s{sA}, s{sD}
    s_lshl_b32 s{sD}, s{sRB}, 16
    s_add_u32 s{sA}, s{sA}, s{sD}
    s_lshl_b32 s{sD}, s{sRT}, 15
    s_add_u32 s{sA}, s{sA}, s{sD}""")
    for j in range(8): a(f"v_cvt_pk_bf16_f32 v{AC[0]+j}, v{AC[0]+2*j}, v{AC[0]+2*j+1}")
    for q in range(4): a(f"buffer_store_dwordx2 {vr(AC[0]+2*q,2)}, v14, {sr(rT,4)}, s{sA} offen offset:{16*q}")
    a("s_branch L_ev")
    a.label("L_half")
    a(f"""s_xor_b32 s{sC}, s{sI}, 1
    s_mul_i32 s{sC}, s{sC}, {RSZ}
    s_add_u32 s{sC}, s{sC}, {RING}
    s_waitcnt lgkmcnt(0)
    v_add_u32 v24, s{sRNG}, v{gL16}
    v_add_u32 v25, s{sC}, v{gL16}
    v_lshl_add_u32 v26, s{sRT}, 2, v{gGC}
    s_waitcnt vmcnt(0)
    s_cmp_eq_u32 s{sCT}, 0
    s_cbranch_scc0 L_half1""")
    for keep, (Hk, Hs) in enumerate(((H0, H1), (H1, H0))):
        if keep: a.label("L_half1")
        for q in range(4): a(f"ds_write_b128 v24, {vr(Hs+4*q,4)} offset:{q*1024}")
        a(f"{MF32} {vr(Hk,16)}, v[8:11], {'v[12:15]' if keep == 0 else 'v[14:17]'}, {vr(Hk,16)}")
        lds_inc(C_PX, 26, 27)
        lds_spin(C_PX, 2, 26, 27, sleep=0)
        for q in range(4): a(f"ds_read_b128 {vr(Hs+4*q,4)}, v25 offset:{q*1024}")
        a("s_waitcnt lgkmcnt(0)")
        lds_inc(C_PX, 26, 27)
        for q in range(8): a(f"v_pk_add_f32 {vr(Hk+2*q,2)}, {vr(Hk+2*q,2)}, {vr(Hs+2*q,2)}")
        a(f"s_branch L_epi{keep}")
    a.label("L_trip")
    def tripstamp():
        if opt.get("f2ts"):
            a("s_memtime s[98:99]\ns_waitcnt lgkmcnt(0)")
            for i in range(1, 10): a(f"s_mov_b32 s{TS0+2*i}, s{TS0+2*i+2}")
            a(f"s_mov_b32 s{TS0+20}, s98")
    tripstamp()
    a(f"""s_setprio 3
    v_readfirstlane_b32 s{sD}, v{gCV}
    s_cmp_ge_u32 s{sPF}, s{sNF}
    s_cbranch_scc1 L_trip1""")
    o_flag()
    flag_store(sA, 20)
    a.label("L_trip1")
    a(f"""s_add_u32 s{sA}, s{sK0}, {D2}
    s_cmp_lg_u32 s{sA}, s27
    s_cbranch_scc1 L_trip1b
    buffer_load_dwordx2 v[14:15], v{gFL}, {sr(rWS,4)}, s{sFH} offen sc1""")
    a.label("L_trip1b")
    a(f"""s_cmp_lg_u32 s{sK0}, s27
    s_cbranch_scc1 L_trip2
    s_cmp_eq_u32 s{sXC}, 0
    s_cbranch_scc1 L_trip2
    v_cmp_ne_u64 vcc, {sr(sEP,2)}, v[14:15]
    s_lshl_b32 s{sSW}, s{sXC}, 14
    s_lshl_b32 s{sA}, s{sG}, 7
    s_add_u32 s{sSW}, s{sSW}, s{sA}
    s_lshl_b32 s{sSH}, s{sXC}, 11
    s_add_u32 s{sSH}, s{sSH}, s{sHB}""")
    a("s_cbranch_vccz L_crossok")
    flag_poll(gFL, sFH, 14, sleep=opt.get("hsleep", 2))
    a.label("L_crossok")
    TS(14)
    a.label("L_trip2")
    a(f"""s_cmp_lt_u32 s{sNF}, 8
    s_cselect_b32 s{sD}, s{sD}, 0
    s_cmp_eq_u32 s{sLOOP}, 1
    s_cselect_b32 s{sD}, s{sD}, 0
    s_bitcmp1_b32 s{sD}, 3
    s_cbranch_scc1 L_fin""")
    a.label("L_trip3")
    tripstamp()
    a(f"s_setprio {GP}\ns_branch L_tripped")
    a.label("L_fin")
    for j in range(7, -1, -1): a(f"ds_read_b64 {vr(FA+2*j,2)}, v{gOA} offset:{512*j}")
    a(f"""ds_read_b64 v[20:21], v{gLA} offset:{B_L}
    s_mov_b32 s{sD}, 0
    s_waitcnt lgkmcnt(0)""")
    for j in range(7, -1, -1): a(f"v_cvt_f32_f64 v{FA+8+j}, {vr(FA+2*j,2)}")
    a(f"v_cvt_f32_f64 v{FA}, v[20:21]")
    a.label("L_fin2")
    a(f"""s_and_b32 s{sA}, s{sNF}, 1
    s_lshl_b32 s{sF}, s{sRB}, 1
    v_rcp_f32 v{FA+1}, v{FA}
    s_add_u32 s{sA}, s{sA}, s{sF}
    s_lshl_b32 s{sA}, s{sA}, 3
    s_add_u32 s{sA}, s{sA}, s{sG}
    v_mov_b32 v{FA+3}, 0x76800000
    v_cmp_nle_f32 vcc, 0x0d800000, v{FA}
    v_cmp_nle_f32 {sr(sRET,2)}, v{FA}, v{FA+3}""")
    for j in range(8): a(f"v_mul_f32 v{FA+8+j}, v{FA+8+j}, v{FA+1}")
    a(f"""s_or_b64 {sr(sRET,2)}, {sr(sRET,2)}, vcc
    s_lshl_b32 s{sA}, s{sA}, 2
    s_lshr_b32 s{sF}, s{sNF}, 1
    s_add_u32 s{sA}, s{sA}, s{sF}
    s_lshl_b32 s{sA}, s{sA}, 10
    s_add_u32 s{sA}, s{sA}, {OF}""")
    for j in range(4): a(f"v_cvt_pk_bf16_f32 v{FA+4+j}, v{FA+8+2*j}, v{FA+9+2*j}")
    a(f"v_pk_mul_f32 {vr(FA+2,2)}, {vr(FA+8,2)}, 0")
    for j in range(1, 4): a(f"v_pk_fma_f32 {vr(FA+2,2)}, {vr(FA+8+2*j,2)}, 0, {vr(FA+2,2)}")
    a(f"""v_cmp_u_f32 vcc, v{FA+2}, v{FA+3}
    s_nop 1
    s_or_b64 {sr(sRET,2)}, {sr(sRET,2)}, vcc
    s_cselect_b32 s{sF}, 1, 0
    s_cmp_gt_u32 s{sF}, s{sD}
    {"s_nop 0" if opt.get("nofb") else "s_cbranch_scc1 L_fallback"}
    s_add_u32 s{sNF}, s{sNF}, 4""")
    grp_store([f"buffer_store_dwordx4 {vr(FA+4,4)}, v{gL16}, {sr(rWS,4)}, s{sA} offen"])
    ev_set()
    a(f"""s_cmp_eq_u32 s{sLOOP}, 0
    s_cbranch_scc1 L_ev
    s_branch L_trip3""")
    a.label("L_gdone")
    if ts: a("s_waitcnt vmcnt(0)")
    TS(11)
    if opt.get("padto"):
        a.label("L_pad")
        a(f"s_memrealtime s[96:97]\ns_waitcnt lgkmcnt(0)\ns_sub_u32 s96, s96, s{sEP}\ns_cmp_lt_u32 s96, {opt['padto']}\ns_cbranch_scc1 L_pad")
    ts_dump()
    a.label("L_end")
    a("s_endpgm")

    for X, Y, lines in far:
        a.label(X)
        for l in lines: a(l + " sc1")
        a(f"s_branch {Y}")
    a.label("L_fallback")
    FQ, FK, FV, FS, FC, FT = 24, 28, 32, 40, 56, 120
    a(f"""s_cmp_eq_u32 s{sLOOP}, 0
    s_cbranch_scc1 L_fbgo
    s_mov_b32 s{sLOOP}, 2
    s_branch L_trip3""")
    a.label("L_fbgo")
    a(f"""s_mul_i32 s{sA}, s{sNF}, {QST}
    s_add_u32 s{sA}, s{sA}, {QF}
    v_add_u32 v{FT}, s{sA}, v{gL16}
    ds_read_b128 {vr(FQ,4)}, v{FT}
    v_mov_b32 v{FT+2}, 0xff800000""")
    a(f"s_mov_b32 s{sA}, 0")
    a.label("L_fb1")
    a(f"""buffer_load_dwordx4 {vr(FK,4)}, v{gL16}, {sr(rWS,4)}, s{sA} offen sc1
    s_waitcnt vmcnt(0) lgkmcnt(0)
    {MF32} {vr(FS,16)}, {vr(FK,4)}, {vr(FQ,4)}, 0
    s_nop 11""")
    maxtree(FS, FT + 3)
    a(f"""v_max_f32 v{FT+2}, v{FT+2}, v{FT+3}
    s_add_u32 s{sA}, s{sA}, 1024
    s_cmp_lt_u32 s{sA}, 0x10000
    s_cbranch_scc1 L_fb1
    v_mov_b32 v{FT+3}, v{FT+2}
    s_nop 1
    v_permlane32_swap_b32 v{FT+2}, v{FT+3}
    v_max_f32 v{FT+2}, v{FT+2}, v{FT+3}""")
    for i in range(16): a(f"v_sub_f32 v{FC+i}, 0, v{FT+2}\nv_mov_b32 v{FA+i}, 0")
    a(f"s_mov_b32 s{sA}, 0")
    a.label("L_fb2")
    a(f"""s_add_u32 s{sF}, s{sA}, {VF}
    buffer_load_dwordx4 {vr(FK,4)}, v{gL16}, {sr(rWS,4)}, s{sA} offen sc1
    buffer_load_dwordx4 {vr(FV,4)}, v{gL16}, {sr(rWS,4)}, s{sF} offen sc1""")
    for i in range(4): a(f"v_mov_b32 v{FV+4+i}, 0x3f803f80")
    a(f"""s_waitcnt vmcnt(0)
    {MF32} {vr(FS,16)}, {vr(FK,4)}, {vr(FQ,4)}, {vr(FC,16)}""")
    for i in range(4): a(f"v_permlane16_swap_b32 v{FV+4+i}, v{FV+i}")
    a("s_nop 7")
    for i in range(16): a(e(FS, i))
    a("s_nop 0")
    for j in range(8): a(c(FS, j))
    a(f"""s_nop 1
    {MF32} {vr(FA,16)}, {vr(FV,4)}, {vr(FS,4)}, {vr(FA,16)}
    {MF32} {vr(FA,16)}, {vr(FV+4,4)}, {vr(FS+8,4)}, {vr(FA,16)}
    s_add_u32 s{sA}, s{sA}, 1024
    s_cmp_lt_u32 s{sA}, 0x10000
    s_cbranch_scc1 L_fb2
    s_nop 15
    s_mov_b32 s{sD}, 1
    s_branch L_fin2""")

    if opt.get("x_nomf"):
        i0 = a.lines.index("L_f1loop:"); i1 = a.lines.index("L_gdone:")
        for i in range(i0, i1):
            if a.lines[i].startswith("v_mfma"): a.lines[i] = "s_nop 9"
    i0 = a.lines.index("L_atop:"); i1 = a.lines.index("L_vs0:")
    for i in range(i1, i0, -1):
        l = a.lines[i]
        if opt.get("y_noadd") and l.startswith("ds_add_f64"): del a.lines[i]
        elif opt.get("y_nocvt") and l.startswith("v_cvt_f64"): del a.lines[i]
        elif opt.get("y_noq") and l.startswith("ds_read_b128"): del a.lines[i]
        elif opt.get("y_noexec") and ("exec_hi" in l): del a.lines[i]
        elif opt.get("y_nobr") and l.startswith("s_cbranch_vccnz"): del a.lines[i]
    if opt.get("x_p0", 1):
        i0 = a.lines.index("L_f1loop:"); i1 = a.lines.index("L_gdone:")
        for i in range(i1, i0, -1):
            if a.lines[i].startswith("v_mfma"): a.lines[i:i+1] = ["s_setprio 0", a.lines[i], "s_setprio 3"]
    probs = lint(a.lines)
    for p in probs: print("LINT", p, file=sys.stderr)
    head = f"""; fused layernorm + MQA attention + squared-relu FFN, one persistent launch (generated by gen/gen.py)
; @launch grid=(256,1,1) block=(768,1,1) lds=163840
.amdgcn_target "amdgcn-amd-amdhsa--gfx950"
.text
.globl {NAME}_kernel
.p2align 8
.type {NAME}_kernel,@function
{NAME}_kernel:
"""
    tail = f""".section .rodata,"a"
.p2align 6
.amdhsa_kernel {NAME}_kernel
  .amdhsa_next_free_vgpr 168
  .amdhsa_next_free_sgpr 100
  .amdhsa_accum_offset 168
  .amdhsa_group_segment_fixed_size 0
  .amdhsa_kernarg_size 104
  .amdhsa_user_sgpr_count 2
  .amdhsa_user_sgpr_kernarg_segment_ptr 1
  .amdhsa_system_sgpr_workgroup_id_x 1
.end_amdhsa_kernel
"""
    return head + a.text() + tail

if __name__ == "__main__":
    open("k.s", "w").write(gen(False))
    open("k_ts.s", "w").write(gen(True))
    open("k_ts_c.s", "w").write(gen(True, dict(cyc=1)))
    open("k_x1.s", "w").write(gen(True, dict(cyc=1, hloc=1)))
    open("k_x2.s", "w").write(gen(True, dict(hloc=1)))
```

```python
import sys
from asmlib import Asm, vr, sr, lint
NAME = "parallel_sum__grouped_kv_mqa__dense_activation_squared_relu__prompt"

KF, VF, FLG_KV, FLG_H, FLG_O, OF, HF, TSB = 0, 0x10000, 0x20000, 0x28000, 0x30000, 0x40000, 0x240000, 0x800000
OT = 0x900000
WS_BYTES = 0xA00000
XN, RING, WKV = 0, 65536, 131072
RSZ = 12288
OACC, OST = 114688, 4608
B_L, B_CNT = 4096, 4352
QF, QST = 151552, 1536
KT = OACC + 7 * OST + 1024
RSTD = KT + 1024
GC = OACC + 7 * OST + B_CNT + 16
C_QREADY, C_ABAR, C_HDONE, C_GBAR, C_WQ, C_KV, C_RS, C_L0, C_EPOCH, C_PX, C_KT, C_WQ2, C_FL, C_XN = 0, 4, 8, 12, 16, 20, 24, 28, 32, 40, 48, 52, 56, 60
W1P = 2752
OFFS = 90.0
SPIN_CAP = 1 << 17

sW, sRB, sG, sKG, sCH = 3, 4, 5, 6, 7
pX, pWQ, pWK, pWV, pWO, pW1, pB1, pW2, pB2, pOUT, pDBG, pWS = 8, 10, 12, 14, 16, 20, 22, 24, 26, 28, 30, 32
rX, rWS, rW, rT = 36, 40, 44, 48
sEP = 52
sI, sRT, sCT = 54, 55, 56
sA, sB, sC, sD, sE, sF = 57, 58, 59, 60, 61, 62
sCAP = 63
sM = 34
TS0 = 64
MF32 = "v_mfma_f32_32x32x16_bf16"

def gen(ts=False, opt={}):
    a = Asm()
    GP = opt.get('gp', 3)
    P1A, P1B, P2A, P2C, P2D, PO = opt.get('pads', (-1, -1, -1, -1, -1, -1))
    def pad(n):
        if n >= 0: a(f's_nop {n}')
    late = [False]
    role = ["A"]
    def TS(i):
        if opt.get("probe") == (role[0], i) and not (late[0] and opt.get("pearly")): a("s_memrealtime s[98:99]")
        if opt.get("pro") and late[0] and i != 11: return
        if opt.get("f2ts") and late[0]: i = {7: 12, 8: 13, 6: 14, 11: 11}.get(i)
        if i is None: return
        if ts: a(f"{'s_memtime' if opt.get('cyc') else 's_memrealtime'} {sr(TS0 + 2 * i, 2)}")
    def srd(r, p, n):
        a(f"s_mov_b32 s{r}, s{p}\ns_mov_b32 s{r+1}, s{p+1}\ns_mov_b32 s{r+2}, {n}\ns_mov_b32 s{r+3}, 0x20000")
    def lds_spin(off, val, va, vt, sleep=1):
        L = a.newlabel("spin"); D = a.newlabel("spun")
        a(f"s_mov_b32 s{sCAP}, 0")
        a.label(L)
        a(f"""ds_read_b32 v{vt}, v{va} offset:{off}
        s_add_u32 s{sCAP}, s{sCAP}, 1
        s_waitcnt lgkmcnt(0)
        v_readfirstlane_b32 s{sF}, v{vt}
        s_cmp_gt_u32 s{sCAP}, {SPIN_CAP}
        s_cbranch_scc1 {D}""")
        if sleep:
            a(f"s_cmp_ge_u32 s{sF}, {val}\ns_cbranch_scc1 {D}\ns_sleep {sleep}\ns_branch {L}")
        else:
            a(f"s_cmp_lt_u32 s{sF}, {val}\ns_cbranch_scc1 {L}")
        a.label(D)
    def lds_inc(off, va, vt):
        a(f"v_mov_b32 v{vt}, 1\ns_mov_b64 exec, 1\nds_add_u32 v{va}, v{vt} offset:{off}\ns_mov_b64 exec, -1")
    def flag_poll(va, soff, vt, sleep=2, preissued=False):
        L = a.newlabel("poll"); D = a.newlabel("polled")
        a(f"s_mov_b32 s{sCAP}, 0")
        if preissued: a(f"s_branch {L}w")
        a.label(L)
        a(f"buffer_load_dwordx2 {vr(vt,2)}, v{va}, {sr(rWS,4)}, s{soff} offen sc1")
        a.label(L + "w")
        a(f"""s_add_u32 s{sCAP}, s{sCAP}, 1
        s_waitcnt vmcnt(0)
        v_cmp_ne_u64 vcc, {sr(sEP,2)}, {vr(vt,2)}
        s_cmp_gt_u32 s{sCAP}, {SPIN_CAP}
        s_cbranch_scc1 {D}
        s_cbranch_vccz {D}
        s_sleep {sleep}
        s_branch {L}""")
        a.label(D)
    sLOC = 25
    def grp_store(lines):
        X = a.newlabel("far"); Y = a.newlabel("std")
        a(f"s_cmp_eq_u32 s{sLOC}, 0\ns_cbranch_scc1 {X}")
        for l in lines: a(l)
        a.label(Y)
        far.append((X, Y, lines))
    far = []
    def flag_store(soff, vt):
        a(f"v_mov_b64 {vr(vt,2)}, {sr(sEP,2)}\ns_mov_b64 exec, 1")
        grp_store([f"buffer_store_dwordx2 {vr(vt,2)}, off, {sr(rWS,4)}, s{soff}"])
        a("s_mov_b64 exec, -1")
    def ts_dump():
        if opt.get("probe") and opt["probe"][0] == role[0]:
            L = a.newlabel("pad")
            a.label(L)
            a(f"s_sleep 2\ns_memrealtime s[96:97]\ns_waitcnt lgkmcnt(0)\ns_sub_u32 s96, s96, s98\ns_cmp_lt_u32 s96, 4000\ns_cbranch_scc1 {L}")
        if not ts: return
        a(f"""s_sleep 127
        s_sleep 127
        s_sleep 127
        s_waitcnt lgkmcnt(0)
        s_mul_i32 s{sA}, s2, 12
        s_add_u32 s{sA}, s{sA}, s{sW}
        s_lshl_b32 s{sA}, s{sA}, 6
        s_add_u32 s{sA}, s{sA}, {TSB}
        s_mov_b64 exec, 1""")
        for q in range(4):
            for j in range(4): a(f"v_mov_b32 v{4+j}, s{TS0 + 2 * (4 * q + j)}")
            a(f"buffer_store_dwordx4 v[4:7], off, {sr(rWS,4)}, s{sA} offset:{16*q}\ns_nop 1")
        a("s_waitcnt vmcnt(0)")
    def maxtree(S, d):
        a(f"v_max3_f32 v{d}, v{S}, v{S+1}, v{S+2}")
        for j in range(3, 15, 2): a(f"v_max3_f32 v{d}, v{d}, v{S+j}, v{S+j+1}")
        a(f"v_max_f32 v{d}, v{d}, v{S+15}")
    def e(S, i): return f"v_exp_f32 v{S+i}, v{S+i}"
    def c(S, j): return f"v_cvt_pk_bf16_f32 v{S + (j & 3) + 8 * (j >> 2)}, v{S+2*j}, v{S+2*j+1}"
    PFS = opt.get("pfstride", 7)
    def l2_prefetch(r, nbytes, vaddr, vdummy, part, nparts):
        chunk = 64 << PFS
        rounds = -(-nbytes // (chunk * 32))
        a(f"s_lshr_b32 s{sF}, s2, 3\ns_mul_i32 s{sF}, s{sF}, {chunk}")
        if part is not None:
            a(f"s_mul_i32 s{sCAP}, s{part}, {chunk*32}\ns_add_u32 s{sF}, s{sF}, s{sCAP}")
        for i in range(-(-rounds // nparts)):
            a(f"buffer_load_dword v{vdummy}, v{vaddr}, {sr(r,4)}, s{sF} offen")
            a(f"s_add_u32 s{sF}, s{sF}, {chunk*32*nparts}")

    TQ, TC, HLOC = opt.get("tq", 2), opt.get("tc", 4), opt.get("hloc", 0)
    def chip_touch(va, vd):
        a(f"s_mov_b32 exec_hi, 0x7ff\ns_mul_i32 s{sF}, s2, 5504")
        for p_ in (pW1, pW2):
            srd(rT, p_, 512 * W1P)
            a(f"buffer_load_dword v{vd}, v{va}, {sr(rT,4)}, s{sF} offen")
        srd(rT, pWO, 0x80000)
        a(f"s_mov_b64 exec, 0xffff\ns_lshl_b32 s{sF}, s2, 11\nbuffer_load_dword v{vd}, v{va}, {sr(rT,4)}, s{sF} offen\ns_mov_b64 exec, -1")
    def a_touch(lab):
        a(f"s_cmp_lg_u32 s{sW}, 7\ns_cbranch_scc1 {lab}\nv_lshlrev_b32 v14, 4, v0")
        chip_touch(14, 15)
        a.label(lab)
    if opt.get("probe"): a("s_memrealtime s[98:99]")
    a(f"""s_memrealtime {sr(sM,2)}
    s_load_dwordx16 s[8:23], s[0:1], 0
    s_load_dwordx8 s[24:31], s[0:1], 64
    s_load_dwordx2 s[32:33], s[0:1], 96
    s_cmp_ge_u32 s2, 256
    s_cbranch_scc1 L_end""")
    if ts:
        for i in range(16): a(f"s_mov_b32 s{TS0+2*i}, 0")
    TS(0)
    a(f"""v_lshrrev_b32 v1, 6, v0
    s_and_b32 s{sRB}, s2, 7
    v_readfirstlane_b32 s{sW}, v1
    s_lshl_b32 s{sRB}, s{sRB}, 2
    s_lshr_b32 s{sA}, s2, 6
    s_add_u32 s{sRB}, s{sRB}, s{sA}
    s_bfe_u32 s{sG}, s2, 0x30003
    s_lshr_b32 s{sKG}, s{sG}, 1
    s_and_b32 s{sCH}, s{sG}, 1
    v_and_b32 v0, 63, v0
    s_cmp_ge_u32 s{sW}, 8
    s_cbranch_scc1 L_gwave""")

    vL8, vAD, vT = 0, 1, 2
    Q, K, V, S0, S1, ACC, CIN = 4, 8, 40, 104, 120, 136, 152
    sQT, sINC, sKVO, sPB = sI, sRT, sE, sCT
    sOOF, sQA, sCA, sAH, sKB = 0, 1, 46, 47, 45
    a(f"""v_lshrrev_b32 v3, 5, v0
    v_and_b32 v4, 31, v0
    s_lshl_b32 s{sA}, s{sW}, 1
    v_add_u32 v3, s{sA}, v3
    v_lshlrev_b32 v1, 10, v3
    v_lshl_add_u32 v5, v4, 4, v1
    s_lshl_b32 s{sB}, s{sRB}, 16
    s_lshl_b32 s{sC}, s{sKG}, 14
    s_add_u32 s{sD}, s{sB}, s{sC}
    s_waitcnt lgkmcnt(0)""")
    srd(rX, pX, 0x200000)
    a(f"""buffer_load_dwordx4 v[8:11], v5, {sr(rX,4)}, s{sD} offen
    buffer_load_dwordx4 v[12:15], v5, {sr(rX,4)}, s{sD} offen offset:512""")
    def x_load(it):
        a(f"""s_xor_b32 s{sD}, s{sC}, {it << 14}
        s_add_u32 s{sD}, s{sB}, s{sD}
        buffer_load_dwordx4 {vr(8+8*it,4)}, v5, {sr(rX,4)}, s{sD} offen
        buffer_load_dwordx4 {vr(12+8*it,4)}, v5, {sr(rX,4)}, s{sD} offen offset:512""")
    srd(rWS, pWS, WS_BYTES)
    vGC, vQW, vOZ, vCW, vKA, vVA, vFL, vF2 = CIN, CIN + 1, CIN + 2, CIN + 3, CIN + 4, CIN + 5, CIN + 6, CIN + 7
    for i in range(8): a(f"v_mov_b64 {vr(ACC+2*i,2)}, 0")
    a(f"""v_mov_b32 v{vGC}, {GC}
    v_lshlrev_b32 v{vFL}, 7, v4
    v_and_b32 v6, 15, v0
    v_cmp_eq_u32 vcc, 0, v6
    ds_write_b128 v{vGC}, {vr(ACC,4)}
    ds_write_b128 v{vGC}, {vr(ACC,4)} offset:16
    ds_write_b128 v{vGC}, {vr(ACC,4)} offset:32
    ds_write_b128 v{vGC}, {vr(ACC,4)} offset:48
    v_xor_b32 v4, v4, v3
    v_lshl_add_u32 v2, v4, 4, v1
    v_lshlrev_b32 v3, 2, v3
    v_add_u32 v3, {RSTD}, v3
    v_mov_b32 v{CIN+8}, 0x3f803f80
    v_mov_b32 v{CIN+9}, 0x3f80
    v_mov_b32 v{CIN+10}, 0x3f800000
    v_cndmask_b32 v{V+4}, 0, v{CIN+8}, vcc
    v_cndmask_b32 v{V+5}, 0, v{CIN+8}, vcc""")
    for i in range(1, 16): a(f"v_mov_b64 {vr(V+8*(i>>1)+4+2*(i&1),2)}, {vr(V+4,2)}")
    a(f"""v_mov_b64 {vr(S1+8,2)}, 0
    v_mov_b64 {vr(S1+10,2)}, 0
    v_lshlrev_b32 v{vKA}, 4, v0
    v_lshrrev_b32 v4, 5, v0
    v_lshlrev_b32 v{vF2}, 8, v4
    v_lshlrev_b32 v{vL8}, 3, v0
    s_mul_i32 s{sA}, s{sW}, {OST}
    s_add_u32 s{sA}, s{sA}, {OACC}
    v_add_u32 v{vOZ}, s{sA}, v{vKA}
    v_mov_b64 {vr(S1+12,2)}, 0
    v_mov_b64 {vr(S1+14,2)}, 0
    s_mov_b32 s{sA}, 0x43300000
    v_writelane_b32 v{S1+13}, s{sA}, 16
    s_mov_b32 s{sA}, 0x3b000000""")
    U, R0 = S0, S1
    cOne2, cLo, cHi = CIN + 8, CIN + 9, CIN + 10
    def red32(rs):
        pad = "s_nop 1\n" if len(rs) == 1 else ""
        for mode in ("quad_perm:[1,0,3,2]", "quad_perm:[2,3,0,1]", "row_half_mirror", "row_mirror"):
            a(pad + "\n".join(f"v_add_f32_dpp v{r}, v{r}, v{r} {mode} row_mask:0xf bank_mask:0xf" for r in rs))
        for r in rs: a(f"v_mov_b32 v{r+1}, v{r}")
        a(pad + "\n".join(f"v_permlane16_swap_b32 v{r}, v{r+1}" for r in rs))
        for r in rs: a(f"v_add_f32 v{r}, v{r}, v{r+1}")
    def centre(its):
        for j in range(8):
            for it in its:
                X, R = 8 + 8 * it, R0 + 2 * (it % 3)
                a(f"v_dot2_f32_bf16 v{R+(j&1)}, v{X+j}, v{cOne2}, {'0' if j < 2 else f'v{R+(j&1)}'}")
        a("s_nop 2" if len(its) == 1 else "s_nop 0")
        for it in its: a(f"v_add_f32 v{R0+2*(it%3)}, v{R0+2*(it%3)}, v{R0+2*(it%3)+1}")
        red32([R0 + 2 * (it % 3) for it in its])
        for it in its: a(f"v_mul_f32 v{R0+2*(it%3)}, 0xbb000000, v{R0+2*(it%3)}")
        for it in its:
            X, R = 8 + 8 * it, R0 + 2 * (it % 3)
            a(f"s_xor_b32 s{sD}, s{sC}, {it << 14}\nv_add_u32 v7, s{sD}, v2")
            for j in range(8):
                a(f"v_dot2_f32_bf16 v{U+2*j}, v{X+j}, v{cLo}, v{R}\nv_dot2_f32_bf16 v{U+2*j+1}, v{X+j}, v{cHi}, v{R}")
            for j in range(8):
                a(f"v_cvt_pk_bf16_f32 v{X+j}, v{U+2*j}, v{U+2*j+1}")
                if it: pass
                elif j == 0: a(f"v_pk_mul_f32 {vr(R,2)}, {vr(U,2)}, {vr(U,2)}")
                else: a(f"v_pk_fma_f32 {vr(R,2)}, {vr(U+2*j,2)}, {vr(U+2*j,2)}, {vr(R,2)}")
                if j == 3: a(f"ds_write_b128 v7, {vr(X,4)}")
            a(f"ds_write_b128 v7, {vr(X+4,4)} offset:512")
    def scales(its):
        for it in its: a(f"v_add_f32 v{R0+2*(it%3)}, v{R0+2*(it%3)}, v{R0+2*(it%3)+1}")
        red32([R0 + 2 * (it % 3) for it in its])
        a(f"v_mov_b32 v7, 0x3727c5ac")
        for it in its: a(f"v_fma_f32 v{R0+2*(it%3)}, v{R0+2*(it%3)}, s{sA}, v7")
        for it in its: a(f"v_rsq_f32 v{R0+2*(it%3)}, v{R0+2*(it%3)}")
        for it in its:
            a(f"s_xor_b32 s{sD}, s{sC}, {it << 14}\ns_lshr_b32 s{sD}, s{sD}, 8\nv_add_u32 v{R0+2*(it%3)+1}, s{sD}, v3")
            a(f"ds_write_b32 v{R0+2*(it%3)+1}, v{R0+2*(it%3)}")
    a("s_setprio 2\ns_waitcnt lgkmcnt(0)\ns_barrier")
    TS(8)
    for it in range(1, 4): x_load(it)
    a("s_waitcnt vmcnt(6)")
    TS(1)
    centre([0]); scales([0])
    lds_inc(C_L0, vGC, 7)
    a("s_setprio 1")
    TS(2)
    a("s_waitcnt vmcnt(0)")
    TS(12)
    centre([1, 2, 3])
    lds_inc(C_XN, vGC, vT)
    a("s_setprio 0")
    TS(3)
    a(f"s_mov_b32 s{sD}, 0xffff0000")
    for it in (1, 2, 3):
        X, R = 8 + 8 * it, R0 + 2 * (it % 3)
        for j in range(8): a(f"v_lshlrev_b32 v{U+2*j}, 16, v{X+j}\nv_and_b32 v{U+2*j+1}, s{sD}, v{X+j}")
        a(f"v_pk_mul_f32 {vr(R,2)}, {vr(U,2)}, {vr(U,2)}")
        for j in range(1, 8): a(f"v_pk_fma_f32 {vr(R,2)}, {vr(U+2*j,2)}, {vr(U+2*j,2)}, {vr(R,2)}")
    scales([1, 2, 3])
    lds_inc(C_RS, vGC, vT)
    TS(5)

    def zero_block():
        for j in range(4): a(f"ds_write_b128 v{vOZ}, {vr(ACC,4)} offset:{1024*j}")
        a(f"""s_mov_b64 exec, 0x1ffff
        ds_write_b128 v{vOZ}, {vr(S1+12,4)} offset:{B_L}
        s_mov_b64 exec, -1""")
    lds_spin(C_FL, 1, vGC, vT, sleep=1)
    a(f"""ds_read_b64 v[8:9], v{vGC} offset:{C_EPOCH}
    s_add_u32 s{sKB}, s{sW}, s{sG}
    s_and_b32 s{sKB}, s{sKB}, 7
    s_lshl_b32 s{sKVO}, s{sKB}, 13
    s_add_u32 s{sA}, s{sKVO}, 4096
    s_add_u32 s{sC}, s{sKVO}, {VF}
    s_add_u32 s{sD}, s{sKVO}, {VF+4096}
    s_mov_b32 s{sOOF}, {OACC}
    s_mov_b32 s{sQA}, {QF}
    s_mov_b32 s{sINC}, 0
    s_and_b32 s{sPB}, s{sW}, 3
    s_lshl_b32 s{sPB}, s{sPB}, 1
    s_add_u32 s{sPB}, s{sPB}, 4
    s_waitcnt lgkmcnt(0)
    v_readfirstlane_b32 s{sEP}, v8
    v_readfirstlane_b32 s{sEP+1}, v9
    s_cmp_lg_u32 s{sW}, 0
    s_cbranch_scc1 L_nokt
    s_lshl_b32 s{sB}, s{sRB}, 10
    s_add_u32 s{sB}, s{sB}, {FLG_KV}""")
    a(f"s_sleep {opt.get('kt0', 4)}")
    flag_poll(vF2, sB, 12, sleep=2)
    lds_inc(C_FL, vGC, vT)
    a(f"""s_lshl_b32 s{sB}, s{sRB}, 11
    v_add_u32 v12, {KT}, v{vKA}
    buffer_load_dwordx4 {vr(K,4)}, v{vKA}, {sr(rWS,4)}, s{sB} offen sc1
    s_waitcnt vmcnt(0)
    ds_write_b128 v12, {vr(K,4)}""")
    lds_inc(C_RS, vGC, vT)
    TS(11)
    a.label("L_nokt")
    if opt.get("gate", 1): lds_spin(C_FL, 2, vGC, vT, sleep=1)
    elif opt.get("g0"): a(f"s_sleep {opt['g0']}")
    a(f"""s_lshl_b32 s{sB}, s{sKB}, 12
    s_add_u32 s{sB}, s{sB}, {FLG_KV}""")
    if opt.get("pprio"): a("s_setprio 3")
    flag_poll(vFL, sB, 12, sleep=opt.get("kvsleep", 4))
    if opt.get("pprio"): a("s_setprio 0")
    if opt.get("wgate"):
        lds_inc(C_KT, vGC, vT)
        lds_spin(C_KT, 8, vGC, vT, sleep=0)
    TS(4)
    def ldK(t): a(f"buffer_load_dwordx4 {vr(K+4*t,4)}, v{vKA}, {sr(rWS,4)}, s{sKVO if t < 4 else sA} offen offset:{(t&3)*1024} sc1")
    def ldV(t): a(f"buffer_load_dwordx4 {vr(V+8*t,4)}, v{vKA}, {sr(rWS,4)}, s{sC if t < 4 else sD} offen offset:{(t&3)*1024} sc1")
    ldK(0)
    for t in range(7):
        ldK(t + 1); ldV(t)
    ldV(7)
    lds_inc(C_KV, vGC, vT)
    TS(10)
    lds_spin(C_QREADY, 4, vGC, vT, sleep=0)
    TS(6)
    if ts: a(f"s_memtime {sr(TS0+26,2)}")
    def load_q():
        x = [f"v_lshl_add_u32 v{vAD}, v{vL8}, 1, s{sQA}", f"v_and_b32 v{vT}, 0xff, v{vL8}",
             f"ds_read_b128 {vr(Q,4)}, v{vAD}", f"v_lshl_add_u32 v{vT}, v{vT}, 1, s{sQA}", f"s_add_u32 s{sQA}, s{sQA}, {QST}"]
        return x + [f"ds_read_b128 {vr(CIN+4*j,4)}, v{vT} offset:1024" for j in range(4)]
    def QK(t, S): return f"{MF32} {vr(S,16)}, {vr(K+4*t,4)}, {vr(Q,4)}, {vr(CIN,16)}"
    def PV(t, hf, S, zero=False): return f"{MF32} {vr(ACC,16)}, {vr(V+8*t+4*hf,4)}, {vr(S+8*hf,4)}, {'0' if zero else vr(ACC,16)}"
    def flush_ops():
        x = [[f"v_add_u32 v{vAD}, s{sOOF}, v{vL8}", f"v_cvt_f64_f32 {vr(vT,2)}, v{ACC}"]]
        for j in range(8): x.append([f"v_cvt_f64_f32 {vr(ACC+2*j,2)}, v{ACC+8+j}", f"ds_add_f64 v{vAD}, {vr(ACC+2*j,2)} offset:{512*j}"])
        x.append([f"v_writelane_b32 v{vT+1}, s{sINC}, 32", "s_mov_b32 exec_hi, 1", f"ds_add_rtn_f64 {vr(vT,2)}, v{vAD}, {vr(vT,2)} offset:{B_L}", "s_mov_b32 exec_hi, -1"])
        return x
    def vswap(t):
        for j in range(4): a(f"v_permlane16_swap_b32 v{V+8*t+4+j}, v{V+8*t+j}")
    a(f"v_mov_b32 v{S1}, v{vGC}\nv_mov_b32 v{S1+1}, v{vOZ}")
    vOZ = S1 + 1
    for l in load_q(): a(l)
    zero_block()
    lds_inc(C_ABAR, S1, S1 + 2)
    NV0 = opt.get("nv0", 3)
    a(f"s_setprio 1\ns_mov_b64 vcc, -1\ns_waitcnt vmcnt(14) lgkmcnt(6)")
    a(QK(0, S0))
    for t in range(NV0):
        a(f"s_waitcnt vmcnt({12 - 2 * t})")
        vswap(t)
    a(".p2align 6")
    a.label("L_atop")
    SS = [S0, S1]
    std = "e0 e1 P1 e2 e3 c0 e4 e5 c1 QK e6 e7 c2 e8 c3 e9 e10 P0 e11 c4 e12 e13 c5 e14 e15 c6 c7"
    orders = {0: "e0 e1 P1 e2 e3 c0 e4 e5 c1 QK e6 e7 c2 e8 c3 e9 e10 F e11 F c4 F e12 F e13 F c5 F e14 F e15 F c6 F c7 F P0",
              1: "e0 e1 e2 e3 c0 P1 e4 e5 c1 e6 e7 QK c2 e8 c3 e9 e10 e11 P0 c4 e12 e13 c5 e14 e15 c6 c7 R",
              4: std + " U",
              6: "e0 e1 P1 e2 e3 c0 e4 e5 c1 QK e6 e7 c2 e8 c3 e9 e10 P0 L L L e11 L L c4 L e12 L e13 L c5 L e14 e15 c6 c7",
              7: "e0 e1 P1 e2 e3 c0 e4 e5 c1 G QK e6 e7 c2 e8 c3 e9 e10 P0 e11 X c4 e12 e13 c5 e14 e15 c6 c7"}
    orders[NV0] = orders.get(NV0, std).replace("P0", "W P0")
    for t in range(8):
        cur, nxt = SS[t & 1], SS[(t + 1) & 1]
        fl, lq = flush_ops(), load_q()
        for tok in orders.get(t, std).split():
            if tok[0] == "e": a(e(cur, int(tok[1:])))
            elif tok[0] == "c": a(c(cur, int(tok[1:])))
            elif tok == "P1": a(PV((t - 1) & 7, 1, nxt))
            elif tok == "P0": a(PV(t, 0, cur, zero=(t == 0)))
            elif tok == "QK": a(QK((t + 1) & 7, nxt))
            elif tok == "W":
                a(f"s_cbranch_vccnz L_vs0")
                a.label(f"L_vr0")
            elif tok == "G": a("s_waitcnt lgkmcnt(0)")
            elif tok == "F": a("\n".join(fl.pop(0)))
            elif tok == "L": a(lq.pop(0))
            elif tok == "R":
                a(f"""s_waitcnt lgkmcnt(0)
                v_readlane_b32 s{sAH}, v{vT}, 32
                s_setprio 0
                s_bitcmp1_b32 s{sAH}, s{sPB}
                s_cbranch_scc0 L_yield
                s_setprio 2""")
                a.label("L_yield")
            elif tok == "U":
                a(f"s_cbranch_scc1 L_keep\ns_setprio 1")
                a.label("L_keep")
            elif tok == "X":
                a(f"s_add_u32 s{sOOF}, s{sOOF}, {OST}")
                if opt.get("qts"):
                    a("s_memtime s[96:97]\ns_waitcnt lgkmcnt(0)")
                    for i in range(1, 8): a(f"s_mov_b32 s{TS0+2*i}, s{TS0+2*i+2}")
                    a(f"s_sub_u32 s{TS0+16}, s96, s{TS0+26}")
                a(f"s_cmp_lt_u32 s{sOOF}, {OACC + 7 * OST}")
    a("s_cbranch_scc1 L_atop")
    if not opt.get("qts"): TS(7)
    a("s_setprio 2")
    a(PV(7, 1, S1))
    a("s_nop 11")
    for x in flush_ops(): a("\n".join(x))
    if opt.get("delay_f1", 0) > 8:
        a(f"v_mov_b32 v4, {GC}")
        lds_inc(C_ABAR, 4, 5)
    if ts:
        a(f"s_memtime {sr(TS0+28,2)}\ns_waitcnt lgkmcnt(0)\ns_sub_u32 s{TS0+28}, s{TS0+28}, s{TS0+26}")
    TS(9)
    ts_dump()
    a("s_endpgm")
    a.label("L_vs0")
    a("s_waitcnt vmcnt(0)")
    if TC:
        a(f"""s_cmp_eq_u32 s{sW}, 7
        s_cbranch_scc1 L_notouch
        s_cmp_eq_u32 s{sW}, 0
        s_cselect_b32 s{rT}, s{pW1}, s{pW2}
        s_cselect_b32 s{rT+1}, s{pW1+1}, s{pW2+1}
        s_cmp_eq_u32 s{sW}, 2
        s_cselect_b32 s{rT}, s{pWO}, s{rT}
        s_cselect_b32 s{rT+1}, s{pWO+1}, s{rT+1}
        s_mov_b32 s{sF}, 5504
        s_cselect_b32 s{sF}, 2048, s{sF}
        s_mul_i32 s{sA}, s2, s{sF}
        s_cmp_lt_u32 s{sW}, 3
        s_cbranch_scc1 L_touch
        s_mov_b32 s{rT}, s{pWS}
        s_mov_b32 s{rT+1}, s{pWS+1}
        s_lshl_b32 s{sA}, s{sRB}, 4
        s_add_u32 s{sA}, s{sA}, s{sG}
        s_lshl_b32 s{sA}, s{sA}, 12
        s_add_u32 s{sA}, s{sA}, {OF}
        s_lshl_b32 s{sB}, s{sRB}, 3
        s_add_u32 s{sB}, s{sB}, s{sG}
        s_lshl_b32 s{sB}, s{sB}, 7
        s_add_u32 s{sB}, s{sB}, {FLG_H}
        s_cmp_lt_u32 s{sW}, 5
        s_cselect_b32 s{sA}, s{sA}, s{sB}
        s_cselect_b32 s{sF}, 4096, 64
        s_and_b32 s{sB}, s{sW}, 1
        s_lshl_b32 s{sB}, s{sB}, 15
        s_add_u32 s{sA}, s{sA}, s{sB}""")
        a.label("L_touch")
        a(f"""s_add_u32 s{rT+2}, s{sA}, s{sF}
        s_mov_b32 s{rT+3}, 0x20000
        s_mov_b32 m0, {GC + 64}
        v_lshlrev_b32 v{vT}, 4, v{vL8}
        s_mov_b32 exec_hi, 0x7ff
        buffer_load_dword v{vT}, {sr(rT,4)}, s{sA} offen lds
        s_mov_b32 exec_hi, -1""")
        a.label("L_notouch")
    for t in range(NV0, 8): vswap(t)
    a(f"v_mov_b32 v{vAD}, {GC}")
    lds_spin(C_ABAR, 8, vAD, vT, sleep=0)
    a(f"""s_sub_u32 s{sOOF}, s{sOOF}, {OST}
    s_add_u32 s{sINC}, s{sPB}, 1023
    s_lshl_b32 s{sINC}, s{sINC}, 20
    s_sub_u32 s{sA}, 20, s{sPB}
    s_lshl_b32 s{sA}, 1, s{sA}
    s_add_u32 s{sINC}, s{sINC}, s{sA}
    s_mov_b64 vcc, 0
    s_branch L_vr0""")

    a(".p2align 6")
    a.label("L_gwave")
    role[0] = "G"
    gGC, gL16, gSW, gTR, gH, gR = 1, 2, 3, 4, 5, 6
    a(f"""s_setprio 3
    s_sub_u32 s{sI}, s{sW}, 8
    v_lshlrev_b32 v{gL16}, 4, v0
    v_lshlrev_b32 v10, {PFS}, v0
    s_sub_u32 s{sE}, s{sI}, 1
    s_waitcnt lgkmcnt(0)
    s_cmp_lg_u32 s{sI}, 0
    s_cbranch_scc1 L_g123""")
    a(f"""s_cmp_eq_u32 s{sCH}, 0
    s_cselect_b32 s{rW}, s{pWK}, s{pWV}
    s_cselect_b32 s{rW+1}, s{pWK+1}, s{pWV+1}
    s_mov_b32 s{rW+2}, 16384
    s_mov_b32 s{rW+3}, 0x20000""")
    for q in range(4):
        a(f"s_mov_b32 m0, {WKV + q * 4096}\ns_mov_b32 s{sA}, {q*4096}")
        for j in range(4): a(f"buffer_load_dwordx4 v{gL16}, {sr(rW,4)}, s{sA} offen offset:{j*1024} lds")
    a("s_branch L_gcom")
    a.label("L_g123")
    srd(rW, pWQ, 0x80000)
    if TQ == 1:
        a(f"s_cmp_eq_u32 s{sI}, 3\ns_cbranch_scc1 L_gcom")
        l2_prefetch(rW, 0x80000, 10, 6, sE, 2)
    if TQ == 2:
        a(f"s_cmp_lg_u32 s{sI}, 1\ns_cbranch_scc1 L_gcom")
        a(f"s_mov_b64 exec, 0xffff\ns_lshl_b32 s{sF}, s2, 11\nbuffer_load_dword v6, v10, {sr(rW,4)}, s{sF} offen\ns_mov_b64 exec, -1")
    a.label("L_gcom")
    srd(rWS, pWS, WS_BYTES)
    srd(rT, pDBG, 256)
    a(f"""s_lshr_b32 s{sRT}, s{sI}, 1
    s_and_b32 s{sCT}, s{sI}, 1
    v_lshrrev_b32 v7, 3, v0
    v_lshrrev_b32 v8, 2, v0
    v_and_b32 v8, 4, v8
    v_and_b32 v9, 7, v0
    v_xor_b32 v8, v8, v9
    v_lshlrev_b32 v8, 4, v8
    v_lshl_add_u32 v{gSW}, v7, 10, v8
    v_mov_b32 v{gGC}, {GC}
    v_lshrrev_b32 v{gH}, 5, v0
    v_and_b32 v7, 3, v0
    v_and_b32 v8, 16, v0
    v_lshlrev_b32 v8, 1, v8
    v_lshl_add_u32 v{gTR}, v7, 3, v8
    s_cmp_eq_u32 s{sI}, 0
    s_cbranch_scc1 L_g0""")
    a(f"""s_lshl_b32 s{sB}, s{sE}, 13
    s_lshl_b32 s{sC}, s{sG}, 7
    s_add_u32 s{sB}, s{sB}, s{sC}
    s_lshl_b32 s{sA}, s{sE}, 10
    s_add_u32 s{sA}, s{sA}, {RING}
    s_setprio 0
    s_barrier
    s_cmp_lg_u32 s{sI}, 3
    s_cbranch_scc1 L_wqloop
    s_setprio 3
    s_mov_b32 s{sCAP}, 0""")
    a.label("L_epoch")
    a(f"""buffer_load_dwordx2 v[14:15], off, {sr(rT,4)}, 0 sc1
    s_add_u32 s{sCAP}, s{sCAP}, 1
    s_cmp_gt_u32 s{sCAP}, {SPIN_CAP}
    s_cbranch_scc1 L_gb2
    s_waitcnt vmcnt(0)
    v_readfirstlane_b32 s{sEP+1}, v15
    s_nop 0
    s_cmp_eq_u32 s{sEP+1}, 0
    s_cbranch_scc1 L_epoch
    ds_write_b64 v{gGC}, v[14:15] offset:{C_EPOCH}""")
    TS(1)
    srd(rW, pB1, W1P)
    a(f"buffer_load_dword v6, v10, {sr(rW,4)}, 0 offen")
    srd(rW, pB2, 1024)
    a(f"buffer_load_dword v6, v10, {sr(rW,4)}, 0 offen\ns_branch L_gb2")
    a.label("L_wqloop")
    a(f"""s_mov_b32 m0, s{sA}
    s_add_u32 s{sA}, s{sA}, 2048
    buffer_load_dwordx4 v{gSW}, {sr(rW,4)}, s{sB} offen lds
    s_add_u32 s{sB}, s{sB}, 16384
    s_waitcnt vmcnt({opt.get("wqd", 10)})
    s_cmp_lt_u32 s{sA}, {RING + 65536}
    s_cbranch_scc1 L_wqloop
    s_setprio 3
    s_waitcnt vmcnt(16)""")
    lds_inc(C_WQ, gGC, 7)
    a("s_branch L_gb2")
    a.label("L_g0")
    WF, XF, DD = 32, 96, 160
    a(f"""s_cmp_lg_u32 s2, 0
    s_cbranch_scc1 L_noep
    v_mov_b32 v10, s{sM}
    v_mov_b32 v11, s{sM+1}
    v_or_b32 v11, 0x80000000, v11
    v_mov_b64 v[12:13], 0
    s_mov_b64 exec, 1
    buffer_atomic_cmpswap_x2 v[10:13], off, {sr(rT,4)}, 0 sc1
    s_mov_b64 exec, -1
    s_nop 0""")
    a.label("L_noep")
    if opt.get("prewr"):
        a(f"""s_lshl_b32 s{sA}, s{sRB}, 3
        s_add_u32 s{sA}, s{sA}, s{sG}
        s_lshl_b32 s{sA}, s{sA}, 7
        s_add_u32 s{sA}, s{sA}, {FLG_KV}
        v_mov_b64 v[16:17], 0
        v_mov_b64 v[18:19], 0
        s_mov_b64 exec, 0xff
        buffer_store_dwordx4 v[16:19], v{gL16}, {sr(rWS,4)}, s{sA} offen sc1
        s_mov_b64 exec, -1""")
    a("s_barrier")
    a(f"""v_and_b32 v7, 15, v0
    v_lshrrev_b32 v8, 4, v0
    v_lshlrev_b32 v9, 3, v7
    v_lshl_add_u32 v9, v8, 8, v9
    v_add_u32 v9, {WKV}, v9
    s_lshl_b32 s{sA}, s{sKG}, 14
    v_xor_b32 v10, v7, v8
    v_lshlrev_b32 v10, 4, v10
    v_lshl_add_u32 v10, v7, 10, v10
    v_add_u32 v10, s{sA}, v10
    v_xor_b32 v11, 64, v10
    v_xor_b32 v12, 0x80, v10
    v_xor_b32 v13, 0xc0, v10
    s_lshl_b32 s{sA}, s{sKG}, 6
    s_add_u32 s{sA}, s{sA}, {RSTD}
    v_lshl_add_u32 v20, v7, 2, s{sA}
    v_lshl_add_u32 v21, v8, 4, s{sA}
    s_cmp_eq_u32 s{sCH}, 0
    s_cselect_b32 s{sD}, {KF}, {VF}
    v_and_b32 v16, 1, v8
    v_lshlrev_b32 v16, 9, v16
    v_lshrrev_b32 v17, 1, v8
    v_lshl_add_u32 v16, v17, 3, v16
    v_lshl_add_u32 v16, v7, 4, v16
    s_xor_b32 s{sA}, s{sKG}, s{sCH}
    s_and_b32 s{sA}, s{sA}, 1
    s_lshl_b32 s{sA}, s{sA}, 8
    s_add_u32 s{sD}, s{sD}, s{sA}
    s_lshl_b32 s{sA}, s{sRB}, 1
    s_lshr_b32 s{sB}, s{sKG}, 1
    s_add_u32 s{sA}, s{sA}, s{sB}
    s_lshl_b32 s{sA}, s{sA}, 10
    s_add_u32 s{sD}, s{sD}, s{sA}
    s_lshl_b32 s{sA}, s{sRB}, 3
    s_add_u32 s{sA}, s{sA}, s{sG}
    s_lshl_b32 s{sA}, s{sA}, 7
    s_add_u32 s{sA}, s{sA}, {FLG_KV}
    s_waitcnt vmcnt(0)""")
    for ks in range(16):
        a(f"ds_read_b64_tr_b16 {vr(WF+4*ks,2)}, v9 offset:{ks*1024}\nds_read_b64_tr_b16 {vr(WF+4*ks+2,2)}, v9 offset:{ks*1024+128}")
    TS(1)
    lds_spin(C_L0, 8, gGC, 14, sleep=0)
    TS(2)
    for ks in range(16):
        a(f"ds_read_b128 {vr(XF+4*ks,4)}, v{10+(ks&3)} offset:{(ks>>2)*256}")
    a(f"""s_cmp_eq_u32 s{sCH}, 0
    s_cbranch_scc0 L_vchain""")
    for sw in (False, True):
        if sw: a.label("L_vchain")
        for ks in range(16):
            A_, B_ = (XF, WF) if sw else (WF, XF)
            if ks % 4 == 0: a(f"s_waitcnt lgkmcnt({12 - ks})")
            if ks == 12: a(f"ds_read_b128 v[24:27], v21" if sw else "ds_read_b32 v24, v20")
            a(f"v_mfma_f32_16x16x32_bf16 {vr(DD,4)}, {vr(A_+4*ks,4)}, {vr(B_+4*ks,4)}, {'0' if ks == 0 else vr(DD,4)}")
        if not sw: a("s_waitcnt lgkmcnt(0)\nv_mov_b32 v25, v24\nv_mov_b64 v[26:27], v[24:25]\ns_branch L_kvst")
    a("s_waitcnt lgkmcnt(0)\ns_nop 2")
    a.label("L_kvst")
    a(f"""s_nop 3
    v_pk_mul_f32 {vr(DD,2)}, {vr(DD,2)}, v[24:25]
    v_pk_mul_f32 {vr(DD+2,2)}, {vr(DD+2,2)}, v[26:27]
    v_cvt_pk_bf16_f32 v18, v{DD}, v{DD+1}
    v_cvt_pk_bf16_f32 v19, v{DD+2}, v{DD+3}
    buffer_store_dwordx2 v[18:19], v16, {sr(rWS,4)}, s{sD} offen sc1""")
    TS(13)
    lds_spin(C_EPOCH + 4, 1, gGC, 14, sleep=0)
    a(f"""ds_read_b64 v[20:21], v{gGC} offset:{C_EPOCH}
    s_getreg_b32 s{sD}, hwreg(HW_REG_XCC_ID)
    v_mov_b32 v22, s{sD}
    v_mov_b32 v23, 0
    s_mov_b64 exec, 1
    s_waitcnt vmcnt(0) lgkmcnt(0)
    buffer_store_dwordx4 v[20:23], off, {sr(rWS,4)}, s{sA} sc1
    s_mov_b64 exec, -1""")
    lds_inc(C_FL, gGC, 14)
    TS(3)
    a.label("L_gb2")
    QA, QW, QX = 8, 24, 152
    a(f"""v_bfe_u32 v9, v0, 2, 2
    v_lshrrev_b32 v8, 1, v9
    v_xor_b32 v8, s{sCT}, v8
    v_lshl_add_u32 v8, v8, 6, v{gTR}
    v_lshl_add_u32 v8, v9, 7, v8
    v_lshl_add_u32 v8, v{gH}, 10, v8
    v_add_u32 v8, {RING}, v8""")
    a(f"v_mov_b32 v{gTR}, v8")
    kord = [aa + 8 * (2 * hb + b) for hb in range(2) for aa in range(8) for b in range(2)]
    def w_pre(hb):
        for n in range(16 * hb, 16 * hb + 16):
            ks = kord[n]
            a(f"ds_read_b64_tr_b16 {vr(QW+4*n,2)}, v{gTR} offset:{ks*2048}\nds_read_b64_tr_b16 {vr(QW+4*n+2,2)}, v{gTR} offset:{ks*2048+512}")
    a(f"""v_and_b32 v7, 31, v0
    v_and_b32 v9, 15, v0
    v_xor_b32 v9, v9, v{gH}
    v_lshlrev_b32 v9, 4, v9
    v_lshl_add_u32 v7, v7, 10, v9
    s_lshl_b32 s{sC}, s{sRT}, 15
    v_add_u32 v7, s{sC}, v7""")
    sRNG = 35
    sT1, sT2, sNG = 0, 1, sE
    sN, sSO = sA, sB
    srd(rW, pW1, 512 * W1P)
    a(f"""s_lshl_b32 s{sT1}, s{sG}, 2
    s_add_u32 s{sT1}, s{sT1}, s{sI}
    s_sub_u32 s{sT2}, 1, s{sRT}
    s_lshl_b32 s{sT2}, s{sT2}, 3
    s_add_u32 s{sT2}, s{sT2}, s{sG}
    s_add_u32 s{sT2}, s{sT2}, 32
    s_cmp_lt_u32 s{sT2}, 43
    s_cselect_b32 s{sNG}, 12, 8
    s_mul_i32 s{sRNG}, s{sI}, {RSZ}
    s_add_u32 s{sRNG}, s{sRNG}, {RING}
    s_lshl_b32 s{sSO}, s{sT1}, 6""")
    lds_spin(C_WQ, 2, gGC, 9, sleep=1)
    w_pre(0)
    a(f"""s_sub_u32 s{sD}, s{sI}, 1
    s_cmp_ge_u32 s{sD}, 2
    s_cbranch_scc1 L_wq2
    s_waitcnt vmcnt(0)""")
    lds_inc(C_WQ2, gGC, 9)
    a.label("L_wq2")
    lds_spin(C_WQ2, 2, gGC, 9, sleep=1)
    w_pre(1)
    TS(12)
    lds_spin(C_XN, 8, gGC, 9, sleep=1)
    TS(4)
    land = {}
    cur_a = [0]
    def xread(n, dst):
        aa, b = kord[n] & 7, kord[n] >> 3
        if aa != cur_a[0]: a(f"v_xor_b32 v7, {((aa ^ cur_a[0]) * 32)}, v7")
        cur_a[0] = aa
        a(f"ds_read_b128 {vr(dst,4)}, v7 offset:{b*256}")
        land[n] = dst
    ordr = sorted(range(32), key=lambda n: (kord[n] & 7, kord[n] >> 3))
    for i_ in range(4): xread(ordr[i_], QX + 4 * i_)
    nxt_rd = 4
    for i_, n in enumerate(ordr):
        a(f"s_waitcnt lgkmcnt({nxt_rd - i_ - 1})")
        a(f"{MF32} {vr(QA,16)}, {vr(QW+4*n,4)}, {vr(land[n],4)}, {'0' if i_ == 0 else vr(QA,16)}")
        if nxt_rd < 32: xread(ordr[nxt_rd], land[n]); nxt_rd += 1
        if i_ < 5 and nxt_rd < 32: xread(ordr[nxt_rd], QW + 4 * n); nxt_rd += 1
    gRS = 166
    if opt.get("pro"): TS(9)
    lds_spin(C_RS, 9, gGC, QX, sleep=0)
    T0 = QX
    a(f"""v_and_b32 v7, 31, v0
    v_lshlrev_b32 v{T0}, 2, v7
    v_add_u32 v{T0}, {RSTD}, v{T0}
    v_add_u32 v{T0+1}, {KT}, v{gL16}
    ds_read_b32 v{gRS}, v{T0}
    ds_read_b32 v{gRS+1}, v{T0} offset:128
    ds_read_b64 {vr(T0+2,2)}, v{gGC} offset:{C_EPOCH}
    ds_read_b128 {vr(T0+4,4)}, v{T0+1}
    s_lshl_b32 s{sA}, s{sCT}, 2
    s_add_u32 s{sA}, s{sA}, s{sRT}
    s_mul_i32 s{sA}, s{sA}, {QST}
    s_add_u32 s{sA}, s{sA}, {QF}
    v_add_u32 v{T0+10}, s{sA}, v{gL16}
    v_lshl_add_u32 v{T0+11}, v7, 4, s{sA}
    s_cmp_eq_u32 s{sRT}, 0
    s_cselect_b64 vcc, -1, 0
    s_waitcnt lgkmcnt(0)
    v_readfirstlane_b32 s{sEP}, v{T0+2}
    v_cndmask_b32 v{T0+8}, v{gRS+1}, v{gRS}, vcc
    v_readfirstlane_b32 s{sEP+1}, v{T0+3}
    v_mul_f32 v{T0+8}, 0x3eb8aa3b, v{T0+8}""")
    if opt.get("pro"): TS(10)
    for hd in range(2):
        for j in range(4 * hd, 4 * hd + 4): a(f"v_pk_mul_f32 {vr(QA+2*j,2)}, {vr(QA+2*j,2)}, {vr(T0+8,2)} op_sel_hi:[1,0]")
        for j in range(4 * hd, 4 * hd + 4): a(f"v_cvt_pk_bf16_f32 v{QA+j}, v{QA+2*j}, v{QA+2*j+1}")
        a(f"ds_write_b128 v{T0+10}, {vr(QA+4*hd,4)} offset:{2*QST*hd}\ns_nop 0")
        a(f"{MF32} {vr(24+16*hd,16)}, {vr(T0+4,4)}, {vr(QA+4*hd,4)}, 0")
    a("s_nop 1")
    maxtree(24, 56)
    a("v_mov_b32 v57, v56\ns_nop 1\nv_permlane32_swap_b32 v56, v57")
    maxtree(40, 58)
    a(f"""v_mov_b32 v59, v58
    v_max_f32 v56, v56, v57
    v_sub_f32 v60, {-OFFS}, v56
    v_permlane32_swap_b32 v58, v59
    v_sub_f32 v61, {-OFFS}, v56
    v_max_f32 v58, v58, v59
    v_mov_b64 v[62:63], v[60:61]
    v_sub_f32 v64, {-OFFS}, v58
    v_sub_f32 v65, {-OFFS}, v58
    ds_write_b128 v{T0+11}, v[60:63] offset:1024
    v_mov_b64 v[66:67], v[64:65]
    ds_write_b128 v{T0+11}, v[64:67] offset:{2*QST+1024}""")
    lds_inc(C_QREADY, gGC, 26)
    TS(5)
    AC = [136, 104, 120, 88]
    XB = 136
    vB1, gXA, gXT, gWA, gWB, gV1 = 8, 16, 17, 18, 19, 20
    a(f"""v_lshrrev_b32 v44, 2, v0
    v_and_b32 v45, 3, v0
    v_mul_u32_u24 v44, {W1P}, v44
    v_lshl_add_u32 v{gV1}, v45, 4, v44
    v_add_u32 v{gV1+1}, {128*W1P-1024}, v{gV1}
    v_add_u32 v{gV1+2}, {2*(128*W1P-1024)}, v{gV1}
    v_add_u32 v{gV1+3}, {3*(128*W1P-1024)}, v{gV1}
    v_and_b32 v44, 16, v0
    v_lshlrev_b32 v44, 1, v44
    v_lshl_add_u32 v{gTR}, v45, 3, v44
    s_waitcnt vmcnt(0)""")
    def w1_dma1(b): return f"buffer_load_dwordx4 v{gV1+b}, {sr(rW,4)}, s{sSO} offen offset:{b*1024} lds"
    a(f"""v_lshlrev_b32 v40, 1, v7
    v_and_b32 v41, 7, v0
    v_lshlrev_b32 v41, 7, v41
    v_and_b32 v44, 15, v0
    v_xor_b32 v44, v44, v{gH}
    v_lshlrev_b32 v44, 4, v44
    v_lshl_add_u32 v{gXA}, v7, 10, v44
    v_bfe_u32 v44, v0, 2, 2
    v_lshl_add_u32 v{gWB}, v44, 6, v{gTR}
    v_lshl_add_u32 v{gWB}, v{gH}, 9, v{gWB}
    v_add_u32 v{gWB}, s{sRNG}, v{gWB}""")
    a(f"""v_rcp_f32 v44, v{gRS}
    v_rcp_f32 v45, v{gRS+1}
    v_sub_u32 v48, v{gH}, 1
    s_mov_b32 s{sD}, 0xffff0000
    v_and_b32 v46, s{sD}, v44
    v_and_b32 v47, s{sD}, v45
    v_sub_f32 v44, v44, v46
    v_sub_f32 v45, v45, v47
    v_cvt_pk_bf16_f32 v12, v46, v44
    v_cvt_pk_bf16_f32 v14, v47, v45
    v_and_b32 v12, v48, v12
    v_and_b32 v14, v48, v14
    v_mov_b32 v9, 0
    v_mov_b64 v[10:11], 0
    v_mov_b32 v13, 0""")
    H0, H1 = 104, 120
    FB = [24, 56]
    FX = [88, 150]
    FX = [88, 152]
    def f1_reads(p, b):
        nx = 4 if not (p == 1 and b == 3) else 4
        return [f"ds_read_b64_tr_b16 {vr(FB[p]+8*b,2)}, v{gWA} offset:{b*1024}", f"ds_read_b64_tr_b16 {vr(FB[p]+8*b+2,2)}, v{gWA} offset:{b*1024+256}",
                f"ds_read_b128 {vr(FB[p]+8*b+4,4)}, v{gXT} offset:{b*256}", f"ds_read_b128 {vr(FX[p]+4*b,4)}, v{gXT} offset:{b*256+32768}"]
    gR2 = 6
    def bias():
        a(f"{MF32} {vr(H0,16)}, v[8:11], v[12:15], {vr(H0,16)}\n{MF32} {vr(H1,16)}, v[8:11], v[14:17], {vr(H1,16)}")
    def hzero():
        a(f"v_mfma_f32_32x32x8_bf16 {vr(H0,16)}, v[10:11], v[10:11], 0\nv_mfma_f32_32x32x8_bf16 {vr(H1,16)}, v[10:11], v[10:11], 0")
    a(f"""v_mul_f32 v{gR2}, v{gRS}, v{gRS}
    v_mul_f32 v{gR2+1}, v{gRS+1}, v{gRS+1}
    v_mov_b32 v{gWA}, v{gWB}
    v_mov_b32 v{gXT}, v{gXA}
    s_mov_b32 s{sN}, 0
    s_mov_b32 s{sM}, 0""")
    hzero()
    plan_lo = [(0, 22, 0, 22), (22, 22, 64, 68), (40, 21 + 128, 68, 77), (52, 21 + 128, 77, 86)]
    plan_hi = [(0, 26, 64, 72), (18, 26, 72, 80), (36, 18 + 128, 80, 86), (48, 16, 0, 64)]
    def pack(b): return sum(x << (8 * i) for i, x in enumerate(b))
    sPL, sSW, sS2 = 18, 19, 10
    a(f"s_mul_i32 s{sS2}, s{sCT}, {64*W1P}\ns_lshl_b32 s{sD}, s{sT2}, 6\ns_add_u32 s{sS2}, s{sS2}, s{sD}")
    a(f"s_mov_b32 s{sPL}, {pack(plan_hi[0])}")
    a(f"s_cmp_lt_u32 s{sG}, 3\ns_cselect_b32 s{sD}, 4, 0\ns_add_u32 s{sD}, s{sD}, s{sI}")
    for n, pl in enumerate(plan_hi + plan_lo):
        if n: a(f"s_cmp_eq_u32 s{sD}, {n}\ns_cselect_b32 s{sPL}, {pack(pl)}, s{sPL}")
    a(f"""s_lshr_b32 s{sD}, s{sPL}, 24
    s_mov_b32 s{rX}, s{pW2}
    s_mov_b32 s{rX+1}, s{pW2+1}
    s_lshl_b32 s{rX+2}, s{sD}, 14
    s_mov_b32 s{rX+3}, 0x20000
    s_and_b32 s{sSW}, s{sPL}, 0xff
    s_lshl_b32 s{sSW}, s{sSW}, 14
    s_lshl_b32 s{sD}, s{sG}, 7
    s_add_u32 s{sSW}, s{sSW}, s{sD}""")
    srd(rT, pB1, W1P)
    lds_spin(C_QREADY, 4, gGC, 56, sleep=0)
    lds_spin(C_KV, 8, gGC, 56, sleep=2)
    if opt.get("delay_f1"): lds_spin(C_ABAR, 16, gGC, 56, sleep=16)
    TS(15)
    late[0] = True
    for n in range(3):
        a(f"s_add_u32 m0, s{sRNG}, {n*4096}\ns_nop 0")
        for b in range(4): a(w1_dma1(b))
        a(f"s_add_u32 s{sSO}, s{sSO}, {16*W1P}")
    a(f"""s_lshl_b32 s{sC}, s{sT1}, 6
    s_lshl_b32 s{sD}, s{sT2}, 6
    s_lshl_b32 s{sF}, s{sRB}, 10
    s_add_u32 s{sF}, s{sF}, {FLG_KV}
    buffer_load_ushort v8, v40, {sr(rT,4)}, s{sC} offen
    buffer_load_ushort v15, v40, {sr(rT,4)}, s{sD} offen
    buffer_load_dword v{AC[0]+2}, v41, {sr(rWS,4)}, s{sF} offen offset:8 sc1
    s_waitcnt vmcnt(11)""")
    for b in range(4):
        for l in f1_reads(0, b): a(l)
    TS(3)
    a(".p2align 6")
    a.label("L_f1loop")
    for p in range(2):
        a(f"""s_add_u32 m0, s{sM}, s{sRNG}
        s_add_u32 s{sM}, s{sM}, 4096
        s_cmp_lt_u32 s{sM}, {RSZ}
        s_cselect_b32 s{sM}, s{sM}, 0
        s_add_u32 s{sN}, s{sN}, 1
        s_lshr_b32 s{sD}, s{sN}, 3
        s_and_b32 s{sD}, s{sD}, s{sCT}
        s_lshl_b32 s{sD}, s{sD}, 2
        s_add_u32 s{sD}, s{sD}, s{sN}
        s_and_b32 s{sD}, s{sD}, 7
        s_lshl_b32 s{sD}, s{sD}, 5
        v_add_u32 v{gWA}, s{sM}, v{gWB}
        v_xor_b32 v{gXT}, s{sD}, v{gXA}""")
        if p == 1:
            a(f"""s_cmp_eq_u32 s{sN}, 6
            s_cselect_b32 s{sSO}, s{sS2}, s{sSO}
            s_add_u32 s{sD}, s{sN}, 2
            s_cmp_lt_u32 s{sD}, s{sNG}
            s_cselect_b32 s{rW+2}, s{rW+2}, 0""")
        for b in range(4):
            rd = f1_reads(1 - p, b)
            if not opt.get("x_nolg"): a("s_waitcnt lgkmcnt(12)")
            a(f"{MF32} {vr(H0,16)}, {vr(FB[p]+8*b,4)}, {vr(FB[p]+8*b+4,4)}, {vr(H0,16)}")
            a(w1_dma1(b))
            a(rd[2]); a(rd[3])
            pad(P1A)
            a(f"{MF32} {vr(H1,16)}, {vr(FB[p]+8*b,4)}, {vr(FX[p]+4*b,4)}, {vr(H1,16)}")
            if not opt.get("x_novm"): a("s_waitcnt vmcnt(8)")
            a(rd[0]); a(rd[1])
            if b < 3: pad(P1B)
        a(f"s_add_u32 s{sSO}, s{sSO}, {16*W1P}")
    a(f"""s_cmp_lt_u32 s{sN}, 8
    s_cbranch_scc1 L_f1loop
    s_cmp_eq_u32 s{sN}, 10
    s_cbranch_scc1 L_f1pub""")
    TS(2)
    a(f"""s_getreg_b32 s{sD}, hwreg(HW_REG_XCC_ID)
    v_lshl_or_b32 v8, v8, 16, v8
    v_cmp_ne_u32 vcc, s{sD}, v{AC[0]+2}
    s_mul_i32 s{sD}, s{sRB}, 86
    s_lshl_b32 s{sC}, s{sT1}, 1
    s_add_u32 s{sD}, s{sD}, s{sC}
    s_lshl_b32 s{sD}, s{sD}, 11
    s_add_u32 s{sD}, s{sD}, {HF}
    s_mov_b32 s{sT1}, s{sT2}
    s_cmp_eq_u64 vcc, 0
    s_cselect_b32 s{sLOC}, {0 if opt.get("noloc") else 1}, 0
    s_cmp_eq_u32 s{sN}, 12
    s_cbranch_scc1 L_half""")
    bias()
    a(f"v_mov_b32 v8, v15\ns_nop 9")
    for rt, Hh in enumerate((H0, H1)):
        a.label(f"L_epi{rt}")
        for j in range(16): a(f"v_max_f32 v{Hh+j}, 0, v{Hh+j}")
        for j in range(8): a(f"v_pk_mul_f32 {vr(Hh+2*j,2)}, {vr(Hh+2*j,2)}, {vr(Hh+2*j,2)}")
        sel = "op_sel_hi:[1,0]" if rt == 0 else "op_sel:[0,1] op_sel_hi:[1,1]"
        for j in range(8): a(f"v_pk_mul_f32 {vr(Hh+2*j,2)}, {vr(Hh+2*j,2)}, {vr(gR2,2)} {sel}")
        for j in range(8): a(f"v_cvt_pk_bf16_f32 v{Hh+j}, v{Hh+2*j}, v{Hh+2*j+1}")
        hst = [f"buffer_store_dwordx4 {vr(Hh+4*s_,4)}, v{gL16}, {sr(rWS,4)}, s{sD} offen offset:{s_*2048+rt*1024}" for s_ in range(2)]
        if HLOC: grp_store(hst)
        else:
            for l in hst: a(l + " sc1")
        if rt == 0: a(f"s_cmp_eq_u32 s{sN}, 12\ns_cbranch_scc1 L_epid")
    a.label("L_epid")
    gSW2 = 22
    D2 = RSZ // 2048
    def w2_dma(u):
        a(f"""s_add_u32 m0, s{sRNG}, {u*2048}
        s_nop 0
        buffer_load_dwordx4 v{gSW}, {sr(rX,4)}, s{sSW} offen lds
        buffer_load_dwordx4 v{gSW2}, {sr(rX,4)}, s{sSW} offen offset:1024 lds
        s_add_u32 s{sSW}, s{sSW}, 16384""")
    PT = AC[0]
    a("s_nop 0")
    hzero()
    a(f"""s_cmp_lt_u32 s{sN}, s{sNG}
    s_cbranch_scc1 L_f1loop
    v_add_u32 v{gSW2}, {8192-1024}, v{gSW}
    s_cmp_eq_u32 s{sN}, 8
    s_cbranch_scc1 L_f1fill""")
    lds_spin(C_PX, 4, 26, 27, sleep=0)
    a.label("L_f1fill")
    for u in range(D2): w2_dma(u)
    a(f"s_waitcnt vmcnt({2*D2})")
    a.label("L_f1pub")
    a(f"""s_cmp_lt_u32 s{sN}, 12
    s_cselect_b32 s{sD}, 1, 16
    v_mov_b32 v{PT}, s{sD}
    s_mov_b64 exec, 1
    ds_add_rtn_u32 v{PT+1}, v{gGC}, v{PT} offset:{C_HDONE}
    s_mov_b64 exec, -1
    s_lshl_b32 s{sC}, s{sRB}, 3
    s_add_u32 s{sC}, s{sC}, s{sG}
    s_lshl_b32 s{sC}, s{sC}, 7
    s_lshr_b32 s{sD}, s{sD}, 1
    s_add_u32 s{sC}, s{sC}, s{sD}
    s_add_u32 s{sC}, s{sC}, {FLG_H}
    s_cmp_lt_u32 s{sG}, 3
    s_cselect_b32 s{sCAP}, 3, 1
    s_cmp_lt_u32 s{sN}, 12
    s_cselect_b32 s{sCAP}, 3, s{sCAP}
    s_cselect_b32 s{sD}, 0, 4
    s_waitcnt lgkmcnt(0)
    v_readfirstlane_b32 s{sF}, v{PT+1}
    s_nop 0
    s_lshr_b32 s{sF}, s{sF}, s{sD}
    s_and_b32 s{sF}, s{sF}, 15
    s_cmp_lg_u32 s{sF}, s{sCAP}
    s_cbranch_scc1 L_nohflag""")
    flag_store(sC, PT)
    a.label("L_nohflag")
    a(f"""s_cmp_eq_u32 s{sN}, 10
    s_cbranch_scc1 L_f1loop""")
    TS(6)
    sK0, sK1, sSH, sXC = 0, 1, sC, sB
    gA0, gA1, gHO0, gHO1, gFL, gWO = 8, 9, 10, 11, 12, 13
    gCN, gOA, gLA, gCV = 16, 17, 18, 19
    HR = 24
    AF = [152, 160]
    WOF, FA = 88, 72
    OFR = [[56, 60, 64, 68, 152, 156, 160, 164], [24 + 4 * gp for gp in range(8)]]
    sKT, sWM, sWS = 12, 13, 26
    sHB, sFH, sNF, sPF, sRET, sLOOP = 8, 9, 10, 11, 14, 20
    def ev_set():
        a(f"""s_mul_i32 s{sA}, s{sNF}, {OST}
        s_add_u32 s{sA}, s{sA}, {OACC}
        v_mov_b32 v{gCN}, s{sA}
        v_lshrrev_b32 v{gOA}, 1, v{gL16}
        v_and_b32 v{gLA}, 0xff, v{gOA}
        v_add_u32 v{gOA}, s{sA}, v{gOA}
        v_add_u32 v{gLA}, s{sA}, v{gLA}""")
    def o_flag():
        a(f"""s_lshl_b32 s{sA}, s{sRB}, 3
        s_add_u32 s{sA}, s{sA}, s{sG}
        s_lshl_b32 s{sA}, s{sA}, 4
        s_add_u32 s{sA}, s{sA}, s{sPF}
        s_lshl_b32 s{sA}, s{sA}, 3
        s_add_u32 s{sA}, s{sA}, {FLG_O}
        s_mov_b32 s{sPF}, s{sNF}""")
    srd(rW, pX, 0x200000)
    srd(rT, pB2, 1024)
    a(f"""v_and_b32 v41, 31, v0
    v_lshlrev_b32 v40, 4, v{gH}
    v_lshl_add_u32 v40, v41, 10, v40
    v_lshlrev_b32 v41, 1, v41
    s_lshl_b32 s{sA}, s{sG}, 7
    s_lshl_b32 s{sD}, s{sCT}, 6
    s_add_u32 s{sA}, s{sA}, s{sD}
    s_lshl_b32 s{sD}, s{sRB}, 16
    s_lshl_b32 s{sC}, s{sRT}, 15
    s_add_u32 s{sD}, s{sD}, s{sC}
    s_add_u32 s{sD}, s{sD}, s{sA}
    buffer_load_dwordx4 v[24:27], v40, {sr(rW,4)}, s{sD} offen
    buffer_load_dwordx4 v[28:31], v40, {sr(rW,4)}, s{sD} offen offset:32
    buffer_load_ushort v76, v41, {sr(rT,4)}, s{sA} offen""")
    a(f"""s_lshl_b32 s{sFH}, s{sRB}, 10
    s_add_u32 s{sFH}, s{sFH}, {FLG_H}
    v_and_b32 v{gFL}, 7, v0
    v_lshlrev_b32 v{gFL}, 7, v{gFL}
    v_bfe_u32 v{gR}, v0, 2, 2
    buffer_load_dwordx2 v[14:15], v{gFL}, {sr(rWS,4)}, s{sFH} offen sc1
    v_lshrrev_b32 v{gWO}, 1, v{gR}
    v_xor_b32 v{gWO}, s{sCT}, v{gWO}
    v_lshl_add_u32 v{gWO}, v{gWO}, 6, v{gTR}
    v_lshl_add_u32 v{gWO}, v{gR}, 7, v{gWO}
    v_lshl_add_u32 v{gWO}, v{gH}, 9, v{gWO}
    s_lshl_b32 s{sA}, s{sRT}, 10
    v_mov_b64 v[72:73], 0
    v_mov_b64 v[74:75], 0
    v_add_u32 v{gA0}, s{sRNG}, v{gWO}
    v_xor_b32 v{gA1}, 64, v{gA0}
    v_add_u32 v{gHO0}, s{sA}, v{gL16}
    v_xor_b32 v{gHO1}, 0x400, v{gHO0}""")
    a(f"{MF32} {vr(AC[3],16)}, v[72:75], v[72:75], 0")
    a(f"""v_sub_u32 v78, 1, v{gH}
    v_mov_b32 v77, 0
    v_mul_u32_u24 v78, 0x3f80, v78
    v_mov_b32 v79, 0
    s_mov_b32 s{sD}, 0xffff0000
    s_waitcnt vmcnt(1)""")
    for j in (24, 25, 28, 29): a(f"v_permlane32_swap_b32 v{j}, v{j+2}")
    for j in range(8): a(f"v_lshlrev_b32 v{AC[0]+2*j}, 16, v{24+j}\nv_and_b32 v{AC[0]+2*j+1}, s{sD}, v{24+j}")
    a(f"s_nop 1\nv_mfma_f32_32x32x8_bf16 {vr(AC[0],16)}, v[76:77], v[78:79], {vr(AC[0],16)}")
    def a_reads(u, p):
        for d, ga in enumerate((gA0, gA1)):
            a(f"ds_read_b64_tr_b16 {vr(AF[p]+4*d,2)}, v{ga} offset:{u*2048}\nds_read_b64_tr_b16 {vr(AF[p]+4*d+2,2)}, v{ga} offset:{u*2048+1024}")
    LDS_OFF = 0x30000
    a(f"""s_mul_i32 s{sHB}, s{sRB}, {86*2048}
    s_add_u32 s{sHB}, s{sHB}, {HF}
    s_and_b32 s{sSH}, s{sPL}, 0xff
    s_lshl_b32 s{sSH}, s{sSH}, 11
    s_add_u32 s{sSH}, s{sSH}, s{sHB}
    s_lshr_b32 s{sD}, s{sPL}, 24
    s_lshl_b32 s{sD}, s{sD}, 11
    s_mov_b32 s{rT}, s{pWS}
    s_mov_b32 s{rT+1}, s{pWS+1}
    s_add_u32 s{rT+2}, s{sD}, s{sHB}
    s_mov_b32 s{rT+3}, 0x20000
    s_bfe_u32 s{sK1}, s{sPL}, 0x70008
    s_sub_u32 s{sKT}, s{sK1}, {D2}
    s_mov_b32 s{rW}, s{pWO}
    s_mov_b32 s{rW+1}, s{pWO+1}
    s_lshl_b32 s{sWM}, s{sI}, 14
    s_lshl_b32 s{sWS}, s{sI}, 17
    s_add_u32 s{rW+2}, s{sWS}, 0x20000
    s_mov_b32 s{rW+3}, 0x20000
    s_lshl_b32 s{sA}, s{sG}, 7
    s_add_u32 s{sWS}, s{sWS}, s{sA}
    s_bitcmp1_b32 s{sPL}, 15
    s_cselect_b32 s27, 6, 12
    s_mov_b32 s{sK0}, 0
    s_xor_b32 s{sNF}, s{sCT}, 1
    s_lshl_b32 s{sNF}, s{sNF}, 1
    s_add_u32 s{sNF}, s{sNF}, s{sRT}
    s_mov_b32 s{sPF}, s{sNF}
    s_mov_b32 s{sLOOP}, 1""")
    ev_set()
    a(f"s_bfe_u32 s{sXC}, s{sPL}, 0x80010")
    flag_poll(gFL, sFH, 14, preissued=True, sleep=opt.get("hsleep", 2))
    TS(7)
    for u in range(D2):
        a(f"""buffer_load_dwordx4 {vr(HR+8*u,4)}, v{gHO0}, {sr(rT,4)}, s{sSH} offen sc1
        buffer_load_dwordx4 {vr(HR+8*u+4,4)}, v{gHO1}, {sr(rT,4)}, s{sSH} offen sc1
        s_add_u32 s{sSH}, s{sSH}, 2048""")
    a_reads(0, 0)
    a(f"ds_read_b32 v{gCV}, v{gCN} offset:{B_CNT}")
    a(f"s_add_u32 s{sFH}, s{sFH}, 8\ns_waitcnt vmcnt(0)")
    if opt.get("x_noh"): a(f"s_mov_b32 s{rT+2}, 0")
    if opt.get("x_now"): a(f"s_mov_b32 s{rX+2}, 0")
    TS(1)
    a(".p2align 6")
    a.label("L_f2loop")
    for u in range(D2):
        p = u & 1
        def mf(j): a(f"{MF32} {vr(AC[j],16)}, {vr(AF[p]+4*(j&1),4)}, {vr(HR+8*u+4*(j>>1),4)}, {vr(AC[j],16)}")
        a(f"s_waitcnt vmcnt({4*(D2-2)}) lgkmcnt(0)")
        mf(0)
        a_reads((u + 1) % D2, 1 - p)
        pad(P2A)
        mf(1)
        if u == 0:
            a("s_branch L_trip")
            a.label("L_tripped")
        elif u == D2 - 1: a(f"ds_read_b32 v{gCV}, v{gCN} offset:{B_CNT}")
        a(f"s_add_u32 m0, s{sRNG}, {u*2048}\ns_cmp_ge_u32 s{sK0}, s{sKT}\ns_cbranch_scc1 L_tail{u}")
        a(f"""buffer_load_dwordx4 v{gSW}, {sr(rX,4)}, s{sSW} offen lds
        buffer_load_dwordx4 v{gSW2}, {sr(rX,4)}, s{sSW} offen offset:1024 lds""")
        mf(2)
        a(f"""buffer_load_dwordx4 {vr(HR+8*u,4)}, v{gHO0}, {sr(rT,4)}, s{sSH} offen sc1
        s_add_u32 s{sSW}, s{sSW}, 16384
        s_add_u32 s{sK0}, s{sK0}, 1""")
        pad(P2C)
        mf(3)
        a(f"buffer_load_dwordx4 {vr(HR+8*u+4,4)}, v{gHO1}, {sr(rT,4)}, s{sSH} offen sc1\ns_add_u32 s{sSH}, s{sSH}, 2048")
        if u == D2 - 1: a("s_branch L_f2loop")
        else: pad(P2D)
        a.label(f"L_next{u}")
    for u in range(D2):
        p = u & 1
        a.label(f"L_tail{u}")
        for j in (2, 3):
            a(f"{MF32} {vr(AC[j],16)}, {vr(AF[p]+4*(j&1),4)}, {vr(HR+8*u+4*(j>>1),4)}, {vr(AC[j],16)}")
            if j == 2: a(f"s_call_b64 s[96:97], L_wo4")
        a(f"""s_add_u32 s{sK0}, s{sK0}, 1
        s_cmp_lt_u32 s{sK0}, s{sK1}
        s_cbranch_scc1 {"L_f2loop" if u == D2 - 1 else f"L_next{u}"}""")
        if u < D2 - 1: a("s_branch L_f2done")
    a("s_branch L_f2done")
    a.label("L_wo4")
    a(f"""s_cmp_lg_u32 s{sK0}, s{sKT}
    s_cbranch_scc1 L_wo4b
    s_cmp_lt_u32 s{sG}, 3
    s_cselect_b32 s{sD}, 68, 36""")
    lds_spin(C_HDONE, f"s{sD}", gGC, 20, sleep=1)
    a.label("L_wo4b")
    a(f"""s_cmp_ge_u32 s{sWS}, s{rW+2}
    s_cbranch_scc1 L_wo4c""")
    for _ in range(2):
        a(f"""s_mov_b32 m0, s{sWM}
        s_add_u32 s{sWM}, s{sWM}, 2048
        buffer_load_dwordx4 v{gSW}, {sr(rW,4)}, s{sWS} offen lds
        buffer_load_dwordx4 v{gSW2}, {sr(rW,4)}, s{sWS} offen offset:1024 lds
        s_add_u32 s{sWS}, s{sWS}, 16384""")
    a.label("L_wo4c")
    a(f"s_setpc_b64 s[96:97]")
    a.label("L_f2done")
    TS(8)
    sJ, sFO, sOO, sRDY = 0, 1, sB, 21
    def wo_reads():
        for gp in range(8):
            a(f"ds_read_b64_tr_b16 {vr(WOF+4*gp,2)}, v{gWO} offset:{gp*8192}\nds_read_b64_tr_b16 {vr(WOF+4*gp+2,2)}, v{gWO} offset:{gp*8192+1024}")
        a(f"v_add_u32 v{gWO}, 2048, v{gWO}")
    def o_loads(bf):
        a(f"s_mov_b32 s{sA}, s{sOO}")
        for gp in range(8):
            a(f"buffer_load_dwordx4 {vr(OFR[bf][gp],4)}, v{gL16}, {sr(rWS,4)}, s{sA} offen sc1\ns_add_u32 s{sA}, s{sA}, 4096")
        a(f"s_add_u32 s{sOO}, s{sOO}, 1024\ns_add_u32 s{sJ}, s{sJ}, 1")
    def o_mf(bf, after):
        a(f"s_waitcnt lgkmcnt(0)")
        for gp in range(8):
            a(f"s_waitcnt vmcnt({7-gp+after})\n{MF32} {vr(AC[0],16)}, {vr(WOF+4*gp,4)}, {vr(OFR[bf][gp],4)}, {vr(AC[0],16)}")
            if gp < 7: pad(PO)
    a(f"""s_lshl_b32 s{sFO}, s{sRB}, 10
    s_lshl_b32 s{sA}, s{sRT}, 3
    s_add_u32 s{sFO}, s{sFO}, s{sA}
    s_add_u32 s{sFO}, s{sFO}, {FLG_O}
    v_and_b32 v20, 24, v0
    v_lshl_add_u32 v{gFL}, v20, 1, v{gFL}
    v_add_u32 v23, s{sRNG}, v{gL16}
    buffer_load_dwordx2 v[14:15], v{gFL}, {sr(rWS,4)}, s{sFO} offen sc1
    s_lshl_b32 s{sOO}, s{sRB}, 1
    s_add_u32 s{sOO}, s{sOO}, s{sRT}
    s_lshl_b32 s{sOO}, s{sOO}, 15
    s_add_u32 s{sOO}, s{sOO}, {OF}
    s_mov_b32 s{sJ}, 0
    s_mov_b32 s{sLOOP}, 0
    s_mov_b32 s23, 0""")
    srd(rT, pOUT, 0x200000)
    a(f"""s_waitcnt vmcnt(1) lgkmcnt(0)
    s_cmp_ge_u32 s{sPF}, s{sNF}
    s_cbranch_scc1 L_nopf""")
    o_flag()
    flag_store(sA, 20)
    a.label("L_nopf")
    for j in range(1, 4):
        for q in range(4): a(f"ds_write_b128 v23, {vr(AC[j]+4*q,4)} offset:{(j-1)*4096+q*1024}")
    lds_inc(C_GBAR, gGC, 23)
    a(f"""s_waitcnt vmcnt(0)
    v_cmp_ne_u64 vcc, {sr(sEP,2)}, v[14:15]
    s_nop 1
    s_mov_b32 s{sRDY}, vcc_lo
    s_and_b32 s22, s{sRDY}, 0xffff
    s_cbranch_scc1 L_red""")
    o_loads(1)
    o_loads(0)
    a.label("L_red")
    lds_spin(C_GBAR, 4, gGC, 14, sleep=1)
    for j in range(1, 4):
        a(f"s_xor_b32 s{sA}, s{sI}, {j}\ns_mul_i32 s{sA}, s{sA}, {RSZ}\ns_add_u32 s{sA}, s{sA}, {RING}\nv_add_u32 v14, s{sA}, v{gL16}")
        for q in range(4): a(f"ds_read_b128 {vr(AC[j]+4*q,4)}, v14 offset:{(j-1)*4096+q*1024}")
    for j in range(1, 4):
        a(f"s_waitcnt lgkmcnt({(3-j)*4})")
        for q in range(8): a(f"v_pk_add_f32 {vr(AC[0]+2*q,2)}, {vr(AC[0]+2*q,2)}, {vr(AC[j]+2*q,2)}")
    wo_reads()
    TS(9)
    a(f"""s_cmp_eq_u32 s22, 0
    s_cbranch_scc1 L_pair""")
    a.label("L_ev")
    a(f"""s_cmp_ge_u32 s{sPF}, s{sNF}
    s_cbranch_scc1 L_evf""")
    o_flag()
    a("s_waitcnt vmcnt(0)")
    flag_store(sA, 14)
    TS(13)
    a.label("L_evf")
    a(f"""s_add_u32 s23, s23, 1
    s_cmp_gt_u32 s23, {SPIN_CAP}
    s_cbranch_scc1 L_gdone
    s_cmp_ge_u32 s{sNF}, 8
    s_cbranch_scc1 L_evr
    ds_read_b32 v{gCV}, v{gCN} offset:{B_CNT}
    s_waitcnt lgkmcnt(0)
    v_readfirstlane_b32 s{sA}, v{gCV}
    s_nop 0
    s_bitcmp1_b32 s{sA}, 3
    s_cbranch_scc1 L_fin""")
    a.label("L_evr")
    a(f"""s_cmp_lt_u32 s{sJ}, 4
    s_cbranch_scc1 L_evc
    s_cmp_ge_u32 s{sNF}, 8
    s_cbranch_scc1 L_gdone
    s_sleep 1
    s_branch L_evf""")
    a.label("L_evc")
    a(f"""s_lshl_b32 s{sA}, s{sJ}, 1
    s_add_u32 s{sA}, s{sA}, s{sRT}
    s_cmp_eq_u32 s{sA}, s{sNF}
    s_cbranch_scc1 L_evf
    s_lshl_b32 s{sD}, s{sJ}, 3
    s_lshr_b32 s{sA}, s{sRDY}, s{sD}
    s_and_b32 s{sA}, s{sA}, 0xff
    s_cbranch_scc0 L_cons
    buffer_load_dwordx2 v[14:15], v{gFL}, {sr(rWS,4)}, s{sFO} offen sc1
    s_waitcnt vmcnt(0)
    v_cmp_ne_u64 vcc, {sr(sEP,2)}, v[14:15]
    s_nop 1
    s_mov_b32 s{sRDY}, vcc_lo
    s_lshr_b32 s{sA}, s{sRDY}, s{sD}
    s_and_b32 s{sA}, s{sA}, 0xff
    s_cbranch_scc0 L_cons
    s_sleep {opt.get("evsleep", 2)}
    s_branch L_ev""")
    a.label("L_cons")
    TS(4)
    a(f"""s_lshr_b32 s{sA}, s{sRDY}, s{sD}
    s_and_b32 s{sA}, s{sA}, 0xffff
    s_cbranch_scc1 L_cons1
    s_cmp_eq_u32 s{sJ}, 3
    s_cbranch_scc1 L_cons1""")
    o_loads(1)
    o_loads(0)
    a.label("L_pair")
    o_mf(1, 8)
    wo_reads()
    a("s_branch L_cons2")
    a.label("L_cons1")
    o_loads(0)
    a.label("L_cons2")
    o_mf(0, 0)
    a(f"""s_cmp_ge_u32 s{sJ}, 4
    s_cbranch_scc1 L_out""")
    wo_reads()
    a("s_branch L_ev")
    a.label("L_out")
    TS(10)
    a(f"""v_and_b32 v14, 31, v0
    v_lshlrev_b32 v15, 4, v{gH}
    v_lshl_add_u32 v14, v14, 10, v15
    s_lshl_b32 s{sA}, s{sG}, 7
    s_lshl_b32 s{sD}, s{sCT}, 6
    s_add_u32 s{sA}, s{sA}, s{sD}
    s_lshl_b32 s{sD}, s{sRB}, 16
    s_add_u32 s{sA}, s{sA}, s{sD}
    s_lshl_b32 s{sD}, s{sRT}, 15
    s_add_u32 s{sA}, s{sA}, s{sD}""")
    for j in range(8): a(f"v_cvt_pk_bf16_f32 v{AC[0]+j}, v{AC[0]+2*j}, v{AC[0]+2*j+1}")
    for j in (0, 1, 4, 5): a(f"v_permlane32_swap_b32 v{AC[0]+j}, v{AC[0]+j+2}")
    for q in range(2): a(f"buffer_store_dwordx4 {vr(AC[0]+4*q,4)}, v14, {sr(rT,4)}, s{sA} offen offset:{32*q} {opt.get('ost', '')}")
    a("s_branch L_ev")
    a.label("L_half")
    a(f"""s_xor_b32 s{sC}, s{sI}, 1
    s_mul_i32 s{sC}, s{sC}, {RSZ}
    s_add_u32 s{sC}, s{sC}, {RING}
    s_waitcnt lgkmcnt(0)
    v_add_u32 v24, s{sRNG}, v{gL16}
    v_add_u32 v25, s{sC}, v{gL16}
    v_lshl_add_u32 v26, s{sRT}, 2, v{gGC}
    s_waitcnt vmcnt(0)
    s_cmp_eq_u32 s{sCT}, 0
    s_cbranch_scc0 L_half1""")
    for keep, (Hk, Hs) in enumerate(((H0, H1), (H1, H0))):
        if keep: a.label("L_half1")
        for q in range(4): a(f"ds_write_b128 v24, {vr(Hs+4*q,4)} offset:{q*1024}")
        a(f"{MF32} {vr(Hk,16)}, v[8:11], {'v[12:15]' if keep == 0 else 'v[14:17]'}, {vr(Hk,16)}")
        lds_inc(C_PX, 26, 27)
        lds_spin(C_PX, 2, 26, 27, sleep=0)
        for q in range(4): a(f"ds_read_b128 {vr(Hs+4*q,4)}, v25 offset:{q*1024}")
        a("s_waitcnt lgkmcnt(0)")
        lds_inc(C_PX, 26, 27)
        for q in range(8): a(f"v_pk_add_f32 {vr(Hk+2*q,2)}, {vr(Hk+2*q,2)}, {vr(Hs+2*q,2)}")
        a(f"s_branch L_epi{keep}")
    a.label("L_trip")
    def tripstamp():
        if opt.get("f2ts"):
            a("s_memtime s[98:99]\ns_waitcnt lgkmcnt(0)")
            for i in range(1, 10): a(f"s_mov_b32 s{TS0+2*i}, s{TS0+2*i+2}")
            a(f"s_mov_b32 s{TS0+20}, s98")
    tripstamp()
    a(f"""s_setprio 3
    v_readfirstlane_b32 s{sD}, v{gCV}
    s_cmp_ge_u32 s{sPF}, s{sNF}
    s_cbranch_scc1 L_trip1""")
    o_flag()
    flag_store(sA, 20)
    a.label("L_trip1")
    a(f"""s_add_u32 s{sA}, s{sK0}, {D2}
    s_cmp_lg_u32 s{sA}, s27
    s_cbranch_scc1 L_trip1b
    buffer_load_dwordx2 v[14:15], v{gFL}, {sr(rWS,4)}, s{sFH} offen sc1""")
    a.label("L_trip1b")
    a(f"""s_cmp_lg_u32 s{sK0}, s27
    s_cbranch_scc1 L_trip2
    s_cmp_eq_u32 s{sXC}, 0
    s_cbranch_scc1 L_trip2
    v_cmp_ne_u64 vcc, {sr(sEP,2)}, v[14:15]
    s_lshl_b32 s{sSW}, s{sXC}, 14
    s_lshl_b32 s{sA}, s{sG}, 7
    s_add_u32 s{sSW}, s{sSW}, s{sA}
    s_lshl_b32 s{sSH}, s{sXC}, 11
    s_add_u32 s{sSH}, s{sSH}, s{sHB}""")
    a("s_cbranch_vccz L_crossok")
    flag_poll(gFL, sFH, 14, sleep=opt.get("hsleep", 2))
    a.label("L_crossok")
    TS(14)
    a.label("L_trip2")
    a(f"""s_cmp_lt_u32 s{sNF}, 8
    s_cselect_b32 s{sD}, s{sD}, 0
    s_cmp_eq_u32 s{sLOOP}, 1
    s_cselect_b32 s{sD}, s{sD}, 0
    s_bitcmp1_b32 s{sD}, 3
    s_cbranch_scc1 L_fin""")
    a.label("L_trip3")
    tripstamp()
    a(f"s_setprio {GP}\ns_branch L_tripped")
    a.label("L_fin")
    for j in range(7, -1, -1): a(f"ds_read_b64 {vr(FA+2*j,2)}, v{gOA} offset:{512*j}")
    a(f"""ds_read_b64 v[20:21], v{gLA} offset:{B_L}
    s_mov_b32 s{sD}, 0
    s_waitcnt lgkmcnt(0)""")
    for j in range(7, -1, -1): a(f"v_cvt_f32_f64 v{FA+8+j}, {vr(FA+2*j,2)}")
    a(f"v_cvt_f32_f64 v{FA}, v[20:21]")
    a.label("L_fin2")
    a(f"""s_and_b32 s{sA}, s{sNF}, 1
    s_lshl_b32 s{sF}, s{sRB}, 1
    v_rcp_f32 v{FA+1}, v{FA}
    s_add_u32 s{sA}, s{sA}, s{sF}
    s_lshl_b32 s{sA}, s{sA}, 3
    s_add_u32 s{sA}, s{sA}, s{sG}
    v_mov_b32 v{FA+3}, 0x76800000
    v_cmp_nle_f32 vcc, 0x0d800000, v{FA}
    v_cmp_nle_f32 {sr(sRET,2)}, v{FA}, v{FA+3}""")
    for j in range(8): a(f"v_mul_f32 v{FA+8+j}, v{FA+8+j}, v{FA+1}")
    a(f"""s_or_b64 {sr(sRET,2)}, {sr(sRET,2)}, vcc
    s_lshl_b32 s{sA}, s{sA}, 2
    s_lshr_b32 s{sF}, s{sNF}, 1
    s_add_u32 s{sA}, s{sA}, s{sF}
    s_lshl_b32 s{sA}, s{sA}, 10
    s_add_u32 s{sA}, s{sA}, {OF}""")
    for j in range(4): a(f"v_cvt_pk_bf16_f32 v{FA+4+j}, v{FA+8+2*j}, v{FA+9+2*j}")
    a(f"v_pk_mul_f32 {vr(FA+2,2)}, {vr(FA+8,2)}, 0")
    for j in range(1, 4): a(f"v_pk_fma_f32 {vr(FA+2,2)}, {vr(FA+8+2*j,2)}, 0, {vr(FA+2,2)}")
    a(f"""v_cmp_u_f32 vcc, v{FA+2}, v{FA+3}
    s_nop 1
    s_or_b64 {sr(sRET,2)}, {sr(sRET,2)}, vcc
    s_cselect_b32 s{sF}, 1, 0
    s_cmp_gt_u32 s{sF}, s{sD}
    {"s_nop 0" if opt.get("nofb") else "s_cbranch_scc1 L_fallback"}
    s_add_u32 s{sNF}, s{sNF}, 4""")
    grp_store([f"buffer_store_dwordx4 {vr(FA+4,4)}, v{gL16}, {sr(rWS,4)}, s{sA} offen"])
    ev_set()
    a(f"""s_cmp_eq_u32 s{sLOOP}, 0
    s_cbranch_scc1 L_ev
    s_branch L_trip3""")
    a.label("L_gdone")
    if ts: a("s_waitcnt vmcnt(0)")
    TS(11)
    if opt.get("padto"):
        a.label("L_pad")
        a(f"s_memrealtime s[96:97]\ns_waitcnt lgkmcnt(0)\ns_sub_u32 s96, s96, s{sEP}\ns_cmp_lt_u32 s96, {opt['padto']}\ns_cbranch_scc1 L_pad")
    ts_dump()
    a.label("L_end")
    a("s_endpgm")

    for X, Y, lines in far:
        a.label(X)
        for l in lines: a(l + " sc1")
        a(f"s_branch {Y}")
    a.label("L_fallback")
    FQ, FK, FV, FS, FC, FT = 24, 28, 32, 40, 56, 120
    a(f"""s_cmp_eq_u32 s{sLOOP}, 0
    s_cbranch_scc1 L_fbgo
    s_mov_b32 s{sLOOP}, 2
    s_branch L_trip3""")
    a.label("L_fbgo")
    a(f"""s_mul_i32 s{sA}, s{sNF}, {QST}
    s_add_u32 s{sA}, s{sA}, {QF}
    v_add_u32 v{FT}, s{sA}, v{gL16}
    ds_read_b128 {vr(FQ,4)}, v{FT}
    v_mov_b32 v{FT+2}, 0xff800000""")
    a(f"s_mov_b32 s{sA}, 0")
    a.label("L_fb1")
    a(f"""buffer_load_dwordx4 {vr(FK,4)}, v{gL16}, {sr(rWS,4)}, s{sA} offen sc1
    s_waitcnt vmcnt(0) lgkmcnt(0)
    {MF32} {vr(FS,16)}, {vr(FK,4)}, {vr(FQ,4)}, 0
    s_nop 11""")
    maxtree(FS, FT + 3)
    a(f"""v_max_f32 v{FT+2}, v{FT+2}, v{FT+3}
    s_add_u32 s{sA}, s{sA}, 1024
    s_cmp_lt_u32 s{sA}, 0x10000
    s_cbranch_scc1 L_fb1
    v_mov_b32 v{FT+3}, v{FT+2}
    s_nop 1
    v_permlane32_swap_b32 v{FT+2}, v{FT+3}
    v_max_f32 v{FT+2}, v{FT+2}, v{FT+3}""")
    for i in range(16): a(f"v_sub_f32 v{FC+i}, 0, v{FT+2}\nv_mov_b32 v{FA+i}, 0")
    a(f"s_mov_b32 s{sA}, 0")
    a.label("L_fb2")
    a(f"""s_add_u32 s{sF}, s{sA}, {VF}
    buffer_load_dwordx4 {vr(FK,4)}, v{gL16}, {sr(rWS,4)}, s{sA} offen sc1
    buffer_load_dwordx4 {vr(FV,4)}, v{gL16}, {sr(rWS,4)}, s{sF} offen sc1""")
    for i in range(4): a(f"v_mov_b32 v{FV+4+i}, 0x3f803f80")
    a(f"""s_waitcnt vmcnt(0)
    {MF32} {vr(FS,16)}, {vr(FK,4)}, {vr(FQ,4)}, {vr(FC,16)}""")
    for i in range(4): a(f"v_permlane16_swap_b32 v{FV+4+i}, v{FV+i}")
    a("s_nop 7")
    for i in range(16): a(e(FS, i))
    a("s_nop 0")
    for j in range(8): a(c(FS, j))
    a(f"""s_nop 1
    {MF32} {vr(FA,16)}, {vr(FV,4)}, {vr(FS,4)}, {vr(FA,16)}
    {MF32} {vr(FA,16)}, {vr(FV+4,4)}, {vr(FS+8,4)}, {vr(FA,16)}
    s_add_u32 s{sA}, s{sA}, 1024
    s_cmp_lt_u32 s{sA}, 0x10000
    s_cbranch_scc1 L_fb2
    s_nop 15
    s_mov_b32 s{sD}, 1
    s_branch L_fin2""")

    if opt.get("x_nomf"):
        i0 = a.lines.index("L_f1loop:"); i1 = a.lines.index("L_gdone:")
        for i in range(i0, i1):
            if a.lines[i].startswith("v_mfma"): a.lines[i] = "s_nop 9"
    if opt.get("x_nolds"):
        i0 = a.lines.index("L_f1loop:"); i1 = a.lines.index("L_f2done:")
        for i in range(i0, i1):
            if a.lines[i].startswith(("ds_read_b128", "ds_read_b64_tr")): a.lines[i] = "s_nop 0"
    if opt.get("x_mf16"):
        import re
        i0 = a.lines.index("L_f1loop:"); i1 = a.lines.index("L_f2done:")
        for i in range(i1, i0, -1):
            m = re.match(r"v_mfma_f32_32x32x16_bf16 v\[(\d+):\d+\], (\S+), (\S+), v", a.lines[i])
            if m:
                d = int(m.group(1))
                a.lines[i:i+1] = [f"v_mfma_f32_16x16x32_bf16 v[{d+4*q}:{d+4*q+3}], {m.group(2)}, {m.group(3)}, v[{d+4*q}:{d+4*q+3}]" for q in range(2)]
    i0 = a.lines.index("L_atop:"); i1 = a.lines.index("L_vs0:")
    for i in range(i1, i0, -1):
        l = a.lines[i]
        if opt.get("y_noadd") and l.startswith("ds_add_f64"): del a.lines[i]
        elif opt.get("y_nocvt") and l.startswith("v_cvt_f64"): del a.lines[i]
        elif opt.get("y_noq") and l.startswith("ds_read_b128"): del a.lines[i]
        elif opt.get("y_noexec") and ("exec_hi" in l): del a.lines[i]
        elif opt.get("y_nobr") and l.startswith("s_cbranch_vccnz"): del a.lines[i]
    if opt.get("x_p0", 1):
        i0 = a.lines.index("L_f1loop:"); i1 = a.lines.index("L_gdone:")
        for i in range(i1, i0, -1):
            if a.lines[i].startswith("v_mfma"): a.lines[i:i+1] = ["s_setprio 0", a.lines[i], "s_setprio 3"]
    probs = lint(a.lines)
    for p in probs: print("LINT", p, file=sys.stderr)
    head = f"""; fused layernorm + MQA attention + squared-relu FFN, one persistent launch (generated by gen/gen.py)
; @launch grid=(256,1,1) block=(768,1,1) lds=163840
.amdgcn_target "amdgcn-amd-amdhsa--gfx950"
.text
.globl {NAME}_kernel
.p2align 8
.type {NAME}_kernel,@function
{NAME}_kernel:
"""
    tail = f""".section .rodata,"a"
.p2align 6
.amdhsa_kernel {NAME}_kernel
  .amdhsa_next_free_vgpr 168
  .amdhsa_next_free_sgpr 100
  .amdhsa_accum_offset 168
  .amdhsa_group_segment_fixed_size 0
  .amdhsa_kernarg_size 104
  .amdhsa_user_sgpr_count 2
  .amdhsa_user_sgpr_kernarg_segment_ptr 1
  .amdhsa_system_sgpr_workgroup_id_x 1
.end_amdhsa_kernel
"""
    return head + a.text() + tail

if __name__ == "__main__":
    open("k.s", "w").write(gen(False))
    open("k_ts.s", "w").write(gen(True))
    open("k_ts_c.s", "w").write(gen(True, dict(cyc=1)))
    open("k_o1.s", "w").write(gen(False, dict(ost="sc1")))
    open("k_o2.s", "w").write(gen(False, dict(ost="nt")))
    open("k_o3.s", "w").write(gen(False, dict(ost="sc0 sc1")))
```

```python
import sys
from asmlib import Asm, vr, sr, lint
NAME = "parallel_sum__grouped_kv_mqa__dense_activation_squared_relu__prompt"

KF, VF, FLG_KV, FLG_H, FLG_O, OF, HF, TSB = 0, 0x10000, 0x20000, 0x28000, 0x30000, 0x40000, 0x240000, 0x800000
OT = 0x900000
WS_BYTES = 0xA00000
XN, RING, WKV = 0, 65536, 131072
RSZ = 12288
OACC, OST = 114688, 4608
B_L, B_CNT = 4096, 4352
QF, QST = 151552, 1536
KT = OACC + 7 * OST + 1024
RSTD = KT + 2048
GC = OACC + 7 * OST + B_CNT + 16
C_QREADY, C_ABAR, C_HDONE, C_GBAR, C_WQ, C_KV, C_RS, C_L0, C_EPOCH, C_PX, C_KT, C_WQ2, C_FL, C_XN = 0, 4, 8, 12, 16, 20, 24, 28, 32, 40, 48, 52, 56, 60
W1P = 2752
OFFS = 90.0
SPIN_CAP = 1 << 17

sW, sRB, sG, sKG, sCH = 3, 4, 5, 6, 7
pX, pWQ, pWK, pWV, pWO, pW1, pB1, pW2, pB2, pOUT, pDBG, pWS = 8, 10, 12, 14, 16, 20, 22, 24, 26, 28, 30, 32
rX, rWS, rW, rT = 36, 40, 44, 48
sEP = 52
sI, sRT, sCT = 54, 55, 56
sA, sB, sC, sD, sE, sF = 57, 58, 59, 60, 61, 62
sCAP = 63
sM = 34
TS0 = 64
MF32 = "v_mfma_f32_32x32x16_bf16"

def gen(ts=False, opt={}):
    a = Asm()
    OFFS = float(opt.get('offs', 102))
    LMIN = (127 - int(OFFS) - 2) << 23
    GP = opt.get('gp', 3)
    P1A, P1B, P2A, P2C, P2D, PO = opt.get('pads', (-1, -1, -1, -1, -1, -1))
    def pad(n):
        if n >= 0: a(f's_nop {n}')
    late = [False]
    role = ["A"]
    def TS(i):
        if opt.get("probe") == (role[0], i) and not (late[0] and opt.get("pearly")): a("s_memrealtime s[98:99]")
        if opt.get("lite") and i not in ((0, 6, 9) if role[0] == "A" else (0, 11)): return
        if opt.get("pro") and late[0] and i != 11: return
        if opt.get("f2ts") and late[0]: i = {7: 12, 8: 13, 6: 14, 11: 11}.get(i)
        if i is None: return
        if ts: a(f"{'s_memtime' if opt.get('cyc') else 's_memrealtime'} {sr(TS0 + 2 * i, 2)}")
    def srd(r, p, n):
        a(f"s_mov_b32 s{r}, s{p}\ns_mov_b32 s{r+1}, s{p+1}\ns_mov_b32 s{r+2}, {n}\ns_mov_b32 s{r+3}, 0x20000")
    def lds_spin(off, val, va, vt, sleep=1):
        L = a.newlabel("spin"); D = a.newlabel("spun")
        a(f"s_mov_b32 s{sCAP}, 0")
        a.label(L)
        a(f"""ds_read_b32 v{vt}, v{va} offset:{off}
        s_add_u32 s{sCAP}, s{sCAP}, 1
        s_waitcnt lgkmcnt(0)
        v_readfirstlane_b32 s{sF}, v{vt}
        s_cmp_gt_u32 s{sCAP}, {SPIN_CAP}
        s_cbranch_scc1 {D}""")
        if sleep:
            a(f"s_cmp_ge_u32 s{sF}, {val}\ns_cbranch_scc1 {D}\ns_sleep {sleep}\ns_branch {L}")
        else:
            a(f"s_cmp_lt_u32 s{sF}, {val}\ns_cbranch_scc1 {L}")
        a.label(D)
    def lds_inc(off, va, vt):
        a(f"v_mov_b32 v{vt}, 1\ns_mov_b64 exec, 1\nds_add_u32 v{va}, v{vt} offset:{off}\ns_mov_b64 exec, -1")
    def flag_poll(va, soff, vt, sleep=2, preissued=False):
        L = a.newlabel("poll"); D = a.newlabel("polled")
        a(f"s_mov_b32 s{sCAP}, 0")
        if preissued: a(f"s_branch {L}w")
        a.label(L)
        a(f"buffer_load_dwordx2 {vr(vt,2)}, v{va}, {sr(rWS,4)}, s{soff} offen sc1")
        a.label(L + "w")
        a(f"""s_add_u32 s{sCAP}, s{sCAP}, 1
        s_waitcnt vmcnt(0)
        v_cmp_ne_u64 vcc, {sr(sEP,2)}, {vr(vt,2)}
        s_cmp_gt_u32 s{sCAP}, {SPIN_CAP}
        s_cbranch_scc1 {D}
        s_cbranch_vccz {D}
        s_sleep {sleep}
        s_branch {L}""")
        a.label(D)
    sLOC = 25
    def grp_store(lines):
        X = a.newlabel("far"); Y = a.newlabel("std")
        a(f"s_cmp_eq_u32 s{sLOC}, 0\ns_cbranch_scc1 {X}")
        for l in lines: a(l)
        a.label(Y)
        far.append((X, Y, lines))
    far = []
    def flag_store(soff, vt):
        a(f"v_mov_b64 {vr(vt,2)}, {sr(sEP,2)}\ns_mov_b64 exec, 1")
        grp_store([f"buffer_store_dwordx2 {vr(vt,2)}, off, {sr(rWS,4)}, s{soff}"])
        a("s_mov_b64 exec, -1")
    def ts_dump():
        if opt.get("probe") and opt["probe"][0] == role[0]:
            L = a.newlabel("pad")
            a.label(L)
            a(f"s_sleep 2\ns_memrealtime s[96:97]\ns_waitcnt lgkmcnt(0)\ns_sub_u32 s96, s96, s98\ns_cmp_lt_u32 s96, 4000\ns_cbranch_scc1 {L}")
        if not ts: return
        a(f"""s_sleep 127
        s_sleep 127
        s_sleep 127
        s_waitcnt lgkmcnt(0)
        s_mul_i32 s{sA}, s2, 12
        s_add_u32 s{sA}, s{sA}, s{sW}
        s_lshl_b32 s{sA}, s{sA}, 6
        s_add_u32 s{sA}, s{sA}, {TSB}
        s_mov_b64 exec, 1""")
        for q in range(4):
            for j in range(4): a(f"v_mov_b32 v{4+j}, s{TS0 + 2 * (4 * q + j)}")
            a(f"buffer_store_dwordx4 v[4:7], off, {sr(rWS,4)}, s{sA} offset:{16*q}\ns_nop 1")
        a("s_waitcnt vmcnt(0)")
    def maxtree(S, d):
        a(f"v_max3_f32 v{d}, v{S}, v{S+1}, v{S+2}")
        for j in range(3, 15, 2): a(f"v_max3_f32 v{d}, v{d}, v{S+j}, v{S+j+1}")
        a(f"v_max_f32 v{d}, v{d}, v{S+15}")
    def e(S, i): return f"v_exp_f32 v{S+i}, v{S+i}"
    def c(S, j): return f"v_cvt_pk_bf16_f32 v{S + (j & 3) + 8 * (j >> 2)}, v{S+2*j}, v{S+2*j+1}"
    PFS = opt.get("pfstride", 7)
    def l2_prefetch(r, nbytes, vaddr, vdummy, part, nparts):
        chunk = 64 << PFS
        rounds = -(-nbytes // (chunk * 32))
        a(f"s_lshr_b32 s{sF}, s2, 3\ns_mul_i32 s{sF}, s{sF}, {chunk}")
        if part is not None:
            a(f"s_mul_i32 s{sCAP}, s{part}, {chunk*32}\ns_add_u32 s{sF}, s{sF}, s{sCAP}")
        for i in range(-(-rounds // nparts)):
            a(f"buffer_load_dword v{vdummy}, v{vaddr}, {sr(r,4)}, s{sF} offen")
            a(f"s_add_u32 s{sF}, s{sF}, {chunk*32*nparts}")

    FS_ = opt.get('fs', 5)
    NKT = opt.get('nkt', 2)
    BC = opt.get('bc', 0)
    TQ, TC, HLOC = opt.get("tq", 2), opt.get("tc", 4), opt.get("hloc", 0)
    def chip_touch(va, vd):
        a(f"s_mov_b32 exec_hi, 0x7ff\ns_mul_i32 s{sF}, s2, 5504")
        for p_ in (pW1, pW2):
            srd(rT, p_, 512 * W1P)
            a(f"buffer_load_dword v{vd}, v{va}, {sr(rT,4)}, s{sF} offen")
        srd(rT, pWO, 0x80000)
        a(f"s_mov_b64 exec, 0xffff\ns_lshl_b32 s{sF}, s2, 11\nbuffer_load_dword v{vd}, v{va}, {sr(rT,4)}, s{sF} offen\ns_mov_b64 exec, -1")
    def a_touch(lab):
        a(f"s_cmp_lg_u32 s{sW}, 7\ns_cbranch_scc1 {lab}\nv_lshlrev_b32 v14, 4, v0")
        chip_touch(14, 15)
        a.label(lab)
    if opt.get("probe"): a("s_memrealtime s[98:99]")
    a(f"""s_memrealtime {sr(sM,2)}
    s_load_dwordx16 s[8:23], s[0:1], 0
    s_load_dwordx8 s[24:31], s[0:1], 64
    s_load_dwordx2 s[32:33], s[0:1], 96
    s_cmp_ge_u32 s2, 256
    s_cbranch_scc1 L_end""")
    if ts:
        for i in range(16): a(f"s_mov_b32 s{TS0+2*i}, 0")
    TS(0)
    a(f"""v_lshrrev_b32 v1, 6, v0
    s_and_b32 s{sRB}, s2, 7
    v_readfirstlane_b32 s{sW}, v1
    s_lshl_b32 s{sRB}, s{sRB}, 2
    s_lshr_b32 s{sA}, s2, 6
    s_add_u32 s{sRB}, s{sRB}, s{sA}
    s_bfe_u32 s{sG}, s2, 0x30003
    s_lshr_b32 s{sKG}, s{sG}, 1
    s_and_b32 s{sCH}, s{sG}, 1
    v_and_b32 v0, 63, v0""")
    CP = opt.get("cpf", 1)
    if CP:
        a(f"""s_cmp_lg_u32 s{sW}, 10
        s_cbranch_scc1 L_nocp
        s_getpc_b64 s[48:49]
        v_lshlrev_b32 v2, 7, v0""")
        if CP == 1:
            a(f"""s_lshr_b32 s{sA}, s2, 3
            s_mul_i32 s{sA}, s{sA}, 640
            v_add_u32 v2, s{sA}, v2
            v_min_u32 v2, 18432, v2
            s_mov_b64 exec, 31
            global_load_dword v6, v2, s[48:49]
            s_mov_b64 exec, -1""")
        else:
            a(f"""global_load_dword v6, v2, s[48:49]
            v_add_u32 v2, 8192, v2
            global_load_dword v6, v2, s[48:49]""")
        a.label("L_nocp")
    a(f"""s_cmp_ge_u32 s{sW}, 8
    s_cbranch_scc1 L_gwave""")

    vL8, vAD, vT = 0, 1, 2
    Q, K, V, S0, S1, ACC, CIN = 4, 8, 40, 104, 120, 136, 152
    sQT, sINC, sKVO, sPB = sI, sRT, sE, sCT
    sOOF, sQA, sCA, sAH, sKB = 0, 1, 46, 47, 45
    a(f"""v_lshrrev_b32 v3, 5, v0
    v_and_b32 v4, 31, v0
    s_lshl_b32 s{sA}, s{sW}, 1
    v_add_u32 v3, s{sA}, v3
    v_lshlrev_b32 v1, 10, v3
    v_lshl_add_u32 v5, v4, 4, v1
    s_lshl_b32 s{sB}, s{sRB}, 16
    s_lshl_b32 s{sC}, s{sKG}, 14
    s_add_u32 s{sD}, s{sB}, s{sC}
    s_waitcnt lgkmcnt(0)""")
    srd(rX, pX, 0x200000)
    a(f"""buffer_load_dwordx4 v[8:11], v5, {sr(rX,4)}, s{sD} offen
    buffer_load_dwordx4 v[12:15], v5, {sr(rX,4)}, s{sD} offen offset:512""")
    def x_load(it):
        a(f"""s_xor_b32 s{sD}, s{sC}, {it << 14}
        s_add_u32 s{sD}, s{sB}, s{sD}
        buffer_load_dwordx4 {vr(8+8*it,4)}, v5, {sr(rX,4)}, s{sD} offen
        buffer_load_dwordx4 {vr(12+8*it,4)}, v5, {sr(rX,4)}, s{sD} offen offset:512""")
    srd(rWS, pWS, WS_BYTES)
    vGC, vQW, vOZ, vCW, vKA, vVA, vFL, vF2 = CIN, CIN + 1, CIN + 2, CIN + 3, CIN + 4, CIN + 5, CIN + 6, CIN + 7
    for i in range(8): a(f"v_mov_b64 {vr(ACC+2*i,2)}, 0")
    a(f"""v_mov_b32 v{vGC}, {GC}
    v_lshlrev_b32 v{vFL}, {FS_}, v4
    v_and_b32 v6, 15, v0
    v_cmp_eq_u32 vcc, 0, v6
    ds_write_b128 v{vGC}, {vr(ACC,4)}
    ds_write_b128 v{vGC}, {vr(ACC,4)} offset:16
    ds_write_b128 v{vGC}, {vr(ACC,4)} offset:32
    ds_write_b128 v{vGC}, {vr(ACC,4)} offset:48
    v_xor_b32 v4, v4, v3
    v_lshl_add_u32 v2, v4, 4, v1
    v_lshlrev_b32 v3, 2, v3
    v_add_u32 v3, {RSTD}, v3
    v_mov_b32 v{CIN+8}, 0x3f803f80
    v_mov_b32 v{CIN+9}, 0x3f80
    v_mov_b32 v{CIN+10}, 0x3f800000
    v_cndmask_b32 v{V+4}, 0, v{CIN+8}, vcc
    v_cndmask_b32 v{V+5}, 0, v{CIN+8}, vcc""")
    for i in range(1, 16): a(f"v_mov_b64 {vr(V+8*(i>>1)+4+2*(i&1),2)}, {vr(V+4,2)}")
    a(f"""v_mov_b64 {vr(S1+8,2)}, 0
    v_mov_b64 {vr(S1+10,2)}, 0
    v_lshlrev_b32 v{vKA}, 4, v0
    v_lshrrev_b32 v4, {6 - NKT}, v0
    v_lshlrev_b32 v{vF2}, {FS_+1}, v4
    v_lshlrev_b32 v{vL8}, 3, v0
    s_mul_i32 s{sA}, s{sW}, {OST}
    s_add_u32 s{sA}, s{sA}, {OACC}
    v_add_u32 v{vOZ}, s{sA}, v{vKA}
    v_mov_b64 {vr(S1+12,2)}, 0
    v_mov_b64 {vr(S1+14,2)}, 0
    s_mov_b32 s{sA}, 0x43300000
    v_writelane_b32 v{S1+13}, s{sA}, 16
    s_mov_b32 s{sA}, 0x3b000000""")
    U, R0 = S0, S1
    cOne2, cLo, cHi = CIN + 8, CIN + 9, CIN + 10
    def red32(rs):
        pad = "s_nop 1\n" if len(rs) == 1 else ""
        for mode in ("quad_perm:[1,0,3,2]", "quad_perm:[2,3,0,1]", "row_half_mirror", "row_mirror"):
            a(pad + "\n".join(f"v_add_f32_dpp v{r}, v{r}, v{r} {mode} row_mask:0xf bank_mask:0xf" for r in rs))
        for r in rs: a(f"v_mov_b32 v{r+1}, v{r}")
        a(pad + "\n".join(f"v_permlane16_swap_b32 v{r}, v{r+1}" for r in rs))
        for r in rs: a(f"v_add_f32 v{r}, v{r}, v{r+1}")
    def centre(its):
        for j in range(8):
            for it in its:
                X, R = 8 + 8 * it, R0 + 2 * (it % 3)
                a(f"v_dot2_f32_bf16 v{R+(j&1)}, v{X+j}, v{cOne2}, {'0' if j < 2 else f'v{R+(j&1)}'}")
        a("s_nop 2" if len(its) == 1 else "s_nop 0")
        for it in its: a(f"v_add_f32 v{R0+2*(it%3)}, v{R0+2*(it%3)}, v{R0+2*(it%3)+1}")
        red32([R0 + 2 * (it % 3) for it in its])
        for it in its: a(f"v_mul_f32 v{R0+2*(it%3)}, 0xbb000000, v{R0+2*(it%3)}")
        for it in its:
            X, R = 8 + 8 * it, R0 + 2 * (it % 3)
            a(f"s_xor_b32 s{sD}, s{sC}, {it << 14}\nv_add_u32 v7, s{sD}, v2")
            for j in range(8):
                a(f"v_dot2_f32_bf16 v{U+2*j}, v{X+j}, v{cLo}, v{R}\nv_dot2_f32_bf16 v{U+2*j+1}, v{X+j}, v{cHi}, v{R}")
            for j in range(8):
                a(f"v_cvt_pk_bf16_f32 v{X+j}, v{U+2*j}, v{U+2*j+1}")
                if it: pass
                elif j == 0: a(f"v_pk_mul_f32 {vr(R,2)}, {vr(U,2)}, {vr(U,2)}")
                else: a(f"v_pk_fma_f32 {vr(R,2)}, {vr(U+2*j,2)}, {vr(U+2*j,2)}, {vr(R,2)}")
                if j == 3: a(f"ds_write_b128 v7, {vr(X,4)}")
            a(f"ds_write_b128 v7, {vr(X+4,4)} offset:512")
    def scales(its):
        for it in its: a(f"v_add_f32 v{R0+2*(it%3)}, v{R0+2*(it%3)}, v{R0+2*(it%3)+1}")
        red32([R0 + 2 * (it % 3) for it in its])
        a(f"v_mov_b32 v7, 0x3727c5ac")
        for it in its: a(f"v_fma_f32 v{R0+2*(it%3)}, v{R0+2*(it%3)}, s{sA}, v7")
        for it in its: a(f"v_rsq_f32 v{R0+2*(it%3)}, v{R0+2*(it%3)}")
        for it in its:
            a(f"s_xor_b32 s{sD}, s{sC}, {it << 14}\ns_lshr_b32 s{sD}, s{sD}, 8\nv_add_u32 v{R0+2*(it%3)+1}, s{sD}, v3")
            a(f"ds_write_b32 v{R0+2*(it%3)+1}, v{R0+2*(it%3)}")
    a("s_setprio 2\ns_waitcnt lgkmcnt(0)\ns_barrier")
    TS(8)
    for it in range(1, 4): x_load(it)
    a("s_waitcnt vmcnt(6)")
    TS(1)
    centre([0]); scales([0])
    lds_inc(C_L0, vGC, 7)
    a("s_setprio 1")
    TS(2)
    a("s_waitcnt vmcnt(0)")
    TS(12)
    centre([1, 2, 3])
    lds_inc(C_XN, vGC, vT)
    a("s_setprio 0")
    TS(3)
    a(f"s_mov_b32 s{sD}, 0xffff0000")
    for it in (1, 2, 3):
        X, R = 8 + 8 * it, R0 + 2 * (it % 3)
        for j in range(8): a(f"v_lshlrev_b32 v{U+2*j}, 16, v{X+j}\nv_and_b32 v{U+2*j+1}, s{sD}, v{X+j}")
        a(f"v_pk_mul_f32 {vr(R,2)}, {vr(U,2)}, {vr(U,2)}")
        for j in range(1, 8): a(f"v_pk_fma_f32 {vr(R,2)}, {vr(U+2*j,2)}, {vr(U+2*j,2)}, {vr(R,2)}")
    scales([1, 2, 3])
    lds_inc(C_RS, vGC, vT)
    TS(5)

    def zero_block():
        for j in range(4): a(f"ds_write_b128 v{vOZ}, {vr(ACC,4)} offset:{1024*j}")
        a(f"""s_mov_b64 exec, 0x1ffff
        ds_write_b128 v{vOZ}, {vr(S1+12,4)} offset:{B_L}
        s_mov_b64 exec, -1""")
    lds_spin(C_FL, 1, vGC, vT, sleep=1)
    a(f"""ds_read_b64 v[8:9], v{vGC} offset:{C_EPOCH}
    s_add_u32 s{sKB}, s{sW}, s{sG}
    s_and_b32 s{sKB}, s{sKB}, 7
    s_lshl_b32 s{sKVO}, s{sKB}, 13
    s_add_u32 s{sA}, s{sKVO}, 4096
    s_add_u32 s{sC}, s{sKVO}, {VF}
    s_add_u32 s{sD}, s{sKVO}, {VF+4096}
    s_mov_b32 s{sOOF}, {OACC}
    s_mov_b32 s{sQA}, {QF}
    s_mov_b32 s{sINC}, 0
    s_mov_b32 s46, 0x07060302
    s_and_b32 s{sPB}, s{sW}, 3
    s_lshl_b32 s{sPB}, s{sPB}, 1
    s_add_u32 s{sPB}, s{sPB}, 4
    s_waitcnt lgkmcnt(0)
    v_readfirstlane_b32 s{sEP}, v8
    v_readfirstlane_b32 s{sEP+1}, v9
    s_cmp_lg_u32 s{sW}, 0
    s_cbranch_scc1 L_nokt
    s_lshl_b32 s{sB}, s{sRB}, {FS_+3}
    s_add_u32 s{sB}, s{sB}, {FLG_KV}""")
    a(f"s_sleep {opt.get('kt0', 4)}")
    flag_poll(vF2, sB, 12, sleep=2)
    a(f"""s_lshl_b32 s{sB}, s{sRB}, 11
    v_add_u32 v12, {KT}, v{vKA}
    buffer_load_dwordx4 {vr(K,4)}, v{vKA}, {sr(rWS,4)}, s{sB} offen sc1""")
    if NKT == 2: a(f"buffer_load_dwordx4 {vr(K+8,4)}, v{vKA}, {sr(rWS,4)}, s{sB} offen offset:1024 sc1")
    lds_inc(C_FL, vGC, vT)
    a(f"""s_waitcnt vmcnt(0)
    ds_write_b128 v12, {vr(K,4)}""")
    if NKT == 2: a(f"ds_write_b128 v12, {vr(K+8,4)} offset:1024")
    lds_inc(C_RS, vGC, vT)
    TS(11)
    a.label("L_nokt")
    if opt.get("gate", 1) == 1: lds_spin(C_FL, 2, vGC, vT, sleep=1)
    elif opt.get("g0"): a(f"s_sleep {opt['g0']}")
    a(f"""s_lshl_b32 s{sB}, s{sKB}, {FS_+5}
    s_add_u32 s{sB}, s{sB}, {FLG_KV}""")
    if opt.get("pprio"): a("s_setprio 3")
    flag_poll(vFL, sB, 12, sleep=opt.get("kvsleep", 4))
    if opt.get("pprio"): a("s_setprio 0")
    if opt.get("gate", 1) == 2: lds_spin(C_FL, 2, vGC, vT, sleep=0)
    if opt.get("wgate"):
        lds_inc(C_KT, vGC, vT)
        lds_spin(C_KT, 8, vGC, vT, sleep=0)
    TS(4)
    def ldK(t): a(f"buffer_load_dwordx4 {vr(K+4*t,4)}, v{vKA}, {sr(rWS,4)}, s{sKVO if t < 4 else sA} offen offset:{(t&3)*1024} sc1")
    def ldV(t): a(f"buffer_load_dwordx4 {vr(V+8*t,4)}, v{vKA}, {sr(rWS,4)}, s{sC if t < 4 else sD} offen offset:{(t&3)*1024} sc1")
    ldK(0)
    for t in range(7):
        ldK(t + 1); ldV(t)
    ldV(7)
    lds_inc(C_KV, vGC, vT)
    TS(10)
    lds_spin(C_QREADY, 4, vGC, vT, sleep=0)
    TS(6)
    if ts: a(f"s_memtime {sr(TS0+26,2)}")
    def load_q():
        x = [f"v_lshl_add_u32 v{vAD}, v{vL8}, 1, s{sQA}", f"v_and_b32 v{vT}, 0xff, v{vL8}",
             f"ds_read_b128 {vr(Q,4)}, v{vAD}", f"v_lshl_add_u32 v{vT}, v{vT}, 1, s{sQA}", f"s_add_u32 s{sQA}, s{sQA}, {QST}"]
        if BC:
            return [f"v_lshl_add_u32 v{vAD}, v{vL8}, 1, s{sQA}", f"v_add_u32 v{vT}, s{sQA}, v{vL8}", f"ds_read_b128 {vr(Q,4)}, v{vAD}",
                    f"ds_read_b32 v{vT}, v{vT} offset:1024", f"s_add_u32 s{sQA}, s{sQA}, {QST}", f"v_mov_b32 v{vT+1}, 1.0", "", "", ""]
        return x + [f"ds_read_b128 {vr(CIN+4*j,4)}, v{vT} offset:1024" for j in range(4)]
    def bcast(): return f"v_mfma_f32_32x32x2_f32 {vr(CIN,16)}, v{vT+1}, v{vT}, 0"
    def QK(t, S): return f"{MF32} {vr(S,16)}, {vr(K+4*t,4)}, {vr(Q,4)}, {vr(CIN,16)}"
    def PV(t, hf, S, zero=False): return f"{MF32} {vr(ACC,16)}, {vr(V+8*t+4*hf,4)}, {vr(S+8*hf,4)}, {'0' if zero else vr(ACC,16)}"
    def flush_ops():
        x = [[f"v_add_u32 v{vAD}, s{sOOF}, v{vL8}", f"v_cvt_f64_f32 {vr(vT,2)}, v{ACC}"]]
        for j in range(8): x.append([f"v_cvt_f64_f32 {vr(ACC+2*j,2)}, v{ACC+8+j}", f"ds_add_f64 v{vAD}, {vr(ACC+2*j,2)} offset:{512*j}"])
        x.append([f"v_writelane_b32 v{vT+1}, s{sINC}, 32", "s_mov_b32 exec_hi, 1", f"ds_add_rtn_f64 {vr(vT,2)}, v{vAD}, {vr(vT,2)} offset:{B_L}", "s_mov_b32 exec_hi, -1"])
        return x
    def vswap(t):
        for j in range(4): a(f"v_permlane16_swap_b32 v{V+8*t+4+j}, v{V+8*t+j}")
    a(f"v_mov_b32 v{S1}, v{vGC}\nv_mov_b32 v{S1+1}, v{vOZ}")
    vOZ = S1 + 1
    for l in load_q(): a(l)
    zero_block()
    lds_inc(C_ABAR, S1, S1 + 2)
    NV0 = opt.get("nv0", 6)
    a(f"s_setprio 1\ns_mov_b64 vcc, -1\ns_waitcnt vmcnt(14) lgkmcnt(6)")
    if BC: a(bcast())
    a(QK(0, S0))
    for t in range(NV0):
        a(f"s_waitcnt vmcnt({12 - 2 * t})")
        vswap(t)
    a(".p2align 6")
    a.label("L_atop")
    SS = [S0, S1]
    std = "e0 e1 P1 e2 e3 c0 e4 e5 c1 QK e6 e7 c2 e8 c3 e9 e10 P0 e11 c4 e12 e13 c5 e14 e15 c6 c7"
    orders = {0: "e0 e1 P1 e2 e3 c0 e4 e5 c1 QK e6 e7 c2 e8 c3 e9 e10 F e11 F c4 F e12 F e13 F c5 F e14 F e15 F c6 F c7 F P0",
              1: "e0 e1 e2 e3 c0 P1 e4 e5 c1 e6 e7 QK c2 e8 c3 e9 e10 e11 P0 c4 e12 e13 c5 e14 e15 c6 c7 R",
              4: std + " U",
              6: "e0 e1 P1 e2 e3 c0 e4 e5 c1 QK e6 e7 c2 e8 c3 e9 e10 P0 L L L e11 L L c4 L e12 L e13 L c5 L e14 e15 c6 c7",
              7: "e0 e1 P1 e2 e3 c0 e4 e5 c1 G QK e6 e7 c2 e8 c3 e9 e10 P0 e11 X c4 e12 e13 c5 e14 e15 c6 c7"}
    if BC:
        orders[6] = "e0 e1 P1 e2 e3 c0 e4 e5 c1 QK e6 L L L L L L e7 c2 e8 c3 e9 e10 P0 e11 c4 e12 e13 c5 G B e14 e15 c6 c7"
        orders[7] = "e0 e1 e2 e3 c0 P1 e4 e5 c1 e6 e7 QK c2 e8 c3 e9 e10 e11 P0 X c4 e12 e13 c5 e14 e15 c6 c7"
    if opt.get("lq") == 1:
        orders[6] = "e0 e1 P1 e2 e3 c0 L L e4 e5 c1 QK e6 L L L e7 L c2 L e8 L c3 L e9 e10 P0 e11 c4 e12 e13 c5 e14 e15 c6 c7"
    if opt.get("lq") == 2:
        orders[6] = "e0 e1 P1 e2 e3 c0 L L e4 e5 c1 QK e6 L L L e7 L c2 L e8 L c3 L e9 e10 P0 e11 c4 e12 e13 c5 e14 e15 c6 c7"
        orders[7] = "e0 e1 e2 e3 c0 P1 e4 e5 c1 e6 e7 G QK c2 e8 c3 e9 e10 e11 P0 X c4 e12 e13 c5 e14 e15 c6 c7"
    if opt.get("lq", 3) == 3:
        orders[6] = "e0 e1 P1 e2 e3 c0 L L e4 e5 c1 QK e6 L L L e7 L c2 e8 c3 e9 e10 P0 e11 c4 e12 e13 c5 e14 e15 c6 c7"
        orders[7] = "e0 e1 P1 e2 G M e3 c0 e4 e5 c1 QK e6 e7 c2 e8 c3 e9 e10 P0 e11 X c4 e12 e13 c5 e14 e15 c6 c7"
    if opt.get("rl"):
        orders[1] = orders[1].replace(" R", "")
        orders[2] = std + " R"
    if opt.get("ord") == 1:
        mv = lambda o: o.replace("P0 ", "").replace("c6 c7", "c6 c7 P0")
        std = mv(std)
        for t in (4, 6, 7): orders[t] = mv(orders[t])
        orders[1] = "e0 e1 P1 e2 e3 c0 e4 e5 c1 QK e6 e7 c2 e8 c3 e9 e10 e11 c4 e12 e13 c5 e14 e15 c6 c7 P0 R"
    if opt.get("ord") == 2:
        mv = lambda o: o.replace("P0 ", "").replace("e15 c6 c7", "P0 e15 c6 c7")
        std = mv(std)
        for t in (4, 6, 7): orders[t] = mv(orders[t])
    if opt.get("ord") == 3:
        std = "e0 e1 P1 e2 e3 e4 e5 QK e6 e7 e8 c0 c1 c2 c3 e9 e10 P0 e11 e12 e13 e14 e15 c4 c5 c6 c7"
        orders[4] = std + " U"
    orders[NV0] = orders.get(NV0, std).replace("P0", "W P0")
    for t in range(8):
        cur, nxt = SS[t & 1], SS[(t + 1) & 1]
        fl, lq = flush_ops(), load_q()
        for tok in orders.get(t, std).split():
            if tok[0] == "e": a(e(cur, int(tok[1:])))
            elif tok[0] == "c" and opt.get("perm"):
                j = int(tok[1:]); a(f"v_perm_b32 v{cur + (j & 3) + 8 * (j >> 2)}, v{cur+2*j+1}, v{cur+2*j}, s46")
            elif tok[0] == "c": a(c(cur, int(tok[1:])))
            elif tok == "P1": a(PV((t - 1) & 7, 1, nxt))
            elif tok == "P0": a(PV(t, 0, cur, zero=(t == 0)))
            elif tok == "QK": a(QK((t + 1) & 7, nxt))
            elif tok == "W":
                a(f"s_cbranch_vccnz L_vs0")
                a.label(f"L_vr0")
            elif tok == "G": a("s_waitcnt lgkmcnt(0)")
            elif tok == "B": a(bcast())
            elif tok == "M":
                for j in range(2, 8): a(f"v_mov_b64 {vr(CIN+2*j,2)}, {vr(CIN,2)}")
            elif tok == "F": a("\n".join(fl.pop(0)))
            elif tok == "L": a(lq.pop(0))
            elif tok == "R":
                a(f"""s_waitcnt lgkmcnt(0)
                v_readlane_b32 s{sAH}, v{vT}, 32
                s_setprio 0
                s_bitcmp1_b32 s{sAH}, s{sPB}
                s_cbranch_scc0 L_yield
                s_setprio 2""")
                a.label("L_yield")
            elif tok == "U":
                a(f"s_cbranch_scc1 L_keep\ns_setprio 1")
                a.label("L_keep")
            elif tok == "X":
                a(f"s_add_u32 s{sOOF}, s{sOOF}, {OST}")
                if opt.get("qts"):
                    a("s_memtime s[96:97]\ns_waitcnt lgkmcnt(0)")
                    for i in range(1, 8): a(f"s_mov_b32 s{TS0+2*i}, s{TS0+2*i+2}")
                    a(f"s_sub_u32 s{TS0+16}, s96, s{TS0+26}")
                a(f"s_cmp_lt_u32 s{sOOF}, {OACC + 7 * OST}")
    a("s_cbranch_scc1 L_atop")
    if not opt.get("qts"): TS(7)
    a("s_setprio 2")
    a(PV(7, 1, S1))
    a("s_nop 11")
    for x in flush_ops(): a("\n".join(x))
    if opt.get("delay_f1", 0) > 8:
        a(f"v_mov_b32 v4, {GC}")
        lds_inc(C_ABAR, 4, 5)
    if ts:
        a(f"s_memtime {sr(TS0+28,2)}\ns_waitcnt lgkmcnt(0)\ns_sub_u32 s{TS0+28}, s{TS0+28}, s{TS0+26}")
    TS(9)
    ts_dump()
    a("s_endpgm")
    a.label("L_vs0")
    a("s_waitcnt vmcnt(0)")
    if TC:
        a(f"""s_cmp_eq_u32 s{sW}, 7
        s_cbranch_scc1 L_notouch
        s_cmp_eq_u32 s{sW}, 0
        s_cselect_b32 s{rT}, s{pW1}, s{pW2}
        s_cselect_b32 s{rT+1}, s{pW1+1}, s{pW2+1}
        s_cmp_eq_u32 s{sW}, 2
        s_cselect_b32 s{rT}, s{pWO}, s{rT}
        s_cselect_b32 s{rT+1}, s{pWO+1}, s{rT+1}
        s_mov_b32 s{sF}, 5504
        s_cselect_b32 s{sF}, 2048, s{sF}
        s_mul_i32 s{sA}, s2, s{sF}
        s_cmp_lt_u32 s{sW}, 3
        s_cbranch_scc1 L_touch
        s_mov_b32 s{rT}, s{pWS}
        s_mov_b32 s{rT+1}, s{pWS+1}
        s_lshl_b32 s{sA}, s{sRB}, 4
        s_add_u32 s{sA}, s{sA}, s{sG}
        s_lshl_b32 s{sA}, s{sA}, 12
        s_add_u32 s{sA}, s{sA}, {OF}
        s_lshl_b32 s{sB}, s{sRB}, 3
        s_add_u32 s{sB}, s{sB}, s{sG}
        s_lshl_b32 s{sB}, s{sB}, 7
        s_add_u32 s{sB}, s{sB}, {FLG_H}
        s_cmp_lt_u32 s{sW}, 5
        s_cselect_b32 s{sA}, s{sA}, s{sB}
        s_cselect_b32 s{sF}, 4096, 64
        s_and_b32 s{sB}, s{sW}, 1
        s_lshl_b32 s{sB}, s{sB}, 15
        s_add_u32 s{sA}, s{sA}, s{sB}""")
        a.label("L_touch")
        a(f"""s_add_u32 s{rT+2}, s{sA}, s{sF}
        s_mov_b32 s{rT+3}, 0x20000
        s_mov_b32 m0, {GC + 64}
        v_lshlrev_b32 v{vT}, 4, v{vL8}
        s_mov_b32 exec_hi, 0x7ff
        buffer_load_dword v{vT}, {sr(rT,4)}, s{sA} offen lds
        s_mov_b32 exec_hi, -1""")
        a.label("L_notouch")
    for t in range(NV0, 8): vswap(t)
    a(f"v_mov_b32 v{vAD}, {GC}")
    lds_spin(C_ABAR, 8, vAD, vT, sleep=0)
    a(f"""s_sub_u32 s{sOOF}, s{sOOF}, {OST}
    s_add_u32 s{sINC}, s{sPB}, 1023
    s_lshl_b32 s{sINC}, s{sINC}, 20
    s_sub_u32 s{sA}, 20, s{sPB}
    s_lshl_b32 s{sA}, 1, s{sA}
    s_add_u32 s{sINC}, s{sINC}, s{sA}
    s_mov_b64 vcc, 0
    s_branch L_vr0""")

    a(".p2align 6")
    a.label("L_gwave")
    role[0] = "G"
    gGC, gL16, gSW, gTR, gH, gR = 1, 2, 3, 4, 5, 6
    a(f"""s_setprio 3
    s_sub_u32 s{sI}, s{sW}, 8
    v_lshlrev_b32 v{gL16}, 4, v0
    v_lshlrev_b32 v10, {PFS}, v0
    s_sub_u32 s{sE}, s{sI}, 1
    s_waitcnt lgkmcnt(0)
    s_cmp_lg_u32 s{sI}, 0
    s_cbranch_scc1 L_g123""")
    a(f"""s_cmp_eq_u32 s{sCH}, 0
    s_cselect_b32 s{rW}, s{pWK}, s{pWV}
    s_cselect_b32 s{rW+1}, s{pWK+1}, s{pWV+1}
    s_mov_b32 s{rW+2}, 16384
    s_mov_b32 s{rW+3}, 0x20000""")
    for q in range(4):
        a(f"s_mov_b32 m0, {WKV + q * 4096}\ns_mov_b32 s{sA}, {q*4096}")
        for j in range(4): a(f"buffer_load_dwordx4 v{gL16}, {sr(rW,4)}, s{sA} offen offset:{j*1024} lds")
    a("s_branch L_gcom")
    a.label("L_g123")
    srd(rW, pWQ, 0x80000)
    if TQ == 1:
        a(f"s_cmp_eq_u32 s{sI}, 3\ns_cbranch_scc1 L_gcom")
        l2_prefetch(rW, 0x80000, 10, 6, sE, 2)
    if TQ == 2:
        a(f"s_cmp_lg_u32 s{sI}, 1\ns_cbranch_scc1 L_gcom")
        a(f"s_mov_b64 exec, 0xffff\ns_lshl_b32 s{sF}, s2, 11\nbuffer_load_dword v6, v10, {sr(rW,4)}, s{sF} offen\ns_mov_b64 exec, -1")
    a.label("L_gcom")
    srd(rWS, pWS, WS_BYTES)
    srd(rT, pDBG, 256)
    a(f"""s_lshr_b32 s{sRT}, s{sI}, 1
    s_and_b32 s{sCT}, s{sI}, 1
    v_lshrrev_b32 v7, 3, v0
    v_lshrrev_b32 v8, 2, v0
    v_and_b32 v8, 4, v8
    v_and_b32 v9, 7, v0
    v_xor_b32 v8, v8, v9
    v_lshlrev_b32 v8, 4, v8
    v_lshl_add_u32 v{gSW}, v7, 10, v8
    v_mov_b32 v{gGC}, {GC}
    v_lshrrev_b32 v{gH}, 5, v0
    v_and_b32 v7, 3, v0
    v_and_b32 v8, 16, v0
    v_lshlrev_b32 v8, 1, v8
    v_lshl_add_u32 v{gTR}, v7, 3, v8
    s_cmp_eq_u32 s{sI}, 0
    s_cbranch_scc1 L_g0""")
    a(f"""s_lshl_b32 s{sB}, s{sE}, 13
    s_lshl_b32 s{sC}, s{sG}, 7
    s_add_u32 s{sB}, s{sB}, s{sC}
    s_lshl_b32 s{sA}, s{sE}, 10
    s_add_u32 s{sA}, s{sA}, {RING}
    s_setprio 0
    s_barrier
    s_cmp_lg_u32 s{sI}, 3
    s_cbranch_scc1 L_wqloop
    s_setprio 3
    s_mov_b32 s{sCAP}, 0""")
    a.label("L_epoch")
    a(f"""buffer_load_dwordx2 v[14:15], off, {sr(rT,4)}, 0 sc1
    s_add_u32 s{sCAP}, s{sCAP}, 1
    s_cmp_gt_u32 s{sCAP}, {SPIN_CAP}
    s_cbranch_scc1 L_gb2
    s_waitcnt vmcnt(0)
    v_readfirstlane_b32 s{sEP+1}, v15
    s_nop 0
    s_cmp_eq_u32 s{sEP+1}, 0
    s_cbranch_scc1 L_epoch
    ds_write_b64 v{gGC}, v[14:15] offset:{C_EPOCH}""")
    TS(1)
    if opt.get("z_t1"):
        srd(rW, pW1, 512 * W1P)
        a(f"s_mov_b32 exec_hi, 0x7ff\ns_mul_i32 s{sF}, s2, 5504\nbuffer_load_dword v6, v10, {sr(rW,4)}, s{sF} offen\ns_mov_b64 exec, -1")
    srd(rW, pB1, W1P)
    a(f"buffer_load_dword v6, v10, {sr(rW,4)}, 0 offen")
    srd(rW, pB2, 1024)
    a(f"buffer_load_dword v6, v10, {sr(rW,4)}, 0 offen\ns_branch L_gb2")
    a.label("L_wqloop")
    a(f"""s_mov_b32 m0, s{sA}
    s_add_u32 s{sA}, s{sA}, 2048
    buffer_load_dwordx4 v{gSW}, {sr(rW,4)}, s{sB} offen lds
    s_add_u32 s{sB}, s{sB}, 16384
    s_waitcnt vmcnt({opt.get("wqd", 10)})
    s_cmp_lt_u32 s{sA}, {RING + 65536}
    s_cbranch_scc1 L_wqloop
    s_setprio 3
    s_waitcnt vmcnt(16)""")
    lds_inc(C_WQ, gGC, 7)
    a("s_branch L_gb2")
    a.label("L_g0")
    WF, XF, DD = 32, 96, 160
    a(f"""s_cmp_lg_u32 s2, 0
    s_cbranch_scc1 L_noep
    v_mov_b32 v10, s{sM}
    v_mov_b32 v11, s{sM+1}
    v_or_b32 v11, 0x80000000, v11
    v_mov_b64 v[12:13], 0
    s_mov_b64 exec, 1
    buffer_atomic_cmpswap_x2 v[10:13], off, {sr(rT,4)}, 0 sc1
    s_mov_b64 exec, -1
    s_nop 0""")
    a.label("L_noep")
    if opt.get("prewr"):
        a(f"""s_lshl_b32 s{sA}, s{sRB}, 3
        s_add_u32 s{sA}, s{sA}, s{sG}
        s_lshl_b32 s{sA}, s{sA}, 7
        s_add_u32 s{sA}, s{sA}, {FLG_KV}
        v_mov_b64 v[16:17], 0
        v_mov_b64 v[18:19], 0
        s_mov_b64 exec, 0xff
        buffer_store_dwordx4 v[16:19], v{gL16}, {sr(rWS,4)}, s{sA} offen sc1
        s_mov_b64 exec, -1""")
    a("s_barrier")
    a(f"""v_and_b32 v7, 15, v0
    v_lshrrev_b32 v8, 4, v0
    v_lshlrev_b32 v9, 3, v7
    v_lshl_add_u32 v9, v8, 8, v9
    v_add_u32 v9, {WKV}, v9
    s_lshl_b32 s{sA}, s{sKG}, 14
    v_xor_b32 v10, v7, v8
    v_lshlrev_b32 v10, 4, v10
    v_lshl_add_u32 v10, v7, 10, v10
    v_add_u32 v10, s{sA}, v10
    v_xor_b32 v11, 64, v10
    v_xor_b32 v12, 0x80, v10
    v_xor_b32 v13, 0xc0, v10
    s_lshl_b32 s{sA}, s{sKG}, 6
    s_add_u32 s{sA}, s{sA}, {RSTD}
    v_lshl_add_u32 v20, v7, 2, s{sA}
    v_lshl_add_u32 v21, v8, 4, s{sA}
    s_cmp_eq_u32 s{sCH}, 0
    s_cselect_b32 s{sD}, {KF}, {VF}
    v_and_b32 v16, 1, v8
    v_lshlrev_b32 v16, 9, v16
    v_lshrrev_b32 v17, 1, v8
    v_lshl_add_u32 v16, v17, 3, v16
    v_lshl_add_u32 v16, v7, 4, v16
    s_xor_b32 s{sA}, s{sKG}, s{sCH}
    s_and_b32 s{sA}, s{sA}, 1
    s_lshl_b32 s{sA}, s{sA}, 8
    s_add_u32 s{sD}, s{sD}, s{sA}
    s_lshl_b32 s{sA}, s{sRB}, 1
    s_lshr_b32 s{sB}, s{sKG}, 1
    s_add_u32 s{sA}, s{sA}, s{sB}
    s_lshl_b32 s{sA}, s{sA}, 10
    s_add_u32 s{sD}, s{sD}, s{sA}
    s_lshl_b32 s{sA}, s{sRB}, 3
    s_add_u32 s{sA}, s{sA}, s{sG}
    s_lshl_b32 s{sA}, s{sA}, {FS_}
    s_add_u32 s{sA}, s{sA}, {FLG_KV}
    s_waitcnt vmcnt(0)""")
    for ks in range(16):
        a(f"ds_read_b64_tr_b16 {vr(WF+4*ks,2)}, v9 offset:{ks*1024}\nds_read_b64_tr_b16 {vr(WF+4*ks+2,2)}, v9 offset:{ks*1024+128}")
    TS(1)
    lds_spin(C_L0, 8, gGC, 14, sleep=0)
    TS(2)
    for ks in range(16):
        a(f"ds_read_b128 {vr(XF+4*ks,4)}, v{10+(ks&3)} offset:{(ks>>2)*256}")
    a(f"""s_cmp_eq_u32 s{sCH}, 0
    s_cbranch_scc0 L_vchain""")
    for sw in (False, True):
        if sw: a.label("L_vchain")
        for ks in range(16):
            A_, B_ = (XF, WF) if sw else (WF, XF)
            if ks % 4 == 0: a(f"s_waitcnt lgkmcnt({12 - ks})")
            if ks == 12: a(f"ds_read_b128 v[24:27], v21" if sw else "ds_read_b32 v24, v20")
            a(f"v_mfma_f32_16x16x32_bf16 {vr(DD,4)}, {vr(A_+4*ks,4)}, {vr(B_+4*ks,4)}, {'0' if ks == 0 else vr(DD,4)}")
        if not sw: a("s_waitcnt lgkmcnt(0)\nv_mov_b32 v25, v24\nv_mov_b64 v[26:27], v[24:25]\ns_branch L_kvst")
    a("s_waitcnt lgkmcnt(0)\ns_nop 2")
    a.label("L_kvst")
    a(f"""s_nop 3
    v_pk_mul_f32 {vr(DD,2)}, {vr(DD,2)}, v[24:25]
    v_pk_mul_f32 {vr(DD+2,2)}, {vr(DD+2,2)}, v[26:27]
    v_cvt_pk_bf16_f32 v18, v{DD}, v{DD+1}
    v_cvt_pk_bf16_f32 v19, v{DD+2}, v{DD+3}
    buffer_store_dwordx2 v[18:19], v16, {sr(rWS,4)}, s{sD} offen sc1""")
    TS(13)
    lds_spin(C_EPOCH + 4, 1, gGC, 14, sleep=0)
    a(f"""ds_read_b64 v[20:21], v{gGC} offset:{C_EPOCH}
    s_getreg_b32 s{sD}, hwreg(HW_REG_XCC_ID)
    v_mov_b32 v22, s{sD}
    v_mov_b32 v23, 0
    s_mov_b64 exec, 1
    s_waitcnt vmcnt(0) lgkmcnt(0)
    buffer_store_dwordx4 v[20:23], off, {sr(rWS,4)}, s{sA} sc1
    s_mov_b64 exec, -1""")
    lds_inc(C_FL, gGC, 14)
    TS(3)
    a.label("L_gb2")
    QA, QW, QX = 8, 24, 152
    a(f"""v_bfe_u32 v9, v0, 2, 2
    v_lshrrev_b32 v8, 1, v9
    v_xor_b32 v8, s{sCT}, v8
    v_lshl_add_u32 v8, v8, 6, v{gTR}
    v_lshl_add_u32 v8, v9, 7, v8
    v_lshl_add_u32 v8, v{gH}, 10, v8
    v_add_u32 v8, {RING}, v8""")
    a(f"v_mov_b32 v{gTR}, v8")
    kord = [aa + 8 * (2 * hb + b) for hb in range(2) for aa in range(8) for b in range(2)]
    def w_pre(hb):
        for n in range(16 * hb, 16 * hb + 16):
            ks = kord[n]
            a(f"ds_read_b64_tr_b16 {vr(QW+4*n,2)}, v{gTR} offset:{ks*2048}\nds_read_b64_tr_b16 {vr(QW+4*n+2,2)}, v{gTR} offset:{ks*2048+512}")
    a(f"""v_and_b32 v7, 31, v0
    v_and_b32 v9, 15, v0
    v_xor_b32 v9, v9, v{gH}
    v_lshlrev_b32 v9, 4, v9
    v_lshl_add_u32 v7, v7, 10, v9
    s_lshl_b32 s{sC}, s{sRT}, 15
    v_add_u32 v7, s{sC}, v7""")
    sRNG = 35
    sT1, sT2, sNG = 0, 1, sE
    sN, sSO = sA, sB
    srd(rW, pW1, 512 * W1P)
    a(f"""s_lshl_b32 s{sT1}, s{sG}, 2
    s_add_u32 s{sT1}, s{sT1}, s{sI}
    s_sub_u32 s{sT2}, 1, s{sRT}
    s_lshl_b32 s{sT2}, s{sT2}, 3
    s_add_u32 s{sT2}, s{sT2}, s{sG}
    s_add_u32 s{sT2}, s{sT2}, 32
    s_cmp_lt_u32 s{sT2}, 43
    s_cselect_b32 s{sNG}, 12, 8
    s_mul_i32 s{sRNG}, s{sI}, {RSZ}
    s_add_u32 s{sRNG}, s{sRNG}, {RING}
    s_lshl_b32 s{sSO}, s{sT1}, 6""")
    lds_spin(C_WQ, 2, gGC, 9, sleep=1)
    w_pre(0)
    a(f"""s_sub_u32 s{sD}, s{sI}, 1
    s_cmp_ge_u32 s{sD}, 2
    s_cbranch_scc1 L_wq2
    s_waitcnt vmcnt(0)""")
    lds_inc(C_WQ2, gGC, 9)
    a.label("L_wq2")
    lds_spin(C_WQ2, 2, gGC, 9, sleep=1)
    w_pre(1)
    TS(12)
    lds_spin(C_XN, 8, gGC, 9, sleep=1)
    TS(4)
    land = {}
    cur_a = [0]
    def xread(n, dst):
        aa, b = kord[n] & 7, kord[n] >> 3
        if aa != cur_a[0]: a(f"v_xor_b32 v7, {((aa ^ cur_a[0]) * 32)}, v7")
        cur_a[0] = aa
        a(f"ds_read_b128 {vr(dst,4)}, v7 offset:{b*256}")
        land[n] = dst
    ordr = sorted(range(32), key=lambda n: (kord[n] & 7, kord[n] >> 3))
    for i_ in range(4): xread(ordr[i_], QX + 4 * i_)
    nxt_rd = 4
    for i_, n in enumerate(ordr):
        a(f"s_waitcnt lgkmcnt({nxt_rd - i_ - 1})")
        a(f"{MF32} {vr(QA,16)}, {vr(QW+4*n,4)}, {vr(land[n],4)}, {'0' if i_ == 0 else vr(QA,16)}")
        if nxt_rd < 32: xread(ordr[nxt_rd], land[n]); nxt_rd += 1
        if i_ < 5 and nxt_rd < 32: xread(ordr[nxt_rd], QW + 4 * n); nxt_rd += 1
    gRS = 166
    if opt.get("pro"): TS(9)
    lds_spin(C_RS, 9, gGC, QX, sleep=0)
    T0 = QX
    a(f"""v_and_b32 v7, 31, v0
    v_lshlrev_b32 v{T0}, 2, v7
    v_add_u32 v{T0}, {RSTD}, v{T0}
    v_add_u32 v{T0+1}, {KT}, v{gL16}
    ds_read_b32 v{gRS}, v{T0}
    ds_read_b32 v{gRS+1}, v{T0} offset:128
    ds_read_b64 {vr(T0+2,2)}, v{gGC} offset:{C_EPOCH}
    ds_read_b128 {vr(T0+4,4)}, v{T0+1}
    ds_read_b128 v[100:103], v{T0+1} offset:{1024 * (NKT - 1)}
    s_lshl_b32 s{sA}, s{sCT}, 2
    s_add_u32 s{sA}, s{sA}, s{sRT}
    s_mul_i32 s{sA}, s{sA}, {QST}
    s_add_u32 s{sA}, s{sA}, {QF}
    v_add_u32 v{T0+10}, s{sA}, v{gL16}
    v_lshl_add_u32 v{T0+11}, {"v0, 3" if BC else "v7, 4"}, s{sA}
    s_cmp_eq_u32 s{sRT}, 0
    s_cselect_b64 vcc, -1, 0
    s_waitcnt lgkmcnt(0)
    v_readfirstlane_b32 s{sEP}, v{T0+2}
    v_cndmask_b32 v{T0+8}, v{gRS+1}, v{gRS}, vcc
    v_readfirstlane_b32 s{sEP+1}, v{T0+3}
    v_mul_f32 v{T0+8}, 0x3eb8aa3b, v{T0+8}""")
    if opt.get("pro"): TS(10)
    for hd in range(2):
        for j in range(4 * hd, 4 * hd + 4): a(f"v_pk_mul_f32 {vr(QA+2*j,2)}, {vr(QA+2*j,2)}, {vr(T0+8,2)} op_sel_hi:[1,0]")
        for j in range(4 * hd, 4 * hd + 4): a(f"v_cvt_pk_bf16_f32 v{QA+j}, v{QA+2*j}, v{QA+2*j+1}")
        a(f"ds_write_b128 v{T0+10}, {vr(QA+4*hd,4)} offset:{2*QST*hd}\ns_nop 0")
        a(f"{MF32} {vr(24+16*hd,16)}, {vr(T0+4,4)}, {vr(QA+4*hd,4)}, 0")
        if NKT == 2: a(f"{MF32} {vr(68+16*hd,16)}, v[100:103], {vr(QA+4*hd,4)}, 0")
    a("s_nop 1")
    def max2(S, d):
        maxtree(S, d)
        if NKT == 2:
            for j in range(0, 16, 2): a(f"v_max3_f32 v{d}, v{d}, v{S+44+j}, v{S+45+j}")
    max2(24, 56)
    a("v_mov_b32 v57, v56\ns_nop 1\nv_permlane32_swap_b32 v56, v57")
    max2(40, 58)
    if BC:
        a(f"""v_mov_b32 v59, v58
        v_max_f32 v56, v56, v57
        v_mov_b32 v60, {-OFFS/2}
        v_permlane32_swap_b32 v58, v59
        v_fma_f32 v56, v56, -0.5, v60
        v_max_f32 v58, v58, v59
        ds_write_b32 v{T0+11}, v56 offset:1024
        v_fma_f32 v58, v58, -0.5, v60
        ds_write_b32 v{T0+11}, v58 offset:{2*QST+1024}""")
    else:
        a(f"""v_mov_b32 v59, v58
        v_max_f32 v56, v56, v57
        v_sub_f32 v60, {-OFFS}, v56
        v_permlane32_swap_b32 v58, v59
        v_sub_f32 v61, {-OFFS}, v56
        v_max_f32 v58, v58, v59
        v_mov_b64 v[62:63], v[60:61]
        v_sub_f32 v64, {-OFFS}, v58
        v_sub_f32 v65, {-OFFS}, v58
        ds_write_b128 v{T0+11}, v[60:63] offset:1024
        v_mov_b64 v[66:67], v[64:65]
        ds_write_b128 v{T0+11}, v[64:67] offset:{2*QST+1024}""")
    lds_inc(C_QREADY, gGC, 26)
    TS(5)
    AC = [136, 104, 120, 88]
    XB = 136
    vB1, gXA, gXT, gWA, gWB, gV1 = 8, 16, 17, 18, 19, 20
    a(f"""v_lshrrev_b32 v44, 2, v0
    v_and_b32 v45, 3, v0
    v_mul_u32_u24 v44, {W1P}, v44
    v_lshl_add_u32 v{gV1}, v45, 4, v44
    v_add_u32 v{gV1+1}, {128*W1P-1024}, v{gV1}
    v_add_u32 v{gV1+2}, {2*(128*W1P-1024)}, v{gV1}
    v_add_u32 v{gV1+3}, {3*(128*W1P-1024)}, v{gV1}
    v_and_b32 v44, 16, v0
    v_lshlrev_b32 v44, 1, v44
    v_lshl_add_u32 v{gTR}, v45, 3, v44
    s_waitcnt vmcnt(0)""")
    def w1_dma1(b): return f"buffer_load_dwordx4 v{gV1+b}, {sr(rW,4)}, s{sSO} offen offset:{b*1024} lds"
    a(f"""v_lshlrev_b32 v40, 1, v7
    v_and_b32 v41, 7, v0
    v_lshlrev_b32 v41, {FS_}, v41
    v_and_b32 v44, 15, v0
    v_xor_b32 v44, v44, v{gH}
    v_lshlrev_b32 v44, 4, v44
    v_lshl_add_u32 v{gXA}, v7, 10, v44
    v_bfe_u32 v44, v0, 2, 2
    v_lshl_add_u32 v{gWB}, v44, 6, v{gTR}
    v_lshl_add_u32 v{gWB}, v{gH}, 9, v{gWB}
    v_add_u32 v{gWB}, s{sRNG}, v{gWB}""")
    a(f"""v_rcp_f32 v44, v{gRS}
    v_rcp_f32 v45, v{gRS+1}
    v_sub_u32 v48, v{gH}, 1
    s_mov_b32 s{sD}, 0xffff0000
    v_and_b32 v46, s{sD}, v44
    v_and_b32 v47, s{sD}, v45
    v_sub_f32 v44, v44, v46
    v_sub_f32 v45, v45, v47
    v_cvt_pk_bf16_f32 v12, v46, v44
    v_cvt_pk_bf16_f32 v14, v47, v45
    v_and_b32 v12, v48, v12
    v_and_b32 v14, v48, v14
    v_mov_b32 v9, 0
    v_mov_b64 v[10:11], 0
    v_mov_b32 v13, 0""")
    H0, H1 = 104, 120
    FB = [24, 56]
    FX = [88, 150]
    FX = [88, 152]
    def f1_reads(p, b):
        nx = 4 if not (p == 1 and b == 3) else 4
        return [f"ds_read_b64_tr_b16 {vr(FB[p]+8*b,2)}, v{gWA} offset:{b*1024}", f"ds_read_b64_tr_b16 {vr(FB[p]+8*b+2,2)}, v{gWA} offset:{b*1024+256}",
                f"ds_read_b128 {vr(FB[p]+8*b+4,4)}, v{gXT} offset:{b*256}", f"ds_read_b128 {vr(FX[p]+4*b,4)}, v{gXT} offset:{b*256+32768}"]
    gR2 = 6
    def bias():
        a(f"{MF32} {vr(H0,16)}, v[8:11], v[12:15], {vr(H0,16)}\n{MF32} {vr(H1,16)}, v[8:11], v[14:17], {vr(H1,16)}")
    def hzero():
        a(f"v_mfma_f32_32x32x8_bf16 {vr(H0,16)}, v[10:11], v[10:11], 0\nv_mfma_f32_32x32x8_bf16 {vr(H1,16)}, v[10:11], v[10:11], 0")
    a(f"""v_mul_f32 v{gR2}, v{gRS}, v{gRS}
    v_mul_f32 v{gR2+1}, v{gRS+1}, v{gRS+1}
    v_mov_b32 v{gWA}, v{gWB}
    v_mov_b32 v{gXT}, v{gXA}
    s_mov_b32 s{sN}, {4 if opt.get("z_skip") else 0}
    s_mov_b32 s{sM}, 0""")
    hzero()
    plan_lo = [(0, 22, 0, 22), (22, 22, 64, 68), (40, 21 + 128, 68, 77), (52, 21 + 128, 77, 86)]
    plan_hi = [(0, 26, 64, 72), (18, 26, 72, 80), (36, 18 + 128, 80, 86), (48, 16, 0, 64)]
    def pack(b): return sum(x << (8 * i) for i, x in enumerate(b))
    sPL, sSW, sS2 = 18, 19, 10
    a(f"s_mul_i32 s{sS2}, s{sCT}, {64*W1P}\ns_lshl_b32 s{sD}, s{sT2}, 6\ns_add_u32 s{sS2}, s{sS2}, s{sD}")
    a(f"s_mov_b32 s{sPL}, {pack(plan_hi[0])}")
    a(f"s_cmp_lt_u32 s{sG}, 3\ns_cselect_b32 s{sD}, 4, 0\ns_add_u32 s{sD}, s{sD}, s{sI}")
    for n, pl in enumerate(plan_hi + plan_lo):
        if n: a(f"s_cmp_eq_u32 s{sD}, {n}\ns_cselect_b32 s{sPL}, {pack(pl)}, s{sPL}")
    a(f"""s_lshr_b32 s{sD}, s{sPL}, 24
    s_mov_b32 s{rX}, s{pW2}
    s_mov_b32 s{rX+1}, s{pW2+1}
    s_lshl_b32 s{rX+2}, s{sD}, 14
    s_mov_b32 s{rX+3}, 0x20000
    s_and_b32 s{sSW}, s{sPL}, 0xff
    s_lshl_b32 s{sSW}, s{sSW}, 14
    s_lshl_b32 s{sD}, s{sG}, 7
    s_add_u32 s{sSW}, s{sSW}, s{sD}""")
    srd(rT, pB1, W1P)
    lds_spin(C_QREADY, 4, gGC, 56, sleep=0)
    lds_spin(C_KV, 8, gGC, 56, sleep=2)
    if opt.get("delay_f1"): lds_spin(C_ABAR, 16, gGC, 56, sleep=16)
    TS(15)
    late[0] = True
    for n in range(3):
        a(f"s_add_u32 m0, s{sRNG}, {n*4096}\ns_nop 0")
        for b in range(4): a(w1_dma1(b))
        a(f"s_add_u32 s{sSO}, s{sSO}, {16*W1P}")
    a(f"""s_lshl_b32 s{sC}, s{sT1}, 6
    s_lshl_b32 s{sD}, s{sT2}, 6
    s_lshl_b32 s{sF}, s{sRB}, {FS_+3}
    s_add_u32 s{sF}, s{sF}, {FLG_KV}
    buffer_load_ushort v8, v40, {sr(rT,4)}, s{sC} offen
    buffer_load_ushort v15, v40, {sr(rT,4)}, s{sD} offen
    buffer_load_dword v{AC[0]+2}, v41, {sr(rWS,4)}, s{sF} offen offset:8 sc1
    s_waitcnt vmcnt(11)""")
    for b in range(4):
        for l in f1_reads(0, b): a(l)
    TS(3)
    a(".p2align 6")
    a.label("L_f1loop")
    for p in range(2):
        a(f"""s_add_u32 m0, s{sM}, s{sRNG}
        s_add_u32 s{sM}, s{sM}, 4096
        s_cmp_lt_u32 s{sM}, {RSZ}
        s_cselect_b32 s{sM}, s{sM}, 0
        s_add_u32 s{sN}, s{sN}, 1
        s_lshr_b32 s{sD}, s{sN}, 3
        s_and_b32 s{sD}, s{sD}, s{sCT}
        s_lshl_b32 s{sD}, s{sD}, 2
        s_add_u32 s{sD}, s{sD}, s{sN}
        s_and_b32 s{sD}, s{sD}, 7
        s_lshl_b32 s{sD}, s{sD}, 5
        v_add_u32 v{gWA}, s{sM}, v{gWB}
        v_xor_b32 v{gXT}, s{sD}, v{gXA}""")
        if p == 1:
            a(f"""s_cmp_eq_u32 s{sN}, 6
            s_cselect_b32 s{sSO}, s{sS2}, s{sSO}
            s_add_u32 s{sD}, s{sN}, 2
            s_cmp_lt_u32 s{sD}, s{sNG}
            s_cselect_b32 s{rW+2}, s{rW+2}, 0""")
        for b in range(4):
            rd = f1_reads(1 - p, b)
            if not opt.get("x_nolg"): a("s_waitcnt lgkmcnt(12)")
            a(f"{MF32} {vr(H0,16)}, {vr(FB[p]+8*b,4)}, {vr(FB[p]+8*b+4,4)}, {vr(H0,16)}")
            a(w1_dma1(b))
            a(rd[2]); a(rd[3])
            pad(P1A)
            a(f"{MF32} {vr(H1,16)}, {vr(FB[p]+8*b,4)}, {vr(FX[p]+4*b,4)}, {vr(H1,16)}")
            a("s_waitcnt vmcnt(8)")
            a(rd[0]); a(rd[1])
            if b < 3: pad(P1B)
        a(f"s_add_u32 s{sSO}, s{sSO}, {16*W1P}")
    a(f"""s_cmp_lt_u32 s{sN}, 8
    s_cbranch_scc1 L_f1loop
    s_cmp_eq_u32 s{sN}, 10
    s_cbranch_scc1 L_f1pub""")
    TS(2)
    a(f"""s_getreg_b32 s{sD}, hwreg(HW_REG_XCC_ID)
    v_lshl_or_b32 v8, v8, 16, v8
    v_cmp_ne_u32 vcc, s{sD}, v{AC[0]+2}
    s_mul_i32 s{sD}, s{sRB}, 86
    s_lshl_b32 s{sC}, s{sT1}, 1
    s_add_u32 s{sD}, s{sD}, s{sC}
    s_lshl_b32 s{sD}, s{sD}, 11
    s_add_u32 s{sD}, s{sD}, {HF}
    s_mov_b32 s{sT1}, s{sT2}
    s_cmp_eq_u64 vcc, 0
    s_cselect_b32 s{sLOC}, {0 if opt.get("noloc") else 1}, 0
    s_cmp_eq_u32 s{sN}, 12
    s_cbranch_scc1 L_half""")
    bias()
    a(f"v_mov_b32 v8, v15\ns_nop 9")
    for rt, Hh in enumerate((H0, H1)):
        a.label(f"L_epi{rt}")
        for j in range(16): a(f"v_max_f32 v{Hh+j}, 0, v{Hh+j}")
        for j in range(8): a(f"v_pk_mul_f32 {vr(Hh+2*j,2)}, {vr(Hh+2*j,2)}, {vr(Hh+2*j,2)}")
        sel = "op_sel_hi:[1,0]" if rt == 0 else "op_sel:[0,1] op_sel_hi:[1,1]"
        if not opt.get("fold", 0):
            for j in range(8): a(f"v_pk_mul_f32 {vr(Hh+2*j,2)}, {vr(Hh+2*j,2)}, {vr(gR2,2)} {sel}")
        for j in range(8): a(f"v_cvt_pk_bf16_f32 v{Hh+j}, v{Hh+2*j}, v{Hh+2*j+1}")
        hst = [f"buffer_store_dwordx4 {vr(Hh+4*s_,4)}, v{gL16}, {sr(rWS,4)}, s{sD} offen offset:{s_*2048+rt*1024}" for s_ in range(2)]
        if HLOC: grp_store(hst)
        else:
            for l in hst: a(l + " sc1")
        if rt == 0: a(f"s_cmp_eq_u32 s{sN}, 12\ns_cbranch_scc1 L_epid")
    a.label("L_epid")
    gSW2 = 22
    D2 = RSZ // 2048
    def w2_dma(u):
        a(f"""s_add_u32 m0, s{sRNG}, {u*2048}
        s_nop 0
        buffer_load_dwordx4 v{gSW}, {sr(rX,4)}, s{sSW} offen lds
        buffer_load_dwordx4 v{gSW2}, {sr(rX,4)}, s{sSW} offen offset:1024 lds
        s_add_u32 s{sSW}, s{sSW}, 16384""")
    PT = AC[0]
    a("s_nop 0")
    hzero()
    a(f"""s_cmp_lt_u32 s{sN}, s{sNG}
    s_cbranch_scc1 L_f1loop
    v_add_u32 v{gSW2}, {8192-1024}, v{gSW}
    s_cmp_eq_u32 s{sN}, 8
    s_cbranch_scc1 L_f1fill""")
    lds_spin(C_PX, 4, 26, 27, sleep=0)
    a.label("L_f1fill")
    for u in range(D2): w2_dma(u)
    a(f"s_waitcnt vmcnt({2*D2})")
    a.label("L_f1pub")
    a(f"""s_cmp_lt_u32 s{sN}, 12
    s_cselect_b32 s{sD}, 1, 16
    v_mov_b32 v{PT}, s{sD}
    s_mov_b64 exec, 1
    ds_add_rtn_u32 v{PT+1}, v{gGC}, v{PT} offset:{C_HDONE}
    s_mov_b64 exec, -1
    s_lshl_b32 s{sC}, s{sRB}, 3
    s_add_u32 s{sC}, s{sC}, s{sG}
    s_lshl_b32 s{sC}, s{sC}, 7
    s_lshr_b32 s{sD}, s{sD}, 1
    s_add_u32 s{sC}, s{sC}, s{sD}
    s_add_u32 s{sC}, s{sC}, {FLG_H}
    s_cmp_lt_u32 s{sG}, 3
    s_cselect_b32 s{sCAP}, 3, 1
    s_cmp_lt_u32 s{sN}, 12
    s_cselect_b32 s{sCAP}, 3, s{sCAP}
    s_cselect_b32 s{sD}, 0, 4
    s_waitcnt lgkmcnt(0)
    v_readfirstlane_b32 s{sF}, v{PT+1}
    s_nop 0
    s_lshr_b32 s{sF}, s{sF}, s{sD}
    s_and_b32 s{sF}, s{sF}, 15
    s_cmp_lg_u32 s{sF}, s{sCAP}
    s_cbranch_scc1 L_nohflag""")
    flag_store(sC, PT)
    a.label("L_nohflag")
    a(f"""s_cmp_eq_u32 s{sN}, 10
    s_cbranch_scc1 L_f1loop""")
    TS(6)
    sK0, sK1, sSH, sXC = 0, 1, sC, sB
    gA0, gA1, gHO0, gHO1, gFL, gWO = 8, 9, 10, 11, 12, 13
    gCN, gOA, gLA, gCV = 16, 17, 18, 19
    HR = 24
    AF = [152, 160]
    WOF, FA = 88, 72
    OFR = [[56, 60, 64, 68, 152, 156, 160, 164], [24 + 4 * gp for gp in range(8)]]
    sKT, sWM, sWS = 12, 13, 26
    sHB, sFH, sNF, sPF, sRET, sLOOP = 8, 9, 10, 11, 14, 20
    def ev_set():
        a(f"""s_mul_i32 s{sA}, s{sNF}, {OST}
        s_add_u32 s{sA}, s{sA}, {OACC}
        v_mov_b32 v{gCN}, s{sA}
        v_lshrrev_b32 v{gOA}, 1, v{gL16}
        v_and_b32 v{gLA}, 0xff, v{gOA}
        v_add_u32 v{gOA}, s{sA}, v{gOA}
        v_add_u32 v{gLA}, s{sA}, v{gLA}""")
    def o_flag():
        a(f"""s_lshl_b32 s{sA}, s{sRB}, 3
        s_add_u32 s{sA}, s{sA}, s{sG}
        s_lshl_b32 s{sA}, s{sA}, 4
        s_add_u32 s{sA}, s{sA}, s{sPF}
        s_lshl_b32 s{sA}, s{sA}, 3
        s_add_u32 s{sA}, s{sA}, {FLG_O}
        s_mov_b32 s{sPF}, s{sNF}""")
    srd(rW, pX, 0x200000)
    srd(rT, pB2, 1024)
    a(f"""v_and_b32 v41, 31, v0
    v_lshlrev_b32 v40, 4, v{gH}
    v_lshl_add_u32 v40, v41, 10, v40
    v_lshlrev_b32 v41, 1, v41
    s_lshl_b32 s{sA}, s{sG}, 7
    s_lshl_b32 s{sD}, s{sCT}, 6
    s_add_u32 s{sA}, s{sA}, s{sD}
    s_lshl_b32 s{sD}, s{sRB}, 16
    s_lshl_b32 s{sC}, s{sRT}, 15
    s_add_u32 s{sD}, s{sD}, s{sC}
    s_add_u32 s{sD}, s{sD}, s{sA}
    buffer_load_dwordx4 v[24:27], v40, {sr(rW,4)}, s{sD} offen
    buffer_load_dwordx4 v[28:31], v40, {sr(rW,4)}, s{sD} offen offset:32
    buffer_load_ushort v76, v41, {sr(rT,4)}, s{sA} offen""")
    a(f"""s_lshl_b32 s{sFH}, s{sRB}, 10
    s_add_u32 s{sFH}, s{sFH}, {FLG_H}
    v_and_b32 v{gFL}, 7, v0
    v_lshlrev_b32 v{gFL}, 7, v{gFL}
    v_bfe_u32 v{gR}, v0, 2, 2
    buffer_load_dwordx2 v[14:15], v{gFL}, {sr(rWS,4)}, s{sFH} offen sc1
    v_lshrrev_b32 v{gWO}, 1, v{gR}
    v_xor_b32 v{gWO}, s{sCT}, v{gWO}
    v_lshl_add_u32 v{gWO}, v{gWO}, 6, v{gTR}
    v_lshl_add_u32 v{gWO}, v{gR}, 7, v{gWO}
    v_lshl_add_u32 v{gWO}, v{gH}, 9, v{gWO}
    s_lshl_b32 s{sA}, s{sRT}, 10
    v_mov_b64 v[72:73], 0
    v_mov_b64 v[74:75], 0
    v_add_u32 v{gA0}, s{sRNG}, v{gWO}
    v_xor_b32 v{gA1}, 64, v{gA0}
    v_add_u32 v{gHO0}, s{sA}, v{gL16}
    v_xor_b32 v{gHO1}, 0x400, v{gHO0}""")
    a(f"{MF32} {vr(AC[3],16)}, v[72:75], v[72:75], 0")
    a(f"""v_sub_u32 v78, 1, v{gH}
    v_mov_b32 v77, 0
    v_mul_u32_u24 v78, 0x3f80, v78
    v_mov_b32 v79, 0
    s_mov_b32 s{sD}, 0xffff0000
    s_waitcnt vmcnt(1)""")
    for j in (24, 25, 28, 29): a(f"v_permlane32_swap_b32 v{j}, v{j+2}")
    for j in range(8): a(f"v_lshlrev_b32 v{AC[0]+2*j}, 16, v{24+j}\nv_and_b32 v{AC[0]+2*j+1}, s{sD}, v{24+j}")
    a(f"s_nop 1\nv_mfma_f32_32x32x8_bf16 {vr(AC[0],16)}, v[76:77], v[78:79], {vr(AC[0],16)}")
    def a_reads(u, p):
        for d, ga in enumerate((gA0, gA1)):
            a(f"ds_read_b64_tr_b16 {vr(AF[p]+4*d,2)}, v{ga} offset:{u*2048}\nds_read_b64_tr_b16 {vr(AF[p]+4*d+2,2)}, v{ga} offset:{u*2048+1024}")
    LDS_OFF = 0x30000
    a(f"""s_mul_i32 s{sHB}, s{sRB}, {86*2048}
    s_add_u32 s{sHB}, s{sHB}, {HF}
    s_and_b32 s{sSH}, s{sPL}, 0xff
    s_lshl_b32 s{sSH}, s{sSH}, 11
    s_add_u32 s{sSH}, s{sSH}, s{sHB}
    s_lshr_b32 s{sD}, s{sPL}, 24
    s_lshl_b32 s{sD}, s{sD}, 11
    s_mov_b32 s{rT}, s{pWS}
    s_mov_b32 s{rT+1}, s{pWS+1}
    s_add_u32 s{rT+2}, s{sD}, s{sHB}
    s_mov_b32 s{rT+3}, 0x20000
    s_bfe_u32 s{sK1}, s{sPL}, 0x70008
    s_sub_u32 s{sKT}, s{sK1}, {D2}
    s_mov_b32 s{rW}, s{pWO}
    s_mov_b32 s{rW+1}, s{pWO+1}
    s_lshl_b32 s{sWM}, s{sI}, 14
    s_lshl_b32 s{sWS}, s{sI}, 17
    s_add_u32 s{rW+2}, s{sWS}, 0x20000
    s_mov_b32 s{rW+3}, 0x20000
    s_lshl_b32 s{sA}, s{sG}, 7
    s_add_u32 s{sWS}, s{sWS}, s{sA}
    s_bitcmp1_b32 s{sPL}, 15
    s_cselect_b32 s27, 6, 12
    s_mov_b32 s{sK0}, 0
    s_xor_b32 s{sNF}, s{sCT}, 1
    s_lshl_b32 s{sNF}, s{sNF}, 1
    s_add_u32 s{sNF}, s{sNF}, s{sRT}
    s_mov_b32 s{sPF}, s{sNF}
    s_mov_b32 s{sLOOP}, 1""")
    ev_set()
    a(f"s_bfe_u32 s{sXC}, s{sPL}, 0x80010")
    flag_poll(gFL, sFH, 14, preissued=True, sleep=opt.get("hsleep", 2))
    TS(7)
    for u in range(D2):
        a(f"""buffer_load_dwordx4 {vr(HR+8*u,4)}, v{gHO0}, {sr(rT,4)}, s{sSH} offen sc1
        buffer_load_dwordx4 {vr(HR+8*u+4,4)}, v{gHO1}, {sr(rT,4)}, s{sSH} offen sc1
        s_add_u32 s{sSH}, s{sSH}, 2048""")
    a_reads(0, 0)
    a(f"ds_read_b32 v{gCV}, v{gCN} offset:{B_CNT}")
    a(f"s_add_u32 s{sFH}, s{sFH}, 8\ns_waitcnt vmcnt(0)")
    if opt.get("x_noh"): a(f"s_mov_b32 s{rT+2}, 0")
    if opt.get("x_now"): a(f"s_mov_b32 s{rX+2}, 0")
    TS(1)
    a(".p2align 6")
    a.label("L_f2loop")
    for u in range(D2):
        p = u & 1
        def mf(j): a(f"{MF32} {vr(AC[j],16)}, {vr(AF[p]+4*(j&1),4)}, {vr(HR+8*u+4*(j>>1),4)}, {vr(AC[j],16)}")
        a(f"s_waitcnt vmcnt({4*(D2-2)}) lgkmcnt(0)")
        mf(0)
        a_reads((u + 1) % D2, 1 - p)
        pad(P2A)
        mf(1)
        if u == 0:
            a("s_branch L_trip")
            a.label("L_tripped")
        elif u == D2 - 1: a(f"ds_read_b32 v{gCV}, v{gCN} offset:{B_CNT}")
        a(f"s_add_u32 m0, s{sRNG}, {u*2048}\ns_cmp_ge_u32 s{sK0}, s{sKT}\ns_cbranch_scc1 L_tail{u}")
        a(f"""buffer_load_dwordx4 v{gSW}, {sr(rX,4)}, s{sSW} offen lds
        buffer_load_dwordx4 v{gSW2}, {sr(rX,4)}, s{sSW} offen offset:1024 lds""")
        mf(2)
        a(f"""buffer_load_dwordx4 {vr(HR+8*u,4)}, v{gHO0}, {sr(rT,4)}, s{sSH} offen sc1
        s_add_u32 s{sSW}, s{sSW}, 16384
        s_add_u32 s{sK0}, s{sK0}, 1""")
        pad(P2C)
        mf(3)
        a(f"buffer_load_dwordx4 {vr(HR+8*u+4,4)}, v{gHO1}, {sr(rT,4)}, s{sSH} offen sc1\ns_add_u32 s{sSH}, s{sSH}, 2048")
        if u == D2 - 1: a("s_branch L_f2loop")
        else: pad(P2D)
        a.label(f"L_next{u}")
    for u in range(D2):
        p = u & 1
        a.label(f"L_tail{u}")
        for j in (2, 3):
            a(f"{MF32} {vr(AC[j],16)}, {vr(AF[p]+4*(j&1),4)}, {vr(HR+8*u+4*(j>>1),4)}, {vr(AC[j],16)}")
            if j == 2: a(f"s_call_b64 s[96:97], L_wo4")
        a(f"""s_add_u32 s{sK0}, s{sK0}, 1
        s_cmp_lt_u32 s{sK0}, s{sK1}
        s_cbranch_scc1 {"L_f2loop" if u == D2 - 1 else f"L_next{u}"}""")
        if u < D2 - 1: a("s_branch L_f2done")
    a("s_branch L_f2done")
    a.label("L_wo4")
    a(f"""s_cmp_lg_u32 s{sK0}, s{sKT}
    s_cbranch_scc1 L_wo4b
    s_cmp_lt_u32 s{sG}, 3
    s_cselect_b32 s{sD}, 68, 36""")
    lds_spin(C_HDONE, f"s{sD}", gGC, 20, sleep=1)
    a.label("L_wo4b")
    a(f"""s_cmp_ge_u32 s{sWS}, s{rW+2}
    s_cbranch_scc1 L_wo4c""")
    for _ in range(2):
        a(f"""s_mov_b32 m0, s{sWM}
        s_add_u32 s{sWM}, s{sWM}, 2048
        buffer_load_dwordx4 v{gSW}, {sr(rW,4)}, s{sWS} offen lds
        buffer_load_dwordx4 v{gSW2}, {sr(rW,4)}, s{sWS} offen offset:1024 lds
        s_add_u32 s{sWS}, s{sWS}, 16384""")
    a.label("L_wo4c")
    a(f"s_setpc_b64 s[96:97]")
    a.label("L_f2done")
    TS(8)
    sJ, sFO, sOO, sRDY = 0, 1, sB, 21
    def wo_reads():
        for gp in range(8):
            a(f"ds_read_b64_tr_b16 {vr(WOF+4*gp,2)}, v{gWO} offset:{gp*8192}\nds_read_b64_tr_b16 {vr(WOF+4*gp+2,2)}, v{gWO} offset:{gp*8192+1024}")
        a(f"v_add_u32 v{gWO}, 2048, v{gWO}")
    def o_loads(bf):
        a(f"s_mov_b32 s{sA}, s{sOO}")
        for gp in range(8):
            a(f"buffer_load_dwordx4 {vr(OFR[bf][gp],4)}, v{gL16}, {sr(rWS,4)}, s{sA} offen sc1\ns_add_u32 s{sA}, s{sA}, 4096")
        a(f"s_add_u32 s{sOO}, s{sOO}, 1024\ns_add_u32 s{sJ}, s{sJ}, 1")
    def o_mf(bf, after):
        a(f"s_waitcnt lgkmcnt(0)")
        for gp in range(8):
            a(f"s_waitcnt vmcnt({7-gp+after})\n{MF32} {vr(AC[0],16)}, {vr(WOF+4*gp,4)}, {vr(OFR[bf][gp],4)}, {vr(AC[0],16)}")
            if gp < 7: pad(PO)
    a(f"""s_lshl_b32 s{sFO}, s{sRB}, 10
    s_lshl_b32 s{sA}, s{sRT}, 3
    s_add_u32 s{sFO}, s{sFO}, s{sA}
    s_add_u32 s{sFO}, s{sFO}, {FLG_O}
    v_and_b32 v20, 24, v0
    v_lshl_add_u32 v{gFL}, v20, 1, v{gFL}
    v_add_u32 v23, s{sRNG}, v{gL16}
    buffer_load_dwordx2 v[14:15], v{gFL}, {sr(rWS,4)}, s{sFO} offen sc1
    s_lshl_b32 s{sOO}, s{sRB}, 1
    s_add_u32 s{sOO}, s{sOO}, s{sRT}
    s_lshl_b32 s{sOO}, s{sOO}, 15
    s_add_u32 s{sOO}, s{sOO}, {OF}
    s_mov_b32 s{sJ}, 0
    s_mov_b32 s{sLOOP}, 0
    s_mov_b32 s23, 0""")
    srd(rT, pOUT, 0x200000)
    a(f"""s_waitcnt vmcnt(1) lgkmcnt(0)
    s_cmp_ge_u32 s{sPF}, s{sNF}
    s_cbranch_scc1 L_nopf""")
    o_flag()
    flag_store(sA, 20)
    a.label("L_nopf")
    for j in range(1, 4):
        for q in range(4): a(f"ds_write_b128 v23, {vr(AC[j]+4*q,4)} offset:{(j-1)*4096+q*1024}")
    lds_inc(C_GBAR, gGC, 23)
    a(f"""s_waitcnt vmcnt(0)
    v_cmp_ne_u64 vcc, {sr(sEP,2)}, v[14:15]
    s_nop 1
    s_mov_b32 s{sRDY}, vcc_lo
    s_and_b32 s22, s{sRDY}, 0xffff
    s_cbranch_scc1 L_red""")
    o_loads(1)
    o_loads(0)
    a.label("L_red")
    lds_spin(C_GBAR, 4, gGC, 14, sleep=1)
    for j in range(1, 4):
        a(f"s_xor_b32 s{sA}, s{sI}, {j}\ns_mul_i32 s{sA}, s{sA}, {RSZ}\ns_add_u32 s{sA}, s{sA}, {RING}\nv_add_u32 v14, s{sA}, v{gL16}")
        for q in range(4): a(f"ds_read_b128 {vr(AC[j]+4*q,4)}, v14 offset:{(j-1)*4096+q*1024}")
    for j in range(1, 4):
        a(f"s_waitcnt lgkmcnt({(3-j)*4})")
        for q in range(8): a(f"v_pk_add_f32 {vr(AC[0]+2*q,2)}, {vr(AC[0]+2*q,2)}, {vr(AC[j]+2*q,2)}")
    wo_reads()
    TS(9)
    a(f"""s_cmp_eq_u32 s22, 0
    s_cbranch_scc1 L_pair""")
    a.label("L_ev")
    a(f"""s_cmp_ge_u32 s{sPF}, s{sNF}
    s_cbranch_scc1 L_evf""")
    o_flag()
    a("s_waitcnt vmcnt(0)")
    flag_store(sA, 14)
    TS(13)
    a.label("L_evf")
    a(f"""s_add_u32 s23, s23, 1
    s_cmp_gt_u32 s23, {SPIN_CAP}
    s_cbranch_scc1 L_gdone
    s_cmp_ge_u32 s{sNF}, 8
    s_cbranch_scc1 L_evr
    ds_read_b32 v{gCV}, v{gCN} offset:{B_CNT}
    s_waitcnt lgkmcnt(0)
    v_readfirstlane_b32 s{sA}, v{gCV}
    s_nop 0
    s_bitcmp1_b32 s{sA}, 3
    s_cbranch_scc1 L_fin""")
    a.label("L_evr")
    a(f"""s_cmp_lt_u32 s{sJ}, 4
    s_cbranch_scc1 L_evc
    s_cmp_ge_u32 s{sNF}, 8
    s_cbranch_scc1 L_gdone""")
    a.label("L_evs")
    a(f"""s_sleep {opt.get("ldsleep", 1)}
    s_branch L_evf""")
    a.label("L_evc")
    a(f"""s_lshl_b32 s{sA}, s{sJ}, 1
    s_add_u32 s{sA}, s{sA}, s{sRT}
    s_cmp_eq_u32 s{sA}, s{sNF}
    s_cbranch_scc1 L_evs
    s_lshl_b32 s{sD}, s{sJ}, 3
    s_lshr_b32 s{sA}, s{sRDY}, s{sD}
    s_and_b32 s{sA}, s{sA}, 0xff
    s_cbranch_scc0 L_cons
    buffer_load_dwordx2 v[14:15], v{gFL}, {sr(rWS,4)}, s{sFO} offen sc1
    s_waitcnt vmcnt(0)
    v_cmp_ne_u64 vcc, {sr(sEP,2)}, v[14:15]
    s_nop 1
    s_mov_b32 s{sRDY}, vcc_lo
    s_lshr_b32 s{sA}, s{sRDY}, s{sD}
    s_and_b32 s{sA}, s{sA}, 0xff
    s_cbranch_scc0 L_cons
    s_sleep {opt.get("evsleep", 2)}
    s_branch L_ev""")
    a.label("L_cons")
    TS(4)
    a(f"""s_lshr_b32 s{sA}, s{sRDY}, s{sD}
    s_and_b32 s{sA}, s{sA}, 0xffff
    s_cbranch_scc1 L_cons1
    s_cmp_eq_u32 s{sJ}, 3
    s_cbranch_scc1 L_cons1""")
    o_loads(1)
    o_loads(0)
    a.label("L_pair")
    o_mf(1, 8)
    wo_reads()
    a("s_branch L_cons2")
    a.label("L_cons1")
    o_loads(0)
    a.label("L_cons2")
    o_mf(0, 0)
    a(f"""s_cmp_ge_u32 s{sJ}, 4
    s_cbranch_scc1 L_out""")
    wo_reads()
    a("s_branch L_ev")
    a.label("L_out")
    TS(10)
    a(f"""v_and_b32 v14, 31, v0
    v_lshlrev_b32 v15, 4, v{gH}
    v_lshl_add_u32 v14, v14, 10, v15
    s_lshl_b32 s{sA}, s{sG}, 7
    s_lshl_b32 s{sD}, s{sCT}, 6
    s_add_u32 s{sA}, s{sA}, s{sD}
    s_lshl_b32 s{sD}, s{sRB}, 16
    s_add_u32 s{sA}, s{sA}, s{sD}
    s_lshl_b32 s{sD}, s{sRT}, 15
    s_add_u32 s{sA}, s{sA}, s{sD}""")
    for j in range(8): a(f"v_cvt_pk_bf16_f32 v{AC[0]+j}, v{AC[0]+2*j}, v{AC[0]+2*j+1}")
    for j in (0, 1, 4, 5): a(f"v_permlane32_swap_b32 v{AC[0]+j}, v{AC[0]+j+2}")
    for q in range(2): a(f"buffer_store_dwordx4 {vr(AC[0]+4*q,4)}, v14, {sr(rT,4)}, s{sA} offen offset:{32*q} {opt.get('ost', '')}")
    a("s_branch L_ev")
    a.label("L_half")
    a(f"""s_xor_b32 s{sC}, s{sI}, 1
    s_mul_i32 s{sC}, s{sC}, {RSZ}
    s_add_u32 s{sC}, s{sC}, {RING}
    s_waitcnt lgkmcnt(0)
    v_add_u32 v24, s{sRNG}, v{gL16}
    v_add_u32 v25, s{sC}, v{gL16}
    v_lshl_add_u32 v26, s{sRT}, 2, v{gGC}
    s_waitcnt vmcnt(0)
    s_cmp_eq_u32 s{sCT}, 0
    s_cbranch_scc0 L_half1""")
    for keep, (Hk, Hs) in enumerate(((H0, H1), (H1, H0))):
        if keep: a.label("L_half1")
        for q in range(4): a(f"ds_write_b128 v24, {vr(Hs+4*q,4)} offset:{q*1024}")
        a(f"{MF32} {vr(Hk,16)}, v[8:11], {'v[12:15]' if keep == 0 else 'v[14:17]'}, {vr(Hk,16)}")
        lds_inc(C_PX, 26, 27)
        lds_spin(C_PX, 2, 26, 27, sleep=0)
        for q in range(4): a(f"ds_read_b128 {vr(Hs+4*q,4)}, v25 offset:{q*1024}")
        a("s_waitcnt lgkmcnt(0)")
        lds_inc(C_PX, 26, 27)
        for q in range(8): a(f"v_pk_add_f32 {vr(Hk+2*q,2)}, {vr(Hk+2*q,2)}, {vr(Hs+2*q,2)}")
        a(f"s_branch L_epi{keep}")
    a.label("L_trip")
    def tripstamp():
        if opt.get("f2ts"):
            a("s_memtime s[98:99]\ns_waitcnt lgkmcnt(0)")
            for i in range(1, 10): a(f"s_mov_b32 s{TS0+2*i}, s{TS0+2*i+2}")
            a(f"s_mov_b32 s{TS0+20}, s98")
    tripstamp()
    a(f"""s_setprio 3
    v_readfirstlane_b32 s{sD}, v{gCV}
    s_cmp_ge_u32 s{sPF}, s{sNF}
    s_cbranch_scc1 L_trip1""")
    o_flag()
    flag_store(sA, 20)
    a.label("L_trip1")
    a(f"""s_add_u32 s{sA}, s{sK0}, {D2}
    s_cmp_lg_u32 s{sA}, s27
    s_cbranch_scc1 L_trip1b
    buffer_load_dwordx2 v[14:15], v{gFL}, {sr(rWS,4)}, s{sFH} offen sc1""")
    a.label("L_trip1b")
    a(f"""s_cmp_lg_u32 s{sK0}, s27
    s_cbranch_scc1 L_trip2
    s_cmp_eq_u32 s{sXC}, 0
    s_cbranch_scc1 L_trip2
    v_cmp_ne_u64 vcc, {sr(sEP,2)}, v[14:15]
    s_lshl_b32 s{sSW}, s{sXC}, 14
    s_lshl_b32 s{sA}, s{sG}, 7
    s_add_u32 s{sSW}, s{sSW}, s{sA}
    s_lshl_b32 s{sSH}, s{sXC}, 11
    s_add_u32 s{sSH}, s{sSH}, s{sHB}""")
    a("s_cbranch_vccz L_crossok")
    flag_poll(gFL, sFH, 14, sleep=opt.get("hsleep", 2))
    a.label("L_crossok")
    TS(14)
    a.label("L_trip2")
    a(f"""s_cmp_lt_u32 s{sNF}, 8
    s_cselect_b32 s{sD}, s{sD}, 0
    s_cmp_eq_u32 s{sLOOP}, 1
    s_cselect_b32 s{sD}, s{sD}, 0
    s_bitcmp1_b32 s{sD}, 3
    s_cbranch_scc1 L_fin""")
    a.label("L_trip3")
    tripstamp()
    a(f"s_setprio {GP}\ns_branch L_tripped")
    a.label("L_fin")
    for j in range(7, -1, -1): a(f"ds_read_b64 {vr(FA+2*j,2)}, v{gOA} offset:{512*j}")
    a(f"""ds_read_b64 v[20:21], v{gLA} offset:{B_L}
    s_mov_b32 s{sD}, 0
    s_waitcnt lgkmcnt(0)""")
    for j in range(7, -1, -1): a(f"v_cvt_f32_f64 v{FA+8+j}, {vr(FA+2*j,2)}")
    a(f"v_cvt_f32_f64 v{FA}, v[20:21]")
    a.label("L_fin2")
    a(f"""s_and_b32 s{sA}, s{sNF}, 1
    s_lshl_b32 s{sF}, s{sRB}, 1
    v_rcp_f32 v{FA+1}, v{FA}
    s_add_u32 s{sA}, s{sA}, s{sF}
    s_lshl_b32 s{sA}, s{sA}, 3
    s_add_u32 s{sA}, s{sA}, s{sG}
    v_mov_b32 v{FA+3}, 0x76800000
    v_cmp_nle_f32 vcc, {hex(LMIN)}, v{FA}
    v_cmp_nle_f32 {sr(sRET,2)}, v{FA}, v{FA+3}""")
    for j in range(8): a(f"v_mul_f32 v{FA+8+j}, v{FA+8+j}, v{FA+1}")
    a(f"""s_or_b64 {sr(sRET,2)}, {sr(sRET,2)}, vcc
    s_lshl_b32 s{sA}, s{sA}, 2
    s_lshr_b32 s{sF}, s{sNF}, 1
    s_add_u32 s{sA}, s{sA}, s{sF}
    s_lshl_b32 s{sA}, s{sA}, 10
    s_add_u32 s{sA}, s{sA}, {OF}""")
    for j in range(4): a(f"v_cvt_pk_bf16_f32 v{FA+4+j}, v{FA+8+2*j}, v{FA+9+2*j}")
    a(f"v_pk_mul_f32 {vr(FA+2,2)}, {vr(FA+8,2)}, 0")
    for j in range(1, 4): a(f"v_pk_fma_f32 {vr(FA+2,2)}, {vr(FA+8+2*j,2)}, 0, {vr(FA+2,2)}")
    a(f"""v_cmp_u_f32 vcc, v{FA+2}, v{FA+3}
    s_nop 1
    s_or_b64 {sr(sRET,2)}, {sr(sRET,2)}, vcc
    s_cselect_b32 s{sF}, 1, 0
    s_cmp_gt_u32 s{sF}, s{sD}
    {"s_nop 0" if opt.get("nofb") else "s_cbranch_scc1 L_fallback"}
    s_add_u32 s{sNF}, s{sNF}, 4""")
    grp_store([f"buffer_store_dwordx4 {vr(FA+4,4)}, v{gL16}, {sr(rWS,4)}, s{sA} offen"])
    ev_set()
    a(f"""s_cmp_eq_u32 s{sLOOP}, 0
    s_cbranch_scc1 L_ev
    s_branch L_trip3""")
    a.label("L_gdone")
    if ts: a("s_waitcnt vmcnt(0)")
    TS(11)
    if opt.get("padto"):
        a.label("L_pad")
        a(f"s_memrealtime s[96:97]\ns_waitcnt lgkmcnt(0)\ns_sub_u32 s96, s96, s{sEP}\ns_cmp_lt_u32 s96, {opt['padto']}\ns_cbranch_scc1 L_pad")
    ts_dump()
    a.label("L_end")
    a("s_endpgm")

    for X, Y, lines in far:
        a.label(X)
        for l in lines: a(l + " sc1")
        a(f"s_branch {Y}")
    a.label("L_fallback")
    FQ, FK, FV, FS, FC, FT = 24, 28, 32, 40, 56, 120
    a(f"""s_cmp_eq_u32 s{sLOOP}, 0
    s_cbranch_scc1 L_fbgo
    s_mov_b32 s{sLOOP}, 2
    s_branch L_trip3""")
    a.label("L_fbgo")
    a(f"""s_mul_i32 s{sA}, s{sNF}, {QST}
    s_add_u32 s{sA}, s{sA}, {QF}
    v_add_u32 v{FT}, s{sA}, v{gL16}
    ds_read_b128 {vr(FQ,4)}, v{FT}
    v_mov_b32 v{FT+2}, 0xff800000""")
    a(f"s_mov_b32 s{sA}, 0")
    a.label("L_fb1")
    a(f"""buffer_load_dwordx4 {vr(FK,4)}, v{gL16}, {sr(rWS,4)}, s{sA} offen sc1
    s_waitcnt vmcnt(0) lgkmcnt(0)
    {MF32} {vr(FS,16)}, {vr(FK,4)}, {vr(FQ,4)}, 0
    s_nop 11""")
    maxtree(FS, FT + 3)
    a(f"""v_max_f32 v{FT+2}, v{FT+2}, v{FT+3}
    s_add_u32 s{sA}, s{sA}, 1024
    s_cmp_lt_u32 s{sA}, 0x10000
    s_cbranch_scc1 L_fb1
    v_mov_b32 v{FT+3}, v{FT+2}
    s_nop 1
    v_permlane32_swap_b32 v{FT+2}, v{FT+3}
    v_max_f32 v{FT+2}, v{FT+2}, v{FT+3}""")
    for i in range(16): a(f"v_sub_f32 v{FC+i}, 0, v{FT+2}\nv_mov_b32 v{FA+i}, 0")
    a(f"s_mov_b32 s{sA}, 0")
    a.label("L_fb2")
    a(f"""s_add_u32 s{sF}, s{sA}, {VF}
    buffer_load_dwordx4 {vr(FK,4)}, v{gL16}, {sr(rWS,4)}, s{sA} offen sc1
    buffer_load_dwordx4 {vr(FV,4)}, v{gL16}, {sr(rWS,4)}, s{sF} offen sc1""")
    for i in range(4): a(f"v_mov_b32 v{FV+4+i}, 0x3f803f80")
    a(f"""s_waitcnt vmcnt(0)
    {MF32} {vr(FS,16)}, {vr(FK,4)}, {vr(FQ,4)}, {vr(FC,16)}""")
    for i in range(4): a(f"v_permlane16_swap_b32 v{FV+4+i}, v{FV+i}")
    a("s_nop 7")
    for i in range(16): a(e(FS, i))
    a("s_nop 0")
    for j in range(8): a(c(FS, j))
    a(f"""s_nop 1
    {MF32} {vr(FA,16)}, {vr(FV,4)}, {vr(FS,4)}, {vr(FA,16)}
    {MF32} {vr(FA,16)}, {vr(FV+4,4)}, {vr(FS+8,4)}, {vr(FA,16)}
    s_add_u32 s{sA}, s{sA}, 1024
    s_cmp_lt_u32 s{sA}, 0x10000
    s_cbranch_scc1 L_fb2
    s_nop 15
    s_mov_b32 s{sD}, 1
    s_branch L_fin2""")

    if opt.get("x_nomf"):
        i0 = a.lines.index("L_f1loop:"); i1 = a.lines.index("L_gdone:")
        for i in range(i0, i1):
            if a.lines[i].startswith("v_mfma"): a.lines[i] = "s_nop 9"
    if opt.get("x_nolds"):
        i0 = a.lines.index("L_f1loop:"); i1 = a.lines.index("L_f2done:")
        for i in range(i0, i1):
            if a.lines[i].startswith(("ds_read_b128", "ds_read_b64_tr")): a.lines[i] = "s_nop 0"
    if opt.get("x_novm"):
        i0 = a.lines.index("L_f1loop:"); i1 = a.lines.index("L_f2done:")
        for i in range(i0, i1):
            if a.lines[i].startswith("buffer_load_dwordx4"): a.lines[i] = "s_nop 3"
    if opt.get("x_nova"):
        i0 = a.lines.index("L_f1loop:"); i1 = a.lines.index("L_gdone:")
        for i in range(i0, i1):
            if a.lines[i].startswith(("v_max_f32", "v_pk_", "v_cvt", "v_mul_f32")): a.lines[i] = "s_nop 0"
    if opt.get("x_mf16"):
        import re
        i0 = a.lines.index("L_f1loop:"); i1 = a.lines.index("L_f2done:")
        for i in range(i1, i0, -1):
            m = re.match(r"v_mfma_f32_32x32x16_bf16 v\[(\d+):\d+\], (\S+), (\S+), v", a.lines[i])
            if m:
                d = int(m.group(1))
                a.lines[i:i+1] = [f"v_mfma_f32_16x16x32_bf16 v[{d+4*q}:{d+4*q+3}], {m.group(2)}, {m.group(3)}, v[{d+4*q}:{d+4*q+3}]" for q in range(2)]
    i0 = a.lines.index("L_atop:"); i1 = a.lines.index("L_vs0:")
    for i in range(i1, i0, -1):
        l = a.lines[i]
        if opt.get("y_noadd") and l.startswith("ds_add_f64"): del a.lines[i]
        elif opt.get("y_nocvt") and l.startswith("v_cvt_f64"): del a.lines[i]
        elif opt.get("y_noq") and l.startswith("ds_read_b128"): del a.lines[i]
        elif opt.get("y_noexec") and ("exec_hi" in l): del a.lines[i]
        elif opt.get("y_nobr") and l.startswith("s_cbranch_vccnz"): del a.lines[i]
    if opt.get("x_p0", 1):
        i0 = a.lines.index("L_f1loop:"); i1 = a.lines.index("L_gdone:")
        for i in range(i1, i0, -1):
            if a.lines[i].startswith("v_mfma"): a.lines[i:i+1] = ["s_setprio 0", a.lines[i], "s_setprio 3"]
    probs = lint(a.lines)
    for p in probs: print("LINT", p, file=sys.stderr)
    head = f"""; fused layernorm + MQA attention + squared-relu FFN, one persistent launch (generated by gen/gen.py)
; @launch grid=(256,1,1) block=(768,1,1) lds=163840
.amdgcn_target "amdgcn-amd-amdhsa--gfx950"
.text
.globl {NAME}_kernel
.p2align 8
.type {NAME}_kernel,@function
{NAME}_kernel:
"""
    tail = f""".section .rodata,"a"
.p2align 6
.amdhsa_kernel {NAME}_kernel
  .amdhsa_next_free_vgpr 168
  .amdhsa_next_free_sgpr 100
  .amdhsa_accum_offset 168
  .amdhsa_group_segment_fixed_size 0
  .amdhsa_kernarg_size 104
  .amdhsa_user_sgpr_count 2
  .amdhsa_user_sgpr_kernarg_segment_ptr 1
  .amdhsa_system_sgpr_workgroup_id_x 1
.end_amdhsa_kernel
"""
    return head + a.text() + tail

if __name__ == "__main__":
    open("k.s", "w").write(gen(False))
    open("k_ts.s", "w").write(gen(True))
    open("k_ts_c.s", "w").write(gen(True, dict(cyc=1)))
    import json
    var = json.load(open("variants.json")) if len(sys.argv) > 1 else []
    for n, d in enumerate(var):
        open(f"k_x{n}.s", "w").write(gen(True, dict(d, lite=1)))
```

```python
import sys
from asmlib import Asm, vr, sr, lint
NAME = "parallel_sum__grouped_kv_mqa__dense_activation_squared_relu__prompt"

KF, VF, FLG_KV, FLG_H, FLG_O, OF, HF, TSB = 0, 0x10000, 0x20000, 0x28000, 0x30000, 0x40000, 0x240000, 0x800000
OT = 0x900000
WS_BYTES = 0xA00000
XN, RING, WKV = 0, 65536, 131072
RSZ = 12288
OACC, OST = 114688, 4608
B_L, B_CNT = 4096, 4352
QF, QST = 151552, 1536
KT = OACC + 7 * OST + 1024
RSTD = KT + 2048
GC = OACC + 7 * OST + B_CNT + 16
C_QREADY, C_ABAR, C_HDONE, C_GBAR, C_WQ, C_KV, C_RS, C_L0, C_EPOCH, C_PX, C_KT, C_WQ2, C_FL, C_XN = 0, 4, 8, 12, 16, 20, 24, 28, 32, 40, 48, 52, 56, 60
W1P = 2752
OFFS = 90.0
SPIN_CAP = 1 << 17

sW, sRB, sG, sKG, sCH = 3, 4, 5, 6, 7
pX, pWQ, pWK, pWV, pWO, pW1, pB1, pW2, pB2, pOUT, pDBG, pWS = 8, 10, 12, 14, 16, 20, 22, 24, 26, 28, 30, 32
rX, rWS, rW, rT = 36, 40, 44, 48
sEP = 52
sI, sRT, sCT = 54, 55, 56
sA, sB, sC, sD, sE, sF = 57, 58, 59, 60, 61, 62
sCAP = 63
sM = 34
TS0 = 64
MF32 = "v_mfma_f32_32x32x16_bf16"

def gen(ts=False, opt={}):
    a = Asm()
    OFFS = float(opt.get('offs', 102))
    LMIN = (127 - int(OFFS) - 2) << 23
    GP = opt.get('gp', 3)
    P1A, P1B, P2A, P2C, P2D, PO = opt.get('pads', (-1, -1, -1, -1, -1, -1))
    def pad(n):
        if n >= 0: a(f's_nop {n}')
    late = [False]
    role = ["A"]
    def TS(i):
        if opt.get("probe") == (role[0], i) and not (late[0] and opt.get("pearly")): a("s_memrealtime s[98:99]")
        if opt.get("lite") and i not in ((0, 6, 9) if role[0] == "A" else (0, 11)): return
        if opt.get("pro") and late[0] and i != 11: return
        if opt.get("f2ts") and late[0]: i = {7: 12, 8: 13, 6: 14, 11: 11}.get(i)
        if i is None: return
        if ts: a(f"{'s_memtime' if opt.get('cyc') else 's_memrealtime'} {sr(TS0 + 2 * i, 2)}")
    def srd(r, p, n):
        a(f"s_mov_b32 s{r}, s{p}\ns_mov_b32 s{r+1}, s{p+1}\ns_mov_b32 s{r+2}, {n}\ns_mov_b32 s{r+3}, 0x20000")
    def lds_spin(off, val, va, vt, sleep=1):
        L = a.newlabel("spin"); D = a.newlabel("spun")
        a(f"s_mov_b32 s{sCAP}, 0")
        a.label(L)
        a(f"""ds_read_b32 v{vt}, v{va} offset:{off}
        s_add_u32 s{sCAP}, s{sCAP}, 1
        s_waitcnt lgkmcnt(0)
        v_readfirstlane_b32 s{sF}, v{vt}
        s_cmp_gt_u32 s{sCAP}, {SPIN_CAP}
        s_cbranch_scc1 {D}""")
        if sleep:
            a(f"s_cmp_ge_u32 s{sF}, {val}\ns_cbranch_scc1 {D}\ns_sleep {sleep}\ns_branch {L}")
        else:
            a(f"s_cmp_lt_u32 s{sF}, {val}\ns_cbranch_scc1 {L}")
        a.label(D)
    def lds_inc(off, va, vt):
        a(f"v_mov_b32 v{vt}, 1\ns_mov_b64 exec, 1\nds_add_u32 v{va}, v{vt} offset:{off}\ns_mov_b64 exec, -1")
    def flag_poll(va, soff, vt, sleep=2, preissued=False):
        L = a.newlabel("poll"); D = a.newlabel("polled")
        a(f"s_mov_b32 s{sCAP}, 0")
        if preissued: a(f"s_branch {L}w")
        a.label(L)
        a(f"buffer_load_dwordx2 {vr(vt,2)}, v{va}, {sr(rWS,4)}, s{soff} offen sc1")
        a.label(L + "w")
        a(f"""s_add_u32 s{sCAP}, s{sCAP}, 1
        s_waitcnt vmcnt(0)
        v_cmp_ne_u64 vcc, {sr(sEP,2)}, {vr(vt,2)}
        s_cmp_gt_u32 s{sCAP}, {SPIN_CAP}
        s_cbranch_scc1 {D}
        s_cbranch_vccz {D}
        s_sleep {sleep}
        s_branch {L}""")
        a.label(D)
    sLOC = 25
    def grp_store(lines):
        X = a.newlabel("far"); Y = a.newlabel("std")
        a(f"s_cmp_eq_u32 s{sLOC}, 0\ns_cbranch_scc1 {X}")
        for l in lines: a(l)
        a.label(Y)
        far.append((X, Y, lines))
    far = []
    def flag_store(soff, vt):
        a(f"v_mov_b64 {vr(vt,2)}, {sr(sEP,2)}\ns_mov_b64 exec, 1")
        grp_store([f"buffer_store_dwordx2 {vr(vt,2)}, off, {sr(rWS,4)}, s{soff}"])
        a("s_mov_b64 exec, -1")
    def ts_dump():
        if opt.get("probe") and opt["probe"][0] == role[0]:
            L = a.newlabel("pad")
            a.label(L)
            a(f"s_sleep 2\ns_memrealtime s[96:97]\ns_waitcnt lgkmcnt(0)\ns_sub_u32 s96, s96, s98\ns_cmp_lt_u32 s96, 4000\ns_cbranch_scc1 {L}")
        if not ts: return
        a(f"""s_sleep 127
        s_sleep 127
        s_sleep 127
        s_waitcnt lgkmcnt(0)
        s_mul_i32 s{sA}, s2, 12
        s_add_u32 s{sA}, s{sA}, s{sW}
        s_lshl_b32 s{sA}, s{sA}, 6
        s_add_u32 s{sA}, s{sA}, {TSB}
        s_mov_b64 exec, 1""")
        for q in range(4):
            for j in range(4): a(f"v_mov_b32 v{4+j}, s{TS0 + 2 * (4 * q + j)}")
            a(f"buffer_store_dwordx4 v[4:7], off, {sr(rWS,4)}, s{sA} offset:{16*q}\ns_nop 1")
        a("s_waitcnt vmcnt(0)")
    def maxtree(S, d):
        a(f"v_max3_f32 v{d}, v{S}, v{S+1}, v{S+2}")
        for j in range(3, 15, 2): a(f"v_max3_f32 v{d}, v{d}, v{S+j}, v{S+j+1}")
        a(f"v_max_f32 v{d}, v{d}, v{S+15}")
    def e(S, i): return f"v_exp_f32 v{S+i}, v{S+i}"
    def c(S, j): return f"v_cvt_pk_bf16_f32 v{S + (j & 3) + 8 * (j >> 2)}, v{S+2*j}, v{S+2*j+1}"
    PFS = opt.get("pfstride", 7)
    def l2_prefetch(r, nbytes, vaddr, vdummy, part, nparts):
        chunk = 64 << PFS
        rounds = -(-nbytes // (chunk * 32))
        a(f"s_lshr_b32 s{sF}, s2, 3\ns_mul_i32 s{sF}, s{sF}, {chunk}")
        if part is not None:
            a(f"s_mul_i32 s{sCAP}, s{part}, {chunk*32}\ns_add_u32 s{sF}, s{sF}, s{sCAP}")
        for i in range(-(-rounds // nparts)):
            a(f"buffer_load_dword v{vdummy}, v{vaddr}, {sr(r,4)}, s{sF} offen")
            a(f"s_add_u32 s{sF}, s{sF}, {chunk*32*nparts}")

    FS_ = opt.get('fs', 5)
    NKT = opt.get('nkt', 2)
    BC = opt.get('bc', 0)
    TQ, TC, HLOC = opt.get("tq", 2), opt.get("tc", 4), opt.get("hloc", 0)
    def chip_touch(va, vd):
        a(f"s_mov_b32 exec_hi, 0x7ff\ns_mul_i32 s{sF}, s2, 5504")
        for p_ in (pW1, pW2):
            srd(rT, p_, 512 * W1P)
            a(f"buffer_load_dword v{vd}, v{va}, {sr(rT,4)}, s{sF} offen")
        srd(rT, pWO, 0x80000)
        a(f"s_mov_b64 exec, 0xffff\ns_lshl_b32 s{sF}, s2, 11\nbuffer_load_dword v{vd}, v{va}, {sr(rT,4)}, s{sF} offen\ns_mov_b64 exec, -1")
    def a_touch(lab):
        a(f"s_cmp_lg_u32 s{sW}, 7\ns_cbranch_scc1 {lab}\nv_lshlrev_b32 v14, 4, v0")
        chip_touch(14, 15)
        a.label(lab)
    if opt.get("probe"): a("s_memrealtime s[98:99]")
    a(f"""s_memrealtime {sr(sM,2)}
    s_load_dwordx16 s[8:23], s[0:1], 0
    s_load_dwordx8 s[24:31], s[0:1], 64
    s_load_dwordx2 s[32:33], s[0:1], 96
    s_cmp_ge_u32 s2, 256
    s_cbranch_scc1 L_end""")
    if ts:
        for i in range(16): a(f"s_mov_b32 s{TS0+2*i}, 0")
    TS(0)
    a(f"""v_lshrrev_b32 v1, 6, v0
    s_and_b32 s{sRB}, s2, 7
    v_readfirstlane_b32 s{sW}, v1
    s_lshl_b32 s{sRB}, s{sRB}, 2
    s_lshr_b32 s{sA}, s2, 6
    s_add_u32 s{sRB}, s{sRB}, s{sA}
    s_bfe_u32 s{sG}, s2, 0x30003
    s_lshr_b32 s{sKG}, s{sG}, 1
    s_and_b32 s{sCH}, s{sG}, 1
    v_and_b32 v0, 63, v0""")
    CP = opt.get("cpf", 1)
    if CP:
        a(f"""s_cmp_lg_u32 s{sW}, 10
        s_cbranch_scc1 L_nocp
        s_getpc_b64 s[48:49]
        v_lshlrev_b32 v2, 7, v0""")
        if CP == 1:
            a(f"""s_lshr_b32 s{sA}, s2, 3
            s_mul_i32 s{sA}, s{sA}, 640
            v_add_u32 v2, s{sA}, v2
            v_min_u32 v2, 18432, v2
            s_mov_b64 exec, 31
            global_load_dword v6, v2, s[48:49]
            s_mov_b64 exec, -1""")
        else:
            a(f"""global_load_dword v6, v2, s[48:49]
            v_add_u32 v2, 8192, v2
            global_load_dword v6, v2, s[48:49]""")
        a.label("L_nocp")
    a(f"""s_cmp_ge_u32 s{sW}, 8
    s_cbranch_scc1 L_gwave""")

    vL8, vAD, vT = 0, 1, 2
    Q, K, V, S0, S1, ACC, CIN = 4, 8, 40, 104, 120, 136, 152
    sQT, sINC, sKVO, sPB = sI, sRT, sE, sCT
    sOOF, sQA, sCA, sAH, sKB = 0, 1, 46, 47, 45
    a(f"""v_lshrrev_b32 v3, 5, v0
    v_and_b32 v4, 31, v0
    s_lshl_b32 s{sA}, s{sW}, 1
    v_add_u32 v3, s{sA}, v3
    v_lshlrev_b32 v1, 10, v3
    v_lshl_add_u32 v5, v4, 4, v1
    s_lshl_b32 s{sB}, s{sRB}, 16
    s_lshl_b32 s{sC}, s{sKG}, 14
    s_add_u32 s{sD}, s{sB}, s{sC}
    s_waitcnt lgkmcnt(0)""")
    srd(rX, pX, 0x200000)
    a(f"""buffer_load_dwordx4 v[8:11], v5, {sr(rX,4)}, s{sD} offen
    buffer_load_dwordx4 v[12:15], v5, {sr(rX,4)}, s{sD} offen offset:512""")
    def x_load(it):
        a(f"""s_xor_b32 s{sD}, s{sC}, {it << 14}
        s_add_u32 s{sD}, s{sB}, s{sD}
        buffer_load_dwordx4 {vr(8+8*it,4)}, v5, {sr(rX,4)}, s{sD} offen
        buffer_load_dwordx4 {vr(12+8*it,4)}, v5, {sr(rX,4)}, s{sD} offen offset:512""")
    srd(rWS, pWS, WS_BYTES)
    vGC, vQW, vOZ, vCW, vKA, vVA, vFL, vF2 = CIN, CIN + 1, CIN + 2, CIN + 3, CIN + 4, CIN + 5, CIN + 6, CIN + 7
    for i in range(8): a(f"v_mov_b64 {vr(ACC+2*i,2)}, 0")
    a(f"""v_mov_b32 v{vGC}, {GC}
    v_lshlrev_b32 v{vFL}, {FS_}, v4
    v_and_b32 v6, 15, v0
    v_cmp_eq_u32 vcc, 0, v6
    ds_write_b128 v{vGC}, {vr(ACC,4)}
    ds_write_b128 v{vGC}, {vr(ACC,4)} offset:16
    ds_write_b128 v{vGC}, {vr(ACC,4)} offset:32
    ds_write_b128 v{vGC}, {vr(ACC,4)} offset:48
    v_xor_b32 v4, v4, v3
    v_lshl_add_u32 v2, v4, 4, v1
    v_lshlrev_b32 v3, 2, v3
    v_add_u32 v3, {RSTD}, v3
    v_mov_b32 v{CIN+8}, 0x3f803f80
    v_mov_b32 v{CIN+9}, 0x3f80
    v_mov_b32 v{CIN+10}, 0x3f800000
    v_cndmask_b32 v{V+4}, 0, v{CIN+8}, vcc
    v_cndmask_b32 v{V+5}, 0, v{CIN+8}, vcc""")
    for i in range(1, 16): a(f"v_mov_b64 {vr(V+8*(i>>1)+4+2*(i&1),2)}, {vr(V+4,2)}")
    a(f"""v_mov_b64 {vr(S1+8,2)}, 0
    v_mov_b64 {vr(S1+10,2)}, 0
    v_lshlrev_b32 v{vKA}, 4, v0
    v_lshrrev_b32 v4, {6 - NKT}, v0
    v_lshlrev_b32 v{vF2}, {FS_+1}, v4
    v_lshlrev_b32 v{vL8}, 3, v0
    s_mul_i32 s{sA}, s{sW}, {OST}
    s_add_u32 s{sA}, s{sA}, {OACC}
    v_add_u32 v{vOZ}, s{sA}, v{vKA}
    v_mov_b64 {vr(S1+12,2)}, 0
    v_mov_b64 {vr(S1+14,2)}, 0
    s_mov_b32 s{sA}, 0x43300000
    v_writelane_b32 v{S1+13}, s{sA}, 16
    s_mov_b32 s{sA}, 0x3b000000""")
    U, R0 = S0, S1
    cOne2, cLo, cHi = CIN + 8, CIN + 9, CIN + 10
    def red32(rs):
        pad = "s_nop 1\n" if len(rs) == 1 else ""
        for mode in ("quad_perm:[1,0,3,2]", "quad_perm:[2,3,0,1]", "row_half_mirror", "row_mirror"):
            a(pad + "\n".join(f"v_add_f32_dpp v{r}, v{r}, v{r} {mode} row_mask:0xf bank_mask:0xf" for r in rs))
        for r in rs: a(f"v_mov_b32 v{r+1}, v{r}")
        a(pad + "\n".join(f"v_permlane16_swap_b32 v{r}, v{r+1}" for r in rs))
        for r in rs: a(f"v_add_f32 v{r}, v{r}, v{r+1}")
    def centre(its):
        for j in range(8):
            for it in its:
                X, R = 8 + 8 * it, R0 + 2 * (it % 3)
                a(f"v_dot2_f32_bf16 v{R+(j&1)}, v{X+j}, v{cOne2}, {'0' if j < 2 else f'v{R+(j&1)}'}")
        a("s_nop 2" if len(its) == 1 else "s_nop 0")
        for it in its: a(f"v_add_f32 v{R0+2*(it%3)}, v{R0+2*(it%3)}, v{R0+2*(it%3)+1}")
        red32([R0 + 2 * (it % 3) for it in its])
        for it in its: a(f"v_mul_f32 v{R0+2*(it%3)}, 0xbb000000, v{R0+2*(it%3)}")
        for it in its:
            X, R = 8 + 8 * it, R0 + 2 * (it % 3)
            a(f"s_xor_b32 s{sD}, s{sC}, {it << 14}\nv_add_u32 v7, s{sD}, v2")
            for j in range(8):
                a(f"v_dot2_f32_bf16 v{U+2*j}, v{X+j}, v{cLo}, v{R}\nv_dot2_f32_bf16 v{U+2*j+1}, v{X+j}, v{cHi}, v{R}")
            for j in range(8):
                a(f"v_cvt_pk_bf16_f32 v{X+j}, v{U+2*j}, v{U+2*j+1}")
                if it: pass
                elif j == 0: a(f"v_pk_mul_f32 {vr(R,2)}, {vr(U,2)}, {vr(U,2)}")
                else: a(f"v_pk_fma_f32 {vr(R,2)}, {vr(U+2*j,2)}, {vr(U+2*j,2)}, {vr(R,2)}")
                if j == 3: a(f"ds_write_b128 v7, {vr(X,4)}")
            a(f"ds_write_b128 v7, {vr(X+4,4)} offset:512")
    def scales(its):
        for it in its: a(f"v_add_f32 v{R0+2*(it%3)}, v{R0+2*(it%3)}, v{R0+2*(it%3)+1}")
        red32([R0 + 2 * (it % 3) for it in its])
        a(f"v_mov_b32 v7, 0x3727c5ac")
        for it in its: a(f"v_fma_f32 v{R0+2*(it%3)}, v{R0+2*(it%3)}, s{sA}, v7")
        for it in its: a(f"v_rsq_f32 v{R0+2*(it%3)}, v{R0+2*(it%3)}")
        for it in its:
            a(f"s_xor_b32 s{sD}, s{sC}, {it << 14}\ns_lshr_b32 s{sD}, s{sD}, 8\nv_add_u32 v{R0+2*(it%3)+1}, s{sD}, v3")
            a(f"ds_write_b32 v{R0+2*(it%3)+1}, v{R0+2*(it%3)}")
    a("s_setprio 2\ns_waitcnt lgkmcnt(0)\ns_barrier")
    TS(8)
    for it in range(1, 4): x_load(it)
    a("s_waitcnt vmcnt(6)")
    TS(1)
    centre([0]); scales([0])
    lds_inc(C_L0, vGC, 7)
    a("s_setprio 1")
    TS(2)
    a("s_waitcnt vmcnt(0)")
    TS(12)
    centre([1, 2, 3])
    lds_inc(C_XN, vGC, vT)
    a("s_setprio 0")
    TS(3)
    a(f"s_mov_b32 s{sD}, 0xffff0000")
    for it in (1, 2, 3):
        X, R = 8 + 8 * it, R0 + 2 * (it % 3)
        for j in range(8): a(f"v_lshlrev_b32 v{U+2*j}, 16, v{X+j}\nv_and_b32 v{U+2*j+1}, s{sD}, v{X+j}")
        a(f"v_pk_mul_f32 {vr(R,2)}, {vr(U,2)}, {vr(U,2)}")
        for j in range(1, 8): a(f"v_pk_fma_f32 {vr(R,2)}, {vr(U+2*j,2)}, {vr(U+2*j,2)}, {vr(R,2)}")
    scales([1, 2, 3])
    lds_inc(C_RS, vGC, vT)
    TS(5)

    def zero_block():
        for j in range(4): a(f"ds_write_b128 v{vOZ}, {vr(ACC,4)} offset:{1024*j}")
        a(f"""s_mov_b64 exec, 0x1ffff
        ds_write_b128 v{vOZ}, {vr(S1+12,4)} offset:{B_L}
        s_mov_b64 exec, -1""")
    lds_spin(C_FL, 1, vGC, vT, sleep=1)
    a(f"""ds_read_b64 v[8:9], v{vGC} offset:{C_EPOCH}
    s_add_u32 s{sKB}, s{sW}, s{sG}
    s_and_b32 s{sKB}, s{sKB}, 7
    s_lshl_b32 s{sKVO}, s{sKB}, 13
    s_add_u32 s{sA}, s{sKVO}, 4096
    s_add_u32 s{sC}, s{sKVO}, {VF}
    s_add_u32 s{sD}, s{sKVO}, {VF+4096}
    s_mov_b32 s{sOOF}, {OACC}
    s_mov_b32 s{sQA}, {QF}
    s_mov_b32 s{sINC}, 0
    s_mov_b32 s46, 0x07060302
    s_and_b32 s{sPB}, s{sW}, 3
    s_lshl_b32 s{sPB}, s{sPB}, 1
    s_add_u32 s{sPB}, s{sPB}, 4
    s_waitcnt lgkmcnt(0)
    v_readfirstlane_b32 s{sEP}, v8
    v_readfirstlane_b32 s{sEP+1}, v9
    s_cmp_lg_u32 s{sW}, 0
    s_cbranch_scc1 L_nokt
    s_lshl_b32 s{sB}, s{sRB}, {FS_+3}
    s_add_u32 s{sB}, s{sB}, {FLG_KV}""")
    a(f"s_sleep {opt.get('kt0', 4)}")
    flag_poll(vF2, sB, 12, sleep=2)
    a(f"""s_lshl_b32 s{sB}, s{sRB}, 11
    v_add_u32 v12, {KT}, v{vKA}
    buffer_load_dwordx4 {vr(K,4)}, v{vKA}, {sr(rWS,4)}, s{sB} offen sc1""")
    if NKT == 2: a(f"buffer_load_dwordx4 {vr(K+8,4)}, v{vKA}, {sr(rWS,4)}, s{sB} offen offset:1024 sc1")
    lds_inc(C_FL, vGC, vT)
    a(f"""s_waitcnt vmcnt(0)
    ds_write_b128 v12, {vr(K,4)}""")
    if NKT == 2: a(f"ds_write_b128 v12, {vr(K+8,4)} offset:1024")
    lds_inc(C_RS, vGC, vT)
    TS(11)
    a.label("L_nokt")
    if opt.get("gate", 1) == 1: lds_spin(C_FL, 2, vGC, vT, sleep=1)
    elif opt.get("g0"): a(f"s_sleep {opt['g0']}")
    a(f"""s_lshl_b32 s{sB}, s{sKB}, {FS_+5}
    s_add_u32 s{sB}, s{sB}, {FLG_KV}""")
    if opt.get("pprio"): a("s_setprio 3")
    flag_poll(vFL, sB, 12, sleep=opt.get("kvsleep", 4))
    if opt.get("pprio"): a("s_setprio 0")
    if opt.get("gate", 1) == 2: lds_spin(C_FL, 2, vGC, vT, sleep=0)
    if opt.get("wgate"):
        lds_inc(C_KT, vGC, vT)
        lds_spin(C_KT, 8, vGC, vT, sleep=0)
    TS(4)
    def ldK(t): a(f"buffer_load_dwordx4 {vr(K+4*t,4)}, v{vKA}, {sr(rWS,4)}, s{sKVO if t < 4 else sA} offen offset:{(t&3)*1024} sc1")
    def ldV(t): a(f"buffer_load_dwordx4 {vr(V+8*t,4)}, v{vKA}, {sr(rWS,4)}, s{sC if t < 4 else sD} offen offset:{(t&3)*1024} sc1")
    ldK(0)
    for t in range(7):
        ldK(t + 1); ldV(t)
    ldV(7)
    lds_inc(C_KV, vGC, vT)
    TS(10)
    lds_spin(C_QREADY, 4, vGC, vT, sleep=0)
    TS(6)
    if ts: a(f"s_memtime {sr(TS0+26,2)}")
    def load_q():
        x = [f"v_lshl_add_u32 v{vAD}, v{vL8}, 1, s{sQA}", f"v_and_b32 v{vT}, 0xff, v{vL8}",
             f"ds_read_b128 {vr(Q,4)}, v{vAD}", f"v_lshl_add_u32 v{vT}, v{vT}, 1, s{sQA}", f"s_add_u32 s{sQA}, s{sQA}, {QST}"]
        if BC:
            return [f"v_lshl_add_u32 v{vAD}, v{vL8}, 1, s{sQA}", f"v_add_u32 v{vT}, s{sQA}, v{vL8}", f"ds_read_b128 {vr(Q,4)}, v{vAD}",
                    f"ds_read_b32 v{vT}, v{vT} offset:1024", f"s_add_u32 s{sQA}, s{sQA}, {QST}", f"v_mov_b32 v{vT+1}, 1.0", "", "", ""]
        return x + [f"ds_read_b128 {vr(CIN+4*j,4)}, v{vT} offset:1024" for j in range(4)]
    def bcast(): return f"v_mfma_f32_32x32x2_f32 {vr(CIN,16)}, v{vT+1}, v{vT}, 0"
    def QK(t, S): return f"{MF32} {vr(S,16)}, {vr(K+4*t,4)}, {vr(Q,4)}, {vr(CIN,16)}"
    def PV(t, hf, S, zero=False): return f"{MF32} {vr(ACC,16)}, {vr(V+8*t+4*hf,4)}, {vr(S+8*hf,4)}, {'0' if zero else vr(ACC,16)}"
    def flush_ops():
        x = [[f"v_add_u32 v{vAD}, s{sOOF}, v{vL8}", f"v_cvt_f64_f32 {vr(vT,2)}, v{ACC}"]]
        for j in range(8): x.append([f"v_cvt_f64_f32 {vr(ACC+2*j,2)}, v{ACC+8+j}", f"ds_add_f64 v{vAD}, {vr(ACC+2*j,2)} offset:{512*j}"])
        x.append([f"v_writelane_b32 v{vT+1}, s{sINC}, 32", "s_mov_b32 exec_hi, 1", f"ds_add_rtn_f64 {vr(vT,2)}, v{vAD}, {vr(vT,2)} offset:{B_L}", "s_mov_b32 exec_hi, -1"])
        return x
    def vswap(t):
        for j in range(4): a(f"v_permlane16_swap_b32 v{V+8*t+4+j}, v{V+8*t+j}")
    a(f"v_mov_b32 v{S1}, v{vGC}\nv_mov_b32 v{S1+1}, v{vOZ}")
    vOZ = S1 + 1
    for l in load_q(): a(l)
    zero_block()
    lds_inc(C_ABAR, S1, S1 + 2)
    NV0 = opt.get("nv0", 6)
    a(f"s_setprio 1\ns_mov_b64 vcc, -1\ns_waitcnt vmcnt(14) lgkmcnt(6)")
    if BC: a(bcast())
    a(QK(0, S0))
    for t in range(NV0):
        a(f"s_waitcnt vmcnt({12 - 2 * t})")
        vswap(t)
    a(".p2align 6")
    a.label("L_atop")
    SS = [S0, S1]
    std = "e0 e1 P1 e2 e3 c0 e4 e5 c1 QK e6 e7 c2 e8 c3 e9 e10 P0 e11 c4 e12 e13 c5 e14 e15 c6 c7"
    orders = {0: "e0 e1 P1 e2 e3 c0 e4 e5 c1 QK e6 e7 c2 e8 c3 e9 e10 F e11 F c4 F e12 F e13 F c5 F e14 F e15 F c6 F c7 F P0",
              1: "e0 e1 e2 e3 c0 P1 e4 e5 c1 e6 e7 QK c2 e8 c3 e9 e10 e11 P0 c4 e12 e13 c5 e14 e15 c6 c7 R",
              4: std + " U",
              6: "e0 e1 P1 e2 e3 c0 e4 e5 c1 QK e6 e7 c2 e8 c3 e9 e10 P0 L L L e11 L L c4 L e12 L e13 L c5 L e14 e15 c6 c7",
              7: "e0 e1 P1 e2 e3 c0 e4 e5 c1 G QK e6 e7 c2 e8 c3 e9 e10 P0 e11 X c4 e12 e13 c5 e14 e15 c6 c7"}
    if BC:
        orders[6] = "e0 e1 P1 e2 e3 c0 e4 e5 c1 QK e6 L L L L L L e7 c2 e8 c3 e9 e10 P0 e11 c4 e12 e13 c5 G B e14 e15 c6 c7"
        orders[7] = "e0 e1 e2 e3 c0 P1 e4 e5 c1 e6 e7 QK c2 e8 c3 e9 e10 e11 P0 X c4 e12 e13 c5 e14 e15 c6 c7"
    if opt.get("lq") == 1:
        orders[6] = "e0 e1 P1 e2 e3 c0 L L e4 e5 c1 QK e6 L L L e7 L c2 L e8 L c3 L e9 e10 P0 e11 c4 e12 e13 c5 e14 e15 c6 c7"
    if opt.get("lq") == 2:
        orders[6] = "e0 e1 P1 e2 e3 c0 L L e4 e5 c1 QK e6 L L L e7 L c2 L e8 L c3 L e9 e10 P0 e11 c4 e12 e13 c5 e14 e15 c6 c7"
        orders[7] = "e0 e1 e2 e3 c0 P1 e4 e5 c1 e6 e7 G QK c2 e8 c3 e9 e10 e11 P0 X c4 e12 e13 c5 e14 e15 c6 c7"
    if opt.get("lq", 3) == 3:
        orders[6] = "e0 e1 P1 e2 e3 c0 L L e4 e5 c1 QK e6 L L L e7 L c2 e8 c3 e9 e10 P0 e11 c4 e12 e13 c5 e14 e15 c6 c7"
        orders[7] = "e0 e1 P1 e2 G M e3 c0 e4 e5 c1 QK e6 e7 c2 e8 c3 e9 e10 P0 e11 X c4 e12 e13 c5 e14 e15 c6 c7"
    if opt.get("rl"):
        orders[1] = orders[1].replace(" R", "")
        orders[2] = std + " R"
    if opt.get("ord") == 1:
        mv = lambda o: o.replace("P0 ", "").replace("c6 c7", "c6 c7 P0")
        std = mv(std)
        for t in (4, 6, 7): orders[t] = mv(orders[t])
        orders[1] = "e0 e1 P1 e2 e3 c0 e4 e5 c1 QK e6 e7 c2 e8 c3 e9 e10 e11 c4 e12 e13 c5 e14 e15 c6 c7 P0 R"
    if opt.get("ord") == 2:
        mv = lambda o: o.replace("P0 ", "").replace("e15 c6 c7", "P0 e15 c6 c7")
        std = mv(std)
        for t in (4, 6, 7): orders[t] = mv(orders[t])
    if opt.get("ord") == 3:
        std = "e0 e1 P1 e2 e3 e4 e5 QK e6 e7 e8 c0 c1 c2 c3 e9 e10 P0 e11 e12 e13 e14 e15 c4 c5 c6 c7"
        orders[4] = std + " U"
    orders[NV0] = orders.get(NV0, std).replace("P0", "W P0")
    for t in range(8):
        cur, nxt = SS[t & 1], SS[(t + 1) & 1]
        fl, lq = flush_ops(), load_q()
        for tok in orders.get(t, std).split():
            if tok[0] == "e": a(e(cur, int(tok[1:])))
            elif tok[0] == "c" and opt.get("perm"):
                j = int(tok[1:]); a(f"v_perm_b32 v{cur + (j & 3) + 8 * (j >> 2)}, v{cur+2*j+1}, v{cur+2*j}, s46")
            elif tok[0] == "c": a(c(cur, int(tok[1:])))
            elif tok == "P1": a(PV((t - 1) & 7, 1, nxt))
            elif tok == "P0": a(PV(t, 0, cur, zero=(t == 0)))
            elif tok == "QK": a(QK((t + 1) & 7, nxt))
            elif tok == "W":
                a(f"s_cbranch_vccnz L_vs0")
                a.label(f"L_vr0")
            elif tok == "G": a("s_waitcnt lgkmcnt(0)")
            elif tok == "B": a(bcast())
            elif tok == "M":
                for j in range(2, 8): a(f"v_mov_b64 {vr(CIN+2*j,2)}, {vr(CIN,2)}")
            elif tok == "F": a("\n".join(fl.pop(0)))
            elif tok == "L": a(lq.pop(0))
            elif tok == "R":
                a(f"""s_waitcnt lgkmcnt(0)
                v_readlane_b32 s{sAH}, v{vT}, 32
                s_setprio 0
                s_bitcmp1_b32 s{sAH}, s{sPB}
                s_cbranch_scc0 L_yield
                s_setprio 2""")
                a.label("L_yield")
            elif tok == "U":
                a(f"s_cbranch_scc1 L_keep\ns_setprio 1")
                a.label("L_keep")
            elif tok == "X":
                a(f"s_add_u32 s{sOOF}, s{sOOF}, {OST}")
                if opt.get("qts"):
                    a("s_memtime s[96:97]\ns_waitcnt lgkmcnt(0)")
                    for i in range(1, 8): a(f"s_mov_b32 s{TS0+2*i}, s{TS0+2*i+2}")
                    a(f"s_sub_u32 s{TS0+16}, s96, s{TS0+26}")
                a(f"s_cmp_lt_u32 s{sOOF}, {OACC + 7 * OST}")
    a("s_cbranch_scc1 L_atop")
    if not opt.get("qts"): TS(7)
    a("s_setprio 2")
    a(PV(7, 1, S1))
    a("s_nop 11")
    for x in flush_ops(): a("\n".join(x))
    if opt.get("delay_f1", 0) > 8:
        a(f"v_mov_b32 v4, {GC}")
        lds_inc(C_ABAR, 4, 5)
    if ts:
        a(f"s_memtime {sr(TS0+28,2)}\ns_waitcnt lgkmcnt(0)\ns_sub_u32 s{TS0+28}, s{TS0+28}, s{TS0+26}")
    TS(9)
    ts_dump()
    a("s_endpgm")
    a.label("L_vs0")
    a("s_waitcnt vmcnt(0)")
    if TC:
        a(f"""s_cmp_eq_u32 s{sW}, 7
        s_cbranch_scc1 L_notouch
        s_cmp_eq_u32 s{sW}, 0
        s_cselect_b32 s{rT}, s{pW1}, s{pW2}
        s_cselect_b32 s{rT+1}, s{pW1+1}, s{pW2+1}
        s_cmp_eq_u32 s{sW}, 2
        s_cselect_b32 s{rT}, s{pWO}, s{rT}
        s_cselect_b32 s{rT+1}, s{pWO+1}, s{rT+1}
        s_mov_b32 s{sF}, 5504
        s_cselect_b32 s{sF}, 2048, s{sF}
        s_mul_i32 s{sA}, s2, s{sF}
        s_cmp_lt_u32 s{sW}, 3
        s_cbranch_scc1 L_touch
        s_mov_b32 s{rT}, s{pWS}
        s_mov_b32 s{rT+1}, s{pWS+1}
        s_lshl_b32 s{sA}, s{sRB}, 4
        s_add_u32 s{sA}, s{sA}, s{sG}
        s_lshl_b32 s{sA}, s{sA}, 12
        s_add_u32 s{sA}, s{sA}, {OF}
        s_lshl_b32 s{sB}, s{sRB}, 3
        s_add_u32 s{sB}, s{sB}, s{sG}
        s_lshl_b32 s{sB}, s{sB}, 7
        s_add_u32 s{sB}, s{sB}, {FLG_H}
        s_cmp_lt_u32 s{sW}, 5
        s_cselect_b32 s{sA}, s{sA}, s{sB}
        s_cselect_b32 s{sF}, 4096, 64
        s_and_b32 s{sB}, s{sW}, 1
        s_lshl_b32 s{sB}, s{sB}, 15
        s_add_u32 s{sA}, s{sA}, s{sB}""")
        a.label("L_touch")
        a(f"""s_add_u32 s{rT+2}, s{sA}, s{sF}
        s_mov_b32 s{rT+3}, 0x20000
        s_mov_b32 m0, {GC + 64}
        v_lshlrev_b32 v{vT}, 4, v{vL8}
        s_mov_b32 exec_hi, 0x7ff
        buffer_load_dword v{vT}, {sr(rT,4)}, s{sA} offen lds
        s_mov_b32 exec_hi, -1""")
        a.label("L_notouch")
    for t in range(NV0, 8): vswap(t)
    a(f"v_mov_b32 v{vAD}, {GC}")
    lds_spin(C_ABAR, 8, vAD, vT, sleep=0)
    a(f"""s_sub_u32 s{sOOF}, s{sOOF}, {OST}
    s_add_u32 s{sINC}, s{sPB}, 1023
    s_lshl_b32 s{sINC}, s{sINC}, 20
    s_sub_u32 s{sA}, 20, s{sPB}
    s_lshl_b32 s{sA}, 1, s{sA}
    s_add_u32 s{sINC}, s{sINC}, s{sA}
    s_mov_b64 vcc, 0
    s_branch L_vr0""")

    a(".p2align 6")
    a.label("L_gwave")
    role[0] = "G"
    gGC, gL16, gSW, gTR, gH, gR = 1, 2, 3, 4, 5, 6
    a(f"""s_setprio 3
    s_sub_u32 s{sI}, s{sW}, 8
    v_lshlrev_b32 v{gL16}, 4, v0
    v_lshlrev_b32 v10, {PFS}, v0
    s_sub_u32 s{sE}, s{sI}, 1
    s_waitcnt lgkmcnt(0)
    s_cmp_lg_u32 s{sI}, 0
    s_cbranch_scc1 L_g123""")
    a(f"""s_cmp_eq_u32 s{sCH}, 0
    s_cselect_b32 s{rW}, s{pWK}, s{pWV}
    s_cselect_b32 s{rW+1}, s{pWK+1}, s{pWV+1}
    s_mov_b32 s{rW+2}, 16384
    s_mov_b32 s{rW+3}, 0x20000""")
    for q in range(4):
        a(f"s_mov_b32 m0, {WKV + q * 4096}\ns_mov_b32 s{sA}, {q*4096}")
        for j in range(4): a(f"buffer_load_dwordx4 v{gL16}, {sr(rW,4)}, s{sA} offen offset:{j*1024} lds")
    a("s_branch L_gcom")
    a.label("L_g123")
    srd(rW, pWQ, 0x80000)
    if TQ == 1:
        a(f"s_cmp_eq_u32 s{sI}, 3\ns_cbranch_scc1 L_gcom")
        l2_prefetch(rW, 0x80000, 10, 6, sE, 2)
    if TQ in (2, 3):
        a(f"s_cmp_lg_u32 s{sI}, 1\ns_cbranch_scc1 L_gcom")
        a(f"s_mov_b64 exec, 0xffff\ns_lshl_b32 s{sF}, s2, 11\nbuffer_load_dword v6, v10, {sr(rW,4)}, s{sF} offen\ns_mov_b64 exec, -1")
    a.label("L_gcom")
    srd(rWS, pWS, WS_BYTES)
    srd(rT, pDBG, 256)
    a(f"""s_lshr_b32 s{sRT}, s{sI}, 1
    s_and_b32 s{sCT}, s{sI}, 1
    v_lshrrev_b32 v7, 3, v0
    v_lshrrev_b32 v8, 2, v0
    v_and_b32 v8, 4, v8
    v_and_b32 v9, 7, v0
    v_xor_b32 v8, v8, v9
    v_lshlrev_b32 v8, 4, v8
    v_lshl_add_u32 v{gSW}, v7, 10, v8
    v_mov_b32 v{gGC}, {GC}
    v_lshrrev_b32 v{gH}, 5, v0
    v_and_b32 v7, 3, v0
    v_and_b32 v8, 16, v0
    v_lshlrev_b32 v8, 1, v8
    v_lshl_add_u32 v{gTR}, v7, 3, v8
    s_cmp_eq_u32 s{sI}, 0
    s_cbranch_scc1 L_g0""")
    a(f"""s_lshl_b32 s{sB}, s{sE}, 13
    s_lshl_b32 s{sC}, s{sG}, 7
    s_add_u32 s{sB}, s{sB}, s{sC}
    s_lshl_b32 s{sA}, s{sE}, 10
    s_add_u32 s{sA}, s{sA}, {RING}
    s_setprio 0
    s_barrier
    s_cmp_lg_u32 s{sI}, 3
    s_cbranch_scc1 L_wqpre
    s_setprio 3
    s_mov_b32 s{sCAP}, 0""")
    a.label("L_epoch")
    a(f"""buffer_load_dwordx2 v[14:15], off, {sr(rT,4)}, 0 sc1
    s_add_u32 s{sCAP}, s{sCAP}, 1
    s_cmp_gt_u32 s{sCAP}, {SPIN_CAP}
    s_cbranch_scc1 L_gb2
    s_waitcnt vmcnt(0)
    v_readfirstlane_b32 s{sEP+1}, v15
    s_nop 0
    s_cmp_eq_u32 s{sEP+1}, 0
    s_cbranch_scc1 L_epoch
    ds_write_b64 v{gGC}, v[14:15] offset:{C_EPOCH}""")
    TS(1)
    if opt.get("z_t1"):
        srd(rW, pW1, 512 * W1P)
        a(f"s_mov_b32 exec_hi, 0x7ff\ns_mul_i32 s{sF}, s2, 5504\nbuffer_load_dword v6, v10, {sr(rW,4)}, s{sF} offen\ns_mov_b64 exec, -1")
    srd(rW, pB1, W1P)
    a(f"buffer_load_dword v6, v10, {sr(rW,4)}, 0 offen")
    srd(rW, pB2, 1024)
    a(f"buffer_load_dword v6, v10, {sr(rW,4)}, 0 offen\ns_branch L_gb2")
    a.label("L_wqpre")
    if TQ in (3, 4):
        if opt.get("tqs"): a(f"s_sleep {opt['tqs']}")
        l2_prefetch(rW, 0x80000, 10, 6, sE, 2)
        if opt.get("tqw"): a("s_waitcnt vmcnt(0)")
    a.label("L_wqloop")
    a(f"""s_mov_b32 m0, s{sA}
    s_add_u32 s{sA}, s{sA}, 2048
    buffer_load_dwordx4 v{gSW}, {sr(rW,4)}, s{sB} offen lds
    s_add_u32 s{sB}, s{sB}, 16384
    s_waitcnt vmcnt({opt.get("wqd", 10)})
    s_cmp_lt_u32 s{sA}, {RING + 65536}
    s_cbranch_scc1 L_wqloop
    s_setprio 3
    s_waitcnt vmcnt(16)""")
    lds_inc(C_WQ, gGC, 7)
    a("s_branch L_gb2")
    a.label("L_g0")
    WF, XF, DD = 32, 96, 160
    a(f"""s_cmp_lg_u32 s2, 0
    s_cbranch_scc1 L_noep
    v_mov_b32 v10, s{sM}
    v_mov_b32 v11, s{sM+1}
    v_or_b32 v11, 0x80000000, v11
    v_mov_b64 v[12:13], 0
    s_mov_b64 exec, 1
    buffer_atomic_cmpswap_x2 v[10:13], off, {sr(rT,4)}, 0 sc1
    s_mov_b64 exec, -1
    s_nop 0""")
    a.label("L_noep")
    if opt.get("prewr"):
        a(f"""s_lshl_b32 s{sA}, s{sRB}, 3
        s_add_u32 s{sA}, s{sA}, s{sG}
        s_lshl_b32 s{sA}, s{sA}, 7
        s_add_u32 s{sA}, s{sA}, {FLG_KV}
        v_mov_b64 v[16:17], 0
        v_mov_b64 v[18:19], 0
        s_mov_b64 exec, 0xff
        buffer_store_dwordx4 v[16:19], v{gL16}, {sr(rWS,4)}, s{sA} offen sc1
        s_mov_b64 exec, -1""")
    a("s_barrier")
    a(f"""v_and_b32 v7, 15, v0
    v_lshrrev_b32 v8, 4, v0
    v_lshlrev_b32 v9, 3, v7
    v_lshl_add_u32 v9, v8, 8, v9
    v_add_u32 v9, {WKV}, v9
    s_lshl_b32 s{sA}, s{sKG}, 14
    v_xor_b32 v10, v7, v8
    v_lshlrev_b32 v10, 4, v10
    v_lshl_add_u32 v10, v7, 10, v10
    v_add_u32 v10, s{sA}, v10
    v_xor_b32 v11, 64, v10
    v_xor_b32 v12, 0x80, v10
    v_xor_b32 v13, 0xc0, v10
    s_lshl_b32 s{sA}, s{sKG}, 6
    s_add_u32 s{sA}, s{sA}, {RSTD}
    v_lshl_add_u32 v20, v7, 2, s{sA}
    v_lshl_add_u32 v21, v8, 4, s{sA}
    s_cmp_eq_u32 s{sCH}, 0
    s_cselect_b32 s{sD}, {KF}, {VF}
    v_and_b32 v16, 1, v8
    v_lshlrev_b32 v16, 9, v16
    v_lshrrev_b32 v17, 1, v8
    v_lshl_add_u32 v16, v17, 3, v16
    v_lshl_add_u32 v16, v7, 4, v16
    s_xor_b32 s{sA}, s{sKG}, s{sCH}
    s_and_b32 s{sA}, s{sA}, 1
    s_lshl_b32 s{sA}, s{sA}, 8
    s_add_u32 s{sD}, s{sD}, s{sA}
    s_lshl_b32 s{sA}, s{sRB}, 1
    s_lshr_b32 s{sB}, s{sKG}, 1
    s_add_u32 s{sA}, s{sA}, s{sB}
    s_lshl_b32 s{sA}, s{sA}, 10
    s_add_u32 s{sD}, s{sD}, s{sA}
    s_lshl_b32 s{sA}, s{sRB}, 3
    s_add_u32 s{sA}, s{sA}, s{sG}
    s_lshl_b32 s{sA}, s{sA}, {FS_}
    s_add_u32 s{sA}, s{sA}, {FLG_KV}
    s_waitcnt vmcnt(0)""")
    for ks in range(16):
        a(f"ds_read_b64_tr_b16 {vr(WF+4*ks,2)}, v9 offset:{ks*1024}\nds_read_b64_tr_b16 {vr(WF+4*ks+2,2)}, v9 offset:{ks*1024+128}")
    TS(1)
    lds_spin(C_L0, 8, gGC, 14, sleep=0)
    TS(2)
    for ks in range(16):
        a(f"ds_read_b128 {vr(XF+4*ks,4)}, v{10+(ks&3)} offset:{(ks>>2)*256}")
    a(f"""s_cmp_eq_u32 s{sCH}, 0
    s_cbranch_scc0 L_vchain""")
    for sw in (False, True):
        if sw: a.label("L_vchain")
        for ks in range(16):
            A_, B_ = (XF, WF) if sw else (WF, XF)
            if ks % 4 == 0: a(f"s_waitcnt lgkmcnt({12 - ks})")
            if ks == 12: a(f"ds_read_b128 v[24:27], v21" if sw else "ds_read_b32 v24, v20")
            a(f"v_mfma_f32_16x16x32_bf16 {vr(DD,4)}, {vr(A_+4*ks,4)}, {vr(B_+4*ks,4)}, {'0' if ks == 0 else vr(DD,4)}")
        if not sw: a("s_waitcnt lgkmcnt(0)\nv_mov_b32 v25, v24\nv_mov_b64 v[26:27], v[24:25]\ns_branch L_kvst")
    a("s_waitcnt lgkmcnt(0)\ns_nop 2")
    a.label("L_kvst")
    a(f"""s_nop 3
    v_pk_mul_f32 {vr(DD,2)}, {vr(DD,2)}, v[24:25]
    v_pk_mul_f32 {vr(DD+2,2)}, {vr(DD+2,2)}, v[26:27]
    v_cvt_pk_bf16_f32 v18, v{DD}, v{DD+1}
    v_cvt_pk_bf16_f32 v19, v{DD+2}, v{DD+3}
    buffer_store_dwordx2 v[18:19], v16, {sr(rWS,4)}, s{sD} offen sc1""")
    TS(13)
    lds_spin(C_EPOCH + 4, 1, gGC, 14, sleep=0)
    a(f"""ds_read_b64 v[20:21], v{gGC} offset:{C_EPOCH}
    s_getreg_b32 s{sD}, hwreg(HW_REG_XCC_ID)
    v_mov_b32 v22, s{sD}
    v_mov_b32 v23, 0
    s_mov_b64 exec, 1
    s_waitcnt vmcnt(0) lgkmcnt(0)
    buffer_store_dwordx4 v[20:23], off, {sr(rWS,4)}, s{sA} sc1
    s_mov_b64 exec, -1""")
    lds_inc(C_FL, gGC, 14)
    TS(3)
    a.label("L_gb2")
    QA, QW, QX = 8, 24, 152
    a(f"""v_bfe_u32 v9, v0, 2, 2
    v_lshrrev_b32 v8, 1, v9
    v_xor_b32 v8, s{sCT}, v8
    v_lshl_add_u32 v8, v8, 6, v{gTR}
    v_lshl_add_u32 v8, v9, 7, v8
    v_lshl_add_u32 v8, v{gH}, 10, v8
    v_add_u32 v8, {RING}, v8""")
    a(f"v_mov_b32 v{gTR}, v8")
    kord = [aa + 8 * (2 * hb + b) for hb in range(2) for aa in range(8) for b in range(2)]
    def w_pre(hb):
        for n in range(16 * hb, 16 * hb + 16):
            ks = kord[n]
            a(f"ds_read_b64_tr_b16 {vr(QW+4*n,2)}, v{gTR} offset:{ks*2048}\nds_read_b64_tr_b16 {vr(QW+4*n+2,2)}, v{gTR} offset:{ks*2048+512}")
    a(f"""v_and_b32 v7, 31, v0
    v_and_b32 v9, 15, v0
    v_xor_b32 v9, v9, v{gH}
    v_lshlrev_b32 v9, 4, v9
    v_lshl_add_u32 v7, v7, 10, v9
    s_lshl_b32 s{sC}, s{sRT}, 15
    v_add_u32 v7, s{sC}, v7""")
    sRNG = 35
    sT1, sT2, sNG = 0, 1, sE
    sN, sSO = sA, sB
    srd(rW, pW1, 512 * W1P)
    a(f"""s_lshl_b32 s{sT1}, s{sG}, 2
    s_add_u32 s{sT1}, s{sT1}, s{sI}
    s_sub_u32 s{sT2}, 1, s{sRT}
    s_lshl_b32 s{sT2}, s{sT2}, 3
    s_add_u32 s{sT2}, s{sT2}, s{sG}
    s_add_u32 s{sT2}, s{sT2}, 32
    s_cmp_lt_u32 s{sT2}, 43
    s_cselect_b32 s{sNG}, 12, 8
    s_mul_i32 s{sRNG}, s{sI}, {RSZ}
    s_add_u32 s{sRNG}, s{sRNG}, {RING}
    s_lshl_b32 s{sSO}, s{sT1}, 6""")
    lds_spin(C_WQ, 2, gGC, 9, sleep=1)
    w_pre(0)
    a(f"""s_sub_u32 s{sD}, s{sI}, 1
    s_cmp_ge_u32 s{sD}, 2
    s_cbranch_scc1 L_wq2
    s_waitcnt vmcnt(0)""")
    lds_inc(C_WQ2, gGC, 9)
    a.label("L_wq2")
    lds_spin(C_WQ2, 2, gGC, 9, sleep=1)
    w_pre(1)
    TS(12)
    lds_spin(C_XN, 8, gGC, 9, sleep=1)
    TS(4)
    land = {}
    cur_a = [0]
    def xread(n, dst):
        aa, b = kord[n] & 7, kord[n] >> 3
        if aa != cur_a[0]: a(f"v_xor_b32 v7, {((aa ^ cur_a[0]) * 32)}, v7")
        cur_a[0] = aa
        a(f"ds_read_b128 {vr(dst,4)}, v7 offset:{b*256}")
        land[n] = dst
    ordr = sorted(range(32), key=lambda n: (kord[n] & 7, kord[n] >> 3))
    for i_ in range(4): xread(ordr[i_], QX + 4 * i_)
    nxt_rd = 4
    for i_, n in enumerate(ordr):
        a(f"s_waitcnt lgkmcnt({nxt_rd - i_ - 1})")
        a(f"{MF32} {vr(QA,16)}, {vr(QW+4*n,4)}, {vr(land[n],4)}, {'0' if i_ == 0 else vr(QA,16)}")
        if nxt_rd < 32: xread(ordr[nxt_rd], land[n]); nxt_rd += 1
        if i_ < 5 and nxt_rd < 32: xread(ordr[nxt_rd], QW + 4 * n); nxt_rd += 1
    gRS = 166
    if opt.get("pro"): TS(9)
    lds_spin(C_RS, 9, gGC, QX, sleep=0)
    T0 = QX
    a(f"""v_and_b32 v7, 31, v0
    v_lshlrev_b32 v{T0}, 2, v7
    v_add_u32 v{T0}, {RSTD}, v{T0}
    v_add_u32 v{T0+1}, {KT}, v{gL16}
    ds_read_b32 v{gRS}, v{T0}
    ds_read_b32 v{gRS+1}, v{T0} offset:128
    ds_read_b64 {vr(T0+2,2)}, v{gGC} offset:{C_EPOCH}
    ds_read_b128 {vr(T0+4,4)}, v{T0+1}
    ds_read_b128 v[100:103], v{T0+1} offset:{1024 * (NKT - 1)}
    s_lshl_b32 s{sA}, s{sCT}, 2
    s_add_u32 s{sA}, s{sA}, s{sRT}
    s_mul_i32 s{sA}, s{sA}, {QST}
    s_add_u32 s{sA}, s{sA}, {QF}
    v_add_u32 v{T0+10}, s{sA}, v{gL16}
    v_lshl_add_u32 v{T0+11}, {"v0, 3" if BC else "v7, 4"}, s{sA}
    s_cmp_eq_u32 s{sRT}, 0
    s_cselect_b64 vcc, -1, 0
    s_waitcnt lgkmcnt(0)
    v_readfirstlane_b32 s{sEP}, v{T0+2}
    v_cndmask_b32 v{T0+8}, v{gRS+1}, v{gRS}, vcc
    v_readfirstlane_b32 s{sEP+1}, v{T0+3}
    v_mul_f32 v{T0+8}, 0x3eb8aa3b, v{T0+8}""")
    if opt.get("pro"): TS(10)
    for hd in range(2):
        for j in range(4 * hd, 4 * hd + 4): a(f"v_pk_mul_f32 {vr(QA+2*j,2)}, {vr(QA+2*j,2)}, {vr(T0+8,2)} op_sel_hi:[1,0]")
        for j in range(4 * hd, 4 * hd + 4): a(f"v_cvt_pk_bf16_f32 v{QA+j}, v{QA+2*j}, v{QA+2*j+1}")
        a(f"ds_write_b128 v{T0+10}, {vr(QA+4*hd,4)} offset:{2*QST*hd}\ns_nop 0")
        a(f"{MF32} {vr(24+16*hd,16)}, {vr(T0+4,4)}, {vr(QA+4*hd,4)}, 0")
        if NKT == 2: a(f"{MF32} {vr(68+16*hd,16)}, v[100:103], {vr(QA+4*hd,4)}, 0")
    a("s_nop 1")
    def max2(S, d):
        maxtree(S, d)
        if NKT == 2:
            for j in range(0, 16, 2): a(f"v_max3_f32 v{d}, v{d}, v{S+44+j}, v{S+45+j}")
    max2(24, 56)
    a("v_mov_b32 v57, v56\ns_nop 1\nv_permlane32_swap_b32 v56, v57")
    max2(40, 58)
    if BC:
        a(f"""v_mov_b32 v59, v58
        v_max_f32 v56, v56, v57
        v_mov_b32 v60, {-OFFS/2}
        v_permlane32_swap_b32 v58, v59
        v_fma_f32 v56, v56, -0.5, v60
        v_max_f32 v58, v58, v59
        ds_write_b32 v{T0+11}, v56 offset:1024
        v_fma_f32 v58, v58, -0.5, v60
        ds_write_b32 v{T0+11}, v58 offset:{2*QST+1024}""")
    else:
        a(f"""v_mov_b32 v59, v58
        v_max_f32 v56, v56, v57
        v_sub_f32 v60, {-OFFS}, v56
        v_permlane32_swap_b32 v58, v59
        v_sub_f32 v61, {-OFFS}, v56
        v_max_f32 v58, v58, v59
        v_mov_b64 v[62:63], v[60:61]
        v_sub_f32 v64, {-OFFS}, v58
        v_sub_f32 v65, {-OFFS}, v58
        ds_write_b128 v{T0+11}, v[60:63] offset:1024
        v_mov_b64 v[66:67], v[64:65]
        ds_write_b128 v{T0+11}, v[64:67] offset:{2*QST+1024}""")
    lds_inc(C_QREADY, gGC, 26)
    TS(5)
    AC = [136, 104, 120, 88]
    XB = 136
    vB1, gXA, gXT, gWA, gWB, gV1 = 8, 16, 17, 18, 19, 20
    a(f"""v_lshrrev_b32 v44, 2, v0
    v_and_b32 v45, 3, v0
    v_mul_u32_u24 v44, {W1P}, v44
    v_lshl_add_u32 v{gV1}, v45, 4, v44
    v_add_u32 v{gV1+1}, {128*W1P-1024}, v{gV1}
    v_add_u32 v{gV1+2}, {2*(128*W1P-1024)}, v{gV1}
    v_add_u32 v{gV1+3}, {3*(128*W1P-1024)}, v{gV1}
    v_and_b32 v44, 16, v0
    v_lshlrev_b32 v44, 1, v44
    v_lshl_add_u32 v{gTR}, v45, 3, v44
    s_waitcnt vmcnt(0)""")
    def w1_dma1(b): return f"buffer_load_dwordx4 v{gV1+b}, {sr(rW,4)}, s{sSO} offen offset:{b*1024} lds"
    a(f"""v_lshlrev_b32 v40, 1, v7
    v_and_b32 v41, 7, v0
    v_lshlrev_b32 v41, {FS_}, v41
    v_and_b32 v44, 15, v0
    v_xor_b32 v44, v44, v{gH}
    v_lshlrev_b32 v44, 4, v44
    v_lshl_add_u32 v{gXA}, v7, 10, v44
    v_bfe_u32 v44, v0, 2, 2
    v_lshl_add_u32 v{gWB}, v44, 6, v{gTR}
    v_lshl_add_u32 v{gWB}, v{gH}, 9, v{gWB}
    v_add_u32 v{gWB}, s{sRNG}, v{gWB}""")
    a(f"""v_rcp_f32 v44, v{gRS}
    v_rcp_f32 v45, v{gRS+1}
    v_sub_u32 v48, v{gH}, 1
    s_mov_b32 s{sD}, 0xffff0000
    v_and_b32 v46, s{sD}, v44
    v_and_b32 v47, s{sD}, v45
    v_sub_f32 v44, v44, v46
    v_sub_f32 v45, v45, v47
    v_cvt_pk_bf16_f32 v12, v46, v44
    v_cvt_pk_bf16_f32 v14, v47, v45
    v_and_b32 v12, v48, v12
    v_and_b32 v14, v48, v14
    v_mov_b32 v9, 0
    v_mov_b64 v[10:11], 0
    v_mov_b32 v13, 0""")
    H0, H1 = 104, 120
    FB = [24, 56]
    FX = [88, 150]
    FX = [88, 152]
    def f1_reads(p, b):
        nx = 4 if not (p == 1 and b == 3) else 4
        return [f"ds_read_b64_tr_b16 {vr(FB[p]+8*b,2)}, v{gWA} offset:{b*1024}", f"ds_read_b64_tr_b16 {vr(FB[p]+8*b+2,2)}, v{gWA} offset:{b*1024+256}",
                f"ds_read_b128 {vr(FB[p]+8*b+4,4)}, v{gXT} offset:{b*256}", f"ds_read_b128 {vr(FX[p]+4*b,4)}, v{gXT} offset:{b*256+32768}"]
    gR2 = 6
    def bias():
        a(f"{MF32} {vr(H0,16)}, v[8:11], v[12:15], {vr(H0,16)}\n{MF32} {vr(H1,16)}, v[8:11], v[14:17], {vr(H1,16)}")
    def hzero():
        a(f"v_mfma_f32_32x32x8_bf16 {vr(H0,16)}, v[10:11], v[10:11], 0\nv_mfma_f32_32x32x8_bf16 {vr(H1,16)}, v[10:11], v[10:11], 0")
    a(f"""v_mul_f32 v{gR2}, v{gRS}, v{gRS}
    v_mul_f32 v{gR2+1}, v{gRS+1}, v{gRS+1}
    v_mov_b32 v{gWA}, v{gWB}
    v_mov_b32 v{gXT}, v{gXA}
    s_mov_b32 s{sN}, {4 if opt.get("z_skip") else 0}
    s_mov_b32 s{sM}, 0""")
    hzero()
    plan_lo = [(0, 22, 0, 22), (22, 22, 64, 68), (40, 21 + 128, 68, 77), (52, 21 + 128, 77, 86)]
    plan_hi = [(0, 26, 64, 72), (18, 26, 72, 80), (36, 18 + 128, 80, 86), (48, 16, 0, 64)]
    def pack(b): return sum(x << (8 * i) for i, x in enumerate(b))
    sPL, sSW, sS2 = 18, 19, 10
    a(f"s_mul_i32 s{sS2}, s{sCT}, {64*W1P}\ns_lshl_b32 s{sD}, s{sT2}, 6\ns_add_u32 s{sS2}, s{sS2}, s{sD}")
    a(f"s_mov_b32 s{sPL}, {pack(plan_hi[0])}")
    a(f"s_cmp_lt_u32 s{sG}, 3\ns_cselect_b32 s{sD}, 4, 0\ns_add_u32 s{sD}, s{sD}, s{sI}")
    for n, pl in enumerate(plan_hi + plan_lo):
        if n: a(f"s_cmp_eq_u32 s{sD}, {n}\ns_cselect_b32 s{sPL}, {pack(pl)}, s{sPL}")
    a(f"""s_lshr_b32 s{sD}, s{sPL}, 24
    s_mov_b32 s{rX}, s{pW2}
    s_mov_b32 s{rX+1}, s{pW2+1}
    s_lshl_b32 s{rX+2}, s{sD}, 14
    s_mov_b32 s{rX+3}, 0x20000
    s_and_b32 s{sSW}, s{sPL}, 0xff
    s_lshl_b32 s{sSW}, s{sSW}, 14
    s_lshl_b32 s{sD}, s{sG}, 7
    s_add_u32 s{sSW}, s{sSW}, s{sD}""")
    srd(rT, pB1, W1P)
    lds_spin(C_QREADY, 4, gGC, 56, sleep=0)
    lds_spin(C_KV, 8, gGC, 56, sleep=2)
    if opt.get("delay_f1"): lds_spin(C_ABAR, 16, gGC, 56, sleep=16)
    TS(15)
    late[0] = True
    for n in range(3):
        a(f"s_add_u32 m0, s{sRNG}, {n*4096}\ns_nop 0")
        for b in range(4): a(w1_dma1(b))
        a(f"s_add_u32 s{sSO}, s{sSO}, {16*W1P}")
    a(f"""s_lshl_b32 s{sC}, s{sT1}, 6
    s_lshl_b32 s{sD}, s{sT2}, 6
    s_lshl_b32 s{sF}, s{sRB}, {FS_+3}
    s_add_u32 s{sF}, s{sF}, {FLG_KV}
    buffer_load_ushort v8, v40, {sr(rT,4)}, s{sC} offen
    buffer_load_ushort v15, v40, {sr(rT,4)}, s{sD} offen
    buffer_load_dword v{AC[0]+2}, v41, {sr(rWS,4)}, s{sF} offen offset:8 sc1
    s_waitcnt vmcnt(11)""")
    for b in range(4):
        for l in f1_reads(0, b): a(l)
    TS(3)
    a(".p2align 6")
    a.label("L_f1loop")
    for p in range(2):
        a(f"""s_add_u32 m0, s{sM}, s{sRNG}
        s_add_u32 s{sM}, s{sM}, 4096
        s_cmp_lt_u32 s{sM}, {RSZ}
        s_cselect_b32 s{sM}, s{sM}, 0
        s_add_u32 s{sN}, s{sN}, 1
        s_lshr_b32 s{sD}, s{sN}, 3
        s_and_b32 s{sD}, s{sD}, s{sCT}
        s_lshl_b32 s{sD}, s{sD}, 2
        s_add_u32 s{sD}, s{sD}, s{sN}
        s_and_b32 s{sD}, s{sD}, 7
        s_lshl_b32 s{sD}, s{sD}, 5
        v_add_u32 v{gWA}, s{sM}, v{gWB}
        v_xor_b32 v{gXT}, s{sD}, v{gXA}""")
        if p == 1:
            a(f"""s_cmp_eq_u32 s{sN}, 6
            s_cselect_b32 s{sSO}, s{sS2}, s{sSO}
            s_add_u32 s{sD}, s{sN}, 2
            s_cmp_lt_u32 s{sD}, s{sNG}
            s_cselect_b32 s{rW+2}, s{rW+2}, 0""")
        for b in range(4):
            rd = f1_reads(1 - p, b)
            if not opt.get("x_nolg"): a("s_waitcnt lgkmcnt(12)")
            a(f"{MF32} {vr(H0,16)}, {vr(FB[p]+8*b,4)}, {vr(FB[p]+8*b+4,4)}, {vr(H0,16)}")
            a(w1_dma1(b))
            a(rd[2]); a(rd[3])
            pad(P1A)
            a(f"{MF32} {vr(H1,16)}, {vr(FB[p]+8*b,4)}, {vr(FX[p]+4*b,4)}, {vr(H1,16)}")
            a("s_waitcnt vmcnt(8)")
            a(rd[0]); a(rd[1])
            if b < 3: pad(P1B)
        a(f"s_add_u32 s{sSO}, s{sSO}, {16*W1P}")
    a(f"""s_cmp_lt_u32 s{sN}, 8
    s_cbranch_scc1 L_f1loop
    s_cmp_eq_u32 s{sN}, 10
    s_cbranch_scc1 L_f1pub""")
    TS(2)
    a(f"""s_getreg_b32 s{sD}, hwreg(HW_REG_XCC_ID)
    v_lshl_or_b32 v8, v8, 16, v8
    v_cmp_ne_u32 vcc, s{sD}, v{AC[0]+2}
    s_mul_i32 s{sD}, s{sRB}, 86
    s_lshl_b32 s{sC}, s{sT1}, 1
    s_add_u32 s{sD}, s{sD}, s{sC}
    s_lshl_b32 s{sD}, s{sD}, 11
    s_add_u32 s{sD}, s{sD}, {HF}
    s_mov_b32 s{sT1}, s{sT2}
    s_cmp_eq_u64 vcc, 0
    s_cselect_b32 s{sLOC}, {0 if opt.get("noloc") else 1}, 0
    s_cmp_eq_u32 s{sN}, 12
    s_cbranch_scc1 L_half""")
    bias()
    a(f"v_mov_b32 v8, v15\ns_nop 9")
    for rt, Hh in enumerate((H0, H1)):
        a.label(f"L_epi{rt}")
        for j in range(16): a(f"v_max_f32 v{Hh+j}, 0, v{Hh+j}")
        for j in range(8): a(f"v_pk_mul_f32 {vr(Hh+2*j,2)}, {vr(Hh+2*j,2)}, {vr(Hh+2*j,2)}")
        sel = "op_sel_hi:[1,0]" if rt == 0 else "op_sel:[0,1] op_sel_hi:[1,1]"
        if not opt.get("fold", 0):
            for j in range(8): a(f"v_pk_mul_f32 {vr(Hh+2*j,2)}, {vr(Hh+2*j,2)}, {vr(gR2,2)} {sel}")
        for j in range(8): a(f"v_cvt_pk_bf16_f32 v{Hh+j}, v{Hh+2*j}, v{Hh+2*j+1}")
        hst = [f"buffer_store_dwordx4 {vr(Hh+4*s_,4)}, v{gL16}, {sr(rWS,4)}, s{sD} offen offset:{s_*2048+rt*1024}" for s_ in range(2)]
        if HLOC: grp_store(hst)
        else:
            for l in hst: a(l + " sc1")
        if rt == 0: a(f"s_cmp_eq_u32 s{sN}, 12\ns_cbranch_scc1 L_epid")
    a.label("L_epid")
    gSW2 = 22
    D2 = RSZ // 2048
    def w2_dma(u):
        a(f"""s_add_u32 m0, s{sRNG}, {u*2048}
        s_nop 0
        buffer_load_dwordx4 v{gSW}, {sr(rX,4)}, s{sSW} offen lds
        buffer_load_dwordx4 v{gSW2}, {sr(rX,4)}, s{sSW} offen offset:1024 lds
        s_add_u32 s{sSW}, s{sSW}, 16384""")
    PT = AC[0]
    a("s_nop 0")
    hzero()
    a(f"""s_cmp_lt_u32 s{sN}, s{sNG}
    s_cbranch_scc1 L_f1loop
    v_add_u32 v{gSW2}, {8192-1024}, v{gSW}
    s_cmp_eq_u32 s{sN}, 8
    s_cbranch_scc1 L_f1fill""")
    lds_spin(C_PX, 4, 26, 27, sleep=0)
    a.label("L_f1fill")
    for u in range(D2): w2_dma(u)
    a(f"s_waitcnt vmcnt({2*D2})")
    a.label("L_f1pub")
    a(f"""s_cmp_lt_u32 s{sN}, 12
    s_cselect_b32 s{sD}, 1, 16
    v_mov_b32 v{PT}, s{sD}
    s_mov_b64 exec, 1
    ds_add_rtn_u32 v{PT+1}, v{gGC}, v{PT} offset:{C_HDONE}
    s_mov_b64 exec, -1
    s_lshl_b32 s{sC}, s{sRB}, 3
    s_add_u32 s{sC}, s{sC}, s{sG}
    s_lshl_b32 s{sC}, s{sC}, 7
    s_lshr_b32 s{sD}, s{sD}, 1
    s_add_u32 s{sC}, s{sC}, s{sD}
    s_add_u32 s{sC}, s{sC}, {FLG_H}
    s_cmp_lt_u32 s{sG}, 3
    s_cselect_b32 s{sCAP}, 3, 1
    s_cmp_lt_u32 s{sN}, 12
    s_cselect_b32 s{sCAP}, 3, s{sCAP}
    s_cselect_b32 s{sD}, 0, 4
    s_waitcnt lgkmcnt(0)
    v_readfirstlane_b32 s{sF}, v{PT+1}
    s_nop 0
    s_lshr_b32 s{sF}, s{sF}, s{sD}
    s_and_b32 s{sF}, s{sF}, 15
    s_cmp_lg_u32 s{sF}, s{sCAP}
    s_cbranch_scc1 L_nohflag""")
    flag_store(sC, PT)
    a.label("L_nohflag")
    a(f"""s_cmp_eq_u32 s{sN}, 10
    s_cbranch_scc1 L_f1loop""")
    TS(6)
    sK0, sK1, sSH, sXC = 0, 1, sC, sB
    gA0, gA1, gHO0, gHO1, gFL, gWO = 8, 9, 10, 11, 12, 13
    gCN, gOA, gLA, gCV = 16, 17, 18, 19
    HR = 24
    AF = [152, 160]
    WOF, FA = 88, 72
    OFR = [[56, 60, 64, 68, 152, 156, 160, 164], [24 + 4 * gp for gp in range(8)]]
    sKT, sWM, sWS = 12, 13, 26
    sHB, sFH, sNF, sPF, sRET, sLOOP = 8, 9, 10, 11, 14, 20
    def ev_set():
        a(f"""s_mul_i32 s{sA}, s{sNF}, {OST}
        s_add_u32 s{sA}, s{sA}, {OACC}
        v_mov_b32 v{gCN}, s{sA}
        v_lshrrev_b32 v{gOA}, 1, v{gL16}
        v_and_b32 v{gLA}, 0xff, v{gOA}
        v_add_u32 v{gOA}, s{sA}, v{gOA}
        v_add_u32 v{gLA}, s{sA}, v{gLA}""")
    def o_flag():
        a(f"""s_lshl_b32 s{sA}, s{sRB}, 3
        s_add_u32 s{sA}, s{sA}, s{sG}
        s_lshl_b32 s{sA}, s{sA}, 4
        s_add_u32 s{sA}, s{sA}, s{sPF}
        s_lshl_b32 s{sA}, s{sA}, 3
        s_add_u32 s{sA}, s{sA}, {FLG_O}
        s_mov_b32 s{sPF}, s{sNF}""")
    srd(rW, pX, 0x200000)
    srd(rT, pB2, 1024)
    a(f"""v_and_b32 v41, 31, v0
    v_lshlrev_b32 v40, 4, v{gH}
    v_lshl_add_u32 v40, v41, 10, v40
    v_lshlrev_b32 v41, 1, v41
    s_lshl_b32 s{sA}, s{sG}, 7
    s_lshl_b32 s{sD}, s{sCT}, 6
    s_add_u32 s{sA}, s{sA}, s{sD}
    s_lshl_b32 s{sD}, s{sRB}, 16
    s_lshl_b32 s{sC}, s{sRT}, 15
    s_add_u32 s{sD}, s{sD}, s{sC}
    s_add_u32 s{sD}, s{sD}, s{sA}
    s_mov_b32 s{sE}, s{sD}
    v_mov_b32 v7, v40
    buffer_load_dwordx4 v[24:27], v40, {sr(rW,4)}, s{sD} offen
    buffer_load_dwordx4 v[28:31], v40, {sr(rW,4)}, s{sD} offen offset:32
    buffer_load_ushort v76, v41, {sr(rT,4)}, s{sA} offen""")
    a(f"""s_lshl_b32 s{sFH}, s{sRB}, 10
    s_add_u32 s{sFH}, s{sFH}, {FLG_H}
    v_and_b32 v{gFL}, 7, v0
    v_lshlrev_b32 v{gFL}, 7, v{gFL}
    v_bfe_u32 v{gR}, v0, 2, 2
    buffer_load_dwordx2 v[14:15], v{gFL}, {sr(rWS,4)}, s{sFH} offen sc1
    v_lshrrev_b32 v{gWO}, 1, v{gR}
    v_xor_b32 v{gWO}, s{sCT}, v{gWO}
    v_lshl_add_u32 v{gWO}, v{gWO}, 6, v{gTR}
    v_lshl_add_u32 v{gWO}, v{gR}, 7, v{gWO}
    v_lshl_add_u32 v{gWO}, v{gH}, 9, v{gWO}
    s_lshl_b32 s{sA}, s{sRT}, 10
    v_mov_b64 v[72:73], 0
    v_mov_b64 v[74:75], 0
    v_add_u32 v{gA0}, s{sRNG}, v{gWO}
    v_xor_b32 v{gA1}, 64, v{gA0}
    v_add_u32 v{gHO0}, s{sA}, v{gL16}
    v_xor_b32 v{gHO1}, 0x400, v{gHO0}""")
    a(f"{MF32} {vr(AC[3],16)}, v[72:75], v[72:75], 0")
    a(f"""v_sub_u32 v78, 1, v{gH}
    v_mov_b32 v77, 0
    v_mul_u32_u24 v78, 0x3f80, v78
    v_mov_b32 v79, 0
    s_mov_b32 s{sD}, 0xffff0000
    s_waitcnt vmcnt(1)""")
    for j in (24, 25, 28, 29): a(f"v_permlane32_swap_b32 v{j}, v{j+2}")
    for j in range(8): a(f"v_lshlrev_b32 v{AC[0]+2*j}, 16, v{24+j}\nv_and_b32 v{AC[0]+2*j+1}, s{sD}, v{24+j}")
    a(f"s_nop 1\nv_mfma_f32_32x32x8_bf16 {vr(AC[0],16)}, v[76:77], v[78:79], {vr(AC[0],16)}")
    def a_reads(u, p):
        for d, ga in enumerate((gA0, gA1)):
            a(f"ds_read_b64_tr_b16 {vr(AF[p]+4*d,2)}, v{ga} offset:{u*2048}\nds_read_b64_tr_b16 {vr(AF[p]+4*d+2,2)}, v{ga} offset:{u*2048+1024}")
    LDS_OFF = 0x30000
    a(f"""s_mul_i32 s{sHB}, s{sRB}, {86*2048}
    s_add_u32 s{sHB}, s{sHB}, {HF}
    s_and_b32 s{sSH}, s{sPL}, 0xff
    s_lshl_b32 s{sSH}, s{sSH}, 11
    s_add_u32 s{sSH}, s{sSH}, s{sHB}
    s_lshr_b32 s{sD}, s{sPL}, 24
    s_lshl_b32 s{sD}, s{sD}, 11
    s_mov_b32 s{rT}, s{pWS}
    s_mov_b32 s{rT+1}, s{pWS+1}
    s_add_u32 s{rT+2}, s{sD}, s{sHB}
    s_mov_b32 s{rT+3}, 0x20000
    s_bfe_u32 s{sK1}, s{sPL}, 0x70008
    s_sub_u32 s{sKT}, s{sK1}, {D2}
    s_mov_b32 s{rW}, s{pWO}
    s_mov_b32 s{rW+1}, s{pWO+1}
    s_lshl_b32 s{sWM}, s{sI}, 14
    s_lshl_b32 s{sWS}, s{sI}, 17
    s_add_u32 s{rW+2}, s{sWS}, 0x20000
    s_mov_b32 s{rW+3}, 0x20000
    s_lshl_b32 s{sA}, s{sG}, 7
    s_add_u32 s{sWS}, s{sWS}, s{sA}
    s_bitcmp1_b32 s{sPL}, 15
    s_cselect_b32 s27, 6, 12
    s_mov_b32 s{sK0}, 0
    s_xor_b32 s{sNF}, s{sCT}, 1
    s_lshl_b32 s{sNF}, s{sNF}, 1
    s_add_u32 s{sNF}, s{sNF}, s{sRT}
    s_mov_b32 s{sPF}, s{sNF}
    s_mov_b32 s{sLOOP}, 1""")
    ev_set()
    a(f"s_bfe_u32 s{sXC}, s{sPL}, 0x80010")
    flag_poll(gFL, sFH, 14, preissued=True, sleep=opt.get("hsleep", 2))
    TS(7)
    for u in range(D2):
        a(f"""buffer_load_dwordx4 {vr(HR+8*u,4)}, v{gHO0}, {sr(rT,4)}, s{sSH} offen sc1
        buffer_load_dwordx4 {vr(HR+8*u+4,4)}, v{gHO1}, {sr(rT,4)}, s{sSH} offen sc1
        s_add_u32 s{sSH}, s{sSH}, 2048""")
    a_reads(0, 0)
    a(f"ds_read_b32 v{gCV}, v{gCN} offset:{B_CNT}")
    a(f"s_add_u32 s{sFH}, s{sFH}, 8\ns_waitcnt vmcnt(0)")
    if opt.get("x_noh"): a(f"s_mov_b32 s{rT+2}, 0")
    if opt.get("x_now"): a(f"s_mov_b32 s{rX+2}, 0")
    TS(1)
    a(".p2align 6")
    a.label("L_f2loop")
    for u in range(D2):
        p = u & 1
        def mf(j): a(f"{MF32} {vr(AC[j],16)}, {vr(AF[p]+4*(j&1),4)}, {vr(HR+8*u+4*(j>>1),4)}, {vr(AC[j],16)}")
        a(f"s_waitcnt vmcnt({4*(D2-2)}) lgkmcnt(0)")
        mf(0)
        a_reads((u + 1) % D2, 1 - p)
        pad(P2A)
        mf(1)
        if u == 0:
            a("s_branch L_trip")
            a.label("L_tripped")
        elif u == D2 - 1: a(f"ds_read_b32 v{gCV}, v{gCN} offset:{B_CNT}")
        a(f"s_add_u32 m0, s{sRNG}, {u*2048}\ns_cmp_ge_u32 s{sK0}, s{sKT}\ns_cbranch_scc1 L_tail{u}")
        a(f"""buffer_load_dwordx4 v{gSW}, {sr(rX,4)}, s{sSW} offen lds
        buffer_load_dwordx4 v{gSW2}, {sr(rX,4)}, s{sSW} offen offset:1024 lds""")
        mf(2)
        a(f"""buffer_load_dwordx4 {vr(HR+8*u,4)}, v{gHO0}, {sr(rT,4)}, s{sSH} offen sc1
        s_add_u32 s{sSW}, s{sSW}, 16384
        s_add_u32 s{sK0}, s{sK0}, 1""")
        pad(P2C)
        mf(3)
        a(f"buffer_load_dwordx4 {vr(HR+8*u+4,4)}, v{gHO1}, {sr(rT,4)}, s{sSH} offen sc1\ns_add_u32 s{sSH}, s{sSH}, 2048")
        if u == D2 - 1: a("s_branch L_f2loop")
        else: pad(P2D)
        a.label(f"L_next{u}")
    for u in range(D2):
        p = u & 1
        a.label(f"L_tail{u}")
        for j in (2, 3):
            a(f"{MF32} {vr(AC[j],16)}, {vr(AF[p]+4*(j&1),4)}, {vr(HR+8*u+4*(j>>1),4)}, {vr(AC[j],16)}")
            if j == 2: a(f"s_call_b64 s[96:97], L_wo4")
        a(f"""s_add_u32 s{sK0}, s{sK0}, 1
        s_cmp_lt_u32 s{sK0}, s{sK1}
        s_cbranch_scc1 {"L_f2loop" if u == D2 - 1 else f"L_next{u}"}""")
        if u < D2 - 1: a("s_branch L_f2done")
    a("s_branch L_f2done")
    a.label("L_wo4")
    a(f"""s_cmp_lg_u32 s{sK0}, s{sKT}
    s_cbranch_scc1 L_wo4b
    s_cmp_lt_u32 s{sG}, 3
    s_cselect_b32 s{sD}, 68, 36""")
    lds_spin(C_HDONE, f"s{sD}", gGC, 20, sleep=1)
    a.label("L_wo4b")
    a(f"""s_cmp_ge_u32 s{sWS}, s{rW+2}
    s_cbranch_scc1 L_wo4c""")
    for _ in range(2):
        a(f"""s_mov_b32 m0, s{sWM}
        s_add_u32 s{sWM}, s{sWM}, 2048
        buffer_load_dwordx4 v{gSW}, {sr(rW,4)}, s{sWS} offen lds
        buffer_load_dwordx4 v{gSW2}, {sr(rW,4)}, s{sWS} offen offset:1024 lds
        s_add_u32 s{sWS}, s{sWS}, 16384""")
    a.label("L_wo4c")
    a(f"s_setpc_b64 s[96:97]")
    a.label("L_f2done")
    TS(8)
    sJ, sFO, sOO, sRDY = 0, 1, sB, 21
    def wo_reads():
        for gp in range(8):
            a(f"ds_read_b64_tr_b16 {vr(WOF+4*gp,2)}, v{gWO} offset:{gp*8192}\nds_read_b64_tr_b16 {vr(WOF+4*gp+2,2)}, v{gWO} offset:{gp*8192+1024}")
        a(f"v_add_u32 v{gWO}, 2048, v{gWO}")
    def o_loads(bf):
        a(f"s_mov_b32 s{sA}, s{sOO}")
        for gp in range(8):
            a(f"buffer_load_dwordx4 {vr(OFR[bf][gp],4)}, v{gL16}, {sr(rWS,4)}, s{sA} offen sc1\ns_add_u32 s{sA}, s{sA}, 4096")
        a(f"s_add_u32 s{sOO}, s{sOO}, 1024\ns_add_u32 s{sJ}, s{sJ}, 1")
    def o_mf(bf, after):
        a(f"s_waitcnt lgkmcnt(0)")
        for gp in range(8):
            a(f"s_waitcnt vmcnt({7-gp+after})\n{MF32} {vr(AC[0],16)}, {vr(WOF+4*gp,4)}, {vr(OFR[bf][gp],4)}, {vr(AC[0],16)}")
            if gp < 7: pad(PO)
    a(f"""s_lshl_b32 s{sFO}, s{sRB}, 10
    s_lshl_b32 s{sA}, s{sRT}, 3
    s_add_u32 s{sFO}, s{sFO}, s{sA}
    s_add_u32 s{sFO}, s{sFO}, {FLG_O}
    v_and_b32 v20, 24, v0
    v_lshl_add_u32 v{gFL}, v20, 1, v{gFL}
    v_add_u32 v23, s{sRNG}, v{gL16}
    buffer_load_dwordx2 v[14:15], v{gFL}, {sr(rWS,4)}, s{sFO} offen sc1
    s_lshl_b32 s{sOO}, s{sRB}, 1
    s_add_u32 s{sOO}, s{sOO}, s{sRT}
    s_lshl_b32 s{sOO}, s{sOO}, 15
    s_add_u32 s{sOO}, s{sOO}, {OF}
    s_mov_b32 s{sJ}, 0
    s_mov_b32 s{sLOOP}, 0
    s_mov_b32 s23, 0""")
    srd(rT, pOUT, 0x200000)
    a(f"""s_waitcnt vmcnt(1) lgkmcnt(0)
    s_cmp_ge_u32 s{sPF}, s{sNF}
    s_cbranch_scc1 L_nopf""")
    o_flag()
    flag_store(sA, 20)
    a.label("L_nopf")
    for j in range(1, 4):
        for q in range(4): a(f"ds_write_b128 v23, {vr(AC[j]+4*q,4)} offset:{(j-1)*4096+q*1024}")
    lds_inc(C_GBAR, gGC, 23)
    a(f"""s_waitcnt vmcnt(0)
    v_cmp_ne_u64 vcc, {sr(sEP,2)}, v[14:15]
    s_nop 1
    s_mov_b32 s{sRDY}, vcc_lo
    s_and_b32 s22, s{sRDY}, 0xffff
    s_cbranch_scc1 L_red""")
    o_loads(1)
    o_loads(0)
    a.label("L_red")
    lds_spin(C_GBAR, 4, gGC, 14, sleep=1)
    for j in range(1, 4):
        a(f"s_xor_b32 s{sA}, s{sI}, {j}\ns_mul_i32 s{sA}, s{sA}, {RSZ}\ns_add_u32 s{sA}, s{sA}, {RING}\nv_add_u32 v14, s{sA}, v{gL16}")
        for q in range(4): a(f"ds_read_b128 {vr(AC[j]+4*q,4)}, v14 offset:{(j-1)*4096+q*1024}")
    for j in range(1, 4):
        a(f"s_waitcnt lgkmcnt({(3-j)*4})")
        for q in range(8): a(f"v_pk_add_f32 {vr(AC[0]+2*q,2)}, {vr(AC[0]+2*q,2)}, {vr(AC[j]+2*q,2)}")
    wo_reads()
    TS(9)
    a(f"""s_cmp_eq_u32 s22, 0
    s_cbranch_scc1 L_pair""")
    a.label("L_ev")
    a(f"""s_cmp_ge_u32 s{sPF}, s{sNF}
    s_cbranch_scc1 L_evf""")
    o_flag()
    a("s_waitcnt vmcnt(0)")
    flag_store(sA, 14)
    TS(13)
    a.label("L_evf")
    a(f"""s_add_u32 s23, s23, 1
    s_cmp_gt_u32 s23, {SPIN_CAP}
    s_cbranch_scc1 L_gdone
    s_cmp_ge_u32 s{sNF}, 8
    s_cbranch_scc1 L_evr
    ds_read_b32 v{gCV}, v{gCN} offset:{B_CNT}
    s_waitcnt lgkmcnt(0)
    v_readfirstlane_b32 s{sA}, v{gCV}
    s_nop 0
    s_bitcmp1_b32 s{sA}, 3
    s_cbranch_scc1 L_fin""")
    a.label("L_evr")
    a(f"""s_cmp_lt_u32 s{sJ}, 4
    s_cbranch_scc1 L_evc
    s_cmp_ge_u32 s{sNF}, 8
    s_cbranch_scc1 L_gdone""")
    a.label("L_evs")
    a(f"""s_sleep {opt.get("ldsleep", 1)}
    s_branch L_evf""")
    a.label("L_evc")
    a(f"""s_lshl_b32 s{sA}, s{sJ}, 1
    s_add_u32 s{sA}, s{sA}, s{sRT}
    s_cmp_eq_u32 s{sA}, s{sNF}
    s_cbranch_scc1 {"L_own" if opt.get("tl", 1) else "L_evs"}
    s_lshl_b32 s{sD}, s{sJ}, 3
    s_lshr_b32 s{sA}, s{sRDY}, s{sD}
    s_and_b32 s{sA}, s{sA}, 0xff
    s_cbranch_scc0 L_cons
    buffer_load_dwordx2 v[14:15], v{gFL}, {sr(rWS,4)}, s{sFO} offen sc1
    s_waitcnt vmcnt(0)
    v_cmp_ne_u64 vcc, {sr(sEP,2)}, v[14:15]
    s_nop 1
    s_mov_b32 s{sRDY}, vcc_lo
    s_lshr_b32 s{sA}, s{sRDY}, s{sD}
    s_and_b32 s{sA}, s{sA}, 0xff
    s_cbranch_scc0 L_cons
    s_sleep {opt.get("evsleep", 2)}
    s_branch L_ev""")
    a.label("L_own")
    a(f"""ds_read_b32 v{gCV}, v{gCN} offset:{B_CNT}
    s_add_u32 s23, s23, 1
    s_cmp_gt_u32 s23, {SPIN_CAP}
    s_cbranch_scc1 L_gdone
    s_sleep {opt.get("ownsleep", 1)}
    s_waitcnt lgkmcnt(0)
    v_readfirstlane_b32 s{sA}, v{gCV}
    s_nop 0
    s_bitcmp1_b32 s{sA}, 3
    s_cbranch_scc0 L_own
    s_branch L_fin""")
    a.label("L_cons")
    TS(4)
    a(f"""s_lshr_b32 s{sA}, s{sRDY}, s{sD}
    s_and_b32 s{sA}, s{sA}, 0xffff
    s_cbranch_scc1 L_cons1
    s_cmp_eq_u32 s{sJ}, 3
    s_cbranch_scc1 L_cons1""")
    o_loads(1)
    o_loads(0)
    a.label("L_pair")
    o_mf(1, 8)
    wo_reads()
    a("s_branch L_cons2")
    a.label("L_cons1")
    o_loads(0)
    a.label("L_cons2")
    o_mf(0, 0)
    a(f"""s_cmp_ge_u32 s{sJ}, 4
    s_cbranch_scc1 L_out""")
    wo_reads()
    a("s_branch L_ev")
    a.label("L_out")
    TS(10)
    a("s_nop 9")
    for j in range(8): a(f"v_cvt_pk_bf16_f32 v{AC[0]+j}, v{AC[0]+2*j}, v{AC[0]+2*j+1}")
    for j in (0, 1, 4, 5): a(f"v_permlane32_swap_b32 v{AC[0]+j}, v{AC[0]+j+2}")
    for q in range(2): a(f"buffer_store_dwordx4 {vr(AC[0]+4*q,4)}, v7, {sr(rT,4)}, s{sE} offen offset:{32*q} {opt.get('ost', '')}")
    a("s_branch L_ev")
    a.label("L_half")
    a(f"""s_xor_b32 s{sC}, s{sI}, 1
    s_mul_i32 s{sC}, s{sC}, {RSZ}
    s_add_u32 s{sC}, s{sC}, {RING}
    s_waitcnt lgkmcnt(0)
    v_add_u32 v24, s{sRNG}, v{gL16}
    v_add_u32 v25, s{sC}, v{gL16}
    v_lshl_add_u32 v26, s{sRT}, 2, v{gGC}
    s_waitcnt vmcnt(0)
    s_cmp_eq_u32 s{sCT}, 0
    s_cbranch_scc0 L_half1""")
    for keep, (Hk, Hs) in enumerate(((H0, H1), (H1, H0))):
        if keep: a.label("L_half1")
        for q in range(4): a(f"ds_write_b128 v24, {vr(Hs+4*q,4)} offset:{q*1024}")
        a(f"{MF32} {vr(Hk,16)}, v[8:11], {'v[12:15]' if keep == 0 else 'v[14:17]'}, {vr(Hk,16)}")
        lds_inc(C_PX, 26, 27)
        lds_spin(C_PX, 2, 26, 27, sleep=0)
        for q in range(4): a(f"ds_read_b128 {vr(Hs+4*q,4)}, v25 offset:{q*1024}")
        a("s_waitcnt lgkmcnt(0)")
        lds_inc(C_PX, 26, 27)
        for q in range(8): a(f"v_pk_add_f32 {vr(Hk+2*q,2)}, {vr(Hk+2*q,2)}, {vr(Hs+2*q,2)}")
        a(f"s_branch L_epi{keep}")
    a.label("L_trip")
    def tripstamp():
        if opt.get("f2ts"):
            a("s_memtime s[98:99]\ns_waitcnt lgkmcnt(0)")
            for i in range(1, 10): a(f"s_mov_b32 s{TS0+2*i}, s{TS0+2*i+2}")
            a(f"s_mov_b32 s{TS0+20}, s98")
    tripstamp()
    a(f"""s_setprio 3
    v_readfirstlane_b32 s{sD}, v{gCV}
    s_cmp_ge_u32 s{sPF}, s{sNF}
    s_cbranch_scc1 L_trip1""")
    o_flag()
    flag_store(sA, 20)
    a.label("L_trip1")
    a(f"""s_add_u32 s{sA}, s{sK0}, {D2}
    s_cmp_lg_u32 s{sA}, s27
    s_cbranch_scc1 L_trip1b
    buffer_load_dwordx2 v[14:15], v{gFL}, {sr(rWS,4)}, s{sFH} offen sc1""")
    a.label("L_trip1b")
    a(f"""s_cmp_lg_u32 s{sK0}, s27
    s_cbranch_scc1 L_trip2
    s_cmp_eq_u32 s{sXC}, 0
    s_cbranch_scc1 L_trip2
    v_cmp_ne_u64 vcc, {sr(sEP,2)}, v[14:15]
    s_lshl_b32 s{sSW}, s{sXC}, 14
    s_lshl_b32 s{sA}, s{sG}, 7
    s_add_u32 s{sSW}, s{sSW}, s{sA}
    s_lshl_b32 s{sSH}, s{sXC}, 11
    s_add_u32 s{sSH}, s{sSH}, s{sHB}""")
    a("s_cbranch_vccz L_crossok")
    flag_poll(gFL, sFH, 14, sleep=opt.get("hsleep", 2))
    a.label("L_crossok")
    TS(14)
    a.label("L_trip2")
    a(f"""s_cmp_lt_u32 s{sNF}, 8
    s_cselect_b32 s{sD}, s{sD}, 0
    s_cmp_eq_u32 s{sLOOP}, 1
    s_cselect_b32 s{sD}, s{sD}, 0
    s_bitcmp1_b32 s{sD}, 3
    s_cbranch_scc1 L_fin""")
    a.label("L_trip3")
    tripstamp()
    a(f"s_setprio {GP}\ns_branch L_tripped")
    a.label("L_fin")
    for j in range(7, -1, -1): a(f"ds_read_b64 {vr(FA+2*j,2)}, v{gOA} offset:{512*j}")
    a(f"""ds_read_b64 v[20:21], v{gLA} offset:{B_L}
    s_mov_b32 s{sD}, 0
    s_waitcnt lgkmcnt(0)""")
    for j in range(7, -1, -1): a(f"v_cvt_f32_f64 v{FA+8+j}, {vr(FA+2*j,2)}")
    a(f"v_cvt_f32_f64 v{FA}, v[20:21]")
    a.label("L_fin2")
    a(f"""s_and_b32 s{sA}, s{sNF}, 1
    s_lshl_b32 s{sF}, s{sRB}, 1
    v_rcp_f32 v{FA+1}, v{FA}
    s_add_u32 s{sA}, s{sA}, s{sF}
    s_lshl_b32 s{sA}, s{sA}, 3
    s_add_u32 s{sA}, s{sA}, s{sG}
    v_mov_b32 v{FA+3}, 0x76800000
    v_cmp_nle_f32 vcc, {hex(LMIN)}, v{FA}
    v_cmp_nle_f32 {sr(sRET,2)}, v{FA}, v{FA+3}""")
    for j in range(8): a(f"v_mul_f32 v{FA+8+j}, v{FA+8+j}, v{FA+1}")
    a(f"""s_or_b64 {sr(sRET,2)}, {sr(sRET,2)}, vcc
    s_lshl_b32 s{sA}, s{sA}, 2
    s_lshr_b32 s{sF}, s{sNF}, 1
    s_add_u32 s{sA}, s{sA}, s{sF}
    s_lshl_b32 s{sA}, s{sA}, 10
    s_add_u32 s{sA}, s{sA}, {OF}""")
    for j in range(4): a(f"v_cvt_pk_bf16_f32 v{FA+4+j}, v{FA+8+2*j}, v{FA+9+2*j}")
    a(f"v_pk_mul_f32 {vr(FA+2,2)}, {vr(FA+8,2)}, 0")
    for j in range(1, 4): a(f"v_pk_fma_f32 {vr(FA+2,2)}, {vr(FA+8+2*j,2)}, 0, {vr(FA+2,2)}")
    a(f"""v_cmp_u_f32 vcc, v{FA+2}, v{FA+3}
    s_nop 1
    s_or_b64 {sr(sRET,2)}, {sr(sRET,2)}, vcc
    s_cselect_b32 s{sF}, 1, 0
    s_cmp_gt_u32 s{sF}, s{sD}
    {"s_nop 0" if opt.get("nofb") else "s_cbranch_scc1 L_fallback"}
    s_add_u32 s{sNF}, s{sNF}, 4""")
    grp_store([f"buffer_store_dwordx4 {vr(FA+4,4)}, v{gL16}, {sr(rWS,4)}, s{sA} offen"])
    ev_set()
    a(f"""s_cmp_eq_u32 s{sLOOP}, 0
    s_cbranch_scc1 L_ev
    s_branch L_trip3""")
    a.label("L_gdone")
    if ts: a("s_waitcnt vmcnt(0)")
    TS(11)
    if opt.get("padto"):
        a.label("L_pad")
        a(f"s_memrealtime s[96:97]\ns_waitcnt lgkmcnt(0)\ns_sub_u32 s96, s96, s{sEP}\ns_cmp_lt_u32 s96, {opt['padto']}\ns_cbranch_scc1 L_pad")
    ts_dump()
    a.label("L_end")
    a("s_endpgm")

    for X, Y, lines in far:
        a.label(X)
        for l in lines: a(l + " sc1")
        a(f"s_branch {Y}")
    a.label("L_fallback")
    FQ, FK, FV, FS, FC, FT = 24, 28, 32, 40, 56, 120
    a(f"""s_cmp_eq_u32 s{sLOOP}, 0
    s_cbranch_scc1 L_fbgo
    s_mov_b32 s{sLOOP}, 2
    s_branch L_trip3""")
    a.label("L_fbgo")
    a(f"""s_mul_i32 s{sA}, s{sNF}, {QST}
    s_add_u32 s{sA}, s{sA}, {QF}
    v_add_u32 v{FT}, s{sA}, v{gL16}
    ds_read_b128 {vr(FQ,4)}, v{FT}
    v_mov_b32 v{FT+2}, 0xff800000""")
    a(f"s_mov_b32 s{sA}, 0")
    a.label("L_fb1")
    a(f"""buffer_load_dwordx4 {vr(FK,4)}, v{gL16}, {sr(rWS,4)}, s{sA} offen sc1
    s_waitcnt vmcnt(0) lgkmcnt(0)
    {MF32} {vr(FS,16)}, {vr(FK,4)}, {vr(FQ,4)}, 0
    s_nop 11""")
    maxtree(FS, FT + 3)
    a(f"""v_max_f32 v{FT+2}, v{FT+2}, v{FT+3}
    s_add_u32 s{sA}, s{sA}, 1024
    s_cmp_lt_u32 s{sA}, 0x10000
    s_cbranch_scc1 L_fb1
    v_mov_b32 v{FT+3}, v{FT+2}
    s_nop 1
    v_permlane32_swap_b32 v{FT+2}, v{FT+3}
    v_max_f32 v{FT+2}, v{FT+2}, v{FT+3}""")
    for i in range(16): a(f"v_sub_f32 v{FC+i}, 0, v{FT+2}\nv_mov_b32 v{FA+i}, 0")
    a(f"s_mov_b32 s{sA}, 0")
    a.label("L_fb2")
    a(f"""s_add_u32 s{sF}, s{sA}, {VF}
    buffer_load_dwordx4 {vr(FK,4)}, v{gL16}, {sr(rWS,4)}, s{sA} offen sc1
    buffer_load_dwordx4 {vr(FV,4)}, v{gL16}, {sr(rWS,4)}, s{sF} offen sc1""")
    for i in range(4): a(f"v_mov_b32 v{FV+4+i}, 0x3f803f80")
    a(f"""s_waitcnt vmcnt(0)
    {MF32} {vr(FS,16)}, {vr(FK,4)}, {vr(FQ,4)}, {vr(FC,16)}""")
    for i in range(4): a(f"v_permlane16_swap_b32 v{FV+4+i}, v{FV+i}")
    a("s_nop 7")
    for i in range(16): a(e(FS, i))
    a("s_nop 0")
    for j in range(8): a(c(FS, j))
    a(f"""s_nop 1
    {MF32} {vr(FA,16)}, {vr(FV,4)}, {vr(FS,4)}, {vr(FA,16)}
    {MF32} {vr(FA,16)}, {vr(FV+4,4)}, {vr(FS+8,4)}, {vr(FA,16)}
    s_add_u32 s{sA}, s{sA}, 1024
    s_cmp_lt_u32 s{sA}, 0x10000
    s_cbranch_scc1 L_fb2
    s_nop 15
    s_mov_b32 s{sD}, 1
    s_branch L_fin2""")

    if opt.get("x_nomf"):
        i0 = a.lines.index("L_f1loop:"); i1 = a.lines.index("L_gdone:")
        for i in range(i0, i1):
            if a.lines[i].startswith("v_mfma"): a.lines[i] = "s_nop 9"
    if opt.get("x_nolds"):
        i0 = a.lines.index("L_f1loop:"); i1 = a.lines.index("L_f2done:")
        for i in range(i0, i1):
            if a.lines[i].startswith(("ds_read_b128", "ds_read_b64_tr")): a.lines[i] = "s_nop 0"
    if opt.get("x_novm"):
        i0 = a.lines.index("L_f1loop:"); i1 = a.lines.index("L_f2done:")
        for i in range(i0, i1):
            if a.lines[i].startswith("buffer_load_dwordx4"): a.lines[i] = "s_nop 3"
    if opt.get("x_nova"):
        i0 = a.lines.index("L_f1loop:"); i1 = a.lines.index("L_gdone:")
        for i in range(i0, i1):
            if a.lines[i].startswith(("v_max_f32", "v_pk_", "v_cvt", "v_mul_f32")): a.lines[i] = "s_nop 0"
    if opt.get("x_mf16"):
        import re
        i0 = a.lines.index("L_f1loop:"); i1 = a.lines.index("L_f2done:")
        for i in range(i1, i0, -1):
            m = re.match(r"v_mfma_f32_32x32x16_bf16 v\[(\d+):\d+\], (\S+), (\S+), v", a.lines[i])
            if m:
                d = int(m.group(1))
                a.lines[i:i+1] = [f"v_mfma_f32_16x16x32_bf16 v[{d+4*q}:{d+4*q+3}], {m.group(2)}, {m.group(3)}, v[{d+4*q}:{d+4*q+3}]" for q in range(2)]
    i0 = a.lines.index("L_atop:"); i1 = a.lines.index("L_vs0:")
    for i in range(i1, i0, -1):
        l = a.lines[i]
        if opt.get("y_noadd") and l.startswith("ds_add_f64"): del a.lines[i]
        elif opt.get("y_nocvt") and l.startswith("v_cvt_f64"): del a.lines[i]
        elif opt.get("y_noq") and l.startswith("ds_read_b128"): del a.lines[i]
        elif opt.get("y_noexec") and ("exec_hi" in l): del a.lines[i]
        elif opt.get("y_nobr") and l.startswith("s_cbranch_vccnz"): del a.lines[i]
    if opt.get("x_p0", 1):
        i0 = a.lines.index("L_f1loop:"); i1 = a.lines.index("L_gdone:")
        for i in range(i1, i0, -1):
            if a.lines[i].startswith("v_mfma"): a.lines[i:i+1] = ["s_setprio 0", a.lines[i], "s_setprio 3"]
    probs = lint(a.lines)
    for p in probs: print("LINT", p, file=sys.stderr)
    head = f"""; fused layernorm + MQA attention + squared-relu FFN, one persistent launch (generated by gen/gen.py)
; @launch grid=(256,1,1) block=(768,1,1) lds=163840
.amdgcn_target "amdgcn-amd-amdhsa--gfx950"
.text
.globl {NAME}_kernel
.p2align 8
.type {NAME}_kernel,@function
{NAME}_kernel:
"""
    tail = f""".section .rodata,"a"
.p2align 6
.amdhsa_kernel {NAME}_kernel
  .amdhsa_next_free_vgpr 168
  .amdhsa_next_free_sgpr 100
  .amdhsa_accum_offset 168
  .amdhsa_group_segment_fixed_size 0
  .amdhsa_kernarg_size 104
  .amdhsa_user_sgpr_count 2
  .amdhsa_user_sgpr_kernarg_segment_ptr 1
  .amdhsa_system_sgpr_workgroup_id_x 1
.end_amdhsa_kernel
"""
    return head + a.text() + tail

if __name__ == "__main__":
    open("k.s", "w").write(gen(False))
    open("k_ts.s", "w").write(gen(True))
    open("k_ts_c.s", "w").write(gen(True, dict(cyc=1)))
    import json
    var = json.load(open("variants.json")) if len(sys.argv) > 1 else []
    for n, d in enumerate(var):
        open(f"k_x{n}.s", "w").write(gen(True, dict(d, lite=1)))
```

```python
import gen
for nm, pr in (("a0", ("A", 0)), ("g3", ("G", 3)), ("g12", ("G", 12)), ("g5", ("G", 5)), ("a4", ("A", 4)), ("a6", ("A", 6)), ("a9", ("A", 9)), ("a1", ("A", 1)), ("a3", ("A", 3))):
    open(f"p_{nm}.s", "w").write(gen.gen(False, dict(probe=pr, pearly=1)))
```

```python
import sys
from asmlib import Asm, vr, sr, lint
NAME = "parallel_sum__grouped_kv_mqa__dense_activation_squared_relu__prompt"

KF, VF, FLG_KV, FLG_H, FLG_O, OF, HF, TSB = 0, 0x10000, 0x20000, 0x28000, 0x30000, 0x40000, 0x240000, 0x800000
OT = 0x900000
WS_BYTES = 0xA00000
XN, RING, WKV = 0, 65536, 131072
RSZ = 12288
OACC, SLOT = 114688, 2304
B_TAG = 2300
QF, QST = 151552, 1536
B_W = 1280
KT = 147456
RSTD = KT + 2048
GC = QF + B_W
C_QREADY, C_ABAR, C_HDONE, C_GBAR, C_WQ, C_KV, C_RS, C_L0, C_EPOCH, C_PX, C_KT, C_WQ2, C_FL, C_XN = 0, 4, 8, 12, 16, 20, 24, 28, 32, 40, 48, 52, 56, 60
W1P = 2752
OFFS = 90.0
SPIN_CAP = 1 << 17

sW, sRB, sG, sKG, sCH = 3, 4, 5, 6, 7
pX, pWQ, pWK, pWV, pWO, pW1, pB1, pW2, pB2, pOUT, pDBG, pWS = 8, 10, 12, 14, 16, 20, 22, 24, 26, 28, 30, 32
rX, rWS, rW, rT = 36, 40, 44, 48
sEP = 52
sI, sRT, sCT = 54, 55, 56
sA, sB, sC, sD, sE, sF = 57, 58, 59, 60, 61, 62
sCAP = 63
sM = 34
TS0 = 64
MF32 = "v_mfma_f32_32x32x16_bf16"

def gen(ts=False, opt={}):
    a = Asm()
    OFFS = float(opt.get('offs', 102))
    LMIN = (127 - int(OFFS) - 2) << 23
    GP = opt.get('gp', 3)
    P1A, P1B, P2A, P2C, P2D, PO = opt.get('pads', (-1, -1, -1, -1, -1, -1))
    def pad(n):
        if n >= 0: a(f's_nop {n}')
    late = [False]
    role = ["A"]
    def TS(i):
        if opt.get("probe") == (role[0], i) and not (late[0] and opt.get("pearly")): a("s_memrealtime s[98:99]")
        if opt.get("lite") and i not in ((0, 6, 9) if role[0] == "A" else (0, 11)): return
        if opt.get("pro") and late[0] and i != 11: return
        if opt.get("f2ts") and late[0]: i = {7: 12, 8: 13, 6: 14, 11: 11}.get(i)
        if i is None: return
        if ts: a(f"{'s_memtime' if opt.get('cyc') else 's_memrealtime'} {sr(TS0 + 2 * i, 2)}")
    def srd(r, p, n):
        a(f"s_mov_b32 s{r}, s{p}\ns_mov_b32 s{r+1}, s{p+1}\ns_mov_b32 s{r+2}, {n}\ns_mov_b32 s{r+3}, 0x20000")
    def lds_spin(off, val, va, vt, sleep=1):
        L = a.newlabel("spin"); D = a.newlabel("spun")
        a(f"s_mov_b32 s{sCAP}, 0")
        a.label(L)
        a(f"""ds_read_b32 v{vt}, v{va} offset:{off}
        s_add_u32 s{sCAP}, s{sCAP}, 1
        s_waitcnt lgkmcnt(0)
        v_readfirstlane_b32 s{sF}, v{vt}
        s_cmp_gt_u32 s{sCAP}, {SPIN_CAP}
        s_cbranch_scc1 {D}""")
        if sleep:
            a(f"s_cmp_ge_u32 s{sF}, {val}\ns_cbranch_scc1 {D}\ns_sleep {sleep}\ns_branch {L}")
        else:
            a(f"s_cmp_lt_u32 s{sF}, {val}\ns_cbranch_scc1 {L}")
        a.label(D)
    def lds_inc(off, va, vt):
        a(f"v_mov_b32 v{vt}, 1\ns_mov_b64 exec, 1\nds_add_u32 v{va}, v{vt} offset:{off}\ns_mov_b64 exec, -1")
    def flag_poll(va, soff, vt, sleep=2, preissued=False):
        L = a.newlabel("poll"); D = a.newlabel("polled")
        a(f"s_mov_b32 s{sCAP}, 0")
        if preissued: a(f"s_branch {L}w")
        a.label(L)
        a(f"buffer_load_dwordx2 {vr(vt,2)}, v{va}, {sr(rWS,4)}, s{soff} offen sc1")
        a.label(L + "w")
        a(f"""s_add_u32 s{sCAP}, s{sCAP}, 1
        s_waitcnt vmcnt(0)
        v_cmp_ne_u64 vcc, {sr(sEP,2)}, {vr(vt,2)}
        s_cmp_gt_u32 s{sCAP}, {SPIN_CAP}
        s_cbranch_scc1 {D}
        s_cbranch_vccz {D}
        s_sleep {sleep}
        s_branch {L}""")
        a.label(D)
    sLOC = 25
    def grp_store(lines):
        X = a.newlabel("far"); Y = a.newlabel("std")
        a(f"s_cmp_eq_u32 s{sLOC}, 0\ns_cbranch_scc1 {X}")
        for l in lines: a(l)
        a.label(Y)
        far.append((X, Y, lines))
    far = []
    def flag_store(soff, vt):
        a(f"v_mov_b64 {vr(vt,2)}, {sr(sEP,2)}\ns_mov_b64 exec, 1")
        grp_store([f"buffer_store_dwordx2 {vr(vt,2)}, off, {sr(rWS,4)}, s{soff}"])
        a("s_mov_b64 exec, -1")
    def ts_dump():
        if opt.get("probe") and opt["probe"][0] == role[0]:
            L = a.newlabel("pad")
            a.label(L)
            a(f"s_sleep 2\ns_memrealtime s[96:97]\ns_waitcnt lgkmcnt(0)\ns_sub_u32 s96, s96, s98\ns_cmp_lt_u32 s96, 4000\ns_cbranch_scc1 {L}")
        if not ts: return
        a(f"""s_sleep 127
        s_sleep 127
        s_sleep 127
        s_waitcnt lgkmcnt(0)
        s_mul_i32 s{sA}, s2, 12
        s_add_u32 s{sA}, s{sA}, s{sW}
        s_lshl_b32 s{sA}, s{sA}, 6
        s_add_u32 s{sA}, s{sA}, {TSB}
        s_mov_b64 exec, 1""")
        for q in range(4):
            for j in range(4): a(f"v_mov_b32 v{4+j}, s{TS0 + 2 * (4 * q + j)}")
            a(f"buffer_store_dwordx4 v[4:7], off, {sr(rWS,4)}, s{sA} offset:{16*q}\ns_nop 1")
        a("s_waitcnt vmcnt(0)")
    def maxtree(S, d):
        a(f"v_max3_f32 v{d}, v{S}, v{S+1}, v{S+2}")
        for j in range(3, 15, 2): a(f"v_max3_f32 v{d}, v{d}, v{S+j}, v{S+j+1}")
        a(f"v_max_f32 v{d}, v{d}, v{S+15}")
    def e(S, i): return f"v_exp_f32 v{S+i}, v{S+i}"
    def c(S, j): return f"v_cvt_pk_bf16_f32 v{S + (j & 3) + 8 * (j >> 2)}, v{S+2*j}, v{S+2*j+1}"
    PFS = opt.get("pfstride", 7)
    def l2_prefetch(r, nbytes, vaddr, vdummy, part, nparts):
        chunk = 64 << PFS
        rounds = -(-nbytes // (chunk * 32))
        a(f"s_lshr_b32 s{sF}, s2, 3\ns_mul_i32 s{sF}, s{sF}, {chunk}")
        if part is not None:
            a(f"s_mul_i32 s{sCAP}, s{part}, {chunk*32}\ns_add_u32 s{sF}, s{sF}, s{sCAP}")
        for i in range(-(-rounds // nparts)):
            a(f"buffer_load_dword v{vdummy}, v{vaddr}, {sr(r,4)}, s{sF} offen")
            a(f"s_add_u32 s{sF}, s{sF}, {chunk*32*nparts}")

    FS_ = opt.get('fs', 5)
    NKT = opt.get('nkt', 2)
    BC = opt.get('bc', 0)
    TQ, TC, HLOC = opt.get("tq", 2), opt.get("tc", 4), opt.get("hloc", 0)
    def chip_touch(va, vd):
        a(f"s_mov_b32 exec_hi, 0x7ff\ns_mul_i32 s{sF}, s2, 5504")
        for p_ in (pW1, pW2):
            srd(rT, p_, 512 * W1P)
            a(f"buffer_load_dword v{vd}, v{va}, {sr(rT,4)}, s{sF} offen")
        srd(rT, pWO, 0x80000)
        a(f"s_mov_b64 exec, 0xffff\ns_lshl_b32 s{sF}, s2, 11\nbuffer_load_dword v{vd}, v{va}, {sr(rT,4)}, s{sF} offen\ns_mov_b64 exec, -1")
    def a_touch(lab):
        a(f"s_cmp_lg_u32 s{sW}, 7\ns_cbranch_scc1 {lab}\nv_lshlrev_b32 v14, 4, v0")
        chip_touch(14, 15)
        a.label(lab)
    if opt.get("probe"): a("s_memrealtime s[98:99]")
    a(f"""s_memrealtime {sr(sM,2)}
    s_load_dwordx16 s[8:23], s[0:1], 0
    s_load_dwordx8 s[24:31], s[0:1], 64
    s_load_dwordx2 s[32:33], s[0:1], 96
    s_cmp_ge_u32 s2, 256
    s_cbranch_scc1 L_end""")
    if ts:
        for i in range(16): a(f"s_mov_b32 s{TS0+2*i}, 0")
    TS(0)
    a(f"""v_lshrrev_b32 v1, 6, v0
    s_and_b32 s{sRB}, s2, 7
    v_readfirstlane_b32 s{sW}, v1
    s_lshl_b32 s{sRB}, s{sRB}, 2
    s_lshr_b32 s{sA}, s2, 6
    s_add_u32 s{sRB}, s{sRB}, s{sA}
    s_bfe_u32 s{sG}, s2, 0x30003
    s_lshr_b32 s{sKG}, s{sG}, 1
    s_and_b32 s{sCH}, s{sG}, 1
    v_and_b32 v0, 63, v0""")
    CP = opt.get("cpf", 1)
    if CP:
        a(f"""s_cmp_lg_u32 s{sW}, 10
        s_cbranch_scc1 L_nocp
        s_getpc_b64 s[48:49]
        v_lshlrev_b32 v2, 7, v0""")
        if CP == 1:
            a(f"""s_lshr_b32 s{sA}, s2, 3
            s_lshl_b32 s{sA}, s{sA}, 10
            v_add_u32 v2, s{sA}, v2
            v_min_u32 v2, 28672, v2
            s_mov_b64 exec, 0xff
            global_load_dword v6, v2, s[48:49]
            s_mov_b64 exec, -1""")
        else:
            a(f"""global_load_dword v6, v2, s[48:49]
            v_add_u32 v2, 8192, v2
            global_load_dword v6, v2, s[48:49]""")
        a.label("L_nocp")
    a(f"""s_cmp_ge_u32 s{sW}, 8
    s_cbranch_scc1 L_gwave""")

    vL4, vAD, vT = 0, 1, 2
    Q, K, V, S0, S1, ACC, CIN = 4, 8, 40, 104, 120, 136, 152
    sKVO, sKB = sE, 45
    sQS, sSS, sTG = (0, 1), (sI, sRT), 48
    a(f"""v_lshrrev_b32 v3, 5, v0
    v_and_b32 v4, 31, v0
    s_lshl_b32 s{sA}, s{sW}, 1
    v_add_u32 v3, s{sA}, v3
    v_lshlrev_b32 v1, 10, v3
    v_lshl_add_u32 v5, v4, 4, v1
    s_lshl_b32 s{sB}, s{sRB}, 16
    s_lshl_b32 s{sC}, s{sKG}, 14
    s_add_u32 s{sD}, s{sB}, s{sC}
    s_waitcnt lgkmcnt(0)""")
    srd(rX, pX, 0x200000)
    AW = opt.get("aw", 0)
    if AW:
        a(f"""s_cmp_eq_u32 s{sCH}, 0
        s_cselect_b32 s{rW}, s{pWK}, s{pWV}
        s_cselect_b32 s{rW+1}, s{pWK+1}, s{pWV+1}
        s_mov_b32 s{rW+2}, 16384
        s_mov_b32 s{rW+3}, 0x20000
        s_lshl_b32 s{sA}, s{sW}, 11
        s_add_u32 m0, s{sA}, {WKV}
        v_lshlrev_b32 v6, 4, v0
        buffer_load_dwordx4 v6, {sr(rW,4)}, s{sA} offen lds
        buffer_load_dwordx4 v6, {sr(rW,4)}, s{sA} offen offset:1024 lds""")
    a(f"""buffer_load_dwordx4 v[8:11], v5, {sr(rX,4)}, s{sD} offen
    buffer_load_dwordx4 v[12:15], v5, {sr(rX,4)}, s{sD} offen offset:512""")
    def x_load(it):
        a(f"""s_xor_b32 s{sD}, s{sC}, {it << 14}
        s_add_u32 s{sD}, s{sB}, s{sD}
        buffer_load_dwordx4 {vr(8+8*it,4)}, v5, {sr(rX,4)}, s{sD} offen
        buffer_load_dwordx4 {vr(12+8*it,4)}, v5, {sr(rX,4)}, s{sD} offen offset:512""")
    srd(rWS, pWS, WS_BYTES)
    vGC, vQW, vOZ, vCW, vKA, vVA, vFL, vF2 = CIN, CIN + 1, CIN + 2, CIN + 3, CIN + 4, CIN + 5, CIN + 6, CIN + 7
    for i in range(2): a(f"v_mov_b64 {vr(ACC+2*i,2)}, 0")
    a(f"""v_mov_b32 v{vGC}, {GC}
    v_lshlrev_b32 v{vFL}, {FS_}, v4
    v_and_b32 v6, 15, v0
    v_cmp_eq_u32 vcc, 0, v6
    ds_write_b128 v{vGC}, {vr(ACC,4)}
    ds_write_b128 v{vGC}, {vr(ACC,4)} offset:16
    ds_write_b128 v{vGC}, {vr(ACC,4)} offset:32
    ds_write_b128 v{vGC}, {vr(ACC,4)} offset:48
    v_xor_b32 v4, v4, v3
    v_lshl_add_u32 v2, v4, 4, v1
    v_lshlrev_b32 v3, 2, v3
    v_add_u32 v3, {RSTD}, v3
    v_mov_b32 v{CIN+8}, 0x3f803f80
    v_mov_b32 v{CIN+9}, 0x3f80
    v_mov_b32 v{CIN+10}, 0x3f800000
    v_cndmask_b32 v{V+4}, 0, v{CIN+8}, vcc
    v_cndmask_b32 v{V+5}, 0, v{CIN+8}, vcc""")
    for i in range(1, 16): a(f"v_mov_b64 {vr(V+8*(i>>1)+4+2*(i&1),2)}, {vr(V+4,2)}")
    a(f"""v_lshlrev_b32 v{vKA}, 4, v0
    v_lshrrev_b32 v4, {6 - NKT}, v0
    v_lshlrev_b32 v{vF2}, {FS_+1}, v4
    v_lshlrev_b32 v{vL4}, 2, v0
    s_mov_b32 s{sA}, 0x3b000000""")
    U, R0 = S0, S1
    cOne2, cLo, cHi = CIN + 8, CIN + 9, CIN + 10
    def red32(rs):
        pad = "s_nop 1\n" if len(rs) == 1 else ""
        for mode in ("quad_perm:[1,0,3,2]", "quad_perm:[2,3,0,1]", "row_half_mirror", "row_mirror"):
            a(pad + "\n".join(f"v_add_f32_dpp v{r}, v{r}, v{r} {mode} row_mask:0xf bank_mask:0xf" for r in rs))
        for r in rs: a(f"v_mov_b32 v{r+1}, v{r}")
        a(pad + "\n".join(f"v_permlane16_swap_b32 v{r}, v{r+1}" for r in rs))
        for r in rs: a(f"v_add_f32 v{r}, v{r}, v{r+1}")
    def centre(its):
        for j in range(8):
            for it in its:
                X, R = 8 + 8 * it, R0 + 2 * (it % 3)
                a(f"v_dot2_f32_bf16 v{R+(j&1)}, v{X+j}, v{cOne2}, {'0' if j < 2 else f'v{R+(j&1)}'}")
        a("s_nop 2" if len(its) == 1 else "s_nop 0")
        for it in its: a(f"v_add_f32 v{R0+2*(it%3)}, v{R0+2*(it%3)}, v{R0+2*(it%3)+1}")
        red32([R0 + 2 * (it % 3) for it in its])
        for it in its: a(f"v_mul_f32 v{R0+2*(it%3)}, 0xbb000000, v{R0+2*(it%3)}")
        for it in its:
            X, R = 8 + 8 * it, R0 + 2 * (it % 3)
            a(f"s_xor_b32 s{sD}, s{sC}, {it << 14}\nv_add_u32 v7, s{sD}, v2")
            for j in range(8):
                a(f"v_dot2_f32_bf16 v{U+2*j}, v{X+j}, v{cLo}, v{R}\nv_dot2_f32_bf16 v{U+2*j+1}, v{X+j}, v{cHi}, v{R}")
            for j in range(8):
                a(f"v_cvt_pk_bf16_f32 v{X+j}, v{U+2*j}, v{U+2*j+1}")
                if it: pass
                elif j == 0: a(f"v_pk_mul_f32 {vr(R,2)}, {vr(U,2)}, {vr(U,2)}")
                else: a(f"v_pk_fma_f32 {vr(R,2)}, {vr(U+2*j,2)}, {vr(U+2*j,2)}, {vr(R,2)}")
                if j == 3: a(f"ds_write_b128 v7, {vr(X,4)}")
            a(f"ds_write_b128 v7, {vr(X+4,4)} offset:512")
    def scales(its):
        for it in its: a(f"v_add_f32 v{R0+2*(it%3)}, v{R0+2*(it%3)}, v{R0+2*(it%3)+1}")
        red32([R0 + 2 * (it % 3) for it in its])
        a(f"v_mov_b32 v7, 0x3727c5ac")
        for it in its: a(f"v_fma_f32 v{R0+2*(it%3)}, v{R0+2*(it%3)}, s{sA}, v7")
        for it in its: a(f"v_rsq_f32 v{R0+2*(it%3)}, v{R0+2*(it%3)}")
        for it in its:
            a(f"s_xor_b32 s{sD}, s{sC}, {it << 14}\ns_lshr_b32 s{sD}, s{sD}, 8\nv_add_u32 v{R0+2*(it%3)+1}, s{sD}, v3")
            a(f"ds_write_b32 v{R0+2*(it%3)+1}, v{R0+2*(it%3)}")
    a("s_setprio 2\ns_waitcnt lgkmcnt(0)\ns_barrier")
    TS(8)
    for it in range(1, 4): x_load(it)
    a("s_waitcnt vmcnt(6)")
    TS(1)
    if AW: lds_inc(C_KT, vGC, 7)
    centre([0]); scales([0])
    lds_inc(C_L0, vGC, 7)
    a("s_setprio 1")
    TS(2)
    a("s_waitcnt vmcnt(0)")
    TS(12)
    centre([1, 2, 3])
    lds_inc(C_XN, vGC, vT)
    a("s_setprio 0")
    TS(3)
    a(f"s_mov_b32 s{sD}, 0xffff0000")
    for it in (1, 2, 3):
        X, R = 8 + 8 * it, R0 + 2 * (it % 3)
        for j in range(8): a(f"v_lshlrev_b32 v{U+2*j}, 16, v{X+j}\nv_and_b32 v{U+2*j+1}, s{sD}, v{X+j}")
        a(f"v_pk_mul_f32 {vr(R,2)}, {vr(U,2)}, {vr(U,2)}")
        for j in range(1, 8): a(f"v_pk_fma_f32 {vr(R,2)}, {vr(U+2*j,2)}, {vr(U+2*j,2)}, {vr(R,2)}")
    scales([1, 2, 3])
    lds_inc(C_RS, vGC, vT)
    TS(5)

    lds_spin(C_FL, 1, vGC, vT, sleep=1)
    a(f"""ds_read_b64 v[8:9], v{vGC} offset:{C_EPOCH}
    s_add_u32 s{sKB}, s{sW}, s{sG}
    s_and_b32 s{sKB}, s{sKB}, 7
    s_lshl_b32 s{sKVO}, s{sKB}, 13
    s_add_u32 s{sA}, s{sKVO}, 4096
    s_add_u32 s{sC}, s{sKVO}, {VF}
    s_add_u32 s{sD}, s{sKVO}, {VF+4096}
    s_lshr_b32 s{sF}, s{sW}, 2
    s_and_b32 s{sB}, s{sW}, 3
    s_mul_i32 s{sQS[0]}, s{sF}, {QST}
    s_sub_u32 s{sQS[1]}, {QF + QST}, s{sQS[0]}
    s_add_u32 s{sQS[0]}, s{sQS[0]}, {QF}
    s_mul_i32 s{sSS[0]}, s{sB}, {SLOT}
    s_add_u32 s{sSS[0]}, s{sSS[0]}, {OACC}
    s_mul_i32 s{sF}, s{sF}, {4 * SLOT}
    s_sub_u32 s{sSS[1]}, s{sSS[0]}, s{sF}
    s_add_u32 s{sSS[1]}, s{sSS[1]}, {4 * SLOT}
    s_add_u32 s{sSS[0]}, s{sSS[0]}, s{sF}
    s_waitcnt lgkmcnt(0)
    v_readfirstlane_b32 s{sEP}, v8
    v_readfirstlane_b32 s{sEP+1}, v9
    s_cmp_lg_u32 s{sW}, 0
    s_cbranch_scc1 L_nokt
    s_lshl_b32 s{sB}, s{sRB}, {FS_+3}
    s_add_u32 s{sB}, s{sB}, {FLG_KV}""")
    a(f"s_sleep {opt.get('kt0', 4)}")
    flag_poll(vF2, sB, 12, sleep=2)
    a(f"""s_lshl_b32 s{sB}, s{sRB}, 11
    v_add_u32 v12, {KT}, v{vKA}
    buffer_load_dwordx4 {vr(K,4)}, v{vKA}, {sr(rWS,4)}, s{sB} offen sc1""")
    if NKT == 2: a(f"buffer_load_dwordx4 {vr(K+8,4)}, v{vKA}, {sr(rWS,4)}, s{sB} offen offset:1024 sc1")
    lds_inc(C_FL, vGC, vT)
    a(f"""s_waitcnt vmcnt(0)
    ds_write_b128 v12, {vr(K,4)}""")
    if NKT == 2: a(f"ds_write_b128 v12, {vr(K+8,4)} offset:1024")
    lds_inc(C_RS, vGC, vT)
    TS(11)
    a.label("L_nokt")
    if opt.get("gate", 1) == 1: lds_spin(C_FL, 2, vGC, vT, sleep=1)
    elif opt.get("g0"): a(f"s_sleep {opt['g0']}")
    a(f"""s_lshl_b32 s{sB}, s{sKB}, {FS_+5}
    s_add_u32 s{sB}, s{sB}, {FLG_KV}""")
    if opt.get("pprio"): a("s_setprio 3")
    flag_poll(vFL, sB, 12, sleep=opt.get("kvsleep", 4))
    if opt.get("pprio"): a("s_setprio 0")
    if opt.get("gate", 1) == 2: lds_spin(C_FL, 2, vGC, vT, sleep=0)
    if opt.get("wgate"):
        lds_inc(C_KT, vGC, vT)
        lds_spin(C_KT, 8, vGC, vT, sleep=0)
    TS(4)
    def ldK(t): a(f"buffer_load_dwordx4 {vr(K+4*t,4)}, v{vKA}, {sr(rWS,4)}, s{sKVO if t < 4 else sA} offen offset:{(t&3)*1024} sc1")
    def ldV(t): a(f"buffer_load_dwordx4 {vr(V+8*t,4)}, v{vKA}, {sr(rWS,4)}, s{sC if t < 4 else sD} offen offset:{(t&3)*1024} sc1")
    ldK(0)
    for t in range(7):
        ldK(t + 1); ldV(t)
    ldV(7)
    lds_inc(C_KV, vGC, vT)
    TS(10)
    lds_spin(C_QREADY, 4, vGC, vT, sleep=0)
    TS(6)
    if ts: a(f"s_memtime {sr(TS0+26,2)}")
    def touches():
        if TC:
            a(f"""s_cmp_eq_u32 s{sW}, 7
            s_cbranch_scc1 L_notouch
            s_cmp_eq_u32 s{sW}, 0
            s_cselect_b32 s{rW}, s{pW1}, s{pW2}
            s_cselect_b32 s{rW+1}, s{pW1+1}, s{pW2+1}
            s_cmp_eq_u32 s{sW}, 2
            s_cselect_b32 s{rW}, s{pWO}, s{rW}
            s_cselect_b32 s{rW+1}, s{pWO+1}, s{rW+1}
            s_mov_b32 s{sF}, 5504
            s_cselect_b32 s{sF}, 2048, s{sF}
            s_mul_i32 s{sA}, s2, s{sF}
            s_cmp_lt_u32 s{sW}, 3
            s_cbranch_scc1 L_touch
            s_mov_b32 s{rW}, s{pWS}
            s_mov_b32 s{rW+1}, s{pWS+1}
            s_lshl_b32 s{sA}, s{sRB}, 4
            s_add_u32 s{sA}, s{sA}, s{sG}
            s_lshl_b32 s{sA}, s{sA}, 12
            s_add_u32 s{sA}, s{sA}, {OF}
            s_lshl_b32 s{sB}, s{sRB}, 3
            s_add_u32 s{sB}, s{sB}, s{sG}
            s_lshl_b32 s{sB}, s{sB}, 7
            s_add_u32 s{sB}, s{sB}, {FLG_H}
            s_cmp_lt_u32 s{sW}, 5
            s_cselect_b32 s{sA}, s{sA}, s{sB}
            s_cselect_b32 s{sF}, 4096, 64
            s_and_b32 s{sB}, s{sW}, 1
            s_lshl_b32 s{sB}, s{sB}, 15
            s_add_u32 s{sA}, s{sA}, s{sB}""")
            a.label("L_touch")
            a(f"""s_add_u32 s{rW+2}, s{sA}, s{sF}
            s_mov_b32 s{rW+3}, 0x20000
            s_mov_b32 m0, {QF + QST + B_W}
            v_lshlrev_b32 v{vT}, 5, v{vL4}
            s_mov_b32 exec_hi, 0x7ff
            buffer_load_dword v{vT}, {sr(rW,4)}, s{sA} offen lds
            s_mov_b32 exec_hi, -1""")
            a.label("L_notouch")
    ph = lambda s_: (s_ >> 1) & 1
    qoff = lambda s_: (4 * (s_ >> 2) + 2 * (s_ & 1)) * QST
    soff = lambda s_: (s_ & 1) * 8 * SLOT
    tag = lambda s_: sTG + 2 * (s_ >> 2) + ph(s_)
    def load_q(s_):
        return [f"v_lshl_add_u32 v{vAD}, v{vL4}, 2, s{sQS[ph(s_)]}", f"v_and_b32 v{vT}, 0x7f, v{vL4}",
                f"ds_read_b128 {vr(Q,4)}, v{vAD} offset:{qoff(s_)}", f"v_lshl_add_u32 v{vT}, v{vT}, 1, s{sQS[ph(s_)]}",
                f"ds_read_b64 {vr(CIN,2)}, v{vT} offset:{qoff(s_) + 1024}"]
    def cin_fill():
        for j in range(1, 8): a(f"v_mov_b64 {vr(CIN+2*j,2)}, {vr(CIN,2)}")
    def QK(t, S): return f"{MF32} {vr(S,16)}, {vr(K+4*t,4)}, {vr(Q,4)}, {vr(CIN,16)}"
    def PV(t, hf, S, zero=False): return f"{MF32} {vr(ACC,16)}, {vr(V+8*t+4*hf,4)}, {vr(S+8*hf,4)}, {'0' if zero else vr(ACC,16)}"
    def adr(s_): return [f"v_lshl_add_u32 v{vAD}, v{vL4}, 2, s{sSS[ph(s_)]}", f"v_add_u32 v{vT}, s{sSS[ph(s_)]}, v{vL4}"]
    def put(s_):
        return [adr(s_), [f"v_writelane_b32 v{ACC}, s{tag(s_)}, 63", f"ds_write_b128 v{vAD}, {vr(ACC+8,4)} offset:{soff(s_)}"],
                [f"ds_write_b128 v{vAD}, {vr(ACC+12,4)} offset:{soff(s_)+1024}"], [f"ds_write_b32 v{vT}, v{ACC} offset:{soff(s_)+2048}"]]
    def get(s_):
        return [f"ds_read_b32 v{ACC}, v{vT} offset:{soff(s_)+2048}", f"ds_read_b128 {vr(ACC+8,4)}, v{vAD} offset:{soff(s_)}",
                f"ds_read_b128 {vr(ACC+12,4)}, v{vAD} offset:{soff(s_)+1024}"]
    def vswap(t):
        for j in range(4): a(f"v_permlane16_swap_b32 v{V+8*t+4+j}, v{V+8*t+j}")
    for l in load_q(0): a(l)
    a("s_setprio 2")
    for j in range(4): a(f"s_add_u32 s{sTG+j}, s{sEP}, {j+1}")
    a("s_waitcnt lgkmcnt(0)")
    cin_fill()
    a("s_waitcnt vmcnt(15)\ns_nop 0")
    a(QK(0, S0))
    a("s_nop 10\ns_waitcnt vmcnt(14)")
    a.label("L_atop")
    SS = [S0, S1]
    VW = [12, 10, 8, 6, 4, 2, 1, 0]
    std = "e0 e1 P1 e2 e3 c0 e4 e5 c1 QK e6 e7 c2 e8 c3 e9 e10 P0 e11 c4 e12 e13 c5 e14 e15 c6 c7"
    late1 = "e0 e1 e2 e3 c0 P1 e4 e5 c1 e6 e7 QK c2 e8 c3 e9 e10 e11 P0 c4 e12 e13 c5 e14 e15 c6 c7"
    PRI = dict(opt.get("pri", [(10, 1), (19, 0), (21, 2), (31, 1), (39, 0), (41, 2), (55, 1), (62, 0)]))
    stubs = []
    for s_ in range(8):
        orders = {6: "e0 e1 P1 e2 e3 c0 L L e4 e5 c1 QK e6 L L L e7 c2 e8 c3 e9 e10 P0 e11 c4 e12 e13 c5 e14 e15 c6 c7",
                  7: "e0 e1 P1 e2 G M e3 c0 e4 e5 c1 QK e6 e7 c2 e8 c3 e9 e10 P0 e11 X c4 e12 e13 c5 e14 e15 c6 c7"}
        fl = []
        if s_ == 0:
            orders[0] = std.replace("P1 ", "")
            for t in range(8): orders[t] = orders.get(t, std).replace("e9 e10 P0", "W e9 e10 P0")
        elif ph(s_):
            orders[0] = "e0 e1 P1 e2 e3 c0 e4 e5 c1 QK e6 e7 c2 F e8 c3 F e9 F e10 F F e11 c4 e12 e13 c5 e14 e15 c6 c7 Y P0"
            orders[1] = late1
            fl = put(s_ - 1) + [(adr(s_) if ph(s_ - 1) != ph(s_) else []) + get(s_)]
        else:
            orders[0] = "e0 e1 P1 e2 e3 c0 e4 e5 c1 QK e6 e7 c2 F e8 c3 F e9 F e10 F e11 P0 c4 e12 e13 c5 e14 e15 c6 c7"
            fl = put(s_ - 1)
        if s_ == 7:
            orders[6] = std; orders[7] = std.replace("QK ", "")
        lq = load_q(s_ + 1) if s_ < 7 else []
        if s_ in (4, 5):
            lq[-1] += f"\nv_mov_b32 v{vAD}, s{sSS[0]}\nds_read_b32 v{vT+1}, v{vAD} offset:{soff(s_) + B_TAG}"
        for t in range(8):
            cur, nxt = SS[t & 1], SS[(t + 1) & 1]
            if 8 * s_ + t in PRI: a(f"s_setprio {PRI[8 * s_ + t]}")
            for tok in orders.get(t, std).split():
                if tok[0] == "e": a(e(cur, int(tok[1:])))
                elif tok[0] == "c": a(c(cur, int(tok[1:])))
                elif tok == "P1": a(PV((t - 1) & 7, 1, nxt))
                elif tok == "P0": a(PV(t, 0, cur, zero=(t == 0 and not ph(s_))))
                elif tok == "QK": a(QK((t + 1) & 7, nxt))
                elif tok == "W":
                    a(f"s_waitcnt vmcnt({VW[t]})")
                    vswap(t)
                elif tok == "G": a("s_waitcnt lgkmcnt(0)")
                elif tok == "M": cin_fill()
                elif tok == "F": a("\n".join(fl.pop(0)))
                elif tok == "L": a(lq.pop(0))
                elif tok == "Y":
                    a.label(f"L_got{s_}")
                    a(f"""s_waitcnt lgkmcnt(0)
                    v_readlane_b32 s{sA}, v{ACC}, 63
                    s_nop 0
                    s_cmp_lg_u32 s{sA}, s{tag(s_ - 2)}
                    s_cbranch_scc1 L_wait{s_}""")
                    a.label(f"L_go{s_}")
                    stubs.append((f"L_wait{s_}", f"L_go{s_}", f"L_got{s_}", get(s_), 1))
                elif tok == "X" and s_ == 0: touches()
                elif tok == "X" and s_ in (4, 5):
                    a.label(f"L_grd{s_}")
                    a(f"""v_readfirstlane_b32 s{sA}, v{vT+1}
                    s_nop 0
                    s_cmp_lg_u32 s{sA}, s{sEP}
                    s_cbranch_scc1 L_gw{s_}""")
                    a.label(f"L_gok{s_}")
                    stubs.append((f"L_gw{s_}", f"L_gok{s_}", f"L_grd{s_}", [f"ds_read_b32 v{vT+1}, v{vAD} offset:{soff(s_) + B_TAG}", "s_waitcnt lgkmcnt(0)"], 0x10000 if s_ == 5 else (1 if opt.get("g4") else 0x10000)))
    TS(7)
    a("s_setprio 2\ns_nop 0")
    a(PV(7, 1, S1))
    fl = put(7)
    a("\n".join(fl[0]) + "\ns_nop 9")
    for x in fl[1:]: a("\n".join(x))
    if opt.get("delay_f1", 0) > 8:
        a(f"v_mov_b32 v4, {GC}")
        lds_inc(C_ABAR, 4, 5)
    if ts:
        a(f"s_memtime {sr(TS0+28,2)}\ns_waitcnt lgkmcnt(0)\ns_sub_u32 s{TS0+28}, s{TS0+28}, s{TS0+26}")
    TS(9)
    ts_dump()
    a("s_endpgm")
    for w_, go, again, rd, inc in stubs:
        a.label(w_)
        if ts: a(f"s_add_u32 s{TS0+30}, s{TS0+30}, {inc}")
        a(f"""s_add_u32 s{sCAP}, s{sCAP}, 1
        s_cmp_gt_u32 s{sCAP}, {SPIN_CAP}
        s_cbranch_scc1 {go}
        s_sleep {opt.get("psleep", 2)}""")
        for l in rd: a(l)
        a(f"s_branch {again}")
    a.label("L_vs0")

    a(".p2align 6")
    a.label("L_gwave")
    role[0] = "G"
    gGC, gL16, gSW, gTR, gH, gR = 1, 2, 3, 4, 5, 6
    a(f"""s_setprio 3
    s_sub_u32 s{sI}, s{sW}, 8
    v_lshlrev_b32 v{gL16}, 4, v0
    v_lshlrev_b32 v10, {PFS}, v0
    s_sub_u32 s{sE}, s{sI}, 1
    s_waitcnt lgkmcnt(0)
    s_cmp_lg_u32 s{sI}, 0
    s_cbranch_scc1 L_g123""")
    a(f"""s_cmp_eq_u32 s{sCH}, 0
    s_cselect_b32 s{rW}, s{pWK}, s{pWV}
    s_cselect_b32 s{rW+1}, s{pWK+1}, s{pWV+1}
    s_mov_b32 s{rW+2}, 16384
    s_mov_b32 s{rW+3}, 0x20000""")
    for q in range(0 if AW else 4):
        a(f"s_mov_b32 m0, {WKV + q * 4096}\ns_mov_b32 s{sA}, {q*4096}")
        for j in range(4): a(f"buffer_load_dwordx4 v{gL16}, {sr(rW,4)}, s{sA} offen offset:{j*1024} lds")
    a("s_branch L_gcom")
    a.label("L_g123")
    srd(rW, pWQ, 0x80000)
    if TQ == 1:
        a(f"s_cmp_eq_u32 s{sI}, 3\ns_cbranch_scc1 L_gcom")
        l2_prefetch(rW, 0x80000, 10, 6, sE, 2)
    if TQ in (2, 3):
        a(f"s_cmp_lg_u32 s{sI}, 1\ns_cbranch_scc1 L_gcom")
        a(f"s_mov_b64 exec, 0xffff\ns_lshl_b32 s{sF}, s2, 11\nbuffer_load_dword v6, v10, {sr(rW,4)}, s{sF} offen\ns_mov_b64 exec, -1")
    a.label("L_gcom")
    srd(rWS, pWS, WS_BYTES)
    srd(rT, pDBG, 256)
    a(f"""s_lshr_b32 s{sRT}, s{sI}, 1
    s_and_b32 s{sCT}, s{sI}, 1
    v_lshrrev_b32 v7, 3, v0
    v_lshrrev_b32 v8, 2, v0
    v_and_b32 v8, 4, v8
    v_and_b32 v9, 7, v0
    v_xor_b32 v8, v8, v9
    v_lshlrev_b32 v8, 4, v8
    v_lshl_add_u32 v{gSW}, v7, 10, v8
    v_mov_b32 v{gGC}, {GC}
    v_lshrrev_b32 v{gH}, 5, v0
    v_and_b32 v7, 3, v0
    v_and_b32 v8, 16, v0
    v_lshlrev_b32 v8, 1, v8
    v_lshl_add_u32 v{gTR}, v7, 3, v8
    s_cmp_eq_u32 s{sI}, 0
    s_cbranch_scc1 L_g0""")
    a(f"""s_lshl_b32 s{sB}, s{sE}, 13
    s_lshl_b32 s{sC}, s{sG}, 7
    s_add_u32 s{sB}, s{sB}, s{sC}
    s_lshl_b32 s{sA}, s{sE}, 10
    s_add_u32 s{sA}, s{sA}, {RING}
    s_setprio 0
    s_barrier
    s_cmp_lg_u32 s{sI}, 3
    s_cbranch_scc1 L_wqpre
    s_setprio 3
    s_mov_b32 s{sCAP}, 0""")
    a.label("L_epoch")
    a(f"""buffer_load_dwordx2 v[14:15], off, {sr(rT,4)}, 0 sc1
    s_add_u32 s{sCAP}, s{sCAP}, 1
    s_cmp_gt_u32 s{sCAP}, {SPIN_CAP}
    s_cbranch_scc1 L_gb2
    s_waitcnt vmcnt(0)
    v_readfirstlane_b32 s{sEP+1}, v15
    s_nop 0
    s_cmp_eq_u32 s{sEP+1}, 0
    s_cbranch_scc1 L_epoch
    ds_write_b64 v{gGC}, v[14:15] offset:{C_EPOCH}""")
    TS(1)
    if opt.get("z_t1"):
        srd(rW, pW1, 512 * W1P)
        a(f"s_mov_b32 exec_hi, 0x7ff\ns_mul_i32 s{sF}, s2, 5504\nbuffer_load_dword v6, v10, {sr(rW,4)}, s{sF} offen\ns_mov_b64 exec, -1")
    srd(rW, pB1, W1P)
    a(f"buffer_load_dword v6, v10, {sr(rW,4)}, 0 offen")
    srd(rW, pB2, 1024)
    a(f"buffer_load_dword v6, v10, {sr(rW,4)}, 0 offen\ns_branch L_gb2")
    a.label("L_wqpre")
    if TQ in (3, 4):
        if opt.get("tqs"): a(f"s_sleep {opt['tqs']}")
        l2_prefetch(rW, 0x80000, 10, 6, sE, 2)
        if opt.get("tqw"): a("s_waitcnt vmcnt(0)")
    a.label("L_wqloop")
    a(f"""s_mov_b32 m0, s{sA}
    s_add_u32 s{sA}, s{sA}, 2048
    buffer_load_dwordx4 v{gSW}, {sr(rW,4)}, s{sB} offen lds
    s_add_u32 s{sB}, s{sB}, 16384
    s_waitcnt vmcnt({opt.get("wqd", 10)})
    s_cmp_lt_u32 s{sA}, {RING + 65536}
    s_cbranch_scc1 L_wqloop
    s_setprio 3
    s_waitcnt vmcnt(16)""")
    lds_inc(C_WQ, gGC, 7)
    a("s_branch L_gb2")
    a.label("L_g0")
    WF, XF, DD = 32, 96, 160
    a(f"""s_cmp_lg_u32 s2, 0
    s_cbranch_scc1 L_noep
    v_mov_b32 v10, s{sM}
    v_mov_b32 v11, s{sM+1}
    v_or_b32 v11, 0x80000000, v11
    v_mov_b64 v[12:13], 0
    s_mov_b64 exec, 1
    buffer_atomic_cmpswap_x2 v[10:13], off, {sr(rT,4)}, 0 sc1
    s_mov_b64 exec, -1
    s_nop 0""")
    a.label("L_noep")
    if opt.get("prewr"):
        a(f"""s_lshl_b32 s{sA}, s{sRB}, 3
        s_add_u32 s{sA}, s{sA}, s{sG}
        s_lshl_b32 s{sA}, s{sA}, 7
        s_add_u32 s{sA}, s{sA}, {FLG_KV}
        v_mov_b64 v[16:17], 0
        v_mov_b64 v[18:19], 0
        s_mov_b64 exec, 0xff
        buffer_store_dwordx4 v[16:19], v{gL16}, {sr(rWS,4)}, s{sA} offen sc1
        s_mov_b64 exec, -1""")
    a("s_barrier")
    a(f"""v_and_b32 v7, 15, v0
    v_lshrrev_b32 v8, 4, v0
    v_lshlrev_b32 v9, 3, v7
    v_lshl_add_u32 v9, v8, 8, v9
    v_add_u32 v9, {WKV}, v9
    s_lshl_b32 s{sA}, s{sKG}, 14
    v_xor_b32 v10, v7, v8
    v_lshlrev_b32 v10, 4, v10
    v_lshl_add_u32 v10, v7, 10, v10
    v_add_u32 v10, s{sA}, v10
    v_xor_b32 v11, 64, v10
    v_xor_b32 v12, 0x80, v10
    v_xor_b32 v13, 0xc0, v10
    s_lshl_b32 s{sA}, s{sKG}, 6
    s_add_u32 s{sA}, s{sA}, {RSTD}
    v_lshl_add_u32 v20, v7, 2, s{sA}
    v_lshl_add_u32 v21, v8, 4, s{sA}
    s_cmp_eq_u32 s{sCH}, 0
    s_cselect_b32 s{sD}, {KF}, {VF}
    v_and_b32 v16, 1, v8
    v_lshlrev_b32 v16, 9, v16
    v_lshrrev_b32 v17, 1, v8
    v_lshl_add_u32 v16, v17, 3, v16
    v_lshl_add_u32 v16, v7, 4, v16
    s_xor_b32 s{sA}, s{sKG}, s{sCH}
    s_and_b32 s{sA}, s{sA}, 1
    s_lshl_b32 s{sA}, s{sA}, 8
    s_add_u32 s{sD}, s{sD}, s{sA}
    s_lshl_b32 s{sA}, s{sRB}, 1
    s_lshr_b32 s{sB}, s{sKG}, 1
    s_add_u32 s{sA}, s{sA}, s{sB}
    s_lshl_b32 s{sA}, s{sA}, 10
    s_add_u32 s{sD}, s{sD}, s{sA}
    s_lshl_b32 s{sA}, s{sRB}, 3
    s_add_u32 s{sA}, s{sA}, s{sG}
    s_lshl_b32 s{sA}, s{sA}, {FS_}
    s_add_u32 s{sA}, s{sA}, {FLG_KV}
    s_waitcnt vmcnt(0)""")
    if AW: lds_spin(C_KT, 8, gGC, 14, sleep=0)
    for ks in range(16):
        a(f"ds_read_b64_tr_b16 {vr(WF+4*ks,2)}, v9 offset:{ks*1024}\nds_read_b64_tr_b16 {vr(WF+4*ks+2,2)}, v9 offset:{ks*1024+128}")
    TS(1)
    lds_spin(C_L0, 8, gGC, 14, sleep=0)
    TS(2)
    for ks in range(16):
        a(f"ds_read_b128 {vr(XF+4*ks,4)}, v{10+(ks&3)} offset:{(ks>>2)*256}")
    a(f"""s_cmp_eq_u32 s{sCH}, 0
    s_cbranch_scc0 L_vchain""")
    for sw in (False, True):
        if sw: a.label("L_vchain")
        for ks in range(16):
            A_, B_ = (XF, WF) if sw else (WF, XF)
            if ks % 4 == 0: a(f"s_waitcnt lgkmcnt({12 - ks})")
            if ks == 12: a(f"ds_read_b128 v[24:27], v21" if sw else "ds_read_b32 v24, v20")
            a(f"v_mfma_f32_16x16x32_bf16 {vr(DD,4)}, {vr(A_+4*ks,4)}, {vr(B_+4*ks,4)}, {'0' if ks == 0 else vr(DD,4)}")
        if not sw: a("s_waitcnt lgkmcnt(0)\nv_mov_b32 v25, v24\nv_mov_b64 v[26:27], v[24:25]\ns_branch L_kvst")
    a("s_waitcnt lgkmcnt(0)\ns_nop 2")
    a.label("L_kvst")
    a(f"""s_nop 3
    v_pk_mul_f32 {vr(DD,2)}, {vr(DD,2)}, v[24:25]
    v_pk_mul_f32 {vr(DD+2,2)}, {vr(DD+2,2)}, v[26:27]
    v_cvt_pk_bf16_f32 v18, v{DD}, v{DD+1}
    v_cvt_pk_bf16_f32 v19, v{DD+2}, v{DD+3}
    buffer_store_dwordx2 v[18:19], v16, {sr(rWS,4)}, s{sD} offen sc1""")
    TS(13)
    lds_spin(C_EPOCH + 4, 1, gGC, 14, sleep=0)
    a(f"""ds_read_b64 v[20:21], v{gGC} offset:{C_EPOCH}
    s_getreg_b32 s{sD}, hwreg(HW_REG_XCC_ID)
    v_mov_b32 v22, s{sD}
    v_mov_b32 v23, 0
    s_mov_b64 exec, 1
    s_waitcnt vmcnt(0) lgkmcnt(0)
    buffer_store_dwordx4 v[20:23], off, {sr(rWS,4)}, s{sA} sc1
    s_mov_b64 exec, -1""")
    lds_inc(C_FL, gGC, 14)
    TS(3)
    a.label("L_gb2")
    QA, QW, QX = 8, 24, 152
    a(f"""v_bfe_u32 v9, v0, 2, 2
    v_lshrrev_b32 v8, 1, v9
    v_xor_b32 v8, s{sCT}, v8
    v_lshl_add_u32 v8, v8, 6, v{gTR}
    v_lshl_add_u32 v8, v9, 7, v8
    v_lshl_add_u32 v8, v{gH}, 10, v8
    v_add_u32 v8, {RING}, v8""")
    a(f"v_mov_b32 v{gTR}, v8")
    kord = [aa + 8 * (2 * hb + b) for hb in range(2) for aa in range(8) for b in range(2)]
    def w_pre(hb):
        for n in range(16 * hb, 16 * hb + 16):
            ks = kord[n]
            a(f"ds_read_b64_tr_b16 {vr(QW+4*n,2)}, v{gTR} offset:{ks*2048}\nds_read_b64_tr_b16 {vr(QW+4*n+2,2)}, v{gTR} offset:{ks*2048+512}")
    a(f"""v_and_b32 v7, 31, v0
    v_and_b32 v9, 15, v0
    v_xor_b32 v9, v9, v{gH}
    v_lshlrev_b32 v9, 4, v9
    v_lshl_add_u32 v7, v7, 10, v9
    s_lshl_b32 s{sC}, s{sRT}, 15
    v_add_u32 v7, s{sC}, v7""")
    sRNG = 35
    sT1, sT2, sNG = 0, 1, sE
    sN, sSO = sA, sB
    srd(rW, pW1, 512 * W1P)
    a(f"""s_lshl_b32 s{sT1}, s{sG}, 2
    s_add_u32 s{sT1}, s{sT1}, s{sI}
    s_sub_u32 s{sT2}, 1, s{sRT}
    s_lshl_b32 s{sT2}, s{sT2}, 3
    s_add_u32 s{sT2}, s{sT2}, s{sG}
    s_add_u32 s{sT2}, s{sT2}, 32
    s_cmp_lt_u32 s{sT2}, 43
    s_cselect_b32 s{sNG}, 12, 8
    s_mul_i32 s{sRNG}, s{sI}, {RSZ}
    s_add_u32 s{sRNG}, s{sRNG}, {RING}
    s_lshl_b32 s{sSO}, s{sT1}, 6""")
    lds_spin(C_WQ, 2, gGC, 9, sleep=1)
    w_pre(0)
    a(f"""s_sub_u32 s{sD}, s{sI}, 1
    s_cmp_ge_u32 s{sD}, 2
    s_cbranch_scc1 L_wq2
    s_waitcnt vmcnt(0)""")
    lds_inc(C_WQ2, gGC, 9)
    a.label("L_wq2")
    lds_spin(C_WQ2, 2, gGC, 9, sleep=1)
    w_pre(1)
    TS(12)
    lds_spin(C_XN, 8, gGC, 9, sleep=1)
    TS(4)
    land = {}
    cur_a = [0]
    def xread(n, dst):
        aa, b = kord[n] & 7, kord[n] >> 3
        if aa != cur_a[0]: a(f"v_xor_b32 v7, {((aa ^ cur_a[0]) * 32)}, v7")
        cur_a[0] = aa
        a(f"ds_read_b128 {vr(dst,4)}, v7 offset:{b*256}")
        land[n] = dst
    ordr = sorted(range(32), key=lambda n: (kord[n] & 7, kord[n] >> 3))
    for i_ in range(4): xread(ordr[i_], QX + 4 * i_)
    nxt_rd = 4
    for i_, n in enumerate(ordr):
        a(f"s_waitcnt lgkmcnt({nxt_rd - i_ - 1})")
        a(f"{MF32} {vr(QA,16)}, {vr(QW+4*n,4)}, {vr(land[n],4)}, {'0' if i_ == 0 else vr(QA,16)}")
        if nxt_rd < 32: xread(ordr[nxt_rd], land[n]); nxt_rd += 1
        if i_ < 5 and nxt_rd < 32: xread(ordr[nxt_rd], QW + 4 * n); nxt_rd += 1
    gRS = 166
    if opt.get("pro"): TS(9)
    T0 = QX
    a(f"""v_and_b32 v7, 31, v0
    v_lshlrev_b32 v{T0}, 2, v7
    v_add_u32 v{T0}, {RSTD}, v{T0}
    v_add_u32 v{T0+1}, {KT}, v{gL16}
    s_mov_b32 s{sCAP}, 0""")
    a.label("L_rs")
    a(f"""ds_read_b32 v{T0+12}, v{gGC} offset:{C_RS}
    ds_read_b32 v{gRS}, v{T0}
    ds_read_b32 v{gRS+1}, v{T0} offset:128
    ds_read_b64 {vr(T0+2,2)}, v{gGC} offset:{C_EPOCH}
    ds_read_b128 {vr(T0+4,4)}, v{T0+1}
    ds_read_b128 v[100:103], v{T0+1} offset:1024
    s_add_u32 s{sCAP}, s{sCAP}, 1
    s_cmp_gt_u32 s{sCAP}, {SPIN_CAP}
    s_cbranch_scc1 L_rsd
    s_waitcnt lgkmcnt(5)
    v_readfirstlane_b32 s{sF}, v{T0+12}
    s_nop 0
    s_cmp_lt_u32 s{sF}, 9
    s_cbranch_scc1 L_rs""")
    a.label("L_rsd")
    a(f"""    s_lshl_b32 s{sA}, s{sCT}, 2
    s_add_u32 s{sA}, s{sA}, s{sRT}
    s_mul_i32 s{sA}, s{sA}, {QST}
    s_add_u32 s{sA}, s{sA}, {QF}
    v_add_u32 v{T0+10}, s{sA}, v{gL16}
    v_lshl_add_u32 v{T0+11}, v7, 3, s{sA}
    s_cmp_eq_u32 s{sRT}, 0
    s_cselect_b64 vcc, -1, 0
    s_waitcnt lgkmcnt(0)
    v_readfirstlane_b32 s{sEP}, v{T0+2}
    v_cndmask_b32 v{T0+8}, v{gRS+1}, v{gRS}, vcc
    v_readfirstlane_b32 s{sEP+1}, v{T0+3}
    v_mul_f32 v{T0+8}, 0x3eb8aa3b, v{T0+8}""")
    if opt.get("pro"): TS(10)
    for hd in range(2):
        for j in range(4 * hd, 4 * hd + 4): a(f"v_pk_mul_f32 {vr(QA+2*j,2)}, {vr(QA+2*j,2)}, {vr(T0+8,2)} op_sel_hi:[1,0]")
        for j in range(4 * hd, 4 * hd + 4): a(f"v_cvt_pk_bf16_f32 v{QA+j}, v{QA+2*j}, v{QA+2*j+1}")
        a(f"ds_write_b128 v{T0+10}, {vr(QA+4*hd,4)} offset:{2*QST*hd}\ns_nop 0")
        a(f"{MF32} {vr(24+16*hd,16)}, {vr(T0+4,4)}, {vr(QA+4*hd,4)}, 0")
        if NKT == 2: a(f"{MF32} {vr(68+16*hd,16)}, v[100:103], {vr(QA+4*hd,4)}, 0")
    a("s_nop 1")
    def max2(S, d):
        maxtree(S, d)
        if NKT == 2:
            for j in range(0, 16, 2): a(f"v_max3_f32 v{d}, v{d}, v{S+44+j}, v{S+45+j}")
    max2(24, 56)
    a("v_mov_b32 v57, v56\ns_nop 1\nv_permlane32_swap_b32 v56, v57")
    max2(40, 58)
    a(f"""v_mov_b32 v59, v58
    v_max_f32 v56, v56, v57
    v_sub_f32 v60, {-OFFS}, v56
    v_permlane32_swap_b32 v58, v59
    v_sub_f32 v61, {-OFFS}, v56
    v_max_f32 v58, v58, v59
    ds_write_b64 v{T0+11}, v[60:61] offset:1024
    v_sub_f32 v64, {-OFFS}, v58
    v_sub_f32 v65, {-OFFS}, v58
    ds_write_b64 v{T0+11}, v[64:65] offset:{2*QST+1024}""")
    lds_inc(C_QREADY, gGC, 26)
    TS(5)
    AC = [136, 104, 120, 88]
    XB = 136
    vB1, gXA, gXT, gWA, gWB, gV1 = 8, 16, 17, 18, 19, 20
    a(f"""v_lshrrev_b32 v44, 2, v0
    v_and_b32 v45, 3, v0
    v_mul_u32_u24 v44, {W1P}, v44
    v_lshl_add_u32 v{gV1}, v45, 4, v44
    v_add_u32 v{gV1+1}, {128*W1P-1024}, v{gV1}
    v_add_u32 v{gV1+2}, {2*(128*W1P-1024)}, v{gV1}
    v_add_u32 v{gV1+3}, {3*(128*W1P-1024)}, v{gV1}
    v_and_b32 v44, 16, v0
    v_lshlrev_b32 v44, 1, v44
    v_lshl_add_u32 v{gTR}, v45, 3, v44
    s_waitcnt vmcnt(0)""")
    def w1_dma1(b): return f"buffer_load_dwordx4 v{gV1+b}, {sr(rW,4)}, s{sSO} offen offset:{b*1024} lds"
    a(f"""v_lshlrev_b32 v40, 1, v7
    v_and_b32 v41, 7, v0
    v_lshlrev_b32 v41, {FS_}, v41
    v_and_b32 v44, 15, v0
    v_xor_b32 v44, v44, v{gH}
    v_lshlrev_b32 v44, 4, v44
    v_lshl_add_u32 v{gXA}, v7, 10, v44
    v_bfe_u32 v44, v0, 2, 2
    v_lshl_add_u32 v{gWB}, v44, 6, v{gTR}
    v_lshl_add_u32 v{gWB}, v{gH}, 9, v{gWB}
    v_add_u32 v{gWB}, s{sRNG}, v{gWB}""")
    a(f"""v_rcp_f32 v44, v{gRS}
    v_rcp_f32 v45, v{gRS+1}
    v_sub_u32 v48, v{gH}, 1
    s_mov_b32 s{sD}, 0xffff0000
    v_and_b32 v46, s{sD}, v44
    v_and_b32 v47, s{sD}, v45
    v_sub_f32 v44, v44, v46
    v_sub_f32 v45, v45, v47
    v_cvt_pk_bf16_f32 v12, v46, v44
    v_cvt_pk_bf16_f32 v14, v47, v45
    v_and_b32 v12, v48, v12
    v_and_b32 v14, v48, v14
    v_mov_b32 v9, 0
    v_mov_b64 v[10:11], 0
    v_mov_b32 v13, 0""")
    H0, H1 = 104, 120
    FB = [24, 56]
    FX = [88, 150]
    FX = [88, 152]
    def f1_reads(p, b):
        nx = 4 if not (p == 1 and b == 3) else 4
        return [f"ds_read_b64_tr_b16 {vr(FB[p]+8*b,2)}, v{gWA} offset:{b*1024}", f"ds_read_b64_tr_b16 {vr(FB[p]+8*b+2,2)}, v{gWA} offset:{b*1024+256}",
                f"ds_read_b128 {vr(FB[p]+8*b+4,4)}, v{gXT} offset:{b*256}", f"ds_read_b128 {vr(FX[p]+4*b,4)}, v{gXT} offset:{b*256+32768}"]
    gR2 = 6
    def bias():
        a(f"{MF32} {vr(H0,16)}, v[8:11], v[12:15], {vr(H0,16)}\n{MF32} {vr(H1,16)}, v[8:11], v[14:17], {vr(H1,16)}")
    def hzero():
        a(f"v_mfma_f32_32x32x8_bf16 {vr(H0,16)}, v[10:11], v[10:11], 0\nv_mfma_f32_32x32x8_bf16 {vr(H1,16)}, v[10:11], v[10:11], 0")
    a(f"""v_mul_f32 v{gR2}, v{gRS}, v{gRS}
    v_mul_f32 v{gR2+1}, v{gRS+1}, v{gRS+1}
    v_mov_b32 v{gWA}, v{gWB}
    v_mov_b32 v{gXT}, v{gXA}
    s_mov_b32 s{sN}, {4 if opt.get("z_skip") else 0}
    s_mov_b32 s{sM}, 0""")
    hzero()
    plan_lo = [(0, 22, 0, 22), (22, 22, 64, 68), (40, 21 + 128, 68, 77), (52, 21 + 128, 77, 86)]
    plan_hi = [(0, 26, 64, 72), (18, 26, 72, 80), (36, 18 + 128, 80, 86), (48, 16, 0, 64)]
    def pack(b): return sum(x << (8 * i) for i, x in enumerate(b))
    sPL, sSW, sS2 = 18, 19, 10
    a(f"s_mul_i32 s{sS2}, s{sCT}, {64*W1P}\ns_lshl_b32 s{sD}, s{sT2}, 6\ns_add_u32 s{sS2}, s{sS2}, s{sD}")
    a(f"s_mov_b32 s{sPL}, {pack(plan_hi[0])}")
    a(f"s_cmp_lt_u32 s{sG}, 3\ns_cselect_b32 s{sD}, 4, 0\ns_add_u32 s{sD}, s{sD}, s{sI}")
    for n, pl in enumerate(plan_hi + plan_lo):
        if n: a(f"s_cmp_eq_u32 s{sD}, {n}\ns_cselect_b32 s{sPL}, {pack(pl)}, s{sPL}")
    a(f"""s_lshr_b32 s{sD}, s{sPL}, 24
    s_mov_b32 s{rX}, s{pW2}
    s_mov_b32 s{rX+1}, s{pW2+1}
    s_lshl_b32 s{rX+2}, s{sD}, 14
    s_mov_b32 s{rX+3}, 0x20000
    s_and_b32 s{sSW}, s{sPL}, 0xff
    s_lshl_b32 s{sSW}, s{sSW}, 14
    s_lshl_b32 s{sD}, s{sG}, 7
    s_add_u32 s{sSW}, s{sSW}, s{sD}""")
    srd(rT, pB1, W1P)
    lds_spin(C_QREADY, 4, gGC, 56, sleep=0)
    lds_spin(C_KV, 8, gGC, 56, sleep=2)
    if opt.get("delay_f1"): lds_spin(C_ABAR, 8, gGC, 56, sleep=16)
    TS(15)
    late[0] = True
    for n in range(3):
        a(f"s_add_u32 m0, s{sRNG}, {n*4096}\ns_nop 0")
        for b in range(4): a(w1_dma1(b))
        a(f"s_add_u32 s{sSO}, s{sSO}, {16*W1P}")
    a(f"""s_lshl_b32 s{sC}, s{sT1}, 6
    s_lshl_b32 s{sD}, s{sT2}, 6
    s_lshl_b32 s{sF}, s{sRB}, {FS_+3}
    s_add_u32 s{sF}, s{sF}, {FLG_KV}
    buffer_load_ushort v8, v40, {sr(rT,4)}, s{sC} offen
    buffer_load_ushort v15, v40, {sr(rT,4)}, s{sD} offen
    buffer_load_dword v{AC[0]+2}, v41, {sr(rWS,4)}, s{sF} offen offset:8 sc1
    s_waitcnt vmcnt(11)""")
    for b in range(4):
        for l in f1_reads(0, b): a(l)
    TS(3)
    a(".p2align 6")
    a.label("L_f1loop")
    for p in range(2):
        a(f"""s_add_u32 m0, s{sM}, s{sRNG}
        s_add_u32 s{sM}, s{sM}, 4096
        s_cmp_lt_u32 s{sM}, {RSZ}
        s_cselect_b32 s{sM}, s{sM}, 0
        s_add_u32 s{sN}, s{sN}, 1
        s_lshr_b32 s{sD}, s{sN}, 3
        s_and_b32 s{sD}, s{sD}, s{sCT}
        s_lshl_b32 s{sD}, s{sD}, 2
        s_add_u32 s{sD}, s{sD}, s{sN}
        s_and_b32 s{sD}, s{sD}, 7
        s_lshl_b32 s{sD}, s{sD}, 5
        v_add_u32 v{gWA}, s{sM}, v{gWB}
        v_xor_b32 v{gXT}, s{sD}, v{gXA}""")
        if p == 1:
            a(f"""s_cmp_eq_u32 s{sN}, 6
            s_cselect_b32 s{sSO}, s{sS2}, s{sSO}
            s_add_u32 s{sD}, s{sN}, 2
            s_cmp_lt_u32 s{sD}, s{sNG}
            s_cselect_b32 s{rW+2}, s{rW+2}, 0""")
        for b in range(4):
            rd = f1_reads(1 - p, b)
            if not opt.get("x_nolg"): a("s_waitcnt lgkmcnt(12)")
            a(f"{MF32} {vr(H0,16)}, {vr(FB[p]+8*b,4)}, {vr(FB[p]+8*b+4,4)}, {vr(H0,16)}")
            a(w1_dma1(b))
            a(rd[2]); a(rd[3])
            pad(P1A)
            a(f"{MF32} {vr(H1,16)}, {vr(FB[p]+8*b,4)}, {vr(FX[p]+4*b,4)}, {vr(H1,16)}")
            a("s_waitcnt vmcnt(8)")
            a(rd[0]); a(rd[1])
            if b < 3: pad(P1B)
        a(f"s_add_u32 s{sSO}, s{sSO}, {16*W1P}")
    a(f"""s_cmp_lt_u32 s{sN}, 8
    s_cbranch_scc1 L_f1loop
    s_cmp_eq_u32 s{sN}, 10
    s_cbranch_scc1 L_f1pub""")
    TS(2)
    a(f"""s_getreg_b32 s{sD}, hwreg(HW_REG_XCC_ID)
    v_lshl_or_b32 v8, v8, 16, v8
    v_cmp_ne_u32 vcc, s{sD}, v{AC[0]+2}
    s_mul_i32 s{sD}, s{sRB}, 86
    s_lshl_b32 s{sC}, s{sT1}, 1
    s_add_u32 s{sD}, s{sD}, s{sC}
    s_lshl_b32 s{sD}, s{sD}, 11
    s_add_u32 s{sD}, s{sD}, {HF}
    s_mov_b32 s{sT1}, s{sT2}
    s_cmp_eq_u64 vcc, 0
    s_cselect_b32 s{sLOC}, {0 if opt.get("noloc") else 1}, 0
    s_cmp_eq_u32 s{sN}, 12
    s_cbranch_scc1 L_half""")
    bias()
    a(f"v_mov_b32 v8, v15\ns_nop 9")
    for rt, Hh in enumerate((H0, H1)):
        a.label(f"L_epi{rt}")
        for j in range(16): a(f"v_max_f32 v{Hh+j}, 0, v{Hh+j}")
        for j in range(8): a(f"v_pk_mul_f32 {vr(Hh+2*j,2)}, {vr(Hh+2*j,2)}, {vr(Hh+2*j,2)}")
        sel = "op_sel_hi:[1,0]" if rt == 0 else "op_sel:[0,1] op_sel_hi:[1,1]"
        if not opt.get("fold", 0):
            for j in range(8): a(f"v_pk_mul_f32 {vr(Hh+2*j,2)}, {vr(Hh+2*j,2)}, {vr(gR2,2)} {sel}")
        for j in range(8): a(f"v_cvt_pk_bf16_f32 v{Hh+j}, v{Hh+2*j}, v{Hh+2*j+1}")
        hst = [f"buffer_store_dwordx4 {vr(Hh+4*s_,4)}, v{gL16}, {sr(rWS,4)}, s{sD} offen offset:{s_*2048+rt*1024}" for s_ in range(2)]
        if HLOC: grp_store(hst)
        else:
            for l in hst: a(l + " sc1")
        if rt == 0: a(f"s_cmp_eq_u32 s{sN}, 12\ns_cbranch_scc1 L_epid")
    a.label("L_epid")
    gSW2 = 22
    D2 = RSZ // 2048
    def w2_dma(u):
        a(f"""s_add_u32 m0, s{sRNG}, {u*2048}
        s_nop 0
        buffer_load_dwordx4 v{gSW}, {sr(rX,4)}, s{sSW} offen lds
        buffer_load_dwordx4 v{gSW2}, {sr(rX,4)}, s{sSW} offen offset:1024 lds
        s_add_u32 s{sSW}, s{sSW}, 16384""")
    PT = AC[0]
    a("s_nop 0")
    hzero()
    a(f"""s_cmp_lt_u32 s{sN}, s{sNG}
    s_cbranch_scc1 L_f1loop
    v_add_u32 v{gSW2}, {8192-1024}, v{gSW}
    s_cmp_eq_u32 s{sN}, 8
    s_cbranch_scc1 L_f1fill""")
    lds_spin(C_PX, 4, 26, 27, sleep=0)
    a.label("L_f1fill")
    for u in range(D2): w2_dma(u)
    a(f"s_waitcnt vmcnt({2*D2})")
    a.label("L_f1pub")
    a(f"""s_cmp_lt_u32 s{sN}, 12
    s_cselect_b32 s{sD}, 1, 16
    v_mov_b32 v{PT}, s{sD}
    s_mov_b64 exec, 1
    ds_add_rtn_u32 v{PT+1}, v{gGC}, v{PT} offset:{C_HDONE}
    s_mov_b64 exec, -1
    s_lshl_b32 s{sC}, s{sRB}, 3
    s_add_u32 s{sC}, s{sC}, s{sG}
    s_lshl_b32 s{sC}, s{sC}, 7
    s_lshr_b32 s{sD}, s{sD}, 1
    s_add_u32 s{sC}, s{sC}, s{sD}
    s_add_u32 s{sC}, s{sC}, {FLG_H}
    s_cmp_lt_u32 s{sG}, 3
    s_cselect_b32 s{sCAP}, 3, 1
    s_cmp_lt_u32 s{sN}, 12
    s_cselect_b32 s{sCAP}, 3, s{sCAP}
    s_cselect_b32 s{sD}, 0, 4
    s_waitcnt lgkmcnt(0)
    v_readfirstlane_b32 s{sF}, v{PT+1}
    s_nop 0
    s_lshr_b32 s{sF}, s{sF}, s{sD}
    s_and_b32 s{sF}, s{sF}, 15
    s_cmp_lg_u32 s{sF}, s{sCAP}
    s_cbranch_scc1 L_nohflag""")
    flag_store(sC, PT)
    a.label("L_nohflag")
    a(f"""s_cmp_eq_u32 s{sN}, 10
    s_cbranch_scc1 L_f1loop""")
    TS(6)
    sK0, sK1, sSH, sXC = 0, 1, sC, sB
    gA0, gA1, gHO0, gHO1, gFL, gWO = 8, 9, 10, 11, 12, 13
    gCN, gOA, gLA, gCV = 16, 17, 18, 19
    HR = 24
    AF = [152, 160]
    WOF, FA = 88, 72
    OFR = [[56, 60, 64, 68, 152, 156, 160, 164], [24 + 4 * gp for gp in range(8)]]
    sKT, sWM, sWS, sFT = 12, 13, 26, 24
    sHB, sFH, sNF, sPF, sRET, sLOOP = 8, 9, 10, 11, 14, 20
    def ev_set():
        a(f"""s_lshr_b32 s{sFT}, s{sNF}, 2
        s_lshl_b32 s{sFT}, s{sFT}, 1
        s_add_u32 s{sFT}, s{sFT}, 2
        s_add_u32 s{sFT}, s{sFT}, s{sEP}""")
    def o_flag():
        a(f"""s_lshl_b32 s{sA}, s{sRB}, 3
        s_add_u32 s{sA}, s{sA}, s{sG}
        s_lshl_b32 s{sA}, s{sA}, 4
        s_add_u32 s{sA}, s{sA}, s{sPF}
        s_lshl_b32 s{sA}, s{sA}, 3
        s_add_u32 s{sA}, s{sA}, {FLG_O}
        s_mov_b32 s{sPF}, s{sNF}""")
    srd(rW, pX, 0x200000)
    srd(rT, pB2, 1024)
    a(f"""v_and_b32 v41, 31, v0
    v_lshlrev_b32 v40, 4, v{gH}
    v_lshl_add_u32 v40, v41, 10, v40
    v_lshlrev_b32 v41, 1, v41
    s_lshl_b32 s{sA}, s{sG}, 7
    s_lshl_b32 s{sD}, s{sCT}, 6
    s_add_u32 s{sA}, s{sA}, s{sD}
    s_lshl_b32 s{sD}, s{sRB}, 16
    s_lshl_b32 s{sC}, s{sRT}, 15
    s_add_u32 s{sD}, s{sD}, s{sC}
    s_add_u32 s{sD}, s{sD}, s{sA}
    s_mov_b32 s{sE}, s{sD}
    v_mov_b32 v7, v40
    buffer_load_dwordx4 v[24:27], v40, {sr(rW,4)}, s{sD} offen
    buffer_load_dwordx4 v[28:31], v40, {sr(rW,4)}, s{sD} offen offset:32
    buffer_load_ushort v76, v41, {sr(rT,4)}, s{sA} offen""")
    a(f"""s_lshl_b32 s{sFH}, s{sRB}, 10
    s_add_u32 s{sFH}, s{sFH}, {FLG_H}
    v_and_b32 v{gFL}, 7, v0
    v_lshlrev_b32 v{gFL}, 7, v{gFL}
    v_bfe_u32 v{gR}, v0, 2, 2
    buffer_load_dwordx2 v[14:15], v{gFL}, {sr(rWS,4)}, s{sFH} offen sc1
    v_lshrrev_b32 v{gWO}, 1, v{gR}
    v_xor_b32 v{gWO}, s{sCT}, v{gWO}
    v_lshl_add_u32 v{gWO}, v{gWO}, 6, v{gTR}
    v_lshl_add_u32 v{gWO}, v{gR}, 7, v{gWO}
    v_lshl_add_u32 v{gWO}, v{gH}, 9, v{gWO}
    s_lshl_b32 s{sA}, s{sRT}, 10
    v_mov_b64 v[72:73], 0
    v_mov_b64 v[74:75], 0
    v_add_u32 v{gA0}, s{sRNG}, v{gWO}
    v_xor_b32 v{gA1}, 64, v{gA0}
    v_add_u32 v{gHO0}, s{sA}, v{gL16}
    v_xor_b32 v{gHO1}, 0x400, v{gHO0}""")
    a(f"{MF32} {vr(AC[3],16)}, v[72:75], v[72:75], 0")
    a(f"""v_sub_u32 v78, 1, v{gH}
    v_mov_b32 v77, 0
    v_mul_u32_u24 v78, 0x3f80, v78
    v_mov_b32 v79, 0
    s_mov_b32 s{sD}, 0xffff0000
    s_waitcnt vmcnt(1)""")
    for j in (24, 25, 28, 29): a(f"v_permlane32_swap_b32 v{j}, v{j+2}")
    for j in range(8): a(f"v_lshlrev_b32 v{AC[0]+2*j}, 16, v{24+j}\nv_and_b32 v{AC[0]+2*j+1}, s{sD}, v{24+j}")
    a(f"s_nop 1\nv_mfma_f32_32x32x8_bf16 {vr(AC[0],16)}, v[76:77], v[78:79], {vr(AC[0],16)}")
    def a_reads(u, p):
        for d, ga in enumerate((gA0, gA1)):
            a(f"ds_read_b64_tr_b16 {vr(AF[p]+4*d,2)}, v{ga} offset:{u*2048}\nds_read_b64_tr_b16 {vr(AF[p]+4*d+2,2)}, v{ga} offset:{u*2048+1024}")
    LDS_OFF = 0x30000
    a(f"""s_mul_i32 s{sHB}, s{sRB}, {86*2048}
    s_add_u32 s{sHB}, s{sHB}, {HF}
    s_and_b32 s{sSH}, s{sPL}, 0xff
    s_lshl_b32 s{sSH}, s{sSH}, 11
    s_add_u32 s{sSH}, s{sSH}, s{sHB}
    s_lshr_b32 s{sD}, s{sPL}, 24
    s_lshl_b32 s{sD}, s{sD}, 11
    s_mov_b32 s{rT}, s{pWS}
    s_mov_b32 s{rT+1}, s{pWS+1}
    s_add_u32 s{rT+2}, s{sD}, s{sHB}
    s_mov_b32 s{rT+3}, 0x20000
    s_bfe_u32 s{sK1}, s{sPL}, 0x70008
    s_sub_u32 s{sKT}, s{sK1}, {D2}
    s_mov_b32 s{rW}, s{pWO}
    s_mov_b32 s{rW+1}, s{pWO+1}
    s_lshl_b32 s{sWM}, s{sI}, 14
    s_lshl_b32 s{sWS}, s{sI}, 17
    s_add_u32 s{rW+2}, s{sWS}, 0x20000
    s_mov_b32 s{rW+3}, 0x20000
    s_lshl_b32 s{sA}, s{sG}, 7
    s_add_u32 s{sWS}, s{sWS}, s{sA}
    s_bitcmp1_b32 s{sPL}, 15
    s_cselect_b32 s27, 6, 12
    s_mov_b32 s{sK0}, 0
    s_xor_b32 s{sNF}, s{sI}, 1
    s_mov_b32 s{sPF}, s{sNF}
    s_mov_b32 s{sLOOP}, 1""")
    ev_set()
    a(f"""s_mul_i32 s{sA}, s{sNF}, {4 * SLOT}
    s_add_u32 s{sA}, s{sA}, {OACC}
    v_add_u32 v{gOA}, s{sA}, v{gL16}
    v_and_b32 v{gLA}, 31, v0
    v_lshl_add_u32 v{gLA}, v{gLA}, 2, s{sA}
    v_and_b32 v{gCN}, 3, v0
    v_mul_u32_u24 v{gCN}, {SLOT}, v{gCN}
    v_add_u32 v{gCN}, s{sA}, v{gCN}""")
    a(f"s_bfe_u32 s{sXC}, s{sPL}, 0x80010")
    flag_poll(gFL, sFH, 14, preissued=True, sleep=opt.get("hsleep", 2))
    TS(7)
    for u in range(D2):
        a(f"""buffer_load_dwordx4 {vr(HR+8*u,4)}, v{gHO0}, {sr(rT,4)}, s{sSH} offen sc1
        buffer_load_dwordx4 {vr(HR+8*u+4,4)}, v{gHO1}, {sr(rT,4)}, s{sSH} offen sc1
        s_add_u32 s{sSH}, s{sSH}, 2048""")
    a_reads(0, 0)
    a(f"ds_read_b32 v{gCV}, v{gCN} offset:{B_TAG}")
    a(f"s_add_u32 s{sFH}, s{sFH}, 8\ns_waitcnt vmcnt(0)")
    if opt.get("x_noh"): a(f"s_mov_b32 s{rT+2}, 0")
    if opt.get("x_now"): a(f"s_mov_b32 s{rX+2}, 0")
    TS(1)
    a(".p2align 6")
    a.label("L_f2loop")
    for u in range(D2):
        p = u & 1
        def mf(j): a(f"{MF32} {vr(AC[j],16)}, {vr(AF[p]+4*(j&1),4)}, {vr(HR+8*u+4*(j>>1),4)}, {vr(AC[j],16)}")
        a(f"s_waitcnt vmcnt({4*(D2-2)}) lgkmcnt(0)")
        mf(0)
        a_reads((u + 1) % D2, 1 - p)
        pad(P2A)
        mf(1)
        if u == 0:
            a("s_branch L_trip")
            a.label("L_tripped")
        elif u == D2 - 1: a(f"ds_read_b32 v{gCV}, v{gCN} offset:{B_TAG}")
        a(f"s_add_u32 m0, s{sRNG}, {u*2048}\ns_cmp_ge_u32 s{sK0}, s{sKT}\ns_cbranch_scc1 L_tail{u}")
        a(f"""buffer_load_dwordx4 v{gSW}, {sr(rX,4)}, s{sSW} offen lds
        buffer_load_dwordx4 v{gSW2}, {sr(rX,4)}, s{sSW} offen offset:1024 lds""")
        mf(2)
        a(f"""buffer_load_dwordx4 {vr(HR+8*u,4)}, v{gHO0}, {sr(rT,4)}, s{sSH} offen sc1
        s_add_u32 s{sSW}, s{sSW}, 16384
        s_add_u32 s{sK0}, s{sK0}, 1""")
        pad(P2C)
        mf(3)
        a(f"buffer_load_dwordx4 {vr(HR+8*u+4,4)}, v{gHO1}, {sr(rT,4)}, s{sSH} offen sc1\ns_add_u32 s{sSH}, s{sSH}, 2048")
        if u == D2 - 1: a("s_branch L_f2loop")
        else: pad(P2D)
        a.label(f"L_next{u}")
    for u in range(D2):
        p = u & 1
        a.label(f"L_tail{u}")
        for j in (2, 3):
            a(f"{MF32} {vr(AC[j],16)}, {vr(AF[p]+4*(j&1),4)}, {vr(HR+8*u+4*(j>>1),4)}, {vr(AC[j],16)}")
            if j == 2: a(f"s_call_b64 s[96:97], L_wo4")
        a(f"""s_add_u32 s{sK0}, s{sK0}, 1
        s_cmp_lt_u32 s{sK0}, s{sK1}
        s_cbranch_scc1 {"L_f2loop" if u == D2 - 1 else f"L_next{u}"}""")
        if u < D2 - 1: a("s_branch L_f2done")
    a("s_branch L_f2done")
    a.label("L_wo4")
    a(f"""s_cmp_lg_u32 s{sK0}, s{sKT}
    s_cbranch_scc1 L_wo4b
    s_cmp_lt_u32 s{sG}, 3
    s_cselect_b32 s{sD}, 68, 36""")
    lds_spin(C_HDONE, f"s{sD}", gGC, 20, sleep=1)
    a.label("L_wo4b")
    a(f"""s_cmp_ge_u32 s{sWS}, s{rW+2}
    s_cbranch_scc1 L_wo4c""")
    for _ in range(2):
        a(f"""s_mov_b32 m0, s{sWM}
        s_add_u32 s{sWM}, s{sWM}, 2048
        buffer_load_dwordx4 v{gSW}, {sr(rW,4)}, s{sWS} offen lds
        buffer_load_dwordx4 v{gSW2}, {sr(rW,4)}, s{sWS} offen offset:1024 lds
        s_add_u32 s{sWS}, s{sWS}, 16384""")
    a.label("L_wo4c")
    a(f"s_setpc_b64 s[96:97]")
    a.label("L_f2done")
    TS(8)
    sJ, sFO, sOO, sRDY = 0, 1, sB, 21
    def wo_reads():
        for gp in range(8):
            a(f"ds_read_b64_tr_b16 {vr(WOF+4*gp,2)}, v{gWO} offset:{gp*8192}\nds_read_b64_tr_b16 {vr(WOF+4*gp+2,2)}, v{gWO} offset:{gp*8192+1024}")
        a(f"v_add_u32 v{gWO}, 2048, v{gWO}")
    def o_loads(bf):
        a(f"s_mov_b32 s{sA}, s{sOO}")
        for gp in range(8):
            a(f"buffer_load_dwordx4 {vr(OFR[bf][gp],4)}, v{gL16}, {sr(rWS,4)}, s{sA} offen sc1\ns_add_u32 s{sA}, s{sA}, 4096")
        a(f"s_add_u32 s{sOO}, s{sOO}, 1024\ns_add_u32 s{sJ}, s{sJ}, 1")
    def o_mf(bf, after):
        a(f"s_waitcnt lgkmcnt(0)")
        for gp in range(8):
            a(f"s_waitcnt vmcnt({7-gp+after})\n{MF32} {vr(AC[0],16)}, {vr(WOF+4*gp,4)}, {vr(OFR[bf][gp],4)}, {vr(AC[0],16)}")
            if gp < 7: pad(PO)
    a(f"""s_lshl_b32 s{sFO}, s{sRB}, 10
    s_lshl_b32 s{sA}, s{sRT}, 3
    s_add_u32 s{sFO}, s{sFO}, s{sA}
    s_add_u32 s{sFO}, s{sFO}, {FLG_O}
    v_and_b32 v20, 24, v0
    v_lshl_add_u32 v{gFL}, v20, 1, v{gFL}
    v_add_u32 v23, s{sRNG}, v{gL16}
    buffer_load_dwordx2 v[14:15], v{gFL}, {sr(rWS,4)}, s{sFO} offen sc1
    s_lshl_b32 s{sOO}, s{sRB}, 1
    s_add_u32 s{sOO}, s{sOO}, s{sRT}
    s_lshl_b32 s{sOO}, s{sOO}, 15
    s_add_u32 s{sOO}, s{sOO}, {OF}
    s_mov_b32 s{sJ}, 0
    s_mov_b32 s{sLOOP}, 0
    s_mov_b32 s23, 0""")
    srd(rT, pOUT, 0x200000)
    a(f"""s_waitcnt vmcnt(1) lgkmcnt(0)
    s_cmp_ge_u32 s{sPF}, s{sNF}
    s_cbranch_scc1 L_nopf""")
    o_flag()
    flag_store(sA, 20)
    a.label("L_nopf")
    for j in range(1, 4):
        for q in range(4): a(f"ds_write_b128 v23, {vr(AC[j]+4*q,4)} offset:{(j-1)*4096+q*1024}")
    lds_inc(C_GBAR, gGC, 23)
    a(f"""s_waitcnt vmcnt(0)
    v_cmp_ne_u64 vcc, {sr(sEP,2)}, v[14:15]
    s_nop 1
    s_mov_b32 s{sRDY}, vcc_lo
    s_and_b32 s22, s{sRDY}, 0xffff
    s_cbranch_scc1 L_red""")
    o_loads(1)
    o_loads(0)
    a.label("L_red")
    lds_spin(C_GBAR, 4, gGC, 14, sleep=1)
    for j in range(1, 4):
        a(f"s_xor_b32 s{sA}, s{sI}, {j}\ns_mul_i32 s{sA}, s{sA}, {RSZ}\ns_add_u32 s{sA}, s{sA}, {RING}\nv_add_u32 v14, s{sA}, v{gL16}")
        for q in range(4): a(f"ds_read_b128 {vr(AC[j]+4*q,4)}, v14 offset:{(j-1)*4096+q*1024}")
    for j in range(1, 4):
        a(f"s_waitcnt lgkmcnt({(3-j)*4})")
        for q in range(8): a(f"v_pk_add_f32 {vr(AC[0]+2*q,2)}, {vr(AC[0]+2*q,2)}, {vr(AC[j]+2*q,2)}")
    a(f"ds_read_b32 v{gCV}, v{gCN} offset:{B_TAG}")
    wo_reads()
    TS(9)
    a(f"""s_cmp_lg_u32 s22, 0
    s_cbranch_scc1 L_ev""")
    if opt.get("ob", 1):
        a(f"""s_waitcnt lgkmcnt(15)
        v_cmp_ne_u32 vcc, s{sFT}, v{gCV}
        s_mov_b32 s{sLOOP}, 3
        s_cmp_ge_u32 s{sNF}, 8
        s_cbranch_scc1 L_pair0
        s_cbranch_vccz L_fin""")
        a.label("L_pair0")
        a(f"""s_mov_b32 s{sLOOP}, 0
        s_cmp_ge_u32 s{sPF}, s{sNF}
        s_cbranch_scc1 L_pair""")
        o_flag()
        a("s_waitcnt vmcnt(0)")
        flag_store(sA, 14)
    a("s_branch L_pair")
    a.label("L_ev")
    a(f"""s_cmp_ge_u32 s{sPF}, s{sNF}
    s_cbranch_scc1 L_evf""")
    o_flag()
    a("s_waitcnt vmcnt(0)")
    flag_store(sA, 14)
    TS(13)
    a.label("L_evf")
    a(f"""s_add_u32 s23, s23, 1
    s_cmp_gt_u32 s23, {SPIN_CAP}
    s_cbranch_scc1 L_gdone
    s_cmp_ge_u32 s{sNF}, 8
    s_cbranch_scc1 L_evr
    ds_read_b32 v{gCV}, v{gCN} offset:{B_TAG}
    s_waitcnt lgkmcnt(0)
    v_cmp_ne_u32 vcc, s{sFT}, v{gCV}
    s_nop 1
    s_cbranch_vccz L_fin""")
    a.label("L_evr")
    a(f"""s_cmp_lt_u32 s{sJ}, 4
    s_cbranch_scc1 L_evc
    s_cmp_ge_u32 s{sNF}, 8
    s_cbranch_scc1 L_gdone""")
    a.label("L_evs")
    a(f"""s_sleep {opt.get("ldsleep", 1)}
    s_branch L_evf""")
    a.label("L_evc")
    a(f"""s_lshr_b32 s{sA}, s{sNF}, {2 if opt.get("oa", 1) else 1}
    s_lshr_b32 s{sD}, s{sJ}, {1 if opt.get("oa", 1) else 0}
    s_cmp_eq_u32 s{sA}, s{sD}
    s_cbranch_scc1 {"L_own" if opt.get("tl", 1) else "L_evs"}
    s_lshl_b32 s{sD}, s{sJ}, 3
    s_lshr_b32 s{sA}, s{sRDY}, s{sD}
    s_and_b32 s{sA}, s{sA}, 0xff
    s_cbranch_scc0 L_cons
    buffer_load_dwordx2 v[14:15], v{gFL}, {sr(rWS,4)}, s{sFO} offen sc1
    s_waitcnt vmcnt(0)
    v_cmp_ne_u64 vcc, {sr(sEP,2)}, v[14:15]
    s_nop 1
    s_mov_b32 s{sRDY}, vcc_lo
    s_lshr_b32 s{sA}, s{sRDY}, s{sD}
    s_and_b32 s{sA}, s{sA}, 0xff
    s_cbranch_scc0 L_cons
    s_sleep {opt.get("evsleep", 2)}
    s_branch L_ev""")
    TS(5)
    a.label("L_own")
    a(f"""ds_read_b32 v{gCV}, v{gCN} offset:{B_TAG}
    s_add_u32 s23, s23, 1
    s_cmp_gt_u32 s23, {SPIN_CAP}
    s_cbranch_scc1 L_gdone
    s_sleep {opt.get("ownsleep", 1)}
    s_waitcnt lgkmcnt(0)
    v_cmp_ne_u32 vcc, s{sFT}, v{gCV}
    s_nop 1
    s_cbranch_vccnz L_own
    s_branch L_fin""")
    a.label("L_cons")
    TS(4)
    a(f"""s_lshr_b32 s{sA}, s{sRDY}, s{sD}
    s_and_b32 s{sA}, s{sA}, 0xffff
    s_cbranch_scc1 L_cons1
    s_cmp_eq_u32 s{sJ}, 3
    s_cbranch_scc1 L_cons1""")
    o_loads(1)
    o_loads(0)
    a.label("L_pair")
    o_mf(1, 8)
    wo_reads()
    a("s_branch L_cons2")
    a.label("L_cons1")
    o_loads(0)
    a.label("L_cons2")
    o_mf(0, 0)
    a(f"""s_cmp_ge_u32 s{sJ}, 4
    s_cbranch_scc1 L_out""")
    wo_reads()
    a("s_branch L_ev")
    a.label("L_out")
    TS(10)
    a("s_nop 9")
    for j in range(8): a(f"v_cvt_pk_bf16_f32 v{AC[0]+j}, v{AC[0]+2*j}, v{AC[0]+2*j+1}")
    for j in (0, 1, 4, 5): a(f"v_permlane32_swap_b32 v{AC[0]+j}, v{AC[0]+j+2}")
    for q in range(2): a(f"buffer_store_dwordx4 {vr(AC[0]+4*q,4)}, v7, {sr(rT,4)}, s{sE} offen offset:{32*q} {opt.get('ost', '')}")
    a("s_branch L_ev")
    a.label("L_half")
    a(f"""s_xor_b32 s{sC}, s{sI}, 1
    s_mul_i32 s{sC}, s{sC}, {RSZ}
    s_add_u32 s{sC}, s{sC}, {RING}
    s_waitcnt lgkmcnt(0)
    v_add_u32 v24, s{sRNG}, v{gL16}
    v_add_u32 v25, s{sC}, v{gL16}
    v_lshl_add_u32 v26, s{sRT}, 2, v{gGC}
    s_waitcnt vmcnt(0)
    s_cmp_eq_u32 s{sCT}, 0
    s_cbranch_scc0 L_half1""")
    for keep, (Hk, Hs) in enumerate(((H0, H1), (H1, H0))):
        if keep: a.label("L_half1")
        for q in range(4): a(f"ds_write_b128 v24, {vr(Hs+4*q,4)} offset:{q*1024}")
        a(f"{MF32} {vr(Hk,16)}, v[8:11], {'v[12:15]' if keep == 0 else 'v[14:17]'}, {vr(Hk,16)}")
        lds_inc(C_PX, 26, 27)
        lds_spin(C_PX, 2, 26, 27, sleep=0)
        for q in range(4): a(f"ds_read_b128 {vr(Hs+4*q,4)}, v25 offset:{q*1024}")
        a("s_waitcnt lgkmcnt(0)")
        lds_inc(C_PX, 26, 27)
        for q in range(8): a(f"v_pk_add_f32 {vr(Hk+2*q,2)}, {vr(Hk+2*q,2)}, {vr(Hs+2*q,2)}")
        a(f"s_branch L_epi{keep}")
    a.label("L_trip")
    def tripstamp():
        if opt.get("f2ts"):
            a("s_memtime s[98:99]\ns_waitcnt lgkmcnt(0)")
            for i in range(1, 10): a(f"s_mov_b32 s{TS0+2*i}, s{TS0+2*i+2}")
            a(f"s_mov_b32 s{TS0+20}, s98")
    tripstamp()
    a(f"""s_setprio 3
    v_cmp_ne_u32 {sr(sRET,2)}, s{sFT}, v{gCV}
    s_cmp_ge_u32 s{sPF}, s{sNF}
    s_cbranch_scc1 L_trip1""")
    o_flag()
    flag_store(sA, 20)
    a.label("L_trip1")
    a(f"""s_add_u32 s{sA}, s{sK0}, {D2}
    s_cmp_lg_u32 s{sA}, s27
    s_cbranch_scc1 L_trip1b
    buffer_load_dwordx2 v[14:15], v{gFL}, {sr(rWS,4)}, s{sFH} offen sc1""")
    a.label("L_trip1b")
    a(f"""s_cmp_lg_u32 s{sK0}, s27
    s_cbranch_scc1 L_trip2
    s_cmp_eq_u32 s{sXC}, 0
    s_cbranch_scc1 L_trip2
    v_cmp_ne_u64 vcc, {sr(sEP,2)}, v[14:15]
    s_lshl_b32 s{sSW}, s{sXC}, 14
    s_lshl_b32 s{sA}, s{sG}, 7
    s_add_u32 s{sSW}, s{sSW}, s{sA}
    s_lshl_b32 s{sSH}, s{sXC}, 11
    s_add_u32 s{sSH}, s{sSH}, s{sHB}""")
    a("s_cbranch_vccz L_crossok")
    flag_poll(gFL, sFH, 14, sleep=opt.get("hsleep", 2))
    a.label("L_crossok")
    TS(14)
    a.label("L_trip2")
    a(f"""s_cmp_lt_u32 s{sNF}, 8
    s_cselect_b32 s{sD}, s{sRET}, 1
    s_cmp_eq_u32 s{sLOOP}, 1
    s_cselect_b32 s{sD}, s{sD}, 1
    s_cmp_eq_u32 s{sD}, 0
    s_cbranch_scc1 L_fin""")
    a.label("L_trip3")
    if opt.get("ob", 1): a(f"s_cmp_eq_u32 s{sLOOP}, 3\ns_cbranch_scc1 L_pair0")
    tripstamp()
    a(f"s_setprio {GP}\ns_branch L_tripped")
    a.label("L_fin")
    TS(12)
    def sl_read(p_, d):
        a(f"ds_read_b128 {vr(d,4)}, v{gOA} offset:{p_*SLOT}\nds_read_b128 {vr(d+4,4)}, v{gOA} offset:{p_*SLOT+1024}")
    def sl_add(d):
        for j in range(4): a(f"v_pk_add_f32 {vr(FA+8+2*j,2)}, {vr(FA+8+2*j,2)}, {vr(d+2*j,2)}")
    for p_, d in enumerate((20, 21, 23, gCV)): a(f"ds_read_b32 v{d}, v{gLA} offset:{p_*SLOT+2048}")
    sl_read(0, FA + 8); sl_read(1, FA)
    a(f"s_mov_b32 s{sD}, 0\ns_cmp_eq_u32 s{sLOOP}, 0\ns_cbranch_scc1 L_finw\ns_waitcnt lgkmcnt(0)")
    sl_add(FA); sl_read(2, FA)
    a(f"v_add_f32 v20, v20, v21\nv_add_f32 v23, v23, v{gCV}\ns_waitcnt lgkmcnt(0)")
    sl_add(FA); sl_read(3, FA)
    a("s_waitcnt lgkmcnt(0)")
    sl_add(FA)
    a("s_branch L_fin1")
    a.label("L_finw")
    sl_read(2, 24); sl_read(3, 32)
    a(f"s_waitcnt lgkmcnt(4)\nv_add_f32 v20, v20, v21\nv_add_f32 v23, v23, v{gCV}")
    sl_add(FA)
    a("s_waitcnt lgkmcnt(0)")
    sl_add(24); sl_add(32)
    a.label("L_fin1")
    a(f"v_add_f32 v{FA}, v20, v23")
    a.label("L_fin2")
    a(f"""s_and_b32 s{sA}, s{sNF}, 1
    s_lshl_b32 s{sF}, s{sRB}, 1
    v_rcp_f32 v{FA+1}, v{FA}
    s_add_u32 s{sA}, s{sA}, s{sF}
    s_lshl_b32 s{sA}, s{sA}, 3
    s_add_u32 s{sA}, s{sA}, s{sG}
    v_mov_b32 v{FA+3}, 0x76800000
    v_cmp_nle_f32 vcc, {hex(LMIN)}, v{FA}
    v_cmp_nle_f32 {sr(sRET,2)}, v{FA}, v{FA+3}""")
    for j in range(8): a(f"v_mul_f32 v{FA+8+j}, v{FA+8+j}, v{FA+1}")
    a(f"""s_or_b64 {sr(sRET,2)}, {sr(sRET,2)}, vcc
    s_lshl_b32 s{sA}, s{sA}, 2
    s_lshr_b32 s{sF}, s{sNF}, 1
    s_add_u32 s{sA}, s{sA}, s{sF}
    s_lshl_b32 s{sA}, s{sA}, 10
    s_add_u32 s{sA}, s{sA}, {OF}""")
    for j in range(4): a(f"v_cvt_pk_bf16_f32 v{FA+4+j}, v{FA+8+2*j}, v{FA+9+2*j}")
    a(f"v_pk_mul_f32 {vr(FA+2,2)}, {vr(FA+8,2)}, 0")
    for j in range(1, 4): a(f"v_pk_fma_f32 {vr(FA+2,2)}, {vr(FA+8+2*j,2)}, 0, {vr(FA+2,2)}")
    a(f"""v_cmp_u_f32 vcc, v{FA+2}, v{FA+3}
    s_nop 1
    s_or_b64 {sr(sRET,2)}, {sr(sRET,2)}, vcc
    s_cselect_b32 s{sF}, 1, 0
    s_cmp_gt_u32 s{sF}, s{sD}
    {"s_nop 0" if opt.get("nofb") else "s_cbranch_scc1 L_fallback"}
    s_add_u32 s{sNF}, s{sNF}, 4""")
    grp_store([f"buffer_store_dwordx4 {vr(FA+4,4)}, v{gL16}, {sr(rWS,4)}, s{sA} offen"])
    a(f"v_mov_b32 v20, s{sEP}\nds_write_b32 v{gCN}, v20 offset:{B_TAG}")
    ev_set()
    a(f"""s_cmp_eq_u32 s{sLOOP}, 0
    s_cbranch_scc1 L_ev
    s_branch L_trip3""")
    a.label("L_gdone")
    if ts: a("s_waitcnt vmcnt(0)")
    TS(11)
    if opt.get("padto"):
        a.label("L_pad")
        a(f"s_memrealtime s[96:97]\ns_waitcnt lgkmcnt(0)\ns_sub_u32 s96, s96, s{sEP}\ns_cmp_lt_u32 s96, {opt['padto']}\ns_cbranch_scc1 L_pad")
    ts_dump()
    a.label("L_end")
    a("s_endpgm")

    for X, Y, lines in far:
        a.label(X)
        for l in lines: a(l + " sc1")
        a(f"s_branch {Y}")
    a.label("L_fallback")
    FQ, FK, FV, FS, FC, FT = 24, 28, 32, 40, 56, 120
    a(f"""s_cmp_eq_u32 s{sLOOP}, 0
    s_cbranch_scc1 L_fbgo
    s_max_u32 s{sLOOP}, s{sLOOP}, 2
    s_branch L_trip3""")
    a.label("L_fbgo")
    a(f"""s_mul_i32 s{sA}, s{sNF}, {QST}
    s_add_u32 s{sA}, s{sA}, {QF}
    v_add_u32 v{FT}, s{sA}, v{gL16}
    ds_read_b128 {vr(FQ,4)}, v{FT}
    v_mov_b32 v{FT+2}, 0xff800000""")
    a(f"s_mov_b32 s{sA}, 0")
    a.label("L_fb1")
    a(f"""buffer_load_dwordx4 {vr(FK,4)}, v{gL16}, {sr(rWS,4)}, s{sA} offen sc1
    s_waitcnt vmcnt(0) lgkmcnt(0)
    {MF32} {vr(FS,16)}, {vr(FK,4)}, {vr(FQ,4)}, 0
    s_nop 11""")
    maxtree(FS, FT + 3)
    a(f"""v_max_f32 v{FT+2}, v{FT+2}, v{FT+3}
    s_add_u32 s{sA}, s{sA}, 1024
    s_cmp_lt_u32 s{sA}, 0x10000
    s_cbranch_scc1 L_fb1
    v_mov_b32 v{FT+3}, v{FT+2}
    s_nop 1
    v_permlane32_swap_b32 v{FT+2}, v{FT+3}
    v_max_f32 v{FT+2}, v{FT+2}, v{FT+3}""")
    for i in range(16): a(f"v_sub_f32 v{FC+i}, 0, v{FT+2}\nv_mov_b32 v{FA+i}, 0")
    a(f"s_mov_b32 s{sA}, 0")
    a.label("L_fb2")
    a(f"""s_add_u32 s{sF}, s{sA}, {VF}
    buffer_load_dwordx4 {vr(FK,4)}, v{gL16}, {sr(rWS,4)}, s{sA} offen sc1
    buffer_load_dwordx4 {vr(FV,4)}, v{gL16}, {sr(rWS,4)}, s{sF} offen sc1""")
    for i in range(4): a(f"v_mov_b32 v{FV+4+i}, 0x3f803f80")
    a(f"""s_waitcnt vmcnt(0)
    {MF32} {vr(FS,16)}, {vr(FK,4)}, {vr(FQ,4)}, {vr(FC,16)}""")
    for i in range(4): a(f"v_permlane16_swap_b32 v{FV+4+i}, v{FV+i}")
    a("s_nop 7")
    for i in range(16): a(e(FS, i))
    a("s_nop 0")
    for j in range(8): a(c(FS, j))
    a(f"""s_nop 1
    {MF32} {vr(FA,16)}, {vr(FV,4)}, {vr(FS,4)}, {vr(FA,16)}
    {MF32} {vr(FA,16)}, {vr(FV+4,4)}, {vr(FS+8,4)}, {vr(FA,16)}
    s_add_u32 s{sA}, s{sA}, 1024
    s_cmp_lt_u32 s{sA}, 0x10000
    s_cbranch_scc1 L_fb2
    s_nop 15
    s_mov_b32 s{sD}, 1
    s_branch L_fin2""")

    if opt.get("x_nomf"):
        i0 = a.lines.index("L_f1loop:"); i1 = a.lines.index("L_gdone:")
        for i in range(i0, i1):
            if a.lines[i].startswith("v_mfma"): a.lines[i] = "s_nop 9"
    if opt.get("x_nolds"):
        i0 = a.lines.index("L_f1loop:"); i1 = a.lines.index("L_f2done:")
        for i in range(i0, i1):
            if a.lines[i].startswith(("ds_read_b128", "ds_read_b64_tr")): a.lines[i] = "s_nop 0"
    if opt.get("x_novm"):
        i0 = a.lines.index("L_f1loop:"); i1 = a.lines.index("L_f2done:")
        for i in range(i0, i1):
            if a.lines[i].startswith("buffer_load_dwordx4"): a.lines[i] = "s_nop 3"
    if opt.get("x_nova"):
        i0 = a.lines.index("L_f1loop:"); i1 = a.lines.index("L_gdone:")
        for i in range(i0, i1):
            if a.lines[i].startswith(("v_max_f32", "v_pk_", "v_cvt", "v_mul_f32")): a.lines[i] = "s_nop 0"
    if opt.get("x_swap"):
        import re
        i0 = a.lines.index("L_f2loop:" if opt["x_swap"] == 1 else "L_f1loop:"); i1 = a.lines.index("L_f2done:" if opt["x_swap"] == 1 else "L_epi0:")
        for i in range(i0, i1):
            m = re.match(r"(v_mfma_f32_32x32x16_bf16 \S+), (\S+), (\S+), (\S+)", a.lines[i])
            if m: a.lines[i] = f"{m.group(1)}, {m.group(3)}, {m.group(2)}, {m.group(4)}"
    if opt.get("x_mf16"):
        import re
        i0 = a.lines.index("L_f1loop:" if opt["x_mf16"] != 2 else "L_f2loop:"); i1 = a.lines.index("L_f2done:")
        cnt = {}
        for i in range(i1, i0, -1):
            m = re.match(r"v_mfma_f32_32x32x16_bf16 v\[(\d+):\d+\], (\S+), (\S+), v", a.lines[i])
            if m and m.group(2) != "v[8:11]":
                d = int(m.group(1))
                cnt[d] = cnt.get(d, 0) + 1
                d += 8 * (cnt[d] & 1)
                a.lines[i:i+1] = [f"v_mfma_f32_16x16x32_bf16 v[{d+4*q}:{d+4*q+3}], {m.group(2)}, {m.group(3)}, v[{d+4*q}:{d+4*q+3}]" for q in range(2)]
    i0 = a.lines.index("L_atop:"); i1 = a.lines.index("L_vs0:")
    for i in range(i1, i0, -1):
        l = a.lines[i]
        if opt.get("y_noadd") and l.startswith("ds_add_f64"): del a.lines[i]
        elif opt.get("y_nocvt") and l.startswith("v_cvt_f64"): del a.lines[i]
        elif opt.get("y_noq") and l.startswith("ds_read_b128"): del a.lines[i]
        elif opt.get("y_noexec") and ("exec_hi" in l): del a.lines[i]
        elif opt.get("y_nobr") and l.startswith("s_cbranch_vccnz"): del a.lines[i]
    if opt.get("x_p0", 1):
        i0 = a.lines.index("L_f1loop:"); i1 = a.lines.index("L_gdone:")
        for i in range(i1, i0, -1):
            if a.lines[i].startswith("v_mfma"): a.lines[i:i+1] = ["s_setprio 0", a.lines[i], "s_setprio 3"]
    probs = lint(a.lines)
    for p in probs: print("LINT", p, file=sys.stderr)
    head = f"""; fused layernorm + MQA attention + squared-relu FFN, one persistent launch (generated by gen/gen.py)
; @launch grid=(256,1,1) block=(768,1,1) lds=163840
.amdgcn_target "amdgcn-amd-amdhsa--gfx950"
.text
.globl {NAME}_kernel
.p2align 8
.type {NAME}_kernel,@function
{NAME}_kernel:
"""
    tail = f""".section .rodata,"a"
.p2align 6
.amdhsa_kernel {NAME}_kernel
  .amdhsa_next_free_vgpr 168
  .amdhsa_next_free_sgpr 100
  .amdhsa_accum_offset 168
  .amdhsa_group_segment_fixed_size 0
  .amdhsa_kernarg_size 104
  .amdhsa_user_sgpr_count 2
  .amdhsa_user_sgpr_kernarg_segment_ptr 1
  .amdhsa_system_sgpr_workgroup_id_x 1
.end_amdhsa_kernel
"""
    return head + a.text() + tail

if __name__ == "__main__":
    open("k.s", "w").write(gen(False))
    open("k_ts.s", "w").write(gen(True))
    open("k_ts_c.s", "w").write(gen(True, dict(cyc=1)))
    import json
    var = json.load(open("variants.json")) if len(sys.argv) > 1 else []
    for n, d in enumerate(var):
        open(f"k_x{n}.s", "w").write(gen(True, dict(d, lite=0 if d.get('pro') or d.get('full') else 1)))
```

```python
import sys
from asmlib import Asm, vr, sr, lint
NAME = "parallel_sum__grouped_kv_mqa__dense_activation_squared_relu__prompt"

KF, VF, FLG_KV, FLG_H, FLG_O, OF, HF, TSB = 0, 0x10000, 0x20000, 0x28000, 0x30000, 0x40000, 0x240000, 0x800000
OT = 0x900000
WS_BYTES = 0xA00000
XN, RING, WKV = 0, 65536, 131072
RSZ = 12288
OACC, SLOT = 114688, 2304
B_TAG = 2300
QF, QST = 151552, 1536
B_W = 1280
KT = 147456
RSTD = KT + 2048
GC = QF + B_W
C_QREADY, C_ABAR, C_HDONE, C_GBAR, C_WQ, C_KV, C_RS, C_L0, C_EPOCH, C_PX, C_KT, C_WQ2, C_FL, C_XN = 0, 4, 8, 12, 16, 20, 24, 28, 32, 40, 48, 52, 56, 60
W1P = 2752
OFFS = 90.0
SPIN_CAP = 1 << 17

sW, sRB, sG, sKG, sCH = 3, 4, 5, 6, 7
pX, pWQ, pWK, pWV, pWO, pW1, pB1, pW2, pB2, pOUT, pDBG, pWS = 8, 10, 12, 14, 16, 20, 22, 24, 26, 28, 30, 32
rX, rWS, rW, rT = 36, 40, 44, 48
sEP = 52
sI, sRT, sCT = 54, 55, 56
sA, sB, sC, sD, sE, sF = 57, 58, 59, 60, 61, 62
sCAP = 63
sM = 34
TS0 = 64
MF32 = "v_mfma_f32_32x32x16_bf16"

def gen(ts=False, opt={}):
    a = Asm()
    OFFS = float(opt.get('offs', 102))
    LMIN = (127 - int(OFFS) - 2) << 23
    GP = opt.get('gp', 3)
    P1A, P1B, P2A, P2C, P2D, PO = opt.get('pads', (-1, -1, -1, -1, -1, -1))
    def pad(n):
        if n >= 0: a(f's_nop {n}')
    late = [False]
    role = ["A"]
    def TS(i):
        if opt.get("probe") == (role[0], i) and not (late[0] and opt.get("pearly")): a("s_memrealtime s[98:99]")
        if opt.get("lite") and i not in ((0, 6, 9) if role[0] == "A" else (0, 11)): return
        if opt.get("pro") and late[0] and i != 11: return
        if opt.get("f2ts") and late[0]: i = {7: 12, 8: 13, 6: 14, 11: 11}.get(i)
        if i is None: return
        if ts: a(f"{'s_memtime' if opt.get('cyc') else 's_memrealtime'} {sr(TS0 + 2 * i, 2)}")
    def srd(r, p, n):
        a(f"s_mov_b32 s{r}, s{p}\ns_mov_b32 s{r+1}, s{p+1}\ns_mov_b32 s{r+2}, {n}\ns_mov_b32 s{r+3}, 0x20000")
    def lds_spin(off, val, va, vt, sleep=1):
        L = a.newlabel("spin"); D = a.newlabel("spun")
        a(f"s_mov_b32 s{sCAP}, 0")
        a.label(L)
        a(f"""ds_read_b32 v{vt}, v{va} offset:{off}
        s_add_u32 s{sCAP}, s{sCAP}, 1
        s_waitcnt lgkmcnt(0)
        v_readfirstlane_b32 s{sF}, v{vt}
        s_cmp_gt_u32 s{sCAP}, {SPIN_CAP}
        s_cbranch_scc1 {D}""")
        if sleep:
            a(f"s_cmp_ge_u32 s{sF}, {val}\ns_cbranch_scc1 {D}\ns_sleep {sleep}\ns_branch {L}")
        else:
            a(f"s_cmp_lt_u32 s{sF}, {val}\ns_cbranch_scc1 {L}")
        a.label(D)
    def lds_inc(off, va, vt):
        a(f"v_mov_b32 v{vt}, 1\ns_mov_b64 exec, 1\nds_add_u32 v{va}, v{vt} offset:{off}\ns_mov_b64 exec, -1")
    def flag_poll(va, soff, vt, sleep=2, preissued=False):
        L = a.newlabel("poll"); D = a.newlabel("polled")
        a(f"s_mov_b32 s{sCAP}, 0")
        if isinstance(preissued, tuple): a(f"s_cmp_eq_u32 s{preissued[0]}, {preissued[1]}\ns_cbranch_scc1 {L}w")
        elif preissued: a(f"s_branch {L}w")
        a.label(L)
        a(f"buffer_load_dwordx2 {vr(vt,2)}, v{va}, {sr(rWS,4)}, s{soff} offen sc1")
        a.label(L + "w")
        a(f"""s_add_u32 s{sCAP}, s{sCAP}, 1
        s_waitcnt vmcnt(0)
        v_cmp_ne_u64 vcc, {sr(sEP,2)}, {vr(vt,2)}
        s_cmp_gt_u32 s{sCAP}, {SPIN_CAP}
        s_cbranch_scc1 {D}
        s_cbranch_vccz {D}
        s_sleep {sleep}
        s_branch {L}""")
        a.label(D)
    sLOC = 25
    sLOD = 30
    def grp_store(lines, sLOC=sLOC):
        X = a.newlabel("far"); Y = a.newlabel("std")
        a(f"s_cmp_eq_u32 s{sLOC}, 0\ns_cbranch_scc1 {X}")
        for l in lines: a(l)
        a.label(Y)
        far.append((X, Y, lines))
    far = []
    def flag_store(soff, vt):
        a(f"v_mov_b64 {vr(vt,2)}, {sr(sEP,2)}\ns_mov_b64 exec, 1")
        grp_store([f"buffer_store_dwordx2 {vr(vt,2)}, off, {sr(rWS,4)}, s{soff}"])
        a("s_mov_b64 exec, -1")
    def ts_dump():
        if opt.get("probe") and opt["probe"][0] == role[0]:
            L = a.newlabel("pad")
            a.label(L)
            a(f"s_sleep 2\ns_memrealtime s[96:97]\ns_waitcnt lgkmcnt(0)\ns_sub_u32 s96, s96, s98\ns_cmp_lt_u32 s96, 4000\ns_cbranch_scc1 {L}")
        if not ts: return
        a(f"""s_sleep 127
        s_sleep 127
        s_sleep 127
        s_waitcnt lgkmcnt(0)
        s_mul_i32 s{sA}, s2, 12
        s_add_u32 s{sA}, s{sA}, s{sW}
        s_lshl_b32 s{sA}, s{sA}, 6
        s_add_u32 s{sA}, s{sA}, {TSB}
        s_mov_b64 exec, 1""")
        for q in range(4):
            for j in range(4): a(f"v_mov_b32 v{4+j}, s{TS0 + 2 * (4 * q + j)}")
            a(f"buffer_store_dwordx4 v[4:7], off, {sr(rWS,4)}, s{sA} offset:{16*q}\ns_nop 1")
        a("s_waitcnt vmcnt(0)")
    def maxtree(S, d):
        a(f"v_max3_f32 v{d}, v{S}, v{S+1}, v{S+2}")
        for j in range(3, 15, 2): a(f"v_max3_f32 v{d}, v{d}, v{S+j}, v{S+j+1}")
        a(f"v_max_f32 v{d}, v{d}, v{S+15}")
    def e(S, i): return f"v_exp_f32 v{S+i}, v{S+i}"
    def c(S, j): return f"v_cvt_pk_bf16_f32 v{S + (j & 3) + 8 * (j >> 2)}, v{S+2*j}, v{S+2*j+1}"
    PFS = opt.get("pfstride", 7)
    def l2_prefetch(r, nbytes, vaddr, vdummy, part, nparts):
        chunk = 64 << PFS
        rounds = -(-nbytes // (chunk * 32))
        a(f"s_lshr_b32 s{sF}, s2, 3\ns_mul_i32 s{sF}, s{sF}, {chunk}")
        if part is not None:
            a(f"s_mul_i32 s{sCAP}, s{part}, {chunk*32}\ns_add_u32 s{sF}, s{sF}, s{sCAP}")
        for i in range(-(-rounds // nparts)):
            a(f"buffer_load_dword v{vdummy}, v{vaddr}, {sr(r,4)}, s{sF} offen")
            a(f"s_add_u32 s{sF}, s{sF}, {chunk*32*nparts}")

    FS_ = opt.get('fs', 5)
    NKT = opt.get('nkt', 2)
    BC = opt.get('bc', 0)
    TQ, TC, HLOC = opt.get("tq", 2), opt.get("tc", 4), opt.get("hloc", 0)
    def chip_touch(va, vd):
        a(f"s_mov_b32 exec_hi, 0x7ff\ns_mul_i32 s{sF}, s2, 5504")
        for p_ in (pW1, pW2):
            srd(rT, p_, 512 * W1P)
            a(f"buffer_load_dword v{vd}, v{va}, {sr(rT,4)}, s{sF} offen")
        srd(rT, pWO, 0x80000)
        a(f"s_mov_b64 exec, 0xffff\ns_lshl_b32 s{sF}, s2, 11\nbuffer_load_dword v{vd}, v{va}, {sr(rT,4)}, s{sF} offen\ns_mov_b64 exec, -1")
    def a_touch(lab):
        a(f"s_cmp_lg_u32 s{sW}, 7\ns_cbranch_scc1 {lab}\nv_lshlrev_b32 v14, 4, v0")
        chip_touch(14, 15)
        a.label(lab)
    if opt.get("probe"): a("s_memrealtime s[98:99]")
    a(f"""s_memrealtime {sr(sM,2)}
    s_load_dwordx16 s[8:23], s[0:1], 0
    s_load_dwordx8 s[24:31], s[0:1], 64
    s_load_dwordx2 s[32:33], s[0:1], 96
    s_cmp_ge_u32 s2, 256
    s_cbranch_scc1 L_end""")
    if ts:
        for i in range(16): a(f"s_mov_b32 s{TS0+2*i}, 0")
    TS(0)
    a(f"""v_lshrrev_b32 v1, 6, v0
    s_and_b32 s{sRB}, s2, 7
    v_readfirstlane_b32 s{sW}, v1
    s_lshl_b32 s{sRB}, s{sRB}, 2
    s_lshr_b32 s{sA}, s2, 6
    s_add_u32 s{sRB}, s{sRB}, s{sA}
    s_bfe_u32 s{sG}, s2, 0x30003
    s_lshr_b32 s{sKG}, s{sG}, 1
    s_and_b32 s{sCH}, s{sG}, 1
    v_and_b32 v0, 63, v0""")
    CP = opt.get("cpf", 1)
    if CP:
        a(f"""s_cmp_lg_u32 s{sW}, 10
        s_cbranch_scc1 L_nocp
        s_getpc_b64 s[48:49]
        v_lshlrev_b32 v2, 7, v0""")
        if CP == 1:
            a(f"""s_lshr_b32 s{sA}, s2, 3
            s_lshl_b32 s{sA}, s{sA}, 10
            v_add_u32 v2, s{sA}, v2
            v_min_u32 v2, 24576, v2
            s_mov_b64 exec, 0xff
            global_load_dword v6, v2, s[48:49]
            s_mov_b64 exec, -1""")
        else:
            a(f"""global_load_dword v6, v2, s[48:49]
            v_add_u32 v2, 8192, v2
            global_load_dword v6, v2, s[48:49]""")
        a.label("L_nocp")
    a(f"""s_cmp_ge_u32 s{sW}, 8
    s_cbranch_scc1 L_gwave""")

    vL4, vAD, vT = 0, 1, 2
    Q, K, V, S0, S1, ACC, CIN = 4, 8, 40, 104, 120, 136, 152
    sKVO, sKB = sE, 45
    sQS, sSS, sTG = (0, 1), (sI, sRT), 48
    a(f"""v_lshrrev_b32 v3, 5, v0
    v_and_b32 v4, 31, v0
    s_lshl_b32 s{sA}, s{sW}, 1
    v_add_u32 v3, s{sA}, v3
    v_lshlrev_b32 v1, 10, v3
    v_lshl_add_u32 v5, v4, 4, v1
    s_lshl_b32 s{sB}, s{sRB}, 16
    s_lshl_b32 s{sC}, s{sKG}, 14
    s_add_u32 s{sD}, s{sB}, s{sC}
    s_waitcnt lgkmcnt(0)""")
    srd(rX, pX, 0x200000)
    AW = opt.get("aw", 0)
    if AW:
        a(f"""s_cmp_eq_u32 s{sCH}, 0
        s_cselect_b32 s{rW}, s{pWK}, s{pWV}
        s_cselect_b32 s{rW+1}, s{pWK+1}, s{pWV+1}
        s_mov_b32 s{rW+2}, 16384
        s_mov_b32 s{rW+3}, 0x20000
        s_lshl_b32 s{sA}, s{sW}, 11
        s_add_u32 m0, s{sA}, {WKV}
        v_lshlrev_b32 v6, 4, v0
        buffer_load_dwordx4 v6, {sr(rW,4)}, s{sA} offen lds
        buffer_load_dwordx4 v6, {sr(rW,4)}, s{sA} offen offset:1024 lds""")
    a(f"""buffer_load_dwordx4 v[8:11], v5, {sr(rX,4)}, s{sD} offen
    buffer_load_dwordx4 v[12:15], v5, {sr(rX,4)}, s{sD} offen offset:512""")
    def x_load(it):
        a(f"""s_xor_b32 s{sD}, s{sC}, {it << 14}
        s_add_u32 s{sD}, s{sB}, s{sD}
        buffer_load_dwordx4 {vr(8+8*it,4)}, v5, {sr(rX,4)}, s{sD} offen
        buffer_load_dwordx4 {vr(12+8*it,4)}, v5, {sr(rX,4)}, s{sD} offen offset:512""")
    srd(rWS, pWS, WS_BYTES)
    vGC, vQW, vOZ, vCW, vKA, vVA, vFL, vF2 = CIN, CIN + 1, CIN + 2, CIN + 3, CIN + 4, CIN + 5, CIN + 6, CIN + 7
    for i in range(2): a(f"v_mov_b64 {vr(ACC+2*i,2)}, 0")
    a(f"""v_mov_b32 v{vGC}, {GC}
    v_lshlrev_b32 v{vFL}, {FS_}, v4
    v_and_b32 v6, 15, v0
    v_cmp_eq_u32 vcc, 0, v6
    ds_write_b128 v{vGC}, {vr(ACC,4)}
    ds_write_b128 v{vGC}, {vr(ACC,4)} offset:16
    ds_write_b128 v{vGC}, {vr(ACC,4)} offset:32
    ds_write_b128 v{vGC}, {vr(ACC,4)} offset:48
    v_xor_b32 v4, v4, v3
    v_lshl_add_u32 v2, v4, 4, v1
    v_lshlrev_b32 v3, 2, v3
    v_add_u32 v3, {RSTD}, v3
    v_mov_b32 v{CIN+8}, 0x3f803f80
    v_mov_b32 v{CIN+9}, 0x3f80
    v_mov_b32 v{CIN+10}, 0x3f800000
    v_cndmask_b32 v{V+4}, 0, v{CIN+8}, vcc
    v_cndmask_b32 v{V+5}, 0, v{CIN+8}, vcc""")
    for i in range(1, 16): a(f"v_mov_b64 {vr(V+8*(i>>1)+4+2*(i&1),2)}, {vr(V+4,2)}")
    a(f"""v_lshlrev_b32 v{vKA}, 4, v0
    v_lshrrev_b32 v4, {6 - NKT}, v0
    v_lshlrev_b32 v{vF2}, {FS_+1}, v4
    v_lshlrev_b32 v{vL4}, 2, v0
    s_mov_b32 s{sA}, 0x3b000000""")
    U, R0 = S0, S1
    cOne2, cLo, cHi = CIN + 8, CIN + 9, CIN + 10
    def red32(rs):
        pad = "s_nop 1\n" if len(rs) == 1 else ""
        for mode in ("quad_perm:[1,0,3,2]", "quad_perm:[2,3,0,1]", "row_half_mirror", "row_mirror"):
            a(pad + "\n".join(f"v_add_f32_dpp v{r}, v{r}, v{r} {mode} row_mask:0xf bank_mask:0xf" for r in rs))
        for r in rs: a(f"v_mov_b32 v{r+1}, v{r}")
        a(pad + "\n".join(f"v_permlane16_swap_b32 v{r}, v{r+1}" for r in rs))
        for r in rs: a(f"v_add_f32 v{r}, v{r}, v{r+1}")
    def centre(its):
        for j in range(8):
            for it in its:
                X, R = 8 + 8 * it, R0 + 2 * (it % 3)
                a(f"v_dot2_f32_bf16 v{R+(j&1)}, v{X+j}, v{cOne2}, {'0' if j < 2 else f'v{R+(j&1)}'}")
        a("s_nop 2" if len(its) == 1 else "s_nop 0")
        for it in its: a(f"v_add_f32 v{R0+2*(it%3)}, v{R0+2*(it%3)}, v{R0+2*(it%3)+1}")
        red32([R0 + 2 * (it % 3) for it in its])
        for it in its: a(f"v_mul_f32 v{R0+2*(it%3)}, 0xbb000000, v{R0+2*(it%3)}")
        for it in its:
            X, R = 8 + 8 * it, R0 + 2 * (it % 3)
            a(f"s_xor_b32 s{sD}, s{sC}, {it << 14}\nv_add_u32 v7, s{sD}, v2")
            for j in range(8):
                a(f"v_dot2_f32_bf16 v{U+2*j}, v{X+j}, v{cLo}, v{R}\nv_dot2_f32_bf16 v{U+2*j+1}, v{X+j}, v{cHi}, v{R}")
            for j in range(8):
                a(f"v_cvt_pk_bf16_f32 v{X+j}, v{U+2*j}, v{U+2*j+1}")
                if it: pass
                elif j == 0: a(f"v_pk_mul_f32 {vr(R,2)}, {vr(U,2)}, {vr(U,2)}")
                else: a(f"v_pk_fma_f32 {vr(R,2)}, {vr(U+2*j,2)}, {vr(U+2*j,2)}, {vr(R,2)}")
                if j == 3: a(f"ds_write_b128 v7, {vr(X,4)}")
            a(f"ds_write_b128 v7, {vr(X+4,4)} offset:512")
    def scales(its):
        for it in its: a(f"v_add_f32 v{R0+2*(it%3)}, v{R0+2*(it%3)}, v{R0+2*(it%3)+1}")
        red32([R0 + 2 * (it % 3) for it in its])
        a(f"v_mov_b32 v7, 0x3727c5ac")
        for it in its: a(f"v_fma_f32 v{R0+2*(it%3)}, v{R0+2*(it%3)}, s{sA}, v7")
        for it in its: a(f"v_rsq_f32 v{R0+2*(it%3)}, v{R0+2*(it%3)}")
        for it in its:
            a(f"s_xor_b32 s{sD}, s{sC}, {it << 14}\ns_lshr_b32 s{sD}, s{sD}, 8\nv_add_u32 v{R0+2*(it%3)+1}, s{sD}, v3")
            a(f"ds_write_b32 v{R0+2*(it%3)+1}, v{R0+2*(it%3)}")
    a("s_setprio 2\ns_waitcnt lgkmcnt(0)\ns_barrier")
    TS(8)
    XH = opt.get("xh", 1)
    for it in range(1, 1 + XH): x_load(it)
    if XH < 3:
        a(f"s_cmp_ge_u32 s{sW}, 4\ns_cbranch_scc1 L_xh1")
        for it in range(1 + XH, 4): x_load(it)
        a(f"s_waitcnt vmcnt(6)\ns_branch L_xh2")
        a.label("L_xh1")
        a(f"s_waitcnt vmcnt({2 * XH})")
        a.label("L_xh2")
    else: a("s_waitcnt vmcnt(6)")
    TS(1)
    if AW: lds_inc(C_KT, vGC, 7)
    centre([0]); scales([0])
    lds_inc(C_L0, vGC, 7)
    if XH < 3:
        a(f"s_cmp_lt_u32 s{sW}, 4\ns_cbranch_scc1 L_xh3")
        for it in range(1 + XH, 4): x_load(it)
        a.label("L_xh3")
    a("s_setprio 1")
    TS(2)
    a("s_waitcnt vmcnt(0)")
    TS(12)
    centre([1, 2, 3])
    lds_inc(C_XN, vGC, vT)
    a("s_setprio 0")
    TS(3)
    a(f"s_mov_b32 s{sD}, 0xffff0000")
    for it in (1, 2, 3):
        X, R = 8 + 8 * it, R0 + 2 * (it % 3)
        for j in range(8): a(f"v_lshlrev_b32 v{U+2*j}, 16, v{X+j}\nv_and_b32 v{U+2*j+1}, s{sD}, v{X+j}")
        a(f"v_pk_mul_f32 {vr(R,2)}, {vr(U,2)}, {vr(U,2)}")
        for j in range(1, 8): a(f"v_pk_fma_f32 {vr(R,2)}, {vr(U+2*j,2)}, {vr(U+2*j,2)}, {vr(R,2)}")
    scales([1, 2, 3])
    lds_inc(C_RS, vGC, vT)
    TS(5)

    lds_spin(C_FL, 1, vGC, vT, sleep=1)
    a(f"""ds_read_b64 v[8:9], v{vGC} offset:{C_EPOCH}
    s_add_u32 s{sKB}, s{sW}, s{sG}
    s_and_b32 s{sKB}, s{sKB}, 7
    s_lshl_b32 s{sKVO}, s{sKB}, 13
    s_add_u32 s{sA}, s{sKVO}, 4096
    s_add_u32 s{sC}, s{sKVO}, {VF}
    s_add_u32 s{sD}, s{sKVO}, {VF+4096}
    s_lshr_b32 s{sF}, s{sW}, 2
    s_and_b32 s{sB}, s{sW}, 3
    s_mul_i32 s{sQS[0]}, s{sF}, {QST}
    s_sub_u32 s{sQS[1]}, {QF + QST}, s{sQS[0]}
    s_add_u32 s{sQS[0]}, s{sQS[0]}, {QF}
    s_mul_i32 s{sSS[0]}, s{sB}, {SLOT}
    s_add_u32 s{sSS[0]}, s{sSS[0]}, {OACC}
    s_mul_i32 s{sF}, s{sF}, {4 * SLOT}
    s_sub_u32 s{sSS[1]}, s{sSS[0]}, s{sF}
    s_add_u32 s{sSS[1]}, s{sSS[1]}, {4 * SLOT}
    s_add_u32 s{sSS[0]}, s{sSS[0]}, s{sF}
    s_waitcnt lgkmcnt(0)
    v_readfirstlane_b32 s{sEP}, v8
    v_readfirstlane_b32 s{sEP+1}, v9
    s_cmp_lg_u32 s{sW}, {opt.get("ktw", 0)}
    s_cbranch_scc1 L_nokt
    s_lshl_b32 s{sB}, s{sRB}, {FS_+3}
    s_add_u32 s{sB}, s{sB}, {FLG_KV}""")
    a(f"s_sleep {opt.get('kt0', 4)}")
    flag_poll(vF2, sB, 12, sleep=2)
    a(f"""s_lshl_b32 s{sB}, s{sRB}, 11
    v_add_u32 v12, {KT}, v{vKA}
    buffer_load_dwordx4 {vr(K,4)}, v{vKA}, {sr(rWS,4)}, s{sB} offen sc1""")
    if NKT == 2: a(f"buffer_load_dwordx4 {vr(K+8,4)}, v{vKA}, {sr(rWS,4)}, s{sB} offen offset:1024 sc1")
    lds_inc(C_FL, vGC, vT)
    if opt.get("kp", 1):
        a(f"""s_lshl_b32 s{sB}, s{sKB}, {FS_+5}
        s_add_u32 s{sB}, s{sB}, {FLG_KV}
        s_nop 0
        buffer_load_dwordx2 v[14:15], v{vFL}, {sr(rWS,4)}, s{sB} offen sc1""")
    a(f"""s_waitcnt vmcnt({1 if opt.get("kp", 1) else 0})
    ds_write_b128 v12, {vr(K,4)}""")
    if NKT == 2: a(f"ds_write_b128 v12, {vr(K+8,4)} offset:1024")
    lds_inc(C_RS, vGC, vT)
    TS(11)
    a.label("L_nokt")
    W0 = opt.get("w0", 1)
    a(f"""s_mov_b32 s47, 5
    s_cmp_eq_u32 s{sW}, 0
    s_cselect_b32 s{rX}, s{pW1}, s{pW2}
    s_cselect_b32 s{rX+1}, s{pW1+1}, s{pW2+1}
    s_cmp_eq_u32 s{sW}, 2
    s_cselect_b32 s{rX}, s{pWO}, s{rX}
    s_cselect_b32 s{rX+1}, s{pWO+1}, s{rX+1}
    s_mov_b32 s{sF}, 5504
    s_cselect_b32 s{sF}, 2048, s{sF}
    s_mul_i32 s46, s2, s{sF}
    s_sub_u32 s{sB}, s{sW}, {1 if W0 else 0}
    s_cmp_lt_u32 s{sB}, {2 if W0 else 3}
    s_cbranch_scc1 L_touch
    s_mov_b32 s{rX}, s{pWS}
    s_mov_b32 s{rX+1}, s{pWS+1}
    s_lshl_b32 s46, s{sRB}, 4
    s_add_u32 s46, s46, s{sG}
    s_lshl_b32 s46, s46, 12
    s_add_u32 s46, s46, {OF + 2048}
    s_lshl_b32 s{sB}, s{sRB}, 3
    s_add_u32 s{sB}, s{sB}, s{sG}
    s_lshl_b32 s{sB}, s{sB}, 7
    s_add_u32 s{sB}, s{sB}, {FLG_H}
    s_cmp_lt_u32 s{sW}, 5
    s_cselect_b32 s46, s46, s{sB}
    s_cselect_b32 s{sF}, 2048, 64
    s_and_b32 s{sB}, s{sW}, 1
    s_lshl_b32 s{sB}, s{sB}, 15
    s_add_u32 s46, s46, s{sB}""")
    if W0:
        a(f"""s_sub_u32 s44, s{sW}, 1
        s_cmp_lt_u32 s44, 6
        s_cbranch_scc1 L_touch
        s_mov_b32 s{rX}, s{pOUT}
        s_mov_b32 s{rX+1}, s{pOUT+1}
        s_lshl_b32 s46, s{sRB}, 16
        s_add_u32 s46, s46, s{sB}
        s_lshl_b32 s{sB}, s{sG}, 7
        s_add_u32 s46, s46, s{sB}
        s_mov_b32 s{sF}, {31 * 1024 + 64 if W0 == 2 else 0}
        s_mov_b32 s47, 8""")
    a.label("L_touch")
    a(f"""s_add_u32 s{rX+2}, s46, s{sF}
    s_mov_b32 s{rX+3}, 0x20000
    s_mov_b32 m0, {QF + QST + B_W}""")
    if opt.get("gate", 1) == 1: lds_spin(C_FL, 2, vGC, vT, sleep=1)
    elif opt.get("g0"): a(f"s_sleep {opt['g0']}")
    a(f"""s_lshl_b32 s{sB}, s{sKB}, {FS_+5}
    s_add_u32 s{sB}, s{sB}, {FLG_KV}""")
    if opt.get("pprio"): a("s_setprio 3")
    flag_poll(vFL, sB, 14, sleep=opt.get("kvsleep", 4), preissued=(sW, opt.get("ktw", 0)) if opt.get("kp", 1) else False)
    if opt.get("pprio"): a("s_setprio 0")
    if opt.get("gate", 1) == 2: lds_spin(C_FL, 2, vGC, vT, sleep=0)
    if opt.get("wgate"):
        lds_inc(C_KT, vGC, vT)
        lds_spin(C_KT, 8, vGC, vT, sleep=0)
    TS(4)
    def ldK(t): a(f"buffer_load_dwordx4 {vr(K+4*t,4)}, v{vKA}, {sr(rWS,4)}, s{sKVO if t < 4 else sA} offen offset:{(t&3)*1024} sc1")
    def ldV(t): a(f"buffer_load_dwordx4 {vr(V+8*t,4)}, v{vKA}, {sr(rWS,4)}, s{sC if t < 4 else sD} offen offset:{(t&3)*1024} sc1")
    ldK(0)
    for t in range(7):
        ldK(t + 1); ldV(t)
    ldV(7)
    lds_inc(C_KV, vGC, vT)
    TS(10)
    lds_spin(C_QREADY, 4, vGC, vT, sleep=0)
    TS(6)
    if ts: a(f"s_memtime {sr(TS0+26,2)}")
    def touches(late_):
        L = a.newlabel("nt")
        a(f"s_sub_u32 s{sA}, s{sW}, 3\ns_cmp_lt_u32 s{sA}, 2\ns_cbranch_scc{0 if late_ else 1} {L}")
        touch1()
        a.label(L)
    def touch1():
        a(f"""v_lshlrev_b32 v{vT}, s47, v{vL4}
        s_mov_b32 exec_hi, 0x7ff
        buffer_load_dword v{vT}, {sr(rX,4)}, s46 offen lds
        s_mov_b32 exec_hi, -1""")
    ph = lambda s_: (s_ >> 1) & 1
    qoff = lambda s_: (4 * (s_ >> 2) + 2 * (s_ & 1)) * QST
    soff = lambda s_: (s_ & 1) * 8 * SLOT
    tag = lambda s_: sTG + 2 * (s_ >> 2) + ph(s_)
    def load_q(s_):
        return [f"v_lshl_add_u32 v{vAD}, v{vL4}, 2, s{sQS[ph(s_)]}", f"v_and_b32 v{vT}, 0x7f, v{vL4}",
                f"ds_read_b128 {vr(Q,4)}, v{vAD} offset:{qoff(s_)}", f"v_lshl_add_u32 v{vT}, v{vT}, 1, s{sQS[ph(s_)]}",
                f"ds_read_b64 {vr(CIN,2)}, v{vT} offset:{qoff(s_) + 1024}"]
    def cin_fill():
        for j in range(1, 8): a(f"v_mov_b64 {vr(CIN+2*j,2)}, {vr(CIN,2)}")
    def QK(t, S): return f"{MF32} {vr(S,16)}, {vr(K+4*t,4)}, {vr(Q,4)}, {vr(CIN,16)}"
    def PV(t, hf, S): return f"v_smfmac_f32_32x32x32_bf16 {vr(ACC,16)}, {vr(V+8*t+4*hf,4)}, {vr(S+8*hf,8)}, v{vIX}"
    vIX = vT + 1
    def acc_zero():
        a(f"v_mov_b32 v{ACC}, 0")
        for j in range(4): a(f"v_mov_b64 {vr(ACC+8+2*j,2)}, 0")
    def adr(s_): return [f"v_lshl_add_u32 v{vAD}, v{vL4}, 2, s{sSS[ph(s_)]}", f"v_add_u32 v{vT}, s{sSS[ph(s_)]}, v{vL4}"]
    def put(s_):
        return [adr(s_), [f"v_writelane_b32 v{ACC}, s{tag(s_)}, 63", f"ds_write_b128 v{vAD}, {vr(ACC+8,4)} offset:{soff(s_)}"],
                [f"ds_write_b128 v{vAD}, {vr(ACC+12,4)} offset:{soff(s_)+1024}"], [f"ds_write_b32 v{vT}, v{ACC} offset:{soff(s_)+2048}"]]
    def get(s_):
        return [f"ds_read_b32 v{ACC}, v{vT} offset:{soff(s_)+2048}", f"ds_read_b128 {vr(ACC+8,4)}, v{vAD} offset:{soff(s_)}",
                f"ds_read_b128 {vr(ACC+12,4)}, v{vAD} offset:{soff(s_)+1024}"]
    def vswap(t):
        for j in range(4): a(f"v_permlane16_swap_b32 v{V+8*t+4+j}, v{V+8*t+j}")
    for l in load_q(0): a(l)
    a("s_setprio 2")
    for j in range(4): a(f"s_add_u32 s{sTG+j}, s{sEP}, {j+1}")
    a(f"v_mov_b32 v{vIX}, 0xdddddddd")
    acc_zero()
    a("s_waitcnt lgkmcnt(0)")
    cin_fill()
    a("s_waitcnt vmcnt(15)\ns_nop 0")
    a(QK(0, S0))
    a("s_nop 10\ns_waitcnt vmcnt(14)")
    a.label("L_atop")
    SS = [S0, S1]
    VW = [12, 10, 8, 6, 4, 2, 1, 0]
    std = "e0 e1 P1 e2 e3 e4 QK e5 e6 e7 e8 e9 e10 P0 e11 e12 e13 e14 e15"
    late1 = "e0 e1 e2 P1 e3 e4 QK e5 e6 e7 e8 e9 e10 e11 P0 e12 e13 e14 e15"
    PRI = dict(opt.get("pri", [(10, 1), (19, 0), (21, 2), (31, 1), (39, 0), (41, 2), (55, 1), (62, 0)]))
    stubs = []
    TT, TS_ = 7, opt.get("tat", 50)
    for s_ in range(8):
        orders = {6: "e0 e1 P1 e2 L L e3 e4 QK e5 L L L e6 e7 e8 e9 e10 P0 e11 e12 e13 e14 e15",
                  7: "e0 e1 P1 G M e2 e3 QK e4 e5 e6 e7 e8 e9 P0 e10 X e11 e12 e13 e14 e15"}
        fl = []
        if s_ == 0:
            orders[0] = std.replace("P1 ", "")
            for t in range(8): orders[t] = orders.get(t, std).replace("e8 e9", "W e8 e9")
        elif ph(s_):
            orders[0] = "e0 e1 P1 e2 e3 e4 QK e5 e6 e7 e8 F e9 e10 F F F F e11 e12 e13 e14 e15 Y P0"
            orders[1] = late1
            fl = put(s_ - 1) + [(adr(s_) if ph(s_ - 1) != ph(s_) else []) + get(s_)]
        else:
            orders[0] = "e0 e1 P1 e2 e3 e4 QK e5 e6 e7 e8 F e9 e10 F e11 F e12 F e13 Z e14 e15 P0"
            orders[1] = late1
            fl = put(s_ - 1)
        if s_ == 7:
            orders[6] = std; orders[7] = std.replace("QK ", "")
        lq = load_q(s_ + 1) if s_ < 7 else []
        if s_ in (4, 5):
            lq[-1] += f"\nv_mov_b32 v{vAD}, s{sSS[0]}\nds_read_b32 v{vT}, v{vAD} offset:{soff(s_) + B_TAG}"
        for t in range(8):
            cur, nxt = SS[t & 1], SS[(t + 1) & 1]
            if 8 * s_ + t == TS_: touches(1)
            if 8 * s_ + t in PRI: a(f"s_setprio {PRI[8 * s_ + t]}")
            for tok in orders.get(t, std).split():
                if tok[0] == "e": a(e(cur, int(tok[1:])))
                elif tok[0] == "c": a(c(cur, int(tok[1:])))
                elif tok == "P1": a(PV((t - 1) & 7, 1, nxt))
                elif tok == "P0": a(PV(t, 0, cur))
                elif tok == "Z": acc_zero()
                elif tok == "QK": a(QK((t + 1) & 7, nxt))
                elif tok == "W":
                    a(f"s_waitcnt vmcnt({VW[t] + (1 if t > TT else 0)})")
                    vswap(t)
                    if t == TT: touches(0)
                elif tok == "G": a("s_waitcnt lgkmcnt(0)")
                elif tok == "M": cin_fill()
                elif tok == "F": a("\n".join(fl.pop(0)))
                elif tok == "L": a(lq.pop(0))
                elif tok == "Y":
                    a.label(f"L_got{s_}")
                    a(f"""s_waitcnt lgkmcnt(0)
                    v_readlane_b32 s{sA}, v{ACC}, 63
                    s_nop 0
                    s_cmp_lg_u32 s{sA}, s{tag(s_ - 2)}
                    s_cbranch_scc1 L_wait{s_}""")
                    a.label(f"L_go{s_}")
                    stubs.append((f"L_wait{s_}", f"L_go{s_}", f"L_got{s_}", get(s_), 1))
                elif tok == "X" and s_ in (4, 5):
                    a.label(f"L_grd{s_}")
                    a(f"""v_readfirstlane_b32 s{sA}, v{vT}
                    s_nop 0
                    s_cmp_lg_u32 s{sA}, s{sEP}
                    s_cbranch_scc1 L_gw{s_}""")
                    a.label(f"L_gok{s_}")
                    stubs.append((f"L_gw{s_}", f"L_gok{s_}", f"L_grd{s_}", [f"ds_read_b32 v{vT}, v{vAD} offset:{soff(s_) + B_TAG}", "s_waitcnt lgkmcnt(0)"], 0x10000 if s_ == 5 else (1 if opt.get("g4") else 0x10000)))
    TS(7)
    a("s_setprio 2\ns_nop 0")
    a(PV(7, 1, S1))
    fl = put(7)
    gCN, gOA, gLA, gCV = 16, 17, 18, 19
    sNF, sPF, sFT, sLOOP, sLOD_ = 10, 11, 24, 20, 30
    a(f"""v_mov_b32 v21, {GC}
    ds_read_b32 v20, v21 offset:{C_KT}
    s_lshl_b32 s{sA}, s{sW}, 2
    s_lshr_b32 s{sNF}, {opt.get("fmap", 0x2103)}, s{sA}
    s_and_b32 s{sNF}, s{sNF}, 3
    s_mul_i32 s{sA}, s{sNF}, {4 * SLOT}
    s_add_u32 s{sA}, s{sA}, {OACC}
    v_bfe_u32 v{gCN}, v0, 2, 2
    v_mul_u32_u24 v{gCN}, {SLOT}, v{gCN}
    v_add_u32 v{gCN}, s{sA}, v{gCN}""")
    a("\n".join(fl[0]))
    for x in fl[1:]: a("\n".join(x))
    if opt.get("delay_f1", 0) > 8:
        a(f"v_mov_b32 v4, {GC}")
        lds_inc(C_ABAR, 4, 5)
    if ts:
        a(f"s_memtime {sr(TS0+28,2)}\ns_waitcnt lgkmcnt(0)\ns_sub_u32 s{TS0+28}, s{TS0+28}, s{TS0+26}")
    TS(9)
    a(f"""s_cmp_ge_u32 s{sW}, 4
    s_cbranch_scc1 L_aend
    ds_read_b32 v{gCV}, v{gCN} offset:{B_TAG}
    v_lshlrev_b32 v2, 2, v0
    v_and_b32 v{gLA}, 0x7f, v0
    v_add_u32 v{gOA}, s{sA}, v2
    v_add_u32 v{gLA}, s{sA}, v{gLA}
    s_add_u32 s{sNF}, s{sNF}, 4
    s_mov_b32 s{sPF}, s{sNF}
    s_add_u32 s{sFT}, s{sEP}, 4
    s_mov_b32 s0, 4
    s_mov_b32 s{sLOOP}, 0
    s_mov_b32 s23, 0""")
    for r_ in (rX, rW, rT): srd(r_, pWS, 0)
    a(f"""s_waitcnt lgkmcnt(1)
    v_readfirstlane_b32 s{sLOC}, v20
    v_readfirstlane_b32 s{sLOD_}, v20
    s_branch L_ownw""")
    a.label("L_aend")
    ts_dump()
    a("s_endpgm")
    for w_, go, again, rd, inc in stubs:
        a.label(w_)
        if ts: a(f"s_add_u32 s{TS0+30}, s{TS0+30}, {inc}")
        a(f"""s_add_u32 s{sCAP}, s{sCAP}, 1
        s_cmp_gt_u32 s{sCAP}, {SPIN_CAP}
        s_cbranch_scc1 {go}
        s_sleep {opt.get("psleep", 2)}""")
        for l in rd: a(l)
        a(f"s_branch {again}")
    a.label("L_vs0")

    a(".p2align 6")
    a.label("L_gwave")
    role[0] = "G"
    gGC, gL16, gSW, gTR, gH, gR = 1, 2, 3, 4, 5, 6
    a(f"""s_setprio 3
    s_sub_u32 s{sI}, s{sW}, 8
    v_lshlrev_b32 v{gL16}, 4, v0
    v_lshlrev_b32 v10, {PFS}, v0
    s_sub_u32 s{sE}, s{sI}, 1
    s_waitcnt lgkmcnt(0)
    s_cmp_lg_u32 s{sI}, 0
    s_cbranch_scc1 L_g123""")
    a(f"""s_cmp_eq_u32 s{sCH}, 0
    s_cselect_b32 s{rW}, s{pWK}, s{pWV}
    s_cselect_b32 s{rW+1}, s{pWK+1}, s{pWV+1}
    s_mov_b32 s{rW+2}, 16384
    s_mov_b32 s{rW+3}, 0x20000""")
    for q in range(0 if AW else 4):
        a(f"s_mov_b32 m0, {WKV + q * 4096}\ns_mov_b32 s{sA}, {q*4096}")
        for j in range(4): a(f"buffer_load_dwordx4 v{gL16}, {sr(rW,4)}, s{sA} offen offset:{j*1024} lds")
    a("s_branch L_gcom")
    a.label("L_g123")
    srd(rW, pWQ, 0x80000)
    if TQ == 1:
        a(f"s_cmp_eq_u32 s{sI}, 3\ns_cbranch_scc1 L_gcom")
        l2_prefetch(rW, 0x80000, 10, 6, sE, 2)
    if TQ in (2, 3):
        a(f"s_cmp_lg_u32 s{sI}, 1\ns_cbranch_scc1 L_gcom")
        a(f"s_mov_b64 exec, 0xffff\ns_lshl_b32 s{sF}, s2, 11\nbuffer_load_dword v6, v10, {sr(rW,4)}, s{sF} offen\ns_mov_b64 exec, -1")
    a.label("L_gcom")
    srd(rWS, pWS, WS_BYTES)
    srd(rT, pDBG, 256)
    a(f"""s_lshr_b32 s{sRT}, s{sI}, 1
    s_and_b32 s{sCT}, s{sI}, 1
    v_lshrrev_b32 v7, 3, v0
    v_lshrrev_b32 v8, 2, v0
    v_and_b32 v8, 4, v8
    v_and_b32 v9, 7, v0
    v_xor_b32 v8, v8, v9
    v_lshlrev_b32 v8, 4, v8
    v_lshl_add_u32 v{gSW}, v7, 10, v8
    v_mov_b32 v{gGC}, {GC}
    v_lshrrev_b32 v{gH}, 5, v0
    v_and_b32 v7, 3, v0
    v_and_b32 v8, 16, v0
    v_lshlrev_b32 v8, 1, v8
    v_lshl_add_u32 v{gTR}, v7, 3, v8
    s_cmp_eq_u32 s{sI}, 0
    s_cbranch_scc1 L_g0""")
    a(f"""s_lshl_b32 s{sB}, s{sE}, 13
    s_lshl_b32 s{sC}, s{sG}, 7
    s_add_u32 s{sB}, s{sB}, s{sC}
    s_lshl_b32 s{sA}, s{sE}, 10
    s_add_u32 s{sA}, s{sA}, {RING}
    s_setprio 0
    s_barrier
    s_cmp_lg_u32 s{sI}, 3
    s_cbranch_scc1 L_wqpre
    s_setprio 3
    s_mov_b32 s{sCAP}, 0""")
    a.label("L_epoch")
    a(f"""buffer_load_dwordx2 v[14:15], off, {sr(rT,4)}, 0 sc1
    s_add_u32 s{sCAP}, s{sCAP}, 1
    s_cmp_gt_u32 s{sCAP}, {SPIN_CAP}
    s_cbranch_scc1 L_gb2
    s_waitcnt vmcnt(0)
    v_readfirstlane_b32 s{sEP+1}, v15
    s_nop 0
    s_cmp_eq_u32 s{sEP+1}, 0
    s_cbranch_scc1 L_epoch
    ds_write_b64 v{gGC}, v[14:15] offset:{C_EPOCH}""")
    TS(1)
    if opt.get("z_t1") == 1:
        srd(rW, pW1, 512 * W1P)
        a(f"s_mov_b32 exec_hi, 0x7ff\ns_mul_i32 s{sF}, s2, 5504\nbuffer_load_dword v6, v10, {sr(rW,4)}, s{sF} offen\ns_mov_b64 exec, -1")
    srd(rW, pB1, W1P)
    a(f"buffer_load_dword v6, v10, {sr(rW,4)}, 0 offen")
    srd(rW, pB2, 1024)
    a(f"buffer_load_dword v6, v10, {sr(rW,4)}, 0 offen\ns_branch L_gb2")
    a.label("L_wqpre")
    if TQ in (3, 4):
        if opt.get("tqs"): a(f"s_sleep {opt['tqs']}")
        l2_prefetch(rW, 0x80000, 10, 6, sE, 2)
        if opt.get("tqw"): a("s_waitcnt vmcnt(0)")
    a.label("L_wqloop")
    a(f"""s_mov_b32 m0, s{sA}
    s_add_u32 s{sA}, s{sA}, 2048
    buffer_load_dwordx4 v{gSW}, {sr(rW,4)}, s{sB} offen lds
    s_add_u32 s{sB}, s{sB}, 16384
    s_waitcnt vmcnt({opt.get("wqd", 10)})
    s_cmp_lt_u32 s{sA}, {RING + 65536}
    s_cbranch_scc1 L_wqloop
    s_setprio 3
    s_waitcnt vmcnt(16)""")
    lds_inc(C_WQ, gGC, 7)
    a("s_branch L_gb2")
    a.label("L_g0")
    WF, XF, DD = 32, 96, 160
    a(f"""s_cmp_lg_u32 s2, 0
    s_cbranch_scc1 L_noep
    v_mov_b32 v10, s{sM}
    v_mov_b32 v11, s{sM+1}
    v_or_b32 v11, 0x80000000, v11
    v_mov_b64 v[12:13], 0
    s_mov_b64 exec, 1
    buffer_atomic_cmpswap_x2 v[10:13], off, {sr(rT,4)}, 0 sc1
    s_mov_b64 exec, -1
    s_nop 0""")
    a.label("L_noep")
    if opt.get("prewr"):
        a(f"""s_lshl_b32 s{sA}, s{sRB}, 3
        s_add_u32 s{sA}, s{sA}, s{sG}
        s_lshl_b32 s{sA}, s{sA}, 7
        s_add_u32 s{sA}, s{sA}, {FLG_KV}
        v_mov_b64 v[16:17], 0
        v_mov_b64 v[18:19], 0
        s_mov_b64 exec, 0xff
        buffer_store_dwordx4 v[16:19], v{gL16}, {sr(rWS,4)}, s{sA} offen sc1
        s_mov_b64 exec, -1""")
    a("s_barrier")
    a(f"""v_and_b32 v7, 15, v0
    v_lshrrev_b32 v8, 4, v0
    v_lshlrev_b32 v9, 3, v7
    v_lshl_add_u32 v9, v8, 8, v9
    v_add_u32 v9, {WKV}, v9
    s_lshl_b32 s{sA}, s{sKG}, 14
    v_xor_b32 v10, v7, v8
    v_lshlrev_b32 v10, 4, v10
    v_lshl_add_u32 v10, v7, 10, v10
    v_add_u32 v10, s{sA}, v10
    v_xor_b32 v11, 64, v10
    v_xor_b32 v12, 0x80, v10
    v_xor_b32 v13, 0xc0, v10
    s_lshl_b32 s{sA}, s{sKG}, 6
    s_add_u32 s{sA}, s{sA}, {RSTD}
    v_lshl_add_u32 v20, v7, 2, s{sA}
    v_lshl_add_u32 v21, v8, 4, s{sA}
    s_cmp_eq_u32 s{sCH}, 0
    s_cselect_b32 s{sD}, {KF}, {VF}
    s_cselect_b32 s{sB}, 9, 3
    s_cselect_b32 s{sC}, 3, 9
    v_and_b32 v16, 1, v8
    v_lshlrev_b32 v16, s{sB}, v16
    v_lshrrev_b32 v17, 1, v8
    v_lshl_add_u32 v16, v17, s{sC}, v16
    v_lshl_add_u32 v16, v7, 4, v16
    s_xor_b32 s{sA}, s{sKG}, s{sCH}
    s_and_b32 s{sA}, s{sA}, 1
    s_lshl_b32 s{sA}, s{sA}, 8
    s_add_u32 s{sD}, s{sD}, s{sA}
    s_lshl_b32 s{sA}, s{sRB}, 1
    s_lshr_b32 s{sB}, s{sKG}, 1
    s_add_u32 s{sA}, s{sA}, s{sB}
    s_lshl_b32 s{sA}, s{sA}, 10
    s_add_u32 s{sD}, s{sD}, s{sA}
    s_lshl_b32 s{sA}, s{sRB}, 3
    s_add_u32 s{sA}, s{sA}, s{sG}
    s_lshl_b32 s{sA}, s{sA}, {FS_}
    s_add_u32 s{sA}, s{sA}, {FLG_KV}
    s_waitcnt vmcnt(0)""")
    if AW: lds_spin(C_KT, 8, gGC, 14, sleep=0)
    for ks in range(16):
        a(f"ds_read_b64_tr_b16 {vr(WF+4*ks,2)}, v9 offset:{ks*1024}\nds_read_b64_tr_b16 {vr(WF+4*ks+2,2)}, v9 offset:{ks*1024+128}")
    TS(1)
    lds_spin(C_L0, 8, gGC, 14, sleep=0)
    TS(2)
    for ks in range(16):
        a(f"ds_read_b128 {vr(XF+4*ks,4)}, v{10+(ks&3)} offset:{(ks>>2)*256}")
    a(f"""s_cmp_eq_u32 s{sCH}, 0
    s_cbranch_scc0 L_vchain""")
    for sw in (False, True):
        if sw: a.label("L_vchain")
        for ks in range(16):
            A_, B_ = (XF, WF) if sw else (WF, XF)
            if ks % 4 == 0: a(f"s_waitcnt lgkmcnt({12 - ks})")
            if ks == 12: a(f"ds_read_b128 v[24:27], v21" if sw else "ds_read_b32 v24, v20")
            a(f"v_mfma_f32_16x16x32_bf16 {vr(DD,4)}, {vr(A_+4*ks,4)}, {vr(B_+4*ks,4)}, {'0' if ks == 0 else vr(DD,4)}")
        if not sw: a("s_waitcnt lgkmcnt(0)\nv_mov_b32 v25, v24\nv_mov_b64 v[26:27], v[24:25]\ns_branch L_kvst")
    a("s_waitcnt lgkmcnt(0)\ns_nop 2")
    a.label("L_kvst")
    a(f"""s_nop 3
    v_pk_mul_f32 {vr(DD,2)}, {vr(DD,2)}, v[24:25]
    v_pk_mul_f32 {vr(DD+2,2)}, {vr(DD+2,2)}, v[26:27]
    v_cvt_pk_bf16_f32 v18, v{DD}, v{DD+1}
    v_cvt_pk_bf16_f32 v19, v{DD+2}, v{DD+3}
    buffer_store_dwordx2 v[18:19], v16, {sr(rWS,4)}, s{sD} offen sc1""")
    TS(13)
    lds_spin(C_EPOCH + 4, 1, gGC, 14, sleep=0)
    a(f"""ds_read_b64 v[20:21], v{gGC} offset:{C_EPOCH}
    s_getreg_b32 s{sD}, hwreg(HW_REG_XCC_ID)
    v_mov_b32 v22, s{sD}
    v_mov_b32 v23, 0
    s_mov_b64 exec, 1
    s_waitcnt vmcnt(0) lgkmcnt(0)
    buffer_store_dwordx4 v[20:23], off, {sr(rWS,4)}, s{sA} sc1
    s_mov_b64 exec, -1""")
    lds_inc(C_FL, gGC, 14)
    TS(3)
    a.label("L_gb2")
    QA, QW, QX = 8, 24, 152
    a(f"""v_bfe_u32 v9, v0, 2, 2
    v_lshrrev_b32 v8, 1, v9
    v_xor_b32 v8, s{sCT}, v8
    v_lshl_add_u32 v8, v8, 6, v{gTR}
    v_lshl_add_u32 v8, v9, 7, v8
    v_lshl_add_u32 v8, v{gH}, 10, v8
    v_add_u32 v8, {RING}, v8""")
    a(f"v_mov_b32 v{gTR}, v8")
    kord = [aa + 8 * (2 * hb + b) for hb in range(2) for aa in range(8) for b in range(2)]
    def w_pre(hb):
        for n in range(16 * hb, 16 * hb + 16):
            ks = kord[n]
            a(f"ds_read_b64_tr_b16 {vr(QW+4*n,2)}, v{gTR} offset:{ks*2048}\nds_read_b64_tr_b16 {vr(QW+4*n+2,2)}, v{gTR} offset:{ks*2048+512}")
    a(f"""v_and_b32 v7, 31, v0
    v_and_b32 v9, 15, v0
    v_xor_b32 v9, v9, v{gH}
    v_lshlrev_b32 v9, 4, v9
    v_lshl_add_u32 v7, v7, 10, v9
    s_lshl_b32 s{sC}, s{sRT}, 15
    v_add_u32 v7, s{sC}, v7""")
    sRNG = 35
    sT1, sT2, sNG = 0, 1, sE
    sN, sSO = sA, sB
    srd(rW, pW1, 512 * W1P)
    a(f"""s_lshl_b32 s{sT1}, s{sG}, 2
    s_add_u32 s{sT1}, s{sT1}, s{sI}
    s_sub_u32 s{sT2}, 1, s{sRT}
    s_lshl_b32 s{sT2}, s{sT2}, 3
    s_add_u32 s{sT2}, s{sT2}, s{sG}
    s_add_u32 s{sT2}, s{sT2}, 32
    s_cmp_lt_u32 s{sT2}, 43
    s_cselect_b32 s{sNG}, 12, 8
    s_mul_i32 s{sRNG}, s{sI}, {RSZ}
    s_add_u32 s{sRNG}, s{sRNG}, {RING}
    s_lshl_b32 s{sSO}, s{sT1}, 6""")
    lds_spin(C_WQ, 2, gGC, 9, sleep=1)
    def t1(lab):
        a(f"""s_cmp_lg_u32 s{sI}, 3
        s_cbranch_scc1 {lab}
        v_lshlrev_b32 v10, 7, v0
        s_mov_b32 exec_hi, 0x7ff
        s_mul_i32 s{sF}, s2, 5504
        buffer_load_dword v6, v10, {sr(rW,4)}, s{sF} offen
        s_mov_b64 exec, -1""")
        a.label(lab)
    if opt.get("z_t1", 2) == 2: t1("L_t12")
    w_pre(0)
    a(f"""s_sub_u32 s{sD}, s{sI}, 1
    s_cmp_ge_u32 s{sD}, 2
    s_cbranch_scc1 L_wq2
    s_waitcnt vmcnt(0)""")
    lds_inc(C_WQ2, gGC, 9)
    a.label("L_wq2")
    lds_spin(C_WQ2, 2, gGC, 9, sleep=1)
    if opt.get("z_t1") == 3: t1("L_t13")
    w_pre(1)
    TS(12)
    lds_spin(C_XN, 8, gGC, 9, sleep=1)
    TS(4)
    land = {}
    cur_a = [0]
    def xread(n, dst):
        aa, b = kord[n] & 7, kord[n] >> 3
        if aa != cur_a[0]: a(f"v_xor_b32 v7, {((aa ^ cur_a[0]) * 32)}, v7")
        cur_a[0] = aa
        a(f"ds_read_b128 {vr(dst,4)}, v7 offset:{b*256}")
        land[n] = dst
    ordr = sorted(range(32), key=lambda n: (kord[n] & 7, kord[n] >> 3))
    for i_ in range(4): xread(ordr[i_], QX + 4 * i_)
    nxt_rd = 4
    for i_, n in enumerate(ordr):
        a(f"s_waitcnt lgkmcnt({nxt_rd - i_ - 1})")
        a(f"{MF32} {vr(QA,16)}, {vr(QW+4*n,4)}, {vr(land[n],4)}, {'0' if i_ == 0 else vr(QA,16)}")
        if nxt_rd < 32: xread(ordr[nxt_rd], land[n]); nxt_rd += 1
        if i_ < 5 and nxt_rd < 32: xread(ordr[nxt_rd], QW + 4 * n); nxt_rd += 1
    gRS = 166
    if opt.get("pro"): TS(9)
    T0 = QX
    a(f"""v_and_b32 v7, 31, v0
    v_lshlrev_b32 v{T0}, 2, v7
    v_add_u32 v{T0}, {RSTD}, v{T0}
    v_add_u32 v{T0+1}, {KT}, v{gL16}
    s_mov_b32 s{sCAP}, 0""")
    a.label("L_rs")
    a(f"""ds_read_b32 v{T0+12}, v{gGC} offset:{C_RS}
    ds_read_b32 v{gRS}, v{T0}
    ds_read_b32 v{gRS+1}, v{T0} offset:128
    ds_read_b64 {vr(T0+2,2)}, v{gGC} offset:{C_EPOCH}
    ds_read_b128 {vr(T0+4,4)}, v{T0+1}
    ds_read_b128 v[100:103], v{T0+1} offset:1024
    s_add_u32 s{sCAP}, s{sCAP}, 1
    s_cmp_gt_u32 s{sCAP}, {SPIN_CAP}
    s_cbranch_scc1 L_rsd
    s_waitcnt lgkmcnt(5)
    v_readfirstlane_b32 s{sF}, v{T0+12}
    s_nop 0
    s_cmp_lt_u32 s{sF}, 9
    s_cbranch_scc1 L_rs""")
    a.label("L_rsd")
    a(f"""    s_lshl_b32 s{sA}, s{sCT}, 2
    s_add_u32 s{sA}, s{sA}, s{sRT}
    s_mul_i32 s{sA}, s{sA}, {QST}
    s_add_u32 s{sA}, s{sA}, {QF}
    v_add_u32 v{T0+10}, s{sA}, v{gL16}
    v_lshl_add_u32 v{T0+11}, v7, 3, s{sA}
    s_cmp_eq_u32 s{sRT}, 0
    s_cselect_b64 vcc, -1, 0
    s_waitcnt lgkmcnt(0)
    v_readfirstlane_b32 s{sEP}, v{T0+2}
    v_cndmask_b32 v{T0+8}, v{gRS+1}, v{gRS}, vcc
    v_readfirstlane_b32 s{sEP+1}, v{T0+3}
    v_mul_f32 v{T0+8}, 0x3eb8aa3b, v{T0+8}""")
    if opt.get("pro"): TS(10)
    for hd in range(2):
        for j in range(4 * hd, 4 * hd + 4): a(f"v_pk_mul_f32 {vr(QA+2*j,2)}, {vr(QA+2*j,2)}, {vr(T0+8,2)} op_sel_hi:[1,0]")
        for j in range(4 * hd, 4 * hd + 4): a(f"v_cvt_pk_bf16_f32 v{QA+j}, v{QA+2*j}, v{QA+2*j+1}")
        a(f"ds_write_b128 v{T0+10}, {vr(QA+4*hd,4)} offset:{2*QST*hd}\ns_nop 0")
        a(f"{MF32} {vr(24+16*hd,16)}, {vr(T0+4,4)}, {vr(QA+4*hd,4)}, 0")
        if NKT == 2: a(f"{MF32} {vr(68+16*hd,16)}, v[100:103], {vr(QA+4*hd,4)}, 0")
    a("s_nop 1")
    def max2(S, d):
        maxtree(S, d)
        if NKT == 2:
            for j in range(0, 16, 2): a(f"v_max3_f32 v{d}, v{d}, v{S+44+j}, v{S+45+j}")
    max2(24, 56)
    a("v_mov_b32 v57, v56\ns_nop 1\nv_permlane32_swap_b32 v56, v57")
    max2(40, 58)
    a(f"""v_mov_b32 v59, v58
    v_max_f32 v56, v56, v57
    v_sub_f32 v60, {-OFFS}, v56
    v_permlane32_swap_b32 v58, v59
    v_sub_f32 v61, {-OFFS}, v56
    v_max_f32 v58, v58, v59
    ds_write_b64 v{T0+11}, v[60:61] offset:1024
    v_sub_f32 v64, {-OFFS}, v58
    v_sub_f32 v65, {-OFFS}, v58
    ds_write_b64 v{T0+11}, v[64:65] offset:{2*QST+1024}""")
    lds_inc(C_QREADY, gGC, 26)
    TS(5)
    AC = [136, 104, 120, 88]
    XB = 136
    vB1, gXA, gXT, gWA, gWB, gV1 = 8, 16, 17, 18, 19, 20
    a(f"""v_lshrrev_b32 v44, 2, v0
    v_and_b32 v45, 3, v0
    v_mul_u32_u24 v44, {W1P}, v44
    v_lshl_add_u32 v{gV1}, v45, 4, v44
    v_add_u32 v{gV1+1}, {128*W1P-1024}, v{gV1}
    v_add_u32 v{gV1+2}, {2*(128*W1P-1024)}, v{gV1}
    v_add_u32 v{gV1+3}, {3*(128*W1P-1024)}, v{gV1}
    v_and_b32 v44, 16, v0
    v_lshlrev_b32 v44, 1, v44
    v_lshl_add_u32 v{gTR}, v45, 3, v44
    s_waitcnt vmcnt(0)""")
    def w1_dma1(b): return f"buffer_load_dwordx4 v{gV1+b}, {sr(rW,4)}, s{sSO} offen offset:{b*1024} lds"
    a(f"""v_lshlrev_b32 v40, 1, v7
    v_and_b32 v41, 7, v0
    v_lshlrev_b32 v41, {FS_}, v41
    v_and_b32 v44, 15, v0
    v_xor_b32 v44, v44, v{gH}
    v_lshlrev_b32 v44, 4, v44
    v_lshl_add_u32 v{gXA}, v7, 10, v44
    v_bfe_u32 v44, v0, 2, 2
    v_lshl_add_u32 v{gWB}, v44, 6, v{gTR}
    v_lshl_add_u32 v{gWB}, v{gH}, 9, v{gWB}
    v_add_u32 v{gWB}, s{sRNG}, v{gWB}""")
    a(f"""v_rcp_f32 v44, v{gRS}
    v_rcp_f32 v45, v{gRS+1}
    v_sub_u32 v48, v{gH}, 1
    s_mov_b32 s{sD}, 0xffff0000
    v_and_b32 v46, s{sD}, v44
    v_and_b32 v47, s{sD}, v45
    v_sub_f32 v44, v44, v46
    v_sub_f32 v45, v45, v47
    v_cvt_pk_bf16_f32 v12, v46, v44
    v_cvt_pk_bf16_f32 v14, v47, v45
    v_and_b32 v12, v48, v12
    v_and_b32 v14, v48, v14
    v_mov_b32 v9, 0
    v_mov_b64 v[10:11], 0
    v_mov_b32 v13, 0""")
    H0, H1 = 104, 120
    FB = [24, 56]
    FX = [88, 150]
    FX = [88, 152]
    def f1_reads(p, b):
        nx = 4 if not (p == 1 and b == 3) else 4
        return [f"ds_read_b64_tr_b16 {vr(FB[p]+8*b,2)}, v{gWA} offset:{b*1024}", f"ds_read_b64_tr_b16 {vr(FB[p]+8*b+2,2)}, v{gWA} offset:{b*1024+256}",
                f"ds_read_b128 {vr(FB[p]+8*b+4,4)}, v{gXT} offset:{b*256}", f"ds_read_b128 {vr(FX[p]+4*b,4)}, v{gXT} offset:{b*256+32768}"]
    gR2 = 6
    def bias():
        a(f"{MF32} {vr(H0,16)}, v[8:11], v[12:15], {vr(H0,16)}\n{MF32} {vr(H1,16)}, v[8:11], v[14:17], {vr(H1,16)}")
    def hzero():
        a(f"v_mfma_f32_32x32x8_bf16 {vr(H0,16)}, v[10:11], v[10:11], 0\nv_mfma_f32_32x32x8_bf16 {vr(H1,16)}, v[10:11], v[10:11], 0")
    a(f"""v_mul_f32 v{gR2}, v{gRS}, v{gRS}
    v_mul_f32 v{gR2+1}, v{gRS+1}, v{gRS+1}
    v_mov_b32 v{gWA}, v{gWB}
    v_mov_b32 v{gXT}, v{gXA}
    s_mov_b32 s{sN}, {4 if opt.get("z_skip") else 0}
    s_mov_b32 s{sM}, 0""")
    hzero()
    plan_lo = opt.get("pl", [(0, 22, 0, 22), (22, 21, 64, 67), (40, 21 + 128, 67, 76), (52, 22 + 128, 76, 86)])
    plan_hi = opt.get("ph", [(0, 27, 64, 73), (18, 26, 73, 81), (36, 17 + 128, 81, 86), (48, 16, 0, 64)])
    def pack(b): return sum(x << (8 * i) for i, x in enumerate(b))
    sPL, sSW, sS2 = 18, 19, 10
    a(f"s_mul_i32 s{sS2}, s{sCT}, {64*W1P}\ns_lshl_b32 s{sD}, s{sT2}, 6\ns_add_u32 s{sS2}, s{sS2}, s{sD}")
    a(f"s_mov_b32 s{sPL}, {pack(plan_hi[0])}")
    a(f"s_cmp_lt_u32 s{sG}, 3\ns_cselect_b32 s{sD}, 4, 0\ns_add_u32 s{sD}, s{sD}, s{sI}")
    for n, pl in enumerate(plan_hi + plan_lo):
        if n: a(f"s_cmp_eq_u32 s{sD}, {n}\ns_cselect_b32 s{sPL}, {pack(pl)}, s{sPL}")
    a(f"""s_lshr_b32 s{sD}, s{sPL}, 24
    s_mov_b32 s{rX}, s{pW2}
    s_mov_b32 s{rX+1}, s{pW2+1}
    s_lshl_b32 s{rX+2}, s{sD}, 14
    s_mov_b32 s{rX+3}, 0x20000
    s_and_b32 s{sSW}, s{sPL}, 0xff
    s_lshl_b32 s{sSW}, s{sSW}, 14
    s_lshl_b32 s{sD}, s{sG}, 7
    s_add_u32 s{sSW}, s{sSW}, s{sD}""")
    srd(rT, pB1, W1P)
    lds_spin(C_QREADY, 4, gGC, 56, sleep=0)
    lds_spin(C_KV, 8, gGC, 56, sleep=2)
    if opt.get("delay_f1"): lds_spin(C_ABAR, 8, gGC, 56, sleep=16)
    TS(15)
    late[0] = True
    for n in range(3):
        a(f"s_add_u32 m0, s{sRNG}, {n*4096}\ns_nop 0")
        for b in range(4): a(w1_dma1(b))
        a(f"s_add_u32 s{sSO}, s{sSO}, {16*W1P}")
    a(f"""s_lshl_b32 s{sC}, s{sT1}, 6
    s_lshl_b32 s{sD}, s{sT2}, 6
    s_lshl_b32 s{sF}, s{sRB}, {FS_+3}
    s_add_u32 s{sF}, s{sF}, {FLG_KV}
    buffer_load_ushort v8, v40, {sr(rT,4)}, s{sC} offen
    buffer_load_ushort v15, v40, {sr(rT,4)}, s{sD} offen
    buffer_load_dword v{AC[0]+2}, v41, {sr(rWS,4)}, s{sF} offen offset:8 sc1
    s_waitcnt vmcnt(11)""")
    for b in range(4):
        for l in f1_reads(0, b): a(l)
    TS(3)
    a(".p2align 6")
    a.label("L_f1loop")
    for p in range(2):
        a(f"""s_add_u32 m0, s{sM}, s{sRNG}
        s_add_u32 s{sM}, s{sM}, 4096
        s_cmp_lt_u32 s{sM}, {RSZ}
        s_cselect_b32 s{sM}, s{sM}, 0
        s_add_u32 s{sN}, s{sN}, 1
        s_lshr_b32 s{sD}, s{sN}, 3
        s_and_b32 s{sD}, s{sD}, s{sCT}
        s_lshl_b32 s{sD}, s{sD}, 2
        s_add_u32 s{sD}, s{sD}, s{sN}
        s_and_b32 s{sD}, s{sD}, 7
        s_lshl_b32 s{sD}, s{sD}, 5
        v_add_u32 v{gWA}, s{sM}, v{gWB}
        v_xor_b32 v{gXT}, s{sD}, v{gXA}""")
        if p == 1:
            a(f"""s_cmp_eq_u32 s{sN}, 6
            s_cselect_b32 s{sSO}, s{sS2}, s{sSO}
            s_add_u32 s{sD}, s{sN}, 2
            s_cmp_lt_u32 s{sD}, s{sNG}
            s_cselect_b32 s{rW+2}, s{rW+2}, 0""")
        for b in range(4):
            rd = f1_reads(1 - p, b)
            if not opt.get("x_nolg"): a("s_waitcnt lgkmcnt(12)")
            a(f"{MF32} {vr(H0,16)}, {vr(FB[p]+8*b,4)}, {vr(FB[p]+8*b+4,4)}, {vr(H0,16)}")
            a(w1_dma1(b))
            a(rd[2]); a(rd[3])
            pad(P1A)
            a(f"{MF32} {vr(H1,16)}, {vr(FB[p]+8*b,4)}, {vr(FX[p]+4*b,4)}, {vr(H1,16)}")
            a("s_waitcnt vmcnt(8)")
            a(rd[0]); a(rd[1])
            if b < 3: pad(P1B)
        a(f"s_add_u32 s{sSO}, s{sSO}, {16*W1P}")
    a(f"""s_cmp_lt_u32 s{sN}, 8
    s_cbranch_scc1 L_f1loop
    s_cmp_eq_u32 s{sN}, 10
    s_cbranch_scc1 L_f1pub""")
    TS(2)
    a(f"""s_getreg_b32 s{sD}, hwreg(HW_REG_XCC_ID)
    v_lshl_or_b32 v8, v8, 16, v8
    v_cmp_ne_u32 vcc, s{sD}, v{AC[0]+2}
    s_mul_i32 s{sD}, s{sRB}, 86
    s_lshl_b32 s{sC}, s{sT1}, 1
    s_add_u32 s{sD}, s{sD}, s{sC}
    s_lshl_b32 s{sD}, s{sD}, 11
    s_add_u32 s{sD}, s{sD}, {HF}
    s_mov_b32 s{sT1}, s{sT2}
    s_cmp_eq_u64 vcc, 0
    s_cselect_b32 s{sLOC}, {0 if opt.get("noloc") else 1}, 0
    s_cmp_eq_u32 s{sN}, 12
    s_cbranch_scc1 L_half""")
    bias()
    a(f"v_mov_b32 v8, v15\ns_nop 9")
    for rt, Hh in enumerate((H0, H1)):
        a.label(f"L_epi{rt}")
        for j in range(16): a(f"v_max_f32 v{Hh+j}, 0, v{Hh+j}")
        for j in range(8): a(f"v_pk_mul_f32 {vr(Hh+2*j,2)}, {vr(Hh+2*j,2)}, {vr(Hh+2*j,2)}")
        sel = "op_sel_hi:[1,0]" if rt == 0 else "op_sel:[0,1] op_sel_hi:[1,1]"
        if not opt.get("fold", 0):
            for j in range(8): a(f"v_pk_mul_f32 {vr(Hh+2*j,2)}, {vr(Hh+2*j,2)}, {vr(gR2,2)} {sel}")
        for j in range(8): a(f"v_cvt_pk_bf16_f32 v{Hh+j}, v{Hh+2*j}, v{Hh+2*j+1}")
        hst = [f"buffer_store_dwordx4 {vr(Hh+4*s_,4)}, v{gL16}, {sr(rWS,4)}, s{sD} offen offset:{s_*2048+rt*1024}" for s_ in range(2)]
        if HLOC: grp_store(hst)
        else:
            for l in hst: a(l + " sc1")
        if rt == 0: a(f"s_cmp_eq_u32 s{sN}, 12\ns_cbranch_scc1 L_epid")
    a.label("L_epid")
    gSW2 = 22
    D2 = RSZ // 2048
    def w2_dma(u):
        a(f"""s_add_u32 m0, s{sRNG}, {u*2048}
        s_nop 0
        buffer_load_dwordx4 v{gSW}, {sr(rX,4)}, s{sSW} offen lds
        buffer_load_dwordx4 v{gSW2}, {sr(rX,4)}, s{sSW} offen offset:1024 lds
        s_add_u32 s{sSW}, s{sSW}, 16384""")
    PT = AC[0]
    a("s_nop 0")
    hzero()
    a(f"""s_cmp_lt_u32 s{sN}, s{sNG}
    s_cbranch_scc1 L_f1loop
    v_add_u32 v{gSW2}, {8192-1024}, v{gSW}
    s_cmp_eq_u32 s{sN}, 8
    s_cbranch_scc1 L_f1fill""")
    lds_spin(C_PX, 4, 26, 27, sleep=0)
    a.label("L_f1fill")
    for u in range(D2): w2_dma(u)
    gFL, sFH = 12, 9
    a("s_waitcnt lgkmcnt(0)")
    srd(rW, pX, 0x200000)
    srd(rT, pB2, 1024)
    a(f"""v_and_b32 v41, 31, v0
    v_lshlrev_b32 v40, 4, v{gH}
    v_lshl_add_u32 v40, v41, 10, v40
    v_lshlrev_b32 v41, 1, v41
    s_lshl_b32 s{sF}, s{sG}, 7
    s_lshl_b32 s{sD}, s{sCT}, 6
    s_add_u32 s{sF}, s{sF}, s{sD}
    s_lshl_b32 s{sD}, s{sRB}, 16
    s_lshl_b32 s{sC}, s{sRT}, 15
    s_add_u32 s{sD}, s{sD}, s{sC}
    s_add_u32 s{sD}, s{sD}, s{sF}
    s_mov_b32 s{sE}, s{sD}
    v_mov_b32 v7, v40
    buffer_load_dwordx4 v[24:27], v40, {sr(rW,4)}, s{sD} offen
    buffer_load_dwordx4 v[28:31], v40, {sr(rW,4)}, s{sD} offen offset:32
    buffer_load_ushort v76, v41, {sr(rT,4)}, s{sF} offen""")
    a(f"""s_lshl_b32 s{sFH}, s{sRB}, 10
    s_add_u32 s{sFH}, s{sFH}, {FLG_H}
    v_and_b32 v{gFL}, 7, v0
    v_lshlrev_b32 v{gFL}, 7, v{gFL}
    buffer_load_dwordx2 v[14:15], v{gFL}, {sr(rWS,4)}, s{sFH} offen sc1""")
    a(f"s_waitcnt vmcnt({2*D2+4})")
    a.label("L_f1pub")
    a(f"""s_cmp_lt_u32 s{sN}, 12
    s_cselect_b32 s{sD}, 1, 16
    v_mov_b32 v{PT}, s{sD}
    s_mov_b64 exec, 1
    ds_add_rtn_u32 v{PT+1}, v{gGC}, v{PT} offset:{C_HDONE}
    s_mov_b64 exec, -1
    s_lshl_b32 s{sC}, s{sRB}, 3
    s_add_u32 s{sC}, s{sC}, s{sG}
    s_lshl_b32 s{sC}, s{sC}, 7
    s_lshr_b32 s{sD}, s{sD}, 1
    s_add_u32 s{sC}, s{sC}, s{sD}
    s_add_u32 s{sC}, s{sC}, {FLG_H}
    s_cmp_lt_u32 s{sG}, 3
    s_cselect_b32 s{sCAP}, 3, 1
    s_cmp_lt_u32 s{sN}, 12
    s_cselect_b32 s{sCAP}, 3, s{sCAP}
    s_cselect_b32 s{sD}, 0, 4
    s_waitcnt lgkmcnt(0)
    v_readfirstlane_b32 s{sF}, v{PT+1}
    s_nop 0
    s_lshr_b32 s{sF}, s{sF}, s{sD}
    s_and_b32 s{sF}, s{sF}, 15
    s_cmp_lg_u32 s{sF}, s{sCAP}
    s_cbranch_scc1 L_nohflag""")
    flag_store(sC, PT)
    a.label("L_nohflag")
    a(f"""s_cmp_eq_u32 s{sN}, 10
    s_cbranch_scc1 L_f1loop""")
    TS(6)
    sK0, sK1, sSH, sXC = 0, 1, sC, sB
    gA0, gA1, gHO0, gHO1, gFL, gWO = 8, 9, 10, 11, 12, 13
    gCN, gOA, gLA, gCV = 16, 17, 18, 19
    HR = 24
    AF = [152, 160]
    WOF, FA = 88, 72
    OFR = [[56, 60, 64, 68, 152, 156, 160, 164], [24 + 4 * gp for gp in range(8)]]
    sKT, sWM, sWS, sFT = 12, 13, 26, 24
    sHB, sFH, sNF, sPF, sRET, sLOOP = 8, 9, 10, 11, 14, 20
    def ev_set():
        a(f"""s_lshr_b32 s{sFT}, s{sNF}, 2
        s_lshl_b32 s{sFT}, s{sFT}, 1
        s_add_u32 s{sFT}, s{sFT}, 2
        s_add_u32 s{sFT}, s{sFT}, s{sEP}""")
    def o_flag():
        a(f"""s_lshl_b32 s{sA}, s{sRB}, 3
        s_add_u32 s{sA}, s{sA}, s{sG}
        s_lshl_b32 s{sA}, s{sA}, 4
        s_add_u32 s{sA}, s{sA}, s{sPF}
        s_lshl_b32 s{sA}, s{sA}, 3
        s_add_u32 s{sA}, s{sA}, {FLG_O}
        s_mov_b32 s{sPF}, s{sNF}""")
    a(f"""v_bfe_u32 v{gR}, v0, 2, 2
    v_lshrrev_b32 v{gWO}, 1, v{gR}
    v_xor_b32 v{gWO}, s{sCT}, v{gWO}
    v_lshl_add_u32 v{gWO}, v{gWO}, 6, v{gTR}
    v_lshl_add_u32 v{gWO}, v{gR}, 7, v{gWO}
    v_lshl_add_u32 v{gWO}, v{gH}, 9, v{gWO}
    s_lshl_b32 s{sA}, s{sRT}, 10
    v_mov_b64 v[72:73], 0
    v_mov_b64 v[74:75], 0
    v_add_u32 v{gA0}, s{sRNG}, v{gWO}
    v_xor_b32 v{gA1}, 64, v{gA0}
    v_add_u32 v{gHO0}, s{sA}, v{gL16}
    v_xor_b32 v{gHO1}, 0x400, v{gHO0}""")
    a(f"{MF32} {vr(AC[3],16)}, v[72:75], v[72:75], 0")
    a(f"""v_sub_u32 v78, 1, v{gH}
    v_mov_b32 v77, 0
    v_mul_u32_u24 v78, 0x3f80, v78
    v_mov_b32 v79, 0
    s_mov_b32 s{sD}, 0xffff0000
    s_waitcnt vmcnt(1)""")
    for j in (24, 25, 28, 29): a(f"v_permlane32_swap_b32 v{j}, v{j+2}")
    for j in range(8): a(f"v_lshlrev_b32 v{AC[0]+2*j}, 16, v{24+j}\nv_and_b32 v{AC[0]+2*j+1}, s{sD}, v{24+j}")
    a(f"s_nop 1\nv_mfma_f32_32x32x8_bf16 {vr(AC[0],16)}, v[76:77], v[78:79], {vr(AC[0],16)}")
    def a_reads(u, p):
        for d, ga in enumerate((gA0, gA1)):
            a(f"ds_read_b64_tr_b16 {vr(AF[p]+4*d,2)}, v{ga} offset:{u*2048}\nds_read_b64_tr_b16 {vr(AF[p]+4*d+2,2)}, v{ga} offset:{u*2048+1024}")
    LDS_OFF = 0x30000
    a(f"""s_mul_i32 s{sHB}, s{sRB}, {86*2048}
    s_add_u32 s{sHB}, s{sHB}, {HF}
    s_and_b32 s{sSH}, s{sPL}, 0xff
    s_lshl_b32 s{sSH}, s{sSH}, 11
    s_add_u32 s{sSH}, s{sSH}, s{sHB}
    s_lshr_b32 s{sD}, s{sPL}, 24
    s_lshl_b32 s{sD}, s{sD}, 11
    s_mov_b32 s{rT}, s{pWS}
    s_mov_b32 s{rT+1}, s{pWS+1}
    s_add_u32 s{rT+2}, s{sD}, s{sHB}
    s_mov_b32 s{rT+3}, 0x20000
    s_bfe_u32 s{sK1}, s{sPL}, 0x70008
    s_sub_u32 s{sKT}, s{sK1}, {D2}
    s_mov_b32 s{rW}, s{pWO}
    s_mov_b32 s{rW+1}, s{pWO+1}
    s_lshl_b32 s{sWM}, s{sI}, 14
    s_lshl_b32 s{sWS}, s{sI}, 17
    s_add_u32 s{rW+2}, s{sWS}, 0x20000
    s_mov_b32 s{rW+3}, 0x20000
    s_lshl_b32 s{sA}, s{sG}, 7
    s_add_u32 s{sWS}, s{sWS}, s{sA}
    s_bitcmp1_b32 s{sPL}, 15
    s_cselect_b32 s27, 6, 12
    s_mov_b32 s{sK0}, 0
    s_xor_b32 s{sNF}, s{sI}, 1
    s_mov_b32 s{sPF}, s{sNF}
    s_mov_b32 s{sLOOP}, 1""")
    ev_set()
    a(f"""v_mov_b32 v20, s{sLOC}
    s_mov_b32 s{sLOD}, 0
    ds_write_b32 v{gGC}, v20 offset:{C_KT}
    s_mul_i32 s{sA}, s{sNF}, {4 * SLOT}
    s_add_u32 s{sA}, s{sA}, {OACC}
    v_add_u32 v{gOA}, s{sA}, v{gL16}
    v_and_b32 v{gLA}, 31, v0
    v_lshl_add_u32 v{gLA}, v{gLA}, 2, s{sA}
    v_and_b32 v{gCN}, 3, v0
    v_mul_u32_u24 v{gCN}, {SLOT}, v{gCN}
    v_add_u32 v{gCN}, s{sA}, v{gCN}""")
    a(f"s_bfe_u32 s{sXC}, s{sPL}, 0x80010")
    if opt.get("ef", 1):
        a(f"""ds_read_b32 v{gCV}, v{gCN} offset:{B_TAG}
        s_mov_b32 s{sLOOP}, 3
        s_waitcnt lgkmcnt(0)
        v_cmp_ne_u32 vcc, s{sFT}, v{gCV}
        s_nop 1
        s_cbranch_vccz L_fin""")
        a.label("L_pre0")
        a(f"s_mov_b32 s{sLOOP}, 1")
    flag_poll(gFL, sFH, 14, preissued=True, sleep=opt.get("hsleep", 2))
    TS(7)
    for u in range(D2):
        a(f"""buffer_load_dwordx4 {vr(HR+8*u,4)}, v{gHO0}, {sr(rT,4)}, s{sSH} offen sc1
        buffer_load_dwordx4 {vr(HR+8*u+4,4)}, v{gHO1}, {sr(rT,4)}, s{sSH} offen sc1
        s_add_u32 s{sSH}, s{sSH}, 2048""")
    a_reads(0, 0)
    a(f"ds_read_b32 v{gCV}, v{gCN} offset:{B_TAG}")
    a(f"s_add_u32 s{sFH}, s{sFH}, 8\ns_waitcnt vmcnt(0)")
    if opt.get("x_noh"): a(f"s_mov_b32 s{rT+2}, 0")
    if opt.get("x_now"): a(f"s_mov_b32 s{rX+2}, 0")
    TS(1)
    a(".p2align 6")
    a.label("L_f2loop")
    for u in range(D2):
        p = u & 1
        def mf(j): a(f"{MF32} {vr(AC[j],16)}, {vr(AF[p]+4*(j&1),4)}, {vr(HR+8*u+4*(j>>1),4)}, {vr(AC[j],16)}")
        a(f"s_waitcnt vmcnt({4*(D2-2)}) lgkmcnt(0)")
        mf(0)
        a_reads((u + 1) % D2, 1 - p)
        pad(P2A)
        mf(1)
        if u == 0:
            a("s_branch L_trip")
            a.label("L_tripped")
        elif u == D2 - 1: a(f"ds_read_b32 v{gCV}, v{gCN} offset:{B_TAG}")
        a(f"s_add_u32 m0, s{sRNG}, {u*2048}\ns_cmp_ge_u32 s{sK0}, s{sKT}\ns_cbranch_scc1 L_tail{u}")
        a(f"""buffer_load_dwordx4 v{gSW}, {sr(rX,4)}, s{sSW} offen lds
        buffer_load_dwordx4 v{gSW2}, {sr(rX,4)}, s{sSW} offen offset:1024 lds""")
        mf(2)
        a(f"""buffer_load_dwordx4 {vr(HR+8*u,4)}, v{gHO0}, {sr(rT,4)}, s{sSH} offen sc1
        s_add_u32 s{sSW}, s{sSW}, 16384
        s_add_u32 s{sK0}, s{sK0}, 1""")
        pad(P2C)
        mf(3)
        a(f"buffer_load_dwordx4 {vr(HR+8*u+4,4)}, v{gHO1}, {sr(rT,4)}, s{sSH} offen sc1\ns_add_u32 s{sSH}, s{sSH}, 2048")
        if u == D2 - 1: a("s_branch L_f2loop")
        else: pad(P2D)
        a.label(f"L_next{u}")
    for u in range(D2):
        p = u & 1
        a.label(f"L_tail{u}")
        for j in (2, 3):
            a(f"{MF32} {vr(AC[j],16)}, {vr(AF[p]+4*(j&1),4)}, {vr(HR+8*u+4*(j>>1),4)}, {vr(AC[j],16)}")
            if j == 2: a(f"s_call_b64 s[96:97], L_wo4")
        a(f"""s_add_u32 s{sK0}, s{sK0}, 1
        s_cmp_lt_u32 s{sK0}, s{sK1}
        s_cbranch_scc1 {"L_f2loop" if u == D2 - 1 else f"L_next{u}"}""")
        if u < D2 - 1: a("s_branch L_f2done")
    a("s_branch L_f2done")
    a.label("L_wo4")
    a(f"""s_cmp_lg_u32 s{sK0}, s{sKT}
    s_cbranch_scc1 L_wo4b
    s_cmp_lt_u32 s{sG}, 3
    s_cselect_b32 s{sD}, 68, 36""")
    lds_spin(C_HDONE, f"s{sD}", gGC, 20, sleep=1)
    a.label("L_wo4b")
    a(f"""s_cmp_ge_u32 s{sWS}, s{rW+2}
    s_cbranch_scc1 L_wo4c""")
    for _ in range(2):
        a(f"""s_mov_b32 m0, s{sWM}
        s_add_u32 s{sWM}, s{sWM}, 2048
        buffer_load_dwordx4 v{gSW}, {sr(rW,4)}, s{sWS} offen lds
        buffer_load_dwordx4 v{gSW2}, {sr(rW,4)}, s{sWS} offen offset:1024 lds
        s_add_u32 s{sWS}, s{sWS}, 16384""")
    a.label("L_wo4c")
    a(f"s_setpc_b64 s[96:97]")
    a.label("L_f2done")
    TS(8)
    sJ, sFO, sOO, sRDY = 0, 1, sB, 21
    WF2 = [[88 + 4 * gp for gp in range(8)], [120, 124, 128, 132, 72, 76, 80, 84]]
    def wo_reads(j0):
        for jj in range(2):
            for gp in range(8):
                o_ = gp * 8192 + (j0 + jj) * 2048
                a(f"ds_read_b64_tr_b16 {vr(WF2[jj][gp],2)}, v{gWO} offset:{o_}\nds_read_b64_tr_b16 {vr(WF2[jj][gp]+2,2)}, v{gWO} offset:{o_+1024}")
    def o_loads(j0, js=(0, 1)):
        a(f"s_mov_b32 s{sA}, s{sOO}")
        for gp in range(8):
            for jj in js: a(f"buffer_load_dwordx4 {vr(OFR[jj][gp],4)}, v{gL16}, {sr(rWS,4)}, s{sA} offen offset:{(j0+jj)*1024} sc1")
            if gp < 7: a(f"s_add_u32 s{sA}, s{sA}, 4096")
    def o_mf(after, low, js=(0, 1)):
        a(f"s_waitcnt lgkmcnt(0)")
        if low: a("s_setprio 0")
        left = 8 * len(js)
        for gp in range(8):
            for jj in js:
                left -= 1
                a(f"s_waitcnt vmcnt({left+after})\n {MF32} {vr(AC[0],16)}, {vr(WF2[jj][gp],4)}, {vr(OFR[jj][gp],4)}, {vr(AC[0],16)} ; keepprio")
        if low: a("s_setprio 3")
    def o_poll(sh, lab, pre, nb=16):
        if pre: a(f"s_branch {lab}w")
        a.label(lab)
        a(f"buffer_load_dwordx2 v[14:15], v{gFL}, {sr(rWS,4)}, s{sFO} offen sc1")
        a.label(lab + "w")
        a(f"""s_add_u32 s23, s23, 1
        s_cmp_gt_u32 s23, {SPIN_CAP}
        s_cbranch_scc1 L_gdone
        s_waitcnt vmcnt(0)
        v_cmp_ne_u64 vcc, {sr(sEP,2)}, v[14:15]
        s_nop 1
        s_bfe_u32 s{sA}, vcc_lo, {(nb << 16) + sh}
        s_cbranch_scc1 {lab}""")
    a(f"""s_lshl_b32 s{sFO}, s{sRB}, 10
    s_lshl_b32 s{sA}, s{sRT}, 3
    s_add_u32 s{sFO}, s{sFO}, s{sA}
    s_add_u32 s{sFO}, s{sFO}, {FLG_O}
    v_and_b32 v20, 24, v0
    v_lshl_add_u32 v{gFL}, v20, 1, v{gFL}
    v_add_u32 v23, s{sRNG}, v{gL16}
    buffer_load_dwordx2 v[14:15], v{gFL}, {sr(rWS,4)}, s{sFO} offen sc1
    s_lshl_b32 s{sOO}, s{sRB}, 1
    s_add_u32 s{sOO}, s{sOO}, s{sRT}
    s_lshl_b32 s{sOO}, s{sOO}, 15
    s_add_u32 s{sOO}, s{sOO}, {OF}
    s_mov_b32 s{sJ}, 0
    s_mov_b32 s{sLOOP}, 0
    s_mov_b32 s23, 0""")
    srd(rT, pOUT, 0x200000)
    for j in range(1, 4):
        for q in range(4): a(f"ds_write_b128 v23, {vr(AC[j]+4*q,4)} offset:{(j-1)*4096+q*1024}")
    a(f"""s_waitcnt vmcnt(1) lgkmcnt(12)
    s_cmp_ge_u32 s{sPF}, s{sNF}
    s_cbranch_scc1 L_nopf""")
    o_flag()
    flag_store(sA, 20)
    a.label("L_nopf")
    lds_inc(C_GBAR, gGC, 23)
    a(f"""s_waitcnt vmcnt(0)
    v_cmp_ne_u64 vcc, {sr(sEP,2)}, v[14:15]
    s_nop 1
    s_and_b32 s22, vcc_lo, 0xffff
    s_cmp_lt_u32 s{sNF}, 8
    s_cselect_b32 s22, 1, s22
    s_cmp_lg_u32 s22, 0
    s_cbranch_scc1 L_red""")
    o_loads(0)
    a.label("L_red")
    lds_spin(C_GBAR, 4, gGC, 14, sleep=1)
    for j in range(1, 4):
        a(f"s_xor_b32 s{sA}, s{sI}, {j}\ns_mul_i32 s{sA}, s{sA}, {RSZ}\ns_add_u32 s{sA}, s{sA}, {RING}\nv_add_u32 v14, s{sA}, v{gL16}")
        for q in range(4): a(f"ds_read_b128 {vr(AC[j]+4*q,4)}, v14 offset:{(j-1)*4096+q*1024}")
    for j in range(1, 4):
        a(f"s_waitcnt lgkmcnt({(3-j)*4})")
        for q in range(8): a(f"v_pk_add_f32 {vr(AC[0]+2*q,2)}, {vr(AC[0]+2*q,2)}, {vr(AC[j]+2*q,2)}")
    TS(9)
    a(f"""s_cmp_eq_u32 s22, 0
    s_cbranch_scc1 L_pair
    s_cmp_lt_u32 s{sNF}, 8
    s_cbranch_scc1 L_own""")
    a.label("L_ev")
    a(f"""s_cmp_ge_u32 s{sPF}, s{sNF}
    s_cbranch_scc1 L_evf""")
    o_flag()
    a("s_waitcnt vmcnt(0)")
    flag_store(sA, 14)
    TS(13)
    a.label("L_evf")
    a(f"s_cmp_lg_u32 s{sJ}, 0\ns_cbranch_scc1 L_gdone")
    o_poll(0, "L_p01", False)
    o_loads(0)
    a.label("L_pair")
    wo_reads(0)
    a(f"buffer_load_dwordx2 v[14:15], v{gFL}, {sr(rWS,4)}, s{sFO} offen sc1")
    o_mf(1, True)
    wo_reads(2)
    TS(5)
    o_poll(16, "L_p2", True, 8)
    o_loads(2, (0,))
    a(f"s_lshr_b32 s{sA}, vcc_lo, 24\ns_cbranch_scc0 L_l3")
    a(f"buffer_load_dwordx2 v[14:15], v{gFL}, {sr(rWS,4)}, s{sFO} offen sc1")
    o_mf(1, True, (0,))
    o_poll(24, "L_p3", True, 8)
    TS(4)
    o_loads(2, (1,))
    a("s_branch L_m3")
    a.label("L_l3")
    o_loads(2, (1,))
    o_mf(8, False, (0,))
    a.label("L_m3")
    o_mf(0, False, (1,))
    TS(10)
    a("s_nop 11")
    for j in range(8): a(f"v_cvt_pk_bf16_f32 v{AC[0]+j}, v{AC[0]+2*j}, v{AC[0]+2*j+1}")
    for j in (0, 1, 4, 5): a(f"v_permlane32_swap_b32 v{AC[0]+j}, v{AC[0]+j+2}")
    for q in range(2): a(f"buffer_store_dwordx4 {vr(AC[0]+4*q,4)}, v7, {sr(rT,4)}, s{sE} offen offset:{32*q}")
    a("s_branch L_gdone")
    a.label("L_own")
    a(f"""ds_read_b32 v{gCV}, v{gCN} offset:{B_TAG}
    s_add_u32 s23, s23, 1
    s_cmp_gt_u32 s23, {SPIN_CAP}
    s_cbranch_scc1 L_gdone
    s_sleep {opt.get("ownsleep", 0)}""")
    a.label("L_ownw")
    a(f"""s_waitcnt lgkmcnt(0)
    v_cmp_ne_u32 vcc, s{sFT}, v{gCV}
    s_nop 1
    s_cbranch_vccnz L_own
    s_branch L_fin""")
    a.label("L_half")
    a(f"""s_xor_b32 s{sC}, s{sI}, 1
    s_mul_i32 s{sC}, s{sC}, {RSZ}
    s_add_u32 s{sC}, s{sC}, {RING}
    s_waitcnt lgkmcnt(0)
    v_add_u32 v24, s{sRNG}, v{gL16}
    v_add_u32 v25, s{sC}, v{gL16}
    v_lshl_add_u32 v26, s{sRT}, 2, v{gGC}
    s_waitcnt vmcnt(0)
    s_cmp_eq_u32 s{sCT}, 0
    s_cbranch_scc0 L_half1""")
    for keep, (Hk, Hs) in enumerate(((H0, H1), (H1, H0))):
        if keep: a.label("L_half1")
        for q in range(4): a(f"ds_write_b128 v24, {vr(Hs+4*q,4)} offset:{q*1024}")
        a(f"{MF32} {vr(Hk,16)}, v[8:11], {'v[12:15]' if keep == 0 else 'v[14:17]'}, {vr(Hk,16)}")
        lds_inc(C_PX, 26, 27)
        lds_spin(C_PX, 2, 26, 27, sleep=0)
        for q in range(4): a(f"ds_read_b128 {vr(Hs+4*q,4)}, v25 offset:{q*1024}")
        a("s_waitcnt lgkmcnt(0)")
        lds_inc(C_PX, 26, 27)
        for q in range(8): a(f"v_pk_add_f32 {vr(Hk+2*q,2)}, {vr(Hk+2*q,2)}, {vr(Hs+2*q,2)}")
        a(f"s_branch L_epi{keep}")
    a.label("L_trip")
    def tripstamp():
        if opt.get("f2ts"):
            a("s_memrealtime s[98:99]\ns_waitcnt lgkmcnt(0)")
            for i in range(1, 10): a(f"s_mov_b32 s{TS0+2*i}, s{TS0+2*i+2}")
            a(f"s_mov_b32 s{TS0+20}, s98")
    tripstamp()
    a(f"""s_setprio 3
    v_cmp_ne_u32 {sr(sRET,2)}, s{sFT}, v{gCV}
    s_cmp_ge_u32 s{sPF}, s{sNF}
    s_cbranch_scc1 L_trip1""")
    o_flag()
    flag_store(sA, 20)
    a.label("L_trip1")
    a(f"""s_add_u32 s{sA}, s{sK0}, {D2}
    s_cmp_lg_u32 s{sA}, s27
    s_cbranch_scc1 L_trip1b
    buffer_load_dwordx2 v[14:15], v{gFL}, {sr(rWS,4)}, s{sFH} offen sc1""")
    a.label("L_trip1b")
    a(f"""s_cmp_lg_u32 s{sK0}, s27
    s_cbranch_scc1 L_trip2
    s_cmp_eq_u32 s{sXC}, 0
    s_cbranch_scc1 L_trip2
    v_cmp_ne_u64 vcc, {sr(sEP,2)}, v[14:15]
    s_lshl_b32 s{sSW}, s{sXC}, 14
    s_lshl_b32 s{sA}, s{sG}, 7
    s_add_u32 s{sSW}, s{sSW}, s{sA}
    s_lshl_b32 s{sSH}, s{sXC}, 11
    s_add_u32 s{sSH}, s{sSH}, s{sHB}""")
    a("s_cbranch_vccz L_crossok")
    flag_poll(gFL, sFH, 14, sleep=opt.get("hsleep", 2))
    a.label("L_crossok")
    TS(14)
    a.label("L_trip2")
    a(f"""s_cmp_lt_u32 s{sNF}, 8
    s_cselect_b32 s{sD}, s{sRET}, 1
    s_cmp_eq_u32 s{sLOOP}, 1
    s_cselect_b32 s{sD}, s{sD}, 1
    s_cmp_eq_u32 s{sD}, 0
    s_cbranch_scc1 L_fin""")
    a.label("L_trip3")
    if opt.get("ef", 1): a(f"s_cmp_eq_u32 s{sLOOP}, 3\ns_cbranch_scc1 L_pre0")
    tripstamp()
    a(f"s_setprio {GP}\ns_branch L_tripped")
    a.label("L_fin")
    TS(12)
    def sl_read(p_, d):
        a(f"ds_read_b128 {vr(d,4)}, v{gOA} offset:{p_*SLOT}\nds_read_b128 {vr(d+4,4)}, v{gOA} offset:{p_*SLOT+1024}")
    def sl_add(d):
        for j in range(4): a(f"v_pk_add_f32 {vr(FA+8+2*j,2)}, {vr(FA+8+2*j,2)}, {vr(d+2*j,2)}")
    for p_, d in enumerate((20, 21, 23, gCV)): a(f"ds_read_b32 v{d}, v{gLA} offset:{p_*SLOT+2048}")
    sl_read(0, FA + 8); sl_read(1, FA)
    def o_addr():
        a(f"""s_and_b32 s{sA}, s{sNF}, 1
        s_lshl_b32 s{sF}, s{sRB}, 1
        s_add_u32 s{sA}, s{sA}, s{sF}
        s_lshl_b32 s{sA}, s{sA}, 3
        s_add_u32 s{sA}, s{sA}, s{sG}
        s_lshl_b32 s{sA}, s{sA}, 2
        s_lshr_b32 s{sF}, s{sNF}, 1
        s_add_u32 s{sA}, s{sA}, s{sF}
        s_lshl_b32 s{sA}, s{sA}, 10
        s_add_u32 s{sA}, s{sA}, {OF}""")
    a(f"s_mov_b32 s{sD}, 0\ns_cmp_eq_u32 s{sLOOP}, 0\ns_cbranch_scc1 L_finw\ns_waitcnt lgkmcnt(0)")
    sl_add(FA); sl_read(2, FA)
    a(f"v_add_f32 v20, v20, v21\nv_add_f32 v23, v23, v{gCV}\ns_waitcnt lgkmcnt(0)")
    sl_add(FA); sl_read(3, FA)
    a("s_waitcnt lgkmcnt(0)")
    sl_add(FA)
    o_addr()
    a("s_branch L_fin1")
    a.label("L_finw")
    sl_read(2, 24); sl_read(3, 32)
    o_addr()
    a(f"s_waitcnt lgkmcnt(4)\nv_add_f32 v20, v20, v21\nv_add_f32 v23, v23, v{gCV}")
    sl_add(FA)
    a("s_waitcnt lgkmcnt(0)")
    sl_add(24); sl_add(32)
    a.label("L_fin1")
    a(f"v_add_f32 v{FA}, v20, v23")
    a.label("L_fin2")
    a(f"v_rcp_f32 v{FA+2}, v{FA}\ns_mov_b32 s{sF}, 0x76800000")
    for j in range(4): a(f"v_pk_mul_f32 {vr(FA+8+2*j,2)}, {vr(FA+8+2*j,2)}, {vr(FA+2,2)} op_sel_hi:[1,0]")
    for j in range(4): a(f"v_cvt_pk_bf16_f32 v{FA+4+j}, v{FA+8+2*j}, v{FA+9+2*j}")
    grp_store([f"buffer_store_dwordx4 {vr(FA+4,4)}, v{gL16}, {sr(rWS,4)}, s{sA} offen"], sLOD)
    a(f"""v_cmp_nle_f32 vcc, {hex(LMIN)}, v{FA}
    v_cmp_nge_f32 {sr(sRET,2)}, s{sF}, v{FA}
    v_pk_mul_f32 {vr(FA+2,2)}, {vr(FA+8,2)}, 0""")
    for j in range(1, 4): a(f"v_pk_fma_f32 {vr(FA+2,2)}, {vr(FA+8+2*j,2)}, 0, {vr(FA+2,2)}")
    a(f"""s_or_b64 {sr(sRET,2)}, {sr(sRET,2)}, vcc
    v_cmp_u_f32 vcc, v{FA+2}, v{FA+3}
    s_nop 1
    s_or_b64 {sr(sRET,2)}, {sr(sRET,2)}, vcc
    s_cselect_b32 s{sF}, 1, 0
    s_cmp_gt_u32 s{sF}, s{sD}
    {"s_nop 0" if opt.get("nofb") else "s_cbranch_scc1 L_fallback"}
    s_add_u32 s{sNF}, s{sNF}, 8""")
    a(f"v_mov_b32 v20, s{sEP}\nds_write_b32 v{gCN}, v20 offset:{B_TAG}")
    a(f"""s_cmp_eq_u32 s{sLOOP}, 0
    s_cbranch_scc1 L_ev
    s_branch L_trip3""")
    a.label("L_gdone")
    if ts: a("s_waitcnt vmcnt(0)")
    TS(11)
    if opt.get("padto"):
        a.label("L_pad")
        a(f"s_memrealtime s[96:97]\ns_waitcnt lgkmcnt(0)\ns_sub_u32 s96, s96, s{sEP}\ns_cmp_lt_u32 s96, {opt['padto']}\ns_cbranch_scc1 L_pad")
    ts_dump()
    a.label("L_end")
    a("s_endpgm")

    for X, Y, lines in far:
        a.label(X)
        for l in lines: a(l + " sc1")
        a(f"s_branch {Y}")
    a.label("L_fallback")
    FQ, FK, FV, FS, FC, FT = 24, 28, 32, 40, 56, 120
    a(f"""s_cmp_eq_u32 s{sLOOP}, 0
    s_cbranch_scc1 L_fbgo
    s_max_u32 s{sLOOP}, s{sLOOP}, 2
    s_branch L_trip3""")
    a.label("L_fbgo")
    a(f"""s_mul_i32 s{sA}, s{sNF}, {QST}
    s_add_u32 s{sA}, s{sA}, {QF}
    v_add_u32 v{FT}, s{sA}, v{gL16}
    ds_read_b128 {vr(FQ,4)}, v{FT}
    v_mov_b32 v{FT+2}, 0xff800000""")
    a(f"s_mov_b32 s{sA}, 0")
    a.label("L_fb1")
    a(f"""buffer_load_dwordx4 {vr(FK,4)}, v{gL16}, {sr(rWS,4)}, s{sA} offen sc1
    s_waitcnt vmcnt(0) lgkmcnt(0)
    {MF32} {vr(FS,16)}, {vr(FK,4)}, {vr(FQ,4)}, 0
    s_nop 11""")
    maxtree(FS, FT + 3)
    a(f"""v_max_f32 v{FT+2}, v{FT+2}, v{FT+3}
    s_add_u32 s{sA}, s{sA}, 1024
    s_cmp_lt_u32 s{sA}, 0x10000
    s_cbranch_scc1 L_fb1
    v_mov_b32 v{FT+3}, v{FT+2}
    s_nop 1
    v_permlane32_swap_b32 v{FT+2}, v{FT+3}
    v_max_f32 v{FT+2}, v{FT+2}, v{FT+3}""")
    for i in range(16): a(f"v_sub_f32 v{FC+i}, 0, v{FT+2}\nv_mov_b32 v{FA+i}, 0")
    a(f"s_mov_b32 s{sA}, 0")
    a.label("L_fb2")
    a(f"""s_add_u32 s{sF}, s{sA}, {VF}
    buffer_load_dwordx4 {vr(FK,4)}, v{gL16}, {sr(rWS,4)}, s{sA} offen sc1
    buffer_load_dwordx4 {vr(FV,4)}, v{gL16}, {sr(rWS,4)}, s{sF} offen sc1""")
    for i in range(4): a(f"v_mov_b32 v{FV+4+i}, 0x3f803f80")
    a(f"""s_waitcnt vmcnt(0)
    {MF32} {vr(FS,16)}, {vr(FK,4)}, {vr(FQ,4)}, {vr(FC,16)}""")
    for i in range(4): a(f"v_permlane16_swap_b32 v{FV+4+i}, v{FV+i}")
    a("s_nop 7")
    for i in range(16): a(e(FS, i))
    a(f"""v_mov_b32 v{FT}, 0xdddddddd
    s_nop 1
    v_smfmac_f32_32x32x32_bf16 {vr(FA,16)}, {vr(FV,4)}, {vr(FS,8)}, v{FT}
    v_smfmac_f32_32x32x32_bf16 {vr(FA,16)}, {vr(FV+4,4)}, {vr(FS+8,8)}, v{FT}
    s_add_u32 s{sA}, s{sA}, 1024
    s_cmp_lt_u32 s{sA}, 0x10000
    s_cbranch_scc1 L_fb2
    s_nop 15
    s_mov_b32 s{sD}, 1""")
    o_addr()
    a("s_branch L_fin2")

    if opt.get("x_nomf"):
        i0 = a.lines.index("L_f1loop:"); i1 = a.lines.index("L_gdone:")
        for i in range(i0, i1):
            if a.lines[i].startswith("v_mfma"): a.lines[i] = "s_nop 9"
    if opt.get("x_nolds"):
        i0 = a.lines.index("L_f1loop:"); i1 = a.lines.index("L_f2done:")
        for i in range(i0, i1):
            if a.lines[i].startswith(("ds_read_b128", "ds_read_b64_tr")): a.lines[i] = "s_nop 0"
    if opt.get("x_novm"):
        i0 = a.lines.index("L_f1loop:"); i1 = a.lines.index("L_f2done:")
        for i in range(i0, i1):
            if a.lines[i].startswith("buffer_load_dwordx4"): a.lines[i] = "s_nop 3"
    if opt.get("x_nova"):
        i0 = a.lines.index("L_f1loop:"); i1 = a.lines.index("L_gdone:")
        for i in range(i0, i1):
            if a.lines[i].startswith(("v_max_f32", "v_pk_", "v_cvt", "v_mul_f32")): a.lines[i] = "s_nop 0"
    if opt.get("x_swap"):
        import re
        i0 = a.lines.index("L_f2loop:" if opt["x_swap"] == 1 else "L_f1loop:"); i1 = a.lines.index("L_f2done:" if opt["x_swap"] == 1 else "L_epi0:")
        for i in range(i0, i1):
            m = re.match(r"(v_mfma_f32_32x32x16_bf16 \S+), (\S+), (\S+), (\S+)", a.lines[i])
            if m: a.lines[i] = f"{m.group(1)}, {m.group(3)}, {m.group(2)}, {m.group(4)}"
    if opt.get("x_mf16"):
        import re
        i0 = a.lines.index("L_f1loop:" if opt["x_mf16"] != 2 else "L_f2loop:"); i1 = a.lines.index("L_f2done:")
        cnt = {}
        for i in range(i1, i0, -1):
            m = re.match(r"v_mfma_f32_32x32x16_bf16 v\[(\d+):\d+\], (\S+), (\S+), v", a.lines[i])
            if m and m.group(2) != "v[8:11]":
                d = int(m.group(1))
                cnt[d] = cnt.get(d, 0) + 1
                d += 8 * (cnt[d] & 1)
                a.lines[i:i+1] = [f"v_mfma_f32_16x16x32_bf16 v[{d+4*q}:{d+4*q+3}], {m.group(2)}, {m.group(3)}, v[{d+4*q}:{d+4*q+3}]" for q in range(2)]
    i0 = a.lines.index("L_atop:"); i1 = a.lines.index("L_vs0:")
    for i in range(i1, i0, -1):
        l = a.lines[i]
        if opt.get("y_noadd") and l.startswith("ds_add_f64"): del a.lines[i]
        elif opt.get("y_nocvt") and l.startswith("v_cvt_f64"): del a.lines[i]
        elif opt.get("y_noq") and l.startswith("ds_read_b128"): del a.lines[i]
        elif opt.get("y_noexec") and ("exec_hi" in l): del a.lines[i]
        elif opt.get("y_nobr") and l.startswith("s_cbranch_vccnz"): del a.lines[i]
    if opt.get("x_p0", 1):
        i0 = a.lines.index("L_f1loop:"); i1 = a.lines.index("L_gdone:")
        for i in range(i1, i0, -1):
            if a.lines[i].startswith("v_mfma") and "keepprio" not in a.lines[i]: a.lines[i:i+1] = ["s_setprio 0", a.lines[i], "s_setprio 3"]
    probs = lint(a.lines)
    for p in probs: print("LINT", p, file=sys.stderr)
    head = f"""; fused layernorm + MQA attention + squared-relu FFN, one persistent launch (generated by gen/gen.py)
; @launch grid=(256,1,1) block=(768,1,1) lds=163840
.amdgcn_target "amdgcn-amd-amdhsa--gfx950"
.text
.globl {NAME}_kernel
.p2align 8
.type {NAME}_kernel,@function
{NAME}_kernel:
"""
    tail = f""".section .rodata,"a"
.p2align 6
.amdhsa_kernel {NAME}_kernel
  .amdhsa_next_free_vgpr 168
  .amdhsa_next_free_sgpr 100
  .amdhsa_accum_offset 168
  .amdhsa_group_segment_fixed_size 0
  .amdhsa_kernarg_size 104
  .amdhsa_user_sgpr_count 2
  .amdhsa_user_sgpr_kernarg_segment_ptr 1
  .amdhsa_system_sgpr_workgroup_id_x 1
.end_amdhsa_kernel
"""
    return head + a.text() + tail

if __name__ == "__main__":
    open("k.s", "w").write(gen(False))
    open("k_ts.s", "w").write(gen(True))
    open("k_ts_c.s", "w").write(gen(True, dict(cyc=1)))
    import json
    var = json.load(open("variants.json")) if len(sys.argv) > 1 else []
    for n, d in enumerate(var):
        open(f"k_x{n}.s", "w").write(gen(True, dict(d, lite=0 if d.get('pro') or d.get('full') else 1)))
```

```python
import sys
from asmlib import Asm, vr, sr, lint
NAME = "parallel_sum__grouped_kv_mqa__dense_activation_squared_relu__prompt"

KF, VF, FLG_KV, FLG_H, FLG_O, OF, HF, TSB = 0, 0x10000, 0x20000, 0x28000, 0x30000, 0x40000, 0x240000, 0x800000
OT = 0x900000
WS_BYTES = 0xA00000
XN, RING, WKV = 0, 65536, 131072
RSZ = 12288
OACC, SLOT = 114688, 2304
B_TAG = 2300
QF, QST = 151552, 1536
B_W = 1280
KT = 147456
RSTD = KT + 2048
GC = QF + B_W
C_QREADY, C_ABAR, C_HDONE, C_GBAR, C_WQ, C_KV, C_RS, C_L0, C_EPOCH, C_PX, C_KT, C_WQ2, C_FL, C_XN = 0, 4, 8, 12, 16, 20, 24, 28, 32, 40, 48, 52, 56, 60
W1P = 2752
OFFS = 90.0
SPIN_CAP = 1 << 17

sW, sRB, sG, sKG, sCH = 3, 4, 5, 6, 7
pX, pWQ, pWK, pWV, pWO, pW1, pB1, pW2, pB2, pOUT, pDBG, pWS = 8, 10, 12, 14, 16, 20, 22, 24, 26, 28, 30, 32
rX, rWS, rW, rT = 36, 40, 44, 48
sEP = 52
sI, sRT, sCT = 54, 55, 56
sA, sB, sC, sD, sE, sF = 57, 58, 59, 60, 61, 62
sCAP = 63
sM = 34
TS0 = 64
MF32 = "v_mfma_f32_32x32x16_bf16"

def gen(ts=False, opt={}):
    a = Asm()
    OFFS = float(opt.get('offs', 102))
    LMIN = (127 - int(OFFS) - 2) << 23
    GP = opt.get('gp', 3)
    P1A, P1B, P2A, P2C, P2D, PO = opt.get('pads', (-1, -1, -1, -1, -1, -1))
    def pad(n):
        if n >= 0: a(f's_nop {n}')
    late = [False]
    role = ["A"]
    def TS(i):
        if opt.get("probe") == (role[0], i) and not (late[0] and opt.get("pearly")): a("s_memrealtime s[98:99]")
        if opt.get("lite") and i not in ((0, 6, 9) if role[0] == "A" else (0, 11)): return
        if opt.get("pro") and late[0] and i != 11: return
        if opt.get("f2ts") and late[0]: i = {7: 12, 8: 13, 6: 14, 11: 11}.get(i)
        if i is None: return
        if ts: a(f"{'s_memtime' if opt.get('cyc') else 's_memrealtime'} {sr(TS0 + 2 * i, 2)}")
    def srd(r, p, n):
        a(f"s_mov_b32 s{r}, s{p}\ns_mov_b32 s{r+1}, s{p+1}\ns_mov_b32 s{r+2}, {n}\ns_mov_b32 s{r+3}, 0x20000")
    def lds_spin(off, val, va, vt, sleep=1):
        L = a.newlabel("spin"); D = a.newlabel("spun")
        a(f"s_mov_b32 s{sCAP}, 0")
        a.label(L)
        a(f"""ds_read_b32 v{vt}, v{va} offset:{off}
        s_add_u32 s{sCAP}, s{sCAP}, 1
        s_waitcnt lgkmcnt(0)
        v_readfirstlane_b32 s{sF}, v{vt}
        s_cmp_gt_u32 s{sCAP}, {SPIN_CAP}
        s_cbranch_scc1 {D}""")
        if sleep:
            a(f"s_cmp_ge_u32 s{sF}, {val}\ns_cbranch_scc1 {D}\ns_sleep {sleep}\ns_branch {L}")
        else:
            a(f"s_cmp_lt_u32 s{sF}, {val}\ns_cbranch_scc1 {L}")
        a.label(D)
    def lds_inc(off, va, vt):
        a(f"v_mov_b32 v{vt}, 1\ns_mov_b64 exec, 1\nds_add_u32 v{va}, v{vt} offset:{off}\ns_mov_b64 exec, -1")
    def flag_poll(va, soff, vt, sleep=2, preissued=False):
        L = a.newlabel("poll"); D = a.newlabel("polled")
        a(f"s_mov_b32 s{sCAP}, 0")
        if isinstance(preissued, tuple): a(f"s_cmp_eq_u32 s{preissued[0]}, {preissued[1]}\ns_cbranch_scc1 {L}w")
        elif preissued: a(f"s_branch {L}w")
        a.label(L)
        a(f"buffer_load_dwordx2 {vr(vt,2)}, v{va}, {sr(rWS,4)}, s{soff} offen sc1")
        a.label(L + "w")
        a(f"""s_add_u32 s{sCAP}, s{sCAP}, 1
        s_waitcnt vmcnt(0)
        v_cmp_ne_u64 vcc, {sr(sEP,2)}, {vr(vt,2)}
        s_cmp_gt_u32 s{sCAP}, {SPIN_CAP}
        s_cbranch_scc1 {D}
        s_cbranch_vccz {D}
        s_sleep {sleep}
        s_branch {L}""")
        a.label(D)
    sLOC = 25
    sLOD = 30
    def grp_store(lines, sLOC=sLOC):
        X = a.newlabel("far"); Y = a.newlabel("std")
        a(f"s_cmp_eq_u32 s{sLOC}, 0\ns_cbranch_scc1 {X}")
        for l in lines: a(l)
        a.label(Y)
        far.append((X, Y, lines))
    far = []
    def flag_store(soff, vt):
        a(f"v_mov_b64 {vr(vt,2)}, {sr(sEP,2)}\ns_mov_b64 exec, 1")
        grp_store([f"buffer_store_dwordx2 {vr(vt,2)}, off, {sr(rWS,4)}, s{soff}"])
        a("s_mov_b64 exec, -1")
    def ts_dump():
        if opt.get("probe") and opt["probe"][0] == role[0]:
            L = a.newlabel("pad")
            a.label(L)
            a(f"s_sleep 2\ns_memrealtime s[96:97]\ns_waitcnt lgkmcnt(0)\ns_sub_u32 s96, s96, s98\ns_cmp_lt_u32 s96, 4000\ns_cbranch_scc1 {L}")
        if not ts: return
        a(f"""s_sleep 127
        s_sleep 127
        s_sleep 127
        s_waitcnt lgkmcnt(0)
        s_mul_i32 s{sA}, s2, 12
        s_add_u32 s{sA}, s{sA}, s{sW}
        s_lshl_b32 s{sA}, s{sA}, 6
        s_add_u32 s{sA}, s{sA}, {TSB}
        s_mov_b64 exec, 1""")
        for q in range(4):
            for j in range(4): a(f"v_mov_b32 v{4+j}, s{TS0 + 2 * (4 * q + j)}")
            a(f"buffer_store_dwordx4 v[4:7], off, {sr(rWS,4)}, s{sA} offset:{16*q}\ns_nop 1")
        a("s_waitcnt vmcnt(0)")
    def maxtree(S, d):
        a(f"v_max3_f32 v{d}, v{S}, v{S+1}, v{S+2}")
        for j in range(3, 15, 2): a(f"v_max3_f32 v{d}, v{d}, v{S+j}, v{S+j+1}")
        a(f"v_max_f32 v{d}, v{d}, v{S+15}")
    def e(S, i): return f"v_exp_f32 v{S+i}, v{S+i}"
    def c(S, j): return f"v_cvt_pk_bf16_f32 v{S + (j & 3) + 8 * (j >> 2)}, v{S+2*j}, v{S+2*j+1}"
    PFS = opt.get("pfstride", 7)
    def l2_prefetch(r, nbytes, vaddr, vdummy, part, nparts):
        chunk = 64 << PFS
        rounds = -(-nbytes // (chunk * 32))
        a(f"s_lshr_b32 s{sF}, s2, 3\ns_mul_i32 s{sF}, s{sF}, {chunk}")
        if part is not None:
            a(f"s_mul_i32 s{sCAP}, s{part}, {chunk*32}\ns_add_u32 s{sF}, s{sF}, s{sCAP}")
        for i in range(-(-rounds // nparts)):
            a(f"buffer_load_dword v{vdummy}, v{vaddr}, {sr(r,4)}, s{sF} offen")
            a(f"s_add_u32 s{sF}, s{sF}, {chunk*32*nparts}")

    FS_ = opt.get('fs', 5)
    NKT = opt.get('nkt', 2)
    BC = opt.get('bc', 0)
    TQ, TC, HLOC = opt.get("tq", 2), opt.get("tc", 4), opt.get("hloc", 0)
    def chip_touch(va, vd):
        a(f"s_mov_b32 exec_hi, 0x7ff\ns_mul_i32 s{sF}, s2, 5504")
        for p_ in (pW1, pW2):
            srd(rT, p_, 512 * W1P)
            a(f"buffer_load_dword v{vd}, v{va}, {sr(rT,4)}, s{sF} offen")
        srd(rT, pWO, 0x80000)
        a(f"s_mov_b64 exec, 0xffff\ns_lshl_b32 s{sF}, s2, 11\nbuffer_load_dword v{vd}, v{va}, {sr(rT,4)}, s{sF} offen\ns_mov_b64 exec, -1")
    def a_touch(lab):
        a(f"s_cmp_lg_u32 s{sW}, 7\ns_cbranch_scc1 {lab}\nv_lshlrev_b32 v14, 4, v0")
        chip_touch(14, 15)
        a.label(lab)
    if opt.get("probe"): a("s_memrealtime s[98:99]")
    a(f"""s_memrealtime {sr(sM,2)}
    s_load_dwordx16 s[8:23], s[0:1], 0
    s_load_dwordx8 s[24:31], s[0:1], 64
    s_load_dwordx2 s[32:33], s[0:1], 96
    s_cmp_ge_u32 s2, 256
    s_cbranch_scc1 L_end""")
    if ts:
        for i in range(16): a(f"s_mov_b32 s{TS0+2*i}, 0")
    TS(0)
    a(f"""v_lshrrev_b32 v1, 6, v0
    s_and_b32 s{sRB}, s2, 7
    v_readfirstlane_b32 s{sW}, v1
    s_lshl_b32 s{sRB}, s{sRB}, 2
    s_lshr_b32 s{sA}, s2, 6
    s_add_u32 s{sRB}, s{sRB}, s{sA}
    s_bfe_u32 s{sG}, s2, 0x30003
    s_lshr_b32 s{sKG}, s{sG}, 1
    s_and_b32 s{sCH}, s{sG}, 1
    v_and_b32 v0, 63, v0""")
    CP = opt.get("cpf", 1)
    if CP:
        a(f"""s_cmp_lg_u32 s{sW}, 10
        s_cbranch_scc1 L_nocp
        s_getpc_b64 s[48:49]
        v_lshlrev_b32 v2, 7, v0""")
        if CP == 1:
            a(f"""s_lshr_b32 s{sA}, s2, 3
            s_lshl_b32 s{sA}, s{sA}, 10
            v_add_u32 v2, s{sA}, v2
            v_min_u32 v2, 24576, v2
            s_mov_b64 exec, 0xff
            global_load_dword v6, v2, s[48:49]
            s_mov_b64 exec, -1""")
        else:
            a(f"""global_load_dword v6, v2, s[48:49]
            v_add_u32 v2, 8192, v2
            global_load_dword v6, v2, s[48:49]""")
        a.label("L_nocp")
    a(f"""s_cmp_ge_u32 s{sW}, 8
    s_cbranch_scc1 L_gwave""")

    vL4, vAD, vT = 0, 1, 2
    Q, K, V, S0, S1, ACC, CIN = 4, 8, 40, 104, 120, 136, 152
    sKVO, sKB = sE, 45
    sQS, sSS, sTG = (0, 1), (sI, sRT), 48
    a(f"""v_lshrrev_b32 v3, 5, v0
    v_and_b32 v4, 31, v0
    s_lshl_b32 s{sA}, s{sW}, 1
    v_add_u32 v3, s{sA}, v3
    v_lshlrev_b32 v1, 10, v3
    v_lshl_add_u32 v5, v4, 4, v1
    s_lshl_b32 s{sB}, s{sRB}, 16
    s_lshl_b32 s{sC}, s{sKG}, 14
    s_add_u32 s{sD}, s{sB}, s{sC}
    s_waitcnt lgkmcnt(0)""")
    srd(rX, pX, 0x200000)
    AW = opt.get("aw", 0)
    if AW:
        a(f"""s_cmp_eq_u32 s{sCH}, 0
        s_cselect_b32 s{rW}, s{pWK}, s{pWV}
        s_cselect_b32 s{rW+1}, s{pWK+1}, s{pWV+1}
        s_mov_b32 s{rW+2}, 16384
        s_mov_b32 s{rW+3}, 0x20000
        s_lshl_b32 s{sA}, s{sW}, 11
        s_add_u32 m0, s{sA}, {WKV}
        v_lshlrev_b32 v6, 4, v0
        buffer_load_dwordx4 v6, {sr(rW,4)}, s{sA} offen lds
        buffer_load_dwordx4 v6, {sr(rW,4)}, s{sA} offen offset:1024 lds""")
    a(f"""buffer_load_dwordx4 v[8:11], v5, {sr(rX,4)}, s{sD} offen
    buffer_load_dwordx4 v[12:15], v5, {sr(rX,4)}, s{sD} offen offset:512""")
    def x_load(it):
        a(f"""s_xor_b32 s{sD}, s{sC}, {it << 14}
        s_add_u32 s{sD}, s{sB}, s{sD}
        buffer_load_dwordx4 {vr(8+8*it,4)}, v5, {sr(rX,4)}, s{sD} offen
        buffer_load_dwordx4 {vr(12+8*it,4)}, v5, {sr(rX,4)}, s{sD} offen offset:512""")
    srd(rWS, pWS, WS_BYTES)
    vGC, vQW, vOZ, vCW, vKA, vVA, vFL, vF2 = CIN, CIN + 1, CIN + 2, CIN + 3, CIN + 4, CIN + 5, CIN + 6, CIN + 7
    for i in range(2): a(f"v_mov_b64 {vr(ACC+2*i,2)}, 0")
    a(f"""v_mov_b32 v{vGC}, {GC}
    v_lshlrev_b32 v{vFL}, {FS_}, v4
    v_and_b32 v6, 15, v0
    v_cmp_eq_u32 vcc, 0, v6
    ds_write_b128 v{vGC}, {vr(ACC,4)}
    ds_write_b128 v{vGC}, {vr(ACC,4)} offset:16
    ds_write_b128 v{vGC}, {vr(ACC,4)} offset:32
    ds_write_b128 v{vGC}, {vr(ACC,4)} offset:48
    v_xor_b32 v4, v4, v3
    v_lshl_add_u32 v2, v4, 4, v1
    v_lshlrev_b32 v3, 2, v3
    v_add_u32 v3, {RSTD}, v3
    v_mov_b32 v{CIN+8}, 0x3f803f80
    v_mov_b32 v{CIN+9}, 0x3f80
    v_mov_b32 v{CIN+10}, 0x3f800000
    v_cndmask_b32 v{V+4}, 0, v{CIN+8}, vcc
    v_cndmask_b32 v{V+5}, 0, v{CIN+8}, vcc""")
    for i in range(1, 16): a(f"v_mov_b64 {vr(V+8*(i>>1)+4+2*(i&1),2)}, {vr(V+4,2)}")
    a(f"""v_lshlrev_b32 v{vKA}, 4, v0
    v_lshrrev_b32 v4, {6 - NKT}, v0
    v_lshlrev_b32 v{vF2}, {FS_+1}, v4
    v_lshlrev_b32 v{vL4}, 2, v0
    s_mov_b32 s{sA}, 0x3b000000""")
    U, R0 = S0, S1
    cOne2, cLo, cHi = CIN + 8, CIN + 9, CIN + 10
    def red32(rs):
        pad = "s_nop 1\n" if len(rs) == 1 else ""
        for mode in ("quad_perm:[1,0,3,2]", "quad_perm:[2,3,0,1]", "row_half_mirror", "row_mirror"):
            a(pad + "\n".join(f"v_add_f32_dpp v{r}, v{r}, v{r} {mode} row_mask:0xf bank_mask:0xf" for r in rs))
        for r in rs: a(f"v_mov_b32 v{r+1}, v{r}")
        a(pad + "\n".join(f"v_permlane16_swap_b32 v{r}, v{r+1}" for r in rs))
        for r in rs: a(f"v_add_f32 v{r}, v{r}, v{r+1}")
    def centre(its):
        for j in range(8):
            for it in its:
                X, R = 8 + 8 * it, R0 + 2 * (it % 3)
                a(f"v_dot2_f32_bf16 v{R+(j&1)}, v{X+j}, v{cOne2}, {'0' if j < 2 else f'v{R+(j&1)}'}")
        a("s_nop 2" if len(its) == 1 else "s_nop 0")
        for it in its: a(f"v_add_f32 v{R0+2*(it%3)}, v{R0+2*(it%3)}, v{R0+2*(it%3)+1}")
        red32([R0 + 2 * (it % 3) for it in its])
        for it in its: a(f"v_mul_f32 v{R0+2*(it%3)}, 0xbb000000, v{R0+2*(it%3)}")
        for it in its:
            X, R = 8 + 8 * it, R0 + 2 * (it % 3)
            a(f"s_xor_b32 s{sD}, s{sC}, {it << 14}\nv_add_u32 v7, s{sD}, v2")
            for j in range(8):
                a(f"v_dot2_f32_bf16 v{U+2*j}, v{X+j}, v{cLo}, v{R}\nv_dot2_f32_bf16 v{U+2*j+1}, v{X+j}, v{cHi}, v{R}")
            for j in range(8):
                a(f"v_cvt_pk_bf16_f32 v{X+j}, v{U+2*j}, v{U+2*j+1}")
                if it: pass
                elif j == 0: a(f"v_pk_mul_f32 {vr(R,2)}, {vr(U,2)}, {vr(U,2)}")
                else: a(f"v_pk_fma_f32 {vr(R,2)}, {vr(U+2*j,2)}, {vr(U+2*j,2)}, {vr(R,2)}")
                if j == 3: a(f"ds_write_b128 v7, {vr(X,4)}")
            a(f"ds_write_b128 v7, {vr(X+4,4)} offset:512")
    def scales(its):
        for it in its: a(f"v_add_f32 v{R0+2*(it%3)}, v{R0+2*(it%3)}, v{R0+2*(it%3)+1}")
        red32([R0 + 2 * (it % 3) for it in its])
        a(f"v_mov_b32 v7, 0x3727c5ac")
        for it in its: a(f"v_fma_f32 v{R0+2*(it%3)}, v{R0+2*(it%3)}, s{sA}, v7")
        for it in its: a(f"v_rsq_f32 v{R0+2*(it%3)}, v{R0+2*(it%3)}")
        for it in its:
            a(f"s_xor_b32 s{sD}, s{sC}, {it << 14}\ns_lshr_b32 s{sD}, s{sD}, 8\nv_add_u32 v{R0+2*(it%3)+1}, s{sD}, v3")
            a(f"ds_write_b32 v{R0+2*(it%3)+1}, v{R0+2*(it%3)}")
    a("s_setprio 2\ns_waitcnt lgkmcnt(0)\ns_barrier")
    TS(8)
    XH = opt.get("xh", 1)
    for it in range(1, 1 + XH): x_load(it)
    if XH < 3:
        a(f"s_cmp_ge_u32 s{sW}, 4\ns_cbranch_scc1 L_xh1")
        for it in range(1 + XH, 4): x_load(it)
        a(f"s_waitcnt vmcnt(6)\ns_branch L_xh2")
        a.label("L_xh1")
        a(f"s_waitcnt vmcnt({2 * XH})")
        a.label("L_xh2")
    else: a("s_waitcnt vmcnt(6)")
    TS(1)
    if AW: lds_inc(C_KT, vGC, 7)
    centre([0]); scales([0])
    lds_inc(C_L0, vGC, 7)
    if XH < 3:
        a(f"s_cmp_lt_u32 s{sW}, 4\ns_cbranch_scc1 L_xh3")
        for it in range(1 + XH, 4): x_load(it)
        a.label("L_xh3")
    a("s_setprio 1")
    TS(2)
    a("s_waitcnt vmcnt(0)")
    TS(12)
    centre([1, 2, 3])
    lds_inc(C_XN, vGC, vT)
    a("s_setprio 0")
    TS(3)
    a(f"s_mov_b32 s{sD}, 0xffff0000")
    for it in (1, 2, 3):
        X, R = 8 + 8 * it, R0 + 2 * (it % 3)
        for j in range(8): a(f"v_lshlrev_b32 v{U+2*j}, 16, v{X+j}\nv_and_b32 v{U+2*j+1}, s{sD}, v{X+j}")
        a(f"v_pk_mul_f32 {vr(R,2)}, {vr(U,2)}, {vr(U,2)}")
        for j in range(1, 8): a(f"v_pk_fma_f32 {vr(R,2)}, {vr(U+2*j,2)}, {vr(U+2*j,2)}, {vr(R,2)}")
    scales([1, 2, 3])
    lds_inc(C_RS, vGC, vT)
    TS(5)

    lds_spin(C_FL, 1, vGC, vT, sleep=1)
    a(f"""ds_read_b64 v[8:9], v{vGC} offset:{C_EPOCH}
    s_add_u32 s{sKB}, s{sW}, s{sG}
    s_and_b32 s{sKB}, s{sKB}, 7
    s_lshl_b32 s{sKVO}, s{sKB}, 13
    s_add_u32 s{sA}, s{sKVO}, 4096
    s_add_u32 s{sC}, s{sKVO}, {VF}
    s_add_u32 s{sD}, s{sKVO}, {VF+4096}
    s_lshr_b32 s{sF}, s{sW}, 2
    s_and_b32 s{sB}, s{sW}, 3
    s_mul_i32 s{sQS[0]}, s{sF}, {QST}
    s_sub_u32 s{sQS[1]}, {QF + QST}, s{sQS[0]}
    s_add_u32 s{sQS[0]}, s{sQS[0]}, {QF}
    s_mul_i32 s{sSS[0]}, s{sB}, {SLOT}
    s_add_u32 s{sSS[0]}, s{sSS[0]}, {OACC}
    s_mul_i32 s{sF}, s{sF}, {4 * SLOT}
    s_sub_u32 s{sSS[1]}, s{sSS[0]}, s{sF}
    s_add_u32 s{sSS[1]}, s{sSS[1]}, {4 * SLOT}
    s_add_u32 s{sSS[0]}, s{sSS[0]}, s{sF}
    s_waitcnt lgkmcnt(0)
    v_readfirstlane_b32 s{sEP}, v8
    v_readfirstlane_b32 s{sEP+1}, v9
    s_cmp_lg_u32 s{sW}, {opt.get("ktw", 0)}
    s_cbranch_scc1 L_nokt
    s_lshl_b32 s{sB}, s{sRB}, {FS_+3}
    s_add_u32 s{sB}, s{sB}, {FLG_KV}""")
    a(f"s_sleep {opt.get('kt0', 4)}")
    flag_poll(vF2, sB, 12, sleep=2)
    a(f"""s_lshl_b32 s{sB}, s{sRB}, 11
    v_add_u32 v12, {KT}, v{vKA}
    buffer_load_dwordx4 {vr(K,4)}, v{vKA}, {sr(rWS,4)}, s{sB} offen sc1""")
    if NKT == 2: a(f"buffer_load_dwordx4 {vr(K+8,4)}, v{vKA}, {sr(rWS,4)}, s{sB} offen offset:1024 sc1")
    lds_inc(C_FL, vGC, vT)
    if opt.get("kp", 1):
        a(f"""s_lshl_b32 s{sB}, s{sKB}, {FS_+5}
        s_add_u32 s{sB}, s{sB}, {FLG_KV}
        s_nop 0
        buffer_load_dwordx2 v[14:15], v{vFL}, {sr(rWS,4)}, s{sB} offen sc1""")
    a(f"""s_waitcnt vmcnt({1 if opt.get("kp", 1) else 0})
    ds_write_b128 v12, {vr(K,4)}""")
    if NKT == 2: a(f"ds_write_b128 v12, {vr(K+8,4)} offset:1024")
    lds_inc(C_RS, vGC, vT)
    TS(11)
    a.label("L_nokt")
    W0 = opt.get("w0", 1)
    a(f"""s_mov_b32 s47, 5
    s_cmp_eq_u32 s{sW}, 0
    s_cselect_b32 s{rX}, s{pW1}, s{pW2}
    s_cselect_b32 s{rX+1}, s{pW1+1}, s{pW2+1}
    s_cmp_eq_u32 s{sW}, 2
    s_cselect_b32 s{rX}, s{pWO}, s{rX}
    s_cselect_b32 s{rX+1}, s{pWO+1}, s{rX+1}
    s_mov_b32 s{sF}, 5504
    s_cselect_b32 s{sF}, 2048, s{sF}
    s_mul_i32 s46, s2, s{sF}
    s_sub_u32 s{sB}, s{sW}, {1 if W0 else 0}
    s_cmp_lt_u32 s{sB}, {2 if W0 else 3}
    s_cbranch_scc1 L_touch
    s_mov_b32 s{rX}, s{pWS}
    s_mov_b32 s{rX+1}, s{pWS+1}
    s_lshl_b32 s46, s{sRB}, 4
    s_add_u32 s46, s46, s{sG}
    s_lshl_b32 s46, s46, 12
    s_add_u32 s46, s46, {OF + 2048}
    s_lshl_b32 s{sB}, s{sRB}, 3
    s_add_u32 s{sB}, s{sB}, s{sG}
    s_lshl_b32 s{sB}, s{sB}, 7
    s_add_u32 s{sB}, s{sB}, {FLG_H}
    s_cmp_lt_u32 s{sW}, 5
    s_cselect_b32 s46, s46, s{sB}
    s_cselect_b32 s{sF}, 2048, 64
    s_and_b32 s{sB}, s{sW}, 1
    s_lshl_b32 s{sB}, s{sB}, 15
    s_add_u32 s46, s46, s{sB}""")
    if W0:
        a(f"""s_sub_u32 s44, s{sW}, 1
        s_cmp_lt_u32 s44, 6
        s_cbranch_scc1 L_touch
        s_mov_b32 s{rX}, s{pOUT}
        s_mov_b32 s{rX+1}, s{pOUT+1}
        s_lshl_b32 s46, s{sRB}, 16
        s_add_u32 s46, s46, s{sB}
        s_lshl_b32 s{sB}, s{sG}, 7
        s_add_u32 s46, s46, s{sB}
        s_mov_b32 s{sF}, {31 * 1024 + 64 if W0 == 2 else 0}
        s_mov_b32 s47, 8""")
    a.label("L_touch")
    a(f"""s_add_u32 s{rX+2}, s46, s{sF}
    s_mov_b32 s{rX+3}, 0x20000
    s_mov_b32 m0, {QF + QST + B_W}""")
    if opt.get("gate", 1) == 1: lds_spin(C_FL, 2, vGC, vT, sleep=1)
    elif opt.get("g0"): a(f"s_sleep {opt['g0']}")
    a(f"""s_lshl_b32 s{sB}, s{sKB}, {FS_+5}
    s_add_u32 s{sB}, s{sB}, {FLG_KV}""")
    if opt.get("pprio"): a("s_setprio 3")
    flag_poll(vFL, sB, 14, sleep=opt.get("kvsleep", 4), preissued=(sW, opt.get("ktw", 0)) if opt.get("kp", 1) else False)
    if opt.get("pprio"): a("s_setprio 0")
    if opt.get("gate", 1) == 2: lds_spin(C_FL, 2, vGC, vT, sleep=0)
    if opt.get("wgate"):
        lds_inc(C_KT, vGC, vT)
        lds_spin(C_KT, 8, vGC, vT, sleep=0)
    TS(4)
    def ldK(t): a(f"buffer_load_dwordx4 {vr(K+4*t,4)}, v{vKA}, {sr(rWS,4)}, s{sKVO if t < 4 else sA} offen offset:{(t&3)*1024} sc1")
    def ldV(t): a(f"buffer_load_dwordx4 {vr(V+8*t,4)}, v{vKA}, {sr(rWS,4)}, s{sC if t < 4 else sD} offen offset:{(t&3)*1024} sc1")
    ldK(0)
    for t in range(7):
        ldK(t + 1); ldV(t)
    ldV(7)
    lds_inc(C_KV, vGC, vT)
    TS(10)
    lds_spin(C_QREADY, 4, vGC, vT, sleep=0)
    TS(6)
    if ts: a(f"s_memtime {sr(TS0+26,2)}")
    def touches(late_):
        L = a.newlabel("nt")
        a(f"s_sub_u32 s{sA}, s{sW}, 3\ns_cmp_lt_u32 s{sA}, 2\ns_cbranch_scc{0 if late_ else 1} {L}")
        touch1()
        a.label(L)
    def touch1():
        a(f"""v_lshlrev_b32 v{vT}, s47, v{vL4}
        s_mov_b32 exec_hi, 0x7ff
        buffer_load_dword v{vT}, {sr(rX,4)}, s46 offen lds
        s_mov_b32 exec_hi, -1""")
    ph = lambda s_: (s_ >> 1) & 1
    qoff = lambda s_: (4 * (s_ >> 2) + 2 * (s_ & 1)) * QST
    soff = lambda s_: (s_ & 1) * 8 * SLOT
    tag = lambda s_: sTG + 2 * (s_ >> 2) + ph(s_)
    def load_q(s_):
        return [f"v_lshl_add_u32 v{vAD}, v{vL4}, 2, s{sQS[ph(s_)]}", f"v_and_b32 v{vT}, 0x7f, v{vL4}",
                f"ds_read_b128 {vr(Q,4)}, v{vAD} offset:{qoff(s_)}", f"v_lshl_add_u32 v{vT}, v{vT}, 1, s{sQS[ph(s_)]}",
                f"ds_read_b64 {vr(CIN,2)}, v{vT} offset:{qoff(s_) + 1024}"]
    def cin_fill():
        for j in range(1, 8): a(f"v_mov_b64 {vr(CIN+2*j,2)}, {vr(CIN,2)}")
    def QK(t, S): return f"{MF32} {vr(S,16)}, {vr(K+4*t,4)}, {vr(Q,4)}, {vr(CIN,16)}"
    def PV(t, hf, S): return f"v_smfmac_f32_32x32x32_bf16 {vr(ACC,16)}, {vr(V+8*t+4*hf,4)}, {vr(S+8*hf,8)}, v{vIX}"
    vIX = vT + 1
    def acc_zero():
        a(f"v_mov_b32 v{ACC}, 0")
        for j in range(4): a(f"v_mov_b64 {vr(ACC+8+2*j,2)}, 0")
    def adr(s_): return [f"v_lshl_add_u32 v{vAD}, v{vL4}, 2, s{sSS[ph(s_)]}", f"v_add_u32 v{vT}, s{sSS[ph(s_)]}, v{vL4}"]
    def put(s_):
        return [adr(s_), [f"v_writelane_b32 v{ACC}, s{tag(s_)}, 63", f"ds_write_b128 v{vAD}, {vr(ACC+8,4)} offset:{soff(s_)}"],
                [f"ds_write_b128 v{vAD}, {vr(ACC+12,4)} offset:{soff(s_)+1024}"], [f"ds_write_b32 v{vT}, v{ACC} offset:{soff(s_)+2048}"]]
    def get(s_):
        return [f"ds_read_b32 v{ACC}, v{vT} offset:{soff(s_)+2048}", f"ds_read_b128 {vr(ACC+8,4)}, v{vAD} offset:{soff(s_)}",
                f"ds_read_b128 {vr(ACC+12,4)}, v{vAD} offset:{soff(s_)+1024}"]
    def vswap(t):
        for j in range(4): a(f"v_permlane16_swap_b32 v{V+8*t+4+j}, v{V+8*t+j}")
    for l in load_q(0): a(l)
    a("s_setprio 2")
    for j in range(4): a(f"s_add_u32 s{sTG+j}, s{sEP}, {j+1}")
    a(f"v_mov_b32 v{vIX}, 0xdddddddd")
    acc_zero()
    a("s_waitcnt lgkmcnt(0)")
    cin_fill()
    a("s_waitcnt vmcnt(15)\ns_nop 0")
    a(QK(0, S0))
    a("s_nop 10\ns_waitcnt vmcnt(14)")
    a.label("L_atop")
    SS = [S0, S1]
    VW = [12, 10, 8, 6, 4, 2, 1, 0]
    std = "e0 e1 P1 e2 e3 e4 QK e5 e6 e7 e8 e9 e10 P0 e11 e12 e13 e14 e15"
    late1 = "e0 e1 e2 P1 e3 e4 QK e5 e6 e7 e8 e9 e10 e11 P0 e12 e13 e14 e15"
    PRI = dict(opt.get("pri", [(10, 1), (18, 0), (20, 2), (28, 1), (35, 0), (37, 2), (47, 1), (57, 0)]))
    stubs = []
    TT, TS_ = 7, opt.get("tat", 50)
    for s_ in range(8):
        orders = {6: "e0 e1 P1 e2 L L e3 e4 QK e5 L L L e6 e7 e8 e9 e10 P0 e11 e12 e13 e14 e15",
                  7: "e0 e1 P1 G M e2 e3 QK e4 e5 e6 e7 e8 e9 P0 e10 X e11 e12 e13 e14 e15"}
        fl = []
        if s_ == 0:
            orders[0] = std.replace("P1 ", "")
            for t in range(8): orders[t] = orders.get(t, std).replace("e8 e9", "W e8 e9")
        elif ph(s_):
            orders[0] = "e0 e1 P1 e2 e3 e4 QK e5 e6 e7 e8 F e9 e10 F F F F e11 e12 e13 e14 e15 Y P0"
            orders[1] = late1
            fl = put(s_ - 1) + [(adr(s_) if ph(s_ - 1) != ph(s_) else []) + get(s_)]
        else:
            orders[0] = "e0 e1 P1 e2 e3 e4 QK e5 e6 e7 e8 F e9 e10 F e11 F e12 F e13 Z e14 e15 P0"
            orders[1] = late1
            fl = put(s_ - 1)
        if s_ == 7:
            orders[6] = std; orders[7] = std.replace("QK ", "")
        lq = load_q(s_ + 1) if s_ < 7 else []
        if s_ in (4, 5):
            lq[-1] += f"\nv_mov_b32 v{vAD}, s{sSS[0]}\nds_read_b32 v{vT}, v{vAD} offset:{soff(s_) + B_TAG}"
        for t in range(8):
            cur, nxt = SS[t & 1], SS[(t + 1) & 1]
            if 8 * s_ + t == TS_: touches(1)
            if 8 * s_ + t in PRI: a(f"s_setprio {PRI[8 * s_ + t]}")
            for tok in orders.get(t, std).split():
                if tok[0] == "e": a(e(cur, int(tok[1:])))
                elif tok[0] == "c": a(c(cur, int(tok[1:])))
                elif tok == "P1": a(PV((t - 1) & 7, 1, nxt))
                elif tok == "P0": a(PV(t, 0, cur))
                elif tok == "Z": acc_zero()
                elif tok == "QK": a(QK((t + 1) & 7, nxt))
                elif tok == "W":
                    a(f"s_waitcnt vmcnt({VW[t] + (1 if t > TT else 0)})")
                    vswap(t)
                    if t == TT: touches(0)
                elif tok == "G": a("s_waitcnt lgkmcnt(0)")
                elif tok == "M": cin_fill()
                elif tok == "F": a("\n".join(fl.pop(0)))
                elif tok == "L": a(lq.pop(0))
                elif tok == "Y":
                    a.label(f"L_got{s_}")
                    a(f"""s_waitcnt lgkmcnt(0)
                    v_readlane_b32 s{sA}, v{ACC}, 63
                    s_nop 0
                    s_cmp_lg_u32 s{sA}, s{tag(s_ - 2)}
                    s_cbranch_scc1 L_wait{s_}""")
                    a.label(f"L_go{s_}")
                    stubs.append((f"L_wait{s_}", f"L_go{s_}", f"L_got{s_}", get(s_), 1))
                elif tok == "X" and s_ in (4, 5):
                    a.label(f"L_grd{s_}")
                    a(f"""v_readfirstlane_b32 s{sA}, v{vT}
                    s_nop 0
                    s_cmp_lg_u32 s{sA}, s{sEP}
                    s_cbranch_scc1 L_gw{s_}""")
                    a.label(f"L_gok{s_}")
                    stubs.append((f"L_gw{s_}", f"L_gok{s_}", f"L_grd{s_}", [f"ds_read_b32 v{vT}, v{vAD} offset:{soff(s_) + B_TAG}", "s_waitcnt lgkmcnt(0)"], 0x10000 if s_ == 5 else (1 if opt.get("g4") else 0x10000)))
    TS(7)
    a("s_setprio 2\ns_nop 0")
    a(PV(7, 1, S1))
    fl = put(7)
    gCN, gOA, gLA, gCV = 16, 17, 18, 19
    sNF, sPF, sFT, sLOOP, sLOD_ = 10, 11, 24, 20, 30
    a(f"""v_mov_b32 v21, {GC}
    ds_read_b32 v20, v21 offset:{C_KT}
    s_lshl_b32 s{sA}, s{sW}, 2
    s_lshr_b32 s{sNF}, {opt.get("fmap", 0x2103)}, s{sA}
    s_and_b32 s{sNF}, s{sNF}, 3
    s_mul_i32 s{sA}, s{sNF}, {4 * SLOT}
    s_add_u32 s{sA}, s{sA}, {OACC}
    v_bfe_u32 v{gCN}, v0, 2, 2
    v_mul_u32_u24 v{gCN}, {SLOT}, v{gCN}
    v_add_u32 v{gCN}, s{sA}, v{gCN}""")
    a("\n".join(fl[0]))
    for x in fl[1:]: a("\n".join(x))
    if opt.get("delay_f1", 0) > 8:
        a(f"v_mov_b32 v4, {GC}")
        lds_inc(C_ABAR, 4, 5)
    if ts:
        a(f"s_memtime {sr(TS0+28,2)}\ns_waitcnt lgkmcnt(0)\ns_sub_u32 s{TS0+28}, s{TS0+28}, s{TS0+26}")
    TS(9)
    a(f"""s_cmp_ge_u32 s{sW}, 4
    s_cbranch_scc1 L_aend
    ds_read_b32 v{gCV}, v{gCN} offset:{B_TAG}
    v_lshlrev_b32 v2, 2, v0
    v_and_b32 v{gLA}, 0x7f, v0
    v_add_u32 v{gOA}, s{sA}, v2
    v_add_u32 v{gLA}, s{sA}, v{gLA}
    s_add_u32 s{sNF}, s{sNF}, 4
    s_mov_b32 s{sPF}, s{sNF}
    s_add_u32 s{sFT}, s{sEP}, 4
    s_mov_b32 s0, 4
    s_mov_b32 s{sLOOP}, 0
    s_mov_b32 s23, 0""")
    for r_ in (rX, rW, rT): srd(r_, pWS, 0)
    a(f"""s_waitcnt lgkmcnt(1)
    v_readfirstlane_b32 s{sLOC}, v20
    v_readfirstlane_b32 s{sLOD_}, v20
    s_branch L_ownw""")
    a.label("L_aend")
    ts_dump()
    a("s_endpgm")
    for w_, go, again, rd, inc in stubs:
        a.label(w_)
        if ts: a(f"s_add_u32 s{TS0+30}, s{TS0+30}, {inc}")
        a(f"""s_add_u32 s{sCAP}, s{sCAP}, 1
        s_cmp_gt_u32 s{sCAP}, {SPIN_CAP}
        s_cbranch_scc1 {go}
        s_sleep {opt.get("psleep", 2)}""")
        for l in rd: a(l)
        a(f"s_branch {again}")
    a.label("L_vs0")

    a(".p2align 6")
    a.label("L_gwave")
    role[0] = "G"
    gGC, gL16, gSW, gTR, gH, gR = 1, 2, 3, 4, 5, 6
    a(f"""s_setprio 3
    s_sub_u32 s{sI}, s{sW}, 8
    v_lshlrev_b32 v{gL16}, 4, v0
    v_lshlrev_b32 v10, {PFS}, v0
    s_sub_u32 s{sE}, s{sI}, 1
    s_waitcnt lgkmcnt(0)
    s_cmp_lg_u32 s{sI}, 0
    s_cbranch_scc1 L_g123""")
    a(f"""s_cmp_eq_u32 s{sCH}, 0
    s_cselect_b32 s{rW}, s{pWK}, s{pWV}
    s_cselect_b32 s{rW+1}, s{pWK+1}, s{pWV+1}
    s_mov_b32 s{rW+2}, 16384
    s_mov_b32 s{rW+3}, 0x20000""")
    for q in range(0 if AW else 4):
        a(f"s_mov_b32 m0, {WKV + q * 4096}\ns_mov_b32 s{sA}, {q*4096}")
        for j in range(4): a(f"buffer_load_dwordx4 v{gL16}, {sr(rW,4)}, s{sA} offen offset:{j*1024} lds")
    a("s_branch L_gcom")
    a.label("L_g123")
    srd(rW, pWQ, 0x80000)
    if TQ == 1:
        a(f"s_cmp_eq_u32 s{sI}, 3\ns_cbranch_scc1 L_gcom")
        l2_prefetch(rW, 0x80000, 10, 6, sE, 2)
    if TQ in (2, 3):
        a(f"s_cmp_lg_u32 s{sI}, 1\ns_cbranch_scc1 L_gcom")
        a(f"s_mov_b64 exec, 0xffff\ns_lshl_b32 s{sF}, s2, 11\nbuffer_load_dword v6, v10, {sr(rW,4)}, s{sF} offen\ns_mov_b64 exec, -1")
    a.label("L_gcom")
    srd(rWS, pWS, WS_BYTES)
    srd(rT, pDBG, 256)
    a(f"""s_lshr_b32 s{sRT}, s{sI}, 1
    s_and_b32 s{sCT}, s{sI}, 1
    v_lshrrev_b32 v7, 3, v0
    v_lshrrev_b32 v8, 2, v0
    v_and_b32 v8, 4, v8
    v_and_b32 v9, 7, v0
    v_xor_b32 v8, v8, v9
    v_lshlrev_b32 v8, 4, v8
    v_lshl_add_u32 v{gSW}, v7, 10, v8
    v_mov_b32 v{gGC}, {GC}
    v_lshrrev_b32 v{gH}, 5, v0
    v_and_b32 v7, 3, v0
    v_and_b32 v8, 16, v0
    v_lshlrev_b32 v8, 1, v8
    v_lshl_add_u32 v{gTR}, v7, 3, v8
    s_cmp_eq_u32 s{sI}, 0
    s_cbranch_scc1 L_g0""")
    a(f"""s_lshl_b32 s{sB}, s{sE}, 13
    s_lshl_b32 s{sC}, s{sG}, 7
    s_add_u32 s{sB}, s{sB}, s{sC}
    s_lshl_b32 s{sA}, s{sE}, 10
    s_add_u32 s{sA}, s{sA}, {RING}
    s_setprio 0
    s_barrier
    s_cmp_lg_u32 s{sI}, 3
    s_cbranch_scc1 L_wqpre
    s_setprio 3
    s_mov_b32 s{sCAP}, 0""")
    a.label("L_epoch")
    a(f"""buffer_load_dwordx2 v[14:15], off, {sr(rT,4)}, 0 sc1
    s_add_u32 s{sCAP}, s{sCAP}, 1
    s_cmp_gt_u32 s{sCAP}, {SPIN_CAP}
    s_cbranch_scc1 L_gb2
    s_waitcnt vmcnt(0)
    v_readfirstlane_b32 s{sEP+1}, v15
    s_nop 0
    s_cmp_eq_u32 s{sEP+1}, 0
    s_cbranch_scc1 L_epoch
    ds_write_b64 v{gGC}, v[14:15] offset:{C_EPOCH}""")
    TS(1)
    if opt.get("z_t1") == 1:
        srd(rW, pW1, 512 * W1P)
        a(f"s_mov_b32 exec_hi, 0x7ff\ns_mul_i32 s{sF}, s2, 5504\nbuffer_load_dword v6, v10, {sr(rW,4)}, s{sF} offen\ns_mov_b64 exec, -1")
    srd(rW, pB1, W1P)
    a(f"buffer_load_dword v6, v10, {sr(rW,4)}, 0 offen")
    srd(rW, pB2, 1024)
    a(f"buffer_load_dword v6, v10, {sr(rW,4)}, 0 offen\ns_branch L_gb2")
    a.label("L_wqpre")
    if TQ in (3, 4):
        if opt.get("tqs"): a(f"s_sleep {opt['tqs']}")
        l2_prefetch(rW, 0x80000, 10, 6, sE, 2)
        if opt.get("tqw"): a("s_waitcnt vmcnt(0)")
    a.label("L_wqloop")
    a(f"""s_mov_b32 m0, s{sA}
    s_add_u32 s{sA}, s{sA}, 2048
    buffer_load_dwordx4 v{gSW}, {sr(rW,4)}, s{sB} offen lds
    s_add_u32 s{sB}, s{sB}, 16384
    s_waitcnt vmcnt({opt.get("wqd", 10)})
    s_cmp_lt_u32 s{sA}, {RING + 65536}
    s_cbranch_scc1 L_wqloop
    s_setprio 3
    s_waitcnt vmcnt(16)""")
    lds_inc(C_WQ, gGC, 7)
    a("s_branch L_gb2")
    a.label("L_g0")
    WF, XF, DD = 32, 96, 160
    a(f"""s_cmp_lg_u32 s2, 0
    s_cbranch_scc1 L_noep
    v_mov_b32 v10, s{sM}
    v_mov_b32 v11, s{sM+1}
    v_or_b32 v11, 0x80000000, v11
    v_mov_b64 v[12:13], 0
    s_mov_b64 exec, 1
    buffer_atomic_cmpswap_x2 v[10:13], off, {sr(rT,4)}, 0 sc1
    s_mov_b64 exec, -1
    s_nop 0""")
    a.label("L_noep")
    if opt.get("prewr"):
        a(f"""s_lshl_b32 s{sA}, s{sRB}, 3
        s_add_u32 s{sA}, s{sA}, s{sG}
        s_lshl_b32 s{sA}, s{sA}, 7
        s_add_u32 s{sA}, s{sA}, {FLG_KV}
        v_mov_b64 v[16:17], 0
        v_mov_b64 v[18:19], 0
        s_mov_b64 exec, 0xff
        buffer_store_dwordx4 v[16:19], v{gL16}, {sr(rWS,4)}, s{sA} offen sc1
        s_mov_b64 exec, -1""")
    a("s_barrier")
    a(f"""v_and_b32 v7, 15, v0
    v_lshrrev_b32 v8, 4, v0
    v_lshlrev_b32 v9, 3, v7
    v_lshl_add_u32 v9, v8, 8, v9
    v_add_u32 v9, {WKV}, v9
    s_lshl_b32 s{sA}, s{sKG}, 14
    v_xor_b32 v10, v7, v8
    v_lshlrev_b32 v10, 4, v10
    v_lshl_add_u32 v10, v7, 10, v10
    v_add_u32 v10, s{sA}, v10
    v_xor_b32 v11, 64, v10
    v_xor_b32 v12, 0x80, v10
    v_xor_b32 v13, 0xc0, v10
    s_lshl_b32 s{sA}, s{sKG}, 6
    s_add_u32 s{sA}, s{sA}, {RSTD}
    v_lshl_add_u32 v20, v7, 2, s{sA}
    v_lshl_add_u32 v21, v8, 4, s{sA}
    s_cmp_eq_u32 s{sCH}, 0
    s_cselect_b32 s{sD}, {KF}, {VF}
    s_cselect_b32 s{sB}, 9, 3
    s_cselect_b32 s{sC}, 3, 9
    v_and_b32 v16, 1, v8
    v_lshlrev_b32 v16, s{sB}, v16
    v_lshrrev_b32 v17, 1, v8
    v_lshl_add_u32 v16, v17, s{sC}, v16
    v_lshl_add_u32 v16, v7, 4, v16
    s_xor_b32 s{sA}, s{sKG}, s{sCH}
    s_and_b32 s{sA}, s{sA}, 1
    s_lshl_b32 s{sA}, s{sA}, 8
    s_add_u32 s{sD}, s{sD}, s{sA}
    s_lshl_b32 s{sA}, s{sRB}, 1
    s_lshr_b32 s{sB}, s{sKG}, 1
    s_add_u32 s{sA}, s{sA}, s{sB}
    s_lshl_b32 s{sA}, s{sA}, 10
    s_add_u32 s{sD}, s{sD}, s{sA}
    s_lshl_b32 s{sA}, s{sRB}, 3
    s_add_u32 s{sA}, s{sA}, s{sG}
    s_lshl_b32 s{sA}, s{sA}, {FS_}
    s_add_u32 s{sA}, s{sA}, {FLG_KV}
    s_waitcnt vmcnt(0)""")
    if AW: lds_spin(C_KT, 8, gGC, 14, sleep=0)
    for ks in range(16):
        a(f"ds_read_b64_tr_b16 {vr(WF+4*ks,2)}, v9 offset:{ks*1024}\nds_read_b64_tr_b16 {vr(WF+4*ks+2,2)}, v9 offset:{ks*1024+128}")
    TS(1)
    lds_spin(C_L0, 8, gGC, 14, sleep=0)
    TS(2)
    for ks in range(16):
        a(f"ds_read_b128 {vr(XF+4*ks,4)}, v{10+(ks&3)} offset:{(ks>>2)*256}")
    a(f"""s_cmp_eq_u32 s{sCH}, 0
    s_cbranch_scc0 L_vchain""")
    for sw in (False, True):
        if sw: a.label("L_vchain")
        for ks in range(16):
            A_, B_ = (XF, WF) if sw else (WF, XF)
            if ks % 4 == 0: a(f"s_waitcnt lgkmcnt({12 - ks})")
            if ks == 12: a(f"ds_read_b128 v[24:27], v21" if sw else "ds_read_b32 v24, v20")
            a(f"v_mfma_f32_16x16x32_bf16 {vr(DD,4)}, {vr(A_+4*ks,4)}, {vr(B_+4*ks,4)}, {'0' if ks == 0 else vr(DD,4)}")
        if not sw: a("s_waitcnt lgkmcnt(0)\nv_mov_b32 v25, v24\nv_mov_b64 v[26:27], v[24:25]\ns_branch L_kvst")
    a("s_waitcnt lgkmcnt(0)\ns_nop 2")
    a.label("L_kvst")
    a(f"""s_nop 3
    v_pk_mul_f32 {vr(DD,2)}, {vr(DD,2)}, v[24:25]
    v_pk_mul_f32 {vr(DD+2,2)}, {vr(DD+2,2)}, v[26:27]
    v_cvt_pk_bf16_f32 v18, v{DD}, v{DD+1}
    v_cvt_pk_bf16_f32 v19, v{DD+2}, v{DD+3}
    buffer_store_dwordx2 v[18:19], v16, {sr(rWS,4)}, s{sD} offen sc1""")
    TS(13)
    lds_spin(C_EPOCH + 4, 1, gGC, 14, sleep=0)
    a(f"""ds_read_b64 v[20:21], v{gGC} offset:{C_EPOCH}
    s_getreg_b32 s{sD}, hwreg(HW_REG_XCC_ID)
    v_mov_b32 v22, s{sD}
    v_mov_b32 v23, 0
    s_mov_b64 exec, 1
    s_waitcnt vmcnt(0) lgkmcnt(0)
    buffer_store_dwordx4 v[20:23], off, {sr(rWS,4)}, s{sA} sc1
    s_mov_b64 exec, -1""")
    lds_inc(C_FL, gGC, 14)
    TS(3)
    a.label("L_gb2")
    QA, QW, QX = 8, 24, 152
    a(f"""v_bfe_u32 v9, v0, 2, 2
    v_lshrrev_b32 v8, 1, v9
    v_xor_b32 v8, s{sCT}, v8
    v_lshl_add_u32 v8, v8, 6, v{gTR}
    v_lshl_add_u32 v8, v9, 7, v8
    v_lshl_add_u32 v8, v{gH}, 10, v8
    v_add_u32 v8, {RING}, v8""")
    a(f"v_mov_b32 v{gTR}, v8")
    kord = [aa + 8 * (2 * hb + b) for hb in range(2) for aa in range(8) for b in range(2)]
    def w_pre(hb):
        for n in range(16 * hb, 16 * hb + 16):
            ks = kord[n]
            a(f"ds_read_b64_tr_b16 {vr(QW+4*n,2)}, v{gTR} offset:{ks*2048}\nds_read_b64_tr_b16 {vr(QW+4*n+2,2)}, v{gTR} offset:{ks*2048+512}")
    a(f"""v_and_b32 v7, 31, v0
    v_and_b32 v9, 15, v0
    v_xor_b32 v9, v9, v{gH}
    v_lshlrev_b32 v9, 4, v9
    v_lshl_add_u32 v7, v7, 10, v9
    s_lshl_b32 s{sC}, s{sRT}, 15
    v_add_u32 v7, s{sC}, v7""")
    sRNG = 35
    sT1, sT2, sNG = 0, 1, sE
    sN, sSO = sA, sB
    srd(rW, pW1, 512 * W1P)
    a(f"""s_lshl_b32 s{sT1}, s{sG}, 2
    s_add_u32 s{sT1}, s{sT1}, s{sI}
    s_sub_u32 s{sT2}, 1, s{sRT}
    s_lshl_b32 s{sT2}, s{sT2}, 3
    s_add_u32 s{sT2}, s{sT2}, s{sG}
    s_add_u32 s{sT2}, s{sT2}, 32
    s_cmp_lt_u32 s{sT2}, 43
    s_cselect_b32 s{sNG}, 12, 8
    s_mul_i32 s{sRNG}, s{sI}, {RSZ}
    s_add_u32 s{sRNG}, s{sRNG}, {RING}
    s_lshl_b32 s{sSO}, s{sT1}, 6""")
    lds_spin(C_WQ, 2, gGC, 9, sleep=1)
    def t1(lab):
        a(f"""s_cmp_lg_u32 s{sI}, 3
        s_cbranch_scc1 {lab}
        v_lshlrev_b32 v10, 7, v0
        s_mov_b32 exec_hi, 0x7ff
        s_mul_i32 s{sF}, s2, 5504
        buffer_load_dword v6, v10, {sr(rW,4)}, s{sF} offen
        s_mov_b64 exec, -1""")
        a.label(lab)
    if opt.get("z_t1", 2) == 2: t1("L_t12")
    w_pre(0)
    a(f"""s_sub_u32 s{sD}, s{sI}, 1
    s_cmp_ge_u32 s{sD}, 2
    s_cbranch_scc1 L_wq2
    s_waitcnt vmcnt(0)""")
    lds_inc(C_WQ2, gGC, 9)
    a.label("L_wq2")
    lds_spin(C_WQ2, 2, gGC, 9, sleep=1)
    if opt.get("z_t1") == 3: t1("L_t13")
    w_pre(1)
    TS(12)
    lds_spin(C_XN, 8, gGC, 9, sleep=1)
    TS(4)
    land = {}
    cur_a = [0]
    def xread(n, dst):
        aa, b = kord[n] & 7, kord[n] >> 3
        if aa != cur_a[0]: a(f"v_xor_b32 v7, {((aa ^ cur_a[0]) * 32)}, v7")
        cur_a[0] = aa
        a(f"ds_read_b128 {vr(dst,4)}, v7 offset:{b*256}")
        land[n] = dst
    ordr = sorted(range(32), key=lambda n: (kord[n] & 7, kord[n] >> 3))
    for i_ in range(4): xread(ordr[i_], QX + 4 * i_)
    nxt_rd = 4
    for i_, n in enumerate(ordr):
        a(f"s_waitcnt lgkmcnt({nxt_rd - i_ - 1})")
        a(f"{MF32} {vr(QA,16)}, {vr(QW+4*n,4)}, {vr(land[n],4)}, {'0' if i_ == 0 else vr(QA,16)}")
        if nxt_rd < 32: xread(ordr[nxt_rd], land[n]); nxt_rd += 1
        if i_ < 5 and nxt_rd < 32: xread(ordr[nxt_rd], QW + 4 * n); nxt_rd += 1
    gRS = 166
    if opt.get("pro"): TS(9)
    T0 = QX
    a(f"""v_and_b32 v7, 31, v0
    v_lshlrev_b32 v{T0}, 2, v7
    v_add_u32 v{T0}, {RSTD}, v{T0}
    v_add_u32 v{T0+1}, {KT}, v{gL16}
    s_mov_b32 s{sCAP}, 0""")
    a.label("L_rs")
    a(f"""ds_read_b32 v{T0+12}, v{gGC} offset:{C_RS}
    ds_read_b32 v{gRS}, v{T0}
    ds_read_b32 v{gRS+1}, v{T0} offset:128
    ds_read_b64 {vr(T0+2,2)}, v{gGC} offset:{C_EPOCH}
    ds_read_b128 {vr(T0+4,4)}, v{T0+1}
    ds_read_b128 v[100:103], v{T0+1} offset:1024
    s_add_u32 s{sCAP}, s{sCAP}, 1
    s_cmp_gt_u32 s{sCAP}, {SPIN_CAP}
    s_cbranch_scc1 L_rsd
    s_waitcnt lgkmcnt(5)
    v_readfirstlane_b32 s{sF}, v{T0+12}
    s_nop 0
    s_cmp_lt_u32 s{sF}, 9
    s_cbranch_scc1 L_rs""")
    a.label("L_rsd")
    a(f"""    s_lshl_b32 s{sA}, s{sCT}, 2
    s_add_u32 s{sA}, s{sA}, s{sRT}
    s_mul_i32 s{sA}, s{sA}, {QST}
    s_add_u32 s{sA}, s{sA}, {QF}
    v_add_u32 v{T0+10}, s{sA}, v{gL16}
    v_lshl_add_u32 v{T0+11}, v7, 3, s{sA}
    s_cmp_eq_u32 s{sRT}, 0
    s_cselect_b64 vcc, -1, 0
    s_waitcnt lgkmcnt(0)
    v_readfirstlane_b32 s{sEP}, v{T0+2}
    v_cndmask_b32 v{T0+8}, v{gRS+1}, v{gRS}, vcc
    v_readfirstlane_b32 s{sEP+1}, v{T0+3}
    v_mul_f32 v{T0+8}, 0x3eb8aa3b, v{T0+8}""")
    if opt.get("pro"): TS(10)
    for hd in range(2):
        for j in range(4 * hd, 4 * hd + 4): a(f"v_pk_mul_f32 {vr(QA+2*j,2)}, {vr(QA+2*j,2)}, {vr(T0+8,2)} op_sel_hi:[1,0]")
        for j in range(4 * hd, 4 * hd + 4): a(f"v_cvt_pk_bf16_f32 v{QA+j}, v{QA+2*j}, v{QA+2*j+1}")
        a(f"ds_write_b128 v{T0+10}, {vr(QA+4*hd,4)} offset:{2*QST*hd}\ns_nop 0")
        a(f"{MF32} {vr(24+16*hd,16)}, {vr(T0+4,4)}, {vr(QA+4*hd,4)}, 0")
        if NKT == 2: a(f"{MF32} {vr(68+16*hd,16)}, v[100:103], {vr(QA+4*hd,4)}, 0")
    a("s_nop 1")
    def max2(S, d):
        maxtree(S, d)
        if NKT == 2:
            for j in range(0, 16, 2): a(f"v_max3_f32 v{d}, v{d}, v{S+44+j}, v{S+45+j}")
    max2(24, 56)
    a("v_mov_b32 v57, v56\ns_nop 1\nv_permlane32_swap_b32 v56, v57")
    max2(40, 58)
    a(f"""v_mov_b32 v59, v58
    v_max_f32 v56, v56, v57
    v_sub_f32 v60, {-OFFS}, v56
    v_permlane32_swap_b32 v58, v59
    v_sub_f32 v61, {-OFFS}, v56
    v_max_f32 v58, v58, v59
    ds_write_b64 v{T0+11}, v[60:61] offset:1024
    v_sub_f32 v64, {-OFFS}, v58
    v_sub_f32 v65, {-OFFS}, v58
    ds_write_b64 v{T0+11}, v[64:65] offset:{2*QST+1024}""")
    lds_inc(C_QREADY, gGC, 26)
    TS(5)
    AC = [136, 104, 120, 88]
    XB = 136
    vB1, gXA, gXT, gWA, gWB, gV1 = 8, 16, 17, 18, 19, 20
    a(f"""v_lshrrev_b32 v44, 2, v0
    v_and_b32 v45, 3, v0
    v_mul_u32_u24 v44, {W1P}, v44
    v_lshl_add_u32 v{gV1}, v45, 4, v44
    v_add_u32 v{gV1+1}, {128*W1P-1024}, v{gV1}
    v_add_u32 v{gV1+2}, {2*(128*W1P-1024)}, v{gV1}
    v_add_u32 v{gV1+3}, {3*(128*W1P-1024)}, v{gV1}
    v_and_b32 v44, 16, v0
    v_lshlrev_b32 v44, 1, v44
    v_lshl_add_u32 v{gTR}, v45, 3, v44
    s_waitcnt vmcnt(0)""")
    def w1_dma1(b): return f"buffer_load_dwordx4 v{gV1+b}, {sr(rW,4)}, s{sSO} offen offset:{b*1024} lds"
    a(f"""v_lshlrev_b32 v40, 1, v7
    v_and_b32 v41, 7, v0
    v_lshlrev_b32 v41, {FS_}, v41
    v_and_b32 v44, 15, v0
    v_xor_b32 v44, v44, v{gH}
    v_lshlrev_b32 v44, 4, v44
    v_lshl_add_u32 v{gXA}, v7, 10, v44
    v_bfe_u32 v44, v0, 2, 2
    v_lshl_add_u32 v{gWB}, v44, 6, v{gTR}
    v_lshl_add_u32 v{gWB}, v{gH}, 9, v{gWB}
    v_add_u32 v{gWB}, s{sRNG}, v{gWB}""")
    a(f"""v_rcp_f32 v44, v{gRS}
    v_rcp_f32 v45, v{gRS+1}
    v_sub_u32 v48, v{gH}, 1
    s_mov_b32 s{sD}, 0xffff0000
    v_and_b32 v46, s{sD}, v44
    v_and_b32 v47, s{sD}, v45
    v_sub_f32 v44, v44, v46
    v_sub_f32 v45, v45, v47
    v_cvt_pk_bf16_f32 v12, v46, v44
    v_cvt_pk_bf16_f32 v14, v47, v45
    v_and_b32 v12, v48, v12
    v_and_b32 v14, v48, v14
    v_mov_b32 v9, 0
    v_mov_b64 v[10:11], 0
    v_mov_b32 v13, 0""")
    H0, H1 = 104, 120
    FB = [24, 56]
    FX = [88, 150]
    FX = [88, 152]
    def f1_reads(p, b):
        nx = 4 if not (p == 1 and b == 3) else 4
        return [f"ds_read_b64_tr_b16 {vr(FB[p]+8*b,2)}, v{gWA} offset:{b*1024}", f"ds_read_b64_tr_b16 {vr(FB[p]+8*b+2,2)}, v{gWA} offset:{b*1024+256}",
                f"ds_read_b128 {vr(FB[p]+8*b+4,4)}, v{gXT} offset:{b*256}", f"ds_read_b128 {vr(FX[p]+4*b,4)}, v{gXT} offset:{b*256+32768}"]
    gR2 = 6
    def bias():
        a(f"{MF32} {vr(H0,16)}, v[8:11], v[12:15], {vr(H0,16)}\n{MF32} {vr(H1,16)}, v[8:11], v[14:17], {vr(H1,16)}")
    def hzero():
        a(f"v_mfma_f32_32x32x8_bf16 {vr(H0,16)}, v[10:11], v[10:11], 0\nv_mfma_f32_32x32x8_bf16 {vr(H1,16)}, v[10:11], v[10:11], 0")
    a(f"""v_mul_f32 v{gR2}, v{gRS}, v{gRS}
    v_mul_f32 v{gR2+1}, v{gRS+1}, v{gRS+1}
    v_mov_b32 v{gWA}, v{gWB}
    v_mov_b32 v{gXT}, v{gXA}
    s_mov_b32 s{sN}, {4 if opt.get("z_skip") else 0}
    s_mov_b32 s{sM}, 0""")
    hzero()
    plan_lo = opt.get("pl", [(0, 22, 0, 22), (22, 21, 64, 67), (40, 21 + 128, 67, 76), (52, 22 + 128, 76, 86)])
    plan_hi = opt.get("ph", [(0, 27, 64, 73), (18, 26, 73, 81), (36, 17 + 128, 81, 86), (48, 16, 0, 64)])
    def pack(b): return sum(x << (8 * i) for i, x in enumerate(b))
    sPL, sSW, sS2 = 18, 19, 10
    a(f"s_mul_i32 s{sS2}, s{sCT}, {64*W1P}\ns_lshl_b32 s{sD}, s{sT2}, 6\ns_add_u32 s{sS2}, s{sS2}, s{sD}")
    a(f"s_mov_b32 s{sPL}, {pack(plan_hi[0])}")
    a(f"s_cmp_lt_u32 s{sG}, 3\ns_cselect_b32 s{sD}, 4, 0\ns_add_u32 s{sD}, s{sD}, s{sI}")
    for n, pl in enumerate(plan_hi + plan_lo):
        if n: a(f"s_cmp_eq_u32 s{sD}, {n}\ns_cselect_b32 s{sPL}, {pack(pl)}, s{sPL}")
    a(f"""s_lshr_b32 s{sD}, s{sPL}, 24
    s_mov_b32 s{rX}, s{pW2}
    s_mov_b32 s{rX+1}, s{pW2+1}
    s_lshl_b32 s{rX+2}, s{sD}, 14
    s_mov_b32 s{rX+3}, 0x20000
    s_and_b32 s{sSW}, s{sPL}, 0xff
    s_lshl_b32 s{sSW}, s{sSW}, 14
    s_lshl_b32 s{sD}, s{sG}, 7
    s_add_u32 s{sSW}, s{sSW}, s{sD}""")
    srd(rT, pB1, W1P)
    lds_spin(C_QREADY, 4, gGC, 56, sleep=0)
    lds_spin(C_KV, 8, gGC, 56, sleep=2)
    if opt.get("delay_f1"): lds_spin(C_ABAR, 8, gGC, 56, sleep=16)
    TS(15)
    late[0] = True
    for n in range(3):
        a(f"s_add_u32 m0, s{sRNG}, {n*4096}\ns_nop 0")
        for b in range(4): a(w1_dma1(b))
        a(f"s_add_u32 s{sSO}, s{sSO}, {16*W1P}")
    a(f"""s_lshl_b32 s{sC}, s{sT1}, 6
    s_lshl_b32 s{sD}, s{sT2}, 6
    s_lshl_b32 s{sF}, s{sRB}, {FS_+3}
    s_add_u32 s{sF}, s{sF}, {FLG_KV}
    buffer_load_ushort v8, v40, {sr(rT,4)}, s{sC} offen
    buffer_load_ushort v15, v40, {sr(rT,4)}, s{sD} offen
    buffer_load_dword v{AC[0]+2}, v41, {sr(rWS,4)}, s{sF} offen offset:8 sc1
    s_waitcnt vmcnt(11)""")
    for b in range(4):
        for l in f1_reads(0, b): a(l)
    TS(3)
    a(".p2align 6")
    a.label("L_f1loop")
    for p in range(2):
        a(f"""s_add_u32 m0, s{sM}, s{sRNG}
        s_add_u32 s{sM}, s{sM}, 4096
        s_cmp_lt_u32 s{sM}, {RSZ}
        s_cselect_b32 s{sM}, s{sM}, 0
        s_add_u32 s{sN}, s{sN}, 1
        s_lshr_b32 s{sD}, s{sN}, 3
        s_and_b32 s{sD}, s{sD}, s{sCT}
        s_lshl_b32 s{sD}, s{sD}, 2
        s_add_u32 s{sD}, s{sD}, s{sN}
        s_and_b32 s{sD}, s{sD}, 7
        s_lshl_b32 s{sD}, s{sD}, 5
        v_add_u32 v{gWA}, s{sM}, v{gWB}
        v_xor_b32 v{gXT}, s{sD}, v{gXA}""")
        if p == 1:
            a(f"""s_cmp_eq_u32 s{sN}, 6
            s_cselect_b32 s{sSO}, s{sS2}, s{sSO}""")
        a(f"""s_add_u32 s{sD}, s{sN}, 2
        s_cmp_ge_u32 s{sD}, s{sNG}
        s_cbranch_scc1 L_f1t{p}""")
        a.label(f"L_f1r{p}")
        for b in range(4):
            rd = f1_reads(1 - p, b)
            if not opt.get("x_nolg"): a("s_waitcnt lgkmcnt(12)")
            a(f"{MF32} {vr(H0,16)}, {vr(FB[p]+8*b,4)}, {vr(FB[p]+8*b+4,4)}, {vr(H0,16)}")
            a(w1_dma1(b))
            a(rd[2]); a(rd[3])
            pad(P1A)
            a(f"{MF32} {vr(H1,16)}, {vr(FB[p]+8*b,4)}, {vr(FX[p]+4*b,4)}, {vr(H1,16)}")
            a("s_waitcnt vmcnt(8)")
            a(rd[0]); a(rd[1])
            if b < 3: pad(P1B)
        a(f"s_add_u32 s{sSO}, s{sSO}, {16*W1P}")
    a(f"""s_cmp_lt_u32 s{sN}, 8
    s_cbranch_scc1 L_f1loop
    s_cmp_eq_u32 s{sN}, 10
    s_cbranch_scc1 L_f1pub""")
    TS(2)
    a(f"""s_getreg_b32 s{sD}, hwreg(HW_REG_XCC_ID)
    v_lshl_or_b32 v8, v8, 16, v8
    v_cmp_ne_u32 vcc, s{sD}, v{AC[0]+2}
    s_mul_i32 s{sD}, s{sRB}, 86
    s_lshl_b32 s{sC}, s{sT1}, 1
    s_add_u32 s{sD}, s{sD}, s{sC}
    s_lshl_b32 s{sD}, s{sD}, 11
    s_add_u32 s{sD}, s{sD}, {HF}
    s_mov_b32 s{sT1}, s{sT2}
    s_cmp_eq_u64 vcc, 0
    s_cselect_b32 s{sLOC}, {0 if opt.get("noloc") else 1}, 0
    s_cmp_eq_u32 s{sN}, 12
    s_cbranch_scc1 L_half""")
    bias()
    a(f"v_mov_b32 v8, v15\ns_nop 9")
    for rt, Hh in enumerate((H0, H1)):
        a.label(f"L_epi{rt}")
        for j in range(16): a(f"v_max_f32 v{Hh+j}, 0, v{Hh+j}")
        for j in range(8): a(f"v_pk_mul_f32 {vr(Hh+2*j,2)}, {vr(Hh+2*j,2)}, {vr(Hh+2*j,2)}")
        sel = "op_sel_hi:[1,0]" if rt == 0 else "op_sel:[0,1] op_sel_hi:[1,1]"
        if not opt.get("fold", 0):
            for j in range(8): a(f"v_pk_mul_f32 {vr(Hh+2*j,2)}, {vr(Hh+2*j,2)}, {vr(gR2,2)} {sel}")
        for j in range(8): a(f"v_cvt_pk_bf16_f32 v{Hh+j}, v{Hh+2*j}, v{Hh+2*j+1}")
        hst = [f"buffer_store_dwordx4 {vr(Hh+4*s_,4)}, v{gL16}, {sr(rWS,4)}, s{sD} offen offset:{s_*2048+rt*1024}" for s_ in range(2)]
        if HLOC: grp_store(hst)
        else:
            for l in hst: a(l + " sc1")
        if rt == 0: a(f"s_cmp_eq_u32 s{sN}, 12\ns_cbranch_scc1 L_epid")
    a.label("L_epid")
    gSW2 = 22
    D2 = RSZ // 2048
    def w2_dma(u):
        a(f"""s_add_u32 m0, s{sRNG}, {u*2048}
        s_nop 0
        buffer_load_dwordx4 v{gSW}, {sr(rX,4)}, s{sSW} offen lds
        buffer_load_dwordx4 v{gSW2}, {sr(rX,4)}, s{sSW} offen offset:1024 lds
        s_add_u32 s{sSW}, s{sSW}, 16384""")
    PT = AC[0]
    a("s_nop 0")
    hzero()
    a(f"""s_cmp_lt_u32 s{sN}, s{sNG}
    s_cbranch_scc1 L_f1loop
    v_add_u32 v{gSW2}, {8192-1024}, v{gSW}
    s_add_u32 s{sSW}, s{sSW}, {6*16384}
    s_cmp_eq_u32 s{sN}, 8
    s_cbranch_scc1 L_f1fill
    s_sub_u32 s{sSW}, s{sSW}, {2*16384}""")
    lds_spin(C_PX, 4, 26, 27, sleep=0)
    for u in (4, 5): w2_dma(u)
    a.label("L_f1fill")
    gHO0, gHO1, gFL, sHB, sFH, sSH, sPRE, HR = 10, 11, 12, 8, 9, 31, 21, 24
    def h_fill():
        for u in range(D2):
            a(f"""buffer_load_dwordx4 {vr(HR+8*u,4)}, v{gHO0}, {sr(rWS,4)}, s{sSH} offen sc1
            buffer_load_dwordx4 {vr(HR+8*u+4,4)}, v{gHO1}, {sr(rWS,4)}, s{sSH} offen sc1
            s_add_u32 s{sSH}, s{sSH}, 2048""")
    a("s_waitcnt lgkmcnt(0)")
    srd(rW, pX, 0x200000)
    srd(rT, pB2, 1024)
    a(f"""v_and_b32 v23, 31, v0
    v_lshlrev_b32 v7, 4, v{gH}
    v_lshl_add_u32 v7, v23, 10, v7
    v_lshlrev_b32 v23, 1, v23
    s_lshl_b32 s{sF}, s{sG}, 7
    s_lshl_b32 s{sD}, s{sCT}, 6
    s_add_u32 s{sF}, s{sF}, s{sD}
    s_lshl_b32 s{sD}, s{sRB}, 16
    s_lshl_b32 s{sC}, s{sRT}, 15
    s_add_u32 s{sD}, s{sD}, s{sC}
    s_add_u32 s{sE}, s{sD}, s{sF}
    s_lshl_b32 s{sD}, s{sRT}, 10
    buffer_load_dwordx4 v[80:83], v7, {sr(rW,4)}, s{sE} offen
    buffer_load_dwordx4 v[84:87], v7, {sr(rW,4)}, s{sE} offen offset:32
    buffer_load_ushort v76, v23, {sr(rT,4)}, s{sF} offen
    v_add_u32 v{gHO0}, s{sD}, v{gL16}
    v_xor_b32 v{gHO1}, 0x400, v{gHO0}
    v_and_b32 v{gFL}, 7, v0
    v_lshlrev_b32 v{gFL}, 7, v{gFL}
    s_lshl_b32 s{sFH}, s{sRB}, 10
    s_add_u32 s{sFH}, s{sFH}, {FLG_H}
    s_mul_i32 s{sHB}, s{sRB}, {86*2048}
    s_add_u32 s{sHB}, s{sHB}, {HF}
    s_and_b32 s{sSH}, s{sPL}, 0xff
    s_lshl_b32 s{sSH}, s{sSH}, 11
    s_add_u32 s{sSH}, s{sSH}, s{sHB}
    s_mov_b32 s{sPRE}, 0
    s_cmp_eq_u32 s{sN}, 8
    s_cbranch_scc1 L_nopre
    s_waitcnt vmcnt(9)
    v_cmp_ne_u64 vcc, {sr(sEP,2)}, {vr(AC[0]+4,2)}
    s_nop 1
    s_cbranch_vccnz L_nopre
    s_mov_b32 s{sPRE}, 1""")
    h_fill()
    a(f"s_waitcnt vmcnt({2*D2+7})\ns_branch L_f1pub")
    a.label("L_nopre")
    a(f"s_waitcnt vmcnt(3)")
    a.label("L_f1pub")
    a(f"""s_cmp_lt_u32 s{sN}, 12
    s_cselect_b32 s{sD}, 1, 16
    v_mov_b32 v{PT}, s{sD}
    s_mov_b64 exec, 1
    ds_add_rtn_u32 v{PT+1}, v{gGC}, v{PT} offset:{C_HDONE}
    s_mov_b64 exec, -1
    s_lshl_b32 s{sC}, s{sRB}, 3
    s_add_u32 s{sC}, s{sC}, s{sG}
    s_lshl_b32 s{sC}, s{sC}, 7
    s_lshr_b32 s{sD}, s{sD}, 1
    s_add_u32 s{sC}, s{sC}, s{sD}
    s_add_u32 s{sC}, s{sC}, {FLG_H}
    s_cmp_lt_u32 s{sG}, 3
    s_cselect_b32 s{sCAP}, 3, 1
    s_cmp_lt_u32 s{sN}, 12
    s_cselect_b32 s{sCAP}, 3, s{sCAP}
    s_cselect_b32 s{sD}, 0, 4
    s_waitcnt lgkmcnt(0)
    v_readfirstlane_b32 s{sF}, v{PT+1}
    s_nop 0
    s_lshr_b32 s{sF}, s{sF}, s{sD}
    s_and_b32 s{sF}, s{sF}, 15
    s_cmp_lg_u32 s{sF}, s{sCAP}
    s_cbranch_scc1 L_nohflag""")
    flag_store(sC, PT)
    a.label("L_nohflag")
    a(f"""s_cmp_eq_u32 s{sN}, 10
    s_cbranch_scc1 L_f1loop""")
    TS(6)
    sK0, sK1, sXC = 0, 1, sB
    gA0, gA1, gHO0, gHO1, gFL, gWO = 8, 9, 10, 11, 12, 13
    gCN, gOA, gLA, gCV = 16, 17, 18, 19
    HR = 24
    AF = [152, 160]
    WOF, FA = 88, 72
    OFR = [[56, 60, 64, 68, 152, 156, 160, 164], [24 + 4 * gp for gp in range(8)]]
    sKT, sWM, sWS, sFT = 12, 13, 26, 24
    sHB, sFH, sNF, sPF, sRET, sLOOP = 8, 9, 10, 11, 14, 20
    def ev_set():
        a(f"""s_lshr_b32 s{sFT}, s{sNF}, 2
        s_lshl_b32 s{sFT}, s{sFT}, 1
        s_add_u32 s{sFT}, s{sFT}, 2
        s_add_u32 s{sFT}, s{sFT}, s{sEP}""")
    def o_flag():
        a(f"""s_lshl_b32 s{sA}, s{sRB}, 3
        s_add_u32 s{sA}, s{sA}, s{sG}
        s_lshl_b32 s{sA}, s{sA}, 4
        s_add_u32 s{sA}, s{sA}, s{sPF}
        s_lshl_b32 s{sA}, s{sA}, 3
        s_add_u32 s{sA}, s{sA}, {FLG_O}
        s_mov_b32 s{sPF}, s{sNF}""")
    a(f"""v_bfe_u32 v{gR}, v0, 2, 2
    v_lshrrev_b32 v{gWO}, 1, v{gR}
    v_xor_b32 v{gWO}, s{sCT}, v{gWO}
    v_lshl_add_u32 v{gWO}, v{gWO}, 6, v{gTR}
    v_lshl_add_u32 v{gWO}, v{gR}, 7, v{gWO}
    v_lshl_add_u32 v{gWO}, v{gH}, 9, v{gWO}
    v_mov_b64 v[72:73], 0
    v_mov_b64 v[74:75], 0
    v_add_u32 v{gA0}, s{sRNG}, v{gWO}
    v_xor_b32 v{gA1}, 64, v{gA0}""")
    a(f"{MF32} {vr(AC[3],16)}, v[72:75], v[72:75], 0")
    a(f"""v_sub_u32 v78, 1, v{gH}
    v_mov_b32 v77, 0
    v_mul_u32_u24 v78, 0x3f80, v78
    v_mov_b32 v79, 0
    s_mov_b32 s{sD}, 0xffff0000
    s_waitcnt vmcnt({2*D2})
    s_cmp_eq_u32 s{sPRE}, 1
    s_cbranch_scc1 L_xin
    s_waitcnt vmcnt(0)""")
    a.label("L_xin")
    for j in (80, 81, 84, 85): a(f"v_permlane32_swap_b32 v{j}, v{j+2}")
    for j in range(8): a(f"v_lshlrev_b32 v{AC[0]+2*j}, 16, v{80+j}\nv_and_b32 v{AC[0]+2*j+1}, s{sD}, v{80+j}")
    a(f"s_nop 1\nv_mfma_f32_32x32x8_bf16 {vr(AC[0],16)}, v[76:77], v[78:79], {vr(AC[0],16)}")
    def a_reads(u, p):
        for d, ga in enumerate((gA0, gA1)):
            a(f"ds_read_b64_tr_b16 {vr(AF[p]+4*d,2)}, v{ga} offset:{u*2048}\nds_read_b64_tr_b16 {vr(AF[p]+4*d+2,2)}, v{ga} offset:{u*2048+1024}")
    LDS_OFF = 0x30000
    a(f"""    s_bfe_u32 s{sK1}, s{sPL}, 0x70008
    s_sub_u32 s{sKT}, s{sK1}, {D2}
    s_mov_b32 s{rW}, s{pWO}
    s_mov_b32 s{rW+1}, s{pWO+1}
    s_lshl_b32 s{sWM}, s{sI}, 14
    s_lshl_b32 s{sWS}, s{sI}, 17
    s_add_u32 s{rW+2}, s{sWS}, 0x20000
    s_mov_b32 s{rW+3}, 0x20000
    s_lshl_b32 s{sA}, s{sG}, 7
    s_add_u32 s{sWS}, s{sWS}, s{sA}
    s_bitcmp1_b32 s{sPL}, 15
    s_cselect_b32 s27, 6, 12
    s_mov_b32 s{sK0}, 0
    s_xor_b32 s{sNF}, s{sI}, 1
    s_mov_b32 s{sPF}, s{sNF}
    s_mov_b32 s{sLOOP}, 1""")
    ev_set()
    a(f"""v_mov_b32 v20, s{sLOC}
    s_mov_b32 s{sLOD}, 0
    ds_write_b32 v{gGC}, v20 offset:{C_KT}
    s_mul_i32 s{sA}, s{sNF}, {4 * SLOT}
    s_add_u32 s{sA}, s{sA}, {OACC}
    v_add_u32 v{gOA}, s{sA}, v{gL16}
    v_and_b32 v{gLA}, 31, v0
    v_lshl_add_u32 v{gLA}, v{gLA}, 2, s{sA}
    v_and_b32 v{gCN}, 3, v0
    v_mul_u32_u24 v{gCN}, {SLOT}, v{gCN}
    v_add_u32 v{gCN}, s{sA}, v{gCN}""")
    a(f"s_bfe_u32 s{sXC}, s{sPL}, 0x80010")
    if opt.get("ef", 1):
        a(f"""ds_read_b32 v{gCV}, v{gCN} offset:{B_TAG}
        s_mov_b32 s{sLOOP}, 3
        s_waitcnt lgkmcnt(0)
        v_cmp_ne_u32 vcc, s{sFT}, v{gCV}
        s_nop 1
        s_cbranch_vccz L_fin""")
        a.label("L_pre0")
        a(f"s_mov_b32 s{sLOOP}, 1")
    a(f"s_cmp_eq_u32 s{sPRE}, 1\ns_cbranch_scc1 L_filled")
    flag_poll(gFL, sFH, 14, sleep=opt.get("hsleep", 2))
    h_fill()
    a.label("L_filled")
    TS(7)
    a_reads(0, 0)
    a(f"ds_read_b32 v{gCV}, v{gCN} offset:{B_TAG}")
    a(f"s_add_u32 s{sFH}, s{sFH}, 8\ns_waitcnt vmcnt(0)")
    if opt.get("x_noh"): a(f"s_mov_b32 s{rT+2}, 0")
    if opt.get("x_now"): a(f"s_mov_b32 s{rX+2}, 0")
    TS(1)
    a(".p2align 6")
    a.label("L_f2loop")
    for u in range(D2):
        p = u & 1
        def mf(j): a(f"{MF32} {vr(AC[j],16)}, {vr(AF[p]+4*(j&1),4)}, {vr(HR+8*u+4*(j>>1),4)}, {vr(AC[j],16)}")
        a(f"s_waitcnt vmcnt({4*(D2-2)}) lgkmcnt(0)")
        mf(0)
        a_reads((u + 1) % D2, 1 - p)
        pad(P2A)
        mf(1)
        if u == 0:
            a("s_branch L_trip")
            a.label("L_tripped")
        elif u == D2 - 1: a(f"ds_read_b32 v{gCV}, v{gCN} offset:{B_TAG}")
        a(f"s_add_u32 m0, s{sRNG}, {u*2048}\ns_cmp_ge_u32 s{sK0}, s{sKT}\ns_cbranch_scc1 L_tail{u}")
        a(f"""buffer_load_dwordx4 v{gSW}, {sr(rX,4)}, s{sSW} offen lds
        buffer_load_dwordx4 v{gSW2}, {sr(rX,4)}, s{sSW} offen offset:1024 lds""")
        mf(2)
        a(f"""buffer_load_dwordx4 {vr(HR+8*u,4)}, v{gHO0}, {sr(rWS,4)}, s{sSH} offen sc1
        s_add_u32 s{sSW}, s{sSW}, 16384
        s_add_u32 s{sK0}, s{sK0}, 1""")
        pad(P2C)
        mf(3)
        a(f"buffer_load_dwordx4 {vr(HR+8*u+4,4)}, v{gHO1}, {sr(rWS,4)}, s{sSH} offen sc1\ns_add_u32 s{sSH}, s{sSH}, 2048")
        if u == D2 - 1: a("s_branch L_f2loop")
        else: pad(P2D)
        a.label(f"L_next{u}")
    for u in range(D2):
        p = u & 1
        a.label(f"L_tail{u}")
        for j in (2, 3):
            a(f"{MF32} {vr(AC[j],16)}, {vr(AF[p]+4*(j&1),4)}, {vr(HR+8*u+4*(j>>1),4)}, {vr(AC[j],16)}")
            if j == 2: a(f"s_call_b64 s[96:97], L_wo4")
        a(f"""s_add_u32 s{sK0}, s{sK0}, 1
        s_cmp_lt_u32 s{sK0}, s{sK1}
        s_cbranch_scc1 {"L_f2loop" if u == D2 - 1 else f"L_next{u}"}""")
        if u < D2 - 1: a("s_branch L_f2done")
    a("s_branch L_f2done")
    a.label("L_wo4")
    a(f"""s_cmp_lg_u32 s{sK0}, s{sKT}
    s_cbranch_scc1 L_wo4b
    s_cmp_lt_u32 s{sG}, 3
    s_cselect_b32 s{sD}, 68, 36""")
    lds_spin(C_HDONE, f"s{sD}", gGC, 20, sleep=1)
    a.label("L_wo4b")
    a(f"""s_cmp_ge_u32 s{sWS}, s{rW+2}
    s_cbranch_scc1 L_wo4c""")
    for _ in range(2):
        a(f"""s_mov_b32 m0, s{sWM}
        s_add_u32 s{sWM}, s{sWM}, 2048
        buffer_load_dwordx4 v{gSW}, {sr(rW,4)}, s{sWS} offen lds
        buffer_load_dwordx4 v{gSW2}, {sr(rW,4)}, s{sWS} offen offset:1024 lds
        s_add_u32 s{sWS}, s{sWS}, 16384""")
    a.label("L_wo4c")
    a(f"s_setpc_b64 s[96:97]")
    a.label("L_f2done")
    TS(8)
    sJ, sFO, sOO, sRDY = 0, 1, sB, 21
    WF2 = [[88 + 4 * gp for gp in range(8)], [120, 124, 128, 132, 72, 76, 80, 84]]
    def wo_reads(j0, js=(0, 1)):
        for jj in js:
            for gp in range(8):
                o_ = gp * 8192 + (j0 + jj) * 2048
                a(f"ds_read_b64_tr_b16 {vr(WF2[jj][gp],2)}, v{gWO} offset:{o_}\nds_read_b64_tr_b16 {vr(WF2[jj][gp]+2,2)}, v{gWO} offset:{o_+1024}")
    def o_loads(j0, js=(0, 1)):
        a(f"s_mov_b32 s{sA}, s{sOO}")
        for gp in range(8):
            for jj in js: a(f"buffer_load_dwordx4 {vr(OFR[jj][gp],4)}, v{gL16}, {sr(rWS,4)}, s{sA} offen offset:{(j0+jj)*1024} sc1")
            if gp < 7: a(f"s_add_u32 s{sA}, s{sA}, 4096")
    def o_mf(after, low, js=(0, 1), lg=0):
        a(f"s_waitcnt lgkmcnt({lg})")
        if low: a("s_setprio 0")
        left = 8 * len(js)
        for gp in range(8):
            for jj in js:
                left -= 1
                a(f"{'' if after is None else f's_waitcnt vmcnt({left+after})'}\n {MF32} {vr(AC[0],16)}, {vr(WF2[jj][gp],4)}, {vr(OFR[jj][gp],4)}, {vr(AC[0],16)} ; keepprio")
        if low: a("s_setprio 3")
    def o_poll(sh, lab, pre, nb=16):
        if pre: a(f"s_branch {lab}w")
        a.label(lab)
        if opt.get("osl"): a(f"s_sleep {opt['osl']}")
        a(f"buffer_load_dwordx2 v[14:15], v{gFL}, {sr(rWS,4)}, s{sFO} offen sc1")
        a.label(lab + "w")
        a(f"""s_add_u32 s23, s23, 1
        s_cmp_gt_u32 s23, {SPIN_CAP}
        s_cbranch_scc1 L_gdone
        s_waitcnt vmcnt(0)
        v_cmp_ne_u64 vcc, {sr(sEP,2)}, v[14:15]
        s_nop 1
        s_bfe_u32 s{sA}, vcc_lo, {(nb << 16) + sh}
        s_cbranch_scc1 {lab}""")
    a(f"""s_lshl_b32 s{sFO}, s{sRB}, 10
    s_lshl_b32 s{sA}, s{sRT}, 3
    s_add_u32 s{sFO}, s{sFO}, s{sA}
    s_add_u32 s{sFO}, s{sFO}, {FLG_O}
    v_and_b32 v20, 24, v0
    v_lshl_add_u32 v{gFL}, v20, 1, v{gFL}
    v_add_u32 v23, s{sRNG}, v{gL16}
    buffer_load_dwordx2 v[14:15], v{gFL}, {sr(rWS,4)}, s{sFO} offen sc1
    s_lshl_b32 s{sOO}, s{sRB}, 1
    s_add_u32 s{sOO}, s{sOO}, s{sRT}
    s_lshl_b32 s{sOO}, s{sOO}, 15
    s_add_u32 s{sOO}, s{sOO}, {OF}
    s_mov_b32 s{sJ}, 0
    s_mov_b32 s{sLOOP}, 0
    s_mov_b32 s23, 0""")
    srd(rT, pOUT, 0x200000)
    for j in range(1, 4):
        for q in range(4): a(f"ds_write_b128 v23, {vr(AC[j]+4*q,4)} offset:{(j-1)*4096+q*1024}")
    a(f"""s_waitcnt vmcnt(1) lgkmcnt(12)
    s_cmp_ge_u32 s{sPF}, s{sNF}
    s_cbranch_scc1 L_nopf""")
    o_flag()
    flag_store(sA, 20)
    a.label("L_nopf")
    lds_inc(C_GBAR, gGC, 23)
    a(f"""s_waitcnt vmcnt(0)
    v_cmp_ne_u64 vcc, {sr(sEP,2)}, v[14:15]
    s_nop 1
    s_and_b32 s22, vcc_lo, 0xffff
    s_cmp_lt_u32 s{sNF}, 8
    s_cselect_b32 s22, 1, s22
    s_cmp_lg_u32 s22, 0
    s_cbranch_scc1 L_red""")
    o_loads(0)
    a.label("L_red")
    lds_spin(C_GBAR, 4, gGC, 14, sleep=1)
    for j in range(1, 4):
        a(f"s_xor_b32 s{sA}, s{sI}, {j}\ns_mul_i32 s{sA}, s{sA}, {RSZ}\ns_add_u32 s{sA}, s{sA}, {RING}\nv_add_u32 v14, s{sA}, v{gL16}")
        for q in range(4): a(f"ds_read_b128 {vr(AC[j]+4*q,4)}, v14 offset:{(j-1)*4096+q*1024}")
    a(f"buffer_load_dwordx2 v[14:15], v{gFL}, {sr(rWS,4)}, s{sFO} offen sc1")
    for j in range(1, 4):
        a(f"s_waitcnt lgkmcnt({(3-j)*4})")
        for q in range(8): a(f"v_pk_add_f32 {vr(AC[0]+2*q,2)}, {vr(AC[0]+2*q,2)}, {vr(AC[j]+2*q,2)}")
    TS(9)
    a(f"""s_cmp_eq_u32 s22, 0
    s_cbranch_scc1 L_pair
    s_cmp_lt_u32 s{sNF}, 8
    s_cbranch_scc1 L_own""")
    a.label("L_ev")
    a(f"""s_cmp_ge_u32 s{sPF}, s{sNF}
    s_cbranch_scc1 L_evf""")
    o_flag()
    a("s_waitcnt vmcnt(0)")
    flag_store(sA, 14)
    TS(13)
    a.label("L_evf")
    a(f"s_cmp_lg_u32 s{sJ}, 0\ns_cbranch_scc1 L_gdone")
    o_poll(0, "L_p01", False)
    o_loads(0)
    a.label("L_pair")
    wo_reads(0)
    a(f"""s_waitcnt vmcnt(0)
    v_cmp_ne_u64 vcc, {sr(sEP,2)}, v[14:15]""")
    o_mf(None, True, (0,), 15)
    a("s_waitcnt lgkmcnt(0)")
    wo_reads(2, (0,))
    a(f"s_bfe_u32 s22, vcc_lo, 0x80010\ns_cbranch_scc1 L_no2")
    o_loads(2, (0,))
    a.label("L_no2")
    a(f"buffer_load_dwordx2 v[14:15], v{gFL}, {sr(rWS,4)}, s{sFO} offen sc1")
    o_mf(None, True, (1,), 15)
    wo_reads(2, (1,))
    TS(5)
    a(f"s_cmp_eq_u32 s22, 0\ns_cbranch_scc1 L_have2")
    o_poll(16, "L_p2", True, 8)
    o_loads(2, (0,))
    a(f"s_lshr_b32 s{sA}, vcc_lo, 24\ns_cbranch_scc0 L_l3")
    a(f"buffer_load_dwordx2 v[14:15], v{gFL}, {sr(rWS,4)}, s{sFO} offen sc1")
    a.label("L_m2")
    o_mf(1, True, (0,))
    o_poll(24, "L_p3", True, 8)
    TS(4)
    o_loads(2, (1,))
    a("s_branch L_m3")
    a.label("L_have2")
    a(f"""s_waitcnt vmcnt(0)
    v_cmp_ne_u64 vcc, {sr(sEP,2)}, v[14:15]
    s_nop 1
    s_lshr_b32 s{sA}, vcc_lo, 24
    s_cbranch_scc0 L_l3
    buffer_load_dwordx2 v[14:15], v{gFL}, {sr(rWS,4)}, s{sFO} offen sc1
    s_branch L_m2""")
    a.label("L_l3")
    o_loads(2, (1,))
    o_mf(8, False, (0,))
    a.label("L_m3")
    o_mf(0, False, (1,))
    TS(10)
    a("s_nop 11")
    for j in range(8): a(f"v_cvt_pk_bf16_f32 v{AC[0]+j}, v{AC[0]+2*j}, v{AC[0]+2*j+1}")
    for j in (0, 1, 4, 5): a(f"v_permlane32_swap_b32 v{AC[0]+j}, v{AC[0]+j+2}")
    for q in range(2): a(f"buffer_store_dwordx4 {vr(AC[0]+4*q,4)}, v7, {sr(rT,4)}, s{sE} offen offset:{32*q}")
    a("s_branch L_gdone")
    a.label("L_own")
    a(f"""ds_read_b32 v{gCV}, v{gCN} offset:{B_TAG}
    s_add_u32 s23, s23, 1
    s_cmp_gt_u32 s23, {SPIN_CAP}
    s_cbranch_scc1 L_gdone
    s_sleep {opt.get("ownsleep", 0)}""")
    a.label("L_ownw")
    a(f"""s_waitcnt lgkmcnt(0)
    v_cmp_ne_u32 vcc, s{sFT}, v{gCV}
    s_nop 1
    s_cbranch_vccnz L_own
    s_branch L_fin""")
    for p in range(2):
        a.label(f"L_f1t{p}")
        if p == 1:
            a(f"""s_cmp_lg_u32 s{sD}, s{sNG}
            s_cbranch_scc1 L_f1u
            s_mov_b32 s{rW}, s{rX}
            s_mov_b32 s{rW+1}, s{rX+1}
            s_mov_b32 s{rW+2}, s{rX+2}""")
            for b in range(4): a(f"v_add_u32 v{gV1+b}, {b*7168}, v{gSW}")
            a.label("L_f1u")
            a(f"s_cmp_eq_u32 s{sD}, 14\ns_cselect_b32 s{rW+2}, 0, s{rW+2}")
        a(f"""s_sub_u32 s{sSO}, m0, s{sRNG}
        s_lshl_b32 s{sSO}, s{sSO}, 3
        s_add_u32 s{sSO}, s{sSO}, s{sSW}
        s_branch L_f1r{p}""")
    a.label("L_half")
    a(f"""s_xor_b32 s{sC}, s{sI}, 1
    s_mul_i32 s{sC}, s{sC}, {RSZ}
    s_add_u32 s{sC}, s{sC}, {RING}
    s_waitcnt lgkmcnt(0)
    v_add_u32 v24, s{sRNG}, v{gL16}
    v_add_u32 v25, s{sC}, v{gL16}
    v_lshl_add_u32 v26, s{sRT}, 2, v{gGC}
    v_and_b32 v28, 7, v0
    v_lshlrev_b32 v28, 7, v28
    s_lshl_b32 s{sC}, s{sRB}, 10
    s_add_u32 s{sC}, s{sC}, {FLG_H}
    s_waitcnt vmcnt(0)
    buffer_load_dwordx2 {vr(AC[0]+4,2)}, v28, {sr(rWS,4)}, s{sC} offen sc1
    s_cmp_eq_u32 s{sCT}, 0
    s_cbranch_scc0 L_half1""")
    for keep, (Hk, Hs) in enumerate(((H0, H1), (H1, H0))):
        if keep: a.label("L_half1")
        for q in range(4): a(f"ds_write_b128 v24, {vr(Hs+4*q,4)} offset:{8192+q*1024}")
        a(f"{MF32} {vr(Hk,16)}, v[8:11], {'v[12:15]' if keep == 0 else 'v[14:17]'}, {vr(Hk,16)}")
        lds_inc(C_PX, 26, 27)
        lds_spin(C_PX, 2, 26, 27, sleep=0)
        for q in range(4): a(f"ds_read_b128 {vr(Hs+4*q,4)}, v25 offset:{8192+q*1024}")
        a("s_waitcnt lgkmcnt(0)")
        lds_inc(C_PX, 26, 27)
        for q in range(8): a(f"v_pk_add_f32 {vr(Hk+2*q,2)}, {vr(Hk+2*q,2)}, {vr(Hs+2*q,2)}")
        a(f"s_branch L_epi{keep}")
    a.label("L_trip")
    def tripstamp():
        if opt.get("f2ts"):
            a("s_memrealtime s[98:99]\ns_waitcnt lgkmcnt(0)")
            for i in range(1, 10): a(f"s_mov_b32 s{TS0+2*i}, s{TS0+2*i+2}")
            a(f"s_mov_b32 s{TS0+20}, s98")
    tripstamp()
    a(f"""s_setprio 3
    v_cmp_ne_u32 {sr(sRET,2)}, s{sFT}, v{gCV}
    s_cmp_ge_u32 s{sPF}, s{sNF}
    s_cbranch_scc1 L_trip1""")
    o_flag()
    flag_store(sA, 20)
    a.label("L_trip1")
    a(f"""s_add_u32 s{sA}, s{sK0}, {D2}
    s_cmp_lg_u32 s{sA}, s27
    s_cbranch_scc1 L_trip1b
    buffer_load_dwordx2 v[14:15], v{gFL}, {sr(rWS,4)}, s{sFH} offen sc1""")
    a.label("L_trip1b")
    a(f"""s_cmp_lg_u32 s{sK0}, s27
    s_cbranch_scc1 L_trip2
    s_cmp_eq_u32 s{sXC}, 0
    s_cbranch_scc1 L_trip2
    v_cmp_ne_u64 vcc, {sr(sEP,2)}, v[14:15]
    s_lshl_b32 s{sSW}, s{sXC}, 14
    s_lshl_b32 s{sA}, s{sG}, 7
    s_add_u32 s{sSW}, s{sSW}, s{sA}
    s_lshl_b32 s{sSH}, s{sXC}, 11
    s_add_u32 s{sSH}, s{sSH}, s{sHB}""")
    a("s_cbranch_vccz L_crossok")
    flag_poll(gFL, sFH, 14, sleep=opt.get("hsleep", 2))
    a.label("L_crossok")
    TS(14)
    a.label("L_trip2")
    a(f"""s_cmp_lt_u32 s{sNF}, 8
    s_cselect_b32 s{sD}, s{sRET}, 1
    s_cmp_eq_u32 s{sLOOP}, 1
    s_cselect_b32 s{sD}, s{sD}, 1
    s_cmp_eq_u32 s{sD}, 0
    s_cbranch_scc1 L_fin""")
    a.label("L_trip3")
    if opt.get("ef", 1): a(f"s_cmp_eq_u32 s{sLOOP}, 3\ns_cbranch_scc1 L_pre0")
    tripstamp()
    a(f"s_setprio {GP}\ns_branch L_tripped")
    a.label("L_fin")
    TS(12)
    def sl_read(p_, d):
        a(f"ds_read_b128 {vr(d,4)}, v{gOA} offset:{p_*SLOT}\nds_read_b128 {vr(d+4,4)}, v{gOA} offset:{p_*SLOT+1024}")
    def sl_add(d):
        for j in range(4): a(f"v_pk_add_f32 {vr(FA+8+2*j,2)}, {vr(FA+8+2*j,2)}, {vr(d+2*j,2)}")
    for p_, d in enumerate((20, 21, 23, gCV)): a(f"ds_read_b32 v{d}, v{gLA} offset:{p_*SLOT+2048}")
    sl_read(0, FA + 8); sl_read(1, FA)
    def o_addr():
        a(f"""s_and_b32 s{sA}, s{sNF}, 1
        s_lshl_b32 s{sF}, s{sRB}, 1
        s_add_u32 s{sA}, s{sA}, s{sF}
        s_lshl_b32 s{sA}, s{sA}, 3
        s_add_u32 s{sA}, s{sA}, s{sG}
        s_lshl_b32 s{sA}, s{sA}, 2
        s_lshr_b32 s{sF}, s{sNF}, 1
        s_add_u32 s{sA}, s{sA}, s{sF}
        s_lshl_b32 s{sA}, s{sA}, 10
        s_add_u32 s{sA}, s{sA}, {OF}""")
    a(f"s_mov_b32 s{sD}, 0\ns_cmp_eq_u32 s{sLOOP}, 0\ns_cbranch_scc1 L_finw\ns_waitcnt lgkmcnt(0)")
    sl_add(FA); sl_read(2, FA)
    a(f"v_add_f32 v20, v20, v21\nv_add_f32 v23, v23, v{gCV}\ns_waitcnt lgkmcnt(0)")
    sl_add(FA); sl_read(3, FA)
    a("s_waitcnt lgkmcnt(0)")
    sl_add(FA)
    o_addr()
    a("s_branch L_fin1")
    a.label("L_finw")
    sl_read(2, 24); sl_read(3, 32)
    o_addr()
    a(f"s_waitcnt lgkmcnt(4)\nv_add_f32 v20, v20, v21\nv_add_f32 v23, v23, v{gCV}")
    sl_add(FA)
    a("s_waitcnt lgkmcnt(0)")
    sl_add(24); sl_add(32)
    a.label("L_fin1")
    a(f"v_add_f32 v{FA}, v20, v23")
    a.label("L_fin2")
    a(f"v_rcp_f32 v{FA+2}, v{FA}\ns_mov_b32 s{sF}, 0x76800000")
    for j in range(4): a(f"v_pk_mul_f32 {vr(FA+8+2*j,2)}, {vr(FA+8+2*j,2)}, {vr(FA+2,2)} op_sel_hi:[1,0]")
    for j in range(4): a(f"v_cvt_pk_bf16_f32 v{FA+4+j}, v{FA+8+2*j}, v{FA+9+2*j}")
    grp_store([f"buffer_store_dwordx4 {vr(FA+4,4)}, v{gL16}, {sr(rWS,4)}, s{sA} offen"], sLOD)
    TS(3)
    a(f"""v_cmp_nle_f32 vcc, {hex(LMIN)}, v{FA}
    v_cmp_nge_f32 {sr(sRET,2)}, s{sF}, v{FA}
    v_pk_mul_f32 {vr(FA+2,2)}, {vr(FA+8,2)}, 0""")
    for j in range(1, 4): a(f"v_pk_fma_f32 {vr(FA+2,2)}, {vr(FA+8+2*j,2)}, 0, {vr(FA+2,2)}")
    a(f"""s_or_b64 {sr(sRET,2)}, {sr(sRET,2)}, vcc
    v_cmp_u_f32 vcc, v{FA+2}, v{FA+3}
    s_nop 1
    s_or_b64 {sr(sRET,2)}, {sr(sRET,2)}, vcc
    s_cselect_b32 s{sF}, 1, 0
    s_cmp_gt_u32 s{sF}, s{sD}
    {"s_nop 0" if opt.get("nofb") else "s_cbranch_scc1 L_fallback"}
    s_add_u32 s{sNF}, s{sNF}, 8""")
    a(f"v_mov_b32 v20, s{sEP}\nds_write_b32 v{gCN}, v20 offset:{B_TAG}")
    a(f"""s_cmp_eq_u32 s{sLOOP}, 0
    s_cbranch_scc1 L_ev
    s_branch L_trip3""")
    a.label("L_gdone")
    if ts: a("s_waitcnt vmcnt(0)")
    TS(11)
    if opt.get("padto"):
        a.label("L_pad")
        a(f"s_memrealtime s[96:97]\ns_waitcnt lgkmcnt(0)\ns_sub_u32 s96, s96, s{sEP}\ns_cmp_lt_u32 s96, {opt['padto']}\ns_cbranch_scc1 L_pad")
    ts_dump()
    a.label("L_end")
    a("s_endpgm")

    for X, Y, lines in far:
        a.label(X)
        for l in lines: a(l + " sc1")
        a(f"s_branch {Y}")
    a.label("L_fallback")
    FQ, FK, FV, FS, FC, FT = 24, 28, 32, 40, 56, 120
    a(f"""s_cmp_eq_u32 s{sLOOP}, 0
    s_cbranch_scc1 L_fbgo
    s_max_u32 s{sLOOP}, s{sLOOP}, 2
    s_branch L_trip3""")
    a.label("L_fbgo")
    a(f"""s_mul_i32 s{sA}, s{sNF}, {QST}
    s_add_u32 s{sA}, s{sA}, {QF}
    v_add_u32 v{FT}, s{sA}, v{gL16}
    ds_read_b128 {vr(FQ,4)}, v{FT}
    v_mov_b32 v{FT+2}, 0xff800000""")
    a(f"s_mov_b32 s{sA}, 0")
    a.label("L_fb1")
    a(f"""buffer_load_dwordx4 {vr(FK,4)}, v{gL16}, {sr(rWS,4)}, s{sA} offen sc1
    s_waitcnt vmcnt(0) lgkmcnt(0)
    {MF32} {vr(FS,16)}, {vr(FK,4)}, {vr(FQ,4)}, 0
    s_nop 11""")
    maxtree(FS, FT + 3)
    a(f"""v_max_f32 v{FT+2}, v{FT+2}, v{FT+3}
    s_add_u32 s{sA}, s{sA}, 1024
    s_cmp_lt_u32 s{sA}, 0x10000
    s_cbranch_scc1 L_fb1
    v_mov_b32 v{FT+3}, v{FT+2}
    s_nop 1
    v_permlane32_swap_b32 v{FT+2}, v{FT+3}
    v_max_f32 v{FT+2}, v{FT+2}, v{FT+3}""")
    for i in range(16): a(f"v_sub_f32 v{FC+i}, 0, v{FT+2}\nv_mov_b32 v{FA+i}, 0")
    a(f"s_mov_b32 s{sA}, 0")
    a.label("L_fb2")
    a(f"""s_add_u32 s{sF}, s{sA}, {VF}
    buffer_load_dwordx4 {vr(FK,4)}, v{gL16}, {sr(rWS,4)}, s{sA} offen sc1
    buffer_load_dwordx4 {vr(FV,4)}, v{gL16}, {sr(rWS,4)}, s{sF} offen sc1""")
    for i in range(4): a(f"v_mov_b32 v{FV+4+i}, 0x3f803f80")
    a(f"""s_waitcnt vmcnt(0)
    {MF32} {vr(FS,16)}, {vr(FK,4)}, {vr(FQ,4)}, {vr(FC,16)}""")
    for i in range(4): a(f"v_permlane16_swap_b32 v{FV+4+i}, v{FV+i}")
    a("s_nop 7")
    for i in range(16): a(e(FS, i))
    a(f"""v_mov_b32 v{FT}, 0xdddddddd
    s_nop 1
    v_smfmac_f32_32x32x32_bf16 {vr(FA,16)}, {vr(FV,4)}, {vr(FS,8)}, v{FT}
    v_smfmac_f32_32x32x32_bf16 {vr(FA,16)}, {vr(FV+4,4)}, {vr(FS+8,8)}, v{FT}
    s_add_u32 s{sA}, s{sA}, 1024
    s_cmp_lt_u32 s{sA}, 0x10000
    s_cbranch_scc1 L_fb2
    s_nop 15
    s_mov_b32 s{sD}, 1""")
    o_addr()
    a("s_branch L_fin2")

    if opt.get("x_nomf"):
        i0 = a.lines.index("L_f1loop:"); i1 = a.lines.index("L_gdone:")
        for i in range(i0, i1):
            if a.lines[i].startswith("v_mfma"): a.lines[i] = "s_nop 9"
    if opt.get("x_nolds"):
        i0 = a.lines.index("L_f1loop:"); i1 = a.lines.index("L_f2done:")
        for i in range(i0, i1):
            if a.lines[i].startswith(("ds_read_b128", "ds_read_b64_tr")): a.lines[i] = "s_nop 0"
    if opt.get("x_novm"):
        i0 = a.lines.index("L_f1loop:"); i1 = a.lines.index("L_f2done:")
        for i in range(i0, i1):
            if a.lines[i].startswith("buffer_load_dwordx4"): a.lines[i] = "s_nop 3"
    if opt.get("x_nova"):
        i0 = a.lines.index("L_f1loop:"); i1 = a.lines.index("L_gdone:")
        for i in range(i0, i1):
            if a.lines[i].startswith(("v_max_f32", "v_pk_", "v_cvt", "v_mul_f32")): a.lines[i] = "s_nop 0"
    if opt.get("x_swap"):
        import re
        i0 = a.lines.index("L_f2loop:" if opt["x_swap"] == 1 else "L_f1loop:"); i1 = a.lines.index("L_f2done:" if opt["x_swap"] == 1 else "L_epi0:")
        for i in range(i0, i1):
            m = re.match(r"(v_mfma_f32_32x32x16_bf16 \S+), (\S+), (\S+), (\S+)", a.lines[i])
            if m: a.lines[i] = f"{m.group(1)}, {m.group(3)}, {m.group(2)}, {m.group(4)}"
    if opt.get("x_mf16"):
        import re
        i0 = a.lines.index("L_f1loop:" if opt["x_mf16"] != 2 else "L_f2loop:"); i1 = a.lines.index("L_f2done:")
        cnt = {}
        for i in range(i1, i0, -1):
            m = re.match(r"v_mfma_f32_32x32x16_bf16 v\[(\d+):\d+\], (\S+), (\S+), v", a.lines[i])
            if m and m.group(2) != "v[8:11]":
                d = int(m.group(1))
                cnt[d] = cnt.get(d, 0) + 1
                d += 8 * (cnt[d] & 1)
                a.lines[i:i+1] = [f"v_mfma_f32_16x16x32_bf16 v[{d+4*q}:{d+4*q+3}], {m.group(2)}, {m.group(3)}, v[{d+4*q}:{d+4*q+3}]" for q in range(2)]
    i0 = a.lines.index("L_atop:"); i1 = a.lines.index("L_vs0:")
    for i in range(i1, i0, -1):
        l = a.lines[i]
        if opt.get("y_noadd") and l.startswith("ds_add_f64"): del a.lines[i]
        elif opt.get("y_nocvt") and l.startswith("v_cvt_f64"): del a.lines[i]
        elif opt.get("y_noq") and l.startswith("ds_read_b128"): del a.lines[i]
        elif opt.get("y_noexec") and ("exec_hi" in l): del a.lines[i]
        elif opt.get("y_nobr") and l.startswith("s_cbranch_vccnz"): del a.lines[i]
    if opt.get("x_p0", 1):
        i0 = a.lines.index("L_f1loop:"); i1 = a.lines.index("L_gdone:")
        for i in range(i1, i0, -1):
            if a.lines[i].startswith("v_mfma") and "keepprio" not in a.lines[i]: a.lines[i:i+1] = [f"s_setprio {opt.get('gmp', 0)}", a.lines[i], "s_setprio 3"]
    probs = lint(a.lines)
    for p in probs: print("LINT", p, file=sys.stderr)
    head = f"""; fused layernorm + MQA attention + squared-relu FFN, one persistent launch (generated by gen/gen.py)
; @launch grid=(256,1,1) block=(768,1,1) lds=163840
.amdgcn_target "amdgcn-amd-amdhsa--gfx950"
.text
.globl {NAME}_kernel
.p2align 8
.type {NAME}_kernel,@function
{NAME}_kernel:
"""
    tail = f""".section .rodata,"a"
.p2align 6
.amdhsa_kernel {NAME}_kernel
  .amdhsa_next_free_vgpr 168
  .amdhsa_next_free_sgpr 100
  .amdhsa_accum_offset 168
  .amdhsa_group_segment_fixed_size 0
  .amdhsa_kernarg_size 104
  .amdhsa_user_sgpr_count 2
  .amdhsa_user_sgpr_kernarg_segment_ptr 1
  .amdhsa_system_sgpr_workgroup_id_x 1
.end_amdhsa_kernel
"""
    return head + a.text() + tail

if __name__ == "__main__":
    open("k.s", "w").write(gen(False))
    open("k_ts.s", "w").write(gen(True))
    open("k_ts_c.s", "w").write(gen(True, dict(cyc=1)))
    import json
    var = json.load(open("variants.json")) if len(sys.argv) > 1 else []
    for n, d in enumerate(var):
        open(f"k_x{n}.s", "w").write(gen(True, dict(d, lite=0 if d.get('pro') or d.get('full') else 1)))
```
